```python
import torch

def _softmax(x, axis=-1):
    return torch.softmax(x, dim=axis)
def _gelu(x):
    return torch.nn.functional.gelu(x, approximate="tanh")
def _silu(x):
    return torch.nn.functional.silu(x)
def _sigmoid(x):
    return torch.sigmoid(x)
def _layernorm(x, axis=-1, eps=1e-5):
    m = x.mean(dim=axis, keepdim=True)
    v = x.var(dim=axis, keepdim=True, unbiased=False)
    return (x - m) / torch.sqrt(v + eps)
def _scatter_add(tgt, idx, src, axis=0):
    return tgt.clone().index_add_(axis, idx, src)
def _segment_sum(src, seg, n):
    out = torch.zeros((n,) + src.shape[1:], dtype=src.dtype)
    return out.index_add_(0, seg, src)
def _pad(x, pw):
    flat = tuple(v for pair in reversed(pw) for v in pair)
    return torch.nn.functional.pad(x, flat)

kernel_name = 'interleave_layers__ssm_conv_s4__dense_activation_relu__prompt'

def setup_inputs():

    _w = (lambda a: (lambda t: t.to(torch.bfloat16) if t.is_floating_point() else t)(torch.as_tensor(a)))
    def _A_setup():
        B, L, D, N = 1, 2048, 448, 256
        A_re = -(lambda _x: torch.exp(torch.as_tensor(_x)))((lambda *s: torch.randn(*s, dtype=torch.bfloat16) * 1.6)(D, N))
        A_im = torch.pi * (lambda *s: torch.randn(*s, dtype=torch.bfloat16) * 0.2)(D, N)
        B_re = (lambda *s: torch.randn(*s, dtype=torch.bfloat16) * 0.2)(D, N)
        B_im = (lambda *s: torch.randn(*s, dtype=torch.bfloat16) * 0.2)(D, N)
        C_re = (lambda *s: torch.randn(*s, dtype=torch.bfloat16) * 0.2)(D, N)
        C_im = (lambda *s: torch.randn(*s, dtype=torch.bfloat16) * 0.2)(D, N)
        log_dt = (lambda *s: torch.randn(*s, dtype=torch.bfloat16) * 0.2)(D) * 0.5 - 4.0
        Dskip = (lambda *s: torch.randn(*s, dtype=torch.bfloat16) * 0.2)(D)
        return {
            "u": _w((lambda *s: torch.randn(*s, dtype=torch.bfloat16) * 0.05)(B, L, D)),
            "A_re": _w(A_re),
            "A_im": _w(A_im),
            "B_re": _w(B_re),
            "B_im": _w(B_im),
            "C_re": _w(C_re),
            "C_im": _w(C_im),
            "log_dt": _w(log_dt),
            "Dskip": _w(Dskip),
        }
    _A_in = _A_setup()

    def _B_setup():
        B, S, D, Dff = 1, 2048, 448, 1792
        return {
            "x": _w((lambda *s: torch.randn(*s, dtype=torch.bfloat16) * 0.05)(B, S, D)),
            "w1": _w((lambda *s: torch.randn(*s, dtype=torch.bfloat16) * 0.05)(D, Dff)),
            "w2": _w((lambda *s: torch.randn(*s, dtype=torch.bfloat16) * 0.05)(Dff, D)),
        }
    _B_in = _B_setup()

    return {
        "A_u": _A_in["u"],
        "A_A_re": _A_in["A_re"],
        "A_A_im": _A_in["A_im"],
        "A_B_re": _A_in["B_re"],
        "A_B_im": _A_in["B_im"],
        "A_C_re": _A_in["C_re"],
        "A_C_im": _A_in["C_im"],
        "A_log_dt": _A_in["log_dt"],
        "A_Dskip": _A_in["Dskip"],
        "B_x": _B_in["x"],
        "B_w1": _B_in["w1"],
        "B_w2": _B_in["w2"],
    }

def reference(A_u, A_A_re, A_A_im, A_B_re, A_B_im, A_C_re, A_C_im, A_log_dt, A_Dskip, B_x, B_w1, B_w2):
    def _A_ref(u, A_re, A_im, B_re, B_im, C_re, C_im, log_dt, Dskip):
        Bsz, L, D = u.shape
        dt = torch.exp(log_dt)[:, None]
        A = A_re + 1j * A_im
        Bc = B_re + 1j * B_im
        Cc = C_re + 1j * C_im
        logdA = dt * A
        dB = dt * Bc
        l = (lambda x, dt: x.to(dt))(torch.arange(L), A_re.dtype)
        P = torch.exp(logdA[:, :, None] * l[None, None, :])
        K = torch.einsum("dn,dnl,dn->dl", Cc, P, dB).real
        L2 = 2 * L
        Kp = _pad(K, ((0, 0), (0, L)))
        up = (lambda x, *d: x.permute(*d))(u, 0, 2, 1)
        up = _pad(up, ((0, 0), (0, 0), (0, L)))
        Kf = (lambda x, axes=(-2,-1): torch.fft.rfft2(x.float(), dim=axes))(Kp[:, None, :], axes=(-2, -1))
        Uf = (lambda x, axes=(-2,-1): torch.fft.rfft2(x.float(), dim=axes))(up[:, :, None, :], axes=(-2, -1))
        Yf = Uf * Kf[None, :, :, :]
        y = (lambda x, s, axes=(-2,-1): torch.fft.irfft2(x, s=s, dim=axes).to(torch.bfloat16))(Yf, (1, L2), axes=(-2, -1))[:, :, 0, :L]
        y = (lambda x, *d: x.permute(*d))(y, 0, 2, 1) + u * Dskip[None, None, :]
        return y

    def _B_ref(x, w1, w2):
        h = torch.einsum("bsd,df->bsf", x, w1)
        zero = torch.zeros_like(h)
        h = torch.maximum(h, zero)
        return torch.einsum("bsf,fd->bsd", h, w2)

    x = A_u
    x = x + _A_ref(_layernorm(x, axis=-1), A_A_re, A_A_im, A_B_re, A_B_im, A_C_re, A_C_im, A_log_dt, A_Dskip)
    x = x + _B_ref(_layernorm(x, axis=-1), B_w1, B_w2)
    x = x + _A_ref(_layernorm(x, axis=-1), A_A_re, A_A_im, A_B_re, A_B_im, A_C_re, A_C_im, A_log_dt, A_Dskip)
    x = x + _B_ref(_layernorm(x, axis=-1), B_w1, B_w2)
    return x
```

```python
import re

TRANS = ("v_exp_f32", "v_log_f32", "v_rcp_f32", "v_rsq_f32", "v_sqrt_f32", "v_sin_f32", "v_cos_f32")
REG_RE = re.compile(r"^(-|abs\(|\|)?([vas])(\d+|\[(\d+):(\d+)\])\)?\|?$")


def regs_of(tok):
    tok = tok.strip()
    if tok in ("vcc", "exec", "m0", "scc"):
        return {tok}
    if tok in ("vcc_lo", "vcc_hi"):
        return {"vcc"}
    if tok in ("exec_lo", "exec_hi"):
        return {"exec"}
    m = REG_RE.match(tok)
    if not m:
        return set()
    k = m.group(2)
    if m.group(4) is not None:
        return {f"{k}{i}" for i in range(int(m.group(4)), int(m.group(5)) + 1)}
    return {f"{k}{int(m.group(3))}"}


def split_ops(s):
    out, depth, cur = [], 0, ""
    for ch in s:
        if ch in "[(":
            depth += 1
        if ch in "])":
            depth -= 1
        if ch == "," and depth == 0:
            out.append(cur.strip())
            cur = ""
        else:
            cur += ch
    if cur.strip():
        out.append(cur.strip())
    return out


class Ins:
    __slots__ = ("text", "mn", "cls", "w", "r", "passes", "cset", "dpp", "wide", "data")


def parse(text):
    t = text.split(";")[0].strip()
    mn, _, rest = t.partition(" ")
    ops = split_ops(rest)
    mods = ""
    if ops:
        last = ops[-1].split(None, 1)
        ops[-1] = last[0]
        mods = last[1] if len(last) > 1 else ""
    i = Ins()
    i.text, i.mn = text, mn
    i.w, i.r = set(), set()
    i.passes, i.cset, i.dpp, i.wide, i.data = 0, set(), False, False, set()
    R = [regs_of(o) for o in ops]
    allr = lambda a: set().union(*a) if a else set()
    if mn.startswith("v_mfma"):
        i.cls = "mfma"
        i.passes = 8 if "32x32" in mn else 4
        i.w = R[0]
        i.r = R[1] | R[2] | R[3]
        i.cset = R[3]
    elif mn.startswith("ds_"):
        i.cls = "ds"
        if mn.startswith("ds_read") or mn.startswith("ds_bpermute") or mn.startswith("ds_swizzle"):
            i.w = R[0]
            i.r = allr(R[1:])
            if "d16" in mn:
                i.r |= R[0]
        else:
            i.r = allr(R)
    elif mn.startswith("buffer_") or mn.startswith("global_"):
        i.cls = "vm"
        lds = " lds" in (" " + mods) or "load_lds" in mn
        if lds:
            i.r = allr(R) | {"m0"}
        elif "_load" in mn:
            i.w = R[0]
            i.r = allr(R[1:])
            if "d16" in mn:
                i.r |= R[0]
        else:
            i.r = allr(R)
            if mn.startswith("buffer_"):
                i.data = R[0]
            else:
                i.data = R[1]
            i.wide = mn.endswith("x4") or mn.endswith("x3")
    elif mn.startswith("s_load") or mn in ("s_memtime", "s_memrealtime"):
        i.cls = "smem"
        i.w = R[0]
        i.r = allr(R[1:])
    elif mn.startswith("s_"):
        i.cls = "salu"
        if mn.startswith("s_cmp") or mn.startswith("s_cbranch") or mn in (
            "s_branch", "s_barrier", "s_nop", "s_waitcnt", "s_sleep", "s_endpgm", "s_setprio", "s_setpc_b64"):
            i.r = allr(R)
        else:
            i.w = R[0]
            i.r = allr(R[1:])
            if "saveexec" in mn:
                i.w |= {"exec"}
    elif mn.startswith("v_"):
        i.cls = "valu"
        i.w = set(R[0])
        i.r = allr(R[1:])
        if mn.startswith("v_swap") or "permlane" in mn:
            i.w |= R[1]
            i.r |= R[0]
        if mn.startswith("v_fmac") or mn.startswith("v_dot2c") or mn.startswith("v_writelane"):
            i.r |= R[0]
        if "_co_" in mn:
            i.w |= R[1]
        if mn.startswith("v_cndmask") and len(ops) == 3:
            i.r |= {"vcc"}
        i.dpp = "_dpp" in mn
        if i.dpp:
            i.r |= R[0]
    else:
        raise ValueError("unknown instruction: " + text)
    return i


class Asm:
    def __init__(self):
        self.lines = []
        self.lg = []
        self.vm = []
        self.hist = []
        self.nins = 0

    def raw(self, s):
        self.lines.append(s)

    def c(self, s):
        self.lines.append("    ; " + s)

    def label(self, name):
        self.lines.append(name + ":")

    def _push(self, ins, states=1):
        self.lines.append("    " + ins.text)
        self.hist.append((ins, states))
        self.nins += 1
        if len(self.hist) > 80:
            self.hist.pop(0)

    def nop(self, n):
        while n > 0:
            k = min(n, 16)
            self._push(parse(f"s_nop {k-1}"), k)
            n -= k

    def wait(self, vm=None, lg=None):
        parts = []
        if vm is not None:
            vm = min(vm, 62)
            parts.append(f"vmcnt({vm})")
            self.vm = self.vm[max(0, len(self.vm) - vm):] if vm else []
        if lg is not None:
            lg = min(lg, 14)
            parts.append(f"lgkmcnt({lg})")
            self.lg = self.lg[max(0, len(self.lg) - lg):] if lg else []
        self._push(parse("s_waitcnt " + " ".join(parts)))

    def wait_tag_vm(self, tag):
        idx = [k for k, p in enumerate(self.vm) if p[1] == tag]
        if idx:
            self.wait(vm=len(self.vm) - 1 - idx[-1])

    def forget(self):
        self.vm, self.lg = [], []

    def fence(self, n=0):
        need = 0
        dist = 0
        for ins, st in reversed(self.hist):
            if ins.cls == "mfma":
                need = max(need, (12 if ins.passes == 8 else 8) - dist)
            elif ins.cls == "valu":
                need = max(need, (5 if any(x[0] == "s" or x == "vcc" for x in ins.w) else 3 if "dot2" in ins.mn else 2) - dist)
            elif ins.cls == "vm" and ins.wide:
                need = max(need, 2 - dist)
            elif ins.cls == "salu" and "m0" in ins.w:
                need = max(need, 1 - dist)
            dist += st
        need -= n
        if need > 0:
            self.nop(need)

    def _auto_wait(self, i):
        touch = i.r | i.w
        nv = nl = None
        for k in range(len(self.vm) - 1, -1, -1):
            if self.vm[k][0] & touch:
                nv = len(self.vm) - 1 - k
                break
        for k in range(len(self.lg) - 1, -1, -1):
            if self.lg[k][0] & touch:
                nl = len(self.lg) - 1 - k
                if any(p[1] == "smem" for p in self.lg):
                    nl = 0
                break
        if nv is not None or nl is not None:
            self.wait(vm=nv, lg=nl)

    def _hazard(self, i):
        need, dist = 0, 0
        vregs = lambda s: {x for x in s if x[0] in "va" and x != "vcc"}
        sregs = lambda s: {x for x in s if (x[0] == "s" and x != "scc") or x == "vcc"}
        for p, st in reversed(self.hist):
            req = 0
            if p.cls == "mfma":
                big = p.passes == 8
                if i.cls == "mfma":
                    if p.w & (i.r - i.cset):
                        req = 12 if big else 8
                    elif p.w & i.cset:
                        if not (p.w == i.cset and p.passes == i.passes):
                            req = 10 if big else 6
                    elif p.w & i.w:
                        req = 10 if big else 6
                elif i.cls in ("valu", "vm", "ds"):
                    if p.w & (i.r | i.w):
                        req = 12 if big else 8
                    elif i.cls == "valu" and p.cset & i.w:
                        req = 7 if big else 3
            elif p.cls == "valu":
                pv, ps = vregs(p.w), sregs(p.w)
                if i.cls == "mfma" and pv & i.r:
                    req = max(req, 2)
                if i.cls == "valu":
                    if pv & i.r:
                        if i.dpp or "permlane" in i.mn:
                            req = max(req, 2)
                        if i.mn.startswith("v_readlane") or i.mn.startswith("v_readfirstlane"):
                            req = max(req, 1)
                        if p.mn.replace("_e32", "") in TRANS:
                            req = max(req, 1)
                    if ps & i.r:
                        req = max(req, 4 if "lane" in i.mn else 2)
                if "dot2" in p.mn and pv & (i.r | i.w):
                    if not (i.mn == p.mn and not (pv & (i.r - i.w))):
                        req = max(req, 3)
                if p.mn.replace("_e32", "") in TRANS and i.cls in ("ds", "vm", "mfma") and pv & i.r:
                    req = max(req, 2)
                if i.cls == "vm" and ps & i.r:
                    req = max(req, 5)
                if "exec" in p.w:
                    req = max(req, 5)
            elif p.cls == "salu":
                if "m0" in p.w and i.cls == "vm" and "m0" in i.r:
                    req = max(req, 1)
            elif p.cls == "vm":
                if p.wide and p.data & i.w:
                    req = max(req, 2)
            need = max(need, req - dist)
            dist += st
            if dist >= 12:
                break
        if need > 0:
            self.nop(need)

    def __call__(self, text, tag=None):
        i = parse(text)
        self._auto_wait(i)
        self._hazard(i)
        self._push(i, int(text.split()[1]) + 1 if i.mn == "s_nop" else 1)
        if i.cls == "ds":
            self.lg.append((set(i.w), "ds", tag))
        elif i.cls == "smem":
            self.lg.append((set(i.w), "smem", tag))
        elif i.cls == "vm":
            self.vm.append((set(i.w), tag))
            assert len(self.vm) <= 63, "too many outstanding vmem ops"

    def skip_begin(self, op, lab):
        self(f"{op} {lab}")
        self._saved = getattr(self, "_saved", [])
        self._saved.append((list(self.hist), self.nins))

    def skip_end(self, lab):
        h0, n0 = self._saved.pop()
        blk = self.hist[-min(self.nins - n0, len(self.hist)):] if self.nins > n0 else []
        self.label(lab)
        self.hist = h0 + [(i, 0) for i, _ in blk]

    def text(self):
        return "\n".join(self.lines) + "\n"


def V(i, n=1):
    return f"v{i}" if n == 1 else f"v[{i}:{i+n-1}]"


def A(i, n=1):
    return f"a{i}" if n == 1 else f"a[{i}:{i+n-1}]"


def S(i, n=1):
    return f"s{i}" if n == 1 else f"s[{i}:{i+n-1}]"

def R(name, n=1):
    return (V if name[0] == "v" else A)(name[1], n)
```

```python
import sys, struct
from emit import Asm, V, A, S
from align import align

NAME = "interleave_layers__ssm_conv_s4__dense_activation_relu__prompt"
DIAG = "--diag" in sys.argv
OPT = {}
for a in sys.argv:
    if a.startswith("--") and "=" in a:
        n, v = a[2:].split("=")
        OPT[n] = int(v)
def opt(n, d):
    return OPT.get(n, d)

def f2u(x):
    return "0x%08x" % struct.unpack("<I", struct.pack("<f", x))[0]

FLG_A = 0x0
FLG_G = 0x20000
STATS = (0x38000, 0x30000)
XQ = 0x40000
XQ_SZ = 0x1C0000
X1T = 0x3C0000
HB = 0x740000
H_SZ = 0x700000
W1C = 0x1540000
FLG_W = 0x16C8000
STAMP = 0x1700000
WS_BYTES = 0x1800000

XHALF = 57344 + 32
SCR = 114816
SCR_ST = 8704
ROW_ST = 544
UARR = SCR + 4 * SCR_ST
U_ST = 4576
LDS_BYTES = 163840
WREG = 28672
RED_G = 1152
RED_W = 8 * RED_G
RED_H = 4 * RED_W

sWG, sW = 2, 3
SRD_WS, SRD_OUT, SRD_W1, SRD_W2, SRD_X0, SRD_DBG = 4, 8, 12, 16, 20, 24
sCP, sGAM, sJ, sHH, sDS, sROT = 58, 59, 60, 61, 62, 63
sONES, sHIM = 64, 65
sT0, sT1, sT2, sT3, sT4, sT5 = 66, 67, 68, 69, 70, 71
sLDT, sDSK = 72, 73
sREP, sXQi, sW2B, sXT, sHL, sHS, sFG = 74, 75, 76, 77, 78, 79, 80
sSPIN = 81
sC0, sC1 = 82, 83
sPC = 84
sTM = 86
sWL = 88
sW2O = 89
sSCR, sSCH = 90, 95
sPERM0, sPERM1 = 91, 92
sNH, sCH = 93, 94
sHG = 96

vTID, vL, vL16 = 0, 1, 2
vCIN, vUW, vXW = 3, 4, 5
vKF = 6
vUF, vXR, vCO, vEXW, vEXR = 10, 11, 12, 13, 14
vXA0, vXA1 = 15, 16
vST, vRES, vRW, vRR, vOQ, vOO, vAT = 17, 18, 19, 20, 21, 22, 23
vFW, vFP, vF2P = 24, 25, 26
vCX, vPFH, vPFX = 27, 28, 29
vSTAMP = 30
vONE = 31
WK = 32
W1R = 144
AX = 224
vW2S, vW2R = WK + 104, WK + 105
vDUM = WK + 107
vWF = WK + 108

k = Asm()
SPIN_MAX = 1 << 16
LAY = [0]

def stamp(idx, cyc=False):
    if not DIAG:
        return
    k.wait(lg=0)
    k(f"{'s_memtime' if cyc != bool(opt('cyc', 0)) else 's_memrealtime'} {S(sTM,2)}")
    k.wait(lg=0)
    k(f"v_writelane_b32 {V(vSTAMP)}, {S(sTM)}, {idx + 32*LAY[0]}")

def srd(base, ptr, nbytes):
    k(f"s_mov_b32 {S(base)}, {S(ptr)}")
    k(f"s_and_b32 {S(base+1)}, {S(ptr+1)}, 0xffff")
    k(f"s_mov_b32 {S(base+2)}, {hex(nbytes)}")
    k(f"s_mov_b32 {S(base+3)}, 0x20000")

_lab = [0]
def newlab(p):
    _lab[0] += 1
    return f"L_{p}_{_lab[0]}"

def branch(op, lab):
    k.fence(1)
    k(f"{op} {lab}")

def label(lab):
    k.fence()
    k.label(lab)

def poll_load(vtmp, vaddr, soff, off=0, srdn=SRD_WS):
    k(f"buffer_load_dword {V(vtmp)}, {V(vaddr)}, {S(srdn,4)}, {soff} offen offset:{off} sc1")

def poll_check(vtmp, vaddr, soff, off=0, srdn=SRD_WS):
    lp, ok = newlab("poll"), newlab("ok")
    k(f"v_cmp_eq_u32 vcc, 0, {V(vtmp)}")
    saved = list(k.vm)
    k.skip_begin("s_cbranch_vccz", ok)
    k(f"s_mov_b32 {S(sSPIN)}, 0")
    k.label(lp)
    poll_load(vtmp, vaddr, soff, off, srdn)
    k(f"s_add_u32 {S(sSPIN)}, {S(sSPIN)}, 1")
    k.wait(vm=0)
    k(f"v_cmp_eq_u32 vcc, 0, {V(vtmp)}")
    k(f"s_cmp_gt_u32 {S(sSPIN)}, {SPIN_MAX}")
    k(f"s_cbranch_scc1 {ok}")
    k(f"s_cbranch_vccnz {lp}")
    k.skip_end(ok)
    k.vm = saved

def run(ops, n=None):
    c = 0
    while ops and (n is None or c < n):
        o = ops.pop(0)
        if callable(o):
            o()
        elif isinstance(o, tuple):
            k(o[0], tag=o[1])
        elif o is not None:
            k(o)
        c += 1

def stats_ops(P, n, vS, vQ, vT):
    o = [f"v_mov_b32 {V(vS)}, 0", f"v_mov_b32 {V(vQ)}, 0"]
    for i in range(n):
        o.append(f"v_dot2c_f32_bf16 {V(vS)}, {S(sONES)}, {V(P+i)}")
        o.append(f"v_dot2c_f32_bf16 {V(vQ)}, {V(P+i)}, {V(P+i)}")
    o += [f"v_permlane32_swap_b32 {V(vS)}, {V(vQ)}",
          f"v_add_f32 {V(vS)}, {V(vS)}, {V(vQ)}",
          f"v_mov_b32 {V(vT)}, {V(vS)}",
          f"v_permlane16_swap_b32 {V(vS)}, {V(vT)}",
          f"v_add_f32 {V(vS)}, {V(vS)}, {V(vT)}",
          f"v_add_f32_dpp {V(vS)}, {V(vS)}, {V(vS)} row_ror:8 row_mask:0xf bank_mask:0xf",
          f"v_cvt_f64_f32 {V(vT,2)}, {V(vS)}"]
    return o

def quad_shuffle(pairs):
    D = " row_mask:0xf bank_mask:0xf"
    o = ["s_mov_b32 vcc_lo, 0x0f0f0f0f", "s_mov_b32 vcc_hi, 0x0f0f0f0f"]
    for d, s in pairs:
        o.append(f"v_cndmask_b32_dpp {V(d)}, {V(s+2)}, {V(s)}, vcc row_ror:4" + D)
        o.append(f"v_cndmask_b32_dpp {V(d+2)}, {V(s+3)}, {V(s+1)}, vcc row_ror:4" + D)
    o.append("s_not_b64 vcc, vcc")
    for d, s in pairs:
        o.append(f"v_cndmask_b32_dpp {V(d+1)}, {V(s)}, {V(s+2)}, vcc row_ror:12" + D)
        o.append(f"v_cndmask_b32_dpp {V(d+3)}, {V(s+1)}, {V(s+3)}, vcc row_ror:12" + D)
    return o

X0R = WK
X0O = WK + 28
vP0A = WK + 56

def p0x_addr():
    k.c("P0-x: rows t' = 8*wg + (l&7), octets 8a + (l>>3)")
    t = vP0A
    k(f"v_and_b32 {V(t)}, 7, {V(vL)}")
    k(f"s_lshl_b32 {S(sT0)}, {S(sWG)}, 3")
    k(f"v_add_u32 {V(t)}, {S(sT0)}, {V(t)}")
    k(f"v_and_b32 {V(t+1)}, 3, {V(t)}")
    k(f"v_bfe_u32 {V(t+2)}, {V(t)}, 2, 4")
    k(f"v_lshl_add_u32 {V(t+3)}, {V(t+1)}, 4, {V(t+2)}")
    k(f"v_and_b32 {V(t+2)}, 0x7c0, {V(t)}")
    k(f"v_add_u32 {V(t+3)}, {V(t+3)}, {V(t+2)}")
    k(f"v_mul_u32_u24 {V(t+3)}, 896, {V(t+3)}")
    k(f"v_lshrrev_b32 {V(t+2)}, 3, {V(vL)}")
    k(f"v_lshl_add_u32 {V(t+3)}, {V(t+2)}, 4, {V(t+3)}")
    k(f"v_lshrrev_b32 {V(t+2)}, 2, {V(vL)}")
    k(f"v_lshlrev_b32 {V(t+1)}, 4, {V(t+1)}")
    k(f"v_lshl_add_u32 {V(t+1)}, {V(t+2)}, 14, {V(t+1)}")
    k(f"s_lshl_b32 {S(sT0)}, {S(sWG)}, 6")
    k(f"v_add_u32 {V(t+1)}, {S(sT0)}, {V(t+1)}")
    k(f"v_lshlrev_b32 {V(t)}, 4, {V(t)}")
    k(f"v_lshrrev_b32 {V(t+2)}, 5, {V(vL)}")
    k(f"v_lshl_add_u32 {V(t)}, {V(t+2)}, 3, {V(t)}")

def p0x_loads():
    for a in range(7):
        k(f"buffer_load_dwordx4 {V(X0R+4*a,4)}, {V(vP0A+3)}, {S(SRD_X0,4)}, 0 offen offset:{128*a}")

def p0x_body():
    t = vP0A
    vS, vQ, vT = WK + 60, WK + 61, WK + 62
    run(quad_shuffle([(X0O + 4 * a, X0R + 4 * a) for a in range(7)]))
    k(f"s_mov_b32 {S(sT0)}, {hex(XQ)}")
    st = stats_ops(X0R, 28, vS, vQ, vT)
    for a in range(7):
        k(f"buffer_store_dwordx4 {V(X0O+4*a,4)}, {V(t+1)}, {S(SRD_WS,4)}, {S(sT0)} offen sc1")
        if a < 6:
            k(f"s_add_u32 {S(sT0)}, {S(sT0)}, {hex(16*16384)}")
        run(st, 4)
    run(st)
    k(f"s_mov_b32 {S(sT0)}, {hex(STATS[0])}")
    k(f"s_mov_b32 exec_lo, 0xff")
    k(f"s_mov_b32 exec_hi, 0xff")
    k(f"buffer_store_dwordx2 {V(vT,2)}, {V(t)}, {S(SRD_WS,4)}, {S(sT0)} offen sc1")
    k(f"s_mov_b64 exec, -1")
    k(f"v_and_b32 {V(t+1)}, 7, {V(vL)}")
    k(f"v_lshlrev_b32 {V(t+1)}, 2, {V(t+1)}")
    poll_load(t + 2, t + 1, 0, 0, SRD_DBG)

def flag_all(off):
    k(f"s_mov_b32 {S(sT0)}, {hex(off)}")
    k(f"s_mov_b64 exec, 0xff")
    k(f"buffer_store_dword {V(vONE)}, {V(vFW)}, {S(SRD_WS,4)}, {S(sT0)} offen sc1")
    k(f"s_mov_b64 exec, -1")

def p0x_flag():
    poll_check(vP0A + 2, vP0A + 1, 0, 0, SRD_DBG)
    flag_all(0)

ND = [0]
def w2_dma():
    d = ND[0]
    ND[0] += 1
    if d % 28 == 0:
        k(f"s_mul_i32 {S(sT4)}, {S(sW)}, {WREG}")
        k(f"s_mov_b32 m0, {S(sT4)}")
    if d % 14 == 0:
        k(f"s_mul_i32 {S(sW2O)}, {S(sHG + d//14)}, 14")
        k(f"s_add_u32 {S(sW2O)}, {S(sW2O)}, {S(sW2B)}")
    k(f"buffer_load_dwordx4 {V(vW2S)}, {S(SRD_W2,4)}, {S(sW2O)} offen lds", tag=("w2", d))
    if d % 14 != 13:
        k(f"s_add_u32 {S(sW2O)}, {S(sW2O)}, {8*896}")
    if d % 28 != 27:
        k(f"s_add_u32 m0, m0, 1024")

def w2_tr_ops(lo, hi):
    return [f"ds_read_b64_tr_b16 {A((s*2+dt)*4+2*u,2)}, {V(vW2R+dt)} offset:{(s%14)*2048+u*1024}"
            for s in range(lo, hi) for dt in range(2) for u in range(2)]

NW1 = [0]
def w1_load():
    ks = NW1[0]
    NW1[0] += 1
    k(f"buffer_load_dwordx4 {V(W1R+4*ks,4)}, {V(vL16)}, {S(SRD_WS,4)}, {S(sWL)} offen offset:{1024*(ks%4)} sc1")
    if ks % 4 == 3:
        k(f"s_add_u32 {S(sWL)}, {S(sWL)}, 4096")

def prologue():
    k(f"s_getpc_b64 {S(sPC,2)}")
    k.label("L_pc")
    k(f"s_cmp_ge_u32 {S(sWG)}, 256")
    k("s_cbranch_scc1 L_end")
    k("s_load_dwordx16 s[28:43], s[0:1], 0")
    k("s_load_dwordx8 s[44:51], s[0:1], 64")
    k("s_load_dwordx4 s[52:55], s[0:1], 96")
    k("s_load_dwordx2 s[56:57], s[0:1], 112")
    k.c("pull the code into L2")
    k(f"v_lshlrev_b32 {V(vL16)}, 7, {V(vTID)}")
    k(f"global_load_dword {V(vDUM)}, {V(vL16)}, {S(sPC,2)}")
    k(f"v_add_u32 {V(vL16)}, 0x8000, {V(vL16)}")
    k(f"v_min_u32 {V(vL16)}, L_table_end-L_pc-4, {V(vL16)}")
    k.vm = []
    k(f"global_load_dword {V(vDUM)}, {V(vL16)}, {S(sPC,2)}")
    k.vm = []
    k(f"v_lshrrev_b32 {V(vONE)}, 6, {V(vTID)}")
    k(f"v_and_b32 {V(vL)}, 63, {V(vTID)}")
    k(f"v_readfirstlane_b32 {S(sW)}, {V(vONE)}")
    k(f"v_lshlrev_b32 {V(vL16)}, 4, {V(vL)}")
    k(f"v_mov_b32 {V(vONE)}, 1")
    if DIAG:
        k(f"v_mov_b32 {V(vSTAMP)}, 0")
    k(f"s_mov_b32 {S(sONES)}, 0x3f803f80")
    k(f"s_mov_b32 {S(sHIM)}, 0xffff0000")
    k(f"s_sub_u32 {S(sT0)}, {S(sWG)}, 32")
    k(f"s_and_b32 {S(sT1)}, {S(sT0)}, 7")
    k(f"s_lshr_b32 {S(sT0)}, {S(sT0)}, 3")
    k(f"s_mul_i32 {S(sCP)}, {S(sT1)}, 28")
    k(f"s_add_u32 {S(sCP)}, {S(sCP)}, {S(sT0)}")
    k(f"s_cmp_ge_u32 {S(sT0)}, 14")
    k(f"s_cselect_b32 {S(sT2)}, 1, 0")
    k(f"s_cselect_b32 {S(sT3)}, 14, 0")
    k(f"s_lshl_b32 {S(sGAM)}, {S(sT1)}, 1")
    k(f"s_add_u32 {S(sGAM)}, {S(sGAM)}, {S(sT2)}")
    k(f"s_sub_u32 {S(sJ)}, {S(sT0)}, {S(sT3)}")
    k(f"s_and_b32 {S(sHH)}, {S(sJ)}, 1")
    k(f"s_lshr_b32 {S(sDS)}, {S(sJ)}, 1")
    k(f"s_and_b32 {S(sNH)}, {S(sW)}, 1")
    k(f"s_lshr_b32 {S(sCH)}, {S(sW)}, 1")
    k(f"s_lshl_b32 {S(sREP)}, {S(sT1)}, 12")
    k(f"s_lshl_b32 {S(sROT)}, {S(sT2)}, 1")
    k(f"s_add_u32 {S(sROT)}, {S(sROT)}, {S(sHH)}")
    k(f"s_add_u32 {S(sROT)}, {S(sROT)}, {S(sDS)}")
    k(f"s_lshl_b32 {S(sT0)}, {S(sWG)}, 4")
    k(f"v_lshlrev_b32 {V(vFW)}, 12, {V(vL)}")
    k(f"v_add_u32 {V(vFW)}, {S(sT0)}, {V(vFW)}")
    p0x_addr()
    k(f"s_lshl_b32 {S(sT0)}, {S(sCP)}, 10")
    k(f"v_lshl_add_u32 {V(PRM+6)}, {V(vTID)}, 2, {S(sT0)}")
    k.wait(lg=0)
    srd(SRD_X0, 28, 2048 * 896)
    srd(SRD_WS, 56, WS_BYTES)
    srd(SRD_DBG, 54, 256)
    stamp(0)
    stamp(30, True)
    skip = newlab("nx")
    k(f"s_cmp_lg_u32 {S(sW)}, 0")
    branch("s_cbranch_scc1", skip)
    p0x_loads()
    label(skip)
    k.forget()
    k(f"s_cmp_lt_u32 {S(sWG)}, 32")
    branch("s_cbranch_scc1", "L_helper")

def helper():
    label("L_helper")
    k.forget()
    srd(SRD_W1, 48, 448 * 3584)
    z = WK + 64
    F = WK + 72
    for i in range(4):
        k(f"v_mov_b32 {V(z+i)}, 0")
    l1, l2, l3 = newlab("h1"), newlab("h2"), newlab("h3")
    k(f"s_cmp_lg_u32 {S(sW)}, 1")
    branch("s_cbranch_scc1", l1)
    k(f"s_cmp_ge_u32 {S(sWG)}, 8")
    branch("s_cbranch_scc1", l1)
    k(f"s_lshl_b32 {S(sT0)}, {S(sWG)}, 12")
    for i in range(4):
        k(f"buffer_store_dwordx4 {V(z,4)}, {V(vL16)}, {S(SRD_WS,4)}, {S(sT0)} offen offset:{1024*i} sc1")
    k(f"s_lshl_b32 {S(sT0)}, {S(sWG)}, 2")
    k.wait(vm=0)
    k("s_mov_b64 exec, 1")
    k(f"buffer_store_dword {V(vONE)}, {V(z)}, {S(SRD_DBG,4)}, {S(sT0)} offen sc1")
    k("s_mov_b64 exec, -1")
    label(l1)
    k.forget()
    k(f"s_lshl_b32 {S(sT5)}, {S(sWG)}, 7")
    k(f"s_add_u32 {S(sT5)}, {S(sT5)}, {hex(FLG_W)}")
    k(f"s_cmp_lt_u32 {S(sW)}, 2")
    branch("s_cbranch_scc1", l2)
    k(f"s_lshl_b32 {S(sT0)}, {S(sWG)}, 1")
    k(f"s_add_u32 {S(sT0)}, {S(sT0)}, {S(sNH)}")
    k(f"s_mul_i32 {S(sT0)}, {S(sT0)}, 3072")
    k(f"s_add_u32 {S(sT0)}, {S(sT0)}, 0x8000")
    for i in range(3):
        k(f"buffer_store_dwordx4 {V(z,4)}, {V(vL16)}, {S(SRD_WS,4)}, {S(sT0)} offen offset:{1024*i} sc1")
    k("s_mov_b64 exec, 1")
    k(f"buffer_store_dword {V(z)}, {V(z)}, {S(SRD_WS,4)}, {S(sT5)} offen sc1")
    k("s_mov_b64 exec, -1")
    label(l2)
    k.forget()
    t = z + 4
    k(f"v_lshrrev_b32 {V(t)}, 2, {V(vL)}")
    k(f"v_mul_u32_u24 {V(t)}, 3584, {V(t)}")
    k(f"v_and_b32 {V(t+1)}, 3, {V(vL)}")
    k(f"v_lshl_add_u32 {V(t)}, {V(t+1)}, 4, {V(t)}")
    k(f"s_lshl_b32 {S(sT2)}, {S(sWG)}, 1")
    k(f"s_add_u32 {S(sT2)}, {S(sT2)}, {S(sCH)}")
    k(f"s_min_u32 {S(sT2)}, {S(sT2)}, 55")
    k(f"s_lshl_b32 {S(sT0)}, {S(sT2)}, 6")
    k(f"s_mul_i32 {S(sT1)}, {S(sNH)}, {224*3584}")
    k(f"s_add_u32 {S(sT0)}, {S(sT0)}, {S(sT1)}")
    k(f"s_mul_i32 {S(sT3)}, {S(sW)}, 14336")
    k(f"s_mov_b32 m0, {S(sT3)}")
    for c in range(14):
        k(f"buffer_load_dwordx4 {V(t)}, {S(SRD_W1,4)}, {S(sT0)} offen lds")
        k(f"s_add_u32 {S(sT0)}, {S(sT0)}, {16*3584}")
        k(f"s_add_u32 m0, m0, 1024")
    k(f"v_lshrrev_b32 {V(t)}, 5, {V(vL)}")
    k(f"v_lshlrev_b32 {V(t)}, 9, {V(t)}")
    k(f"v_lshl_add_u32 {V(t)}, {V(t+1)}, 3, {V(t)}")
    k(f"v_bfe_u32 {V(t+1)}, {V(vL)}, 2, 2")
    k(f"v_lshl_add_u32 {V(t)}, {V(t+1)}, 6, {V(t)}")
    k(f"v_bfe_u32 {V(t+1)}, {V(vL)}, 4, 1")
    k(f"v_lshl_add_u32 {V(t)}, {V(t+1)}, 5, {V(t)}")
    k(f"v_add_u32 {V(t)}, {S(sT3)}, {V(t)}")
    k(f"s_cmp_lg_u32 {S(sW)}, 0")
    branch("s_cbranch_scc1", l3)
    k.wait(vm=14)
    p0x_body()
    label(l3)
    k.wait(vm=0)
    k("s_barrier")
    l4 = newlab("h4")
    k(f"s_cmp_lg_u32 {S(sW)}, 0")
    branch("s_cbranch_scc1", l4)
    p0x_flag()
    label(l4)
    k.forget()
    k(f"s_cmp_ge_u32 {S(sWG)}, 28")
    branch("s_cbranch_scc1", "L_end2")
    for ks in range(14):
        for u in range(2):
            k(f"ds_read_b64_tr_b16 {V(F+4*ks+2*u,2)}, {V(t)} offset:{ks*1024+u*256}")
    c, u_ = z, z + 2
    for i in range(56):
        k(f"v_dot2c_f32_bf16 {V(c)}, {S(sONES)}, {V(F+i)}")
    k(f"v_mov_b32 {V(u_)}, {V(c)}")
    k(f"v_permlane32_swap_b32 {V(c)}, {V(u_)}")
    k(f"v_add_f32 {V(c)}, {V(c)}, {V(u_)}")
    k(f"v_lshlrev_b32 {V(t)}, 2, {V(vTID)}")
    k(f"v_add_u32 {V(t)}, 0x10000, {V(t)}")
    k(f"ds_write_b32 {V(t)}, {V(c)}")
    k(f"v_xor_b32 {V(t)}, 256, {V(t)}")
    k.wait(lg=0)
    k("s_barrier")
    k(f"ds_read_b32 {V(u_)}, {V(t)}")
    k(f"s_mul_i32 {S(sT0)}, {S(sT2)}, 28672")
    k(f"s_mul_i32 {S(sT1)}, {S(sNH)}, 14336")
    k(f"s_add_u32 {S(sT0)}, {S(sT0)}, {S(sT1)}")
    k(f"s_add_u32 {S(sT0)}, {S(sT0)}, {hex(W1C)}")
    k(f"v_add_f32 {V(c)}, {V(c)}, {V(u_)}")
    k(f"v_mul_f32 {V(c)}, {f2u(-1.0/448)}, {V(c)}")
    for i in range(56):
        tt = z + 4 + 2 * (i & 1)
        k(f"v_lshlrev_b32 {V(tt)}, 16, {V(F+i)}")
        k(f"v_and_b32 {V(tt+1)}, {S(sHIM)}, {V(F+i)}")
        pk("add", V(tt, 2), V(tt, 2), V(c, 2), bc=(1,))
        k(f"v_cvt_pk_bf16_f32 {V(F+i)}, {V(tt)}, {V(tt+1)}")
        if i % 4 == 3:
            ks = i // 4
            k(f"buffer_store_dwordx4 {V(F+4*ks,4)}, {V(vL16)}, {S(SRD_WS,4)}, {S(sT0)} offen offset:{1024*(ks%4)} sc1")
            if ks % 4 == 3:
                k(f"s_add_u32 {S(sT0)}, {S(sT0)}, 4096")
    k(f"v_mov_b32 {V(z)}, 0")
    k.wait(vm=0)
    k("s_barrier")
    k(f"s_cmp_lg_u32 {S(sW)}, 0")
    branch("s_cbranch_scc1", "L_end2")
    k("s_mov_b64 exec, 1")
    k(f"buffer_store_dword {V(vONE)}, {V(z)}, {S(SRD_WS,4)}, {S(sT5)} offen sc1")
    if DIAG:
        k("s_mov_b64 exec, -1")
        LAY[0] = 0
        stamp(1)
        k(f"s_lshl_b32 {S(sT0)}, {S(sWG)}, 10")
        k(f"s_add_u32 {S(sT0)}, {S(sT0)}, {hex(STAMP)}")
        k(f"v_lshlrev_b32 {V(WK)}, 2, {V(vTID)}")
        k(f"buffer_store_dword {V(vSTAMP)}, {V(WK)}, {S(SRD_WS,4)}, {S(sT0)} offen")
    k.label("L_end2")
    k("s_endpgm")

KW = W1R
PRM = KW
TBL = KW + 8
GA = KW + 20
TA = GA + 17
vKW, vKR, vKC, vDSK = KW + 42, KW + 43, KW + 44, KW + 45

def table_words():
    import numpy as np
    def bf16r(m):
        u = struct.unpack("<I", struct.pack("<f", float(m)))[0]
        return (u + 0x7FFF + ((u >> 16) & 1)) >> 16
    pad = lambda q: q + 2 * (q >> 4)
    rows = []
    for lam in range(128):
        e = []
        for i in range(17):
            m = 2048 - 16 * lam - i
            e.append(pad(min(m, max(bf16r(m), 0x4300) - 0x4280)))
        l = lam & 63
        j, g = l & 15, l >> 4
        base, mul, pst = ((0, 8, 2), (4, 8, 2), (256, 4, 2), (384, 2, 64))[g]
        for yt in range(2):
            for pi in range(2):
                e.append(pad(base + mul * (16 * yt + j) + pi * pst))
        e.append(576 + 144 * g + j)
        e += [0, 0]
        rows.append([e[2 * i] | (e[2 * i + 1] << 16) for i in range(12)])
    out = []
    for qd in range(3):
        for lam in range(128):
            out.append(rows[lam][4 * qd:4 * qd + 4])
    return out

def addr_conv():
    t0, t1, t2, t3 = KW + 100, KW + 101, KW + 102, KW + 103
    r16, g4, cc = KW + 104, KW + 105, KW + 106
    o = []
    e = o.append
    e(f"v_and_b32 {V(r16)}, 15, {V(vL)}")
    e(f"v_lshrrev_b32 {V(g4)}, 4, {V(vL)}")
    e(f"v_and_b32 {V(cc)}, 3, {V(vL)}")
    e(f"s_mul_i32 {S(sSCR)}, {S(sW)}, {SCR_ST}")
    e(f"s_add_u32 {S(sSCR)}, {S(sSCR)}, {SCR}")
    e(f"s_mul_i32 {S(sSCH)}, {S(sCH)}, {2*SCR_ST}")
    e(f"s_add_u32 {S(sSCH)}, {S(sSCH)}, {SCR}")
    e(f"v_lshl_add_u32 {V(vKW)}, {V(vL)}, 3, {S(sSCR)}")
    e(f"v_mul_u32_u24 {V(vKR)}, {ROW_ST}, {V(r16)}")
    e(f"v_lshl_add_u32 {V(vKR)}, {V(g4)}, 4, {V(vKR)}")
    e(f"v_add_u32 {V(vKR)}, {S(sSCR)}, {V(vKR)}")
    e(f"v_and_b32 {V(t0)}, 127, {V(vTID)}")
    e(f"s_add_u32 {S(sT2)}, {S(sSCH)}, 4096")
    e(f"v_lshl_add_u32 {V(vKC)}, {V(t0)}, 5, {S(sT2)}")
    e(f"v_lshrrev_b32 {V(t0)}, 5, {V(vL)}")
    e(f"v_bfe_u32 {V(t1)}, {V(vL)}, 2, 2")
    e(f"v_lshlrev_b32 {V(t3)}, 9, {V(t0)}")
    e(f"v_lshl_add_u32 {V(t3)}, {V(t1)}, 7, {V(t3)}")
    e(f"v_bfe_u32 {V(t1)}, {V(vL)}, 3, 1")
    e(f"v_lshl_add_u32 {V(t3)}, {V(t1)}, 6, {V(t3)}")
    e(f"v_bfe_u32 {V(t1)}, {V(vL)}, 4, 1")
    e(f"v_lshl_add_u32 {V(t3)}, {V(t1)}, 5, {V(t3)}")
    e(f"v_lshl_add_u32 {V(t3)}, {V(cc)}, 3, {V(t3)}")
    e(f"s_mul_i32 {S(sT2)}, {S(sW)}, {WREG}")
    e(f"v_add_u32 {V(vW2R)}, {S(sT2)}, {V(t3)}")
    e(f"v_xor_b32 {V(vW2R+1)}, 64, {V(vW2R)}")
    e(f"v_lshrrev_b32 {V(t0)}, 2, {V(vTID)}")
    e(f"v_lshlrev_b32 {V(t1)}, 4, {V(cc)}")
    e(f"v_lshl_add_u32 {V(vCIN)}, {V(t0)}, 9, {V(t1)}")
    e(f"v_lshl_add_u32 {V(vCX)}, {V(t0)}, 8, {V(t1)}")
    e(f"v_lshrrev_b32 {V(t0)}, 3, {V(vTID)}")
    e(f"v_bfe_u32 {V(t1)}, {V(vL)}, 2, 1")
    e(f"v_lshlrev_b32 {V(t2)}, 7, {V(t0)}")
    e(f"v_lshl_add_u32 {V(t2)}, {V(cc)}, 5, {V(t2)}")
    e(f"v_lshl_add_u32 {V(t2)}, {V(t1)}, 4, {V(t2)}")
    e(f"v_add_u32 {V(vUW)}, {UARR+480}, {V(t2)}")
    e(f"s_mul_i32 {S(sT2)}, {S(sCH)}, {SCR_ST-2048}")
    e(f"s_add_u32 {S(sT2)}, {S(sT2)}, {SCR}")
    e(f"v_add_u32 {V(vXW)}, {S(sT2)}, {V(t2)}")
    e(f"v_and_b32 {V(t0)}, 1, {V(vL)}")
    e(f"v_xor_b32 {V(t0)}, 1, {V(t0)}")
    e(f"v_mul_u32_u24 {V(t1)}, {SCR_ST+64+2}, {V(t0)}")
    e(f"v_lshlrev_b32 {V(t2)}, 1, {V(r16)}")
    e(f"v_sub_u32 {V(t1)}, {V(t1)}, {V(t2)}")
    e(f"v_lshl_add_u32 {V(t1)}, {V(g4)}, 4, {V(t1)}")
    e(f"s_lshl_b32 {S(sT3)}, {S(sNH)}, 8")
    e(f"s_sub_u32 {S(sT2)}, {S(sSCH)}, {S(sT3)}")
    e(f"s_add_u32 {S(sT2)}, {S(sT2)}, {4096 + 2*2031 - 512 - 192}")
    e(f"v_add_u32 {V(vKF)}, {S(sT2)}, {V(t1)}")
    for a in range(1, 4):
        e(f"v_subrev_u32 {V(vKF+a)}, {1024*a}, {V(vKF)}")
    e(f"v_lshlrev_b32 {V(t1)}, 5, {V(r16)}")
    e(f"v_lshl_add_u32 {V(t1)}, {V(g4)}, 4, {V(t1)}")
    e(f"s_mul_i32 {S(sT2)}, {S(sCH)}, {U_ST}")
    e(f"s_sub_u32 {S(sT2)}, {S(sT2)}, {S(sT3)}")
    e(f"s_add_u32 {S(sT2)}, {S(sT2)}, {UARR + 480 - 32 - 192}")
    e(f"v_add_u32 {V(vUF)}, {S(sT2)}, {V(t1)}")
    e(f"v_mov_b32 {V(vXR)}, {V(vKW)}")
    e(f"v_add_u32 {V(vEXW)}, {S(sSCR)}, {V(vL16)}")
    e(f"s_xor_b32 {S(sT2)}, {S(sW)}, 1")
    e(f"s_mul_i32 {S(sT2)}, {S(sT2)}, {SCR_ST}")
    e(f"s_add_u32 {S(sT2)}, {S(sT2)}, {SCR}")
    e(f"v_add_u32 {V(vEXR)}, {S(sT2)}, {V(vL16)}")
    e(f"v_lshrrev_b32 {V(t0)}, 3, {V(vL)}")
    e(f"v_mul_u32_u24 {V(vCO)}, 57344, {V(t0)}")
    e(f"v_and_b32 {V(t0)}, 7, {V(vL)}")
    e(f"s_and_b32 {S(sT2)}, {S(sCP)}, 1")
    e(f"s_lshl_b32 {S(sT3)}, {S(sT2)}, 2")
    e(f"v_xor_b32 {V(t0)}, {S(sT3)}, {V(t0)}")
    e(f"v_lshl_add_u32 {V(vCO)}, {V(t0)}, 4, {V(vCO)}")
    e(f"s_lshl_b32 {S(sT2)}, {S(sT2)}, 3")
    e(f"s_lshr_b32 {S(sXQi)}, {S(sCP)}, 1")
    e(f"s_lshl_b32 {S(sXQi)}, {S(sXQi)}, 14")
    e(f"s_add_u32 {S(sXQi)}, {S(sXQi)}, {S(sT2)}")
    e(f"s_add_u32 {S(sXQi)}, {S(sXQi)}, {hex(XQ)}")
    e(f"s_lshl_b32 {S(sT2)}, {S(sCP)}, 1")
    e(f"s_add_u32 {S(sT2)}, {S(sT2)}, {S(sCH)}")
    e(f"s_lshl_b32 {S(sT2)}, {S(sT2)}, 7")
    e(f"s_mul_i32 {S(sT3)}, {S(sNH)}, {8*114688}")
    e(f"s_add_u32 {S(sT2)}, {S(sT2)}, {S(sT3)}")
    e(f"v_add_u32 {V(vCO)}, {S(sT2)}, {V(vCO)}")
    e(f"v_lshlrev_b32 {V(vFP)}, 4, {V(vTID)}")
    e(f"s_mov_b32 {S(sPERM0)}, 0x05040100")
    e(f"s_mov_b32 {S(sPERM1)}, 0x07060302")
    e(f"s_lshl_b32 {S(sT2)}, {S(sJ)}, 2")
    e(f"s_add_u32 {S(sT2)}, {S(sT2)}, {S(sW)}")
    e(f"s_mul_i32 {S(sWL)}, {S(sT2)}, 28672")
    e(f"s_add_u32 {S(sWL)}, {S(sWL)}, {hex(W1C)}")
    e(f"s_lshr_b32 {S(sT2)}, {S(sT2)}, 1")
    e(f"s_lshl_b32 {S(sT2)}, {S(sT2)}, 7")
    e(f"s_add_u32 {S(sT2)}, {S(sT2)}, {hex(FLG_W)}")
    e(f"v_mov_b32 {V(vWF+1)}, {S(sT2)}")
    z = KW + 108
    for i in range(4):
        e(f"v_mov_b32 {V(z+i)}, 0")
    e(f"v_min_u32 {V(t0)}, 29, {V(vL)}")
    e(f"v_lshlrev_b32 {V(t0)}, 4, {V(t0)}")
    e(f"v_add_u32 {V(t0)}, {UARR}, {V(t0)}")
    e(f"ds_write_b128 {V(t0)}, {V(z,4)}")
    e(f"ds_write_b128 {V(t0)}, {V(z,4)} offset:{U_ST}")
    return o

def addr_ffn():
    t0, t1, t2, t3 = WK + 8, WK + 9, WK + 10, WK + 11
    g4, rho, cc = WK + 12, WK + 13, WK + 14
    o = []
    e = o.append
    e(f"v_lshrrev_b32 {V(g4)}, 4, {V(vL)}")
    e(f"v_bfe_u32 {V(rho)}, {V(vL)}, 2, 2")
    e(f"v_and_b32 {V(cc)}, 3, {V(vL)}")
    e(f"v_lshrrev_b32 {V(t0)}, 5, {V(vL)}")
    e(f"v_bfe_u32 {V(t1)}, {V(vL)}, 4, 1")
    e(f"v_bfe_u32 {V(t2)}, {V(vL)}, 3, 1")
    e(f"v_lshlrev_b32 {V(t3)}, 7, {V(rho)}")
    e(f"v_lshl_add_u32 {V(t3)}, {V(t2)}, 6, {V(t3)}")
    e(f"v_lshl_add_u32 {V(vXA0)}, {V(t0)}, 10, {V(t3)}")
    e(f"v_lshl_add_u32 {V(vXA0)}, {V(cc)}, 4, {V(vXA0)}")
    e(f"v_lshl_add_u32 {V(vXA0)}, {V(t1)}, 3, {V(vXA0)}")
    e(f"v_xor_b32 {V(vXA1)}, 64, {V(vXA0)}")
    e(f"v_and_b32 {V(t0)}, 15, {V(vL)}")
    e(f"v_lshlrev_b32 {V(t0)}, 7, {V(t0)}")
    e(f"s_mov_b32 {S(sT2)}, 114688")
    e(f"v_mad_u32_u24 {V(vPFH)}, {V(t1)}, {S(sT2)}, {V(t0)}")
    e(f"s_lshl_b32 {S(sT2)}, {S(sJ)}, 2")
    e(f"s_add_u32 {S(sT2)}, {S(sT2)}, {S(sW)}")
    e(f"s_lshl_b32 {S(sT2)}, {S(sT2)}, 11")
    e(f"v_add_u32 {V(vPFX)}, {S(sT2)}, {V(t0)}")
    e(f"s_lshl_b32 {S(sT2)}, {S(sHH)}, 6")
    e(f"v_xor_b32 {V(t3)}, {S(sT2)}, {V(t3)}")
    e(f"s_lshl_b32 {S(sT2)}, {S(sNH)}, 5")
    e(f"s_lshl_b32 {S(sT3)}, {S(sCH)}, 3")
    e(f"s_add_u32 {S(sT2)}, {S(sT2)}, {S(sT3)}")
    e(f"v_add_u32 {V(t3)}, {S(sT2)}, {V(t3)}")
    e(f"v_and_b32 {V(t0)}, 1, {V(vL)}")
    e(f"v_lshl_add_u32 {V(t3)}, {V(t0)}, 4, {V(t3)}")
    e(f"v_bfe_u32 {V(t0)}, {V(vL)}, 1, 1")
    e(f"v_mul_u32_u24 {V(vST)}, {XHALF}, {V(t0)}")
    e(f"v_lshl_add_u32 {V(vST)}, {V(g4)}, 10, {V(vST)}")
    e(f"v_add_u32 {V(vST)}, {V(vST)}, {V(t3)}")
    e(f"v_lshl_add_u32 {V(t0)}, {V(g4)}, 1, {V(t0)}")
    e(f"v_lshl_add_u32 {V(vRES)}, {V(t0)}, 10, {V(t3)}")
    e(f"s_lshl_b32 {S(sT2)}, {S(sDS)}, 13")
    e(f"v_add_u32 {V(vRES)}, {S(sT2)}, {V(vRES)}")
    e(f"s_mul_i32 {S(sT2)}, {S(sW)}, {RED_W}")
    e(f"v_add_u32 {V(vRW)}, {S(sT2)}, {V(vL16)}")
    e(f"v_lshrrev_b32 {V(t0)}, 3, {V(vL)}")
    e(f"v_and_b32 {V(t1)}, 7, {V(vL)}")
    e(f"v_mul_u32_u24 {V(vRR)}, {RED_G}, {V(t0)}")
    e(f"v_lshl_add_u32 {V(vRR)}, {V(t1)}, 4, {V(vRR)}")
    e(f"s_lshl_b32 {S(sT2)}, {S(sW)}, 7")
    e(f"v_add_u32 {V(vRR)}, {S(sT2)}, {V(vRR)}")
    e(f"s_lshr_b32 {S(sT2)}, {S(sGAM)}, 2")
    e(f"s_lshl_b32 {S(sT2)}, {S(sT2)}, 3")
    e(f"s_and_b32 {S(sT3)}, {S(sGAM)}, 3")
    e(f"s_add_u32 {S(sT2)}, {S(sT2)}, {S(sT3)}")
    e(f"s_lshl_b32 {S(sT3)}, {S(sCH)}, 2")
    e(f"s_add_u32 {S(sT2)}, {S(sT2)}, {S(sT3)}")
    e(f"s_lshl_b32 {S(sT2)}, {S(sT2)}, 6")
    e(f"s_lshl_b32 {S(sT3)}, {S(sHH)}, 1")
    e(f"s_add_u32 {S(sT3)}, {S(sT3)}, {S(sNH)}")
    e(f"s_lshl_b32 {S(sT4)}, {S(sT3)}, 3")
    e(f"s_add_u32 {S(sT4)}, {S(sT4)}, {S(sT2)}")
    e(f"v_add_lshl_u32 {V(t2)}, {V(t1)}, {S(sT4)}, 4")
    e(f"v_lshrrev_b32 {V(t3)}, 5, {V(vL)}")
    e(f"v_lshl_add_u32 {V(vAT)}, {V(t3)}, 3, {V(t2)}")
    e(f"v_lshrrev_b32 {V(t3)}, 2, {V(vL)}")
    e(f"v_lshlrev_b32 {V(t2)}, 4, {V(cc)}")
    e(f"v_lshl_add_u32 {V(vOQ)}, {V(t3)}, 14, {V(t2)}")
    e(f"s_lshl_b32 {S(sT4)}, {S(sT4)}, 3")
    e(f"s_lshl_b32 {S(sT5)}, {S(sDS)}, 18")
    e(f"s_add_u32 {S(sT4)}, {S(sT4)}, {S(sT5)}")
    e(f"v_add_u32 {V(vOQ)}, {S(sT4)}, {V(vOQ)}")
    e(f"s_lshl_b32 {S(sT3)}, {S(sT3)}, 1")
    e(f"s_add_u32 {S(sT2)}, {S(sT2)}, {S(sT3)}")
    e(f"v_bfe_u32 {V(t3)}, {V(vL)}, 2, 1")
    e(f"v_add3_u32 {V(t2)}, {V(t2)}, {V(t3)}, {S(sT2)}")
    e(f"v_mul_u32_u24 {V(vOO)}, 896, {V(t2)}")
    e(f"v_lshl_add_u32 {V(vOO)}, {V(t0)}, 4, {V(vOO)}")
    e(f"s_lshl_b32 {S(sT2)}, {S(sDS)}, 7")
    e(f"v_add_u32 {V(vOO)}, {S(sT2)}, {V(vOO)}")
    e(f"v_min_u32 {V(t0)}, 13, {V(vL)}")
    e(f"s_mul_i32 {S(sT2)}, {S(sW)}, 14")
    e(f"v_add_lshl_u32 {V(vF2P)}, {V(t0)}, {S(sT2)}, 4")
    e(f"v_max_u32 {V(vFP)}, 512, {V(vFP)}")
    e(f"s_mul_i32 {S(sXT)}, {S(sGAM)}, 114688")
    e(f"s_add_u32 {S(sXT)}, {S(sXT)}, {hex(X1T)}")
    e(f"s_mul_i32 {S(sT2)}, {S(sGAM)}, {4*112*1024}")
    e(f"s_add_u32 {S(sT2)}, {S(sT2)}, {hex(HB)}")
    e(f"s_lshl_b32 {S(sT3)}, {S(sJ)}, 13")
    e(f"s_add_u32 {S(sHS)}, {S(sT2)}, {S(sT3)}")
    e(f"s_lshl_b32 {S(sT3)}, {S(sW)}, 11")
    e(f"s_add_u32 {S(sHS)}, {S(sHS)}, {S(sT3)}")
    e(f"s_mul_i32 {S(sT3)}, {S(sHH)}, {112*1024}")
    e(f"s_add_u32 {S(sHL)}, {S(sT2)}, {S(sT3)}")
    e(f"s_mul_i32 {S(sT3)}, {S(sW)}, {28*1024}")
    e(f"s_add_u32 {S(sHL)}, {S(sHL)}, {S(sT3)}")
    for a in range(4):
        e(f"s_add_u32 {S(sHG+a)}, {S(sHG+a)}, {S(sHL)}")
    e(f"s_lshl_b32 {S(sFG)}, {S(sGAM)}, 11")
    e(f"s_add_u32 {S(sFG)}, {S(sFG)}, {hex(FLG_G)}")
    e(f"s_mov_b32 {S(SRD_OUT)}, s52")
    e(f"s_and_b32 {S(SRD_OUT+1)}, s53, 0xffff")
    e(f"s_mov_b32 {S(SRD_OUT+2)}, {hex(2048*896)}")
    e(f"s_mov_b32 {S(SRD_OUT+3)}, 0x20000")
    return o

def pk(op, d, a, b, c=None, bc=(), neg=(), emit=True):
    ops = [a, b] + ([c] if c is not None else [])
    n = len(ops)
    txt = f"v_pk_{op}_f32 {d}, " + ", ".join(ops)
    if bc:
        txt += " op_sel_hi:[" + ",".join("0" if i in bc else "1" for i in range(n)) + "]"
    if neg:
        m = "[" + ",".join("1" if i in neg else "0" for i in range(n)) + "]"
        txt += f" neg_lo:{m} neg_hi:{m}"
    if emit:
        k(txt)
    return txt

def cmul(d, a, b, t):
    assert d != a
    pk("mul", V(t, 2), V(a, 2), V(b, 2))
    pk("mul", V(t + 2, 2), V(a, 2), V(b + 2, 2))
    pk("fma", V(d, 2), V(a + 2, 2), V(b + 2, 2), V(t, 2), neg=(0,))
    pk("fma", V(d + 2, 2), V(a + 2, 2), V(b, 2), V(t + 2, 2))

NINIT = opt("ninit", 8)
def main_start():
    k.c("=== main workgroups")
    for i in range(6):
        k(f"global_load_dword {V(PRM+i)}, {V(PRM+6)}, {S(30+2*i,2)}")
    k(f"s_lshl_b32 {S(sT0)}, {S(sCP)}, 2")
    k(f"s_load_dword {S(sLDT)}, s[42:43], {S(sT0)}")
    k(f"s_load_dword {S(sDSK)}, s[44:45], {S(sT0)}")
    k.lg = []
    srd(SRD_W2, 50, 1792 * 896)
    t0, t1 = KW + 100, KW + 101
    k(f"v_and_b32 {V(t0)}, 127, {V(vTID)}")
    k(f"v_lshlrev_b32 {V(t0)}, 4, {V(t0)}")
    k(f"v_add_u32 {V(t0)}, L_table-L_pc, {V(t0)}")
    for q in range(2):
        k(f"global_load_dwordx4 {V(TBL+4*q,4)}, {V(t0)}, {S(sPC,2)} offset:{2048*q}")
    k(f"v_add_u32 {V(t0)}, 4096, {V(t0)}")
    k(f"global_load_dwordx4 {V(TBL+8,4)}, {V(t0)}, {S(sPC,2)}")
    k(f"v_lshrrev_b32 {V(t0)}, 3, {V(vL)}")
    k(f"v_mul_u32_u24 {V(vW2S)}, 896, {V(t0)}")
    k(f"v_and_b32 {V(t0)}, 7, {V(vL)}")
    k(f"v_bfe_u32 {V(t1)}, {V(vL)}, 4, 1")
    k(f"v_lshlrev_b32 {V(t1)}, 2, {V(t1)}")
    k(f"v_xor_b32 {V(t0)}, {V(t0)}, {V(t1)}")
    k(f"v_lshl_add_u32 {V(vW2S)}, {V(t0)}, 4, {V(vW2S)}")
    k(f"s_mul_i32 {S(sW2B)}, {S(sW)}, {448*896}")
    k(f"s_lshl_b32 {S(sT2)}, {S(sDS)}, 7")
    k(f"s_add_u32 {S(sW2B)}, {S(sW2B)}, {S(sT2)}")
    for a in range(4):
        k(f"s_add_u32 {S(sT2)}, {S(sROT)}, {a}")
        k(f"s_and_b32 {S(sT2)}, {S(sT2)}, 3")
        k(f"s_mul_i32 {S(sHG+a)}, {S(sT2)}, 7168")
    ac = addr_conv()
    for i in range(NINIT):
        w2_dma()
        run(ac, len(ac) // (NINIT - i))
    run(ac)
    stamp(24)
    k.wait(vm=NINIT + 3)
    stamp(25)
    skip = newlab("p0")
    k(f"s_cmp_lg_u32 {S(sW)}, 0")
    saved = list(k.vm)
    branch("s_cbranch_scc1", skip)
    p0x_body()
    label(skip)
    k.vm = saved
    stamp(1)

def conv_loads(layer):
    XD, SD = WK, WK + 8
    k(f"s_mov_b32 {S(sT0)}, {hex(STATS[layer])}")
    if layer:
        k(f"s_add_u32 {S(sXQi)}, {S(sXQi)}, {hex(XQ_SZ)}")
    for j2 in range(4):
        for j in (2 * j2, 2 * j2 + 1):
            k(f"buffer_load_dwordx4 {V(SD+4*j,4)}, {V(vCIN)}, {S(SRD_WS,4)}, {S(sT0)} offen offset:{64*j} sc1")
        k(f"buffer_load_dwordx2 {V(XD+2*j2,2)}, {V(vCX)}, {S(SRD_WS,4)}, {S(sXQi)} offen offset:{64*j2} sc1")

def kgen():
    k.c("=== K generation")
    B0 = KW + 46
    U = B0
    DT = B0 + 12
    W1_, W8_, W256 = B0 + 14, B0 + 18, B0 + 22
    T = B0 + 26
    P = [B0 + 30 + 4 * i for i in range(5)]
    CV = B0 + 50
    ACC = WK + 64
    FX0, FX1, FY = 112, 144, 176
    NP0 = opt("np0", 42)
    n0 = ND[0]
    for i in range(6):
        k(f"v_lshlrev_b32 {V(U+2*i)}, 16, {V(PRM+i)}")
        k(f"v_and_b32 {V(U+2*i+1)}, {S(sHIM)}, {V(PRM+i)}")
    k.wait(lg=0)
    k(f"s_lshl_b32 {S(sT0)}, {S(sCH)}, 4")
    k(f"s_lshr_b32 {S(sLDT)}, {S(sLDT)}, {S(sT0)}")
    k(f"s_lshl_b32 {S(sLDT)}, {S(sLDT)}, 16")
    k(f"s_lshr_b32 {S(sDSK)}, {S(sDSK)}, {S(sT0)}")
    k(f"s_lshl_b32 {S(sDSK)}, {S(sDSK)}, 16")
    k(f"v_mov_b32 {V(DT)}, {f2u(1.4426950408889634)}")
    k(f"v_mul_f32 {V(DT)}, {S(sLDT)}, {V(DT)}")
    k(f"v_exp_f32 {V(DT)}, {V(DT)}")
    k(f"s_cmp_eq_u32 {S(sNH)}, 0")
    k(f"s_cselect_b32 {S(sDSK)}, {S(sDSK)}, 0")
    k(f"v_cvt_pk_bf16_f32 {V(DT)}, {V(DT)}, {V(DT)}")
    k(f"v_mov_b32 {V(vDSK)}, 0")
    k(f"v_lshlrev_b32 {V(DT)}, 16, {V(DT)}")
    k(f"v_writelane_b32 {V(vDSK)}, {S(sDSK)}, 0")
    w2_dma()
    for i in range(4):
        pk("mul", V(U + 2 * i, 2), V(U + 2 * i, 2), V(DT, 2), bc=(1,))
    k(f"s_mov_b32 {S(sC0)}, {f2u(1.4426950408889634)}")
    pk("mul", V(U, 2), V(U, 2), S(sC0, 2), bc=(1,))
    k(f"s_mov_b32 {S(sC0)}, {f2u(0.15915494309189535)}")
    pk("mul", V(U + 2, 2), V(U + 2, 2), S(sC0, 2), bc=(1,))
    cmul(P[0], U + 8, U + 4, T)
    for (Wd, sc) in ((W1_, 1.0), (W256, 256.0), (W8_, 8.0)):
        ea, an = U + 4, U + 6
        if sc == 1.0:
            sa, sb = U, U + 2
        else:
            k(f"s_mov_b32 {S(sC0)}, {f2u(sc)}")
            pk("mul", V(ea, 2), V(U, 2), S(sC0, 2), bc=(1,))
            pk("mul", V(an, 2), V(U + 2, 2), S(sC0, 2), bc=(1,))
            sa, sb = ea, an
        for h in range(2):
            k(f"v_fract_f32 {V(an+h)}, {V(sb+h)}")
        for h in range(2):
            k(f"v_exp_f32 {V(ea+h)}, {V(sa+h)}")
        for h in range(2):
            k(f"v_cos_f32 {V(Wd+h)}, {V(an+h)}")
        for h in range(2):
            k(f"v_sin_f32 {V(Wd+2+h)}, {V(an+h)}")
        w2_dma()
        pk("mul", V(Wd, 2), V(Wd, 2), V(ea, 2))
        pk("mul", V(Wd + 2, 2), V(Wd + 2, 2), V(ea, 2))
    cvi = [0]
    ent = [0]
    freed = [28]
    side = []
    nrem = NP0 - ND[0]
    base = ND[0]
    def put(src, row, negim, ns=0):
        c = CV + 2 * (cvi[0] & 1)
        cvi[0] += 1
        n = "-" if negim else ""
        k(f"v_cvt_pk_bf16_f32 {V(c)}, {V(src)}, {V(src+1)}")
        k(f"v_cvt_pk_bf16_f32 {V(c+1)}, {n}{V(src+2)}, {n}{V(src+3)}")
        k(f"ds_write_b64 {V(vKW)}, {V(c,2)} offset:{row*ROW_ST}")
        ent[0] += 1
        if ND[0] < base + nrem * ent[0] // 52 and ND[0] < freed[0]:
            w2_dma()
        run(side, ns)
    def frags(b):
        for st in range(8):
            k(f"ds_read_b128 {A(b+4*st,4)}, {V(vKR)} offset:{64*st}")
    cur = 0
    for a in range(8):
        put(P[cur], a, True)
        if a % 2 == 0:
            dst = {0: 3, 4: 4}.get(a, 2)
            cmul(P[dst], P[cur], W256, T)
            put(P[dst], 8 + a // 2, True)
        if a < 7:
            cmul(P[1 - cur], P[cur], W1_, T)
            cur = 1 - cur
    cmul(P[0], P[3], W256, T); put(P[0], 12, True)
    cmul(P[1], P[4], W256, T); put(P[1], 13, True)
    cmul(P[3], P[0], W256, T); put(P[3], 14, True)
    cmul(P[4], P[1], W256, T); put(P[4], 15, True)
    frags(FX0)
    def flag0():
        skip = newlab("nf")
        k(f"s_cmp_lg_u32 {S(sW)}, 0")
        saved = list(k.vm)
        k.skip_begin("s_cbranch_scc1", skip)
        k.wait(vm=ND[0] - n0)
        p0x_flag()
        k.skip_end(skip)
        k.vm = saved
        stamp(2)
    if opt("flag0", 0) == 0:
        flag0()
    src, dst = 3, 0
    for row in range(5):
        cmul(P[dst], P[src], W256, T)
        put(P[dst], row, True)
        src, dst = dst, (1 - dst if dst in (0, 1) else 0)
    frags(FX1)
    if opt("flag0", 0) == 1:
        flag0()
    k.wait_tag_vm(("w2", 13))
    side += w2_tr_ops(0, 7)
    k(f"v_mov_b32 {V(CV)}, {S(sONES)}")
    k(f"v_mov_b32 {V(CV+1)}, 0")
    k(f"ds_write_b64 {V(vKW)}, {V(CV,2)}")
    cvi[0] = 1
    put(W8_, 1, False, 4)
    cmul(P[0], W8_, W8_, T)
    cur = 0
    for j in range(2, 16):
        if j == 11:
            assert not side
            k.wait(lg=2)
            freed[0] = 42
        put(P[cur], j, False, 4)
        cmul(P[1 - cur], P[cur], W8_, T)
        cur = 1 - cur
    frags(FY)
    stamp(3)
    mf = [(st, x) for st in range(8) for x in range(2)]
    def mfma(yt, st, x):
        d = V(ACC + 8 * yt + 4 * x, 4)
        return f"v_mfma_f32_16x16x32_bf16 {d}, {A((FX0,FX1)[x]+4*st,4)}, {A(FY+4*st,4)}, {d if st else 0}"
    side += [None] * 4 + [mfma(0, st, x) for (st, x) in mf]
    vPL = WK + 80
    for j in range(16):
        put(P[cur], j, False, 2)
        if j == opt("poll0", 9):
            poll_load(vPL, vFP, S(sREP))
        if j < 15:
            cmul(P[1 - cur], P[cur], W8_, T)
            cur = 1 - cur
    assert not side
    frags(FY)
    while ND[0] < NP0:
        w2_dma()
    for i in range(22):
        n = (i + 17) % 22
        sel = " op_sel:[1,0,0,0]" if n & 1 else ""
        side.append(f"v_mad_u32_u16 {V(GA+n)}, {V(TBL+n//2)}, 4, {S(sSCH if n < 17 else sSCR)}{sel}")
    side.insert(5, f"v_add_f32 {V(ACC)}, {V(ACC)}, {V(vDSK)}")
    def tables(yt):
        o = [f"ds_write_b64 {V(TA+2*yt+pi)}, {V(ACC+8*yt+2*pi,2)}" for pi in range(2)]
        o += [f"ds_write_b32 {V(TA+4)}, {V(ACC+8*yt+4+i)} offset:{4*(36*i+18*yt)}" for i in range(4)]
        return o
    side[6:6] = tables(0)
    run(side, 12)
    for (st, x) in mf:
        k(mfma(1, st, x))
        run(side, 1)
    run(side)
    poll_check(vPL, vFP, S(sREP))
    run(tables(1))
    k.wait(lg=0)
    k("s_barrier")
    stamp(4)
    GV = B0
    for e in range(17):
        k(f"ds_read2st64_b32 {V(GV+2*e,2)}, {V(GA+e)} offset0:0 offset1:{SCR_ST//256}")
    conv_loads(0)
    poll_load(vWF, vWF + 1, 0)
    for e in range(17):
        k(f"v_add_f32 {V(GV+2*e)}, {V(GV+2*e)}, {V(GV+2*e+1)}")
    O = B0 + 34
    for c in range(2):
        for kk in range(8):
            e = 2 * kk + 1 - c
            k(f"v_cvt_pk_bf16_f32 {V(O+8*c+kk)}, {V(GV+2*e)}, {V(GV+2*e+2)}")
        for h in range(2):
            k(f"ds_write_b128 {V(vKC)}, {V(O+8*c+4*h,4)} offset:{c*(SCR_ST+64)+16*h}")
    skip = newlab("nt")
    k(f"s_cmp_eq_u32 {S(sNH)}, 0")
    k.skip_begin("s_cbranch_scc1", skip)
    Z = KW + 104
    for i in range(1, 4):
        k(f"v_mov_b32 {V(Z+i)}, 0")
    k(f"v_cvt_pk_bf16_f32 {V(Z)}, {V(GV+32)}, 0")
    k("s_mov_b32 exec_lo, 0")
    k("s_mov_b32 exec_hi, 0x80000000")
    k(f"ds_write_b128 {V(vKC)}, {V(Z+4,4)} offset:32")
    k(f"ds_write_b128 {V(vKC)}, {V(Z+4,4)} offset:48")
    k(f"ds_write_b128 {V(vKC)}, {V(Z,4)} offset:{SCR_ST+64+32}")
    k(f"ds_write_b128 {V(vKC)}, {V(Z+4,4)} offset:{SCR_ST+64+48}")
    k("s_mov_b64 exec, -1")
    k.skip_end(skip)
    k.wait_tag_vm(("w2", 27))
    run(w2_tr_ops(7, 14))
    k.wait(lg=0)
    k("s_barrier")
    stamp(5)

def wave0(fn):
    skip = newlab("w0")
    k(f"s_cmp_lg_u32 {S(sW)}, 0")
    saved = list(k.vm)
    k.skip_begin("s_cbranch_scc1", skip)
    fn()
    k.skip_end(skip)
    k.vm = saved

def conv(layer):
    k.c("=== conv")
    XD, SD = WK, WK + 8
    M, Q, UU = WK + 40, WK + 48, WK + 56
    O = WK + 72
    k(f"s_mov_b32 {S(sC0)}, {f2u(1.0/448)}")
    k(f"s_mov_b32 {S(sC1)}, {f2u(1e-5)}")
    for j2 in range(4):
        for j in (2 * j2, 2 * j2 + 1):
            k(f"v_cvt_f32_f64 {V(M+j)}, {V(SD+4*j,2)}")
            k(f"v_cvt_f32_f64 {V(Q+j)}, {V(SD+4*j+2,2)}")
        j = 2 * j2
        pk("mul", V(M + j, 2), V(M + j, 2), S(sC0, 2), bc=(1,))
        pk("mul", V(Q + j, 2), V(Q + j, 2), S(sC0, 2), bc=(1,))
        pk("fma", V(Q + j, 2), V(M + j, 2), V(M + j, 2), V(Q + j, 2), neg=(0,))
        for h in range(2):
            k(f"v_max_f32 {V(Q+j+h)}, 0, {V(Q+j+h)}")
            k(f"v_add_f32 {V(Q+j+h)}, {S(sC1)}, {V(Q+j+h)}")
        for h in range(2):
            k(f"v_rsq_f32 {V(Q+j+h)}, {V(Q+j+h)}")
        for h in range(2):
            k(f"v_lshlrev_b32 {V(UU+j+h)}, 16, {V(XD+j+h)}")
            k(f"v_and_b32 {V(UU+8+j+h)}, {S(sHIM)}, {V(XD+j+h)}")
        for c in range(2):
            pk("add", V(UU + 8 * c + j, 2), V(UU + 8 * c + j, 2), V(M + j, 2), neg=(1,))
            pk("mul", V(UU + 8 * c + j, 2), V(UU + 8 * c + j, 2), V(Q + j, 2))
            k(f"v_cvt_pk_bf16_f32 {V(O+4*c+j2)}, {V(UU+8*c+j)}, {V(UU+8*c+j+1)}")
            k(f"v_perm_b32 {V(O+8+4*c+j2)}, {V(XD+j+1)}, {V(XD+j)}, {S(sPERM0+c)}")
        if j2 == 0:
            stamp(7)
    for c in range(2):
        k(f"ds_write_b128 {V(vUW)}, {V(O+4*c,4)} offset:{c*U_ST}")
    for c in range(2):
        k(f"ds_write_b128 {V(vXW)}, {V(O+8+4*c,4)} offset:{c*2*SCR_ST}")
    ACC = WK
    KB = WK + 32
    XRES = WK + 96
    mf, uld, kld = [], [], []
    for s in range(4):
        for Jp in range(7, -1, -1):
            I0 = 7 - Jp
            first = len(mf)
            for I in range(0, 8 - Jp):
                mf.append((s, Jp, I))
            uld.append((first, f"ds_read_b128 {A(AX+4*Jp,4)}, {V(vUF)} offset:{512*Jp + 64*(3-s)}"))
            kb = KB + 32 * (s & 1) + 4 * I0
            o = (128 if I0 % 2 == 0 else 0) + 16 * (3 - s)
            kld.append((first, f"ds_read2_b32 {V(kb,2)}, {V(vKF+I0//2)} offset0:{o} offset1:{o+1}"))
            kld.append((first, f"ds_read2_b32 {V(kb+2,2)}, {V(vKF+I0//2)} offset0:{o+2} offset1:{o+3}"))
    NPRE = 10
    for _, t in kld[:NPRE]:
        k(t)
    kld = kld[NPRE:]
    k.wait(lg=NPRE)
    k("s_barrier")
    stamp(9)
    loads = sorted(uld + kld, key=lambda x: x[0])
    rowstart = {f for f, _ in uld}
    bg = []
    if layer == 0:
        bg = [w2_dma] * (56 - ND[0]) + [lambda: poll_check(vWF, vWF + 1, 0)] + [w1_load] * opt("w1conv", 12)
    step = max(1, 132 // max(1, len(bg)))
    li = 0
    seen = set()
    for n, (s, Jp, I) in enumerate(mf):
        cnt = 0
        while li < len(loads) and (loads[li][0] <= n + 3 or (loads[li][0] <= n + 22 and cnt < (5 if n == 0 else 1))):
            f, txt = loads[li]
            if txt.startswith("ds_read_b128") and f >= 36 and n < f - 36 + (8 - mf[f][1]):
                break
            k(txt, tag=f)
            li += 1
            cnt += 1
        if n in rowstart:
            idx = [i for i, p in enumerate(k.lg) if p[2] == n]
            if idx:
                k.wait(lg=len(k.lg) - 1 - idx[-1])
        J = Jp + I
        d = V(ACC + 4 * J, 4)
        k(f"v_mfma_f32_16x16x32_bf16 {d}, {A(AX+4*Jp,4)}, {V(KB+32*(s&1)+4*I,4)}, {d if J in seen else 0}")
        seen.add(J)
        if 122 <= n < 126:
            jl = n - 122
            k(f"ds_read_b64_tr_b16 {V(XRES+2*jl,2)}, {V(vXR)} offset:{512*jl}")
        if n >= 6 and (n - 6) % step == 0:
            run(bg, 1)
        if n >= 136:
            i = n - 136
            k(f"v_lshlrev_b32 {V(KB+16+2*i)}, 16, {V(XRES+i)}")
            k(f"v_and_b32 {V(KB+16+2*i+1)}, {S(sHIM)}, {V(XRES+i)}")
    assert li == len(loads) and not bg
    stamp(10)
    T = KB
    XU = KB + 16
    l1, lj = newlab("x1"), newlab("xj")
    k(f"s_cmp_eq_u32 {S(sNH)}, 1")
    h0 = list(k.hist)
    k(f"s_cbranch_scc1 {l1}")
    for hf in range(2):
        if hf:
            k.label(l1)
            k.hist = h0
        for jl in range(4):
            k(f"ds_write_b128 {V(vEXW)}, {V(ACC+16*(1-hf)+4*jl,4)} offset:{1024*jl}")
        for i in range(8):
            pk("add", V(XU + 2 * i, 2), V(XU + 2 * i, 2), V(ACC + 16 * hf + 2 * i, 2))
        if not hf:
            k(f"s_branch {lj}")
    k.label(lj)
    k.wait(lg=0)
    k("s_barrier")
    for jl in range(4):
        k(f"ds_read_b128 {V(T+4*jl,4)}, {V(vEXR)} offset:{1024*jl}")
    k(f"s_mov_b32 {S(sT0)}, {hex(X1T + layer*XQ_SZ)}")
    k(f"s_mov_b32 {S(sT1)}, {hex(X1T + layer*XQ_SZ + 4*114688)}")
    for p in range(2):
        for i in range(4):
            pk("add", V(XU + 8 * p + 2 * i, 2), V(XU + 8 * p + 2 * i, 2), V(T + 8 * p + 2 * i, 2))
        for i in range(4):
            k(f"v_cvt_pk_bf16_f32 {V(ACC+4*p+i)}, {V(XU+8*p+2*i)}, {V(XU+8*p+2*i+1)}")
        k(f"buffer_store_dwordx4 {V(ACC+4*p,4)}, {V(vCO)}, {S(SRD_WS,4)}, {S(sT0+p)} offen sc1", tag="st")
    stamp(11)

def handoff(off, a=None, b=None, sb=12):
    if a:
        a()
    k.wait_tag_vm("st")
    k.wait(lg=0)
    k("s_barrier")
    wave0(lambda: flag_all(off))
    stamp(sb)
    if b:
        b()
    else:
        k.wait(vm=0)
        k("s_barrier")
    stamp(sb + 1)
    k(f"s_add_u32 {S(sT0)}, {S(sREP)}, {hex(off)}")
    poll_load(WK, vFP, S(sT0))
    poll_check(WK, vFP, S(sT0))
    k("s_barrier")
    stamp(sb + 2)

def handoff1(layer):
    if layer == 0:
        def a():
            n = (28 - NW1[0]) // 2
            k.wait_tag_vm(("w2", 55))
            tr = w2_tr_ops(14, 28)
            for i in range(n):
                w1_load()
                run(tr, len(tr) // (n - i))
            run(tr)
        def b():
            af = addr_ffn()
            n = 28 - NW1[0]
            for i in range(n):
                w1_load()
                run(af, len(af) // (n - i))
            run(af)
        handoff(0x8000, a, b)
    else:
        handoff(0x18000)

G2RES = WK + 100
G2R = WK + 108
vFL = WK + 97
vPL2 = WK + 96

def gflag(layer, half):
    k("s_mov_b64 exec, 1")
    k(f"buffer_store_dword {V(vONE)}, {V(vFL)}, {S(SRD_WS,4)}, {S(sFG)} offen offset:{1024*half} sc1")
    k("s_mov_b64 exec, -1")
    if opt("pfh", 1):
        k(f"s_add_u32 {S(sT2)}, {S(sHS)}, {half*2*112*1024}")
        k(f"buffer_load_dword {V(WK+98)}, {V(vPFH)}, {S(SRD_WS,4)}, {S(sT2)} offen sc1")
        k.vm[-1] = (set(), None)

def ffn(layer):
    k.c("=== GEMM1")
    ACC = WK
    EP = WK + 64
    vXS = WK + 80
    vB0, vB1 = WK + 81, WK + 82
    if layer:
        k(f"s_add_u32 {S(sXT)}, {S(sXT)}, {hex(XQ_SZ)}")
    if opt("pfx", 1):
        k(f"buffer_load_dword {V(WK+98)}, {V(vPFX)}, {S(SRD_WS,4)}, {S(sXT)} offen sc1")
        k.vm[-1] = (set(), None)
    k(f"v_add_u32 {V(vXS)}, {S(sXT)}, {V(vL16)}")
    k(f"s_lshl_b32 {S(sT0)}, {S(sW)}, 10")
    k(f"s_mov_b32 m0, {S(sT0)}")
    nx = [0]
    def dma():
        d = nx[0]
        nx[0] += 1
        k(f"buffer_load_dwordx4 {V(vXS)}, {S(SRD_WS,4)}, m0 offen sc1 lds", tag=("x", d))
        if d == 13:
            k(f"v_subrev_u32 {V(vXS)}, 32, {V(vXS)}")
        if d < 27:
            k(f"s_add_u32 m0, m0, {4096 + (32 if d == 13 else 0)}")
    NUP = opt("nup", 9)
    for st in range(NUP):
        dma()
    k(f"v_add_u32 {V(vB0)}, {XHALF}, {V(vXA0)}")
    k(f"v_add_u32 {V(vB1)}, {XHALF}, {V(vXA1)}")
    k(f"s_lshl_b32 {S(sT0)}, {S(sJ)}, 2")
    k(f"s_add_u32 {S(sT0)}, {S(sT0)}, {S(sW)}")
    k(f"s_lshl_b32 {S(sT0)}, {S(sT0)}, 4")
    k(f"v_mov_b32 {V(vFL)}, {S(sT0)}")
    if layer:
        k(f"s_add_u32 {S(sHS)}, {S(sHS)}, {hex(H_SZ)}")
        k(f"s_add_u32 {S(sFG)}, {S(sFG)}, 0x8000")
        for a in range(4):
            k(f"s_add_u32 {S(sHG+a)}, {S(sHG+a)}, {hex(H_SZ)}")
    mf = [(0, q, ks) for ks in range(25) for q in range(2)]
    mf += [(0, q, ks) for q in range(2) for ks in range(25, 28)]
    mf += [(1, q, ks) for q in range(2) for ks in range(28)]
    NR = 8
    LEAD = opt("g1lead", 5)
    bars = [2, 5, 9, 14, 28]
    ready = [0]
    def rd(n):
        half, q, ks = mf[n]
        st = 14 * half + ks // 2
        if st >= ready[0]:
            nb = [b for b in bars if b > st][0]
            assert nx[0] >= nb, (n, nb, nx[0])
            k.wait_tag_vm(("x", nb - 1))
            k("s_barrier")
            ready[0] = nb
        va = ((vXA0, vXA1), (vB0, vB1))[half][q]
        for u in range(2):
            k(f"ds_read_b64_tr_b16 {A(AX+4*(n%NR)+2*u,2)}, {V(va)} offset:{ks*2048+u*512}")
    def epi(tile):
        ops = []
        e = EP + 8 * (tile & 1)
        st = []
        for a in range(2):
            for i in range(4):
                ops.append(f"v_cvt_pk_bf16_f32 {V(e+4*a+i)}, {V(ACC+16*tile+8*a+2*i)}, {V(ACC+16*tile+8*a+2*i+1)}")
            for i in range(4):
                ops.append(f"v_pk_max_i16 {V(e+4*a+i)}, {V(e+4*a+i)}, 0")
            if a == 0:
                ops.append(f"s_add_u32 {S(sT1)}, {S(sHS)}, {tile*112*1024}")
            ops.append((f"buffer_store_dwordx4 {V(e+4*a,4)}, {V(vL16)}, {S(SRD_WS,4)}, {S(sT1)} offen offset:{1024*a} sc1", ("h", tile)))
        return ops
    pend = []
    for n in range(LEAD):
        rd(n)
    stamp(27)
    for n, (half, q, ks) in enumerate(mf):
        tile = 2 * half + q
        d = V(ACC + 16 * tile, 16)
        k(f"v_mfma_f32_32x32x16_bf16 {d}, {V(W1R+4*ks,4)}, {A(AX+4*(n%NR),4)}, {d if ks else 0}")
        if n + LEAD < len(mf):
            rd(n + LEAD)
        if n % 2 == 0 and nx[0] < 28:
            dma()
        if n == 54:
            pend += epi(0) + epi(1)
        if n == 86:
            pend += epi(2)
        run(pend, 3)
        if n == opt("flagA", 96):
            k.wait_tag_vm(("h", 1))
            gflag(layer, 0)
    assert not pend and nx[0] == 28
    F = WK
    vS, vQ, vT = WK + 56, WK + 57, WK + 58
    srd_ = [f"ds_read_b64_tr_b16 {V(F+4*ks+2*u,2)}, {V(vST)} offset:{ks*4096+u*512}" for ks in range(14) for u in range(2)]
    run(srd_, 12)
    e3 = epi(3)
    run(e3, 9)
    poll_load(vPL2, vF2P, S(sFG))
    run(e3)
    stamp(15)
    run(srd_)
    for h in range(2):
        for u in range(2):
            k(f"ds_read_b64_tr_b16 {V(G2RES+4*h+2*u,2)}, {V(vRES)} offset:{h*XHALF+u*512}")
    st = [f"v_mov_b32 {V(vS)}, 0", f"v_mov_b32 {V(vQ)}, 0"]
    for i in range(56):
        st.append(f"v_dot2c_f32_bf16 {V(vS)}, {S(sONES)}, {V(F+i)}")
        st.append(f"v_dot2c_f32_bf16 {V(vQ)}, {V(F+i)}, {V(F+i)}")
    for r in (vS, vQ):
        st += [f"v_mov_b32 {V(vT)}, {V(r)}", f"v_permlane32_swap_b32 {V(r)}, {V(vT)}", f"v_add_f32 {V(r)}, {V(r)}, {V(vT)}",
               f"v_mov_b32 {V(vT)}, {V(r)}", f"v_permlane16_swap_b32 {V(r)}, {V(vT)}", f"v_add_f32 {V(r)}, {V(r)}, {V(vT)}"]
    st += [f"v_mul_f32 {V(vS)}, {f2u(1.0/448)}, {V(vS)}",
           f"v_mul_f32 {V(vQ)}, {f2u(1.0/448)}, {V(vQ)}",
           f"v_fma_f32 {V(vQ)}, -{V(vS)}, {V(vS)}, {V(vQ)}",
           f"v_max_f32 {V(vQ)}, 0, {V(vQ)}",
           f"v_add_f32 {V(vQ)}, {f2u(1e-5)}, {V(vQ)}",
           f"v_rsq_f32 {V(vQ)}, {V(vQ)}",
           f"v_mov_b32 {V(G2R)}, {V(vQ)}",
           f"v_mov_b32 {V(G2R+2)}, {V(vQ)}",
           f"v_mov_b32_dpp {V(G2R)}, {V(vQ)} row_ror:8 row_mask:0xf bank_mask:0xc",
           f"v_mov_b32_dpp {V(G2R+2)}, {V(vQ)} row_ror:8 row_mask:0xf bank_mask:0x3"]
    run(st, opt("stpre", 50))
    poll_check(vPL2, vF2P, S(sFG))
    stamp(17)

    k.c("=== GEMM2")
    ring = [("a", AX + 4 * i) for i in range(8)] + [("v", WK + 64 + 4 * i) for i in range(8)]
    NR = opt("g2ring", 14)
    ring = ring[:NR]
    rn = lambda i: (V if ring[i % NR][0] == "v" else A)(ring[i % NR][1], 4)
    nl = [0]
    def ld():
        i = nl[0]
        nl[0] += 1
        half, s = divmod(i, 28)
        a, r = divmod(s, 7)
        if r in (0, 4):
            k(f"s_add_u32 {S(sT0)}, {S(sHG+a)}, {half*2*112*1024 + r*1024}")
        k(f"buffer_load_dwordx4 {rn(i)}, {V(vL16)}, {S(SRD_WS,4)}, {S(sT0)} offen offset:{1024*(r%4)} sc1")
    def red_write(half):
        return [f"ds_write_b128 {V(vRW)}, {V(ACC+32*half+4*G,4)} offset:{half*RED_H+G*RED_G}" for G in range(8)]
    def red_read(half):
        return [f"ds_read_b128 {V(ACC+32*half+8*w+4*g,4)}, {V(vRR)} offset:{half*RED_H+w*RED_W+512*g}" for w in range(4) for g in range(2)]
    def bar():
        k.wait(lg=0)
        k("s_barrier")
    def unpack(half, u):
        o = []
        for i in range(4):
            o.append(f"v_lshlrev_b32 {V(u+2*i)}, 16, {V(G2RES+4*half+i)}")
            o.append(f"v_and_b32 {V(u+2*i+1)}, {S(sHIM)}, {V(G2RES+4*half+i)}")
        return o
    def fin(half, u, pre):
        a = ACC + 32 * half
        ops = []
        P = lambda d, x, y: f"v_pk_add_f32 {V(d,2)}, {V(x,2)}, {V(y,2)}"
        for i in range(4):
            ops.append(P(a + 2 * i, a + 2 * i, a + 8 + 2 * i))
        if not pre:
            ops += unpack(half, u)
        for i in range(4):
            ops.append(P(a + 16 + 2 * i, a + 16 + 2 * i, a + 24 + 2 * i))
        for i in range(4):
            ops.append(P(a + 2 * i, a + 2 * i, a + 16 + 2 * i))
        for i in range(4):
            ops.append(f"v_pk_fma_f32 {V(a+2*i,2)}, {V(a+2*i,2)}, {V(G2R+2*half,2)}, {V(u+2*i,2)} op_sel_hi:[1,0,1]")
        for i in range(4):
            ops.append(f"v_cvt_pk_bf16_f32 {V(a+24+i)}, {V(a+2*i)}, {V(a+2*i+1)}")
        if layer == 0:
            ops += quad_shuffle([(a + 28, a + 24)])
            ops.append(f"s_mov_b32 {S(sT1)}, {hex(XQ+XQ_SZ)}")
            ops.append((f"buffer_store_dwordx4 {V(a+28,4)}, {V(vOQ)}, {S(SRD_WS,4)}, {S(sT1)} offen offset:{256*half} sc1", "st"))
            ops += stats_ops(a + 24, 4, a, a + 1, a + 2)
            def at():
                k(f"s_mov_b32 {S(sT1)}, {hex(STATS[1])}")
                k("s_mov_b32 exec_lo, 0xff")
                k("s_mov_b32 exec_hi, 0xff")
                k(f"buffer_atomic_add_f64 {V(a+2,2)}, {V(vAT)}, {S(SRD_WS,4)}, {S(sT1)} offen offset:{512*half} sc1", tag="st")
                k("s_mov_b64 exec, -1")
            ops.append(at)
        else:
            ops.append(f"s_movk_i32 {S(sT1)}, {8*896*half}")
            ops.append(f"buffer_store_dwordx4 {V(a+24,4)}, {V(vOO)}, {S(SRD_OUT,4)}, {S(sT1)} offen")
        return ops
    NUP2 = opt("nup2", 10)
    for i in range(NUP2):
        ld()
        run(st, (len(st) + NUP2 - i - 1) // (NUP2 - i))
    assert not st
    k.wait_tag_vm(("h", 3))
    gflag(layer, 1)
    stamp(16)
    PB = opt("pollB", 8)
    order = [(i, dt) for i in range(52) for dt in range(2)] + [(i, dt) for dt in range(2) for i in range(52, 56)]
    pend = []
    okB = False
    for n, (i, dt) in enumerate(order):
        half, s = divmod(i, 28)
        d = V(ACC + 32 * half + 16 * dt, 16)
        k(f"v_mfma_f32_32x32x16_bf16 {d}, {A((s*2+dt)*4,4)}, {rn(i)}, {d if s else 0}")
        if dt == 1 and i < 52:
            if i == 3:
                bar()
            if i == PB:
                poll_load(vPL2, vF2P, S(sFG), 1024)
            if nl[0] == 28 and not okB and i > PB and not any(f"v{vPL2}" in p[0] for p in k.vm[1:]):
                poll_check(vPL2, vF2P, S(sFG), 1024)
                okB = True
            if i == 29:
                pend += red_write(0) + [None] * 4 + [bar] + red_read(0) + [None] * 6 + fin(0, ACC + 8, False)
            if i == 48:
                assert not pend
                pend += unpack(1, ACC + 8)
        if nl[0] < 56 and nl[0] - NR < i + dt and (nl[0] < 28 or okB):
            ld()
        run(pend, 3)
        if n == 110:
            pend += red_write(1)[:4]
    run(pend)
    assert nl[0] == 56
    stamp(18)
    run(red_write(1)[4:])
    bar()
    run(red_read(1) + fin(1, ACC + 8, True))
    stamp(19)

def finish():
    if DIAG:
        k.wait(vm=0)
        stamp(22)
        stamp(30, True)
        k(f"s_lshl_b32 {S(sT0)}, {S(sWG)}, 10")
        k(f"s_add_u32 {S(sT0)}, {S(sT0)}, {hex(STAMP)}")
        k(f"v_lshlrev_b32 {V(WK)}, 2, {V(vTID)}")
        k(f"buffer_store_dword {V(vSTAMP)}, {V(WK)}, {S(SRD_WS,4)}, {S(sT0)} offen")
    k.label("L_end")
    k("s_endpgm")

prologue()
main_start()
kgen()
conv(0)
handoff1(0)
ffn(0)
handoff(0x10000, sb=20)
LAY[0] = 1
conv_loads(1)
conv(1)
handoff1(1)
ffn(1)
finish()
helper()
body = list(k.lines)
body += [".p2align 4", ".type L_table,@object", "L_table:"]
body += [".long " + ",".join(hex(w) for w in r) for r in table_words()]
body += ["L_table_end:"]

ref = open("cdna_kernels/%s.s.ref" % NAME).read().splitlines()
hdr = [l for l in ref if l.startswith(";") and "@launch" not in l]
head = f""".amdgcn_target "amdgcn-amd-amdhsa--gfx950"
.text
.globl {NAME}_kernel
.p2align 8
.type {NAME}_kernel,@function
{NAME}_kernel:
"""
if opt("align", 1):
    body = align(body, head)
out = "\n".join(hdr) + f"\n; @launch grid=(256,1,1) block=(256,1,1) lds={LDS_BYTES}\n"
out += head + "\n".join(body) + "\n"
out += f""".section .rodata,"a"
.p2align 6
.amdhsa_kernel {NAME}_kernel
  .amdhsa_next_free_vgpr 512
  .amdhsa_next_free_sgpr 102
  .amdhsa_accum_offset 256
  .amdhsa_group_segment_fixed_size 0
  .amdhsa_kernarg_size 120
  .amdhsa_user_sgpr_count 2
  .amdhsa_user_sgpr_kernarg_segment_ptr 1
  .amdhsa_system_sgpr_workgroup_id_x 1
.end_amdhsa_kernel
"""
dst = [a for a in sys.argv[1:] if not a.startswith("--")]
dst = dst[0] if dst else "cdna_kernels/%s.s" % NAME
open(dst, "w").write(out)
print("instructions:", k.nins, "->", dst)
```

```python
import sys, struct
from emit import Asm, V, A, S
from align import align

NAME = "interleave_layers__ssm_conv_s4__dense_activation_relu__prompt"
DIAG = "--diag" in sys.argv
OPT = {}
for a in sys.argv:
    if a.startswith("--") and "=" in a:
        n, v = a[2:].split("=")
        OPT[n] = int(v)
def opt(n, d):
    return OPT.get(n, d)

def f2u(x):
    return "0x%08x" % struct.unpack("<I", struct.pack("<f", x))[0]

FLG_A = 0x0
FLG_G = 0x20000
STATS = (0x38000, 0x30000)
XQ = 0x40000
XQ_SZ = 0x1C0000
X1T = 0x3C0000
HB = 0x740000
H_SZ = 0x700000
W1C = 0x1540000
FLG_W = 0x16C8000
STAMP = 0x1700000
WS_BYTES = 0x1800000

XHALF = 57344 + 32
SCR = 114816
SCR_ST = 8704
ROW_ST = 544
UARR = SCR + 4 * SCR_ST
U_ST = 4576
LDS_BYTES = 163840
WREG = 28672
RED_G = 1152
RED_W = 8 * RED_G
RED_H = 4 * RED_W

sWG, sW = 2, 3
SRD_WS, SRD_OUT, SRD_W1, SRD_W2, SRD_X0, SRD_DBG = 4, 8, 12, 16, 20, 24
sCP, sGAM, sJ, sHH, sDS, sROT = 58, 59, 60, 61, 62, 63
sONES, sHIM = 64, 65
sT0, sT1, sT2, sT3, sT4, sT5 = 66, 67, 68, 69, 70, 71
sLDT, sDSK = 72, 73
sREP, sXQi, sW2B, sXT, sHL, sHS, sFG = 74, 75, 76, 77, 78, 79, 80
sSPIN = 81
sC0, sC1 = 82, 83
sPC = 84
sTM = 86
sWL = 88
sW2O = 89
sSCR, sSCH = 90, 95
sPERM0, sPERM1 = 91, 92
sNH, sCH = 93, 94
sHG = 96

vTID, vL, vL16 = 0, 1, 2
vCIN, vUW, vXW = 3, 4, 5
vKF = 6
vUF, vXR, vCO, vEXW, vEXR = 10, 11, 12, 13, 14
vXA0, vXA1 = 15, 16
vST, vRES, vRW, vRR, vOQ, vOO, vAT = 17, 18, 19, 20, 21, 22, 23
vFW, vFP, vF2P = 24, 25, 26
vCX, vPFH, vPFX = 27, 28, 29
vSTAMP = 30
vONE = 31
WK = 32
W1R = 144
AX = 224
vW2S, vW2R = WK + 104, WK + 105
vDUM = WK + 107
vWF = WK + 108

k = Asm()
SPIN_MAX = 1 << 16
LAY = [0]

ENC = opt("enc", -1)
def stamp(idx, cyc=False):
    if ENC >= 0 and not cyc and idx + 32 * LAY[0] in (0, ENC):
        k.wait(lg=0)
        k(f"s_memrealtime {S(sTM,2)}")
        k.wait(lg=0)
        k(f"s_mov_b32 {S(100 if idx + 32*LAY[0] == 0 else 101)}, {S(sTM)}")
    if not DIAG:
        return
    k.wait(lg=0)
    k(f"{'s_memtime' if cyc != bool(opt('cyc', 0)) else 's_memrealtime'} {S(sTM,2)}")
    k.wait(lg=0)
    k(f"v_writelane_b32 {V(vSTAMP)}, {S(sTM)}, {idx + 32*LAY[0]}")

def srd(base, ptr, nbytes):
    k(f"s_mov_b32 {S(base)}, {S(ptr)}")
    k(f"s_and_b32 {S(base+1)}, {S(ptr+1)}, 0xffff")
    k(f"s_mov_b32 {S(base+2)}, {hex(nbytes)}")
    k(f"s_mov_b32 {S(base+3)}, 0x20000")

_lab = [0]
def newlab(p):
    _lab[0] += 1
    return f"L_{p}_{_lab[0]}"

def branch(op, lab):
    k.fence(1)
    k(f"{op} {lab}")

def label(lab):
    k.fence()
    k.label(lab)

def poll_load(vtmp, vaddr, soff, off=0, srdn=SRD_WS):
    k(f"buffer_load_dword {V(vtmp)}, {V(vaddr)}, {S(srdn,4)}, {soff} offen offset:{off} sc1")

def poll_check(vtmp, vaddr, soff, off=0, srdn=SRD_WS):
    lp, ok = newlab("poll"), newlab("ok")
    k(f"v_cmp_eq_u32 vcc, 0, {V(vtmp)}")
    saved = list(k.vm)
    k.skip_begin("s_cbranch_vccz", ok)
    k(f"s_mov_b32 {S(sSPIN)}, 0")
    k.label(lp)
    poll_load(vtmp, vaddr, soff, off, srdn)
    k(f"s_add_u32 {S(sSPIN)}, {S(sSPIN)}, 1")
    k.wait(vm=0)
    k(f"v_cmp_eq_u32 vcc, 0, {V(vtmp)}")
    k(f"s_cmp_gt_u32 {S(sSPIN)}, {SPIN_MAX}")
    k(f"s_cbranch_scc1 {ok}")
    k(f"s_cbranch_vccnz {lp}")
    k.skip_end(ok)
    k.vm = saved

def run(ops, n=None):
    c = 0
    while ops and (n is None or c < n):
        o = ops.pop(0)
        if callable(o):
            o()
        elif isinstance(o, tuple):
            k(o[0], tag=o[1])
        elif o is not None:
            k(o)
        c += 1

def stats_ops(P, n, vS, vQ, vT):
    o = [f"v_mov_b32 {V(vS)}, 0", f"v_mov_b32 {V(vQ)}, 0"]
    for i in range(n):
        o.append(f"v_dot2c_f32_bf16 {V(vS)}, {S(sONES)}, {V(P+i)}")
        o.append(f"v_dot2c_f32_bf16 {V(vQ)}, {V(P+i)}, {V(P+i)}")
    o += [f"v_permlane32_swap_b32 {V(vS)}, {V(vQ)}",
          f"v_add_f32 {V(vS)}, {V(vS)}, {V(vQ)}",
          f"v_mov_b32 {V(vT)}, {V(vS)}",
          f"v_permlane16_swap_b32 {V(vS)}, {V(vT)}",
          f"v_add_f32 {V(vS)}, {V(vS)}, {V(vT)}",
          f"v_add_f32_dpp {V(vS)}, {V(vS)}, {V(vS)} row_ror:8 row_mask:0xf bank_mask:0xf",
          f"v_cvt_f64_f32 {V(vT,2)}, {V(vS)}"]
    return o

def quad_shuffle(pairs):
    D = " row_mask:0xf bank_mask:0xf"
    o = ["s_mov_b32 vcc_lo, 0x0f0f0f0f", "s_mov_b32 vcc_hi, 0x0f0f0f0f"]
    for d, s in pairs:
        o.append(f"v_cndmask_b32_dpp {V(d)}, {V(s+2)}, {V(s)}, vcc row_ror:4" + D)
        o.append(f"v_cndmask_b32_dpp {V(d+2)}, {V(s+3)}, {V(s+1)}, vcc row_ror:4" + D)
    o.append("s_not_b64 vcc, vcc")
    for d, s in pairs:
        o.append(f"v_cndmask_b32_dpp {V(d+1)}, {V(s)}, {V(s+2)}, vcc row_ror:12" + D)
        o.append(f"v_cndmask_b32_dpp {V(d+3)}, {V(s+1)}, {V(s+3)}, vcc row_ror:12" + D)
    return o

X0R = WK
X0O = WK + 28
vP0A = WK + 56

def p0x_addr():
    k.c("P0-x: rows t' = 8*wg + (l&7), octets 8a + (l>>3)")
    t = vP0A
    k(f"v_and_b32 {V(t)}, 7, {V(vL)}")
    k(f"s_lshl_b32 {S(sT0)}, {S(sWG)}, 3")
    k(f"v_add_u32 {V(t)}, {S(sT0)}, {V(t)}")
    k(f"v_and_b32 {V(t+1)}, 3, {V(t)}")
    k(f"v_bfe_u32 {V(t+2)}, {V(t)}, 2, 4")
    k(f"v_lshl_add_u32 {V(t+3)}, {V(t+1)}, 4, {V(t+2)}")
    k(f"v_and_b32 {V(t+2)}, 0x7c0, {V(t)}")
    k(f"v_add_u32 {V(t+3)}, {V(t+3)}, {V(t+2)}")
    k(f"v_mul_u32_u24 {V(t+3)}, 896, {V(t+3)}")
    k(f"v_lshrrev_b32 {V(t+2)}, 3, {V(vL)}")
    k(f"v_lshl_add_u32 {V(t+3)}, {V(t+2)}, 4, {V(t+3)}")
    k(f"v_lshrrev_b32 {V(t+2)}, 2, {V(vL)}")
    k(f"v_lshlrev_b32 {V(t+1)}, 4, {V(t+1)}")
    k(f"v_lshl_add_u32 {V(t+1)}, {V(t+2)}, 14, {V(t+1)}")
    k(f"s_lshl_b32 {S(sT0)}, {S(sWG)}, 6")
    k(f"v_add_u32 {V(t+1)}, {S(sT0)}, {V(t+1)}")
    k(f"v_lshlrev_b32 {V(t)}, 4, {V(t)}")
    k(f"v_lshrrev_b32 {V(t+2)}, 5, {V(vL)}")
    k(f"v_lshl_add_u32 {V(t)}, {V(t+2)}, 3, {V(t)}")

def p0x_loads():
    for a in range(7):
        k(f"buffer_load_dwordx4 {V(X0R+4*a,4)}, {V(vP0A+3)}, {S(SRD_X0,4)}, 0 offen offset:{128*a}")

def p0x_body():
    t = vP0A
    vS, vQ, vT = WK + 60, WK + 61, WK + 62
    run(quad_shuffle([(X0O + 4 * a, X0R + 4 * a) for a in range(7)]))
    k(f"s_mov_b32 {S(sT0)}, {hex(XQ)}")
    st = stats_ops(X0R, 28, vS, vQ, vT)
    for a in range(7):
        k(f"buffer_store_dwordx4 {V(X0O+4*a,4)}, {V(t+1)}, {S(SRD_WS,4)}, {S(sT0)} offen sc1")
        if a < 6:
            k(f"s_add_u32 {S(sT0)}, {S(sT0)}, {hex(16*16384)}")
        run(st, 4)
    run(st)
    k(f"s_mov_b32 {S(sT0)}, {hex(STATS[0])}")
    k(f"s_mov_b32 exec_lo, 0xff")
    k(f"s_mov_b32 exec_hi, 0xff")
    k(f"buffer_store_dwordx2 {V(vT,2)}, {V(t)}, {S(SRD_WS,4)}, {S(sT0)} offen sc1")
    k(f"s_mov_b64 exec, -1")
    k(f"v_and_b32 {V(t+1)}, 7, {V(vL)}")
    k(f"v_lshlrev_b32 {V(t+1)}, 2, {V(t+1)}")
    poll_load(t + 2, t + 1, 0, 0, SRD_DBG)

def flag_all(off):
    k(f"s_mov_b32 {S(sT0)}, {hex(off)}")
    k(f"s_mov_b64 exec, 0xff")
    k(f"buffer_store_dword {V(vONE)}, {V(vFW)}, {S(SRD_WS,4)}, {S(sT0)} offen sc1")
    k(f"s_mov_b64 exec, -1")

def p0x_flag():
    poll_check(vP0A + 2, vP0A + 1, 0, 0, SRD_DBG)
    flag_all(0)

ND = [0]
def w2_dma():
    d = ND[0]
    ND[0] += 1
    if d % 28 == 0:
        k(f"s_mul_i32 {S(sT4)}, {S(sW)}, {WREG}")
        k(f"s_mov_b32 m0, {S(sT4)}")
    if d % 14 == 0:
        k(f"s_mul_i32 {S(sW2O)}, {S(sHG + d//14)}, 14")
        k(f"s_add_u32 {S(sW2O)}, {S(sW2O)}, {S(sW2B)}")
    k(f"buffer_load_dwordx4 {V(vW2S)}, {S(SRD_W2,4)}, {S(sW2O)} offen lds", tag=("w2", d))
    if d % 14 != 13:
        k(f"s_add_u32 {S(sW2O)}, {S(sW2O)}, {8*896}")
    if d % 28 != 27:
        k(f"s_add_u32 m0, m0, 1024")

def w2_tr_ops(lo, hi):
    return [f"ds_read_b64_tr_b16 {A((s*2+dt)*4+2*u,2)}, {V(vW2R+dt)} offset:{(s%14)*2048+u*1024}"
            for s in range(lo, hi) for dt in range(2) for u in range(2)]

NW1 = [0]
def w1_load():
    ks = NW1[0]
    NW1[0] += 1
    k(f"buffer_load_dwordx4 {V(W1R+4*ks,4)}, {V(vL16)}, {S(SRD_WS,4)}, {S(sWL)} offen offset:{1024*(ks%4)} sc1")
    if ks % 4 == 3:
        k(f"s_add_u32 {S(sWL)}, {S(sWL)}, 4096")

def prologue():
    k(f"s_getpc_b64 {S(sPC,2)}")
    k.label("L_pc")
    k(f"s_cmp_ge_u32 {S(sWG)}, 256")
    k("s_cbranch_scc1 L_end")
    k("s_load_dwordx16 s[28:43], s[0:1], 0")
    k("s_load_dwordx8 s[44:51], s[0:1], 64")
    k("s_load_dwordx4 s[52:55], s[0:1], 96")
    k("s_load_dwordx2 s[56:57], s[0:1], 112")
    k.c("pull the code into L2")
    k(f"v_lshlrev_b32 {V(vL16)}, 7, {V(vTID)}")
    k(f"global_load_dword {V(vDUM)}, {V(vL16)}, {S(sPC,2)}")
    k(f"v_add_u32 {V(vL16)}, 0x8000, {V(vL16)}")
    k(f"v_min_u32 {V(vL16)}, L_table_end-L_pc-4, {V(vL16)}")
    k.vm = []
    k(f"global_load_dword {V(vDUM)}, {V(vL16)}, {S(sPC,2)}")
    k.vm = []
    k(f"v_lshrrev_b32 {V(vONE)}, 6, {V(vTID)}")
    k(f"v_and_b32 {V(vL)}, 63, {V(vTID)}")
    k(f"v_readfirstlane_b32 {S(sW)}, {V(vONE)}")
    k(f"v_lshlrev_b32 {V(vL16)}, 4, {V(vL)}")
    k(f"v_mov_b32 {V(vONE)}, 1")
    if DIAG:
        k(f"v_mov_b32 {V(vSTAMP)}, 0")
    k(f"s_mov_b32 {S(sONES)}, 0x3f803f80")
    k(f"s_mov_b32 {S(sHIM)}, 0xffff0000")
    k(f"s_sub_u32 {S(sT0)}, {S(sWG)}, 32")
    k(f"s_and_b32 {S(sT1)}, {S(sT0)}, 7")
    k(f"s_lshr_b32 {S(sT0)}, {S(sT0)}, 3")
    k(f"s_mul_i32 {S(sCP)}, {S(sT1)}, 28")
    k(f"s_add_u32 {S(sCP)}, {S(sCP)}, {S(sT0)}")
    k(f"s_cmp_ge_u32 {S(sT0)}, 14")
    k(f"s_cselect_b32 {S(sT2)}, 1, 0")
    k(f"s_cselect_b32 {S(sT3)}, 14, 0")
    k(f"s_lshl_b32 {S(sGAM)}, {S(sT1)}, 1")
    k(f"s_add_u32 {S(sGAM)}, {S(sGAM)}, {S(sT2)}")
    k(f"s_sub_u32 {S(sJ)}, {S(sT0)}, {S(sT3)}")
    k(f"s_and_b32 {S(sHH)}, {S(sJ)}, 1")
    k(f"s_lshr_b32 {S(sDS)}, {S(sJ)}, 1")
    k(f"s_and_b32 {S(sNH)}, {S(sW)}, 1")
    k(f"s_lshr_b32 {S(sCH)}, {S(sW)}, 1")
    k(f"s_lshl_b32 {S(sREP)}, {S(sT1)}, 12")
    k(f"s_lshl_b32 {S(sROT)}, {S(sT2)}, 1")
    k(f"s_add_u32 {S(sROT)}, {S(sROT)}, {S(sHH)}")
    k(f"s_add_u32 {S(sROT)}, {S(sROT)}, {S(sDS)}")
    k(f"s_lshl_b32 {S(sT0)}, {S(sWG)}, 4")
    k(f"v_lshlrev_b32 {V(vFW)}, 12, {V(vL)}")
    k(f"v_add_u32 {V(vFW)}, {S(sT0)}, {V(vFW)}")
    p0x_addr()
    k(f"s_lshl_b32 {S(sT0)}, {S(sCP)}, 10")
    k(f"v_lshl_add_u32 {V(PRM+6)}, {V(vTID)}, 2, {S(sT0)}")
    k.wait(lg=0)
    srd(SRD_X0, 28, 2048 * 896)
    srd(SRD_WS, 56, WS_BYTES)
    srd(SRD_DBG, 54, 256)
    stamp(0)
    stamp(30, True)
    skip = newlab("nx")
    k(f"s_cmp_lg_u32 {S(sW)}, 0")
    branch("s_cbranch_scc1", skip)
    p0x_loads()
    label(skip)
    k.forget()
    k(f"s_cmp_lt_u32 {S(sWG)}, 32")
    branch("s_cbranch_scc1", "L_helper")

def helper():
    label("L_helper")
    k.forget()
    srd(SRD_W1, 48, 448 * 3584)
    z = WK + 64
    F = WK + 72
    for i in range(4):
        k(f"v_mov_b32 {V(z+i)}, 0")
    l1, l2, l3 = newlab("h1"), newlab("h2"), newlab("h3")
    k(f"s_cmp_lg_u32 {S(sW)}, 1")
    branch("s_cbranch_scc1", l1)
    k(f"s_cmp_ge_u32 {S(sWG)}, 8")
    branch("s_cbranch_scc1", l1)
    k(f"s_lshl_b32 {S(sT0)}, {S(sWG)}, 12")
    for i in range(4):
        k(f"buffer_store_dwordx4 {V(z,4)}, {V(vL16)}, {S(SRD_WS,4)}, {S(sT0)} offen offset:{1024*i} sc1")
    k(f"s_lshl_b32 {S(sT0)}, {S(sWG)}, 2")
    k.wait(vm=0)
    k("s_mov_b64 exec, 1")
    k(f"buffer_store_dword {V(vONE)}, {V(z)}, {S(SRD_DBG,4)}, {S(sT0)} offen sc1")
    k("s_mov_b64 exec, -1")
    label(l1)
    k.forget()
    k(f"s_lshl_b32 {S(sT5)}, {S(sWG)}, 7")
    k(f"s_add_u32 {S(sT5)}, {S(sT5)}, {hex(FLG_W)}")
    k(f"s_cmp_lt_u32 {S(sW)}, 2")
    branch("s_cbranch_scc1", l2)
    k(f"s_lshl_b32 {S(sT0)}, {S(sWG)}, 1")
    k(f"s_add_u32 {S(sT0)}, {S(sT0)}, {S(sNH)}")
    k(f"s_mul_i32 {S(sT0)}, {S(sT0)}, 3072")
    k(f"s_add_u32 {S(sT0)}, {S(sT0)}, 0x8000")
    for i in range(3):
        k(f"buffer_store_dwordx4 {V(z,4)}, {V(vL16)}, {S(SRD_WS,4)}, {S(sT0)} offen offset:{1024*i} sc1")
    k("s_mov_b64 exec, 1")
    k(f"buffer_store_dword {V(z)}, {V(z)}, {S(SRD_WS,4)}, {S(sT5)} offen sc1")
    k("s_mov_b64 exec, -1")
    label(l2)
    k.forget()
    t = z + 4
    k(f"v_lshrrev_b32 {V(t)}, 2, {V(vL)}")
    k(f"v_mul_u32_u24 {V(t)}, 3584, {V(t)}")
    k(f"v_and_b32 {V(t+1)}, 3, {V(vL)}")
    k(f"v_lshl_add_u32 {V(t)}, {V(t+1)}, 4, {V(t)}")
    k(f"s_lshl_b32 {S(sT2)}, {S(sWG)}, 1")
    k(f"s_add_u32 {S(sT2)}, {S(sT2)}, {S(sCH)}")
    k(f"s_min_u32 {S(sT2)}, {S(sT2)}, 55")
    k(f"s_lshl_b32 {S(sT0)}, {S(sT2)}, 6")
    k(f"s_mul_i32 {S(sT1)}, {S(sNH)}, {224*3584}")
    k(f"s_add_u32 {S(sT0)}, {S(sT0)}, {S(sT1)}")
    k(f"s_mul_i32 {S(sT3)}, {S(sW)}, 14336")
    k(f"s_mov_b32 m0, {S(sT3)}")
    for c in range(14):
        k(f"buffer_load_dwordx4 {V(t)}, {S(SRD_W1,4)}, {S(sT0)} offen lds")
        k(f"s_add_u32 {S(sT0)}, {S(sT0)}, {16*3584}")
        k(f"s_add_u32 m0, m0, 1024")
    k(f"v_lshrrev_b32 {V(t)}, 5, {V(vL)}")
    k(f"v_lshlrev_b32 {V(t)}, 9, {V(t)}")
    k(f"v_lshl_add_u32 {V(t)}, {V(t+1)}, 3, {V(t)}")
    k(f"v_bfe_u32 {V(t+1)}, {V(vL)}, 2, 2")
    k(f"v_lshl_add_u32 {V(t)}, {V(t+1)}, 6, {V(t)}")
    k(f"v_bfe_u32 {V(t+1)}, {V(vL)}, 4, 1")
    k(f"v_lshl_add_u32 {V(t)}, {V(t+1)}, 5, {V(t)}")
    k(f"v_add_u32 {V(t)}, {S(sT3)}, {V(t)}")
    k(f"s_cmp_lg_u32 {S(sW)}, 0")
    branch("s_cbranch_scc1", l3)
    k.wait(vm=14)
    p0x_body()
    label(l3)
    k.wait(vm=0)
    k("s_barrier")
    l4 = newlab("h4")
    k(f"s_cmp_lg_u32 {S(sW)}, 0")
    branch("s_cbranch_scc1", l4)
    p0x_flag()
    label(l4)
    k.forget()
    k(f"s_cmp_ge_u32 {S(sWG)}, 28")
    branch("s_cbranch_scc1", "L_end2")
    for ks in range(14):
        for u in range(2):
            k(f"ds_read_b64_tr_b16 {V(F+4*ks+2*u,2)}, {V(t)} offset:{ks*1024+u*256}")
    c, u_ = z, z + 2
    for i in range(56):
        k(f"v_dot2c_f32_bf16 {V(c)}, {S(sONES)}, {V(F+i)}")
    k(f"v_mov_b32 {V(u_)}, {V(c)}")
    k(f"v_permlane32_swap_b32 {V(c)}, {V(u_)}")
    k(f"v_add_f32 {V(c)}, {V(c)}, {V(u_)}")
    k(f"v_lshlrev_b32 {V(t)}, 2, {V(vTID)}")
    k(f"v_add_u32 {V(t)}, 0x10000, {V(t)}")
    k(f"ds_write_b32 {V(t)}, {V(c)}")
    k(f"v_xor_b32 {V(t)}, 256, {V(t)}")
    k.wait(lg=0)
    k("s_barrier")
    k(f"ds_read_b32 {V(u_)}, {V(t)}")
    k(f"s_mul_i32 {S(sT0)}, {S(sT2)}, 28672")
    k(f"s_mul_i32 {S(sT1)}, {S(sNH)}, 14336")
    k(f"s_add_u32 {S(sT0)}, {S(sT0)}, {S(sT1)}")
    k(f"s_add_u32 {S(sT0)}, {S(sT0)}, {hex(W1C)}")
    k(f"v_add_f32 {V(c)}, {V(c)}, {V(u_)}")
    k(f"v_mul_f32 {V(c)}, {f2u(-1.0/448)}, {V(c)}")
    for i in range(56):
        tt = z + 4 + 2 * (i & 1)
        k(f"v_lshlrev_b32 {V(tt)}, 16, {V(F+i)}")
        k(f"v_and_b32 {V(tt+1)}, {S(sHIM)}, {V(F+i)}")
        pk("add", V(tt, 2), V(tt, 2), V(c, 2), bc=(1,))
        k(f"v_cvt_pk_bf16_f32 {V(F+i)}, {V(tt)}, {V(tt+1)}")
        if i % 4 == 3:
            ks = i // 4
            k(f"buffer_store_dwordx4 {V(F+4*ks,4)}, {V(vL16)}, {S(SRD_WS,4)}, {S(sT0)} offen offset:{1024*(ks%4)} sc1")
            if ks % 4 == 3:
                k(f"s_add_u32 {S(sT0)}, {S(sT0)}, 4096")
    k(f"v_mov_b32 {V(z)}, 0")
    k.wait(vm=0)
    k("s_barrier")
    k(f"s_cmp_lg_u32 {S(sW)}, 0")
    branch("s_cbranch_scc1", "L_end2")
    k("s_mov_b64 exec, 1")
    k(f"buffer_store_dword {V(vONE)}, {V(z)}, {S(SRD_WS,4)}, {S(sT5)} offen sc1")
    if DIAG:
        k("s_mov_b64 exec, -1")
        LAY[0] = 0
        stamp(1)
        k(f"s_lshl_b32 {S(sT0)}, {S(sWG)}, 10")
        k(f"s_add_u32 {S(sT0)}, {S(sT0)}, {hex(STAMP)}")
        k(f"v_lshlrev_b32 {V(WK)}, 2, {V(vTID)}")
        k(f"buffer_store_dword {V(vSTAMP)}, {V(WK)}, {S(SRD_WS,4)}, {S(sT0)} offen")
    k.label("L_end2")
    k("s_endpgm")

KW = W1R
PRM = KW
TBL = KW + 8
GA = KW + 20
TA = GA + 17
vKW, vKR, vKC, vDSK = KW + 42, KW + 43, KW + 44, KW + 45

def table_words():
    import numpy as np
    def bf16r(m):
        u = struct.unpack("<I", struct.pack("<f", float(m)))[0]
        return (u + 0x7FFF + ((u >> 16) & 1)) >> 16
    pad = lambda q: q + 2 * (q >> 4)
    rows = []
    for lam in range(128):
        e = []
        for i in range(17):
            m = 2048 - 16 * lam - i
            e.append(pad(min(m, max(bf16r(m), 0x4300) - 0x4280)))
        l = lam & 63
        j, g = l & 15, l >> 4
        base, mul, pst = ((0, 8, 2), (4, 8, 2), (256, 4, 2), (384, 2, 64))[g]
        for yt in range(2):
            for pi in range(2):
                e.append(pad(base + mul * (16 * yt + j) + pi * pst))
        e.append(576 + 144 * g + j)
        e += [0, 0]
        rows.append([e[2 * i] | (e[2 * i + 1] << 16) for i in range(12)])
    out = []
    for qd in range(3):
        for lam in range(128):
            out.append(rows[lam][4 * qd:4 * qd + 4])
    return out

def addr_conv():
    t0, t1, t2, t3 = KW + 100, KW + 101, KW + 102, KW + 103
    r16, g4, cc = KW + 104, KW + 105, KW + 106
    o = []
    e = o.append
    e(f"v_and_b32 {V(r16)}, 15, {V(vL)}")
    e(f"v_lshrrev_b32 {V(g4)}, 4, {V(vL)}")
    e(f"v_and_b32 {V(cc)}, 3, {V(vL)}")
    e(f"s_mul_i32 {S(sSCR)}, {S(sW)}, {SCR_ST}")
    e(f"s_add_u32 {S(sSCR)}, {S(sSCR)}, {SCR}")
    e(f"s_mul_i32 {S(sSCH)}, {S(sCH)}, {2*SCR_ST}")
    e(f"s_add_u32 {S(sSCH)}, {S(sSCH)}, {SCR}")
    e(f"v_lshl_add_u32 {V(vKW)}, {V(vL)}, 3, {S(sSCR)}")
    e(f"v_mul_u32_u24 {V(vKR)}, {ROW_ST}, {V(r16)}")
    e(f"v_lshl_add_u32 {V(vKR)}, {V(g4)}, 4, {V(vKR)}")
    e(f"v_add_u32 {V(vKR)}, {S(sSCR)}, {V(vKR)}")
    e(f"v_and_b32 {V(t0)}, 127, {V(vTID)}")
    e(f"s_add_u32 {S(sT2)}, {S(sSCH)}, 4096")
    e(f"v_lshl_add_u32 {V(vKC)}, {V(t0)}, 5, {S(sT2)}")
    e(f"v_lshrrev_b32 {V(t0)}, 5, {V(vL)}")
    e(f"v_bfe_u32 {V(t1)}, {V(vL)}, 2, 2")
    e(f"v_lshlrev_b32 {V(t3)}, 9, {V(t0)}")
    e(f"v_lshl_add_u32 {V(t3)}, {V(t1)}, 7, {V(t3)}")
    e(f"v_bfe_u32 {V(t1)}, {V(vL)}, 3, 1")
    e(f"v_lshl_add_u32 {V(t3)}, {V(t1)}, 6, {V(t3)}")
    e(f"v_bfe_u32 {V(t1)}, {V(vL)}, 4, 1")
    e(f"v_lshl_add_u32 {V(t3)}, {V(t1)}, 5, {V(t3)}")
    e(f"v_lshl_add_u32 {V(t3)}, {V(cc)}, 3, {V(t3)}")
    e(f"s_mul_i32 {S(sT2)}, {S(sW)}, {WREG}")
    e(f"v_add_u32 {V(vW2R)}, {S(sT2)}, {V(t3)}")
    e(f"v_xor_b32 {V(vW2R+1)}, 64, {V(vW2R)}")
    e(f"v_lshrrev_b32 {V(t0)}, 2, {V(vTID)}")
    e(f"v_lshlrev_b32 {V(t1)}, 4, {V(cc)}")
    e(f"v_lshl_add_u32 {V(vCIN)}, {V(t0)}, 9, {V(t1)}")
    e(f"v_lshl_add_u32 {V(vCX)}, {V(t0)}, 8, {V(t1)}")
    e(f"v_lshrrev_b32 {V(t0)}, 3, {V(vTID)}")
    e(f"v_bfe_u32 {V(t1)}, {V(vL)}, 2, 1")
    e(f"v_lshlrev_b32 {V(t2)}, 7, {V(t0)}")
    e(f"v_lshl_add_u32 {V(t2)}, {V(cc)}, 5, {V(t2)}")
    e(f"v_lshl_add_u32 {V(t2)}, {V(t1)}, 4, {V(t2)}")
    e(f"v_add_u32 {V(vUW)}, {UARR+480}, {V(t2)}")
    e(f"s_mul_i32 {S(sT2)}, {S(sCH)}, {SCR_ST-2048}")
    e(f"s_add_u32 {S(sT2)}, {S(sT2)}, {SCR}")
    e(f"v_add_u32 {V(vXW)}, {S(sT2)}, {V(t2)}")
    e(f"v_and_b32 {V(t0)}, 1, {V(vL)}")
    e(f"v_xor_b32 {V(t0)}, 1, {V(t0)}")
    e(f"v_mul_u32_u24 {V(t1)}, {SCR_ST+64+2}, {V(t0)}")
    e(f"v_lshlrev_b32 {V(t2)}, 1, {V(r16)}")
    e(f"v_sub_u32 {V(t1)}, {V(t1)}, {V(t2)}")
    e(f"v_lshl_add_u32 {V(t1)}, {V(g4)}, 4, {V(t1)}")
    e(f"s_lshl_b32 {S(sT3)}, {S(sNH)}, 8")
    e(f"s_sub_u32 {S(sT2)}, {S(sSCH)}, {S(sT3)}")
    e(f"s_add_u32 {S(sT2)}, {S(sT2)}, {4096 + 2*2031 - 512 - 192}")
    e(f"v_add_u32 {V(vKF)}, {S(sT2)}, {V(t1)}")
    for a in range(1, 4):
        e(f"v_subrev_u32 {V(vKF+a)}, {1024*a}, {V(vKF)}")
    e(f"v_lshlrev_b32 {V(t1)}, 5, {V(r16)}")
    e(f"v_lshl_add_u32 {V(t1)}, {V(g4)}, 4, {V(t1)}")
    e(f"s_mul_i32 {S(sT2)}, {S(sCH)}, {U_ST}")
    e(f"s_sub_u32 {S(sT2)}, {S(sT2)}, {S(sT3)}")
    e(f"s_add_u32 {S(sT2)}, {S(sT2)}, {UARR + 480 - 32 - 192}")
    e(f"v_add_u32 {V(vUF)}, {S(sT2)}, {V(t1)}")
    e(f"v_mov_b32 {V(vXR)}, {V(vKW)}")
    e(f"v_add_u32 {V(vEXW)}, {S(sSCR)}, {V(vL16)}")
    e(f"s_xor_b32 {S(sT2)}, {S(sW)}, 1")
    e(f"s_mul_i32 {S(sT2)}, {S(sT2)}, {SCR_ST}")
    e(f"s_add_u32 {S(sT2)}, {S(sT2)}, {SCR}")
    e(f"v_add_u32 {V(vEXR)}, {S(sT2)}, {V(vL16)}")
    e(f"v_lshrrev_b32 {V(t0)}, 3, {V(vL)}")
    e(f"v_mul_u32_u24 {V(vCO)}, 57344, {V(t0)}")
    e(f"v_and_b32 {V(t0)}, 7, {V(vL)}")
    e(f"s_and_b32 {S(sT2)}, {S(sCP)}, 1")
    e(f"s_lshl_b32 {S(sT3)}, {S(sT2)}, 2")
    e(f"v_xor_b32 {V(t0)}, {S(sT3)}, {V(t0)}")
    e(f"v_lshl_add_u32 {V(vCO)}, {V(t0)}, 4, {V(vCO)}")
    e(f"s_lshl_b32 {S(sT2)}, {S(sT2)}, 3")
    e(f"s_lshr_b32 {S(sXQi)}, {S(sCP)}, 1")
    e(f"s_lshl_b32 {S(sXQi)}, {S(sXQi)}, 14")
    e(f"s_add_u32 {S(sXQi)}, {S(sXQi)}, {S(sT2)}")
    e(f"s_add_u32 {S(sXQi)}, {S(sXQi)}, {hex(XQ)}")
    e(f"s_lshl_b32 {S(sT2)}, {S(sCP)}, 1")
    e(f"s_add_u32 {S(sT2)}, {S(sT2)}, {S(sCH)}")
    e(f"s_lshl_b32 {S(sT2)}, {S(sT2)}, 7")
    e(f"s_mul_i32 {S(sT3)}, {S(sNH)}, {8*114688}")
    e(f"s_add_u32 {S(sT2)}, {S(sT2)}, {S(sT3)}")
    e(f"v_add_u32 {V(vCO)}, {S(sT2)}, {V(vCO)}")
    e(f"v_lshlrev_b32 {V(vFP)}, 4, {V(vTID)}")
    e(f"s_mov_b32 {S(sPERM0)}, 0x05040100")
    e(f"s_mov_b32 {S(sPERM1)}, 0x07060302")
    e(f"s_lshl_b32 {S(sT2)}, {S(sJ)}, 2")
    e(f"s_add_u32 {S(sT2)}, {S(sT2)}, {S(sW)}")
    e(f"s_mul_i32 {S(sWL)}, {S(sT2)}, 28672")
    e(f"s_add_u32 {S(sWL)}, {S(sWL)}, {hex(W1C)}")
    e(f"s_lshr_b32 {S(sT2)}, {S(sT2)}, 1")
    e(f"s_lshl_b32 {S(sT2)}, {S(sT2)}, 7")
    e(f"s_add_u32 {S(sT2)}, {S(sT2)}, {hex(FLG_W)}")
    e(f"v_mov_b32 {V(vWF+1)}, {S(sT2)}")
    z = KW + 108
    for i in range(4):
        e(f"v_mov_b32 {V(z+i)}, 0")
    e(f"v_min_u32 {V(t0)}, 29, {V(vL)}")
    e(f"v_lshlrev_b32 {V(t0)}, 4, {V(t0)}")
    e(f"v_add_u32 {V(t0)}, {UARR}, {V(t0)}")
    e(f"ds_write_b128 {V(t0)}, {V(z,4)}")
    e(f"ds_write_b128 {V(t0)}, {V(z,4)} offset:{U_ST}")
    return o

def addr_ffn():
    t0, t1, t2, t3 = WK + 8, WK + 9, WK + 10, WK + 11
    g4, rho, cc = WK + 12, WK + 13, WK + 14
    o = []
    e = o.append
    e(f"v_lshrrev_b32 {V(g4)}, 4, {V(vL)}")
    e(f"v_bfe_u32 {V(rho)}, {V(vL)}, 2, 2")
    e(f"v_and_b32 {V(cc)}, 3, {V(vL)}")
    e(f"v_lshrrev_b32 {V(t0)}, 5, {V(vL)}")
    e(f"v_bfe_u32 {V(t1)}, {V(vL)}, 4, 1")
    e(f"v_bfe_u32 {V(t2)}, {V(vL)}, 3, 1")
    e(f"v_lshlrev_b32 {V(t3)}, 7, {V(rho)}")
    e(f"v_lshl_add_u32 {V(t3)}, {V(t2)}, 6, {V(t3)}")
    e(f"v_lshl_add_u32 {V(vXA0)}, {V(t0)}, 10, {V(t3)}")
    e(f"v_lshl_add_u32 {V(vXA0)}, {V(cc)}, 4, {V(vXA0)}")
    e(f"v_lshl_add_u32 {V(vXA0)}, {V(t1)}, 3, {V(vXA0)}")
    e(f"v_xor_b32 {V(vXA1)}, 64, {V(vXA0)}")
    e(f"v_and_b32 {V(t0)}, 15, {V(vL)}")
    e(f"v_lshlrev_b32 {V(t0)}, 7, {V(t0)}")
    e(f"s_mov_b32 {S(sT2)}, 114688")
    e(f"v_mad_u32_u24 {V(vPFH)}, {V(t1)}, {S(sT2)}, {V(t0)}")
    e(f"s_lshl_b32 {S(sT2)}, {S(sJ)}, 2")
    e(f"s_add_u32 {S(sT2)}, {S(sT2)}, {S(sW)}")
    e(f"s_lshl_b32 {S(sT2)}, {S(sT2)}, 11")
    e(f"v_add_u32 {V(vPFX)}, {S(sT2)}, {V(t0)}")
    e(f"s_lshl_b32 {S(sT2)}, {S(sHH)}, 6")
    e(f"v_xor_b32 {V(t3)}, {S(sT2)}, {V(t3)}")
    e(f"s_lshl_b32 {S(sT2)}, {S(sNH)}, 5")
    e(f"s_lshl_b32 {S(sT3)}, {S(sCH)}, 3")
    e(f"s_add_u32 {S(sT2)}, {S(sT2)}, {S(sT3)}")
    e(f"v_add_u32 {V(t3)}, {S(sT2)}, {V(t3)}")
    e(f"v_and_b32 {V(t0)}, 1, {V(vL)}")
    e(f"v_lshl_add_u32 {V(t3)}, {V(t0)}, 4, {V(t3)}")
    e(f"v_bfe_u32 {V(t0)}, {V(vL)}, 1, 1")
    e(f"v_mul_u32_u24 {V(vST)}, {XHALF}, {V(t0)}")
    e(f"v_lshl_add_u32 {V(vST)}, {V(g4)}, 10, {V(vST)}")
    e(f"v_add_u32 {V(vST)}, {V(vST)}, {V(t3)}")
    e(f"v_lshl_add_u32 {V(t0)}, {V(g4)}, 1, {V(t0)}")
    e(f"v_lshl_add_u32 {V(vRES)}, {V(t0)}, 10, {V(t3)}")
    e(f"s_lshl_b32 {S(sT2)}, {S(sDS)}, 13")
    e(f"v_add_u32 {V(vRES)}, {S(sT2)}, {V(vRES)}")
    e(f"s_mul_i32 {S(sT2)}, {S(sW)}, {RED_W}")
    e(f"v_add_u32 {V(vRW)}, {S(sT2)}, {V(vL16)}")
    e(f"v_lshrrev_b32 {V(t0)}, 3, {V(vL)}")
    e(f"v_and_b32 {V(t1)}, 7, {V(vL)}")
    e(f"v_mul_u32_u24 {V(vRR)}, {RED_G}, {V(t0)}")
    e(f"v_lshl_add_u32 {V(vRR)}, {V(t1)}, 4, {V(vRR)}")
    e(f"s_lshl_b32 {S(sT2)}, {S(sW)}, 7")
    e(f"v_add_u32 {V(vRR)}, {S(sT2)}, {V(vRR)}")
    e(f"s_lshr_b32 {S(sT2)}, {S(sGAM)}, 2")
    e(f"s_lshl_b32 {S(sT2)}, {S(sT2)}, 3")
    e(f"s_and_b32 {S(sT3)}, {S(sGAM)}, 3")
    e(f"s_add_u32 {S(sT2)}, {S(sT2)}, {S(sT3)}")
    e(f"s_lshl_b32 {S(sT3)}, {S(sCH)}, 2")
    e(f"s_add_u32 {S(sT2)}, {S(sT2)}, {S(sT3)}")
    e(f"s_lshl_b32 {S(sT2)}, {S(sT2)}, 6")
    e(f"s_lshl_b32 {S(sT3)}, {S(sHH)}, 1")
    e(f"s_add_u32 {S(sT3)}, {S(sT3)}, {S(sNH)}")
    e(f"s_lshl_b32 {S(sT4)}, {S(sT3)}, 3")
    e(f"s_add_u32 {S(sT4)}, {S(sT4)}, {S(sT2)}")
    e(f"v_add_lshl_u32 {V(t2)}, {V(t1)}, {S(sT4)}, 4")
    e(f"v_lshrrev_b32 {V(t3)}, 5, {V(vL)}")
    e(f"v_lshl_add_u32 {V(vAT)}, {V(t3)}, 3, {V(t2)}")
    e(f"v_lshrrev_b32 {V(t3)}, 2, {V(vL)}")
    e(f"v_lshlrev_b32 {V(t2)}, 4, {V(cc)}")
    e(f"v_lshl_add_u32 {V(vOQ)}, {V(t3)}, 14, {V(t2)}")
    e(f"s_lshl_b32 {S(sT4)}, {S(sT4)}, 3")
    e(f"s_lshl_b32 {S(sT5)}, {S(sDS)}, 18")
    e(f"s_add_u32 {S(sT4)}, {S(sT4)}, {S(sT5)}")
    e(f"v_add_u32 {V(vOQ)}, {S(sT4)}, {V(vOQ)}")
    e(f"s_lshl_b32 {S(sT3)}, {S(sT3)}, 1")
    e(f"s_add_u32 {S(sT2)}, {S(sT2)}, {S(sT3)}")
    e(f"v_bfe_u32 {V(t3)}, {V(vL)}, 2, 1")
    e(f"v_add3_u32 {V(t2)}, {V(t2)}, {V(t3)}, {S(sT2)}")
    e(f"v_mul_u32_u24 {V(vOO)}, 896, {V(t2)}")
    e(f"v_lshl_add_u32 {V(vOO)}, {V(t0)}, 4, {V(vOO)}")
    e(f"s_lshl_b32 {S(sT2)}, {S(sDS)}, 7")
    e(f"v_add_u32 {V(vOO)}, {S(sT2)}, {V(vOO)}")
    e(f"v_min_u32 {V(t0)}, 13, {V(vL)}")
    e(f"s_mul_i32 {S(sT2)}, {S(sW)}, 14")
    e(f"v_add_lshl_u32 {V(vF2P)}, {V(t0)}, {S(sT2)}, 4")
    e(f"v_max_u32 {V(vFP)}, 512, {V(vFP)}")
    e(f"s_mul_i32 {S(sXT)}, {S(sGAM)}, 114688")
    e(f"s_add_u32 {S(sXT)}, {S(sXT)}, {hex(X1T)}")
    e(f"s_mul_i32 {S(sT2)}, {S(sGAM)}, {4*112*1024}")
    e(f"s_add_u32 {S(sT2)}, {S(sT2)}, {hex(HB)}")
    e(f"s_lshl_b32 {S(sT3)}, {S(sJ)}, 13")
    e(f"s_add_u32 {S(sHS)}, {S(sT2)}, {S(sT3)}")
    e(f"s_lshl_b32 {S(sT3)}, {S(sW)}, 11")
    e(f"s_add_u32 {S(sHS)}, {S(sHS)}, {S(sT3)}")
    e(f"s_mul_i32 {S(sT3)}, {S(sHH)}, {112*1024}")
    e(f"s_add_u32 {S(sHL)}, {S(sT2)}, {S(sT3)}")
    e(f"s_mul_i32 {S(sT3)}, {S(sW)}, {28*1024}")
    e(f"s_add_u32 {S(sHL)}, {S(sHL)}, {S(sT3)}")
    for a in range(4):
        e(f"s_add_u32 {S(sHG+a)}, {S(sHG+a)}, {S(sHL)}")
    e(f"s_lshl_b32 {S(sFG)}, {S(sGAM)}, 11")
    e(f"s_add_u32 {S(sFG)}, {S(sFG)}, {hex(FLG_G)}")
    e(f"s_mov_b32 {S(SRD_OUT)}, s52")
    e(f"s_and_b32 {S(SRD_OUT+1)}, s53, 0xffff")
    e(f"s_mov_b32 {S(SRD_OUT+2)}, {hex(2048*896)}")
    e(f"s_mov_b32 {S(SRD_OUT+3)}, 0x20000")
    return o

def pk(op, d, a, b, c=None, bc=(), neg=(), emit=True):
    ops = [a, b] + ([c] if c is not None else [])
    n = len(ops)
    txt = f"v_pk_{op}_f32 {d}, " + ", ".join(ops)
    if bc:
        txt += " op_sel_hi:[" + ",".join("0" if i in bc else "1" for i in range(n)) + "]"
    if neg:
        m = "[" + ",".join("1" if i in neg else "0" for i in range(n)) + "]"
        txt += f" neg_lo:{m} neg_hi:{m}"
    if emit:
        k(txt)
    return txt

def cmul(d, a, b, t):
    assert d != a
    pk("mul", V(t, 2), V(a, 2), V(b, 2))
    pk("mul", V(t + 2, 2), V(a, 2), V(b + 2, 2))
    pk("fma", V(d, 2), V(a + 2, 2), V(b + 2, 2), V(t, 2), neg=(0,))
    pk("fma", V(d + 2, 2), V(a + 2, 2), V(b, 2), V(t + 2, 2))

NINIT = opt("ninit", 8)
def main_start():
    k.c("=== main workgroups")
    for i in range(6):
        k(f"global_load_dword {V(PRM+i)}, {V(PRM+6)}, {S(30+2*i,2)}")
    k(f"s_lshl_b32 {S(sT0)}, {S(sCP)}, 2")
    k(f"s_load_dword {S(sLDT)}, s[42:43], {S(sT0)}")
    k(f"s_load_dword {S(sDSK)}, s[44:45], {S(sT0)}")
    k.lg = []
    srd(SRD_W2, 50, 1792 * 896)
    t0, t1 = KW + 100, KW + 101
    k(f"v_and_b32 {V(t0)}, 127, {V(vTID)}")
    k(f"v_lshlrev_b32 {V(t0)}, 4, {V(t0)}")
    k(f"v_add_u32 {V(t0)}, L_table-L_pc, {V(t0)}")
    for q in range(2):
        k(f"global_load_dwordx4 {V(TBL+4*q,4)}, {V(t0)}, {S(sPC,2)} offset:{2048*q}")
    k(f"v_add_u32 {V(t0)}, 4096, {V(t0)}")
    k(f"global_load_dwordx4 {V(TBL+8,4)}, {V(t0)}, {S(sPC,2)}")
    k(f"v_lshrrev_b32 {V(t0)}, 3, {V(vL)}")
    k(f"v_mul_u32_u24 {V(vW2S)}, 896, {V(t0)}")
    k(f"v_and_b32 {V(t0)}, 7, {V(vL)}")
    k(f"v_bfe_u32 {V(t1)}, {V(vL)}, 4, 1")
    k(f"v_lshlrev_b32 {V(t1)}, 2, {V(t1)}")
    k(f"v_xor_b32 {V(t0)}, {V(t0)}, {V(t1)}")
    k(f"v_lshl_add_u32 {V(vW2S)}, {V(t0)}, 4, {V(vW2S)}")
    k(f"s_mul_i32 {S(sW2B)}, {S(sW)}, {448*896}")
    k(f"s_lshl_b32 {S(sT2)}, {S(sDS)}, 7")
    k(f"s_add_u32 {S(sW2B)}, {S(sW2B)}, {S(sT2)}")
    for a in range(4):
        k(f"s_add_u32 {S(sT2)}, {S(sROT)}, {a}")
        k(f"s_and_b32 {S(sT2)}, {S(sT2)}, 3")
        k(f"s_mul_i32 {S(sHG+a)}, {S(sT2)}, 7168")
    ac = addr_conv()
    for i in range(NINIT):
        w2_dma()
        run(ac, len(ac) // (NINIT - i))
    run(ac)
    stamp(24)
    k.wait(vm=NINIT + 3)
    stamp(25)
    skip = newlab("p0")
    k(f"s_cmp_lg_u32 {S(sW)}, 0")
    saved = list(k.vm)
    branch("s_cbranch_scc1", skip)
    p0x_body()
    label(skip)
    k.vm = saved
    stamp(1)

def conv_loads(layer):
    XD, SD = WK, WK + 8
    k(f"s_mov_b32 {S(sT0)}, {hex(STATS[layer])}")
    if layer:
        k(f"s_add_u32 {S(sXQi)}, {S(sXQi)}, {hex(XQ_SZ)}")
    for j2 in range(4):
        for j in (2 * j2, 2 * j2 + 1):
            k(f"buffer_load_dwordx4 {V(SD+4*j,4)}, {V(vCIN)}, {S(SRD_WS,4)}, {S(sT0)} offen offset:{64*j} sc1")
        k(f"buffer_load_dwordx2 {V(XD+2*j2,2)}, {V(vCX)}, {S(SRD_WS,4)}, {S(sXQi)} offen offset:{64*j2} sc1")

def kgen():
    k.c("=== K generation")
    B0 = KW + 46
    U = B0
    DT = B0 + 12
    W1_, W8_, W256 = B0 + 14, B0 + 18, B0 + 22
    T = B0 + 26
    P = [B0 + 30 + 4 * i for i in range(5)]
    CV = B0 + 50
    ACC = WK + 64
    FX0, FX1, FY = 112, 144, 176
    NP0 = opt("np0", 42)
    n0 = ND[0]
    for i in range(6):
        k(f"v_lshlrev_b32 {V(U+2*i)}, 16, {V(PRM+i)}")
        k(f"v_and_b32 {V(U+2*i+1)}, {S(sHIM)}, {V(PRM+i)}")
    k.wait(lg=0)
    k(f"s_lshl_b32 {S(sT0)}, {S(sCH)}, 4")
    k(f"s_lshr_b32 {S(sLDT)}, {S(sLDT)}, {S(sT0)}")
    k(f"s_lshl_b32 {S(sLDT)}, {S(sLDT)}, 16")
    k(f"s_lshr_b32 {S(sDSK)}, {S(sDSK)}, {S(sT0)}")
    k(f"s_lshl_b32 {S(sDSK)}, {S(sDSK)}, 16")
    k(f"v_mov_b32 {V(DT)}, {f2u(1.4426950408889634)}")
    k(f"v_mul_f32 {V(DT)}, {S(sLDT)}, {V(DT)}")
    k(f"v_exp_f32 {V(DT)}, {V(DT)}")
    k(f"s_cmp_eq_u32 {S(sNH)}, 0")
    k(f"s_cselect_b32 {S(sDSK)}, {S(sDSK)}, 0")
    k(f"v_cvt_pk_bf16_f32 {V(DT)}, {V(DT)}, {V(DT)}")
    k(f"v_mov_b32 {V(vDSK)}, 0")
    k(f"v_lshlrev_b32 {V(DT)}, 16, {V(DT)}")
    k(f"v_writelane_b32 {V(vDSK)}, {S(sDSK)}, 0")
    w2_dma()
    for i in range(4):
        pk("mul", V(U + 2 * i, 2), V(U + 2 * i, 2), V(DT, 2), bc=(1,))
    k(f"s_mov_b32 {S(sC0)}, {f2u(1.4426950408889634)}")
    pk("mul", V(U, 2), V(U, 2), S(sC0, 2), bc=(1,))
    k(f"s_mov_b32 {S(sC0)}, {f2u(0.15915494309189535)}")
    pk("mul", V(U + 2, 2), V(U + 2, 2), S(sC0, 2), bc=(1,))
    cmul(P[0], U + 8, U + 4, T)
    for (Wd, sc) in ((W1_, 1.0), (W256, 256.0), (W8_, 8.0)):
        ea, an = U + 4, U + 6
        if sc == 1.0:
            sa, sb = U, U + 2
        else:
            k(f"s_mov_b32 {S(sC0)}, {f2u(sc)}")
            pk("mul", V(ea, 2), V(U, 2), S(sC0, 2), bc=(1,))
            pk("mul", V(an, 2), V(U + 2, 2), S(sC0, 2), bc=(1,))
            sa, sb = ea, an
        for h in range(2):
            k(f"v_fract_f32 {V(an+h)}, {V(sb+h)}")
        for h in range(2):
            k(f"v_exp_f32 {V(ea+h)}, {V(sa+h)}")
        for h in range(2):
            k(f"v_cos_f32 {V(Wd+h)}, {V(an+h)}")
        for h in range(2):
            k(f"v_sin_f32 {V(Wd+2+h)}, {V(an+h)}")
        w2_dma()
        pk("mul", V(Wd, 2), V(Wd, 2), V(ea, 2))
        pk("mul", V(Wd + 2, 2), V(Wd + 2, 2), V(ea, 2))
    cvi = [0]
    ent = [0]
    freed = [28]
    side = []
    nrem = NP0 - ND[0]
    base = ND[0]
    def put(src, row, negim, ns=0):
        c = CV + 2 * (cvi[0] & 1)
        cvi[0] += 1
        n = "-" if negim else ""
        k(f"v_cvt_pk_bf16_f32 {V(c)}, {V(src)}, {V(src+1)}")
        k(f"v_cvt_pk_bf16_f32 {V(c+1)}, {n}{V(src+2)}, {n}{V(src+3)}")
        k(f"ds_write_b64 {V(vKW)}, {V(c,2)} offset:{row*ROW_ST}")
        ent[0] += 1
        if ND[0] < base + nrem * ent[0] // 52 and ND[0] < freed[0]:
            w2_dma()
        run(side, ns)
    def frags(b):
        for st in range(8):
            k(f"ds_read_b128 {A(b+4*st,4)}, {V(vKR)} offset:{64*st}")
    cur = 0
    for a in range(8):
        put(P[cur], a, True)
        if a % 2 == 0:
            dst = {0: 3, 4: 4}.get(a, 2)
            cmul(P[dst], P[cur], W256, T)
            put(P[dst], 8 + a // 2, True)
        if a < 7:
            cmul(P[1 - cur], P[cur], W1_, T)
            cur = 1 - cur
    cmul(P[0], P[3], W256, T); put(P[0], 12, True)
    cmul(P[1], P[4], W256, T); put(P[1], 13, True)
    cmul(P[3], P[0], W256, T); put(P[3], 14, True)
    cmul(P[4], P[1], W256, T); put(P[4], 15, True)
    frags(FX0)
    def flag0():
        skip = newlab("nf")
        k(f"s_cmp_lg_u32 {S(sW)}, 0")
        saved = list(k.vm)
        k.skip_begin("s_cbranch_scc1", skip)
        k.wait(vm=ND[0] - n0)
        p0x_flag()
        k.skip_end(skip)
        k.vm = saved
        stamp(2)
    if opt("flag0", 0) == 0:
        flag0()
    src, dst = 3, 0
    for row in range(5):
        cmul(P[dst], P[src], W256, T)
        put(P[dst], row, True)
        src, dst = dst, (1 - dst if dst in (0, 1) else 0)
    frags(FX1)
    if opt("flag0", 0) == 1:
        flag0()
    k.wait_tag_vm(("w2", 13))
    side += w2_tr_ops(0, 7)
    k(f"v_mov_b32 {V(CV)}, {S(sONES)}")
    k(f"v_mov_b32 {V(CV+1)}, 0")
    k(f"ds_write_b64 {V(vKW)}, {V(CV,2)}")
    cvi[0] = 1
    put(W8_, 1, False, 4)
    cmul(P[0], W8_, W8_, T)
    cur = 0
    for j in range(2, 16):
        if j == 11:
            assert not side
            k.wait(lg=2)
            freed[0] = 42
        put(P[cur], j, False, 4)
        cmul(P[1 - cur], P[cur], W8_, T)
        cur = 1 - cur
    frags(FY)
    stamp(3)
    mf = [(st, x) for st in range(8) for x in range(2)]
    def mfma(yt, st, x):
        d = V(ACC + 8 * yt + 4 * x, 4)
        return f"v_mfma_f32_16x16x32_bf16 {d}, {A((FX0,FX1)[x]+4*st,4)}, {A(FY+4*st,4)}, {d if st else 0}"
    side += [None] * 4 + [mfma(0, st, x) for (st, x) in mf]
    vPL = WK + 80
    for j in range(16):
        put(P[cur], j, False, 2)
        if j == opt("poll0", 9):
            poll_load(vPL, vFP, S(sREP))
        if j < 15:
            cmul(P[1 - cur], P[cur], W8_, T)
            cur = 1 - cur
    assert not side
    frags(FY)
    while ND[0] < NP0:
        w2_dma()
    for i in range(22):
        n = (i + 17) % 22
        sel = " op_sel:[1,0,0,0]" if n & 1 else ""
        side.append(f"v_mad_u32_u16 {V(GA+n)}, {V(TBL+n//2)}, 4, {S(sSCH if n < 17 else sSCR)}{sel}")
    side.insert(5, f"v_add_f32 {V(ACC)}, {V(ACC)}, {V(vDSK)}")
    def tables(yt):
        o = [f"ds_write_b64 {V(TA+2*yt+pi)}, {V(ACC+8*yt+2*pi,2)}" for pi in range(2)]
        o += [f"ds_write_b32 {V(TA+4)}, {V(ACC+8*yt+4+i)} offset:{4*(36*i+18*yt)}" for i in range(4)]
        return o
    side[6:6] = tables(0)
    run(side, 12)
    for (st, x) in mf:
        k(mfma(1, st, x))
        run(side, 1)
    run(side)
    poll_check(vPL, vFP, S(sREP))
    run(tables(1))
    k.wait(lg=0)
    k("s_barrier")
    stamp(4)
    GV = B0
    for e in range(17):
        k(f"ds_read2st64_b32 {V(GV+2*e,2)}, {V(GA+e)} offset0:0 offset1:{SCR_ST//256}")
    conv_loads(0)
    poll_load(vWF, vWF + 1, 0)
    for e in range(17):
        k(f"v_add_f32 {V(GV+2*e)}, {V(GV+2*e)}, {V(GV+2*e+1)}")
    O = B0 + 34
    for c in range(2):
        for kk in range(8):
            e = 2 * kk + 1 - c
            k(f"v_cvt_pk_bf16_f32 {V(O+8*c+kk)}, {V(GV+2*e)}, {V(GV+2*e+2)}")
        for h in range(2):
            k(f"ds_write_b128 {V(vKC)}, {V(O+8*c+4*h,4)} offset:{c*(SCR_ST+64)+16*h}")
    skip = newlab("nt")
    k(f"s_cmp_eq_u32 {S(sNH)}, 0")
    k.skip_begin("s_cbranch_scc1", skip)
    Z = KW + 104
    for i in range(1, 4):
        k(f"v_mov_b32 {V(Z+i)}, 0")
    k(f"v_cvt_pk_bf16_f32 {V(Z)}, {V(GV+32)}, 0")
    k("s_mov_b32 exec_lo, 0")
    k("s_mov_b32 exec_hi, 0x80000000")
    k(f"ds_write_b128 {V(vKC)}, {V(Z+4,4)} offset:32")
    k(f"ds_write_b128 {V(vKC)}, {V(Z+4,4)} offset:48")
    k(f"ds_write_b128 {V(vKC)}, {V(Z,4)} offset:{SCR_ST+64+32}")
    k(f"ds_write_b128 {V(vKC)}, {V(Z+4,4)} offset:{SCR_ST+64+48}")
    k("s_mov_b64 exec, -1")
    k.skip_end(skip)
    k.wait_tag_vm(("w2", 27))
    run(w2_tr_ops(7, 14))
    k.wait(lg=0)
    k("s_barrier")
    stamp(5)

def wave0(fn):
    skip = newlab("w0")
    k(f"s_cmp_lg_u32 {S(sW)}, 0")
    saved = list(k.vm)
    k.skip_begin("s_cbranch_scc1", skip)
    fn()
    k.skip_end(skip)
    k.vm = saved

def conv(layer):
    k.c("=== conv")
    XD, SD = WK, WK + 8
    M, Q, UU = WK + 40, WK + 48, WK + 56
    O = WK + 72
    k(f"s_mov_b32 {S(sC0)}, {f2u(1.0/448)}")
    k(f"s_mov_b32 {S(sC1)}, {f2u(1e-5)}")
    for j2 in range(4):
        for j in (2 * j2, 2 * j2 + 1):
            k(f"v_cvt_f32_f64 {V(M+j)}, {V(SD+4*j,2)}")
            k(f"v_cvt_f32_f64 {V(Q+j)}, {V(SD+4*j+2,2)}")
        j = 2 * j2
        pk("mul", V(M + j, 2), V(M + j, 2), S(sC0, 2), bc=(1,))
        pk("mul", V(Q + j, 2), V(Q + j, 2), S(sC0, 2), bc=(1,))
        pk("fma", V(Q + j, 2), V(M + j, 2), V(M + j, 2), V(Q + j, 2), neg=(0,))
        for h in range(2):
            k(f"v_max_f32 {V(Q+j+h)}, 0, {V(Q+j+h)}")
            k(f"v_add_f32 {V(Q+j+h)}, {S(sC1)}, {V(Q+j+h)}")
        for h in range(2):
            k(f"v_rsq_f32 {V(Q+j+h)}, {V(Q+j+h)}")
        for h in range(2):
            k(f"v_lshlrev_b32 {V(UU+j+h)}, 16, {V(XD+j+h)}")
            k(f"v_and_b32 {V(UU+8+j+h)}, {S(sHIM)}, {V(XD+j+h)}")
        for c in range(2):
            pk("add", V(UU + 8 * c + j, 2), V(UU + 8 * c + j, 2), V(M + j, 2), neg=(1,))
            pk("mul", V(UU + 8 * c + j, 2), V(UU + 8 * c + j, 2), V(Q + j, 2))
            k(f"v_cvt_pk_bf16_f32 {V(O+4*c+j2)}, {V(UU+8*c+j)}, {V(UU+8*c+j+1)}")
            k(f"v_perm_b32 {V(O+8+4*c+j2)}, {V(XD+j+1)}, {V(XD+j)}, {S(sPERM0+c)}")
        if j2 == 0:
            stamp(7)
    for c in range(2):
        k(f"ds_write_b128 {V(vUW)}, {V(O+4*c,4)} offset:{c*U_ST}")
    for c in range(2):
        k(f"ds_write_b128 {V(vXW)}, {V(O+8+4*c,4)} offset:{c*2*SCR_ST}")
    ACC = WK
    KB = WK + 32
    XRES = WK + 96
    mf, uld, kld = [], [], []
    for s in range(4):
        for Jp in range(7, -1, -1):
            I0 = 7 - Jp
            first = len(mf)
            for I in range(0, 8 - Jp):
                mf.append((s, Jp, I))
            uld.append((first, f"ds_read_b128 {A(AX+4*Jp,4)}, {V(vUF)} offset:{512*Jp + 64*(3-s)}"))
            kb = KB + 32 * (s & 1) + 4 * I0
            o = (128 if I0 % 2 == 0 else 0) + 16 * (3 - s)
            kld.append((first, f"ds_read2_b32 {V(kb,2)}, {V(vKF+I0//2)} offset0:{o} offset1:{o+1}"))
            kld.append((first, f"ds_read2_b32 {V(kb+2,2)}, {V(vKF+I0//2)} offset0:{o+2} offset1:{o+3}"))
    NPRE = 10
    for _, t in kld[:NPRE]:
        k(t)
    kld = kld[NPRE:]
    k.wait(lg=NPRE)
    k("s_barrier")
    stamp(9)
    loads = sorted(uld + kld, key=lambda x: x[0])
    rowstart = {f for f, _ in uld}
    bg = []
    if layer == 0:
        bg = [w2_dma] * (56 - ND[0]) + [lambda: poll_check(vWF, vWF + 1, 0)] + [w1_load] * opt("w1conv", 12)
    step = max(1, 132 // max(1, len(bg)))
    li = 0
    seen = set()
    for n, (s, Jp, I) in enumerate(mf):
        cnt = 0
        while li < len(loads) and (loads[li][0] <= n + 3 or (loads[li][0] <= n + 22 and cnt < (5 if n == 0 else 1))):
            f, txt = loads[li]
            if txt.startswith("ds_read_b128") and f >= 36 and n < f - 36 + (8 - mf[f][1]):
                break
            k(txt, tag=f)
            li += 1
            cnt += 1
        if n in rowstart:
            idx = [i for i, p in enumerate(k.lg) if p[2] == n]
            if idx:
                k.wait(lg=len(k.lg) - 1 - idx[-1])
        J = Jp + I
        d = V(ACC + 4 * J, 4)
        k(f"v_mfma_f32_16x16x32_bf16 {d}, {A(AX+4*Jp,4)}, {V(KB+32*(s&1)+4*I,4)}, {d if J in seen else 0}")
        seen.add(J)
        if 122 <= n < 126:
            jl = n - 122
            k(f"ds_read_b64_tr_b16 {V(XRES+2*jl,2)}, {V(vXR)} offset:{512*jl}")
        if n >= 6 and (n - 6) % step == 0:
            run(bg, 1)
        if n >= 136:
            i = n - 136
            k(f"v_lshlrev_b32 {V(KB+16+2*i)}, 16, {V(XRES+i)}")
            k(f"v_and_b32 {V(KB+16+2*i+1)}, {S(sHIM)}, {V(XRES+i)}")
    assert li == len(loads) and not bg
    stamp(10)
    T = KB
    XU = KB + 16
    l1, lj = newlab("x1"), newlab("xj")
    k(f"s_cmp_eq_u32 {S(sNH)}, 1")
    h0 = list(k.hist)
    k(f"s_cbranch_scc1 {l1}")
    for hf in range(2):
        if hf:
            k.label(l1)
            k.hist = h0
        for jl in range(4):
            k(f"ds_write_b128 {V(vEXW)}, {V(ACC+16*(1-hf)+4*jl,4)} offset:{1024*jl}")
        for i in range(8):
            pk("add", V(XU + 2 * i, 2), V(XU + 2 * i, 2), V(ACC + 16 * hf + 2 * i, 2))
        if not hf:
            k(f"s_branch {lj}")
    k.label(lj)
    k.wait(lg=0)
    k("s_barrier")
    for jl in range(4):
        k(f"ds_read_b128 {V(T+4*jl,4)}, {V(vEXR)} offset:{1024*jl}")
    k(f"s_mov_b32 {S(sT0)}, {hex(X1T + layer*XQ_SZ)}")
    k(f"s_mov_b32 {S(sT1)}, {hex(X1T + layer*XQ_SZ + 4*114688)}")
    for p in range(2):
        for i in range(4):
            pk("add", V(XU + 8 * p + 2 * i, 2), V(XU + 8 * p + 2 * i, 2), V(T + 8 * p + 2 * i, 2))
        for i in range(4):
            k(f"v_cvt_pk_bf16_f32 {V(ACC+4*p+i)}, {V(XU+8*p+2*i)}, {V(XU+8*p+2*i+1)}")
        k(f"buffer_store_dwordx4 {V(ACC+4*p,4)}, {V(vCO)}, {S(SRD_WS,4)}, {S(sT0+p)} offen sc1", tag="st")
    stamp(11)

def handoff(off, a=None, b=None, sb=12):
    if a:
        a()
    k.wait_tag_vm("st")
    k.wait(lg=0)
    k("s_barrier")
    wave0(lambda: flag_all(off))
    stamp(sb)
    if b:
        b()
    else:
        k.wait(vm=0)
        k("s_barrier")
    stamp(sb + 1)
    k(f"s_add_u32 {S(sT0)}, {S(sREP)}, {hex(off)}")
    poll_load(WK, vFP, S(sT0))
    poll_check(WK, vFP, S(sT0))
    k("s_barrier")
    stamp(sb + 2)

def handoff1(layer):
    if layer == 0:
        def a():
            n = (28 - NW1[0]) // 2
            k.wait_tag_vm(("w2", 55))
            tr = w2_tr_ops(14, 28)
            for i in range(n):
                w1_load()
                run(tr, len(tr) // (n - i))
            run(tr)
        def b():
            af = addr_ffn()
            n = 28 - NW1[0]
            for i in range(n):
                w1_load()
                run(af, len(af) // (n - i))
            run(af)
        handoff(0x8000, a, b)
    else:
        handoff(0x18000)

G2RES = WK + 100
G2R = WK + 108
vFL = WK + 97
vPL2 = WK + 96

def gflag(layer, half):
    k("s_mov_b64 exec, 1")
    k(f"buffer_store_dword {V(vONE)}, {V(vFL)}, {S(SRD_WS,4)}, {S(sFG)} offen offset:{1024*half} sc1")
    k("s_mov_b64 exec, -1")
    if opt("pfh", 1):
        k(f"s_add_u32 {S(sT2)}, {S(sHS)}, {half*2*112*1024}")
        k(f"buffer_load_dword {V(WK+98)}, {V(vPFH)}, {S(SRD_WS,4)}, {S(sT2)} offen sc1")
        k.vm[-1] = (set(), None)

def ffn(layer):
    k.c("=== GEMM1")
    ACC = WK
    EP = WK + 64
    vXS = WK + 80
    vB0, vB1 = WK + 81, WK + 82
    if layer:
        k(f"s_add_u32 {S(sXT)}, {S(sXT)}, {hex(XQ_SZ)}")
    if opt("pfx", 1):
        k(f"buffer_load_dword {V(WK+98)}, {V(vPFX)}, {S(SRD_WS,4)}, {S(sXT)} offen sc1")
        k.vm[-1] = (set(), None)
    k(f"v_add_u32 {V(vXS)}, {S(sXT)}, {V(vL16)}")
    k(f"s_lshl_b32 {S(sT0)}, {S(sW)}, 10")
    k(f"s_mov_b32 m0, {S(sT0)}")
    nx = [0]
    def dma():
        d = nx[0]
        nx[0] += 1
        k(f"buffer_load_dwordx4 {V(vXS)}, {S(SRD_WS,4)}, m0 offen sc1 lds", tag=("x", d))
        if d == 13:
            k(f"v_subrev_u32 {V(vXS)}, 32, {V(vXS)}")
        if d < 27:
            k(f"s_add_u32 m0, m0, {4096 + (32 if d == 13 else 0)}")
    NUP = opt("nup", 9)
    for st in range(NUP):
        dma()
    k(f"v_add_u32 {V(vB0)}, {XHALF}, {V(vXA0)}")
    k(f"v_add_u32 {V(vB1)}, {XHALF}, {V(vXA1)}")
    k(f"s_lshl_b32 {S(sT0)}, {S(sJ)}, 2")
    k(f"s_add_u32 {S(sT0)}, {S(sT0)}, {S(sW)}")
    k(f"s_lshl_b32 {S(sT0)}, {S(sT0)}, 4")
    k(f"v_mov_b32 {V(vFL)}, {S(sT0)}")
    if layer:
        k(f"s_add_u32 {S(sHS)}, {S(sHS)}, {hex(H_SZ)}")
        k(f"s_add_u32 {S(sFG)}, {S(sFG)}, 0x8000")
        for a in range(4):
            k(f"s_add_u32 {S(sHG+a)}, {S(sHG+a)}, {hex(H_SZ)}")
    mf = [(0, q, ks) for ks in range(25) for q in range(2)]
    mf += [(0, q, ks) for q in range(2) for ks in range(25, 28)]
    mf += [(1, q, ks) for q in range(2) for ks in range(28)]
    NR = 8
    LEAD = opt("g1lead", 5)
    bars = [2, 5, 9, 14, 28]
    ready = [0]
    def rd(n):
        half, q, ks = mf[n]
        st = 14 * half + ks // 2
        if st >= ready[0]:
            nb = [b for b in bars if b > st][0]
            assert nx[0] >= nb, (n, nb, nx[0])
            k.wait_tag_vm(("x", nb - 1))
            k("s_barrier")
            ready[0] = nb
        va = ((vXA0, vXA1), (vB0, vB1))[half][q]
        for u in range(2):
            k(f"ds_read_b64_tr_b16 {A(AX+4*(n%NR)+2*u,2)}, {V(va)} offset:{ks*2048+u*512}")
    def epi(tile):
        ops = []
        e = EP + 8 * (tile & 1)
        st = []
        for a in range(2):
            for i in range(4):
                ops.append(f"v_cvt_pk_bf16_f32 {V(e+4*a+i)}, {V(ACC+16*tile+8*a+2*i)}, {V(ACC+16*tile+8*a+2*i+1)}")
            for i in range(4):
                ops.append(f"v_pk_max_i16 {V(e+4*a+i)}, {V(e+4*a+i)}, 0")
            if a == 0:
                ops.append(f"s_add_u32 {S(sT1)}, {S(sHS)}, {tile*112*1024}")
            ops.append((f"buffer_store_dwordx4 {V(e+4*a,4)}, {V(vL16)}, {S(SRD_WS,4)}, {S(sT1)} offen offset:{1024*a} sc1", ("h", tile)))
        return ops
    pend = []
    for n in range(LEAD):
        rd(n)
    stamp(27)
    for n, (half, q, ks) in enumerate(mf):
        tile = 2 * half + q
        d = V(ACC + 16 * tile, 16)
        k(f"v_mfma_f32_32x32x16_bf16 {d}, {V(W1R+4*ks,4)}, {A(AX+4*(n%NR),4)}, {d if ks else 0}")
        if n + LEAD < len(mf):
            rd(n + LEAD)
        if n % 2 == 0 and nx[0] < 28:
            dma()
        if n == 54:
            pend += epi(0) + epi(1)
        if n == 86:
            pend += epi(2)
        run(pend, 3)
        if n == opt("flagA", 96):
            k.wait_tag_vm(("h", 1))
            gflag(layer, 0)
    assert not pend and nx[0] == 28
    F = WK
    vS, vQ, vT = WK + 56, WK + 57, WK + 58
    srd_ = [f"ds_read_b64_tr_b16 {V(F+4*ks+2*u,2)}, {V(vST)} offset:{ks*4096+u*512}" for ks in range(14) for u in range(2)]
    run(srd_, 12)
    e3 = epi(3)
    run(e3, 9)
    poll_load(vPL2, vF2P, S(sFG))
    run(e3)
    stamp(15)
    run(srd_)
    for h in range(2):
        for u in range(2):
            k(f"ds_read_b64_tr_b16 {V(G2RES+4*h+2*u,2)}, {V(vRES)} offset:{h*XHALF+u*512}")
    st = [f"v_mov_b32 {V(vS)}, 0", f"v_mov_b32 {V(vQ)}, 0"]
    for i in range(56):
        st.append(f"v_dot2c_f32_bf16 {V(vS)}, {S(sONES)}, {V(F+i)}")
        st.append(f"v_dot2c_f32_bf16 {V(vQ)}, {V(F+i)}, {V(F+i)}")
    for r in (vS, vQ):
        st += [f"v_mov_b32 {V(vT)}, {V(r)}", f"v_permlane32_swap_b32 {V(r)}, {V(vT)}", f"v_add_f32 {V(r)}, {V(r)}, {V(vT)}",
               f"v_mov_b32 {V(vT)}, {V(r)}", f"v_permlane16_swap_b32 {V(r)}, {V(vT)}", f"v_add_f32 {V(r)}, {V(r)}, {V(vT)}"]
    st += [f"v_mul_f32 {V(vS)}, {f2u(1.0/448)}, {V(vS)}",
           f"v_mul_f32 {V(vQ)}, {f2u(1.0/448)}, {V(vQ)}",
           f"v_fma_f32 {V(vQ)}, -{V(vS)}, {V(vS)}, {V(vQ)}",
           f"v_max_f32 {V(vQ)}, 0, {V(vQ)}",
           f"v_add_f32 {V(vQ)}, {f2u(1e-5)}, {V(vQ)}",
           f"v_rsq_f32 {V(vQ)}, {V(vQ)}",
           f"v_mov_b32 {V(G2R)}, {V(vQ)}",
           f"v_mov_b32 {V(G2R+2)}, {V(vQ)}",
           f"v_mov_b32_dpp {V(G2R)}, {V(vQ)} row_ror:8 row_mask:0xf bank_mask:0xc",
           f"v_mov_b32_dpp {V(G2R+2)}, {V(vQ)} row_ror:8 row_mask:0xf bank_mask:0x3"]
    run(st, opt("stpre", 50))
    poll_check(vPL2, vF2P, S(sFG))
    stamp(17)

    k.c("=== GEMM2")
    ring = [("a", AX + 4 * i) for i in range(8)] + [("v", WK + 64 + 4 * i) for i in range(8)]
    NR = opt("g2ring", 14)
    ring = ring[:NR]
    rn = lambda i: (V if ring[i % NR][0] == "v" else A)(ring[i % NR][1], 4)
    nl = [0]
    def ld():
        i = nl[0]
        nl[0] += 1
        half, s = divmod(i, 28)
        a, r = divmod(s, 7)
        if r in (0, 4):
            k(f"s_add_u32 {S(sT0)}, {S(sHG+a)}, {half*2*112*1024 + r*1024}")
        k(f"buffer_load_dwordx4 {rn(i)}, {V(vL16)}, {S(SRD_WS,4)}, {S(sT0)} offen offset:{1024*(r%4)} sc1")
    def red_write(half):
        return [f"ds_write_b128 {V(vRW)}, {V(ACC+32*half+4*G,4)} offset:{half*RED_H+G*RED_G}" for G in range(8)]
    def red_read(half):
        return [f"ds_read_b128 {V(ACC+32*half+8*w+4*g,4)}, {V(vRR)} offset:{half*RED_H+w*RED_W+512*g}" for w in range(4) for g in range(2)]
    def bar():
        k.wait(lg=0)
        k("s_barrier")
    def unpack(half, u):
        o = []
        for i in range(4):
            o.append(f"v_lshlrev_b32 {V(u+2*i)}, 16, {V(G2RES+4*half+i)}")
            o.append(f"v_and_b32 {V(u+2*i+1)}, {S(sHIM)}, {V(G2RES+4*half+i)}")
        return o
    def fin(half, u, pre):
        a = ACC + 32 * half
        ops = []
        P = lambda d, x, y: f"v_pk_add_f32 {V(d,2)}, {V(x,2)}, {V(y,2)}"
        for i in range(4):
            ops.append(P(a + 2 * i, a + 2 * i, a + 8 + 2 * i))
        if not pre:
            ops += unpack(half, u)
        for i in range(4):
            ops.append(P(a + 16 + 2 * i, a + 16 + 2 * i, a + 24 + 2 * i))
        for i in range(4):
            ops.append(P(a + 2 * i, a + 2 * i, a + 16 + 2 * i))
        for i in range(4):
            ops.append(f"v_pk_fma_f32 {V(a+2*i,2)}, {V(a+2*i,2)}, {V(G2R+2*half,2)}, {V(u+2*i,2)} op_sel_hi:[1,0,1]")
        for i in range(4):
            ops.append(f"v_cvt_pk_bf16_f32 {V(a+24+i)}, {V(a+2*i)}, {V(a+2*i+1)}")
        if layer == 0:
            ops += quad_shuffle([(a + 28, a + 24)])
            ops.append(f"s_mov_b32 {S(sT1)}, {hex(XQ+XQ_SZ)}")
            ops.append((f"buffer_store_dwordx4 {V(a+28,4)}, {V(vOQ)}, {S(SRD_WS,4)}, {S(sT1)} offen offset:{256*half} sc1", "st"))
            ops += stats_ops(a + 24, 4, a, a + 1, a + 2)
            def at():
                k(f"s_mov_b32 {S(sT1)}, {hex(STATS[1])}")
                k("s_mov_b32 exec_lo, 0xff")
                k("s_mov_b32 exec_hi, 0xff")
                k(f"buffer_atomic_add_f64 {V(a+2,2)}, {V(vAT)}, {S(SRD_WS,4)}, {S(sT1)} offen offset:{512*half} sc1", tag="st")
                k("s_mov_b64 exec, -1")
            ops.append(at)
        else:
            ops.append(f"s_movk_i32 {S(sT1)}, {8*896*half}")
            ops.append(f"buffer_store_dwordx4 {V(a+24,4)}, {V(vOO)}, {S(SRD_OUT,4)}, {S(sT1)} offen")
        return ops
    NUP2 = opt("nup2", 10)
    for i in range(NUP2):
        ld()
        run(st, (len(st) + NUP2 - i - 1) // (NUP2 - i))
    assert not st
    k.wait_tag_vm(("h", 3))
    gflag(layer, 1)
    stamp(16)
    PB = opt("pollB", 8)
    order = [(i, dt) for i in range(52) for dt in range(2)] + [(i, dt) for dt in range(2) for i in range(52, 56)]
    pend = []
    okB = False
    for n, (i, dt) in enumerate(order):
        half, s = divmod(i, 28)
        d = V(ACC + 32 * half + 16 * dt, 16)
        k(f"v_mfma_f32_32x32x16_bf16 {d}, {A((s*2+dt)*4,4)}, {rn(i)}, {d if s else 0}")
        if dt == 1 and i < 52:
            if i == 3:
                bar()
            if i == PB:
                poll_load(vPL2, vF2P, S(sFG), 1024)
            if nl[0] == 28 and not okB and i > PB and not any(f"v{vPL2}" in p[0] for p in k.vm[1:]):
                poll_check(vPL2, vF2P, S(sFG), 1024)
                okB = True
            if i == 29:
                pend += red_write(0) + [None] * 4 + [bar] + red_read(0) + [None] * 6 + fin(0, ACC + 8, False)
            if i == 48:
                assert not pend
                pend += unpack(1, ACC + 8)
        if nl[0] < 56 and nl[0] - NR < i + dt and (nl[0] < 28 or okB):
            ld()
        run(pend, 3)
        if n == 110:
            pend += red_write(1)[:4]
    run(pend)
    assert nl[0] == 56
    stamp(18)
    run(red_write(1)[4:])
    bar()
    run(red_read(1) + fin(1, ACC + 8, True))
    stamp(19)

def finish():
    if ENC >= 0:
        k.wait(vm=0)
        stamp(22)
        k(f"s_cmp_lg_u32 {S(sWG)}, 100")
        k("s_cbranch_scc1 L_end")
        k("s_sub_u32 s101, s101, s100")
        k("s_mul_i32 s101, s101, 100")
        k("s_min_u32 s101, s101, 1000000")
        k(f"s_memrealtime {S(sTM,2)}")
        k.wait(lg=0)
        k(f"s_mov_b32 s100, {S(sTM)}")
        k.label("L_spin")
        k(f"s_memrealtime {S(sTM,2)}")
        k.wait(lg=0)
        k(f"s_sub_u32 {S(sT0)}, {S(sTM)}, s100")
        k(f"s_cmp_lt_u32 {S(sT0)}, s101")
        k("s_cbranch_scc1 L_spin")
    if DIAG:
        k.wait(vm=0)
        stamp(22)
        stamp(30, True)
        k(f"s_lshl_b32 {S(sT0)}, {S(sWG)}, 10")
        k(f"s_add_u32 {S(sT0)}, {S(sT0)}, {hex(STAMP)}")
        k(f"v_lshlrev_b32 {V(WK)}, 2, {V(vTID)}")
        k(f"buffer_store_dword {V(vSTAMP)}, {V(WK)}, {S(SRD_WS,4)}, {S(sT0)} offen")
    k.label("L_end")
    k("s_endpgm")

prologue()
main_start()
kgen()
conv(0)
handoff1(0)
ffn(0)
handoff(0x10000, sb=20)
LAY[0] = 1
conv_loads(1)
conv(1)
handoff1(1)
ffn(1)
finish()
helper()
body = list(k.lines)
body += [".p2align 4", ".type L_table,@object", "L_table:"]
body += [".long " + ",".join(hex(w) for w in r) for r in table_words()]
body += ["L_table_end:"]

ref = open("cdna_kernels/%s.s.ref" % NAME).read().splitlines()
hdr = [l for l in ref if l.startswith(";") and "@launch" not in l]
head = f""".amdgcn_target "amdgcn-amd-amdhsa--gfx950"
.text
.globl {NAME}_kernel
.p2align 8
.type {NAME}_kernel,@function
{NAME}_kernel:
"""
if opt("align", 1):
    body = align(body, head)
out = "\n".join(hdr) + f"\n; @launch grid=(256,1,1) block=(256,1,1) lds={LDS_BYTES}\n"
out += head + "\n".join(body) + "\n"
out += f""".section .rodata,"a"
.p2align 6
.amdhsa_kernel {NAME}_kernel
  .amdhsa_next_free_vgpr 512
  .amdhsa_next_free_sgpr 102
  .amdhsa_accum_offset 256
  .amdhsa_group_segment_fixed_size 0
  .amdhsa_kernarg_size 120
  .amdhsa_user_sgpr_count 2
  .amdhsa_user_sgpr_kernarg_segment_ptr 1
  .amdhsa_system_sgpr_workgroup_id_x 1
.end_amdhsa_kernel
"""
dst = [a for a in sys.argv[1:] if not a.startswith("--")]
dst = dst[0] if dst else "cdna_kernels/%s.s" % NAME
open(dst, "w").write(out)
print("instructions:", k.nins, "->", dst)
```

```python
import sys, struct
from emit import Asm, V, A, S
from align import align

NAME = "interleave_layers__ssm_conv_s4__dense_activation_relu__prompt"
DIAG = "--diag" in sys.argv
OPT = {}
for a in sys.argv:
    if a.startswith("--") and "=" in a:
        n, v = a[2:].split("=")
        OPT[n] = int(v)
def opt(n, d):
    return OPT.get(n, d)

def f2u(x):
    return "0x%08x" % struct.unpack("<I", struct.pack("<f", x))[0]

FLG_A = 0x0
FLG_G = 0x20000
STATS = (0x38000, 0x30000)
XQ = 0x40000
XQ_SZ = 0x1C0000
X1T = 0x3C0000
HB = 0x740000
H_SZ = 0x700000
W1C = 0x1540000
FLG_W = 0x16C8000
STAMP = 0x1700000
WS_BYTES = 0x1800000

XHALF = 57344 + 32
SCR = 114816
SCR_ST = 8704
ROW_ST = 544
UARR = SCR + 4 * SCR_ST
U_ST = 4576
LDS_BYTES = 163840
WREG = 28672
RED_G = 1152
RED_W = 8 * RED_G
RED_H = 4 * RED_W

sWG, sW = 2, 3
SRD_WS, SRD_OUT, SRD_W1, SRD_W2, SRD_X0, SRD_DBG = 4, 8, 12, 16, 20, 24
sCP, sGAM, sJ, sHH, sDS, sROT = 58, 59, 60, 61, 62, 63
sONES, sHIM = 64, 65
sT0, sT1, sT2, sT3, sT4, sT5 = 66, 67, 68, 69, 70, 71
sLDT, sDSK = 72, 73
sREP, sXQi, sW2B, sXT, sHL, sHS, sFG = 74, 75, 76, 77, 78, 79, 80
sSPIN = 81
sC0, sC1 = 82, 83
sPC = 84
sTM = 86
sWL = 88
sW2O = 89
sSCR, sSCH = 90, 95
sPERM0, sPERM1 = 91, 92
sNH, sCH = 93, 94
sROLE = 100
sHG = 96

vTID, vL, vL16 = 0, 1, 2
vCIN, vUW, vXW = 3, 4, 5
vKF = 6
vUF, vXR, vCO, vEXW, vEXR = 10, 11, 12, 13, 14
vXA0, vXA1 = 15, 16
vST, vRES, vRW, vRR, vOQ, vOO, vAT = 17, 18, 19, 20, 21, 22, 23
vFW, vFP, vF2P = 24, 25, 26
vCX, vPFH, vPFX = 27, 28, 29
vSTAMP = 30
vONE = 31
WK = 32
W1R = 144
AX = 224
vW2S, vW2R = WK + 104, WK + 105
vDUM = WK + 107
vWF = WK + 108

k = Asm()
SPIN_MAX = 1 << 16
LAY = [0]

ENC = opt("enc", -1)
def stamp(idx, cyc=False):
    if ENC >= 0 and not cyc and idx + 32 * LAY[0] in (0, ENC):
        k.wait(lg=0)
        k(f"s_memrealtime {S(sTM,2)}")
        k.wait(lg=0)
        k(f"s_mov_b32 {S(46 if idx + 32*LAY[0] == 0 else 47)}, {S(sTM)}")
    if not DIAG:
        return
    k.wait(lg=0)
    k(f"{'s_memtime' if cyc != bool(opt('cyc', 0)) else 's_memrealtime'} {S(sTM,2)}")
    k.wait(lg=0)
    k(f"v_writelane_b32 {V(vSTAMP)}, {S(sTM)}, {idx + 32*LAY[0]}")

def srd(base, ptr, nbytes):
    k(f"s_mov_b32 {S(base)}, {S(ptr)}")
    k(f"s_and_b32 {S(base+1)}, {S(ptr+1)}, 0xffff")
    k(f"s_mov_b32 {S(base+2)}, {hex(nbytes)}")
    k(f"s_mov_b32 {S(base+3)}, 0x20000")

_lab = [0]
def newlab(p):
    _lab[0] += 1
    return f"L_{p}_{_lab[0]}"

def branch(op, lab):
    k.fence(1)
    k(f"{op} {lab}")

def label(lab):
    k.fence()
    k.label(lab)

def poll_load(vtmp, vaddr, soff, off=0, srdn=SRD_WS):
    k(f"buffer_load_dword {V(vtmp)}, {V(vaddr)}, {S(srdn,4)}, {soff} offen offset:{off} sc1")

def poll_check(vtmp, vaddr, soff, off=0, srdn=SRD_WS):
    lp, ok = newlab("poll"), newlab("ok")
    k(f"v_cmp_eq_u32 vcc, 0, {V(vtmp)}")
    saved = list(k.vm)
    k.skip_begin("s_cbranch_vccz", ok)
    k(f"s_mov_b32 {S(sSPIN)}, 0")
    k.label(lp)
    if opt("sleep", 2):
        k(f"s_sleep {opt('sleep', 2)}")
    poll_load(vtmp, vaddr, soff, off, srdn)
    k(f"s_add_u32 {S(sSPIN)}, {S(sSPIN)}, 1")
    k.wait(vm=0)
    k(f"v_cmp_eq_u32 vcc, 0, {V(vtmp)}")
    k(f"s_cmp_gt_u32 {S(sSPIN)}, {SPIN_MAX}")
    k(f"s_cbranch_scc1 {ok}")
    k(f"s_cbranch_vccnz {lp}")
    k.skip_end(ok)
    k.vm = saved

def run(ops, n=None):
    c = 0
    while ops and (n is None or c < n):
        o = ops.pop(0)
        if callable(o):
            o()
        elif isinstance(o, tuple):
            k(o[0], tag=o[1])
        elif o is not None:
            k(o)
        c += 1

def stats_ops(P, n, vS, vQ, vT):
    o = [f"v_mov_b32 {V(vS)}, 0", f"v_mov_b32 {V(vQ)}, 0"]
    for i in range(n):
        o.append(f"v_dot2c_f32_bf16 {V(vS)}, {S(sONES)}, {V(P+i)}")
        o.append(f"v_dot2c_f32_bf16 {V(vQ)}, {V(P+i)}, {V(P+i)}")
    o += [f"v_permlane32_swap_b32 {V(vS)}, {V(vQ)}",
          f"v_add_f32 {V(vS)}, {V(vS)}, {V(vQ)}",
          f"v_mov_b32 {V(vT)}, {V(vS)}",
          f"v_permlane16_swap_b32 {V(vS)}, {V(vT)}",
          f"v_add_f32 {V(vS)}, {V(vS)}, {V(vT)}",
          f"v_add_f32_dpp {V(vS)}, {V(vS)}, {V(vS)} row_ror:8 row_mask:0xf bank_mask:0xf",
          f"v_cvt_f64_f32 {V(vT,2)}, {V(vS)}"]
    return o

def quad_shuffle(pairs):
    D = " row_mask:0xf bank_mask:0xf"
    o = ["s_mov_b32 vcc_lo, 0x0f0f0f0f", "s_mov_b32 vcc_hi, 0x0f0f0f0f"]
    for d, s in pairs:
        o.append(f"v_cndmask_b32_dpp {V(d)}, {V(s+2)}, {V(s)}, vcc row_ror:4" + D)
        o.append(f"v_cndmask_b32_dpp {V(d+2)}, {V(s+3)}, {V(s+1)}, vcc row_ror:4" + D)
    o.append("s_not_b64 vcc, vcc")
    for d, s in pairs:
        o.append(f"v_cndmask_b32_dpp {V(d+1)}, {V(s)}, {V(s+2)}, vcc row_ror:12" + D)
        o.append(f"v_cndmask_b32_dpp {V(d+3)}, {V(s+1)}, {V(s+3)}, vcc row_ror:12" + D)
    return o

X0R = WK
X0O = WK + 28
vP0A = WK + 56

def p0x_addr():
    k.c("P0-x: rows t' = 8*wg + (l&7), octets 8a + (l>>3)")
    t = vP0A
    k(f"v_and_b32 {V(t)}, 7, {V(vL)}")
    k(f"s_lshl_b32 {S(sT0)}, {S(sWG)}, 3")
    k(f"v_add_u32 {V(t)}, {S(sT0)}, {V(t)}")
    k(f"v_and_b32 {V(t+1)}, 3, {V(t)}")
    k(f"v_bfe_u32 {V(t+2)}, {V(t)}, 2, 4")
    k(f"v_lshl_add_u32 {V(t+3)}, {V(t+1)}, 4, {V(t+2)}")
    k(f"v_and_b32 {V(t+2)}, 0x7c0, {V(t)}")
    k(f"v_add_u32 {V(t+3)}, {V(t+3)}, {V(t+2)}")
    k(f"v_mul_u32_u24 {V(t+3)}, 896, {V(t+3)}")
    k(f"v_lshrrev_b32 {V(t+2)}, 3, {V(vL)}")
    k(f"v_lshl_add_u32 {V(t+3)}, {V(t+2)}, 4, {V(t+3)}")
    k(f"v_lshrrev_b32 {V(t+2)}, 2, {V(vL)}")
    k(f"v_lshlrev_b32 {V(t+1)}, 4, {V(t+1)}")
    k(f"v_lshl_add_u32 {V(t+1)}, {V(t+2)}, 14, {V(t+1)}")
    k(f"s_lshl_b32 {S(sT0)}, {S(sWG)}, 6")
    k(f"v_add_u32 {V(t+1)}, {S(sT0)}, {V(t+1)}")
    k(f"v_lshlrev_b32 {V(t)}, 4, {V(t)}")
    k(f"v_lshrrev_b32 {V(t+2)}, 5, {V(vL)}")
    k(f"v_lshl_add_u32 {V(t)}, {V(t+2)}, 3, {V(t)}")

def p0x_loads():
    for a in range(7):
        k(f"buffer_load_dwordx4 {V(X0R+4*a,4)}, {V(vP0A+3)}, {S(SRD_X0,4)}, 0 offen offset:{128*a}")

def p0x_body():
    t = vP0A
    vS, vQ, vT = WK + 60, WK + 61, WK + 62
    run(quad_shuffle([(X0O + 4 * a, X0R + 4 * a) for a in range(7)]))
    k(f"s_mov_b32 {S(sT0)}, {hex(XQ)}")
    st = stats_ops(X0R, 28, vS, vQ, vT)
    for a in range(7):
        k(f"buffer_store_dwordx4 {V(X0O+4*a,4)}, {V(t+1)}, {S(SRD_WS,4)}, {S(sT0)} offen sc1")
        if a < 6:
            k(f"s_add_u32 {S(sT0)}, {S(sT0)}, {hex(16*16384)}")
        run(st, 4)
    run(st)
    k(f"s_mov_b32 {S(sT0)}, {hex(STATS[0])}")
    k(f"s_mov_b32 exec_lo, 0xff")
    k(f"s_mov_b32 exec_hi, 0xff")
    k(f"buffer_store_dwordx2 {V(vT,2)}, {V(t)}, {S(SRD_WS,4)}, {S(sT0)} offen sc1")
    k(f"s_mov_b64 exec, -1")
    k(f"v_and_b32 {V(t+1)}, 7, {V(vL)}")
    k(f"v_lshlrev_b32 {V(t+1)}, 2, {V(t+1)}")
    poll_load(t + 2, t + 1, 0, 0, SRD_DBG)

def flag_all(off):
    k(f"s_mov_b32 {S(sT0)}, {hex(off)}")
    k(f"s_mov_b64 exec, 0xff")
    k(f"buffer_store_dword {V(vONE)}, {V(vFW)}, {S(SRD_WS,4)}, {S(sT0)} offen sc1")
    k(f"s_mov_b64 exec, -1")

def p0x_flag():
    poll_check(vP0A + 2, vP0A + 1, 0, 0, SRD_DBG)
    flag_all(0)

ND = [0]
def w2_dma():
    d = ND[0]
    ND[0] += 1
    if d % 28 == 0:
        k(f"s_mul_i32 {S(sT4)}, {S(sW)}, {WREG}")
        k(f"s_mov_b32 m0, {S(sT4)}")
    if d % 14 == 0:
        k(f"s_mul_i32 {S(sW2O)}, {S(sHG + d//14)}, 14")
        k(f"s_add_u32 {S(sW2O)}, {S(sW2O)}, {S(sW2B)}")
    if opt("nodma", 0):
        k(f"s_mov_b32 {S(SRD_W2+2)}, 0")
    k(f"buffer_load_dwordx4 {V(vW2S)}, {S(SRD_W2,4)}, {S(sW2O)} offen lds", tag=("w2", d))
    if d % 14 != 13:
        k(f"s_add_u32 {S(sW2O)}, {S(sW2O)}, {8*896}")
    if d % 28 != 27:
        k(f"s_add_u32 m0, m0, 1024")

def w2_tr_ops(lo, hi):
    return [f"ds_read_b64_tr_b16 {A((s*2+dt)*4+2*u,2)}, {V(vW2R+dt)} offset:{(s%14)*2048+u*1024}"
            for s in range(lo, hi) for dt in range(2) for u in range(2)]

NW1 = [0]
def w1_load():
    ks = NW1[0]
    NW1[0] += 1
    k(f"buffer_load_dwordx4 {V(W1R+4*ks,4)}, {V(vL16)}, {S(SRD_WS,4)}, {S(sWL)} offen offset:{1024*(ks%4)} sc1")
    if ks % 4 == 3:
        k(f"s_add_u32 {S(sWL)}, {S(sWL)}, 4096")

def prologue():
    k(f"s_getpc_b64 {S(sPC,2)}")
    k.label("L_pc")
    k(f"s_cmp_ge_u32 {S(sWG)}, 256")
    k("s_cbranch_scc1 L_end")
    k("s_load_dwordx16 s[28:43], s[0:1], 0")
    k("s_load_dwordx8 s[44:51], s[0:1], 64")
    k("s_load_dwordx4 s[52:55], s[0:1], 96")
    k("s_load_dwordx2 s[56:57], s[0:1], 112")
    k.c("helper waves 2,3 pull the code into L2")
    k(f"s_cmp_ge_u32 {S(sWG)}, 32")
    k("s_cbranch_scc1 L_nopf")
    k(f"v_cmp_le_u32 vcc, 128, {V(vTID)}")
    k(f"v_lshlrev_b32 {V(vL16)}, 7, {V(vTID)}")
    k("s_cbranch_vccz L_nopf")
    k(f"v_and_b32 {V(vL16)}, 0x3fff, {V(vL16)}")
    for q in range(3):
        k(f"global_load_dword {V(vDUM)}, {V(vL16)}, {S(sPC,2)}")
        k.vm = []
        if q < 2:
            k(f"v_add_u32 {V(vL16)}, 0x4000, {V(vL16)}")
        if q == 1:
            k(f"v_min_u32 {V(vL16)}, L_table_end-L_pc-4, {V(vL16)}")
    k.label("L_nopf")
    k(f"v_lshrrev_b32 {V(vONE)}, 6, {V(vTID)}")
    k(f"v_and_b32 {V(vL)}, 63, {V(vTID)}")
    k(f"v_readfirstlane_b32 {S(sW)}, {V(vONE)}")
    k(f"v_lshlrev_b32 {V(vL16)}, 4, {V(vL)}")
    k(f"v_mov_b32 {V(vONE)}, 1")
    if DIAG:
        k(f"v_mov_b32 {V(vSTAMP)}, 0")
    k(f"s_mov_b32 {S(sONES)}, 0x3f803f80")
    k(f"s_mov_b32 {S(sHIM)}, 0xffff0000")
    k(f"s_sub_u32 {S(sT0)}, {S(sWG)}, 32")
    k(f"s_and_b32 {S(sT1)}, {S(sT0)}, 7")
    k(f"s_lshr_b32 {S(sT0)}, {S(sT0)}, 3")
    k(f"s_mul_i32 {S(sCP)}, {S(sT1)}, 28")
    k(f"s_add_u32 {S(sCP)}, {S(sCP)}, {S(sT0)}")
    k(f"s_cmp_ge_u32 {S(sT0)}, 14")
    k(f"s_cselect_b32 {S(sT2)}, 1, 0")
    k(f"s_cselect_b32 {S(sT3)}, 14, 0")
    k(f"s_lshl_b32 {S(sGAM)}, {S(sT1)}, 1")
    k(f"s_add_u32 {S(sGAM)}, {S(sGAM)}, {S(sT2)}")
    k(f"s_sub_u32 {S(sJ)}, {S(sT0)}, {S(sT3)}")
    k(f"s_and_b32 {S(sHH)}, {S(sJ)}, 1")
    k(f"s_lshr_b32 {S(sDS)}, {S(sJ)}, 1")
    k(f"s_and_b32 {S(sNH)}, {S(sW)}, 1")
    k(f"s_lshr_b32 {S(sCH)}, {S(sW)}, 1")
    k(f"s_lshl_b32 {S(sREP)}, {S(sT1)}, 12")
    if opt("rot", 2) == 1:
        k(f"s_lshl_b32 {S(sROT)}, {S(sT2)}, 1")
        k(f"s_add_u32 {S(sROT)}, {S(sROT)}, {S(sHH)}")
        k(f"s_add_u32 {S(sROT)}, {S(sROT)}, {S(sDS)}")
    elif opt("rot", 2) == 2:
        k(f"s_add_u32 {S(sROT)}, {S(sT1)}, {S(sDS)}")
    else:
        k(f"s_mov_b32 {S(sROT)}, {S(sT1)}")
    k(f"s_lshl_b32 {S(sT0)}, {S(sWG)}, 4")
    k(f"v_lshlrev_b32 {V(vFW)}, 12, {V(vL)}")
    k(f"v_add_u32 {V(vFW)}, {S(sT0)}, {V(vFW)}")
    p0x_addr()
    k(f"s_lshl_b32 {S(sT0)}, {S(sCP)}, 10")
    k(f"v_lshl_add_u32 {V(PRM+6)}, {V(vTID)}, 2, {S(sT0)}")
    k.wait(lg=0)
    srd(SRD_X0, 28, 2048 * 896)
    srd(SRD_WS, 56, WS_BYTES)
    srd(SRD_DBG, 54, 256)
    stamp(0)
    stamp(30, True)
    skip = newlab("nx")
    k(f"s_cmp_lg_u32 {S(sW)}, 0")
    branch("s_cbranch_scc1", skip)
    p0x_loads()
    label(skip)
    k.forget()
    k(f"s_cmp_ge_u32 {S(sWG)}, 32")
    branch("s_cbranch_scc1", "L_main")
    z = HZ
    for i in range(4):
        k(f"v_mov_b32 {V(z+i)}, 0")
    k(f"s_lshl_b32 {S(sT5)}, {S(sWG)}, 7")
    k(f"s_add_u32 {S(sT5)}, {S(sT5)}, {hex(FLG_W)}")
    l1 = newlab("h1")
    k(f"s_cmp_eq_u32 {S(sW)}, 0")
    branch("s_cbranch_scc1", "L_hwait")
    k(f"s_cmp_lg_u32 {S(sW)}, 1")
    branch("s_cbranch_scc1", l1)
    k(f"s_cmp_ge_u32 {S(sWG)}, 8")
    branch("s_cbranch_scc1", "L_hwait")
    k(f"s_lshl_b32 {S(sT0)}, {S(sWG)}, 12")
    for i in range(4):
        k(f"buffer_store_dwordx4 {V(z,4)}, {V(vL16)}, {S(SRD_WS,4)}, {S(sT0)} offen offset:{1024*i} sc1")
    k(f"s_lshl_b32 {S(sT0)}, {S(sWG)}, 2")
    k.wait(vm=0)
    k("s_mov_b64 exec, 1")
    k(f"buffer_store_dword {V(vONE)}, {V(z)}, {S(SRD_DBG,4)}, {S(sT0)} offen sc1")
    k("s_mov_b64 exec, -1")
    branch("s_branch", "L_hwait")
    label(l1)
    k.forget()
    k(f"s_lshl_b32 {S(sT0)}, {S(sWG)}, 1")
    k(f"s_add_u32 {S(sT0)}, {S(sT0)}, {S(sNH)}")
    k(f"s_mul_i32 {S(sT0)}, {S(sT0)}, 3072")
    k(f"s_add_u32 {S(sT0)}, {S(sT0)}, 0x8000")
    for i in range(3):
        k(f"buffer_store_dwordx4 {V(z,4)}, {V(vL16)}, {S(SRD_WS,4)}, {S(sT0)} offen offset:{1024*i} sc1")
    k("s_mov_b64 exec, 1")
    k(f"buffer_store_dword {V(z)}, {V(z)}, {S(SRD_WS,4)}, {S(sT5)} offen sc1")
    k("s_mov_b64 exec, -1")
    label("L_hwait")
    k.wait(vm=0)
    k("s_barrier")
    k(f"s_mov_b32 {S(sROLE)}, 1")
    branch("s_branch", "L_p0x")
    label("L_main")
    k.forget()

HZ = WK + 64
def helper():
    label("L_helper")
    k.forget()
    srd(SRD_W1, 48, 448 * 3584)
    z = HZ
    F = WK + 72
    t = z + 4
    k(f"v_lshrrev_b32 {V(t)}, 2, {V(vL)}")
    k(f"v_mul_u32_u24 {V(t)}, 3584, {V(t)}")
    k(f"v_and_b32 {V(t+1)}, 3, {V(vL)}")
    k(f"v_lshl_add_u32 {V(t)}, {V(t+1)}, 4, {V(t)}")
    k(f"s_lshl_b32 {S(sT2)}, {S(sWG)}, 1")
    k(f"s_add_u32 {S(sT2)}, {S(sT2)}, {S(sCH)}")
    k(f"s_min_u32 {S(sT2)}, {S(sT2)}, 55")
    k(f"s_lshl_b32 {S(sT0)}, {S(sT2)}, 6")
    k(f"s_mul_i32 {S(sT1)}, {S(sNH)}, {224*3584}")
    k(f"s_add_u32 {S(sT0)}, {S(sT0)}, {S(sT1)}")
    k(f"s_mul_i32 {S(sT3)}, {S(sW)}, 14336")
    k(f"s_mov_b32 m0, {S(sT3)}")
    for c in range(14):
        k(f"buffer_load_dwordx4 {V(t)}, {S(SRD_W1,4)}, {S(sT0)} offen lds")
        k(f"s_add_u32 {S(sT0)}, {S(sT0)}, {16*3584}")
        k(f"s_add_u32 m0, m0, 1024")
    k(f"v_lshrrev_b32 {V(t)}, 5, {V(vL)}")
    k(f"v_lshlrev_b32 {V(t)}, 9, {V(t)}")
    k(f"v_lshl_add_u32 {V(t)}, {V(t+1)}, 3, {V(t)}")
    k(f"v_bfe_u32 {V(t+1)}, {V(vL)}, 2, 2")
    k(f"v_lshl_add_u32 {V(t)}, {V(t+1)}, 6, {V(t)}")
    k(f"v_bfe_u32 {V(t+1)}, {V(vL)}, 4, 1")
    k(f"v_lshl_add_u32 {V(t)}, {V(t+1)}, 5, {V(t)}")
    k(f"v_add_u32 {V(t)}, {S(sT3)}, {V(t)}")
    l4 = newlab("h4")
    k(f"s_cmp_lg_u32 {S(sW)}, 0")
    branch("s_cbranch_scc1", l4)
    k.wait(vm=14)
    p0x_flag()
    stamp(2)
    label(l4)
    k.wait(vm=0)
    stamp(3)
    k(f"s_cmp_ge_u32 {S(sWG)}, 28")
    branch("s_cbranch_scc1", "L_end2")
    for ks in range(14):
        for u in range(2):
            k(f"ds_read_b64_tr_b16 {V(F+4*ks+2*u,2)}, {V(t)} offset:{ks*1024+u*256}")
    c, u_ = z, z + 2
    for i in range(56):
        k(f"v_dot2c_f32_bf16 {V(c)}, {S(sONES)}, {V(F+i)}")
    k(f"v_mov_b32 {V(u_)}, {V(c)}")
    k(f"v_permlane32_swap_b32 {V(c)}, {V(u_)}")
    k(f"v_add_f32 {V(c)}, {V(c)}, {V(u_)}")
    k(f"v_lshlrev_b32 {V(t)}, 2, {V(vTID)}")
    k(f"v_add_u32 {V(t)}, 0x10000, {V(t)}")
    k(f"ds_write_b32 {V(t)}, {V(c)}")
    k(f"v_xor_b32 {V(t)}, 256, {V(t)}")
    k.wait(lg=0)
    k("s_barrier")
    k(f"ds_read_b32 {V(u_)}, {V(t)}")
    k(f"s_mul_i32 {S(sT0)}, {S(sT2)}, 28672")
    k(f"s_mul_i32 {S(sT1)}, {S(sNH)}, 14336")
    k(f"s_add_u32 {S(sT0)}, {S(sT0)}, {S(sT1)}")
    k(f"s_add_u32 {S(sT0)}, {S(sT0)}, {hex(W1C)}")
    k(f"v_add_f32 {V(c)}, {V(c)}, {V(u_)}")
    k(f"v_mul_f32 {V(c)}, {f2u(-1.0/448)}, {V(c)}")
    for i in range(56):
        tt = z + 4 + 2 * (i & 1)
        k(f"v_lshlrev_b32 {V(tt)}, 16, {V(F+i)}")
        k(f"v_and_b32 {V(tt+1)}, {S(sHIM)}, {V(F+i)}")
        pk("add", V(tt, 2), V(tt, 2), V(c, 2), bc=(1,))
        k(f"v_cvt_pk_bf16_f32 {V(F+i)}, {V(tt)}, {V(tt+1)}")
        if i % 4 == 3:
            ks = i // 4
            k(f"buffer_store_dwordx4 {V(F+4*ks,4)}, {V(vL16)}, {S(SRD_WS,4)}, {S(sT0)} offen offset:{1024*(ks%4)} sc1")
            if ks % 4 == 3:
                k(f"s_add_u32 {S(sT0)}, {S(sT0)}, 4096")
    k(f"v_mov_b32 {V(z)}, 0")
    k.wait(vm=0)
    k("s_barrier")
    k(f"s_cmp_lg_u32 {S(sW)}, 0")
    branch("s_cbranch_scc1", "L_end2")
    k("s_mov_b64 exec, 1")
    k(f"buffer_store_dword {V(vONE)}, {V(z)}, {S(SRD_WS,4)}, {S(sT5)} offen sc1")
    if DIAG:
        k("s_mov_b64 exec, -1")
        stamp(1)
        k(f"s_lshl_b32 {S(sT0)}, {S(sWG)}, 10")
        k(f"s_add_u32 {S(sT0)}, {S(sT0)}, {hex(STAMP)}")
        k(f"v_lshlrev_b32 {V(WK)}, 2, {V(vTID)}")
        k(f"buffer_store_dword {V(vSTAMP)}, {V(WK)}, {S(SRD_WS,4)}, {S(sT0)} offen")
    k.label("L_end2")
    k("s_endpgm")

KW = W1R
PRM = KW
TBL = KW + 8
GA = KW + 20
TA = GA + 17
vKW, vKR, vKC, vDSK = KW + 42, KW + 43, KW + 44, KW + 45

def table_words():
    import numpy as np
    def bf16r(m):
        u = struct.unpack("<I", struct.pack("<f", float(m)))[0]
        return (u + 0x7FFF + ((u >> 16) & 1)) >> 16
    pad = lambda q: q + 2 * (q >> 4)
    rows = []
    for lam in range(128):
        e = []
        for i in range(17):
            m = 2048 - 16 * lam - i
            e.append(pad(min(m, max(bf16r(m), 0x4300) - 0x4280)))
        l = lam & 63
        j, g = l & 15, l >> 4
        base, mul, pst = ((0, 8, 2), (4, 8, 2), (256, 4, 2), (384, 2, 64))[g]
        for yt in range(2):
            for pi in range(2):
                e.append(pad(base + mul * (16 * yt + j) + pi * pst))
        e.append(576 + 144 * g + j)
        e += [0, 0]
        rows.append([e[2 * i] | (e[2 * i + 1] << 16) for i in range(12)])
    out = []
    for qd in range(3):
        for lam in range(128):
            out.append(rows[lam][4 * qd:4 * qd + 4])
    return out

def addr_conv():
    t0, t1, t2, t3 = KW + 100, KW + 101, KW + 102, KW + 103
    r16, g4, cc = KW + 104, KW + 105, KW + 106
    o = []
    e = o.append
    e(f"v_and_b32 {V(r16)}, 15, {V(vL)}")
    e(f"v_lshrrev_b32 {V(g4)}, 4, {V(vL)}")
    e(f"v_and_b32 {V(cc)}, 3, {V(vL)}")
    e(f"s_mul_i32 {S(sSCR)}, {S(sW)}, {SCR_ST}")
    e(f"s_add_u32 {S(sSCR)}, {S(sSCR)}, {SCR}")
    e(f"s_mul_i32 {S(sSCH)}, {S(sCH)}, {2*SCR_ST}")
    e(f"s_add_u32 {S(sSCH)}, {S(sSCH)}, {SCR}")
    e(f"v_lshl_add_u32 {V(vKW)}, {V(vL)}, 3, {S(sSCR)}")
    e(f"v_mul_u32_u24 {V(vKR)}, {ROW_ST}, {V(r16)}")
    e(f"v_lshl_add_u32 {V(vKR)}, {V(g4)}, 4, {V(vKR)}")
    e(f"v_add_u32 {V(vKR)}, {S(sSCR)}, {V(vKR)}")
    e(f"v_and_b32 {V(t0)}, 127, {V(vTID)}")
    e(f"s_add_u32 {S(sT2)}, {S(sSCH)}, 4096")
    e(f"v_lshl_add_u32 {V(vKC)}, {V(t0)}, 5, {S(sT2)}")
    e(f"v_lshrrev_b32 {V(t0)}, 5, {V(vL)}")
    e(f"v_bfe_u32 {V(t1)}, {V(vL)}, 2, 2")
    e(f"v_lshlrev_b32 {V(t3)}, 9, {V(t0)}")
    e(f"v_lshl_add_u32 {V(t3)}, {V(t1)}, 7, {V(t3)}")
    e(f"v_bfe_u32 {V(t1)}, {V(vL)}, 3, 1")
    e(f"v_lshl_add_u32 {V(t3)}, {V(t1)}, 6, {V(t3)}")
    e(f"v_bfe_u32 {V(t1)}, {V(vL)}, 4, 1")
    e(f"v_lshl_add_u32 {V(t3)}, {V(t1)}, 5, {V(t3)}")
    e(f"v_lshl_add_u32 {V(t3)}, {V(cc)}, 3, {V(t3)}")
    e(f"s_mul_i32 {S(sT2)}, {S(sW)}, {WREG}")
    e(f"v_add_u32 {V(vW2R)}, {S(sT2)}, {V(t3)}")
    e(f"v_xor_b32 {V(vW2R+1)}, 64, {V(vW2R)}")
    e(f"v_lshrrev_b32 {V(t0)}, 2, {V(vTID)}")
    e(f"v_lshlrev_b32 {V(t1)}, 4, {V(cc)}")
    e(f"v_lshl_add_u32 {V(vCIN)}, {V(t0)}, 9, {V(t1)}")
    e(f"v_lshl_add_u32 {V(vCX)}, {V(t0)}, 8, {V(t1)}")
    e(f"v_lshrrev_b32 {V(t0)}, 3, {V(vTID)}")
    e(f"v_bfe_u32 {V(t1)}, {V(vL)}, 2, 1")
    e(f"v_lshlrev_b32 {V(t2)}, 7, {V(t0)}")
    e(f"v_lshl_add_u32 {V(t2)}, {V(cc)}, 5, {V(t2)}")
    e(f"v_lshl_add_u32 {V(t2)}, {V(t1)}, 4, {V(t2)}")
    e(f"v_add_u32 {V(vUW)}, {UARR+480}, {V(t2)}")
    e(f"s_mul_i32 {S(sT2)}, {S(sCH)}, {SCR_ST-2048}")
    e(f"s_add_u32 {S(sT2)}, {S(sT2)}, {SCR}")
    e(f"v_add_u32 {V(vXW)}, {S(sT2)}, {V(t2)}")
    e(f"v_and_b32 {V(t0)}, 1, {V(vL)}")
    e(f"v_xor_b32 {V(t0)}, 1, {V(t0)}")
    e(f"v_mul_u32_u24 {V(t1)}, {SCR_ST+64+2}, {V(t0)}")
    e(f"v_lshlrev_b32 {V(t2)}, 1, {V(r16)}")
    e(f"v_sub_u32 {V(t1)}, {V(t1)}, {V(t2)}")
    e(f"v_lshl_add_u32 {V(t1)}, {V(g4)}, 4, {V(t1)}")
    e(f"s_lshl_b32 {S(sT3)}, {S(sNH)}, 8")
    e(f"s_sub_u32 {S(sT2)}, {S(sSCH)}, {S(sT3)}")
    e(f"s_add_u32 {S(sT2)}, {S(sT2)}, {4096 + 2*2031 - 512 - 192}")
    e(f"v_add_u32 {V(vKF)}, {S(sT2)}, {V(t1)}")
    for a in range(1, 4):
        e(f"v_subrev_u32 {V(vKF+a)}, {1024*a}, {V(vKF)}")
    e(f"v_lshlrev_b32 {V(t1)}, 5, {V(r16)}")
    e(f"v_lshl_add_u32 {V(t1)}, {V(g4)}, 4, {V(t1)}")
    e(f"s_mul_i32 {S(sT2)}, {S(sCH)}, {U_ST}")
    e(f"s_sub_u32 {S(sT2)}, {S(sT2)}, {S(sT3)}")
    e(f"s_add_u32 {S(sT2)}, {S(sT2)}, {UARR + 480 - 32 - 192}")
    e(f"v_add_u32 {V(vUF)}, {S(sT2)}, {V(t1)}")
    e(f"v_mov_b32 {V(vXR)}, {V(vKW)}")
    e(f"v_add_u32 {V(vEXW)}, {S(sSCR)}, {V(vL16)}")
    e(f"s_xor_b32 {S(sT2)}, {S(sW)}, 1")
    e(f"s_mul_i32 {S(sT2)}, {S(sT2)}, {SCR_ST}")
    e(f"s_add_u32 {S(sT2)}, {S(sT2)}, {SCR}")
    e(f"v_add_u32 {V(vEXR)}, {S(sT2)}, {V(vL16)}")
    e(f"v_lshrrev_b32 {V(t0)}, 3, {V(vL)}")
    e(f"v_mul_u32_u24 {V(vCO)}, 57344, {V(t0)}")
    e(f"v_and_b32 {V(t0)}, 7, {V(vL)}")
    e(f"s_and_b32 {S(sT2)}, {S(sCP)}, 1")
    e(f"s_lshl_b32 {S(sT3)}, {S(sT2)}, 2")
    e(f"v_xor_b32 {V(t0)}, {S(sT3)}, {V(t0)}")
    e(f"v_lshl_add_u32 {V(vCO)}, {V(t0)}, 4, {V(vCO)}")
    e(f"s_lshl_b32 {S(sT2)}, {S(sT2)}, 3")
    e(f"s_lshr_b32 {S(sXQi)}, {S(sCP)}, 1")
    e(f"s_lshl_b32 {S(sXQi)}, {S(sXQi)}, 14")
    e(f"s_add_u32 {S(sXQi)}, {S(sXQi)}, {S(sT2)}")
    e(f"s_add_u32 {S(sXQi)}, {S(sXQi)}, {hex(XQ)}")
    e(f"s_lshl_b32 {S(sT2)}, {S(sCP)}, 1")
    e(f"s_add_u32 {S(sT2)}, {S(sT2)}, {S(sCH)}")
    e(f"s_lshl_b32 {S(sT2)}, {S(sT2)}, 7")
    e(f"s_mul_i32 {S(sT3)}, {S(sNH)}, {8*114688}")
    e(f"s_add_u32 {S(sT2)}, {S(sT2)}, {S(sT3)}")
    e(f"v_add_u32 {V(vCO)}, {S(sT2)}, {V(vCO)}")
    e(f"v_lshlrev_b32 {V(vFP)}, 4, {V(vTID)}")
    e(f"s_mov_b32 {S(sPERM0)}, 0x05040100")
    e(f"s_mov_b32 {S(sPERM1)}, 0x07060302")
    e(f"s_lshl_b32 {S(sT2)}, {S(sJ)}, 2")
    e(f"s_add_u32 {S(sT2)}, {S(sT2)}, {S(sW)}")
    e(f"s_mul_i32 {S(sWL)}, {S(sT2)}, 28672")
    e(f"s_add_u32 {S(sWL)}, {S(sWL)}, {hex(W1C)}")
    e(f"s_lshr_b32 {S(sT2)}, {S(sT2)}, 1")
    e(f"s_lshl_b32 {S(sT2)}, {S(sT2)}, 7")
    e(f"s_add_u32 {S(sT2)}, {S(sT2)}, {hex(FLG_W)}")
    e(f"v_mov_b32 {V(vWF+1)}, {S(sT2)}")
    z = KW + 108
    for i in range(4):
        e(f"v_mov_b32 {V(z+i)}, 0")
    e(f"v_min_u32 {V(t0)}, 29, {V(vL)}")
    e(f"v_lshlrev_b32 {V(t0)}, 4, {V(t0)}")
    e(f"v_add_u32 {V(t0)}, {UARR}, {V(t0)}")
    e(f"ds_write_b128 {V(t0)}, {V(z,4)}")
    e(f"ds_write_b128 {V(t0)}, {V(z,4)} offset:{U_ST}")
    return o

def addr_ffn():
    t0, t1, t2, t3 = WK + 8, WK + 9, WK + 10, WK + 11
    g4, rho, cc = WK + 12, WK + 13, WK + 14
    o = []
    e = o.append
    e(f"v_lshrrev_b32 {V(g4)}, 4, {V(vL)}")
    e(f"v_bfe_u32 {V(rho)}, {V(vL)}, 2, 2")
    e(f"v_and_b32 {V(cc)}, 3, {V(vL)}")
    e(f"v_lshrrev_b32 {V(t0)}, 5, {V(vL)}")
    e(f"v_bfe_u32 {V(t1)}, {V(vL)}, 4, 1")
    e(f"v_bfe_u32 {V(t2)}, {V(vL)}, 3, 1")
    e(f"v_lshlrev_b32 {V(t3)}, 7, {V(rho)}")
    e(f"v_lshl_add_u32 {V(t3)}, {V(t2)}, 6, {V(t3)}")
    e(f"v_lshl_add_u32 {V(vXA0)}, {V(t0)}, 10, {V(t3)}")
    e(f"v_lshl_add_u32 {V(vXA0)}, {V(cc)}, 4, {V(vXA0)}")
    e(f"v_lshl_add_u32 {V(vXA0)}, {V(t1)}, 3, {V(vXA0)}")
    e(f"v_xor_b32 {V(vXA1)}, 64, {V(vXA0)}")
    e(f"v_and_b32 {V(t0)}, 15, {V(vL)}")
    e(f"v_lshlrev_b32 {V(t0)}, 7, {V(t0)}")
    e(f"s_mov_b32 {S(sT2)}, 114688")
    e(f"v_mad_u32_u24 {V(vPFH)}, {V(t1)}, {S(sT2)}, {V(t0)}")
    e(f"s_lshl_b32 {S(sT2)}, {S(sJ)}, 2")
    e(f"s_add_u32 {S(sT2)}, {S(sT2)}, {S(sW)}")
    e(f"s_lshl_b32 {S(sT2)}, {S(sT2)}, 11")
    e(f"v_add_u32 {V(vPFX)}, {S(sT2)}, {V(t0)}")
    e(f"s_lshl_b32 {S(sT2)}, {S(sHH)}, 6")
    e(f"v_xor_b32 {V(t3)}, {S(sT2)}, {V(t3)}")
    e(f"s_lshl_b32 {S(sT2)}, {S(sNH)}, 5")
    e(f"s_lshl_b32 {S(sT3)}, {S(sCH)}, 3")
    e(f"s_add_u32 {S(sT2)}, {S(sT2)}, {S(sT3)}")
    e(f"v_add_u32 {V(t3)}, {S(sT2)}, {V(t3)}")
    e(f"v_and_b32 {V(t0)}, 1, {V(vL)}")
    e(f"v_lshl_add_u32 {V(t3)}, {V(t0)}, 4, {V(t3)}")
    e(f"v_bfe_u32 {V(t0)}, {V(vL)}, 1, 1")
    e(f"v_mul_u32_u24 {V(vST)}, {XHALF}, {V(t0)}")
    e(f"v_lshl_add_u32 {V(vST)}, {V(g4)}, 10, {V(vST)}")
    e(f"v_add_u32 {V(vST)}, {V(vST)}, {V(t3)}")
    e(f"v_lshl_add_u32 {V(t0)}, {V(g4)}, 1, {V(t0)}")
    e(f"v_lshl_add_u32 {V(vRES)}, {V(t0)}, 10, {V(t3)}")
    e(f"s_lshl_b32 {S(sT2)}, {S(sDS)}, 13")
    e(f"v_add_u32 {V(vRES)}, {S(sT2)}, {V(vRES)}")
    e(f"s_mul_i32 {S(sT2)}, {S(sW)}, {RED_W}")
    e(f"v_add_u32 {V(vRW)}, {S(sT2)}, {V(vL16)}")
    e(f"v_lshrrev_b32 {V(t0)}, 3, {V(vL)}")
    e(f"v_and_b32 {V(t1)}, 7, {V(vL)}")
    e(f"v_mul_u32_u24 {V(vRR)}, {RED_G}, {V(t0)}")
    e(f"v_lshl_add_u32 {V(vRR)}, {V(t1)}, 4, {V(vRR)}")
    e(f"s_lshl_b32 {S(sT2)}, {S(sW)}, 7")
    e(f"v_add_u32 {V(vRR)}, {S(sT2)}, {V(vRR)}")
    e(f"s_lshr_b32 {S(sT2)}, {S(sGAM)}, 2")
    e(f"s_lshl_b32 {S(sT2)}, {S(sT2)}, 3")
    e(f"s_and_b32 {S(sT3)}, {S(sGAM)}, 3")
    e(f"s_add_u32 {S(sT2)}, {S(sT2)}, {S(sT3)}")
    e(f"s_lshl_b32 {S(sT3)}, {S(sCH)}, 2")
    e(f"s_add_u32 {S(sT2)}, {S(sT2)}, {S(sT3)}")
    e(f"s_lshl_b32 {S(sT2)}, {S(sT2)}, 6")
    e(f"s_lshl_b32 {S(sT3)}, {S(sHH)}, 1")
    e(f"s_add_u32 {S(sT3)}, {S(sT3)}, {S(sNH)}")
    e(f"s_lshl_b32 {S(sT4)}, {S(sT3)}, 3")
    e(f"s_add_u32 {S(sT4)}, {S(sT4)}, {S(sT2)}")
    e(f"v_add_lshl_u32 {V(t2)}, {V(t1)}, {S(sT4)}, 4")
    e(f"v_lshrrev_b32 {V(t3)}, 5, {V(vL)}")
    e(f"v_lshl_add_u32 {V(vAT)}, {V(t3)}, 3, {V(t2)}")
    e(f"v_lshrrev_b32 {V(t3)}, 2, {V(vL)}")
    e(f"v_lshlrev_b32 {V(t2)}, 4, {V(cc)}")
    e(f"v_lshl_add_u32 {V(vOQ)}, {V(t3)}, 14, {V(t2)}")
    e(f"s_lshl_b32 {S(sT4)}, {S(sT4)}, 3")
    e(f"s_lshl_b32 {S(sT5)}, {S(sDS)}, 18")
    e(f"s_add_u32 {S(sT4)}, {S(sT4)}, {S(sT5)}")
    e(f"v_add_u32 {V(vOQ)}, {S(sT4)}, {V(vOQ)}")
    e(f"s_lshl_b32 {S(sT3)}, {S(sT3)}, 1")
    e(f"s_add_u32 {S(sT2)}, {S(sT2)}, {S(sT3)}")
    e(f"v_bfe_u32 {V(t3)}, {V(vL)}, 2, 1")
    e(f"v_add3_u32 {V(t2)}, {V(t2)}, {V(t3)}, {S(sT2)}")
    e(f"v_mul_u32_u24 {V(vOO)}, 896, {V(t2)}")
    e(f"v_lshl_add_u32 {V(vOO)}, {V(t0)}, 4, {V(vOO)}")
    e(f"s_lshl_b32 {S(sT2)}, {S(sDS)}, 7")
    e(f"v_add_u32 {V(vOO)}, {S(sT2)}, {V(vOO)}")
    e(f"v_min_u32 {V(t0)}, 13, {V(vL)}")
    e(f"s_mul_i32 {S(sT2)}, {S(sW)}, 14")
    e(f"v_add_lshl_u32 {V(vF2P)}, {V(t0)}, {S(sT2)}, 4")
    e(f"v_max_u32 {V(vFP)}, 512, {V(vFP)}")
    e(f"s_mul_i32 {S(sXT)}, {S(sGAM)}, 114688")
    e(f"s_add_u32 {S(sXT)}, {S(sXT)}, {hex(X1T)}")
    e(f"s_mul_i32 {S(sT2)}, {S(sGAM)}, {4*112*1024}")
    e(f"s_add_u32 {S(sT2)}, {S(sT2)}, {hex(HB)}")
    e(f"s_lshl_b32 {S(sT3)}, {S(sJ)}, 13")
    e(f"s_add_u32 {S(sHS)}, {S(sT2)}, {S(sT3)}")
    e(f"s_lshl_b32 {S(sT3)}, {S(sW)}, 11")
    e(f"s_add_u32 {S(sHS)}, {S(sHS)}, {S(sT3)}")
    e(f"s_mul_i32 {S(sT3)}, {S(sHH)}, {112*1024}")
    e(f"s_add_u32 {S(sHL)}, {S(sT2)}, {S(sT3)}")
    e(f"s_mul_i32 {S(sT3)}, {S(sW)}, {28*1024}")
    e(f"s_add_u32 {S(sHL)}, {S(sHL)}, {S(sT3)}")
    for a in range(4):
        e(f"s_add_u32 {S(sHG+a)}, {S(sHG+a)}, {S(sHL)}")
    e(f"s_lshl_b32 {S(sFG)}, {S(sGAM)}, 11")
    e(f"s_add_u32 {S(sFG)}, {S(sFG)}, {hex(FLG_G)}")
    e(f"s_mov_b32 {S(SRD_OUT)}, s52")
    e(f"s_and_b32 {S(SRD_OUT+1)}, s53, 0xffff")
    e(f"s_mov_b32 {S(SRD_OUT+2)}, {hex(2048*896)}")
    e(f"s_mov_b32 {S(SRD_OUT+3)}, 0x20000")
    return o

def pk(op, d, a, b, c=None, bc=(), neg=(), emit=True):
    ops = [a, b] + ([c] if c is not None else [])
    n = len(ops)
    txt = f"v_pk_{op}_f32 {d}, " + ", ".join(ops)
    if bc:
        txt += " op_sel_hi:[" + ",".join("0" if i in bc else "1" for i in range(n)) + "]"
    if neg:
        m = "[" + ",".join("1" if i in neg else "0" for i in range(n)) + "]"
        txt += f" neg_lo:{m} neg_hi:{m}"
    if emit:
        k(txt)
    return txt

def cmul(d, a, b, t):
    assert d != a
    pk("mul", V(t, 2), V(a, 2), V(b, 2))
    pk("mul", V(t + 2, 2), V(a, 2), V(b + 2, 2))
    pk("fma", V(d, 2), V(a + 2, 2), V(b + 2, 2), V(t, 2), neg=(0,))
    pk("fma", V(d + 2, 2), V(a + 2, 2), V(b, 2), V(t + 2, 2))

NINIT = opt("ninit", 0)
def main_start():
    k.c("=== main workgroups")
    for i in range(6):
        k(f"global_load_dword {V(PRM+i)}, {V(PRM+6)}, {S(30+2*i,2)}")
    k(f"s_lshl_b32 {S(sT0)}, {S(sCP)}, 2")
    k(f"s_load_dword {S(sLDT)}, s[42:43], {S(sT0)}")
    k(f"s_load_dword {S(sDSK)}, s[44:45], {S(sT0)}")
    k.lg = []
    srd(SRD_W2, 50, 1792 * 896)
    t0, t1 = KW + 100, KW + 101
    k(f"v_and_b32 {V(t0)}, 127, {V(vTID)}")
    k(f"v_lshlrev_b32 {V(t0)}, 4, {V(t0)}")
    k(f"v_add_u32 {V(t0)}, L_table-L_pc, {V(t0)}")
    for q in range(2):
        k(f"global_load_dwordx4 {V(TBL+4*q,4)}, {V(t0)}, {S(sPC,2)} offset:{2048*q}")
    k(f"v_add_u32 {V(t0)}, 4096, {V(t0)}")
    k(f"global_load_dwordx4 {V(TBL+8,4)}, {V(t0)}, {S(sPC,2)}")
    k(f"v_lshrrev_b32 {V(t0)}, 3, {V(vL)}")
    k(f"v_mul_u32_u24 {V(vW2S)}, 896, {V(t0)}")
    k(f"v_and_b32 {V(t0)}, 7, {V(vL)}")
    k(f"v_bfe_u32 {V(t1)}, {V(vL)}, 4, 1")
    k(f"v_lshlrev_b32 {V(t1)}, 2, {V(t1)}")
    k(f"v_xor_b32 {V(t0)}, {V(t0)}, {V(t1)}")
    k(f"v_lshl_add_u32 {V(vW2S)}, {V(t0)}, 4, {V(vW2S)}")
    k(f"s_mul_i32 {S(sW2B)}, {S(sW)}, {448*896}")
    k(f"s_lshl_b32 {S(sT2)}, {S(sDS)}, 7")
    k(f"s_add_u32 {S(sW2B)}, {S(sW2B)}, {S(sT2)}")
    for a in range(4):
        k(f"s_add_u32 {S(sT2)}, {S(sROT)}, {a}")
        k(f"s_and_b32 {S(sT2)}, {S(sT2)}, 3")
        k(f"s_mul_i32 {S(sHG+a)}, {S(sT2)}, 7168")
    ac = addr_conv()
    run(ac)
    for i in range(NINIT):
        w2_dma()
    stamp(24)
    k.wait(vm=NINIT + 3)
    k(f"s_mov_b32 {S(sROLE)}, 0")
    label("L_p0x")
    stamp(25)
    skip = newlab("p0")
    k(f"s_cmp_lg_u32 {S(sW)}, 0")
    saved = list(k.vm)
    branch("s_cbranch_scc1", skip)
    p0x_body()
    label(skip)
    k.vm = saved
    k(f"s_cmp_eq_u32 {S(sROLE)}, 1")
    branch("s_cbranch_scc1", "L_helper")
    stamp(1)

def conv_loads(layer):
    XD, SD = WK, WK + 8
    k(f"s_mov_b32 {S(sT0)}, {hex(STATS[layer])}")
    if layer:
        k(f"s_add_u32 {S(sXQi)}, {S(sXQi)}, {hex(XQ_SZ)}")
    for j2 in range(4):
        for j in (2 * j2, 2 * j2 + 1):
            k(f"buffer_load_dwordx4 {V(SD+4*j,4)}, {V(vCIN)}, {S(SRD_WS,4)}, {S(sT0)} offen offset:{64*j} sc1")
        k(f"buffer_load_dwordx2 {V(XD+2*j2,2)}, {V(vCX)}, {S(SRD_WS,4)}, {S(sXQi)} offen offset:{64*j2} sc1")

def kgen():
    k.c("=== K generation")
    B0 = KW + 46
    U = B0
    DT = B0 + 12
    W1_, W8_, W256 = B0 + 14, B0 + 18, B0 + 22
    T = B0 + 26
    P = [B0 + 30 + 4 * i for i in range(5)]
    CV = B0 + 50
    ACC = WK + 64
    FX0, FX1, FY = 112, 144, 176
    NP0 = opt("np0", 42)
    n0 = ND[0]
    for i in range(6):
        k(f"v_lshlrev_b32 {V(U+2*i)}, 16, {V(PRM+i)}")
        k(f"v_and_b32 {V(U+2*i+1)}, {S(sHIM)}, {V(PRM+i)}")
    k.wait(lg=0)
    k(f"s_lshl_b32 {S(sT0)}, {S(sCH)}, 4")
    k(f"s_lshr_b32 {S(sLDT)}, {S(sLDT)}, {S(sT0)}")
    k(f"s_lshl_b32 {S(sLDT)}, {S(sLDT)}, 16")
    k(f"s_lshr_b32 {S(sDSK)}, {S(sDSK)}, {S(sT0)}")
    k(f"s_lshl_b32 {S(sDSK)}, {S(sDSK)}, 16")
    k(f"v_mov_b32 {V(DT)}, {f2u(1.4426950408889634)}")
    k(f"v_mul_f32 {V(DT)}, {S(sLDT)}, {V(DT)}")
    k(f"v_exp_f32 {V(DT)}, {V(DT)}")
    k(f"s_cmp_eq_u32 {S(sNH)}, 0")
    k(f"s_cselect_b32 {S(sDSK)}, {S(sDSK)}, 0")
    k(f"v_cvt_pk_bf16_f32 {V(DT)}, {V(DT)}, {V(DT)}")
    k(f"v_mov_b32 {V(vDSK)}, 0")
    k(f"v_lshlrev_b32 {V(DT)}, 16, {V(DT)}")
    k(f"v_writelane_b32 {V(vDSK)}, {S(sDSK)}, 0")
    w2_dma()
    for i in range(4):
        pk("mul", V(U + 2 * i, 2), V(U + 2 * i, 2), V(DT, 2), bc=(1,))
    k(f"s_mov_b32 {S(sC0)}, {f2u(1.4426950408889634)}")
    pk("mul", V(U, 2), V(U, 2), S(sC0, 2), bc=(1,))
    k(f"s_mov_b32 {S(sC0)}, {f2u(0.15915494309189535)}")
    pk("mul", V(U + 2, 2), V(U + 2, 2), S(sC0, 2), bc=(1,))
    cmul(P[0], U + 8, U + 4, T)
    for (Wd, sc) in ((W1_, 1.0), (W256, 256.0), (W8_, 8.0)):
        ea, an = U + 4, U + 6
        if sc == 1.0:
            sa, sb = U, U + 2
        else:
            k(f"s_mov_b32 {S(sC0)}, {f2u(sc)}")
            pk("mul", V(ea, 2), V(U, 2), S(sC0, 2), bc=(1,))
            pk("mul", V(an, 2), V(U + 2, 2), S(sC0, 2), bc=(1,))
            sa, sb = ea, an
        for h in range(2):
            k(f"v_fract_f32 {V(an+h)}, {V(sb+h)}")
        for h in range(2):
            k(f"v_exp_f32 {V(ea+h)}, {V(sa+h)}")
        for h in range(2):
            k(f"v_cos_f32 {V(Wd+h)}, {V(an+h)}")
        for h in range(2):
            k(f"v_sin_f32 {V(Wd+2+h)}, {V(an+h)}")
        w2_dma()
        pk("mul", V(Wd, 2), V(Wd, 2), V(ea, 2))
        pk("mul", V(Wd + 2, 2), V(Wd + 2, 2), V(ea, 2))
    cvi = [0]
    ent = [0]
    freed = [28]
    side = []
    nrem = NP0 - ND[0]
    base = ND[0]
    def put(src, row, negim, ns=0):
        c = CV + 2 * (cvi[0] & 1)
        cvi[0] += 1
        n = "-" if negim else ""
        k(f"v_cvt_pk_bf16_f32 {V(c)}, {V(src)}, {V(src+1)}")
        k(f"v_cvt_pk_bf16_f32 {V(c+1)}, {n}{V(src+2)}, {n}{V(src+3)}")
        k(f"ds_write_b64 {V(vKW)}, {V(c,2)} offset:{row*ROW_ST}")
        ent[0] += 1
        if ND[0] < base + nrem * ent[0] // opt("dmaspan", 44) and ND[0] < NP0 and ND[0] < freed[0]:
            w2_dma()
        run(side, ns)
    def frags(b):
        for st in range(8):
            k(f"ds_read_b128 {A(b+4*st,4)}, {V(vKR)} offset:{64*st}")
    cur = 0
    for a in range(8):
        put(P[cur], a, True)
        if a % 2 == 0:
            dst = {0: 3, 4: 4}.get(a, 2)
            cmul(P[dst], P[cur], W256, T)
            put(P[dst], 8 + a // 2, True)
        if a < 7:
            cmul(P[1 - cur], P[cur], W1_, T)
            cur = 1 - cur
    cmul(P[0], P[3], W256, T); put(P[0], 12, True)
    cmul(P[1], P[4], W256, T); put(P[1], 13, True)
    cmul(P[3], P[0], W256, T); put(P[3], 14, True)
    cmul(P[4], P[1], W256, T); put(P[4], 15, True)
    frags(FX0)
    def flag0():
        skip = newlab("nf")
        k(f"s_cmp_lg_u32 {S(sW)}, 0")
        saved = list(k.vm)
        k.skip_begin("s_cbranch_scc1", skip)
        k.wait(vm=ND[0] - n0)
        p0x_flag()
        k.skip_end(skip)
        k.vm = saved
        stamp(2)
    if opt("flag0", 0) == 0:
        flag0()
    src, dst = 3, 0
    for row in range(5):
        cmul(P[dst], P[src], W256, T)
        put(P[dst], row, True)
        src, dst = dst, (1 - dst if dst in (0, 1) else 0)
    frags(FX1)
    if opt("flag0", 0) == 1:
        flag0()
    MID = NP0 > 28
    if MID:
        assert ND[0] > 13
        k.wait_tag_vm(("w2", 13))
        side += w2_tr_ops(0, 7)
    k(f"v_mov_b32 {V(CV)}, {S(sONES)}")
    k(f"v_mov_b32 {V(CV+1)}, 0")
    k(f"ds_write_b64 {V(vKW)}, {V(CV,2)}")
    cvi[0] = 1
    put(W8_, 1, False, 4)
    cmul(P[0], W8_, W8_, T)
    cur = 0
    for j in range(2, 16):
        if j == 11 and MID:
            assert not side
            k.wait(lg=2)
            freed[0] = 42
        put(P[cur], j, False, 4)
        cmul(P[1 - cur], P[cur], W8_, T)
        cur = 1 - cur
    frags(FY)
    stamp(3)
    mf = [(st, x) for st in range(8) for x in range(2)]
    def mfma(yt, st, x):
        d = V(ACC + 8 * yt + 4 * x, 4)
        return f"v_mfma_f32_16x16x32_bf16 {d}, {A((FX0,FX1)[x]+4*st,4)}, {A(FY+4*st,4)}, {d if st else 0}"
    side += [None] * 4 + [mfma(0, st, x) for (st, x) in mf]
    vPL = WK + 80
    for j in range(16):
        put(P[cur], j, False, 2)
        if j == opt("poll0", 9):
            poll_load(vPL, vFP, S(sREP))
        if j < 15:
            cmul(P[1 - cur], P[cur], W8_, T)
            cur = 1 - cur
    assert not side
    frags(FY)
    while ND[0] < NP0:
        w2_dma()
    for i in range(22):
        n = (i + 17) % 22
        sel = " op_sel:[1,0,0,0]" if n & 1 else ""
        side.append(f"v_mad_u32_u16 {V(GA+n)}, {V(TBL+n//2)}, 4, {S(sSCH if n < 17 else sSCR)}{sel}")
    side.insert(5, f"v_add_f32 {V(ACC)}, {V(ACC)}, {V(vDSK)}")
    def tables(yt):
        o = [f"ds_write_b64 {V(TA+2*yt+pi)}, {V(ACC+8*yt+2*pi,2)}" for pi in range(2)]
        o += [f"ds_write_b32 {V(TA+4)}, {V(ACC+8*yt+4+i)} offset:{4*(36*i+18*yt)}" for i in range(4)]
        return o
    side[6:6] = tables(0)
    run(side, 12)
    for (st, x) in mf:
        k(mfma(1, st, x))
        run(side, 1)
    run(side)
    poll_check(vPL, vFP, S(sREP))
    run(tables(1))
    k.wait(lg=0)
    k("s_barrier")
    stamp(4)
    GV = B0
    for e in range(17):
        k(f"ds_read2st64_b32 {V(GV+2*e,2)}, {V(GA+e)} offset0:0 offset1:{SCR_ST//256}")
    conv_loads(0)
    poll_load(vWF, vWF + 1, 0)
    for e in range(17):
        k(f"v_add_f32 {V(GV+2*e)}, {V(GV+2*e)}, {V(GV+2*e+1)}")
    O = B0 + 34
    for c in range(2):
        for kk in range(8):
            e = 2 * kk + 1 - c
            k(f"v_cvt_pk_bf16_f32 {V(O+8*c+kk)}, {V(GV+2*e)}, {V(GV+2*e+2)}")
        for h in range(2):
            k(f"ds_write_b128 {V(vKC)}, {V(O+8*c+4*h,4)} offset:{c*(SCR_ST+64)+16*h}")
    skip = newlab("nt")
    k(f"s_cmp_eq_u32 {S(sNH)}, 0")
    k.skip_begin("s_cbranch_scc1", skip)
    Z = KW + 104
    for i in range(1, 4):
        k(f"v_mov_b32 {V(Z+i)}, 0")
    k(f"v_cvt_pk_bf16_f32 {V(Z)}, {V(GV+32)}, 0")
    k("s_mov_b32 exec_lo, 0")
    k("s_mov_b32 exec_hi, 0x80000000")
    k(f"ds_write_b128 {V(vKC)}, {V(Z+4,4)} offset:32")
    k(f"ds_write_b128 {V(vKC)}, {V(Z+4,4)} offset:48")
    k(f"ds_write_b128 {V(vKC)}, {V(Z,4)} offset:{SCR_ST+64+32}")
    k(f"ds_write_b128 {V(vKC)}, {V(Z+4,4)} offset:{SCR_ST+64+48}")
    k("s_mov_b64 exec, -1")
    k.skip_end(skip)
    assert ND[0] > 27
    k.wait_tag_vm(("w2", 27))
    run(w2_tr_ops(7 if MID else 0, 14))
    k.wait(lg=0)
    k("s_barrier")
    stamp(5)

def wave0(fn):
    skip = newlab("w0")
    k(f"s_cmp_lg_u32 {S(sW)}, 0")
    saved = list(k.vm)
    k.skip_begin("s_cbranch_scc1", skip)
    fn()
    k.skip_end(skip)
    k.vm = saved

def conv(layer):
    k.c("=== conv")
    XD, SD = WK, WK + 8
    M, Q, UU = WK + 40, WK + 48, WK + 56
    O = WK + 72
    k(f"s_mov_b32 {S(sC0)}, {f2u(1.0/448)}")
    k(f"s_mov_b32 {S(sC1)}, {f2u(1e-5)}")
    for j2 in range(4):
        for j in (2 * j2, 2 * j2 + 1):
            k(f"v_cvt_f32_f64 {V(M+j)}, {V(SD+4*j,2)}")
            k(f"v_cvt_f32_f64 {V(Q+j)}, {V(SD+4*j+2,2)}")
        j = 2 * j2
        pk("mul", V(M + j, 2), V(M + j, 2), S(sC0, 2), bc=(1,))
        pk("mul", V(Q + j, 2), V(Q + j, 2), S(sC0, 2), bc=(1,))
        pk("fma", V(Q + j, 2), V(M + j, 2), V(M + j, 2), V(Q + j, 2), neg=(0,))
        for h in range(2):
            k(f"v_max_f32 {V(Q+j+h)}, 0, {V(Q+j+h)}")
            k(f"v_add_f32 {V(Q+j+h)}, {S(sC1)}, {V(Q+j+h)}")
        for h in range(2):
            k(f"v_rsq_f32 {V(Q+j+h)}, {V(Q+j+h)}")
        for h in range(2):
            k(f"v_lshlrev_b32 {V(UU+j+h)}, 16, {V(XD+j+h)}")
            k(f"v_and_b32 {V(UU+8+j+h)}, {S(sHIM)}, {V(XD+j+h)}")
        for c in range(2):
            pk("add", V(UU + 8 * c + j, 2), V(UU + 8 * c + j, 2), V(M + j, 2), neg=(1,))
            pk("mul", V(UU + 8 * c + j, 2), V(UU + 8 * c + j, 2), V(Q + j, 2))
            k(f"v_cvt_pk_bf16_f32 {V(O+4*c+j2)}, {V(UU+8*c+j)}, {V(UU+8*c+j+1)}")
            k(f"v_perm_b32 {V(O+8+4*c+j2)}, {V(XD+j+1)}, {V(XD+j)}, {S(sPERM0+c)}")
        if j2 == 0:
            stamp(7)
    for c in range(2):
        k(f"ds_write_b128 {V(vUW)}, {V(O+4*c,4)} offset:{c*U_ST}")
    for c in range(2):
        k(f"ds_write_b128 {V(vXW)}, {V(O+8+4*c,4)} offset:{c*2*SCR_ST}")
    ACC = WK
    KB = WK + 32
    XRES = WK + 96
    mf, uld, kld = [], [], []
    for s in range(4):
        for Jp in range(7, -1, -1):
            I0 = 7 - Jp
            first = len(mf)
            for I in range(0, 8 - Jp):
                mf.append((s, Jp, I))
            uld.append((first, f"ds_read_b128 {A(AX+4*Jp,4)}, {V(vUF)} offset:{512*Jp + 64*(3-s)}"))
            kb = KB + 32 * (s & 1) + 4 * I0
            o = (128 if I0 % 2 == 0 else 0) + 16 * (3 - s)
            kld.append((first, f"ds_read2_b32 {V(kb,2)}, {V(vKF+I0//2)} offset0:{o} offset1:{o+1}"))
            kld.append((first, f"ds_read2_b32 {V(kb+2,2)}, {V(vKF+I0//2)} offset0:{o+2} offset1:{o+3}"))
    NPRE = 10
    for _, t in kld[:NPRE]:
        k(t)
    kld = kld[NPRE:]
    k.wait(lg=NPRE)
    k("s_barrier")
    stamp(9)
    loads = sorted(uld + kld, key=lambda x: x[0])
    rowstart = {f for f, _ in uld}
    bg = []
    if layer == 0:
        bg = [w2_dma] * (56 - ND[0]) + [lambda: poll_check(vWF, vWF + 1, 0)] + [w1_load] * opt("w1conv", 12)
    step = max(1, 132 // max(1, len(bg)))
    li = 0
    seen = set()
    for n, (s, Jp, I) in enumerate(mf):
        cnt = 0
        while li < len(loads) and (loads[li][0] <= n + 3 or (loads[li][0] <= n + 22 and cnt < (5 if n == 0 else 1))):
            f, txt = loads[li]
            if txt.startswith("ds_read_b128") and f >= 36 and n < f - 36 + (8 - mf[f][1]):
                break
            k(txt, tag=f)
            li += 1
            cnt += 1
        if n in rowstart:
            idx = [i for i, p in enumerate(k.lg) if p[2] == n]
            if idx:
                k.wait(lg=len(k.lg) - 1 - idx[-1])
        J = Jp + I
        d = V(ACC + 4 * J, 4)
        k(f"v_mfma_f32_16x16x32_bf16 {d}, {A(AX+4*Jp,4)}, {V(KB+32*(s&1)+4*I,4)}, {d if J in seen else 0}")
        seen.add(J)
        if 122 <= n < 126:
            jl = n - 122
            k(f"ds_read_b64_tr_b16 {V(XRES+2*jl,2)}, {V(vXR)} offset:{512*jl}")
        if n >= 6 and (n - 6) % step == 0:
            run(bg, 1)
        if n >= 136:
            i = n - 136
            k(f"v_lshlrev_b32 {V(KB+16+2*i)}, 16, {V(XRES+i)}")
            k(f"v_and_b32 {V(KB+16+2*i+1)}, {S(sHIM)}, {V(XRES+i)}")
    assert li == len(loads) and not bg
    stamp(10)
    T = KB
    XU = KB + 16
    l1, lj = newlab("x1"), newlab("xj")
    k(f"s_cmp_eq_u32 {S(sNH)}, 1")
    h0 = list(k.hist)
    k(f"s_cbranch_scc1 {l1}")
    for hf in range(2):
        if hf:
            k.label(l1)
            k.hist = h0
        for jl in range(4):
            k(f"ds_write_b128 {V(vEXW)}, {V(ACC+16*(1-hf)+4*jl,4)} offset:{1024*jl}")
        for i in range(8):
            pk("add", V(XU + 2 * i, 2), V(XU + 2 * i, 2), V(ACC + 16 * hf + 2 * i, 2))
        if not hf:
            k(f"s_branch {lj}")
    k.label(lj)
    k.wait(lg=0)
    k("s_barrier")
    for jl in range(4):
        k(f"ds_read_b128 {V(T+4*jl,4)}, {V(vEXR)} offset:{1024*jl}")
    k(f"s_mov_b32 {S(sT0)}, {hex(X1T + layer*XQ_SZ)}")
    k(f"s_mov_b32 {S(sT1)}, {hex(X1T + layer*XQ_SZ + 4*114688)}")
    for p in range(2):
        for i in range(4):
            pk("add", V(XU + 8 * p + 2 * i, 2), V(XU + 8 * p + 2 * i, 2), V(T + 8 * p + 2 * i, 2))
        for i in range(4):
            k(f"v_cvt_pk_bf16_f32 {V(ACC+4*p+i)}, {V(XU+8*p+2*i)}, {V(XU+8*p+2*i+1)}")
        k(f"buffer_store_dwordx4 {V(ACC+4*p,4)}, {V(vCO)}, {S(SRD_WS,4)}, {S(sT0+p)} offen sc1", tag="st")
    stamp(11)

def handoff(off, a=None, b=None, sb=12):
    if a:
        a()
    k.wait_tag_vm("st")
    k.wait(lg=0)
    k("s_barrier")
    wave0(lambda: flag_all(off))
    stamp(sb)
    if b:
        b()
    else:
        k.wait(vm=0)
        k("s_barrier")
    stamp(sb + 1)
    k(f"s_add_u32 {S(sT0)}, {S(sREP)}, {hex(off)}")
    poll_load(WK, vFP, S(sT0))
    poll_check(WK, vFP, S(sT0))
    k("s_barrier")
    stamp(sb + 2)

def handoff1(layer):
    if layer == 0:
        def a():
            n = (28 - NW1[0]) // 2
            k.wait_tag_vm(("w2", 55))
            tr = w2_tr_ops(14, 28)
            for i in range(n):
                w1_load()
                run(tr, len(tr) // (n - i))
            run(tr)
        def b():
            af = addr_ffn()
            n = 28 - NW1[0]
            for i in range(n):
                w1_load()
                run(af, len(af) // (n - i))
            run(af)
        handoff(0x8000, a, b)
    else:
        handoff(0x18000)

G2RES = WK + 100
G2R = WK + 108
vFL = WK + 97
vPL2 = WK + 96

def gflag(layer, half):
    k("s_mov_b64 exec, 1")
    k(f"buffer_store_dword {V(vONE)}, {V(vFL)}, {S(SRD_WS,4)}, {S(sFG)} offen offset:{1024*half} sc1")
    k("s_mov_b64 exec, -1")
    if opt("pfh", 0):
        k(f"s_add_u32 {S(sT2)}, {S(sHS)}, {half*2*112*1024}")
        k(f"buffer_load_dword {V(WK+98)}, {V(vPFH)}, {S(SRD_WS,4)}, {S(sT2)} offen sc1")
        k.vm[-1] = (set(), None)

def ffn(layer):
    k.c("=== GEMM1")
    ACC = WK
    EP = WK + 64
    vXS = WK + 80
    vB0, vB1 = WK + 81, WK + 82
    if layer:
        k(f"s_add_u32 {S(sXT)}, {S(sXT)}, {hex(XQ_SZ)}")
    if opt("pfx", 0):
        k(f"buffer_load_dword {V(WK+98)}, {V(vPFX)}, {S(SRD_WS,4)}, {S(sXT)} offen sc1")
        k.vm[-1] = (set(), None)
    k(f"v_add_u32 {V(vXS)}, {S(sXT)}, {V(vL16)}")
    k(f"s_lshl_b32 {S(sT0)}, {S(sW)}, 10")
    k(f"s_mov_b32 m0, {S(sT0)}")
    nx = [0]
    def dma():
        d = nx[0]
        nx[0] += 1
        k(f"buffer_load_dwordx4 {V(vXS)}, {S(SRD_WS,4)}, m0 offen sc1 lds", tag=("x", d))
        if d == 13:
            k(f"v_subrev_u32 {V(vXS)}, 32, {V(vXS)}")
        if d < 27:
            k(f"s_add_u32 m0, m0, {4096 + (32 if d == 13 else 0)}")
    NUP = opt("nup", 9)
    for st in range(NUP):
        dma()
    k(f"v_add_u32 {V(vB0)}, {XHALF}, {V(vXA0)}")
    k(f"v_add_u32 {V(vB1)}, {XHALF}, {V(vXA1)}")
    k(f"s_lshl_b32 {S(sT0)}, {S(sJ)}, 2")
    k(f"s_add_u32 {S(sT0)}, {S(sT0)}, {S(sW)}")
    k(f"s_lshl_b32 {S(sT0)}, {S(sT0)}, 4")
    k(f"v_mov_b32 {V(vFL)}, {S(sT0)}")
    if layer:
        k(f"s_add_u32 {S(sHS)}, {S(sHS)}, {hex(H_SZ)}")
        k(f"s_add_u32 {S(sFG)}, {S(sFG)}, 0x8000")
        for a in range(4):
            k(f"s_add_u32 {S(sHG+a)}, {S(sHG+a)}, {hex(H_SZ)}")
    mf = [(0, q, ks) for ks in range(25) for q in range(2)]
    mf += [(0, q, ks) for q in range(2) for ks in range(25, 28)]
    mf += [(1, q, ks) for q in range(2) for ks in range(28)]
    NR = 8
    LEAD = opt("g1lead", 5)
    bars = [2, 5, 9, 14, 28]
    ready = [0]
    def rd(n):
        half, q, ks = mf[n]
        st = 14 * half + ks // 2
        if st >= ready[0]:
            nb = [b for b in bars if b > st][0]
            assert nx[0] >= nb, (n, nb, nx[0])
            k.wait_tag_vm(("x", nb - 1))
            k("s_barrier")
            ready[0] = nb
        va = ((vXA0, vXA1), (vB0, vB1))[half][q]
        for u in range(2):
            k(f"ds_read_b64_tr_b16 {A(AX+4*(n%NR)+2*u,2)}, {V(va)} offset:{ks*2048+u*512}")
    def epi(tile):
        ops = []
        e = EP + 8 * (tile & 1)
        st = []
        for a in range(2):
            for i in range(4):
                ops.append(f"v_cvt_pk_bf16_f32 {V(e+4*a+i)}, {V(ACC+16*tile+8*a+2*i)}, {V(ACC+16*tile+8*a+2*i+1)}")
            for i in range(4):
                ops.append(f"v_pk_max_i16 {V(e+4*a+i)}, {V(e+4*a+i)}, 0")
            if a == 0:
                ops.append(f"s_add_u32 {S(sT1)}, {S(sHS)}, {tile*112*1024}")
            ops.append((f"buffer_store_dwordx4 {V(e+4*a,4)}, {V(vL16)}, {S(SRD_WS,4)}, {S(sT1)} offen offset:{1024*a} sc1", ("h", tile)))
        return ops
    pend = []
    for n in range(LEAD):
        rd(n)
    stamp(27)
    for n, (half, q, ks) in enumerate(mf):
        tile = 2 * half + q
        d = V(ACC + 16 * tile, 16)
        k(f"v_mfma_f32_32x32x16_bf16 {d}, {V(W1R+4*ks,4)}, {A(AX+4*(n%NR),4)}, {d if ks else 0}")
        if n + LEAD < len(mf):
            rd(n + LEAD)
        if n % 2 == 0 and nx[0] < 28:
            dma()
        if n == 54:
            pend += epi(0) + epi(1)
        if n == 86:
            pend += epi(2)
        run(pend, 3)
        if n == opt("flagA", 96):
            k.wait_tag_vm(("h", 1))
            gflag(layer, 0)
    assert not pend and nx[0] == 28
    F = WK
    vS, vQ, vT = WK + 56, WK + 57, WK + 58
    srd_ = [f"ds_read_b64_tr_b16 {V(F+4*ks+2*u,2)}, {V(vST)} offset:{ks*4096+u*512}" for ks in range(14) for u in range(2)]
    run(srd_, 12)
    e3 = epi(3)
    run(e3, 9)
    poll_load(vPL2, vF2P, S(sFG))
    run(e3)
    stamp(15)
    run(srd_)
    for h in range(2):
        for u in range(2):
            k(f"ds_read_b64_tr_b16 {V(G2RES+4*h+2*u,2)}, {V(vRES)} offset:{h*XHALF+u*512}")
    st = [f"v_mov_b32 {V(vS)}, 0", f"v_mov_b32 {V(vQ)}, 0"]
    for i in range(56):
        st.append(f"v_dot2c_f32_bf16 {V(vS)}, {S(sONES)}, {V(F+i)}")
        st.append(f"v_dot2c_f32_bf16 {V(vQ)}, {V(F+i)}, {V(F+i)}")
    for r in (vS, vQ):
        st += [f"v_mov_b32 {V(vT)}, {V(r)}", f"v_permlane32_swap_b32 {V(r)}, {V(vT)}", f"v_add_f32 {V(r)}, {V(r)}, {V(vT)}",
               f"v_mov_b32 {V(vT)}, {V(r)}", f"v_permlane16_swap_b32 {V(r)}, {V(vT)}", f"v_add_f32 {V(r)}, {V(r)}, {V(vT)}"]
    st += [f"v_mul_f32 {V(vS)}, {f2u(1.0/448)}, {V(vS)}",
           f"v_mul_f32 {V(vQ)}, {f2u(1.0/448)}, {V(vQ)}",
           f"v_fma_f32 {V(vQ)}, -{V(vS)}, {V(vS)}, {V(vQ)}",
           f"v_max_f32 {V(vQ)}, 0, {V(vQ)}",
           f"v_add_f32 {V(vQ)}, {f2u(1e-5)}, {V(vQ)}",
           f"v_rsq_f32 {V(vQ)}, {V(vQ)}",
           f"v_mov_b32 {V(G2R)}, {V(vQ)}",
           f"v_mov_b32 {V(G2R+2)}, {V(vQ)}",
           f"v_mov_b32_dpp {V(G2R)}, {V(vQ)} row_ror:8 row_mask:0xf bank_mask:0xc",
           f"v_mov_b32_dpp {V(G2R+2)}, {V(vQ)} row_ror:8 row_mask:0xf bank_mask:0x3"]
    run(st, opt("stpre", 50))
    poll_check(vPL2, vF2P, S(sFG))
    stamp(17)

    k.c("=== GEMM2")
    ring = [("a", AX + 4 * i) for i in range(8)] + [("v", WK + 64 + 4 * i) for i in range(8)]
    NR = opt("g2ring", 14)
    ring = ring[:NR]
    rn = lambda i: (V if ring[i % NR][0] == "v" else A)(ring[i % NR][1], 4)
    nl = [0]
    def ld():
        i = nl[0]
        nl[0] += 1
        half, s = divmod(i, 28)
        a, r = divmod(s, 7)
        if r in (0, 4):
            k(f"s_add_u32 {S(sT0)}, {S(sHG+a)}, {half*2*112*1024 + r*1024}")
        k(f"buffer_load_dwordx4 {rn(i)}, {V(vL16)}, {S(SRD_WS,4)}, {S(sT0)} offen offset:{1024*(r%4)}" + ("", " sc1", " nt")[opt("hld", 1)])
    def red_write(half):
        return [f"ds_write_b128 {V(vRW)}, {V(ACC+32*half+4*G,4)} offset:{half*RED_H+G*RED_G}" for G in range(8)]
    def red_read(half):
        return [f"ds_read_b128 {V(ACC+32*half+8*w+4*g,4)}, {V(vRR)} offset:{half*RED_H+w*RED_W+512*g}" for w in range(4) for g in range(2)]
    def bar():
        k.wait(lg=0)
        k("s_barrier")
    def unpack(half, u):
        o = []
        for i in range(4):
            o.append(f"v_lshlrev_b32 {V(u+2*i)}, 16, {V(G2RES+4*half+i)}")
            o.append(f"v_and_b32 {V(u+2*i+1)}, {S(sHIM)}, {V(G2RES+4*half+i)}")
        return o
    def fin(half, u, pre):
        a = ACC + 32 * half
        ops = []
        P = lambda d, x, y: f"v_pk_add_f32 {V(d,2)}, {V(x,2)}, {V(y,2)}"
        for i in range(4):
            ops.append(P(a + 2 * i, a + 2 * i, a + 8 + 2 * i))
        if not pre:
            ops += unpack(half, u)
        for i in range(4):
            ops.append(P(a + 16 + 2 * i, a + 16 + 2 * i, a + 24 + 2 * i))
        for i in range(4):
            ops.append(P(a + 2 * i, a + 2 * i, a + 16 + 2 * i))
        for i in range(4):
            ops.append(f"v_pk_fma_f32 {V(a+2*i,2)}, {V(a+2*i,2)}, {V(G2R+2*half,2)}, {V(u+2*i,2)} op_sel_hi:[1,0,1]")
        for i in range(4):
            ops.append(f"v_cvt_pk_bf16_f32 {V(a+24+i)}, {V(a+2*i)}, {V(a+2*i+1)}")
        if layer == 0:
            ops += quad_shuffle([(a + 28, a + 24)])
            ops.append(f"s_mov_b32 {S(sT1)}, {hex(XQ+XQ_SZ)}")
            ops.append((f"buffer_store_dwordx4 {V(a+28,4)}, {V(vOQ)}, {S(SRD_WS,4)}, {S(sT1)} offen offset:{256*half} sc1", "st"))
            ops += stats_ops(a + 24, 4, a, a + 1, a + 2)
            def at():
                k(f"s_mov_b32 {S(sT1)}, {hex(STATS[1])}")
                k("s_mov_b32 exec_lo, 0xff")
                k("s_mov_b32 exec_hi, 0xff")
                k(f"buffer_atomic_add_f64 {V(a+2,2)}, {V(vAT)}, {S(SRD_WS,4)}, {S(sT1)} offen offset:{512*half} sc1", tag="st")
                k("s_mov_b64 exec, -1")
            ops.append(at)
        else:
            ops.append(f"s_movk_i32 {S(sT1)}, {8*896*half}")
            ops.append(f"buffer_store_dwordx4 {V(a+24,4)}, {V(vOO)}, {S(SRD_OUT,4)}, {S(sT1)} offen")
        return ops
    NUP2 = opt("nup2", 10)
    for i in range(NUP2):
        ld()
        run(st, (len(st) + NUP2 - i - 1) // (NUP2 - i))
    assert not st
    k.wait_tag_vm(("h", 3))
    gflag(layer, 1)
    stamp(16)
    PB = opt("pollB", 8)
    order = [(i, dt) for i in range(52) for dt in range(2)] + [(i, dt) for dt in range(2) for i in range(52, 56)]
    pend = []
    okB = False
    for n, (i, dt) in enumerate(order):
        half, s = divmod(i, 28)
        d = V(ACC + 32 * half + 16 * dt, 16)
        k(f"v_mfma_f32_32x32x16_bf16 {d}, {A((s*2+dt)*4,4)}, {rn(i)}, {d if s else 0}")
        if dt == 1 and i < 52:
            if i == 3:
                bar()
            if i == PB:
                poll_load(vPL2, vF2P, S(sFG), 1024)
            if nl[0] == 28 and not okB and i > PB and not any(f"v{vPL2}" in p[0] for p in k.vm[1:]):
                poll_check(vPL2, vF2P, S(sFG), 1024)
                okB = True
            if i in (0, 13, 27, 41):
                stamp({0: 6, 13: 8, 27: 23, 41: 26}[i])
            if i == 29:
                pend += red_write(0) + [None] * 4 + [bar] + red_read(0) + [None] * 6 + fin(0, ACC + 8, False)
            if i == 48:
                assert not pend
                pend += unpack(1, ACC + 8)
        if nl[0] < 56 and nl[0] - NR < i + dt and (nl[0] < 28 or okB):
            ld()
        run(pend, 3)
        if n == 110:
            pend += red_write(1)[:4]
    run(pend)
    assert nl[0] == 56
    stamp(18)
    run(red_write(1)[4:])
    bar()
    run(red_read(1) + fin(1, ACC + 8, True))
    stamp(19)

def finish():
    if ENC >= 0:
        k.wait(vm=0)
        stamp(22)
        k(f"s_cmp_lg_u32 {S(sWG)}, 100")
        k("s_cbranch_scc1 L_end")
        k("s_sub_u32 s47, s47, s46")
        k("s_mul_i32 s47, s47, 100")
        k("s_min_u32 s47, s47, 1000000")
        k(f"s_memrealtime {S(sTM,2)}")
        k.wait(lg=0)
        k(f"s_mov_b32 s46, {S(sTM)}")
        k.label("L_spin")
        k(f"s_memrealtime {S(sTM,2)}")
        k.wait(lg=0)
        k(f"s_sub_u32 {S(sT0)}, {S(sTM)}, s46")
        k(f"s_cmp_lt_u32 {S(sT0)}, s47")
        k("s_cbranch_scc1 L_spin")
    if DIAG:
        k.wait(vm=0)
        stamp(22)
        stamp(30, True)
        k(f"s_lshl_b32 {S(sT0)}, {S(sWG)}, 10")
        k(f"s_add_u32 {S(sT0)}, {S(sT0)}, {hex(STAMP)}")
        k(f"v_lshlrev_b32 {V(WK)}, 2, {V(vTID)}")
        k(f"buffer_store_dword {V(vSTAMP)}, {V(WK)}, {S(SRD_WS,4)}, {S(sT0)} offen")
    k.label("L_end")
    k("s_endpgm")

prologue()
main_start()
kgen()
conv(0)
handoff1(0)
ffn(0)
handoff(0x10000, sb=20)
LAY[0] = 1
conv_loads(1)
conv(1)
handoff1(1)
ffn(1)
finish()
LAY[0] = 0
helper()
body = list(k.lines)
body += [".p2align 4", ".type L_table,@object", "L_table:"]
body += [".long " + ",".join(hex(w) for w in r) for r in table_words()]
body += ["L_table_end:"]

ref = open("cdna_kernels/%s.s.ref" % NAME).read().splitlines()
hdr = [l for l in ref if l.startswith(";") and "@launch" not in l]
head = f""".amdgcn_target "amdgcn-amd-amdhsa--gfx950"
.text
.globl {NAME}_kernel
.p2align 8
.type {NAME}_kernel,@function
{NAME}_kernel:
"""
if opt("align", 1):
    body = align(body, head)
out = "\n".join(hdr) + f"\n; @launch grid=(256,1,1) block=(256,1,1) lds={LDS_BYTES}\n"
out += head + "\n".join(body) + "\n"
out += f""".section .rodata,"a"
.p2align 6
.amdhsa_kernel {NAME}_kernel
  .amdhsa_next_free_vgpr 512
  .amdhsa_next_free_sgpr 102
  .amdhsa_accum_offset 256
  .amdhsa_group_segment_fixed_size 0
  .amdhsa_kernarg_size 120
  .amdhsa_user_sgpr_count 2
  .amdhsa_user_sgpr_kernarg_segment_ptr 1
  .amdhsa_system_sgpr_workgroup_id_x 1
.end_amdhsa_kernel
"""
dst = [a for a in sys.argv[1:] if not a.startswith("--")]
dst = dst[0] if dst else "cdna_kernels/%s.s" % NAME
open(dst, "w").write(out)
print("instructions:", k.nins, "->", dst)
```

```python
import sys, struct
from emit import Asm, V, A, S
from align import align

NAME = "interleave_layers__ssm_conv_s4__dense_activation_relu__prompt"
DIAG = "--diag" in sys.argv
OPT = {}
for a in sys.argv:
    if a.startswith("--") and "=" in a:
        n, v = a[2:].split("=")
        OPT[n] = int(v)
def opt(n, d):
    return OPT.get(n, d)

def f2u(x):
    return "0x%08x" % struct.unpack("<I", struct.pack("<f", x))[0]

FLG_A = 0x0
FLG_G = 0x20000
STATS = (0x38000, 0x30000)
XQ = 0x40000
XQ_SZ = 0x1C0000
X1T = 0x3C0000
HB = 0x740000
H_SZ = 0x700000
W1C = 0x1540000
FLG_W = 0x16C8000
STAMP = 0x1700000
W2T = 0x1740000
WS_BYTES = 0x1810000

XHALF = 57344 + 32
SCR = 114816
SCR_ST = 8960
KC0 = 4608
ROW_ST = 544
UARR = SCR + 4 * SCR_ST
U_ST = 4576
LDS_BYTES = 163840
WREG = 28672
RED_G = 1152
RED_W = 8 * RED_G
RED_H = 4 * RED_W

sWG, sW = 2, 3
SRD_WS, SRD_OUT, SRD_W1, SRD_W2, SRD_X0, SRD_DBG = 4, 8, 12, 16, 20, 24
sCP, sGAM, sJ, sHH, sDS, sROT = 58, 59, 60, 61, 62, 63
sONES, sHIM = 64, 65
sT0, sT1, sT2, sT3, sT4, sT5 = 66, 67, 68, 69, 70, 71
sLDT, sDSK = 72, 73
sREP, sXQi, sW2B, sXT, sHL, sHS, sFG = 74, 75, 76, 77, 78, 79, 80
sSPIN = 81
sC0, sC1 = 82, 83
sPC = 84
sTM = 86
sWL = 88
sW2O = 89
sSCR, sSCH = 90, 95
sPERM0, sPERM1 = 91, 92
sNH, sCH = 93, 94
sROLE = 100
sKO = 28
sW2L, sTBL = 96, 97

vTID, vL, vL16 = 0, 1, 2
vCIN, vUW, vXW = 3, 4, 5
vKF = 6
vUF, vXR, vCO, vEXW, vEXR = 10, 11, 12, 13, 14
vXA0, vXA1 = 15, 16
vST, vRES, vRW, vRR, vOQ, vOO, vAT = 17, 18, 19, 20, 21, 22, 23
vFW, vFP, vF2P = 24, 25, 26
vCX, vPFH, vPFX = 27, 28, 29
vSTAMP = 30
vONE = 31
WK = 32
W1R = 144
AX = 224
vW2S, vW2R = WK + 104, WK + 105
vDUM = WK + 107
vWF = WK + 108

k = Asm()
SPIN_MAX = 1 << 16
LAY = [0]

ENC = opt("enc", -1)
def stamp(idx, cyc=False):
    if ENC >= 0 and not cyc and idx + 32 * LAY[0] in (0, ENC):
        k.wait(lg=0)
        k(f"s_memrealtime {S(sTM,2)}")
        k.wait(lg=0)
        k(f"s_mov_b32 {S(46 if idx + 32*LAY[0] == 0 else 47)}, {S(sTM)}")
    if not DIAG:
        return
    k.wait(lg=0)
    k(f"{'s_memtime' if cyc != bool(opt('cyc', 0)) else 's_memrealtime'} {S(sTM,2)}")
    k.wait(lg=0)
    k(f"v_writelane_b32 {V(vSTAMP)}, {S(sTM)}, {idx + 32*LAY[0]}")

def srd(base, ptr, nbytes):
    k(f"s_mov_b32 {S(base)}, {S(ptr)}")
    k(f"s_and_b32 {S(base+1)}, {S(ptr+1)}, 0xffff")
    k(f"s_mov_b32 {S(base+2)}, {hex(nbytes)}")
    k(f"s_mov_b32 {S(base+3)}, 0x20000")

_lab = [0]
def newlab(p):
    _lab[0] += 1
    return f"L_{p}_{_lab[0]}"

def branch(op, lab):
    k.fence(1)
    k(f"{op} {lab}")

def label(lab):
    k.fence()
    k.label(lab)

def poll_load(vtmp, vaddr, soff, off=0, srdn=SRD_WS):
    k(f"buffer_load_dword {V(vtmp)}, {V(vaddr)}, {S(srdn,4)}, {soff} offen offset:{off} sc1")

def poll_check(vtmp, vaddr, soff, off=0, srdn=SRD_WS):
    lp, ok = newlab("poll"), newlab("ok")
    k(f"v_cmp_eq_u32 vcc, 0, {V(vtmp)}")
    saved = list(k.vm)
    k.skip_begin("s_cbranch_vccz", ok)
    k(f"s_mov_b32 {S(sSPIN)}, 0")
    k.label(lp)
    if opt("sleep", 2):
        k(f"s_sleep {opt('sleep', 2)}")
    poll_load(vtmp, vaddr, soff, off, srdn)
    k(f"s_add_u32 {S(sSPIN)}, {S(sSPIN)}, 1")
    k.wait(vm=0)
    k(f"v_cmp_eq_u32 vcc, 0, {V(vtmp)}")
    k(f"s_cmp_gt_u32 {S(sSPIN)}, {SPIN_MAX}")
    k(f"s_cbranch_scc1 {ok}")
    k(f"s_cbranch_vccnz {lp}")
    k.skip_end(ok)
    k.vm = saved

def run(ops, n=None):
    c = 0
    while ops and (n is None or c < n):
        o = ops.pop(0)
        if callable(o):
            o()
        elif isinstance(o, tuple):
            k(o[0], tag=o[1])
        elif o is not None:
            k(o)
        c += 1

def stats_ops(P, n, vS, vQ, vT):
    o = [f"v_mov_b32 {V(vS)}, 0", f"v_mov_b32 {V(vQ)}, 0"]
    for i in range(n):
        o.append(f"v_dot2c_f32_bf16 {V(vS)}, {S(sONES)}, {V(P+i)}")
        o.append(f"v_dot2c_f32_bf16 {V(vQ)}, {V(P+i)}, {V(P+i)}")
    o += [f"v_permlane32_swap_b32 {V(vS)}, {V(vQ)}",
          f"v_add_f32 {V(vS)}, {V(vS)}, {V(vQ)}",
          f"v_mov_b32 {V(vT)}, {V(vS)}",
          f"v_permlane16_swap_b32 {V(vS)}, {V(vT)}",
          f"v_add_f32 {V(vS)}, {V(vS)}, {V(vT)}",
          f"v_add_f32_dpp {V(vS)}, {V(vS)}, {V(vS)} row_ror:8 row_mask:0xf bank_mask:0xf",
          f"v_cvt_f64_f32 {V(vT,2)}, {V(vS)}"]
    return o

def quad_shuffle(pairs):
    D = " row_mask:0xf bank_mask:0xf"
    o = ["s_mov_b32 vcc_lo, 0x0f0f0f0f", "s_mov_b32 vcc_hi, 0x0f0f0f0f"]
    for d, s in pairs:
        o.append(f"v_cndmask_b32_dpp {V(d)}, {V(s+2)}, {V(s)}, vcc row_ror:4" + D)
        o.append(f"v_cndmask_b32_dpp {V(d+2)}, {V(s+3)}, {V(s+1)}, vcc row_ror:4" + D)
    o.append("s_not_b64 vcc, vcc")
    for d, s in pairs:
        o.append(f"v_cndmask_b32_dpp {V(d+1)}, {V(s)}, {V(s+2)}, vcc row_ror:12" + D)
        o.append(f"v_cndmask_b32_dpp {V(d+3)}, {V(s+1)}, {V(s+3)}, vcc row_ror:12" + D)
    return o

X0R = WK
X0O = WK + 8
vP0A = WK + 16
vP0S = WK + 20
vGO = WK + 28

def p0x_addr():
    k.c("row re-layout unit of this wave: W = 4m+w, octet group a = W%7, rows (blk, j2) = W/7, both hh8")
    t = vP0A
    k(f"s_sub_u32 {S(sT0)}, {S(sWG)}, 32")
    k(f"s_lshl2_add_u32 {S(sT0)}, {S(sT0)}, {S(sW)}")
    k(f"s_mul_i32 {S(sT1)}, {S(sT0)}, 9363")
    k(f"s_lshr_b32 {S(sT1)}, {S(sT1)}, 16")
    k(f"s_mul_i32 {S(sT2)}, {S(sT1)}, 7")
    k(f"s_sub_u32 {S(sT0)}, {S(sT0)}, {S(sT2)}")
    k(f"s_lshr_b32 {S(sT2)}, {S(sT1)}, 2")
    k(f"s_lshl_b32 {S(sT2)}, {S(sT2)}, 6")
    k(f"s_and_b32 {S(sT3)}, {S(sT1)}, 3")
    k(f"s_lshl1_add_u32 {S(sT2)}, {S(sT3)}, {S(sT2)}")
    k(f"v_and_b32 {V(t+1)}, 0x30, {V(vL16)}")
    k(f"v_bfe_u32 {V(t)}, {V(vL)}, 2, 1")
    k(f"v_add3_u32 {V(t+3)}, {V(t+1)}, {V(t)}, {S(sT2)}")
    k(f"v_mul_u32_u24 {V(t+3)}, 896, {V(t+3)}")
    k(f"v_lshrrev_b32 {V(t+2)}, 3, {V(vL)}")
    k(f"v_lshl_add_u32 {V(t+3)}, {V(t+2)}, 4, {V(t+3)}")
    k(f"s_lshl_b32 {S(sT2)}, {S(sT0)}, 7")
    k(f"v_add_u32 {V(t+3)}, {S(sT2)}, {V(t+3)}")
    k(f"v_lshl_add_u32 {V(t)}, {V(t)}, 7, {V(t+1)}")
    k(f"v_lshrrev_b32 {V(t+2)}, 5, {V(vL)}")
    k(f"v_lshl_add_u32 {V(t)}, {V(t+2)}, 3, {V(t)}")
    k(f"s_lshl_b32 {S(sT2)}, {S(sT1)}, 8")
    k(f"v_add_u32 {V(t)}, {S(sT2)}, {V(t)}")
    k(f"v_lshrrev_b32 {V(t+2)}, 2, {V(vL)}")
    k(f"v_lshl_add_u32 {V(t+1)}, {V(t+2)}, 14, {V(t+1)}")
    k(f"s_lshl_b32 {S(sT0)}, {S(sT0)}, 18")
    k(f"s_lshl_b32 {S(sT1)}, {S(sT1)}, 7")
    k(f"s_add_u32 {S(sT0)}, {S(sT0)}, {S(sT1)}")
    k(f"v_add_u32 {V(t+1)}, {S(sT0)}, {V(t+1)}")

def p0x_loads():
    k(f"s_movk_i32 {S(sT0)}, {8*896}")
    k(f"buffer_load_dwordx4 {V(X0R,4)}, {V(vP0A+3)}, {S(SRD_X0,4)}, 0 offen")
    k(f"buffer_load_dwordx4 {V(X0R+4,4)}, {V(vP0A+3)}, {S(SRD_X0,4)}, {S(sT0)} offen")

def p0x_body():
    t = vP0A
    run(quad_shuffle([(X0O + 4 * a, X0R + 4 * a) for a in range(2)]))
    k(f"s_mov_b32 {S(sT0)}, {hex(XQ)}")
    for a in range(2):
        k(f"buffer_store_dwordx4 {V(X0O+4*a,4)}, {V(t+1)}, {S(SRD_WS,4)}, {S(sT0)} offen offset:{64*a} sc1")
    s0 = stats_ops(X0R, 4, vP0S, vP0S + 1, vP0S + 2)
    s1 = stats_ops(X0R + 4, 4, vP0S + 4, vP0S + 5, vP0S + 6)
    while s0:
        run(s0, 1)
        run(s1, 1)

def p0x_atomics():
    poll_check(vGO, vGO + 1, 0, 0, SRD_DBG)
    k(f"s_mov_b32 {S(sT0)}, {hex(STATS[0])}")
    k("s_mov_b32 exec_lo, 0xff")
    k("s_mov_b32 exec_hi, 0xff")
    for a in range(2):
        k(f"buffer_atomic_add_f64 {V(vP0S+4*a+2,2)}, {V(vP0A)}, {S(SRD_WS,4)}, {S(sT0)} offen offset:{64*a} sc1", tag="st")
    k("s_mov_b64 exec, -1")

def flag_all(off):
    k(f"s_mov_b32 {S(sT0)}, {hex(off)}")
    k(f"s_mov_b64 exec, 0xff")
    k(f"buffer_store_dword {V(vONE)}, {V(vFW)}, {S(SRD_WS,4)}, {S(sT0)} offen sc1")
    k(f"s_mov_b64 exec, -1")

ND = [0]
def w2_dma():
    d = ND[0]
    ND[0] += 1
    g, r = divmod(d // 2, 7)
    if d == 0:
        k(f"s_mul_i32 {S(sT4)}, {S(sW)}, {WREG}")
        k(f"s_mov_b32 m0, {S(sT4)}")
    else:
        k(f"s_add_u32 m0, m0, 1024")
    if d == 14:
        k(f"s_add_u32 {S(sW2B)}, {S(sW2B)}, {7*14336}")
    if d % 2 == 0:
        k(f"s_mul_i32 {S(sW2O)}, {S(sKO + r)}, 14")
        k(f"s_add_u32 {S(sW2O)}, {S(sW2O)}, {S(sW2B)}")
    else:
        k(f"s_add_u32 {S(sW2O)}, {S(sW2O)}, {8*896}")
    k(f"buffer_load_dwordx4 {V(vW2S)}, {S(SRD_W2,4)}, {S(sW2O)} offen lds", tag=("w2", d))

NW2 = [0]
def w2_load():
    n = NW2[0]
    NW2[0] += 1
    s_, dt = divmod(n, 2)
    g, r = divmod(s_, 7)
    if n == 14:
        k(f"s_add_u32 {S(sW2L)}, {S(sW2L)}, 14336")
    if dt == 0:
        k(f"s_lshl1_add_u32 {S(sW2O)}, {S(sKO + r)}, {S(sW2L)}")
    k(f"buffer_load_dwordx4 {A(112+4*n,4)}, {V(vL16)}, {S(SRD_WS,4)}, {S(sW2O)} offen offset:{1024*dt} sc1")

def w2_tr_ops(lo, hi):
    return [f"ds_read_b64_tr_b16 {A((s*2+dt)*4+2*u,2)}, {V(vW2R+dt)} offset:{(s%14)*2048+u*1024}"
            for s in range(lo, hi) for dt in range(2) for u in range(2)]

NW1 = [0]
def w1_load():
    ks = NW1[0]
    NW1[0] += 1
    k(f"buffer_load_dwordx4 {V(W1R+4*ks,4)}, {V(vL16)}, {S(SRD_WS,4)}, {S(sWL)} offen offset:{1024*(ks%4)} sc1")
    if ks % 4 == 3:
        k(f"s_add_u32 {S(sWL)}, {S(sWL)}, 4096")

def prologue():
    k(f"s_getpc_b64 {S(sPC,2)}")
    k.label("L_pc")
    k(f"s_cmp_ge_u32 {S(sWG)}, 256")
    k("s_cbranch_scc1 L_end")
    k("s_load_dwordx16 s[28:43], s[0:1], 0")
    k("s_load_dwordx8 s[44:51], s[0:1], 64")
    k("s_load_dwordx4 s[52:55], s[0:1], 96")
    k("s_load_dwordx2 s[56:57], s[0:1], 112")
    k.c("wave 0 of each helper pulls a quarter of the code into L2")
    k(f"s_cmp_ge_u32 {S(sWG)}, 32")
    k("s_cbranch_scc1 L_nopf")
    k(f"v_cmp_gt_u32 vcc, 64, {V(vTID)}")
    k(f"s_lshr_b32 {S(sT0)}, {S(sWG)}, 3")
    k(f"s_lshl_b32 {S(sT0)}, {S(sT0)}, 7")
    k(f"v_lshl_add_u32 {V(vL16)}, {V(vTID)}, 9, {S(sT0)}")
    k("s_cbranch_vccz L_nopf")
    for q in range(2):
        k(f"v_min_u32 {V(vL16)}, L_table_end-L_pc-4, {V(vL16)}")
        k(f"global_load_dword {V(vDUM)}, {V(vL16)}, {S(sPC,2)}")
        k.vm = []
        if q == 0:
            k(f"v_add_u32 {V(vL16)}, 0x8000, {V(vL16)}")
    k.label("L_nopf")
    k(f"v_lshrrev_b32 {V(vONE)}, 6, {V(vTID)}")
    k(f"v_and_b32 {V(vL)}, 63, {V(vTID)}")
    k(f"v_readfirstlane_b32 {S(sW)}, {V(vONE)}")
    k(f"v_lshlrev_b32 {V(vL16)}, 4, {V(vL)}")
    k(f"v_mov_b32 {V(vONE)}, 1")
    if DIAG:
        k(f"v_mov_b32 {V(vSTAMP)}, 0")
    k(f"s_mov_b32 {S(sONES)}, 0x3f803f80")
    k(f"s_mov_b32 {S(sHIM)}, 0xffff0000")
    k(f"s_sub_u32 {S(sT0)}, {S(sWG)}, 32")
    k(f"s_and_b32 {S(sT1)}, {S(sT0)}, 7")
    k(f"s_lshr_b32 {S(sT0)}, {S(sT0)}, 3")
    k(f"s_mul_i32 {S(sCP)}, {S(sT1)}, 28")
    k(f"s_add_u32 {S(sCP)}, {S(sCP)}, {S(sT0)}")
    k(f"s_cmp_ge_u32 {S(sT0)}, 14")
    k(f"s_cselect_b32 {S(sT2)}, 1, 0")
    k(f"s_cselect_b32 {S(sT3)}, 14, 0")
    k(f"s_lshl_b32 {S(sGAM)}, {S(sT1)}, 1")
    k(f"s_add_u32 {S(sGAM)}, {S(sGAM)}, {S(sT2)}")
    k(f"s_sub_u32 {S(sJ)}, {S(sT0)}, {S(sT3)}")
    k(f"s_and_b32 {S(sHH)}, {S(sJ)}, 1")
    k(f"s_lshr_b32 {S(sDS)}, {S(sJ)}, 1")
    k(f"s_and_b32 {S(sNH)}, {S(sW)}, 1")
    k(f"s_lshr_b32 {S(sCH)}, {S(sW)}, 1")
    k(f"s_lshl_b32 {S(sREP)}, {S(sT1)}, 12")
    k(f"s_lshl_b32 {S(sT0)}, {S(sWG)}, 4")
    k(f"v_lshlrev_b32 {V(vFW)}, 12, {V(vL)}")
    k(f"v_add_u32 {V(vFW)}, {S(sT0)}, {V(vFW)}")
    p0x_addr()
    k(f"v_and_b32 {V(vGO+1)}, 3, {V(vL)}")
    k(f"v_lshlrev_b32 {V(vGO+1)}, 6, {V(vGO+1)}")
    k(f"s_lshl_b32 {S(sT0)}, {S(sCP)}, 10")
    k(f"v_lshl_add_u32 {V(PRM+6)}, {V(vTID)}, 2, {S(sT0)}")
    k.wait(lg=0)
    srd(SRD_X0, 28, 2048 * 896)
    srd(SRD_WS, 56, WS_BYTES)
    srd(SRD_DBG, 54, 256)
    stamp(0)
    stamp(30, True)
    k(f"s_cmp_ge_u32 {S(sWG)}, 32")
    branch("s_cbranch_scc1", "L_main")
    z = HZ
    for i in range(4):
        k(f"v_mov_b32 {V(z+i)}, 0")
    k(f"s_lshl_b32 {S(sT5)}, {S(sWG)}, 7")
    k(f"s_add_u32 {S(sT5)}, {S(sT5)}, {hex(FLG_W)}")
    l1, l2 = newlab("h1"), newlab("h2")
    k(f"s_cmp_lg_u32 {S(sW)}, 1")
    branch("s_cbranch_scc1", l1)
    k(f"s_mul_i32 {S(sT0)}, {S(sWG)}, 6144")
    k(f"s_add_u32 {S(sT0)}, {S(sT0)}, 0x8000")
    k(f"s_add_u32 {S(sT1)}, {S(sT0)}, 4096")
    for i in range(6):
        k(f"buffer_store_dwordx4 {V(z,4)}, {V(vL16)}, {S(SRD_WS,4)}, {S(sT0+i//4)} offen offset:{1024*(i%4)} sc1")
    k("s_mov_b64 exec, 0xff")
    k(f"buffer_store_dwordx4 {V(z,4)}, {V(vL16)}, {S(SRD_WS,4)}, {S(sT5)} offen sc1")
    k("s_mov_b64 exec, -1")
    label(l1)
    k.forget()
    k(f"s_and_b32 {S(sT2)}, {S(sWG)}, 7")
    k(f"s_cmp_lg_u32 {S(sT2)}, 0")
    branch("s_cbranch_scc1", "L_helper")
    k(f"s_cmp_lt_u32 {S(sW)}, 2")
    branch("s_cbranch_scc1", l2)
    k(f"s_mul_i32 {S(sT0)}, {S(sNH)}, {hex(STATS[0])}")
    k(f"s_lshl_b32 {S(sT1)}, {S(sWG)}, 10")
    k(f"s_add_u32 {S(sT0)}, {S(sT0)}, {S(sT1)}")
    k(f"s_add_u32 {S(sT1)}, {S(sT0)}, 4096")
    for i in range(8):
        k(f"buffer_store_dwordx4 {V(z,4)}, {V(vL16)}, {S(SRD_WS,4)}, {S(sT0+i//4)} offen offset:{1024*(i%4)} sc1")
    stamp(4)
    k.wait(vm=0)
    label(l2)
    k.forget()
    k("s_barrier")
    stamp(5)
    k(f"s_cmp_lg_u32 {S(sW)}, 2")
    branch("s_cbranch_scc1", "L_helper")
    k(f"s_lshl_b32 {S(sT0)}, {S(sWG)}, 3")
    k("s_mov_b64 exec, 1")
    k(f"buffer_store_dword {V(vONE)}, {V(z)}, {S(SRD_DBG,4)}, {S(sT0)} offen sc1")
    k("s_mov_b64 exec, -1")
    branch("s_branch", "L_helper")
    label("L_main")
    k.forget()

def w2_lane_src(d, pitch, t0, t1):
    k(f"v_lshrrev_b32 {V(t0)}, 3, {V(vL)}")
    k(f"v_mul_u32_u24 {V(d)}, {pitch}, {V(t0)}")
    k(f"v_and_b32 {V(t0)}, 7, {V(vL)}")
    k(f"v_bfe_u32 {V(t1)}, {V(vL)}, 4, 1")
    k(f"v_lshlrev_b32 {V(t1)}, 2, {V(t1)}")
    k(f"v_xor_b32 {V(t0)}, {V(t0)}, {V(t1)}")
    k(f"v_lshl_add_u32 {V(d)}, {V(t0)}, 4, {V(d)}")

HZ = WK + 64
def helper():
    label("L_helper")
    k.forget()
    srd(SRD_W1, 48, 448 * 3584)
    srd(SRD_W2, 50, 1792 * 896)
    z = HZ
    F = WK + 112
    G = WK + 168
    t, a1, a2, aE, aO = z + 8, z + 10, z + 11, z + 12, z + 13
    IMG2 = 57344
    w2_lane_src(a1, 3584, t, t + 1)
    w2_lane_src(a2, 896, t, t + 1)
    k(f"s_min_u32 {S(sCP)}, {S(sWG)}, 27")
    k(f"s_mul_i32 {S(sT0)}, {S(sW)}, {112*3584}")
    k(f"s_lshl_b32 {S(sT1)}, {S(sCP)}, 7")
    k(f"s_add_u32 {S(sT0)}, {S(sT0)}, {S(sT1)}")
    k(f"s_mul_i32 {S(sT3)}, {S(sW)}, 14336")
    k(f"s_mov_b32 m0, {S(sT3)}")
    for c in range(14):
        k(f"buffer_load_dwordx4 {V(a1)}, {S(SRD_W1,4)}, {S(sT0)} offen lds", tag="w1")
        k(f"s_add_u32 m0, m0, 1024")
        k(f"s_add_u32 {S(sT0)}, {S(sT0)}, {8*3584}")
    k(f"v_bfe_u32 {V(t+1)}, {V(vL)}, 2, 2")
    k(f"v_lshlrev_b32 {V(t)}, 7, {V(t+1)}")
    k(f"v_bfe_u32 {V(t+1)}, {V(vL)}, 3, 1")
    k(f"v_lshl_add_u32 {V(t)}, {V(t+1)}, 6, {V(t)}")
    k(f"v_bfe_u32 {V(t+1)}, {V(vL)}, 4, 1")
    k(f"v_lshl_add_u32 {V(t)}, {V(t+1)}, 5, {V(t)}")
    k(f"v_and_b32 {V(t+1)}, 3, {V(vL)}")
    k(f"v_lshl_add_u32 {V(t)}, {V(t+1)}, 3, {V(t)}")
    k(f"v_lshrrev_b32 {V(t+1)}, 5, {V(vL)}")
    k(f"v_lshl_add_u32 {V(a1)}, {V(t+1)}, 10, {V(t)}")
    k(f"v_lshl_add_u32 {V(aE)}, {V(t+1)}, 9, {V(t)}")
    k(f"s_lshl_b32 {S(sT0)}, {S(sCH)}, 6")
    k(f"v_xor_b32 {V(a1)}, {S(sT0)}, {V(a1)}")
    k(f"s_mul_i32 {S(sT0)}, {S(sNH)}, 28672")
    k(f"v_add_u32 {V(a1)}, {S(sT0)}, {V(a1)}")
    k(f"s_lshl_b32 {S(sT0)}, {S(sNH)}, 6")
    k(f"v_xor_b32 {V(aE)}, {S(sT0)}, {V(aE)}")
    k(f"v_xor_b32 {V(aO)}, 64, {V(aE)}")
    k(f"s_mul_i32 {S(sT1)}, {S(sW)}, 7")
    k(f"s_lshr_b32 {S(sT0)}, {S(sT1)}, 1")
    k(f"s_lshl_b32 {S(sT0)}, {S(sT0)}, 11")
    k(f"s_add_u32 {S(sT0)}, {S(sT0)}, {IMG2}")
    k(f"v_add_u32 {V(aE)}, {S(sT0)}, {V(aE)}")
    k(f"s_add_u32 {S(sT0)}, {S(sT1)}, 1")
    k(f"s_lshr_b32 {S(sT0)}, {S(sT0)}, 1")
    k(f"s_lshl_b32 {S(sT0)}, {S(sT0)}, 11")
    k(f"s_add_u32 {S(sT0)}, {S(sT0)}, {IMG2}")
    k(f"v_add_u32 {V(aO)}, {S(sT0)}, {V(aO)}")
    poll_load(vGO, vGO + 1, 0, 0, SRD_DBG)
    k.wait(vm=0)
    k("s_barrier")
    stamp(3)
    def f0():
        poll_check(vGO, vGO + 1, 0, 0, SRD_DBG)
        flag_all(0)
    wave0(f0)
    stamp(2)
    k(f"s_cmp_ge_u32 {S(sWG)}, 28")
    branch("s_cbranch_scc1", "L_end2")
    k(f"s_and_b32 {S(sT0)}, {S(sWG)}, 3")
    k(f"s_lshl3_add_u32 {S(sT0)}, {S(sT0)}, {S(sW)}")
    k(f"s_add_u32 {S(sT0)}, {S(sT0)}, 4")
    k(f"s_mul_i32 {S(sT0)}, {S(sT0)}, {56*896}")
    k(f"s_lshr_b32 {S(sT1)}, {S(sWG)}, 2")
    k(f"s_lshl_b32 {S(sT1)}, {S(sT1)}, 7")
    k(f"s_add_u32 {S(sT0)}, {S(sT0)}, {S(sT1)}")
    k(f"s_mul_i32 {S(sT3)}, {S(sW)}, 7168")
    k(f"s_add_u32 m0, {S(sT3)}, {IMG2}")
    for c in range(7):
        k(f"buffer_load_dwordx4 {V(a2)}, {S(SRD_W2,4)}, {S(sT0)} offen lds")
        k(f"s_add_u32 m0, m0, 1024")
        k(f"s_add_u32 {S(sT0)}, {S(sT0)}, {8*896}")
    for ks in range(14):
        for u in range(2):
            k(f"ds_read_b64_tr_b16 {V(F+4*ks+2*u,2)}, {V(a1)} offset:{ks*2048+u*512}")
    c, u_ = z, z + 2
    for i in range(56):
        k(f"v_dot2c_f32_bf16 {V(c)}, {S(sONES)}, {V(F+i)}")
    k(f"v_mov_b32 {V(u_)}, {V(c)}")
    k(f"v_permlane32_swap_b32 {V(c)}, {V(u_)}")
    k(f"v_add_f32 {V(c)}, {V(c)}, {V(u_)}")
    k(f"v_lshlrev_b32 {V(t)}, 2, {V(vTID)}")
    k(f"v_add_u32 {V(t)}, 0x18000, {V(t)}")
    k(f"ds_write_b32 {V(t)}, {V(c)}")
    k(f"v_xor_b32 {V(t)}, 256, {V(t)}")
    k.wait(vm=0, lg=0)
    k("s_barrier")
    k(f"ds_read_b32 {V(u_)}, {V(t)}")
    for i in range(7):
        for u in range(2):
            k(f"ds_read_b64_tr_b16 {V(G+4*i+2*u,2)}, {V(aO if i & 1 else aE)} offset:{(i//2)*2048+u*1024}")
    k(f"s_lshl2_add_u32 {S(sT1)}, {S(sWG)}, {S(sW)}")
    k(f"s_mul_i32 {S(sT0)}, {S(sT1)}, 14336")
    k(f"s_add_u32 {S(sT0)}, {S(sT0)}, {hex(W1C)}")
    k(f"s_mul_i32 {S(sT1)}, {S(sT1)}, 7168")
    k(f"s_add_u32 {S(sT1)}, {S(sT1)}, {hex(W2T)}")
    k(f"v_add_f32 {V(c)}, {V(c)}, {V(u_)}")
    k(f"v_mul_f32 {V(c)}, {f2u(-1.0/448)}, {V(c)}")
    for i in range(56):
        tt = z + 4 + 2 * (i & 1)
        k(f"v_lshlrev_b32 {V(tt)}, 16, {V(F+i)}")
        k(f"v_and_b32 {V(tt+1)}, {S(sHIM)}, {V(F+i)}")
        pk("add", V(tt, 2), V(tt, 2), V(c, 2), bc=(1,))
        k(f"v_cvt_pk_bf16_f32 {V(F+i)}, {V(tt)}, {V(tt+1)}")
        if i % 4 == 3:
            ks = i // 4
            k(f"buffer_store_dwordx4 {V(F+4*ks,4)}, {V(vL16)}, {S(SRD_WS,4)}, {S(sT0)} offen offset:{1024*(ks%4)} sc1", tag="c")
            if ks % 4 == 3:
                k(f"s_add_u32 {S(sT0)}, {S(sT0)}, 4096")
    for i in range(7):
        k(f"buffer_store_dwordx4 {V(G+4*i,4)}, {V(vL16)}, {S(SRD_WS,4)}, {S(sT1)} offen offset:{1024*(i%4)} sc1")
        if i == 3:
            k(f"s_add_u32 {S(sT1)}, {S(sT1)}, 4096")
    k(f"v_mov_b32 {V(z)}, 0")
    for off in (0, 64):
        if off == 0:
            k.wait_tag_vm("c")
        else:
            k.wait(vm=0)
        k("s_barrier")
        def fl():
            k("s_mov_b64 exec, 1")
            k(f"buffer_store_dword {V(vONE)}, {V(z)}, {S(SRD_WS,4)}, {S(sT5)} offen offset:{off} sc1")
            k("s_mov_b64 exec, -1")
        wave0(fl)
        stamp(1 if off == 0 else 25)
    label("L_end2")
    if DIAG:
        k(f"s_lshl_b32 {S(sT0)}, {S(sWG)}, 10")
        k(f"s_add_u32 {S(sT0)}, {S(sT0)}, {hex(STAMP)}")
        k(f"v_lshlrev_b32 {V(WK)}, 2, {V(vTID)}")
        k(f"buffer_store_dword {V(vSTAMP)}, {V(WK)}, {S(SRD_WS,4)}, {S(sT0)} offen")
    k("s_endpgm")

KW = W1R
PRM = KW
TBL = KW + 8
GA = KW + 20
TA = GA + 17
vKW, vKR, vKC, vDSK = KW + 42, KW + 43, KW + 44, KW + 45

def table_words():
    import numpy as np
    def bf16r(m):
        u = struct.unpack("<I", struct.pack("<f", float(m)))[0]
        return (u + 0x7FFF + ((u >> 16) & 1)) >> 16
    pad = lambda q: q + (q >> 5)
    rows = []
    for lam in range(128):
        e = []
        for i in range(17):
            m = 2047 - 16 * lam - i
            e.append(pad(min(m, max(bf16r(m), 0x4300) - 0x4280)) if m >= 0 else 32)
        l = lam & 63
        j, g = l & 15, l >> 4
        base, mul, pst = ((0, 8, 2), (4, 8, 2), (256, 4, 2), (384, 2, 64))[g]
        for yt in range(2):
            for pi in range(2):
                e.append(pad(base + mul * (16 * yt + j) + pi * pst))
        e.append(528 + 132 * g + j)
        e += [0, 0]
        rows.append([e[2 * i] | (e[2 * i + 1] << 16) for i in range(12)])
    out = []
    for qd in range(3):
        for lam in range(128):
            out.append(rows[lam][4 * qd:4 * qd + 4])
    return out

def addr_conv():
    t0, t1, t2, t3 = KW + 100, KW + 101, KW + 102, KW + 103
    r16, g4, cc = KW + 104, KW + 105, KW + 106
    o = []
    e = o.append
    e(f"v_and_b32 {V(r16)}, 15, {V(vL)}")
    e(f"v_lshrrev_b32 {V(g4)}, 4, {V(vL)}")
    e(f"v_and_b32 {V(cc)}, 3, {V(vL)}")
    e(f"s_mul_i32 {S(sSCR)}, {S(sW)}, {SCR_ST}")
    e(f"s_add_u32 {S(sSCR)}, {S(sSCR)}, {SCR}")
    e(f"s_mul_i32 {S(sSCH)}, {S(sCH)}, {2*SCR_ST}")
    e(f"s_add_u32 {S(sSCH)}, {S(sSCH)}, {SCR}")
    e(f"v_lshl_add_u32 {V(vKW)}, {V(vL)}, 3, {S(sSCR)}")
    e(f"v_mul_u32_u24 {V(vKR)}, {ROW_ST}, {V(r16)}")
    e(f"v_lshl_add_u32 {V(vKR)}, {V(g4)}, 4, {V(vKR)}")
    e(f"v_add_u32 {V(vKR)}, {S(sSCR)}, {V(vKR)}")
    e(f"v_and_b32 {V(t0)}, 127, {V(vTID)}")
    e(f"s_add_u32 {S(sT2)}, {S(sSCH)}, {KC0}")
    e(f"v_lshl_add_u32 {V(vKC)}, {V(t0)}, 5, {S(sT2)}")
    e(f"v_lshrrev_b32 {V(t0)}, 5, {V(vL)}")
    e(f"v_bfe_u32 {V(t1)}, {V(vL)}, 2, 2")
    e(f"v_lshlrev_b32 {V(t3)}, 9, {V(t0)}")
    e(f"v_lshl_add_u32 {V(t3)}, {V(t1)}, 7, {V(t3)}")
    e(f"v_bfe_u32 {V(t1)}, {V(vL)}, 3, 1")
    e(f"v_lshl_add_u32 {V(t3)}, {V(t1)}, 6, {V(t3)}")
    e(f"v_bfe_u32 {V(t1)}, {V(vL)}, 4, 1")
    e(f"v_lshl_add_u32 {V(t3)}, {V(t1)}, 5, {V(t3)}")
    e(f"v_lshl_add_u32 {V(t3)}, {V(cc)}, 3, {V(t3)}")
    e(f"s_mul_i32 {S(sT2)}, {S(sW)}, {WREG}")
    e(f"v_add_u32 {V(vW2R)}, {S(sT2)}, {V(t3)}")
    e(f"v_xor_b32 {V(vW2R+1)}, 64, {V(vW2R)}")
    e(f"v_lshrrev_b32 {V(t0)}, 3, {V(vTID)}")
    e(f"v_and_b32 {V(t1)}, 0x70, {V(vL16)}")
    e(f"v_lshl_add_u32 {V(vCIN)}, {V(t0)}, 10, {V(t1)}")
    e(f"v_lshl_add_u32 {V(vCX)}, {V(t0)}, 9, {V(t1)}")
    e(f"v_bfe_u32 {V(t1)}, {V(vL)}, 2, 1")
    e(f"v_lshlrev_b32 {V(t2)}, 7, {V(t0)}")
    e(f"v_lshl_add_u32 {V(t2)}, {V(cc)}, 5, {V(t2)}")
    e(f"v_lshl_add_u32 {V(t2)}, {V(t1)}, 4, {V(t2)}")
    e(f"v_add_u32 {V(vUW)}, {UARR+480}, {V(t2)}")
    e(f"s_mul_i32 {S(sT2)}, {S(sCH)}, {SCR_ST-2048}")
    e(f"s_add_u32 {S(sT2)}, {S(sT2)}, {SCR}")
    e(f"v_add_u32 {V(vXW)}, {S(sT2)}, {V(t2)}")
    e(f"v_and_b32 {V(t0)}, 1, {V(vL)}")
    e(f"v_xor_b32 {V(t0)}, 1, {V(t0)}")
    e(f"v_mul_u32_u24 {V(t1)}, {SCR_ST+64-2}, {V(t0)}")
    e(f"v_lshlrev_b32 {V(t2)}, 1, {V(r16)}")
    e(f"v_sub_u32 {V(t1)}, {V(t1)}, {V(t2)}")
    e(f"v_lshl_add_u32 {V(t1)}, {V(g4)}, 4, {V(t1)}")
    e(f"s_lshl_b32 {S(sT3)}, {S(sNH)}, 8")
    e(f"s_sub_u32 {S(sT2)}, {S(sSCH)}, {S(sT3)}")
    e(f"s_add_u32 {S(sT2)}, {S(sT2)}, {KC0 + 2*2031 - 512 - 192}")
    e(f"v_add_u32 {V(vKF)}, {S(sT2)}, {V(t1)}")
    for a in range(1, 4):
        e(f"v_subrev_u32 {V(vKF+a)}, {1024*a}, {V(vKF)}")
    e(f"v_lshlrev_b32 {V(t1)}, 5, {V(r16)}")
    e(f"v_lshl_add_u32 {V(t1)}, {V(g4)}, 4, {V(t1)}")
    e(f"s_mul_i32 {S(sT2)}, {S(sCH)}, {U_ST}")
    e(f"s_sub_u32 {S(sT2)}, {S(sT2)}, {S(sT3)}")
    e(f"s_add_u32 {S(sT2)}, {S(sT2)}, {UARR + 480 - 32 - 192}")
    e(f"v_add_u32 {V(vUF)}, {S(sT2)}, {V(t1)}")
    e(f"v_mov_b32 {V(vXR)}, {V(vKW)}")
    e(f"v_add_u32 {V(vEXW)}, {S(sSCR)}, {V(vL16)}")
    e(f"s_xor_b32 {S(sT2)}, {S(sW)}, 1")
    e(f"s_mul_i32 {S(sT2)}, {S(sT2)}, {SCR_ST}")
    e(f"s_add_u32 {S(sT2)}, {S(sT2)}, {SCR}")
    e(f"v_add_u32 {V(vEXR)}, {S(sT2)}, {V(vL16)}")
    e(f"v_lshrrev_b32 {V(t0)}, 3, {V(vL)}")
    e(f"v_mul_u32_u24 {V(vCO)}, 57344, {V(t0)}")
    e(f"v_and_b32 {V(t0)}, 7, {V(vL)}")
    e(f"s_and_b32 {S(sT2)}, {S(sCP)}, 1")
    e(f"s_lshl_b32 {S(sT3)}, {S(sT2)}, 2")
    e(f"v_xor_b32 {V(t0)}, {S(sT3)}, {V(t0)}")
    e(f"v_lshl_add_u32 {V(vCO)}, {V(t0)}, 4, {V(vCO)}")
    e(f"s_lshl_b32 {S(sT2)}, {S(sT2)}, 3")
    e(f"s_lshr_b32 {S(sXQi)}, {S(sCP)}, 1")
    e(f"s_lshl_b32 {S(sXQi)}, {S(sXQi)}, 14")
    e(f"s_add_u32 {S(sXQi)}, {S(sXQi)}, {S(sT2)}")
    e(f"s_add_u32 {S(sXQi)}, {S(sXQi)}, {hex(XQ)}")
    e(f"s_lshl_b32 {S(sT2)}, {S(sCP)}, 1")
    e(f"s_add_u32 {S(sT2)}, {S(sT2)}, {S(sCH)}")
    e(f"s_lshl_b32 {S(sT2)}, {S(sT2)}, 7")
    e(f"s_mul_i32 {S(sT3)}, {S(sNH)}, {8*114688}")
    e(f"s_add_u32 {S(sT2)}, {S(sT2)}, {S(sT3)}")
    e(f"v_add_u32 {V(vCO)}, {S(sT2)}, {V(vCO)}")
    e(f"v_lshlrev_b32 {V(vFP)}, 4, {V(vTID)}")
    e(f"s_mov_b32 {S(sPERM0)}, 0x05040100")
    e(f"s_mov_b32 {S(sPERM1)}, 0x07060302")
    e(f"s_lshl_b32 {S(sT2)}, {S(sJ)}, 2")
    e(f"s_add_u32 {S(sT2)}, {S(sT2)}, {S(sW)}")
    e(f"s_mul_i32 {S(sWL)}, {S(sT2)}, 28672")
    e(f"s_add_u32 {S(sWL)}, {S(sWL)}, {hex(W1C)}")
    e(f"s_lshr_b32 {S(sT2)}, {S(sT2)}, 1")
    e(f"s_lshl_b32 {S(sT2)}, {S(sT2)}, 7")
    e(f"s_add_u32 {S(sT2)}, {S(sT2)}, {hex(FLG_W)}")
    e(f"v_mov_b32 {V(vWF+1)}, {S(sT2)}")
    z = KW + 108
    for i in range(4):
        e(f"v_mov_b32 {V(z+i)}, 0")
    e(f"v_min_u32 {V(t0)}, 29, {V(vL)}")
    e(f"v_lshlrev_b32 {V(t0)}, 4, {V(t0)}")
    e(f"v_add_u32 {V(t0)}, {UARR}, {V(t0)}")
    e(f"ds_write_b128 {V(t0)}, {V(z,4)}")
    e(f"ds_write_b128 {V(t0)}, {V(z,4)} offset:{U_ST}")
    e(f"v_and_b32 {V(t0)}, 0x70, {V(vL16)}")
    e(f"v_add_u32 {V(t0)}, {S(sSCR)}, {V(t0)}")
    e(f"ds_write_b128 {V(t0)}, {V(z,4)} offset:{KC0+4096}")
    e(f"s_mul_i32 {S(sTBL)}, {S(sCH)}, {2*WREG}")
    e(f"s_add_u32 {S(sTBL)}, {S(sTBL)}, 16384")
    e(f"v_mov_b32 {V(t0)}, {S(sTBL)}")
    e(f"ds_write_b64 {V(t0)}, {V(z,2)} offset:256")
    return o

def addr_ffn():
    t0, t1, t2, t3 = WK + 8, WK + 9, WK + 10, WK + 11
    g4, rho, cc = WK + 12, WK + 13, WK + 14
    o = []
    e = o.append
    e(f"v_lshrrev_b32 {V(g4)}, 4, {V(vL)}")
    e(f"v_bfe_u32 {V(rho)}, {V(vL)}, 2, 2")
    e(f"v_and_b32 {V(cc)}, 3, {V(vL)}")
    e(f"v_lshrrev_b32 {V(t0)}, 5, {V(vL)}")
    e(f"v_bfe_u32 {V(t1)}, {V(vL)}, 4, 1")
    e(f"v_bfe_u32 {V(t2)}, {V(vL)}, 3, 1")
    e(f"v_lshlrev_b32 {V(t3)}, 7, {V(rho)}")
    e(f"v_lshl_add_u32 {V(t3)}, {V(t2)}, 6, {V(t3)}")
    e(f"v_lshl_add_u32 {V(vXA0)}, {V(t0)}, 10, {V(t3)}")
    e(f"v_lshl_add_u32 {V(vXA0)}, {V(cc)}, 4, {V(vXA0)}")
    e(f"v_lshl_add_u32 {V(vXA0)}, {V(t1)}, 3, {V(vXA0)}")
    e(f"v_xor_b32 {V(vXA1)}, 64, {V(vXA0)}")
    e(f"v_and_b32 {V(t0)}, 15, {V(vL)}")
    e(f"v_lshlrev_b32 {V(t0)}, 7, {V(t0)}")
    e(f"s_mov_b32 {S(sT2)}, 114688")
    e(f"v_mad_u32_u24 {V(vPFH)}, {V(t1)}, {S(sT2)}, {V(t0)}")
    e(f"s_lshl_b32 {S(sT2)}, {S(sJ)}, 2")
    e(f"s_add_u32 {S(sT2)}, {S(sT2)}, {S(sW)}")
    e(f"s_lshl_b32 {S(sT2)}, {S(sT2)}, 11")
    e(f"v_add_u32 {V(vPFX)}, {S(sT2)}, {V(t0)}")
    e(f"s_lshl_b32 {S(sT2)}, {S(sHH)}, 6")
    e(f"v_xor_b32 {V(t3)}, {S(sT2)}, {V(t3)}")
    e(f"s_lshl_b32 {S(sT2)}, {S(sNH)}, 5")
    e(f"s_lshl_b32 {S(sT3)}, {S(sCH)}, 3")
    e(f"s_add_u32 {S(sT2)}, {S(sT2)}, {S(sT3)}")
    e(f"v_add_u32 {V(t3)}, {S(sT2)}, {V(t3)}")
    e(f"v_and_b32 {V(t0)}, 1, {V(vL)}")
    e(f"v_lshl_add_u32 {V(t3)}, {V(t0)}, 4, {V(t3)}")
    e(f"v_bfe_u32 {V(t0)}, {V(vL)}, 1, 1")
    e(f"v_mul_u32_u24 {V(vST)}, {XHALF}, {V(t0)}")
    e(f"v_lshl_add_u32 {V(vST)}, {V(g4)}, 10, {V(vST)}")
    e(f"v_add_u32 {V(vST)}, {V(vST)}, {V(t3)}")
    e(f"v_lshl_add_u32 {V(t0)}, {V(g4)}, 1, {V(t0)}")
    e(f"v_lshl_add_u32 {V(vRES)}, {V(t0)}, 10, {V(t3)}")
    e(f"s_lshl_b32 {S(sT2)}, {S(sDS)}, 13")
    e(f"v_add_u32 {V(vRES)}, {S(sT2)}, {V(vRES)}")
    e(f"s_mul_i32 {S(sT2)}, {S(sW)}, {RED_W}")
    e(f"v_add_u32 {V(vRW)}, {S(sT2)}, {V(vL16)}")
    e(f"v_lshrrev_b32 {V(t0)}, 3, {V(vL)}")
    e(f"v_and_b32 {V(t1)}, 7, {V(vL)}")
    e(f"v_mul_u32_u24 {V(vRR)}, {RED_G}, {V(t0)}")
    e(f"v_lshl_add_u32 {V(vRR)}, {V(t1)}, 4, {V(vRR)}")
    e(f"s_lshl_b32 {S(sT2)}, {S(sW)}, 7")
    e(f"v_add_u32 {V(vRR)}, {S(sT2)}, {V(vRR)}")
    e(f"s_lshr_b32 {S(sT2)}, {S(sGAM)}, 2")
    e(f"s_lshl_b32 {S(sT2)}, {S(sT2)}, 3")
    e(f"s_and_b32 {S(sT3)}, {S(sGAM)}, 3")
    e(f"s_add_u32 {S(sT2)}, {S(sT2)}, {S(sT3)}")
    e(f"s_lshl_b32 {S(sT3)}, {S(sCH)}, 2")
    e(f"s_add_u32 {S(sT2)}, {S(sT2)}, {S(sT3)}")
    e(f"s_lshl_b32 {S(sT2)}, {S(sT2)}, 6")
    e(f"s_lshl_b32 {S(sT3)}, {S(sHH)}, 1")
    e(f"s_add_u32 {S(sT3)}, {S(sT3)}, {S(sNH)}")
    e(f"s_lshl_b32 {S(sT4)}, {S(sT3)}, 4")
    e(f"s_add_u32 {S(sT4)}, {S(sT4)}, {S(sT2)}")
    e(f"v_lshlrev_b32 {V(t2)}, 4, {V(cc)}")
    e(f"v_bfe_u32 {V(t3)}, {V(vL)}, 2, 1")
    e(f"v_lshl_add_u32 {V(vAT)}, {V(t3)}, 7, {V(t2)}")
    e(f"v_lshrrev_b32 {V(t3)}, 5, {V(vL)}")
    e(f"v_lshl_add_u32 {V(vAT)}, {V(t3)}, 3, {V(vAT)}")
    e(f"s_lshl_b32 {S(sT5)}, {S(sT4)}, 4")
    e(f"v_add_u32 {V(vAT)}, {S(sT5)}, {V(vAT)}")
    e(f"v_lshrrev_b32 {V(t3)}, 2, {V(vL)}")
    e(f"v_lshl_add_u32 {V(vOQ)}, {V(t3)}, 14, {V(t2)}")
    e(f"s_lshl_b32 {S(sT4)}, {S(sT4)}, 3")
    e(f"s_lshl_b32 {S(sT5)}, {S(sDS)}, 18")
    e(f"s_add_u32 {S(sT4)}, {S(sT4)}, {S(sT5)}")
    e(f"v_add_u32 {V(vOQ)}, {S(sT4)}, {V(vOQ)}")
    e(f"s_lshl_b32 {S(sT3)}, {S(sT3)}, 1")
    e(f"s_add_u32 {S(sT2)}, {S(sT2)}, {S(sT3)}")
    e(f"v_bfe_u32 {V(t3)}, {V(vL)}, 2, 1")
    e(f"v_add3_u32 {V(t2)}, {V(t2)}, {V(t3)}, {S(sT2)}")
    e(f"v_mul_u32_u24 {V(vOO)}, 896, {V(t2)}")
    e(f"v_lshl_add_u32 {V(vOO)}, {V(t0)}, 4, {V(vOO)}")
    e(f"s_lshl_b32 {S(sT2)}, {S(sDS)}, 7")
    e(f"v_add_u32 {V(vOO)}, {S(sT2)}, {V(vOO)}")
    e(f"v_min_u32 {V(t0)}, 13, {V(vL)}")
    e(f"s_mul_i32 {S(sT2)}, {S(sW)}, 14")
    e(f"v_add_lshl_u32 {V(vF2P)}, {V(t0)}, {S(sT2)}, 4")
    e(f"v_max_u32 {V(vFP)}, 512, {V(vFP)}")
    e(f"s_mul_i32 {S(sXT)}, {S(sGAM)}, 114688")
    e(f"s_add_u32 {S(sXT)}, {S(sXT)}, {hex(X1T)}")
    e(f"s_mul_i32 {S(sT2)}, {S(sGAM)}, {4*112*1024}")
    e(f"s_add_u32 {S(sT2)}, {S(sT2)}, {hex(HB)}")
    e(f"s_lshl_b32 {S(sT3)}, {S(sJ)}, 13")
    e(f"s_add_u32 {S(sHS)}, {S(sT2)}, {S(sT3)}")
    e(f"s_lshl_b32 {S(sT3)}, {S(sW)}, 11")
    e(f"s_add_u32 {S(sHS)}, {S(sHS)}, {S(sT3)}")
    e(f"s_mul_i32 {S(sT3)}, {S(sHH)}, {112*1024}")
    e(f"s_add_u32 {S(sHL)}, {S(sT2)}, {S(sT3)}")
    e(f"s_mul_i32 {S(sT3)}, {S(sW)}, {28*1024}")
    e(f"s_add_u32 {S(sHL)}, {S(sHL)}, {S(sT3)}")
    e(f"s_lshl2_add_u32 {S(sT2)}, {S(sDS)}, {S(sW)}")
    e(f"s_mul_i32 {S(sW2L)}, {S(sT2)}, 28672")
    e(f"s_add_u32 {S(sW2L)}, {S(sW2L)}, {hex(W2T)}")
    e(f"s_lshl_b32 {S(sT2)}, {S(sT2)}, 7")
    e(f"s_add_u32 {S(sT2)}, {S(sT2)}, {hex(FLG_W+64)}")
    e(f"v_mov_b32 {V(vWF+1)}, {S(sT2)}")
    e(lambda: poll_load(vWF, vWF + 1, 0))
    e(f"s_lshl_b32 {S(sFG)}, {S(sGAM)}, 11")
    e(f"s_add_u32 {S(sFG)}, {S(sFG)}, {hex(FLG_G)}")
    e(f"s_mov_b32 {S(SRD_OUT)}, s52")
    e(f"s_and_b32 {S(SRD_OUT+1)}, s53, 0xffff")
    e(f"s_mov_b32 {S(SRD_OUT+2)}, {hex(2048*896)}")
    e(f"s_mov_b32 {S(SRD_OUT+3)}, 0x20000")
    return o

def pk(op, d, a, b, c=None, bc=(), neg=(), emit=True):
    ops = [a, b] + ([c] if c is not None else [])
    n = len(ops)
    txt = f"v_pk_{op}_f32 {d}, " + ", ".join(ops)
    if bc:
        txt += " op_sel_hi:[" + ",".join("0" if i in bc else "1" for i in range(n)) + "]"
    if neg:
        m = "[" + ",".join("1" if i in neg else "0" for i in range(n)) + "]"
        txt += f" neg_lo:{m} neg_hi:{m}"
    if emit:
        k(txt)
    return txt

def cmul(d, a, b, t):
    assert d != a
    pk("mul", V(t, 2), V(a, 2), V(b, 2))
    pk("mul", V(t + 2, 2), V(a, 2), V(b + 2, 2))
    pk("fma", V(d, 2), V(a + 2, 2), V(b + 2, 2), V(t, 2), neg=(0,))
    pk("fma", V(d + 2, 2), V(a + 2, 2), V(b, 2), V(t + 2, 2))

NINIT = opt("ninit", 10)
NPG = opt("npg", 8)
def stub_targets():
    return [("L_ret0" if p <= 3 else (f"L_pg{p+4}" if p + 4 <= NPG else "L_ret1")) for p in range(1, NPG + 1)]

def touch(n):
    if not opt("touch", 1):
        k.label(f"L_ret{n}")
        return
    k("s_mov_b64 exec, 0")
    for w in range(4):
        p = w if n == 0 else 4 + w
        if 1 <= p <= NPG:
            k(f"s_cmp_eq_u32 {S(sW)}, {w}")
            k(f"s_cbranch_scc1 L_pg{p}")
    k.label(f"L_ret{n}")
    k("s_mov_b64 exec, -1")

def table_loads():
    t0 = KW + 100
    k(f"v_and_b32 {V(t0)}, 127, {V(vTID)}")
    k(f"v_lshlrev_b32 {V(t0)}, 4, {V(t0)}")
    k(f"v_add_u32 {V(t0)}, L_table-L_pc+2048, {V(t0)}")
    for q in range(3):
        k(f"global_load_dwordx4 {V(TBL+4*q,4)}, {V(t0)}, {S(sPC,2)} offset:{2048*(q-1)}")

def main_start():
    k.c("=== main workgroups")
    p0x_loads()
    for i in range(6):
        k(f"global_load_dword {V(PRM+i)}, {V(PRM+6)}, {S(30+2*i,2)}")
    k(f"s_lshl_b32 {S(sT0)}, {S(sCP)}, 2")
    k(f"s_load_dword {S(sLDT)}, s[42:43], {S(sT0)}")
    k(f"s_load_dword {S(sDSK)}, s[44:45], {S(sT0)}")
    k.lg = []
    saved = (list(k.vm), list(k.lg))
    touch(0)
    branch("s_branch", "L_body")
    helper()
    k.raw(".p2align 12")
    label("L_body")
    k.vm, k.lg = saved
    srd(SRD_W2, 50, 1792 * 896)
    if opt("tblearly", 0):
        table_loads()
    w2_lane_src(vW2S, 896, KW + 100, KW + 101)
    k(f"s_mul_i32 {S(sW2B)}, {S(sW)}, {448*896}")
    k(f"s_lshl_b32 {S(sT2)}, {S(sDS)}, 7")
    k(f"s_add_u32 {S(sW2B)}, {S(sW2B)}, {S(sT2)}")
    for r in range(7):
        if opt("skew", 1):
            k(f"s_add_u32 {S(sT2)}, {S(sDS)}, {r}")
            k(f"s_sub_u32 {S(sT3)}, {S(sT2)}, 7")
            k(f"s_min_u32 {S(sT2)}, {S(sT2)}, {S(sT3)}")
            k(f"s_lshl_b32 {S(sKO+r)}, {S(sT2)}, 10")
        else:
            k(f"s_movk_i32 {S(sKO+r)}, {1024*r}")
    ac = addr_conv()
    for i in range(NINIT):
        w2_dma()
        run(ac, len(ac) // (NINIT - i))
    run(ac)
    stamp(24)
    p0x_body()
    stamp(1)

def conv_load_ops(layer):
    XD, SD = WK, WK + 8
    o = [f"s_mov_b32 {S(sT0)}, {hex(STATS[layer])}"]
    if layer:
        o.append(f"s_add_u32 {S(sXQi)}, {S(sXQi)}, {hex(XQ_SZ)}")
    for j2 in range(4):
        for j in (2 * j2, 2 * j2 + 1):
            o.append(f"buffer_load_dwordx4 {V(SD+4*j,4)}, {V(vCIN)}, {S(SRD_WS,4)}, {S(sT0)} offen offset:{128*j} sc1")
        o.append(f"buffer_load_dwordx2 {V(XD+2*j2,2)}, {V(vCX)}, {S(SRD_WS,4)}, {S(sXQi)} offen offset:{128*j2} sc1")
    return o

def kgen():
    k.c("=== K generation")
    B0 = KW + 46
    U = B0
    DT = B0 + 12
    W1_, W8_, W256 = B0 + 14, B0 + 18, B0 + 22
    T = B0 + 26
    P = [B0 + 30 + 4 * i for i in range(5)]
    CV = B0 + 50
    ACC = WK + 64
    FX, FY = (112, 144), (176, 208)
    for i in range(6):
        k(f"v_lshlrev_b32 {V(U+2*i)}, 16, {V(PRM+i)}")
        k(f"v_and_b32 {V(U+2*i+1)}, {S(sHIM)}, {V(PRM+i)}")
    k.wait(lg=0)
    k(f"s_lshl_b32 {S(sT0)}, {S(sCH)}, 4")
    k(f"s_lshr_b32 {S(sLDT)}, {S(sLDT)}, {S(sT0)}")
    k(f"s_lshl_b32 {S(sLDT)}, {S(sLDT)}, 16")
    k(f"s_lshr_b32 {S(sDSK)}, {S(sDSK)}, {S(sT0)}")
    k(f"s_lshl_b32 {S(sDSK)}, {S(sDSK)}, 16")
    k(f"v_mov_b32 {V(DT)}, {f2u(1.4426950408889634)}")
    k(f"v_mul_f32 {V(DT)}, {S(sLDT)}, {V(DT)}")
    k(f"v_exp_f32 {V(DT)}, {V(DT)}")
    k(f"s_cmp_eq_u32 {S(sNH)}, 0")
    k(f"s_cselect_b32 {S(sDSK)}, {S(sDSK)}, 0")
    k(f"v_cvt_pk_bf16_f32 {V(DT)}, {V(DT)}, {V(DT)}")
    k(f"v_mov_b32 {V(vDSK)}, 0")
    k(f"v_lshlrev_b32 {V(DT)}, 16, {V(DT)}")
    k(f"v_writelane_b32 {V(vDSK)}, {S(sDSK)}, 0")
    for i in range(4):
        pk("mul", V(U + 2 * i, 2), V(U + 2 * i, 2), V(DT, 2), bc=(1,))
    k(f"s_mov_b32 {S(sC0)}, {f2u(1.4426950408889634)}")
    pk("mul", V(U, 2), V(U, 2), S(sC0, 2), bc=(1,))
    k(f"s_mov_b32 {S(sC0)}, {f2u(0.15915494309189535)}")
    pk("mul", V(U + 2, 2), V(U + 2, 2), S(sC0, 2), bc=(1,))
    cmul(P[0], U + 8, U + 4, T)
    for (Wd, sc) in ((W1_, 1.0), (W256, 256.0), (W8_, 8.0)):
        ea, an = U + 4, U + 6
        if sc == 1.0:
            sa, sb = U, U + 2
        else:
            k(f"s_mov_b32 {S(sC0)}, {f2u(sc)}")
            pk("mul", V(ea, 2), V(U, 2), S(sC0, 2), bc=(1,))
            pk("mul", V(an, 2), V(U + 2, 2), S(sC0, 2), bc=(1,))
            sa, sb = ea, an
        for h in range(2):
            k(f"v_fract_f32 {V(an+h)}, {V(sb+h)}")
        for h in range(2):
            k(f"v_exp_f32 {V(ea+h)}, {V(sa+h)}")
        for h in range(2):
            k(f"v_cos_f32 {V(Wd+h)}, {V(an+h)}")
        for h in range(2):
            k(f"v_sin_f32 {V(Wd+2+h)}, {V(an+h)}")
        pk("mul", V(Wd, 2), V(Wd, 2), V(ea, 2))
        pk("mul", V(Wd + 2, 2), V(Wd + 2, 2), V(ea, 2))
    poll_load(vGO, vGO + 1, 0, 0, SRD_DBG)
    cvi = [0]
    ent = [0]
    vPL = WK + 80
    NKD = opt("nkd", 0)
    FL0, PL0 = opt("flag0", 27), opt("poll0", 48)
    def put(src, row, negim):
        c = CV + 2 * (cvi[0] & 1)
        cvi[0] += 1
        n = "-" if negim else ""
        k(f"v_cvt_pk_bf16_f32 {V(c)}, {V(src)}, {V(src+1)}")
        k(f"v_cvt_pk_bf16_f32 {V(c+1)}, {n}{V(src+2)}, {n}{V(src+3)}")
        k(f"ds_write_b64 {V(vKW)}, {V(c,2)} offset:{row*ROW_ST}")
        ent[0] += 1
        if ent[0] == opt("atom0", 10):
            p0x_atomics()
            stamp(25)
        if ent[0] == FL0:
            k.wait_tag_vm("st")
            k("s_barrier")
            wave0(lambda: flag_all(0))
            if not opt("tblearly", 0):
                table_loads()
            stamp(2)
        if FL0 < ent[0] and ent[0] % 2 == 0 and ND[0] < NINIT + NKD:
            w2_dma()
        if ent[0] == PL0:
            poll_load(vPL, vFP, S(sREP))
    def frags(b):
        for st in range(8):
            k(f"ds_read_b128 {A(b+4*st,4)}, {V(vKR)} offset:{64*st}")
    cur = 0
    for a in range(8):
        put(P[cur], a, True)
        if a % 2 == 0:
            dst = {0: 3, 4: 4}.get(a, 2)
            cmul(P[dst], P[cur], W256, T)
            put(P[dst], 8 + a // 2, True)
        if a < 7:
            cmul(P[1 - cur], P[cur], W1_, T)
            cur = 1 - cur
    cmul(P[0], P[3], W256, T); put(P[0], 12, True)
    cmul(P[1], P[4], W256, T); put(P[1], 13, True)
    cmul(P[3], P[0], W256, T); put(P[3], 14, True)
    cmul(P[4], P[1], W256, T); put(P[4], 15, True)
    frags(FX[0])
    src, dst = 3, 0
    for row in range(5):
        cmul(P[dst], P[src], W256, T)
        put(P[dst], row, True)
        src, dst = dst, (1 - dst if dst in (0, 1) else 0)
    frags(FX[1])
    k(f"v_mov_b32 {V(CV)}, {S(sONES)}")
    k(f"v_mov_b32 {V(CV+1)}, 0")
    k(f"ds_write_b64 {V(vKW)}, {V(CV,2)}")
    cvi[0] = 1
    put(W8_, 1, False)
    cmul(P[0], W8_, W8_, T)
    cur = 0
    for j in range(2, 32):
        put(P[cur], j % 16, False)
        if j % 16 == 15:
            frags(FY[j // 16])
        if j == 15:
            stamp(3)
        if j < 31:
            cmul(P[1 - cur], P[cur], W8_, T)
            cur = 1 - cur
    assert ND[0] == NINIT + NKD and ND[0] <= 16
    def mfma(n):
        yt, x, st = n // 16, (n // 8) & 1, n % 8
        d = V(ACC + 8 * yt + 4 * x, 4)
        return f"v_mfma_f32_16x16x32_bf16 {d}, {A(FX[x]+4*st,4)}, {A(FY[yt]+4*st,4)}, {d if st else 0}"
    def tables(yt, x):
        if x == 0:
            return [f"ds_write2_b32 {V(TA+2*yt+pi)}, {V(ACC+8*yt+2*pi)}, {V(ACC+8*yt+2*pi+1)} offset0:0 offset1:2" for pi in range(2)]
        return [f"ds_write2_b32 {V(TA+4)}, {V(ACC+8*yt+4+i)}, {V(ACC+8*yt+5+i)} offset0:{66*i+32*yt} offset1:{66*(i+1)+32*yt}" for i in (0, 2)]
    k(f"s_lshl2_add_u32 {S(sT1)}, {S(sNH)}, {S(sTBL)}")
    mads = []
    for i in range(22):
        n = (i + 17) % 22
        sel = " op_sel:[1,0,0,0]" if n & 1 else ""
        mads.append(f"v_mad_u32_u16 {V(GA+n)}, {V(TBL+n//2)}, 8, {S(sTBL if n < 17 else sT1)}{sel}")
    cl = conv_load_ops(0)
    PCK = opt("pchk", 6)
    for n in range(32):
        k(mfma(n))
        run(mads, 1)
        if n == PCK:
            poll_check(vPL, vFP, S(sREP))
            k("s_barrier")
            stamp(4)
        if n >= PCK and (n - PCK) % 2 == 0:
            run(cl, 2 if n == PCK else 1)
        if n == 11:
            k(f"v_add_f32 {V(ACC)}, {V(ACC)}, {V(vDSK)}")
        if n in (13, 21, 29):
            run(tables((n - 13) // 16, ((n - 13) // 8) & 1))
    run(cl)
    run(tables(1, 1))
    k.wait(lg=0)
    k("s_barrier")
    stamp(6)
    GV = B0
    for e in range(17):
        k(f"ds_read_b64 {V(GV+2*e,2)}, {V(GA+e)}")
    for e in range(17):
        k(f"v_add_f32 {V(GV+2*e)}, {V(GV+2*e)}, {V(GV+2*e+1)}")
    O = B0 + 34
    for c in range(2):
        for kk in range(8):
            e = 2 * kk + c
            k(f"v_cvt_pk_bf16_f32 {V(O+8*c+kk)}, {V(GV+2*e)}, {V(GV+2*e+2)}")
    for c in range(2):
        for h in range(2):
            k(f"ds_write_b128 {V(vKC)}, {V(O+8*c+4*h,4)} offset:{c*(SCR_ST+64)+16*h}")
    stamp(5)

def wave0(fn):
    skip = newlab("w0")
    k(f"s_cmp_lg_u32 {S(sW)}, 0")
    saved = list(k.vm)
    k.skip_begin("s_cbranch_scc1", skip)
    fn()
    k.skip_end(skip)
    k.vm = saved

def conv(layer):
    k.c("=== conv")
    XD, SD = WK, WK + 8
    M, Q, UU = WK + 40, WK + 48, WK + 56
    O = WK + 72
    k(f"s_mov_b32 {S(sC0)}, {f2u(1.0/448)}")
    k(f"s_mov_b32 {S(sC1)}, {f2u(1e-5)}")
    for j2 in range(4):
        for j in (2 * j2, 2 * j2 + 1):
            k(f"v_cvt_f32_f64 {V(M+j)}, {V(SD+4*j,2)}")
            k(f"v_cvt_f32_f64 {V(Q+j)}, {V(SD+4*j+2,2)}")
        j = 2 * j2
        pk("mul", V(M + j, 2), V(M + j, 2), S(sC0, 2), bc=(1,))
        pk("mul", V(Q + j, 2), V(Q + j, 2), S(sC0, 2), bc=(1,))
        pk("fma", V(Q + j, 2), V(M + j, 2), V(M + j, 2), V(Q + j, 2), neg=(0,))
        for h in range(2):
            k(f"v_max_f32 {V(Q+j+h)}, 0, {V(Q+j+h)}")
            k(f"v_add_f32 {V(Q+j+h)}, {S(sC1)}, {V(Q+j+h)}")
        for h in range(2):
            k(f"v_rsq_f32 {V(Q+j+h)}, {V(Q+j+h)}")
        for h in range(2):
            k(f"v_lshlrev_b32 {V(UU+j+h)}, 16, {V(XD+j+h)}")
            k(f"v_and_b32 {V(UU+8+j+h)}, {S(sHIM)}, {V(XD+j+h)}")
        for c in range(2):
            pk("add", V(UU + 8 * c + j, 2), V(UU + 8 * c + j, 2), V(M + j, 2), neg=(1,))
            pk("mul", V(UU + 8 * c + j, 2), V(UU + 8 * c + j, 2), V(Q + j, 2))
            k(f"v_cvt_pk_bf16_f32 {V(O+4*c+j2)}, {V(UU+8*c+j)}, {V(UU+8*c+j+1)}")
            k(f"v_perm_b32 {V(O+8+4*c+j2)}, {V(XD+j+1)}, {V(XD+j)}, {S(sPERM0+c)}")
        if j2 == 0:
            stamp(7)
    for c in range(2):
        k(f"ds_write_b128 {V(vUW)}, {V(O+4*c,4)} offset:{c*U_ST}")
    for c in range(2):
        k(f"ds_write_b128 {V(vXW)}, {V(O+8+4*c,4)} offset:{c*2*SCR_ST}")
    ACC = WK
    KB = WK + 32
    XRES = WK + 96
    mf, uld, kld = [], [], []
    for s in range(4):
        for Jp in range(7, -1, -1):
            I0 = 7 - Jp
            first = len(mf)
            for I in range(0, 8 - Jp):
                mf.append((s, Jp, I))
            uld.append((first, f"ds_read_b128 {A(AX+4*Jp,4)}, {V(vUF)} offset:{512*Jp + 64*(3-s)}"))
            kb = KB + 32 * (s & 1) + 4 * I0
            o = (128 if I0 % 2 == 0 else 0) + 16 * (3 - s)
            kld.append((first, f"ds_read2_b32 {V(kb,2)}, {V(vKF+I0//2)} offset0:{o} offset1:{o+1}"))
            kld.append((first, f"ds_read2_b32 {V(kb+2,2)}, {V(vKF+I0//2)} offset0:{o+2} offset1:{o+3}"))
    NPRE = 10 if layer else 0
    for _, t in kld[:NPRE]:
        k(t)
    kld = kld[NPRE:]
    k.wait(lg=NPRE)
    k("s_barrier")
    stamp(9)
    loads = sorted(uld + kld, key=lambda x: x[0])
    rowstart = {f for f, _ in uld}
    bg = []
    if layer == 0:
        bg = [w2_dma] * (28 - ND[0])
        bg.insert(max(0, len(bg) - 8), lambda: poll_load(vWF, vWF + 1, 0))
        bg += [lambda: poll_check(vWF, vWF + 1, 0)] + [w1_load] * opt("w1conv", 12)
    step = max(1, 132 // max(1, len(bg)))
    li = 0
    seen = set()
    for n, (s, Jp, I) in enumerate(mf):
        cnt = 0
        while li < len(loads) and (loads[li][0] <= n + 3 or (loads[li][0] <= n + 22 and cnt < ((5 if layer else 12) if n == 0 else 1))):
            f, txt = loads[li]
            if txt.startswith("ds_read_b128") and f >= 36 and n < f - 36 + (8 - mf[f][1]):
                break
            k(txt, tag=f)
            li += 1
            cnt += 1
        if n in rowstart:
            idx = [i for i, p in enumerate(k.lg) if p[2] == n]
            if idx:
                k.wait(lg=len(k.lg) - 1 - idx[-1])
        J = Jp + I
        d = V(ACC + 4 * J, 4)
        k(f"v_mfma_f32_16x16x32_bf16 {d}, {A(AX+4*Jp,4)}, {V(KB+32*(s&1)+4*I,4)}, {d if J in seen else 0}")
        seen.add(J)
        if 122 <= n < 126:
            jl = n - 122
            k(f"ds_read_b64_tr_b16 {V(XRES+2*jl,2)}, {V(vXR)} offset:{512*jl}")
        if n >= 6 and (n - 6) % step == 0:
            run(bg, 1)
        if n >= 136:
            i = n - 136
            k(f"v_lshlrev_b32 {V(KB+16+2*i)}, 16, {V(XRES+i)}")
            k(f"v_and_b32 {V(KB+16+2*i+1)}, {S(sHIM)}, {V(XRES+i)}")
    assert li == len(loads) and not bg
    stamp(10)
    T = KB
    XU = KB + 16
    l1, lj = newlab("x1"), newlab("xj")
    k(f"s_cmp_eq_u32 {S(sNH)}, 1")
    h0 = list(k.hist)
    k(f"s_cbranch_scc1 {l1}")
    for hf in range(2):
        if hf:
            k.label(l1)
            k.hist = h0
        for jl in range(4):
            k(f"ds_write_b128 {V(vEXW)}, {V(ACC+16*(1-hf)+4*jl,4)} offset:{1024*jl}")
        for i in range(8):
            pk("add", V(XU + 2 * i, 2), V(XU + 2 * i, 2), V(ACC + 16 * hf + 2 * i, 2))
        if not hf:
            k(f"s_branch {lj}")
    k.label(lj)
    k.wait(lg=0)
    k("s_barrier")
    for jl in range(4):
        k(f"ds_read_b128 {V(T+4*jl,4)}, {V(vEXR)} offset:{1024*jl}")
    k(f"s_mov_b32 {S(sT0)}, {hex(X1T + layer*XQ_SZ)}")
    k(f"s_mov_b32 {S(sT1)}, {hex(X1T + layer*XQ_SZ + 4*114688)}")
    for p in range(2):
        for i in range(4):
            pk("add", V(XU + 8 * p + 2 * i, 2), V(XU + 8 * p + 2 * i, 2), V(T + 8 * p + 2 * i, 2))
        for i in range(4):
            k(f"v_cvt_pk_bf16_f32 {V(ACC+4*p+i)}, {V(XU+8*p+2*i)}, {V(XU+8*p+2*i+1)}")
        k(f"buffer_store_dwordx4 {V(ACC+4*p,4)}, {V(vCO)}, {S(SRD_WS,4)}, {S(sT0+p)} offen sc1", tag="st")
    stamp(11)

def handoff(off, a=None, b=None, sb=12, c=None):
    if a:
        a()
    k.wait_tag_vm("st")
    k.wait(lg=0)
    k("s_barrier")
    wave0(lambda: flag_all(off))
    stamp(sb)
    if b:
        b()
    else:
        k.wait(vm=0)
        k("s_barrier")
    stamp(sb + 1)
    k(f"s_add_u32 {S(sT0)}, {S(sREP)}, {hex(off)}")
    poll_load(WK, vFP, S(sT0))
    if c:
        c()
    poll_check(WK, vFP, S(sT0))
    k("s_barrier")
    stamp(sb + 2)

def handoff1(layer):
    if layer == 0:
        def a():
            n = (28 - opt("w1g1", 0) - NW1[0]) // 2
            k.wait_tag_vm(("w2", 27))
            tr = w2_tr_ops(0, 14)
            for i in range(n):
                w1_load()
                run(tr, len(tr) // (n - i))
            run(tr)
            if opt("t1a", 0):
                touch(1)
        def b():
            af = addr_ffn()
            n = 28 - opt("w1g1", 0) - NW1[0]
            for i in range(n):
                w1_load()
                run(af, len(af) // (n - i))
            run(af)
        handoff(0x8000, a, b, c=None if opt("t1a", 0) else lambda: touch(1))
    else:
        handoff(0x18000)

G2RES = WK + 100
G2R = WK + 108
vFL = WK + 97
vHL = WK + 99
vPL2 = WK + 96

def gflag(layer, half):
    k("s_mov_b64 exec, 1")
    k(f"buffer_store_dword {V(vONE)}, {V(vFL)}, {S(SRD_WS,4)}, {S(sFG)} offen offset:{1024*half} sc1")
    k("s_mov_b64 exec, -1")
    if opt("pfh", 0):
        k(f"s_add_u32 {S(sT2)}, {S(sHS)}, {half*2*112*1024}")
        k(f"buffer_load_dword {V(WK+98)}, {V(vPFH)}, {S(SRD_WS,4)}, {S(sT2)} offen sc1")
        k.vm[-1] = (set(), None)

def ffn(layer):
    k.c("=== GEMM1")
    ACC = WK
    EP = WK + 64
    vXS = WK + 80
    vB0, vB1 = WK + 81, WK + 82
    if layer:
        k(f"s_add_u32 {S(sXT)}, {S(sXT)}, {hex(XQ_SZ)}")
    if opt("pfx", 0):
        k(f"buffer_load_dword {V(WK+98)}, {V(vPFX)}, {S(SRD_WS,4)}, {S(sXT)} offen sc1")
        k.vm[-1] = (set(), None)
    k(f"v_add_u32 {V(vXS)}, {S(sXT)}, {V(vL16)}")
    k(f"s_lshl_b32 {S(sT0)}, {S(sW)}, 10")
    k(f"s_mov_b32 m0, {S(sT0)}")
    nx = [0]
    def dma():
        d = nx[0]
        nx[0] += 1
        k(f"buffer_load_dwordx4 {V(vXS)}, {S(SRD_WS,4)}, m0 offen sc1 lds", tag=("x", d))
        if d == 13:
            k(f"v_subrev_u32 {V(vXS)}, 32, {V(vXS)}")
        if d < 27:
            k(f"s_add_u32 m0, m0, {4096 + (32 if d == 13 else 0)}")
    NUP = opt("nup", 9)
    for st in range(NUP):
        dma()
    k(f"v_add_u32 {V(vB0)}, {XHALF}, {V(vXA0)}")
    k(f"v_add_u32 {V(vB1)}, {XHALF}, {V(vXA1)}")
    k(f"s_lshl_b32 {S(sT0)}, {S(sJ)}, 2")
    k(f"s_add_u32 {S(sT0)}, {S(sT0)}, {S(sW)}")
    k(f"s_lshl_b32 {S(sT0)}, {S(sT0)}, 4")
    k(f"v_mov_b32 {V(vFL)}, {S(sT0)}")
    if layer:
        k(f"s_add_u32 {S(sHS)}, {S(sHS)}, {hex(H_SZ)}")
        k(f"s_add_u32 {S(sFG)}, {S(sFG)}, 0x8000")
        k(f"s_add_u32 {S(sHL)}, {S(sHL)}, {hex(H_SZ)}")
    else:
        poll_check(vWF, vWF + 1, 0)
    SKA = opt("ska", 10)
    mf = [(0, q, ks) for ks in range(28 - SKA) for q in range(2)]
    mf += [(0, q, ks) for q in range(2) for ks in range(28 - SKA, 28)]
    SK = opt("skb", 20)
    mf += [(1, q, ks) for ks in range(28 - SK) for q in range(2)]
    mf += [(1, q, ks) for q in range(2) for ks in range(28 - SK, 28)]
    NR = 8
    LEAD = opt("g1lead", 7)
    bars = [2, 5, 9, 14, 18, 22, 28]
    ready = [0]
    def rd(n):
        half, q, ks = mf[n]
        st = 14 * half + ks // 2
        if st >= ready[0]:
            nb = [b for b in bars if b > st][0]
            assert nx[0] >= nb, (n, nb, nx[0])
            k.wait_tag_vm(("x", nb - 1))
            k("s_barrier")
            ready[0] = nb
        va = ((vXA0, vXA1), (vB0, vB1))[half][q]
        for u in range(2):
            k(f"ds_read_b64_tr_b16 {A(AX+4*(n%NR)+2*u,2)}, {V(va)} offset:{ks*2048+u*512}")
    def epi(tile):
        ops = []
        e = EP + 8 * (tile & 1)
        st = []
        for a in range(2):
            for i in range(4):
                ops.append(f"v_cvt_pk_bf16_f32 {V(e+4*a+i)}, {V(ACC+16*tile+8*a+2*i)}, {V(ACC+16*tile+8*a+2*i+1)}")
            for i in range(4):
                ops.append(f"v_pk_max_i16 {V(e+4*a+i)}, {V(e+4*a+i)}, 0")
            if a == 0:
                ops.append(f"s_add_u32 {S(sT1)}, {S(sHS)}, {tile*112*1024}")
            ops.append((f"buffer_store_dwordx4 {V(e+4*a,4)}, {V(vL16)}, {S(SRD_WS,4)}, {S(sT1)} offen offset:{1024*a} sc1", ("h", tile)))
        return ops
    pend = []
    nrd = 0
    for n in range(LEAD):
        rd(nrd); nrd += 1
    stamp(27)
    quiet = 0
    QN = opt("quiet", 1)
    for n, (half, q, ks) in enumerate(mf):
        tile = 2 * half + q
        d = V(ACC + 16 * tile, 16)
        k(f"v_mfma_f32_32x32x16_bf16 {d}, {V(W1R+4*ks,4)}, {A(AX+4*(n%NR),4)}, {d if ks else 0}")
        if n == 56 - SKA + 1:
            pend += epi(0)
        if n == 57:
            pend += epi(1)
        if n == 112 - SK + 1:
            pend += epi(2)
        slots = 5
        if pend and isinstance(pend[0], tuple) and not quiet and (nrd >= n + 4 + QN or nrd == len(mf)):
            run(pend, 1)
            quiet = QN + 1
        if quiet:
            quiet -= 1
        else:
            c = 0
            while nrd < len(mf) and nrd <= n + LEAD and c < 2:
                rd(nrd); nrd += 1; c += 1
            slots -= 2 * c
            if 3 * (nx[0] - NUP) <= n and nx[0] < 28:
                dma()
            elif layer == 0 and n % 6 == 1 and NW1[0] < 28:
                w1_load()
            elif layer == 0 and NW2[0] < opt("w2g1", 28) and (n % 6 == 4 if n < 56 else n % 2 == 1 and not pend):
                w2_load()
            while pend and slots > 0 and not isinstance(pend[0], tuple):
                run(pend, 1)
                slots -= 1
        assert nrd > n + 1 or nrd == len(mf)
        if opt("g1st", 0) and n in (27, 55, 83, 111):
            stamp({27: 28, 55: 29, 83: 31, 111: 24 if layer else 30}[n]) if (layer or n != 111) else None
        if n == opt("flagA", 92):
            k.wait_tag_vm(("h", 1))
            gflag(layer, 0)
    assert not pend and nx[0] == 28 and NW1[0] == 28, (pend, nx, NW1)
    F = WK
    vS, vQ, vT = WK + 56, WK + 57, WK + 58
    srd_ = [f"ds_read_b64_tr_b16 {V(F+4*ks+2*u,2)}, {V(vST)} offset:{ks*4096+u*512}" for ks in range(14) for u in range(2)]
    run(srd_, 12)
    e3 = epi(3)
    run(e3, 9)
    poll_load(vPL2, vF2P, S(sFG))
    run(e3)
    stamp(15)
    run(srd_)
    for h in range(2):
        for u in range(2):
            k(f"ds_read_b64_tr_b16 {V(G2RES+4*h+2*u,2)}, {V(vRES)} offset:{h*XHALF+u*512}")
    st = [f"v_mov_b32 {V(vS)}, 0", f"v_mov_b32 {V(vQ)}, 0"]
    for i in range(56):
        st.append(f"v_dot2c_f32_bf16 {V(vS)}, {S(sONES)}, {V(F+i)}")
        st.append(f"v_dot2c_f32_bf16 {V(vQ)}, {V(F+i)}, {V(F+i)}")
    for r in (vS, vQ):
        st += [f"v_mov_b32 {V(vT)}, {V(r)}", f"v_permlane32_swap_b32 {V(r)}, {V(vT)}", f"v_add_f32 {V(r)}, {V(r)}, {V(vT)}",
               f"v_mov_b32 {V(vT)}, {V(r)}", f"v_permlane16_swap_b32 {V(r)}, {V(vT)}", f"v_add_f32 {V(r)}, {V(r)}, {V(vT)}"]
    st += [f"v_mul_f32 {V(vS)}, {f2u(1.0/448)}, {V(vS)}",
           f"v_mul_f32 {V(vQ)}, {f2u(1.0/448)}, {V(vQ)}",
           f"v_fma_f32 {V(vQ)}, -{V(vS)}, {V(vS)}, {V(vQ)}",
           f"v_max_f32 {V(vQ)}, 0, {V(vQ)}",
           f"v_add_f32 {V(vQ)}, {f2u(1e-5)}, {V(vQ)}",
           f"v_rsq_f32 {V(vQ)}, {V(vQ)}",
           f"v_mov_b32 {V(G2R)}, {V(vQ)}",
           f"v_mov_b32 {V(G2R+2)}, {V(vQ)}",
           f"v_mov_b32_dpp {V(G2R)}, {V(vQ)} row_ror:8 row_mask:0xf bank_mask:0xc",
           f"v_mov_b32_dpp {V(G2R+2)}, {V(vQ)} row_ror:8 row_mask:0xf bank_mask:0x3"]
    run(st, opt("stpre", 50))
    poll_check(vPL2, vF2P, S(sFG))
    stamp(17)

    k.c("=== GEMM2")
    ring = [("a", AX + 4 * i) for i in range(8)] + [("v", WK + 64 + 4 * i) for i in range(8)]
    NR = opt("g2ring", 11)
    ring = ring[:NR]
    rn = lambda i: (V if ring[i % NR][0] == "v" else A)(ring[i % NR][1], 4)
    nl = [0]
    def ld():
        i = nl[0]
        nl[0] += 1
        half, s = divmod(i, 28)
        a, r = divmod(s, 7)
        if i == 0:
            k(f"v_add_u32 {V(vHL)}, {S(sHL)}, {V(vL16)}")
        elif r == 0:
            k(f"v_add_u32 {V(vHL)}, {7168 if s else 2*112*1024 - 3*7168}, {V(vHL)}")
        k(f"buffer_load_dwordx4 {rn(i)}, {V(vHL)}, {S(SRD_WS,4)}, {S(sKO+r)} offen sc1")
        if layer == 0 and NW2[0] < 28:
            w2_load()
    def red_write(half):
        return [f"ds_write_b128 {V(vRW)}, {V(ACC+32*half+4*G,4)} offset:{half*RED_H+G*RED_G}" for G in range(8)]
    def red_read(half):
        return [f"ds_read_b128 {V(ACC+32*half+8*w+4*g,4)}, {V(vRR)} offset:{half*RED_H+w*RED_W+512*g}" for w in range(4) for g in range(2)]
    def bar():
        k.wait(lg=0)
        k("s_barrier")
    def unpack(half, u):
        o = []
        for i in range(4):
            o.append(f"v_lshlrev_b32 {V(u+2*i)}, 16, {V(G2RES+4*half+i)}")
            o.append(f"v_and_b32 {V(u+2*i+1)}, {S(sHIM)}, {V(G2RES+4*half+i)}")
        return o
    def fin(half, u, pre):
        a = ACC + 32 * half
        ops = []
        def P(d, x, y):
            if pre:
                ops.append(f"v_pk_add_f32 {V(d,2)}, {V(x,2)}, {V(y,2)}")
            else:
                ops.extend(f"v_add_f32 {V(d+h)}, {V(x+h)}, {V(y+h)}" for h in range(2))
        for i in range(4):
            P(a + 2 * i, a + 2 * i, a + 8 + 2 * i)
        if not pre:
            ops += unpack(half, u)
        for i in range(4):
            P(a + 16 + 2 * i, a + 16 + 2 * i, a + 24 + 2 * i)
        for i in range(4):
            P(a + 2 * i, a + 2 * i, a + 16 + 2 * i)
        for i in range(4):
            if pre:
                ops.append(f"v_pk_fma_f32 {V(a+2*i,2)}, {V(a+2*i,2)}, {V(G2R+2*half,2)}, {V(u+2*i,2)} op_sel_hi:[1,0,1]")
            else:
                ops.extend(f"v_fma_f32 {V(a+2*i+h)}, {V(a+2*i+h)}, {V(G2R+2*half)}, {V(u+2*i+h)}" for h in range(2))
        for i in range(4):
            ops.append(f"v_cvt_pk_bf16_f32 {V(a+24+i)}, {V(a+2*i)}, {V(a+2*i+1)}")
        if layer == 0:
            ops += quad_shuffle([(a + 28, a + 24)])
            ops.append(f"s_mov_b32 {S(sT1)}, {hex(XQ+XQ_SZ)}")
            ops.append((f"buffer_store_dwordx4 {V(a+28,4)}, {V(vOQ)}, {S(SRD_WS,4)}, {S(sT1)} offen offset:{64*half} sc1", "st"))
            so = stats_ops(a + 24, 4, a, a + 1, a + 2)
            if not pre:
                so = so[10:]
                for i in range(4):
                    ops.append(f"v_lshlrev_b32 {V(a+16+2*i)}, 16, {V(a+24+i)}")
                    ops.append(f"v_and_b32 {V(a+16+2*i+1)}, {S(sHIM)}, {V(a+24+i)}")
                ops.append(f"v_add_f32 {V(a)}, {V(a+16)}, {V(a+17)}")
                ops.append(f"v_mul_f32 {V(a+1)}, {V(a+16)}, {V(a+16)}")
                for i in range(1, 8):
                    if i > 1:
                        ops.append(f"v_add_f32 {V(a)}, {V(a)}, {V(a+16+i)}")
                    ops.append(f"v_fmac_f32 {V(a+1)}, {V(a+16+i)}, {V(a+16+i)}")
            ops += so
            def at():
                k(f"s_mov_b32 {S(sT1)}, {hex(STATS[1])}")
                k("s_mov_b32 exec_lo, 0xff")
                k("s_mov_b32 exec_hi, 0xff")
                k(f"buffer_atomic_add_f64 {V(a+2,2)}, {V(vAT)}, {S(SRD_WS,4)}, {S(sT1)} offen offset:{64*half} sc1", tag="st")
                k("s_mov_b64 exec, -1")
            ops.append(at)
        else:
            ops.append(f"s_movk_i32 {S(sT1)}, {8*896*half}")
            ops.append(f"buffer_store_dwordx4 {V(a+24,4)}, {V(vOO)}, {S(SRD_OUT,4)}, {S(sT1)} offen")
        return ops
    NUP2 = opt("nup2", NR)
    for i in range(NUP2):
        ld()
        run(st, (len(st) + NUP2 - i - 1) // (NUP2 - i))
        if i == opt("flagB", 4):
            k.wait_tag_vm(("h", 3))
            gflag(layer, 1)
    assert not st
    stamp(16)
    PB = opt("pollB", 5)
    order = [(i, dt) for i in range(52) for dt in range(2)] + [(i, dt) for dt in range(2) for i in range(52, 56)]
    pend = []
    okB = False
    for n, (i, dt) in enumerate(order):
        half, s = divmod(i, 28)
        d = V(ACC + 32 * half + 16 * dt, 16)
        k(f"v_mfma_f32_32x32x16_bf16 {d}, {A((s*2+dt)*4,4)}, {rn(i)}, {d if s else 0}")
        if dt == 1 and i < 52:
            if i == 3:
                bar()
            if i == PB:
                poll_load(vPL2, vF2P, S(sFG), 1024)
            if nl[0] == 28 and not okB and i > PB and not any(f"v{vPL2}" in p[0] for p in k.vm[1:]):
                poll_check(vPL2, vF2P, S(sFG), 1024)
                okB = True
            if i in (0, 13, 27, 41):
                stamp({0: 8, 13: 8, 27: 23, 41: 26}[i]) if i else None
            if i == 29:
                for o in red_write(0):
                    pend += [o] + [None] * (4 * opt("rwgap", 1) - 1)
                pend += [None] * 4 + [bar]
                for o in red_read(0):
                    pend += [o, None]
                pend += [None] * 4 + fin(0, ACC + 8, False)
            if i == 50:
                pend += unpack(1, ACC + 8)
        if nl[0] < 56 and nl[0] - NR < i + dt and (nl[0] < 28 or okB):
            ld()
        c = 0
        while pend and c < 4 and not (nl[0] < 56 and "buffer_store" in str(pend[0])):
            run(pend, 1)
            c += 1
        if n == 110:
            assert not pend
            pend += red_write(1)[:4]
    run(pend)
    assert nl[0] == 56
    stamp(18)
    run(red_write(1)[4:])
    bar()
    run(red_read(1) + fin(1, ACC + 8, True))
    stamp(19)

def finish():
    if ENC >= 0:
        k.wait(vm=0)
        stamp(22)
        k(f"s_cmp_lg_u32 {S(sWG)}, 100")
        k("s_cbranch_scc1 L_end")
        k("s_sub_u32 s47, s47, s46")
        k("s_mul_i32 s47, s47, 100")
        k("s_min_u32 s47, s47, 1000000")
        k(f"s_memrealtime {S(sTM,2)}")
        k.wait(lg=0)
        k(f"s_mov_b32 s46, {S(sTM)}")
        k.label("L_spin")
        k(f"s_memrealtime {S(sTM,2)}")
        k.wait(lg=0)
        k(f"s_sub_u32 {S(sT0)}, {S(sTM)}, s46")
        k(f"s_cmp_lt_u32 {S(sT0)}, s47")
        k("s_cbranch_scc1 L_spin")
    if DIAG:
        k.wait(vm=0)
        stamp(22)
        stamp(30, True)
        k(f"s_lshl_b32 {S(sT0)}, {S(sWG)}, 10")
        k(f"s_add_u32 {S(sT0)}, {S(sT0)}, {hex(STAMP)}")
        k(f"v_lshlrev_b32 {V(WK)}, 2, {V(vTID)}")
        k(f"buffer_store_dword {V(vSTAMP)}, {V(WK)}, {S(SRD_WS,4)}, {S(sT0)} offen")
    k.label("L_end")
    k("s_endpgm")

prologue()
main_start()
kgen()
conv(0)
handoff1(0)
ffn(0)
handoff(0x10000, sb=20)
LAY[0] = 1
run(conv_load_ops(1))
conv(1)
handoff1(1)
ffn(1)
finish()
body = list(k.lines)
body += [".p2align 4", ".type L_table,@object", "L_table:"]
body += [".long " + ",".join(hex(w) for w in r) for r in table_words()]
body += ["L_table_end:"]

ref = open("cdna_kernels/%s.s.ref" % NAME).read().splitlines()
hdr = [l for l in ref if l.startswith(";") and "@launch" not in l]
head = f""".amdgcn_target "amdgcn-amd-amdhsa--gfx950"
.text
.globl {NAME}_kernel
.p2align 8
.type {NAME}_kernel,@function
{NAME}_kernel:
"""
if opt("align", 1):
    body = align(body, head, stubs=stub_targets())
out = "\n".join(hdr) + f"\n; @launch grid=(256,1,1) block=(256,1,1) lds={LDS_BYTES}\n"
out += head + "\n".join(body) + "\n"
out += f""".section .rodata,"a"
.p2align 6
.amdhsa_kernel {NAME}_kernel
  .amdhsa_next_free_vgpr 512
  .amdhsa_next_free_sgpr 102
  .amdhsa_accum_offset 256
  .amdhsa_group_segment_fixed_size 0
  .amdhsa_kernarg_size 120
  .amdhsa_user_sgpr_count 2
  .amdhsa_user_sgpr_kernarg_segment_ptr 1
  .amdhsa_system_sgpr_workgroup_id_x 1
.end_amdhsa_kernel
"""
dst = [a for a in sys.argv[1:] if not a.startswith("--")]
dst = dst[0] if dst else "cdna_kernels/%s.s" % NAME
open(dst, "w").write(out)
print("instructions:", k.nins, "->", dst)
```

```python
import sys, struct
from emit import Asm, V, A, S
from align import align

NAME = "interleave_layers__ssm_conv_s4__dense_activation_relu__prompt"
DIAG = "--diag" in sys.argv
OPT = {}
for a in sys.argv:
    if a.startswith("--") and "=" in a:
        n, v = a[2:].split("=")
        OPT[n] = int(v)
LAY = [0]
def opt(n, d):
    return OPT.get(f"{n}.{LAY[0]}", OPT.get(n, d))

def f2u(x):
    return "0x%08x" % struct.unpack("<I", struct.pack("<f", x))[0]

FA = lambda n: n * 0x8000
F_CIN0, F_X1, F_CIN1 = 0, ((1, 2), (5, 6)), (3, 4)
FLG_G = 0x38000
STATS = (0x50000, 0x48000)
XQ = 0x60000
XQ_SZ = 0x1C0000
X1T = 0x3E0000
HB = 0x760000
H_SZ = 0x700000
W1C = 0x1560000
FLG_W = 0x16E8000
STAMP = 0x1700000
W2T = 0x1740000
WS_BYTES = 0x1810000

XHALF = 57344 + 32
SCR = 114816
SCR_ST = 8960
KC0 = 4608
ROW_ST = 544
UARR = SCR + 4 * SCR_ST
U_ST = 4576
LDS_BYTES = 163840
WREG = 28672
RED_G = 1152
RED_W = 8 * RED_G
RED_H = 4 * RED_W

sWG, sW = 2, 3
SRD_WS, SRD_OUT, SRD_W1, SRD_W2, SRD_X0, SRD_DBG = 4, 8, 12, 16, 20, 24
sCP, sGAM, sJ, sHH, sDS, sROT = 58, 59, 60, 61, 62, 63
sONES, sHIM = 64, 65
sT0, sT1, sT2, sT3, sT4, sT5 = 66, 67, 68, 69, 70, 71
sLDT, sDSK = 72, 73
sREP, sXQi, sW2B, sXT, sHL, sHS, sFG = 74, 75, 76, 77, 78, 79, 80
sSPIN = 81
sC0, sC1 = 82, 83
sPC = 84
sTM = 86
sWL = 88
sW2O = 89
sSCR, sSCH = 90, 95
sPERM0, sPERM1 = 91, 92
sNH, sCH = 93, 94
sROLE = 100
sKO = 28
sW2L, sPA = 96, 97

vTID, vL, vL16 = 0, 1, 2
vCX, vUW, vXW = 3, 4, 5
vKF = 6
vUF, vXR, vCO, vEXW, vEXR = 10, 11, 12, 13, 14
vFW, vFP, vONE, vSTAMP, vPA = 15, 16, 17, 18, 19
vXA0, vXA1, vST, vRES, vRW, vRR, vO, vAT, vF2P, vFL, vHL, vPL2 = range(20, 32)
vW2S, vW2R, vWF, vDUM = 20, 21, 23, 26
LIN = 20
WK = 32
W1R = 144
AX = 224

k = Asm()
SPIN_MAX = 1 << 16

ENC = opt("enc", -1)
def stamp(idx, cyc=False):
    if ENC >= 0 and not cyc and idx + 32 * LAY[0] in (0, ENC):
        k.wait(lg=0)
        k(f"s_memrealtime {S(sTM,2)}")
        k.wait(lg=0)
        k(f"s_mov_b32 {S(46 if idx + 32*LAY[0] == 0 else 47)}, {S(sTM)}")
    if not DIAG:
        return
    if opt("lite", 0) and idx + 32 * LAY[0] not in (0, 9, 14, 19, 46, 54):
        return
    k.wait(lg=0)
    k(f"{'s_memtime' if cyc != bool(opt('cyc', 0)) else 's_memrealtime'} {S(sTM,2)}")
    k.wait(lg=0)
    k(f"v_writelane_b32 {V(vSTAMP)}, {S(sTM)}, {idx + 32*LAY[0]}")

def srd(base, ptr, nbytes):
    k(f"s_mov_b32 {S(base)}, {S(ptr)}")
    k(f"s_and_b32 {S(base+1)}, {S(ptr+1)}, 0xffff")
    k(f"s_mov_b32 {S(base+2)}, {hex(nbytes)}")
    k(f"s_mov_b32 {S(base+3)}, 0x20000")

_lab = [0]
def newlab(p):
    _lab[0] += 1
    return f"L_{p}_{_lab[0]}"

def branch(op, lab):
    k.fence(1)
    k(f"{op} {lab}")

def label(lab):
    k.fence()
    k.label(lab)

def poll_load(vtmp, vaddr, soff, off=0, srdn=SRD_WS):
    k(f"buffer_load_dword {V(vtmp)}, {V(vaddr)}, {S(srdn,4)}, {soff} offen offset:{off} sc1")

def poll_check(vtmp, vaddr, soff, off=0, srdn=SRD_WS):
    lp, ok = newlab("poll"), newlab("ok")
    k(f"v_cmp_eq_u32 vcc, 0, {V(vtmp)}")
    saved = list(k.vm)
    k.skip_begin("s_cbranch_vccz", ok)
    k(f"s_mov_b32 {S(sSPIN)}, 0")
    k.label(lp)
    if opt("sleep", 2):
        k(f"s_sleep {opt('sleep', 2)}")
    poll_load(vtmp, vaddr, soff, off, srdn)
    k(f"s_add_u32 {S(sSPIN)}, {S(sSPIN)}, 1")
    k.wait(vm=0)
    k(f"v_cmp_eq_u32 vcc, 0, {V(vtmp)}")
    k(f"s_cmp_gt_u32 {S(sSPIN)}, {SPIN_MAX}")
    k(f"s_cbranch_scc1 {ok}")
    k(f"s_cbranch_vccnz {lp}")
    k.skip_end(ok)
    k.vm = saved

def run(ops, n=None):
    c = 0
    while ops and (n is None or c < n):
        o = ops.pop(0)
        if callable(o):
            o()
        elif isinstance(o, tuple):
            k(o[0], tag=o[1])
        elif o is not None:
            k(o)
        c += 1

def stats_ops(P, n, vS, vQ, vT):
    o = [f"v_mov_b32 {V(vS)}, 0", f"v_mov_b32 {V(vQ)}, 0"]
    for i in range(n):
        o.append(f"v_dot2c_f32_bf16 {V(vS)}, {S(sONES)}, {V(P+i)}")
        o.append(f"v_dot2c_f32_bf16 {V(vQ)}, {V(P+i)}, {V(P+i)}")
    o += [f"v_permlane32_swap_b32 {V(vS)}, {V(vQ)}",
          f"v_add_f32 {V(vS)}, {V(vS)}, {V(vQ)}",
          f"v_mov_b32 {V(vT)}, {V(vS)}",
          f"v_permlane16_swap_b32 {V(vS)}, {V(vT)}",
          f"v_add_f32 {V(vS)}, {V(vS)}, {V(vT)}",
          f"v_add_f32_dpp {V(vS)}, {V(vS)}, {V(vS)} row_ror:8 row_mask:0xf bank_mask:0xf",
          f"v_lshrrev_b32 {V(vT)}, 1, {V(vS)}",
          f"v_add_u32 {V(vQ)}, {hex(8 << 23)}, {V(vS)}",
          f"v_add_u32 {V(vT)}, {hex(0x1FC00000 + (13 << 23))}, {V(vT)}",
          f"v_permlane32_swap_b32 {V(vT)}, {V(vQ)}",
          f"v_and_b32 {V(vQ)}, 0x7f800000, {V(vQ)}",
          f"v_mul_f32 {V(vQ)}, 0x3fc00000, {V(vQ)}",
          f"v_add_f32 {V(vS)}, {V(vS)}, {V(vQ)}",
          f"v_sub_f32 {V(vS)}, {V(vS)}, {V(vQ)}"]
    return o

def quad_shuffle(pairs):
    D = " row_mask:0xf bank_mask:0xf"
    o = ["s_mov_b32 vcc_lo, 0x0f0f0f0f", "s_mov_b32 vcc_hi, 0x0f0f0f0f"]
    for d, s in pairs:
        o.append(f"v_cndmask_b32_dpp {V(d)}, {V(s+2)}, {V(s)}, vcc row_ror:4" + D)
        o.append(f"v_cndmask_b32_dpp {V(d+2)}, {V(s+3)}, {V(s+1)}, vcc row_ror:4" + D)
    o.append("s_not_b64 vcc, vcc")
    for d, s in pairs:
        o.append(f"v_cndmask_b32_dpp {V(d+1)}, {V(s)}, {V(s+2)}, vcc row_ror:12" + D)
        o.append(f"v_cndmask_b32_dpp {V(d+3)}, {V(s+1)}, {V(s+3)}, vcc row_ror:12" + D)
    return o

X0R = WK
X0O = WK + 8
vP0A = WK + 16
vP0S = WK + 20
vGO = WK + 28

def p0x_addr():
    k.c("row re-layout unit of this wave: W = 4m+w, octet group a = W%7, rows (blk, j2) = W/7, both hh8")
    t = vP0A
    k(f"s_sub_u32 {S(sT0)}, {S(sWG)}, 32")
    k(f"s_lshl2_add_u32 {S(sT0)}, {S(sT0)}, {S(sW)}")
    k(f"s_mul_i32 {S(sT1)}, {S(sT0)}, 9363")
    k(f"s_lshr_b32 {S(sT1)}, {S(sT1)}, 16")
    k(f"s_mul_i32 {S(sT2)}, {S(sT1)}, 7")
    k(f"s_sub_u32 {S(sT0)}, {S(sT0)}, {S(sT2)}")
    k(f"s_lshr_b32 {S(sT2)}, {S(sT1)}, 2")
    k(f"s_lshl_b32 {S(sT2)}, {S(sT2)}, 6")
    k(f"s_and_b32 {S(sT3)}, {S(sT1)}, 3")
    k(f"s_lshl1_add_u32 {S(sT2)}, {S(sT3)}, {S(sT2)}")
    k(f"v_and_b32 {V(t+1)}, 0x30, {V(vL16)}")
    k(f"v_bfe_u32 {V(t)}, {V(vL)}, 2, 1")
    k(f"v_add3_u32 {V(t+3)}, {V(t+1)}, {V(t)}, {S(sT2)}")
    k(f"v_mul_u32_u24 {V(t+3)}, 896, {V(t+3)}")
    k(f"v_lshrrev_b32 {V(t+2)}, 3, {V(vL)}")
    k(f"v_lshl_add_u32 {V(t+3)}, {V(t+2)}, 4, {V(t+3)}")
    k(f"s_lshl_b32 {S(sT2)}, {S(sT0)}, 7")
    k(f"v_add_u32 {V(t+3)}, {S(sT2)}, {V(t+3)}")
    k(f"v_lshl_add_u32 {V(t)}, {V(t)}, 2, {V(t+1)}")
    k(f"v_lshrrev_b32 {V(t+2)}, 5, {V(vL)}")
    k(f"v_lshl_add_u32 {V(t)}, {V(t+2)}, 3, {V(t)}")
    k(f"s_lshl_b32 {S(sT2)}, {S(sT1)}, 7")
    k(f"v_add_u32 {V(t)}, {S(sT2)}, {V(t)}")
    k(f"v_lshrrev_b32 {V(t+2)}, 2, {V(vL)}")
    k(f"v_lshl_add_u32 {V(t+1)}, {V(t+2)}, 14, {V(t+1)}")
    k(f"s_lshl_b32 {S(sT0)}, {S(sT0)}, 18")
    k(f"s_lshl_b32 {S(sT1)}, {S(sT1)}, 7")
    k(f"s_add_u32 {S(sT0)}, {S(sT0)}, {S(sT1)}")
    k(f"v_add_u32 {V(t+1)}, {S(sT0)}, {V(t+1)}")

def p0x_loads():
    k(f"s_movk_i32 {S(sT0)}, {8*896}")
    k(f"buffer_load_dwordx4 {V(X0R,4)}, {V(vP0A+3)}, {S(SRD_X0,4)}, 0 offen")
    k(f"buffer_load_dwordx4 {V(X0R+4,4)}, {V(vP0A+3)}, {S(SRD_X0,4)}, {S(sT0)} offen")

def p0x_body():
    t = vP0A
    run(quad_shuffle([(X0O + 4 * a, X0R + 4 * a) for a in range(2)]))
    k(f"s_mov_b32 {S(sT0)}, {hex(XQ)}")
    for a in range(2):
        k(f"buffer_store_dwordx4 {V(X0O+4*a,4)}, {V(t+1)}, {S(SRD_WS,4)}, {S(sT0)} offen offset:{64*a} sc1")
    s0 = stats_ops(X0R, 4, vP0S, vP0S + 1, vP0S + 2)
    s1 = stats_ops(X0R + 4, 4, vP0S + 4, vP0S + 5, vP0S + 6)
    while s0:
        run(s0, 1)
        run(s1, 1)

def p0x_atomics():
    poll_check(vGO, vGO + 1, 0, 0, SRD_DBG)
    k(f"s_mov_b32 {S(sT0)}, {hex(STATS[0])}")
    k("s_mov_b32 exec_lo, 0xff")
    k("s_mov_b32 exec_hi, 0xff")
    for a in range(2):
        k(f"buffer_atomic_add_f32 {V(vP0S+4*a)}, {V(vP0A)}, {S(SRD_WS,4)}, {S(sT0)} offen offset:{64*a} sc1", tag="st")
    k("s_mov_b64 exec, -1")

def flag_all(off):
    k(f"s_mov_b32 {S(sT0)}, {hex(off)}")
    k(f"s_mov_b64 exec, 0xff")
    k(f"buffer_store_dword {V(vONE)}, {V(vFW)}, {S(SRD_WS,4)}, {S(sT0)} offen sc1")
    k(f"s_mov_b64 exec, -1")

ND = [0]
def w2_dma():
    d = ND[0]
    ND[0] += 1
    if d == 0:
        k(f"s_mul_i32 {S(sT4)}, {S(sW)}, {WREG}")
        k(f"s_mov_b32 m0, {S(sT4)}")
    elif d % 4 == 0:
        k(f"s_add_u32 m0, m0, 4096")
    if d:
        k(f"s_add_u32 {S(sW2B)}, {S(sW2B)}, {7168 - 1024 + (4096 if d % 4 == 0 else 0)}")
    k(f"buffer_load_dwordx4 {V(vW2S)}, {S(SRD_W2,4)}, {S(sW2B)} offen offset:{1024*(d%4)} lds", tag=("w2", d))

NW2 = [0]
def w2_load():
    n = NW2[0]
    NW2[0] += 1
    k(f"buffer_load_dwordx4 {A(112+4*n,4)}, {V(vL16)}, {S(SRD_WS,4)}, {S(sW2L)} offen offset:{1024*(n%4)} sc1")
    if n % 4 == 3:
        k(f"s_add_u32 {S(sW2L)}, {S(sW2L)}, 4096")

def w2_tr_ops(lo, hi):
    return [f"ds_read_b64_tr_b16 {A((s*2+dt)*4+2*u,2)}, {V(vW2R+dt)} offset:{(s%14)*2048+u*1024}"
            for s in range(lo, hi) for dt in range(2) for u in range(2)]

NW1 = [0]
def w1_load():
    ks = NW1[0]
    NW1[0] += 1
    k(f"buffer_load_dwordx4 {V(W1R+4*ks,4)}, {V(vL16)}, {S(SRD_WS,4)}, {S(sWL)} offen offset:{1024*(ks%4)} sc1")
    if ks % 4 == 3:
        k(f"s_add_u32 {S(sWL)}, {S(sWL)}, 4096")

def prologue():
    k(f"s_getpc_b64 {S(sPC,2)}")
    k.label("L_pc")
    if ENC == 0:
        k("s_memrealtime s[98:99]")
    k(f"s_cmp_ge_u32 {S(sWG)}, 256")
    k("s_cbranch_scc1 L_end")
    k("s_load_dwordx16 s[28:43], s[0:1], 0")
    k("s_load_dwordx8 s[44:51], s[0:1], 64")
    k("s_load_dwordx4 s[52:55], s[0:1], 96")
    k("s_load_dwordx2 s[56:57], s[0:1], 112")
    k.c("wave 0 of each helper pulls a quarter of the code into L2")
    k(f"s_cmp_ge_u32 {S(sWG)}, 32")
    k("s_cbranch_scc1 L_nopf")
    k(f"v_cmp_gt_u32 vcc, 64, {V(vTID)}")
    k(f"s_lshr_b32 {S(sT0)}, {S(sWG)}, 3")
    k(f"s_lshl_b32 {S(sT0)}, {S(sT0)}, 7")
    k(f"v_lshl_add_u32 {V(vL16)}, {V(vTID)}, 9, {S(sT0)}")
    k("s_cbranch_vccz L_nopf")
    for q in range(2):
        k(f"v_min_u32 {V(vL16)}, L_table_end-L_pc-4, {V(vL16)}")
        k(f"global_load_dword {V(vDUM)}, {V(vL16)}, {S(sPC,2)}")
        k.vm = []
        if q == 0:
            k(f"v_add_u32 {V(vL16)}, 0x8000, {V(vL16)}")
    k.label("L_nopf")
    k(f"v_lshrrev_b32 {V(vONE)}, 6, {V(vTID)}")
    k(f"v_and_b32 {V(vL)}, 63, {V(vTID)}")
    k(f"v_readfirstlane_b32 {S(sW)}, {V(vONE)}")
    k(f"v_lshlrev_b32 {V(vL16)}, 4, {V(vL)}")
    k(f"v_mov_b32 {V(vONE)}, 1")
    if DIAG:
        k(f"v_mov_b32 {V(vSTAMP)}, 0")
    k(f"s_mov_b32 {S(sONES)}, 0x3f803f80")
    k(f"s_mov_b32 {S(sHIM)}, 0xffff0000")
    k(f"s_sub_u32 {S(sT0)}, {S(sWG)}, 32")
    k(f"s_and_b32 {S(sT1)}, {S(sT0)}, 7")
    k(f"s_lshr_b32 {S(sT0)}, {S(sT0)}, 3")
    k(f"s_mul_i32 {S(sCP)}, {S(sT1)}, 28")
    k(f"s_add_u32 {S(sCP)}, {S(sCP)}, {S(sT0)}")
    k(f"s_cmp_ge_u32 {S(sT0)}, 14")
    k(f"s_cselect_b32 {S(sT2)}, 1, 0")
    k(f"s_cselect_b32 {S(sT3)}, 14, 0")
    k(f"s_lshl_b32 {S(sGAM)}, {S(sT1)}, 1")
    k(f"s_add_u32 {S(sGAM)}, {S(sGAM)}, {S(sT2)}")
    k(f"s_sub_u32 {S(sJ)}, {S(sT0)}, {S(sT3)}")
    k(f"s_and_b32 {S(sHH)}, {S(sJ)}, 1")
    k(f"s_lshr_b32 {S(sDS)}, {S(sJ)}, 1")
    k(f"s_and_b32 {S(sNH)}, {S(sW)}, 1")
    k(f"s_lshr_b32 {S(sCH)}, {S(sW)}, 1")
    k(f"s_lshl_b32 {S(sREP)}, {S(sT1)}, 12")
    k(f"s_lshl_b32 {S(sT0)}, {S(sWG)}, 4")
    k(f"v_lshlrev_b32 {V(vFW)}, 12, {V(vL)}")
    k(f"v_add_u32 {V(vFW)}, {S(sT0)}, {V(vFW)}")
    p0x_addr()
    k(f"v_and_b32 {V(vGO+1)}, 3, {V(vL)}")
    k(f"v_lshlrev_b32 {V(vGO+1)}, 6, {V(vGO+1)}")
    k(f"s_lshl_b32 {S(sT0)}, {S(sCP)}, 10")
    k(f"v_lshl_add_u32 {V(PRM+6)}, {V(vTID)}, 2, {S(sT0)}")
    k.wait(lg=0)
    srd(SRD_X0, 28, 2048 * 896)
    srd(SRD_WS, 56, WS_BYTES)
    srd(SRD_DBG, 54, 256)
    stamp(0)
    stamp(30, True)
    k(f"s_cmp_ge_u32 {S(sWG)}, 32")
    branch("s_cbranch_scc1", "L_main")
    z = HZ
    for i in range(4):
        k(f"v_mov_b32 {V(z+i)}, 0")
    k(f"s_lshl_b32 {S(sT5)}, {S(sWG)}, 7")
    k(f"s_add_u32 {S(sT5)}, {S(sT5)}, {hex(FLG_W)}")
    l1, l2 = newlab("h1"), newlab("h2")
    k(f"s_cmp_lg_u32 {S(sW)}, 1")
    branch("s_cbranch_scc1", l1)
    k(f"s_mul_i32 {S(sT0)}, {S(sWG)}, 9216")
    k(f"s_add_u32 {S(sT0)}, {S(sT0)}, 0x8000")
    k(f"s_add_u32 {S(sT1)}, {S(sT0)}, 4096")
    k(f"s_add_u32 {S(sT2)}, {S(sT0)}, 8192")
    for i in range(9):
        k(f"buffer_store_dwordx4 {V(z,4)}, {V(vL16)}, {S(SRD_WS,4)}, {S(sT0+i//4)} offen offset:{1024*(i%4)} sc1")
    k("s_mov_b64 exec, 0xff")
    k(f"buffer_store_dwordx4 {V(z,4)}, {V(vL16)}, {S(SRD_WS,4)}, {S(sT5)} offen sc1")
    k("s_mov_b64 exec, -1")
    label(l1)
    k.forget()
    k(f"s_and_b32 {S(sT2)}, {S(sWG)}, 7")
    k(f"s_cmp_lg_u32 {S(sT2)}, 0")
    branch("s_cbranch_scc1", "L_helper")
    k(f"s_cmp_lt_u32 {S(sW)}, 2")
    branch("s_cbranch_scc1", l2)
    k(f"s_mul_i32 {S(sT0)}, {S(sNH)}, {hex(STATS[0])}")
    k(f"s_lshl_b32 {S(sT1)}, {S(sWG)}, 10")
    k(f"s_add_u32 {S(sT0)}, {S(sT0)}, {S(sT1)}")
    k(f"s_add_u32 {S(sT1)}, {S(sT0)}, 4096")
    for i in range(8):
        k(f"buffer_store_dwordx4 {V(z,4)}, {V(vL16)}, {S(SRD_WS,4)}, {S(sT0+i//4)} offen offset:{1024*(i%4)} sc1")
    stamp(4)
    k.wait(vm=0)
    label(l2)
    k.forget()
    k("s_barrier")
    stamp(5)
    k(f"s_cmp_lg_u32 {S(sW)}, 2")
    branch("s_cbranch_scc1", "L_helper")
    k(f"s_lshl_b32 {S(sT0)}, {S(sWG)}, 3")
    k("s_mov_b64 exec, 1")
    k(f"buffer_store_dword {V(vONE)}, {V(z)}, {S(SRD_DBG,4)}, {S(sT0)} offen sc1")
    k("s_mov_b64 exec, -1")
    branch("s_branch", "L_helper")
    label("L_main")
    k.forget()

def w2_lane_src(d, pitch, t0, t1):
    k(f"v_lshrrev_b32 {V(t0)}, 3, {V(vL)}")
    k(f"v_mul_u32_u24 {V(d)}, {pitch}, {V(t0)}")
    k(f"v_and_b32 {V(t0)}, 7, {V(vL)}")
    k(f"v_bfe_u32 {V(t1)}, {V(vL)}, 4, 1")
    k(f"v_lshlrev_b32 {V(t1)}, 2, {V(t1)}")
    k(f"v_xor_b32 {V(t0)}, {V(t0)}, {V(t1)}")
    k(f"v_lshl_add_u32 {V(d)}, {V(t0)}, 4, {V(d)}")

HZ = WK + 64
def helper():
    label("L_helper")
    k.forget()
    srd(SRD_W1, 48, 448 * 3584)
    srd(SRD_W2, 50, 1792 * 896)
    z = HZ
    F = WK + 112
    G = WK + 168
    t, a1, a2, aE, aO = z + 8, z + 10, z + 11, z + 12, z + 13
    IMG2 = 57344
    w2_lane_src(a1, 3584, t, t + 1)
    w2_lane_src(a2, 896, t, t + 1)
    k(f"s_min_u32 {S(sCP)}, {S(sWG)}, 27")
    k(f"s_mul_i32 {S(sT0)}, {S(sW)}, {112*3584}")
    k(f"s_lshl_b32 {S(sT1)}, {S(sCP)}, 7")
    k(f"s_add_u32 {S(sT0)}, {S(sT0)}, {S(sT1)}")
    k(f"s_mul_i32 {S(sT3)}, {S(sW)}, 14336")
    k(f"s_mov_b32 m0, {S(sT3)}")
    for c in range(14):
        k(f"buffer_load_dwordx4 {V(a1)}, {S(SRD_W1,4)}, {S(sT0)} offen lds", tag="w1")
        k(f"s_add_u32 m0, m0, 1024")
        k(f"s_add_u32 {S(sT0)}, {S(sT0)}, {8*3584}")
    k(f"v_bfe_u32 {V(t+1)}, {V(vL)}, 2, 2")
    k(f"v_lshlrev_b32 {V(t)}, 7, {V(t+1)}")
    k(f"v_bfe_u32 {V(t+1)}, {V(vL)}, 3, 1")
    k(f"v_lshl_add_u32 {V(t)}, {V(t+1)}, 6, {V(t)}")
    k(f"v_bfe_u32 {V(t+1)}, {V(vL)}, 4, 1")
    k(f"v_lshl_add_u32 {V(t)}, {V(t+1)}, 5, {V(t)}")
    k(f"v_and_b32 {V(t+1)}, 3, {V(vL)}")
    k(f"v_lshl_add_u32 {V(t)}, {V(t+1)}, 3, {V(t)}")
    k(f"v_lshrrev_b32 {V(t+1)}, 5, {V(vL)}")
    k(f"v_lshl_add_u32 {V(a1)}, {V(t+1)}, 10, {V(t)}")
    k(f"v_lshl_add_u32 {V(aE)}, {V(t+1)}, 9, {V(t)}")
    k(f"s_lshl_b32 {S(sT0)}, {S(sCH)}, 6")
    k(f"v_xor_b32 {V(a1)}, {S(sT0)}, {V(a1)}")
    k(f"s_mul_i32 {S(sT0)}, {S(sNH)}, 28672")
    k(f"v_add_u32 {V(a1)}, {S(sT0)}, {V(a1)}")
    k(f"s_lshl_b32 {S(sT0)}, {S(sNH)}, 6")
    k(f"v_xor_b32 {V(aE)}, {S(sT0)}, {V(aE)}")
    k(f"v_xor_b32 {V(aO)}, 64, {V(aE)}")
    k(f"s_mul_i32 {S(sT1)}, {S(sW)}, 7")
    k(f"s_lshr_b32 {S(sT0)}, {S(sT1)}, 1")
    k(f"s_lshl_b32 {S(sT0)}, {S(sT0)}, 11")
    k(f"s_add_u32 {S(sT0)}, {S(sT0)}, {IMG2}")
    k(f"v_add_u32 {V(aE)}, {S(sT0)}, {V(aE)}")
    k(f"s_add_u32 {S(sT0)}, {S(sT1)}, 1")
    k(f"s_lshr_b32 {S(sT0)}, {S(sT0)}, 1")
    k(f"s_lshl_b32 {S(sT0)}, {S(sT0)}, 11")
    k(f"s_add_u32 {S(sT0)}, {S(sT0)}, {IMG2}")
    k(f"v_add_u32 {V(aO)}, {S(sT0)}, {V(aO)}")
    k.wait(vm=0)
    k("s_barrier")
    stamp(3)
    wave0(lambda: poll_load(vGO, vGO + 1, 0, 0, SRD_DBG))
    for ks in range(14):
        for u in range(2):
            k(f"ds_read_b64_tr_b16 {V(F+4*ks+2*u,2)}, {V(a1)} offset:{ks*2048+u*512}")
    c, u_ = z, z + 2
    for i in range(56):
        k(f"v_dot2c_f32_bf16 {V(c)}, {S(sONES)}, {V(F+i)}")
    k(f"v_mov_b32 {V(u_)}, {V(c)}")
    k(f"v_permlane32_swap_b32 {V(c)}, {V(u_)}")
    k(f"v_add_f32 {V(c)}, {V(c)}, {V(u_)}")
    k(f"v_lshlrev_b32 {V(t)}, 2, {V(vTID)}")
    k(f"v_add_u32 {V(t)}, 0x18000, {V(t)}")
    k(f"ds_write_b32 {V(t)}, {V(c)}")
    k(f"v_xor_b32 {V(t)}, 256, {V(t)}")
    def f0():
        k.wait(vm=0)
        poll_check(vGO, vGO + 1, 0, 0, SRD_DBG)
        flag_all(0)
    wave0(f0)
    stamp(2)
    k(f"s_cmp_ge_u32 {S(sWG)}, 28")
    branch("s_cbranch_scc1", "L_end2")
    k.wait(lg=0)
    k("s_barrier")
    k(f"s_and_b32 {S(sT0)}, {S(sWG)}, 3")
    k(f"s_lshl3_add_u32 {S(sT0)}, {S(sT0)}, {S(sW)}")
    k(f"s_add_u32 {S(sT0)}, {S(sT0)}, 4")
    k(f"s_mul_i32 {S(sT0)}, {S(sT0)}, {56*896}")
    k(f"s_lshr_b32 {S(sT1)}, {S(sWG)}, 2")
    k(f"s_lshl_b32 {S(sT1)}, {S(sT1)}, 7")
    k(f"s_add_u32 {S(sT0)}, {S(sT0)}, {S(sT1)}")
    k(f"s_mul_i32 {S(sT3)}, {S(sW)}, 7168")
    k(f"s_add_u32 m0, {S(sT3)}, {IMG2}")
    for _ in range(7):
        k(f"buffer_load_dwordx4 {V(a2)}, {S(SRD_W2,4)}, {S(sT0)} offen lds", tag="w2")
        k(f"s_add_u32 m0, m0, 1024")
        k(f"s_add_u32 {S(sT0)}, {S(sT0)}, {8*896}")
    k(f"ds_read_b32 {V(u_)}, {V(t)}")
    k(f"s_lshl2_add_u32 {S(sT1)}, {S(sWG)}, {S(sW)}")
    k(f"s_mul_i32 {S(sT0)}, {S(sT1)}, 14336")
    k(f"s_add_u32 {S(sT0)}, {S(sT0)}, {hex(W1C)}")
    k(f"s_mul_i32 {S(sT1)}, {S(sT1)}, 7168")
    k(f"s_add_u32 {S(sT1)}, {S(sT1)}, {hex(W2T)}")
    k(f"v_add_f32 {V(c)}, {V(c)}, {V(u_)}")
    k(f"v_mul_f32 {V(c)}, {f2u(-1.0/448)}, {V(c)}")
    for i in range(56):
        tt = z + 4 + 2 * (i & 1)
        k(f"v_lshlrev_b32 {V(tt)}, 16, {V(F+i)}")
        k(f"v_and_b32 {V(tt+1)}, {S(sHIM)}, {V(F+i)}")
        pk("add", V(tt, 2), V(tt, 2), V(c, 2), bc=(1,))
        k(f"v_cvt_pk_bf16_f32 {V(F+i)}, {V(tt)}, {V(tt+1)}")
        if i % 4 == 3:
            ks = i // 4
            k(f"buffer_store_dwordx4 {V(F+4*ks,4)}, {V(vL16)}, {S(SRD_WS,4)}, {S(sT0)} offen offset:{1024*(ks%4)} sc1", tag="c")
            if ks % 4 == 3:
                k(f"s_add_u32 {S(sT0)}, {S(sT0)}, 4096")
    k.wait_tag_vm("w2")
    k("s_barrier")
    for i in range(7):
        for u in range(2):
            k(f"ds_read_b64_tr_b16 {V(G+4*i+2*u,2)}, {V(aO if i & 1 else aE)} offset:{(i//2)*2048+u*1024}")
    for i in range(7):
        k(f"buffer_store_dwordx4 {V(G+4*i,4)}, {V(vL16)}, {S(SRD_WS,4)}, {S(sT1)} offen offset:{1024*(i%4)} sc1")
        if i == 3:
            k(f"s_add_u32 {S(sT1)}, {S(sT1)}, 4096")
    k(f"v_mov_b32 {V(z)}, 0")
    for off in (0, 64):
        if off == 0:
            k.wait_tag_vm("c")
        else:
            k.wait(vm=0)
        k("s_barrier")
        def fl():
            k("s_mov_b64 exec, 1")
            k(f"buffer_store_dword {V(vONE)}, {V(z)}, {S(SRD_WS,4)}, {S(sT5)} offen offset:{off} sc1")
            k("s_mov_b64 exec, -1")
        wave0(fl)
        stamp(1 if off == 0 else 25)
    label("L_end2")
    if DIAG:
        k(f"s_lshl_b32 {S(sT0)}, {S(sWG)}, 10")
        k(f"s_add_u32 {S(sT0)}, {S(sT0)}, {hex(STAMP)}")
        k(f"v_lshlrev_b32 {V(WK)}, 2, {V(vTID)}")
        k(f"buffer_store_dword {V(vSTAMP)}, {V(WK)}, {S(SRD_WS,4)}, {S(sT0)} offen")
    k("s_endpgm")

KW = W1R
PRM = KW
TBL = KW + 8
GA = KW + 20
TA = GA + 17
vKW, vKR, vKC, vDSK = KW + 42, KW + 43, KW + 44, KW + 45

def table_words():
    import numpy as np
    def bf16r(m):
        u = struct.unpack("<I", struct.pack("<f", float(m)))[0]
        return (u + 0x7FFF + ((u >> 16) & 1)) >> 16
    pad = lambda q: q + (q >> 5) + (SCR_ST // 8 - 528 if q >= 512 else 0)
    rows = []
    for lam in range(128):
        e = []
        for i in range(17):
            m = 2047 - 16 * lam - i
            e.append(pad(min(m, max(bf16r(m), 0x4300) - 0x4280)) if m >= 0 else (KC0 + 4096 + 64) // 8)
        l = lam & 63
        j, g = l & 15, l >> 4
        base, mul, pst = ((0, 8, 2), (4, 8, 2), (256, 4, 2), (384, 2, 64))[g]
        for yt in range(2):
            for pi in range(2):
                e.append(pad(base + mul * (16 * yt + j) + pi * pst))
        e.append(SCR_ST // 8 + 132 * g + j)
        e += [0, 0]
        rows.append([e[2 * i] | (e[2 * i + 1] << 16) for i in range(12)])
    out = []
    for qd in range(3):
        for lam in range(128):
            out.append(rows[lam][4 * qd:4 * qd + 4])
    return out

def addr_conv():
    t0, t1, t2, t3 = KW + 100, KW + 101, KW + 102, KW + 103
    r16, g4, cc = KW + 104, KW + 105, KW + 106
    o = []
    e = o.append
    e(f"v_and_b32 {V(r16)}, 15, {V(vL)}")
    e(f"v_lshrrev_b32 {V(g4)}, 4, {V(vL)}")
    e(f"v_and_b32 {V(cc)}, 3, {V(vL)}")
    e(f"s_mul_i32 {S(sSCR)}, {S(sW)}, {SCR_ST}")
    e(f"s_add_u32 {S(sSCR)}, {S(sSCR)}, {SCR}")
    e(f"s_mul_i32 {S(sSCH)}, {S(sCH)}, {2*SCR_ST}")
    e(f"s_add_u32 {S(sSCH)}, {S(sSCH)}, {SCR}")
    e(f"v_lshl_add_u32 {V(vKW)}, {V(vL)}, 3, {S(sSCR)}")
    e(f"v_mul_u32_u24 {V(vKR)}, {ROW_ST}, {V(r16)}")
    e(f"v_lshl_add_u32 {V(vKR)}, {V(g4)}, 4, {V(vKR)}")
    e(f"v_add_u32 {V(vKR)}, {S(sSCR)}, {V(vKR)}")
    e(f"v_and_b32 {V(t0)}, 127, {V(vTID)}")
    e(f"s_add_u32 {S(sT2)}, {S(sSCH)}, {KC0}")
    e(f"v_lshl_add_u32 {V(vKC)}, {V(t0)}, 5, {S(sT2)}")
    e(f"v_lshrrev_b32 {V(t0)}, 5, {V(vL)}")
    e(f"v_bfe_u32 {V(t1)}, {V(vL)}, 2, 2")
    e(f"v_lshlrev_b32 {V(t3)}, 9, {V(t0)}")
    e(f"v_lshl_add_u32 {V(t3)}, {V(t1)}, 7, {V(t3)}")
    e(f"v_bfe_u32 {V(t1)}, {V(vL)}, 3, 1")
    e(f"v_lshl_add_u32 {V(t3)}, {V(t1)}, 6, {V(t3)}")
    e(f"v_bfe_u32 {V(t1)}, {V(vL)}, 4, 1")
    e(f"v_lshl_add_u32 {V(t3)}, {V(t1)}, 5, {V(t3)}")
    e(f"v_lshl_add_u32 {V(t3)}, {V(cc)}, 3, {V(t3)}")
    e(f"s_mul_i32 {S(sT2)}, {S(sW)}, {WREG}")
    e(f"v_add_u32 {V(vW2R)}, {S(sT2)}, {V(t3)}")
    e(f"v_xor_b32 {V(vW2R+1)}, 64, {V(vW2R)}")
    e(f"v_lshrrev_b32 {V(t0)}, 3, {V(vTID)}")
    e(f"v_and_b32 {V(t1)}, 0x70, {V(vL16)}")
    e(f"v_lshl_add_u32 {V(vCX)}, {V(t0)}, 8, {V(t1)}")
    e(f"v_lshrrev_b32 {V(t0)}, 4, {V(vTID)}")
    e(f"v_and_b32 {V(t2)}, 8, {V(vL)}")
    e(f"v_lshl_add_u32 {V(t2)}, {V(t0)}, 7, {V(t2)}")
    e(f"v_lshl_add_u32 {V(t2)}, {V(cc)}, 5, {V(t2)}")
    e(f"v_bfe_u32 {V(t1)}, {V(vL)}, 2, 1")
    e(f"v_lshl_add_u32 {V(t2)}, {V(t1)}, 4, {V(t2)}")
    e(f"v_add_u32 {V(vUW)}, {UARR+480}, {V(t2)}")
    e(f"s_mul_i32 {S(sT2)}, {S(sCH)}, {SCR_ST-1024}")
    e(f"s_add_u32 {S(sT2)}, {S(sT2)}, {SCR}")
    e(f"v_add_u32 {V(vXW)}, {S(sT2)}, {V(t2)}")
    e(f"v_and_b32 {V(t0)}, 1, {V(vL)}")
    e(f"v_xor_b32 {V(t0)}, 1, {V(t0)}")
    e(f"v_mul_u32_u24 {V(t1)}, {SCR_ST+64-2}, {V(t0)}")
    e(f"v_lshlrev_b32 {V(t2)}, 1, {V(r16)}")
    e(f"v_sub_u32 {V(t1)}, {V(t1)}, {V(t2)}")
    e(f"v_lshl_add_u32 {V(t1)}, {V(g4)}, 4, {V(t1)}")
    e(f"s_lshl_b32 {S(sT3)}, {S(sNH)}, 8")
    e(f"s_sub_u32 {S(sT2)}, {S(sSCH)}, {S(sT3)}")
    e(f"s_add_u32 {S(sT2)}, {S(sT2)}, {KC0 + 2*2031 - 512 - 192}")
    e(f"v_add_u32 {V(vKF)}, {S(sT2)}, {V(t1)}")
    for a in range(1, 4):
        e(f"v_subrev_u32 {V(vKF+a)}, {1024*a}, {V(vKF)}")
    e(f"v_lshlrev_b32 {V(t1)}, 5, {V(r16)}")
    e(f"v_lshl_add_u32 {V(t1)}, {V(g4)}, 4, {V(t1)}")
    e(f"s_mul_i32 {S(sT2)}, {S(sCH)}, {U_ST}")
    e(f"s_sub_u32 {S(sT2)}, {S(sT2)}, {S(sT3)}")
    e(f"s_add_u32 {S(sT2)}, {S(sT2)}, {UARR + 480 - 32 - 192}")
    e(f"v_add_u32 {V(vUF)}, {S(sT2)}, {V(t1)}")
    e(f"v_mov_b32 {V(vXR)}, {V(vKW)}")
    e(f"v_add_u32 {V(vEXW)}, {S(sSCR)}, {V(vL16)}")
    e(f"s_xor_b32 {S(sT2)}, {S(sW)}, 1")
    e(f"s_mul_i32 {S(sT2)}, {S(sT2)}, {SCR_ST}")
    e(f"s_add_u32 {S(sT2)}, {S(sT2)}, {SCR}")
    e(f"v_add_u32 {V(vEXR)}, {S(sT2)}, {V(vL16)}")
    e(f"v_lshrrev_b32 {V(t0)}, 3, {V(vL)}")
    e(f"v_mul_u32_u24 {V(vCO)}, 114688, {V(t0)}")
    e(f"v_and_b32 {V(t0)}, 7, {V(vL)}")
    e(f"s_and_b32 {S(sT2)}, {S(sCP)}, 1")
    e(f"s_lshl_b32 {S(sT3)}, {S(sT2)}, 2")
    e(f"v_xor_b32 {V(t0)}, {S(sT3)}, {V(t0)}")
    e(f"v_lshl_add_u32 {V(vCO)}, {V(t0)}, 4, {V(vCO)}")
    e(f"s_lshl_b32 {S(sT2)}, {S(sT2)}, 3")
    e(f"s_lshr_b32 {S(sXQi)}, {S(sCP)}, 1")
    e(f"s_lshl_b32 {S(sXQi)}, {S(sXQi)}, 14")
    e(f"s_add_u32 {S(sXQi)}, {S(sXQi)}, {S(sT2)}")
    e(f"s_add_u32 {S(sXQi)}, {S(sXQi)}, {hex(XQ)}")
    e(f"s_lshl_b32 {S(sT2)}, {S(sCP)}, 1")
    e(f"s_add_u32 {S(sT2)}, {S(sT2)}, {S(sCH)}")
    e(f"s_lshl_b32 {S(sT2)}, {S(sT2)}, 7")
    e(f"s_mul_i32 {S(sT3)}, {S(sNH)}, {8*114688}")
    e(f"s_add_u32 {S(sT2)}, {S(sT2)}, {S(sT3)}")
    e(f"v_add_u32 {V(vCO)}, {S(sT2)}, {V(vCO)}")
    e(f"v_lshlrev_b32 {V(vFP)}, 4, {V(vTID)}")
    e(f"s_mov_b32 {S(sPERM0)}, 0x05040100")
    e(f"s_mov_b32 {S(sPERM1)}, 0x07060302")
    e(f"s_lshl_b32 {S(sT2)}, {S(sJ)}, 2")
    e(f"s_add_u32 {S(sT2)}, {S(sT2)}, {S(sW)}")
    e(f"s_mul_i32 {S(sWL)}, {S(sT2)}, 28672")
    e(f"s_add_u32 {S(sWL)}, {S(sWL)}, {hex(W1C)}")
    e(f"s_lshr_b32 {S(sT2)}, {S(sT2)}, 1")
    e(f"s_lshl_b32 {S(sT2)}, {S(sT2)}, 7")
    e(f"s_add_u32 {S(sT2)}, {S(sT2)}, {hex(FLG_W)}")
    e(f"v_mov_b32 {V(vWF+1)}, {S(sT2)}")
    e(f"s_lshl2_add_u32 {S(sT2)}, {S(sDS)}, {S(sW)}")
    e(f"s_mul_i32 {S(sW2L)}, {S(sT2)}, 28672")
    e(f"s_add_u32 {S(sW2L)}, {S(sW2L)}, {hex(W2T)}")
    e(f"s_lshl_b32 {S(sT2)}, {S(sT2)}, 7")
    e(f"s_add_u32 {S(sT2)}, {S(sT2)}, {hex(FLG_W+64)}")
    e(f"v_mov_b32 {V(vWF+2)}, {S(sT2)}")
    e(f"s_mul_i32 {S(sXT)}, {S(sGAM)}, 114688")
    e(f"s_add_u32 {S(sXT)}, {S(sXT)}, {hex(X1T)}")
    z = KW + 108
    for i in range(4):
        e(f"v_mov_b32 {V(z+i)}, 0")
    e(f"v_min_u32 {V(t0)}, 29, {V(vL)}")
    e(f"v_lshlrev_b32 {V(t0)}, 4, {V(t0)}")
    e(f"v_add_u32 {V(t0)}, {UARR}, {V(t0)}")
    e(f"ds_write_b128 {V(t0)}, {V(z,4)}")
    e(f"ds_write_b128 {V(t0)}, {V(z,4)} offset:{U_ST}")
    e(f"v_and_b32 {V(t0)}, 0x70, {V(vL16)}")
    e(f"v_add_u32 {V(t0)}, {S(sSCR)}, {V(t0)}")
    e(f"ds_write_b128 {V(t0)}, {V(z,4)} offset:{KC0+4096}")
    return o

def addr_ffn(layer):
    t0, t1, t2, t3 = WK + 84, WK + 85, WK + 86, WK + 87
    g4, rho, cc = WK + 88, WK + 89, WK + 90
    o = []
    e = o.append
    e(f"v_lshrrev_b32 {V(g4)}, 4, {V(vL)}")
    e(f"v_bfe_u32 {V(rho)}, {V(vL)}, 2, 2")
    e(f"v_and_b32 {V(cc)}, 3, {V(vL)}")
    e(f"v_lshrrev_b32 {V(t0)}, 5, {V(vL)}")
    e(f"v_bfe_u32 {V(t1)}, {V(vL)}, 4, 1")
    e(f"v_bfe_u32 {V(t2)}, {V(vL)}, 3, 1")
    e(f"v_lshlrev_b32 {V(t3)}, 7, {V(rho)}")
    e(f"v_lshl_add_u32 {V(t3)}, {V(t2)}, 6, {V(t3)}")
    e(f"v_lshl_add_u32 {V(vXA0)}, {V(t0)}, 10, {V(t3)}")
    e(f"v_lshl_add_u32 {V(vXA0)}, {V(cc)}, 4, {V(vXA0)}")
    e(f"v_lshl_add_u32 {V(vXA0)}, {V(t1)}, 3, {V(vXA0)}")
    e(f"v_xor_b32 {V(vXA1)}, 64, {V(vXA0)}")
    e(f"s_lshl_b32 {S(sT2)}, {S(sHH)}, 6")
    e(f"v_xor_b32 {V(t3)}, {S(sT2)}, {V(t3)}")
    e(f"s_lshl_b32 {S(sT2)}, {S(sNH)}, 5")
    e(f"s_lshl3_add_u32 {S(sT2)}, {S(sCH)}, {S(sT2)}")
    e(f"v_and_b32 {V(t0)}, 16, {V(vL16)}")
    e(f"v_add3_u32 {V(t3)}, {V(t3)}, {V(t0)}, {S(sT2)}")
    e(f"v_bfe_u32 {V(t0)}, {V(vL)}, 1, 1")
    e(f"v_mul_u32_u24 {V(vST)}, {XHALF}, {V(t0)}")
    e(f"v_lshl_add_u32 {V(vST)}, {V(g4)}, 10, {V(vST)}")
    e(f"v_add_u32 {V(vST)}, {V(vST)}, {V(t3)}")
    e(f"v_lshl_add_u32 {V(t0)}, {V(g4)}, 1, {V(t0)}")
    e(f"v_lshl_add_u32 {V(vRES)}, {V(t0)}, 10, {V(t3)}")
    e(f"s_lshl_b32 {S(sT2)}, {S(sDS)}, 13")
    e(f"v_add_u32 {V(vRES)}, {S(sT2)}, {V(vRES)}")
    e(f"s_mul_i32 {S(sT2)}, {S(sW)}, {RED_W}")
    e(f"v_add_u32 {V(vRW)}, {S(sT2)}, {V(vL16)}")
    e(f"v_lshrrev_b32 {V(t0)}, 3, {V(vL)}")
    e(f"v_and_b32 {V(t1)}, 0x70, {V(vL16)}")
    e(f"v_mul_u32_u24 {V(vRR)}, {RED_G}, {V(t0)}")
    e(f"s_lshl_b32 {S(sT2)}, {S(sW)}, 7")
    e(f"v_add3_u32 {V(vRR)}, {V(vRR)}, {V(t1)}, {S(sT2)}")
    e(f"s_and_b32 {S(sT2)}, {S(sGAM)}, 8")
    e(f"s_bfe_u32 {S(sT3)}, {S(sGAM)}, 0x20001")
    e(f"s_add_u32 {S(sT2)}, {S(sT2)}, {S(sT3)}")
    e(f"s_lshl2_add_u32 {S(sT2)}, {S(sCH)}, {S(sT2)}")
    e(f"s_lshl1_add_u32 {S(sT3)}, {S(sHH)}, {S(sNH)}")
    e(f"s_and_b32 {S(sT4)}, {S(sGAM)}, 1")
    e(f"v_lshlrev_b32 {V(t2)}, 4, {V(cc)}")
    e(f"v_bfe_u32 {V(t3)}, {V(vL)}, 2, 1")
    if layer == 0:
        e(f"s_lshl2_add_u32 {S(sT2)}, {S(sT2)}, {S(sT3)}")
        e(f"s_lshl1_add_u32 {S(sT2)}, {S(sT2)}, {S(sT4)}")
        e(f"s_lshl_b32 {S(sT2)}, {S(sT2)}, 6")
        e(f"v_lshl_add_u32 {V(vAT)}, {V(t3)}, 2, {V(t2)}")
        e(f"v_lshrrev_b32 {V(t3)}, 5, {V(vL)}")
        e(f"v_lshl_add_u32 {V(vAT)}, {V(t3)}, 3, {V(vAT)}")
        e(f"v_add_u32 {V(vAT)}, {S(sT2)}, {V(vAT)}")
        e(f"v_lshrrev_b32 {V(t3)}, 2, {V(vL)}")
        e(f"v_lshl_add_u32 {V(vO)}, {V(t3)}, 14, {V(t2)}")
        e(f"s_lshl_b32 {S(sT5)}, {S(sDS)}, 18")
        e(f"s_add_u32 {S(sT2)}, {S(sT2)}, {S(sT5)}")
        e(f"v_add_u32 {V(vO)}, {S(sT2)}, {V(vO)}")
    else:
        e(f"s_lshl3_add_u32 {S(sT2)}, {S(sT2)}, {S(sT4)}")
        e(f"s_lshl2_add_u32 {S(sT2)}, {S(sT2)}, {S(sT3)}")
        e(f"s_lshl_b32 {S(sT2)}, {S(sT2)}, 1")
        e(f"v_add3_u32 {V(t2)}, {V(t2)}, {V(t3)}, {S(sT2)}")
        e(f"v_mul_u32_u24 {V(vO)}, 896, {V(t2)}")
        e(f"v_lshl_add_u32 {V(vO)}, {V(t0)}, 4, {V(vO)}")
        e(f"s_lshl_b32 {S(sT2)}, {S(sDS)}, 7")
        e(f"v_add_u32 {V(vO)}, {S(sT2)}, {V(vO)}")
    e(f"v_min_u32 {V(t0)}, 13, {V(vL)}")
    e(f"s_mul_i32 {S(sT2)}, {S(sW)}, 14")
    e(f"v_add_lshl_u32 {V(vF2P)}, {V(t0)}, {S(sT2)}, 4")
    e(f"s_lshl2_add_u32 {S(sT3)}, {S(sJ)}, {S(sW)}")
    e(f"s_lshl_b32 {S(sT2)}, {S(sT3)}, 4")
    e(f"v_mov_b32 {V(vFL)}, {S(sT2)}")
    e(f"s_mul_i32 {S(sT2)}, {S(sGAM)}, {4*112*1024}")
    e(f"s_add_u32 {S(sT2)}, {S(sT2)}, {hex(HB + layer*H_SZ)}")
    e(f"s_lshl_b32 {S(sT3)}, {S(sT3)}, 11")
    e(f"s_add_u32 {S(sHS)}, {S(sT2)}, {S(sT3)}")
    e(f"s_lshl2_add_u32 {S(sT3)}, {S(sHH)}, {S(sW)}")
    e(f"s_mul_i32 {S(sT3)}, {S(sT3)}, {28*1024}")
    e(f"s_add_u32 {S(sHL)}, {S(sT2)}, {S(sT3)}")
    e(f"s_lshl_b32 {S(sFG)}, {S(sGAM)}, 11")
    e(f"s_add_u32 {S(sFG)}, {S(sFG)}, {hex(FLG_G + layer*0x8000)}")
    if layer:
        e(f"s_mov_b32 {S(SRD_OUT)}, s52")
        e(f"s_and_b32 {S(SRD_OUT+1)}, s53, 0xffff")
        e(f"s_mov_b32 {S(SRD_OUT+2)}, {hex(2048*896)}")
        e(f"s_mov_b32 {S(SRD_OUT+3)}, 0x20000")
    return o

def pk(op, d, a, b, c=None, bc=(), neg=(), emit=True):
    ops = [a, b] + ([c] if c is not None else [])
    n = len(ops)
    txt = f"v_pk_{op}_f32 {d}, " + ", ".join(ops)
    if bc:
        txt += " op_sel_hi:[" + ",".join("0" if i in bc else "1" for i in range(n)) + "]"
    if neg:
        m = "[" + ",".join("1" if i in neg else "0" for i in range(n)) + "]"
        txt += f" neg_lo:{m} neg_hi:{m}"
    if emit:
        k(txt)
    return txt

def cmul(d, a, b, t):
    assert d != a
    pk("mul", V(t, 2), V(a, 2), V(b, 2))
    pk("mul", V(t + 2, 2), V(a, 2), V(b + 2, 2))
    pk("fma", V(d, 2), V(a + 2, 2), V(b + 2, 2), V(t, 2), neg=(0,))
    pk("fma", V(d + 2, 2), V(a + 2, 2), V(b, 2), V(t + 2, 2))

NINIT = opt("ninit", 6)
NPG = opt("npg", 8)
def stub_targets():
    return [("L_ret0" if p <= 3 else (f"L_pg{p+4}" if p + 4 <= NPG else "L_ret1")) for p in range(1, NPG + 1)]

def touch(n):
    if not opt("touch", 1):
        k.label(f"L_ret{n}")
        return
    k("s_mov_b64 exec, 0")
    for w in range(4):
        p = w if n == 0 else 4 + w
        if 1 <= p <= NPG:
            k(f"s_cmp_eq_u32 {S(sW)}, {w}")
            k(f"s_cbranch_scc1 L_pg{p}")
    if n == 0:
        k("s_branch L_ret0")
        k.raw(".p2align 12")
    k.label(f"L_ret{n}")
    k("s_mov_b64 exec, -1")

def table_loads():
    t0 = KW + 100
    k(f"v_and_b32 {V(t0)}, 127, {V(vTID)}")
    k(f"v_lshlrev_b32 {V(t0)}, 4, {V(t0)}")
    k(f"v_add_u32 {V(t0)}, L_table-L_pc+2048, {V(t0)}")
    for q in range(3):
        k(f"global_load_dwordx4 {V(TBL+4*q,4)}, {V(t0)}, {S(sPC,2)} offset:{2048*(q-1)}")

def main_start():
    k.c("=== main workgroups")
    p0x_loads()
    for i in range(6):
        k(f"global_load_dword {V(PRM+i)}, {V(PRM+6)}, {S(30+2*i,2)}")
    k(f"s_lshl_b32 {S(sT0)}, {S(sCP)}, 2")
    k(f"s_load_dword {S(sLDT)}, s[42:43], {S(sT0)}")
    k(f"s_load_dword {S(sDSK)}, s[44:45], {S(sT0)}")
    k.lg = []
    srd(SRD_W2, 50, 1792 * 896)
    if opt("tblearly", 0):
        table_loads()
    w2_lane_src(vW2S, 896, KW + 100, KW + 101)
    k(f"s_mul_i32 {S(sW2B)}, {S(sW)}, {448*896}")
    k(f"s_lshl_b32 {S(sT2)}, {S(sDS)}, 7")
    k(f"s_add_u32 {S(sW2B)}, {S(sW2B)}, {S(sT2)}")
    ac = addr_conv()
    for i in range(NINIT):
        w2_dma()
        run(ac, len(ac) // (NINIT - i))
    run(ac)
    stamp(24)
    p0x_body()
    stamp(1)
    touch(0)

def conv_load_ops(layer, h, D):
    o = [f"s_mov_b32 {S(sT0)}, {hex(STATS[layer] + 8192*h)}",
         f"s_add_u32 {S(sT3)}, {S(sXQi)}, {hex(layer*XQ_SZ + 8192*h)}"]
    for j in range(2):
        o.append(f"buffer_load_dwordx4 {V(D+4*j,4)}, {V(vCX)}, {S(SRD_WS,4)}, {S(sT0)} offen offset:{128*j} sc1")
        o.append(f"buffer_load_dwordx2 {V(D+8+2*j,2)}, {V(vCX)}, {S(SRD_WS,4)}, {S(sT3)} offen offset:{128*j} sc1")
    return o

def kgen():
    k.c("=== K generation")
    B0 = KW + 46
    U = B0
    DT = B0 + 12
    W1_, W8_, W256 = B0 + 14, B0 + 18, B0 + 22
    T = B0 + 26
    P = [B0 + 30 + 4 * i for i in range(5)]
    CV = B0 + 50
    ACC = WK + 64
    FX, FY = (112, 144), (176, 208)
    for i in range(6):
        k(f"v_lshlrev_b32 {V(U+2*i)}, 16, {V(PRM+i)}")
        k(f"v_and_b32 {V(U+2*i+1)}, {S(sHIM)}, {V(PRM+i)}")
    k.wait(lg=0)
    k(f"s_lshl_b32 {S(sT0)}, {S(sCH)}, 4")
    k(f"s_lshr_b32 {S(sLDT)}, {S(sLDT)}, {S(sT0)}")
    k(f"s_lshl_b32 {S(sLDT)}, {S(sLDT)}, 16")
    k(f"s_lshr_b32 {S(sDSK)}, {S(sDSK)}, {S(sT0)}")
    k(f"s_lshl_b32 {S(sDSK)}, {S(sDSK)}, 16")
    k(f"v_mov_b32 {V(DT)}, {f2u(1.4426950408889634)}")
    k(f"v_mul_f32 {V(DT)}, {S(sLDT)}, {V(DT)}")
    k(f"v_exp_f32 {V(DT)}, {V(DT)}")
    k(f"s_cmp_eq_u32 {S(sNH)}, 0")
    k(f"s_cselect_b32 {S(sDSK)}, {S(sDSK)}, 0")
    k(f"v_cvt_pk_bf16_f32 {V(DT)}, {V(DT)}, {V(DT)}")
    k(f"v_mov_b32 {V(vDSK)}, 0")
    k(f"v_lshlrev_b32 {V(DT)}, 16, {V(DT)}")
    k(f"v_writelane_b32 {V(vDSK)}, {S(sDSK)}, 0")
    for i in range(4):
        pk("mul", V(U + 2 * i, 2), V(U + 2 * i, 2), V(DT, 2), bc=(1,))
    k(f"s_mov_b32 {S(sC0)}, {f2u(1.4426950408889634)}")
    pk("mul", V(U, 2), V(U, 2), S(sC0, 2), bc=(1,))
    k(f"s_mov_b32 {S(sC0)}, {f2u(0.15915494309189535)}")
    pk("mul", V(U + 2, 2), V(U + 2, 2), S(sC0, 2), bc=(1,))
    cmul(P[0], U + 8, U + 4, T)
    for (Wd, sc) in ((W1_, 1.0), (W256, 256.0), (W8_, 8.0)):
        ea, an = U + 4, U + 6
        if sc == 1.0:
            sa, sb = U, U + 2
        else:
            k(f"s_mov_b32 {S(sC0)}, {f2u(sc)}")
            pk("mul", V(ea, 2), V(U, 2), S(sC0, 2), bc=(1,))
            pk("mul", V(an, 2), V(U + 2, 2), S(sC0, 2), bc=(1,))
            sa, sb = ea, an
        for h in range(2):
            k(f"v_fract_f32 {V(an+h)}, {V(sb+h)}")
        for h in range(2):
            k(f"v_exp_f32 {V(ea+h)}, {V(sa+h)}")
        for h in range(2):
            k(f"v_cos_f32 {V(Wd+h)}, {V(an+h)}")
        for h in range(2):
            k(f"v_sin_f32 {V(Wd+2+h)}, {V(an+h)}")
        pk("mul", V(Wd, 2), V(Wd, 2), V(ea, 2))
        pk("mul", V(Wd + 2, 2), V(Wd + 2, 2), V(ea, 2))
    poll_load(vGO, vGO + 1, 0, 0, SRD_DBG)
    cvi = [0]
    ent = [0]
    vPL = WK + 80
    NKD = opt("nkd", 28 - NINIT)
    FL0, PL0 = opt("flag0", 30), opt("poll0", 50)
    def put(src, row, negim):
        c = CV + 2 * (cvi[0] & 1)
        cvi[0] += 1
        n = "-" if negim else ""
        k(f"v_cvt_pk_bf16_f32 {V(c)}, {V(src)}, {V(src+1)}")
        k(f"v_cvt_pk_bf16_f32 {V(c+1)}, {n}{V(src+2)}, {n}{V(src+3)}")
        k(f"ds_write_b64 {V(vKW)}, {V(c,2)} offset:{row*ROW_ST}")
        ent[0] += 1
        if ent[0] == opt("atom0", 14):
            p0x_atomics()
            stamp(25)
        if ent[0] == FL0:
            k.wait_tag_vm("st")
            k("s_barrier")
            wave0(lambda: flag_all(0))
            if not opt("tblearly", 0):
                table_loads()
            stamp(2)
        if ND[0] < NINIT + min(NKD, NKD * ent[0] // opt("kdspan", 42)):
            w2_dma()
        if ent[0] == PL0:
            poll_load(vPL, vFP, S(sREP))
    def frags(b):
        for st in range(8):
            k(f"ds_read_b128 {A(b+4*st,4)}, {V(vKR)} offset:{64*st}")
    cur = 0
    for a in range(8):
        put(P[cur], a, True)
        if a % 2 == 0:
            dst = {0: 3, 4: 4}.get(a, 2)
            cmul(P[dst], P[cur], W256, T)
            put(P[dst], 8 + a // 2, True)
        if a < 7:
            cmul(P[1 - cur], P[cur], W1_, T)
            cur = 1 - cur
    cmul(P[0], P[3], W256, T); put(P[0], 12, True)
    cmul(P[1], P[4], W256, T); put(P[1], 13, True)
    cmul(P[3], P[0], W256, T); put(P[3], 14, True)
    cmul(P[4], P[1], W256, T); put(P[4], 15, True)
    frags(FX[0])
    src, dst = 3, 0
    for row in range(5):
        cmul(P[dst], P[src], W256, T)
        put(P[dst], row, True)
        src, dst = dst, (1 - dst if dst in (0, 1) else 0)
    frags(FX[1])
    k(f"v_mov_b32 {V(CV)}, {S(sONES)}")
    k(f"v_mov_b32 {V(CV+1)}, 0")
    k(f"ds_write_b64 {V(vKW)}, {V(CV,2)}")
    cvi[0] = 1
    put(W8_, 1, False)
    cmul(P[0], W8_, W8_, T)
    cur = 0
    for j in range(2, 32):
        put(P[cur], j % 16, False)
        if j % 16 == 15:
            frags(FY[j // 16])
        if j == 15:
            stamp(3)
        if j < 31:
            cmul(P[1 - cur], P[cur], W8_, T)
            cur = 1 - cur
    assert ND[0] == NINIT + NKD and opt("pchk", 6) < 13, ND
    def mfma(n):
        yt, x, st = n // 16, (n // 8) & 1, n % 8
        d = V(ACC + 8 * yt + 4 * x, 4)
        return f"v_mfma_f32_16x16x32_bf16 {d}, {A(FX[x]+4*st,4)}, {A(FY[yt]+4*st,4)}, {d if st else 0}"
    def tables(yt, x):
        if x == 0:
            return [f"ds_write2_b32 {V(TA+2*yt+pi)}, {V(ACC+8*yt+2*pi)}, {V(ACC+8*yt+2*pi+1)} offset0:0 offset1:2" for pi in range(2)]
        return [f"ds_write2_b32 {V(TA+4)}, {V(ACC+8*yt+4+i)}, {V(ACC+8*yt+5+i)} offset0:{66*i+32*yt} offset1:{66*(i+1)+32*yt}" for i in (0, 2)]
    k(f"s_lshl2_add_u32 {S(sT1)}, {S(sNH)}, {S(sSCH)}")
    mads = []
    for i in range(22):
        n = (i + 17) % 22
        sel = " op_sel:[1,0,0,0]" if n & 1 else ""
        mads.append(f"v_mad_u32_u16 {V(GA+n)}, {V(TBL+n//2)}, 8, {S(sSCH if n < 17 else sT1)}{sel}")
    cl = conv_load_ops(0, 0, WK) + conv_load_ops(0, 1, WK + 12)
    PCK = opt("pchk", 6)
    for n in range(32):
        k(mfma(n))
        run(mads, 1)
        if n == PCK:
            poll_check(vPL, vFP, S(sREP))
            k.wait(lg=0)
            k("s_barrier")
            k(f"v_max_u32 {V(vFP)}, 512, {V(vFP)}")
            stamp(4)
        if n >= PCK and (n - PCK) % 2 == 0:
            run(cl, 3 if cl and cl[0].startswith("s_") else 1)
        if n == 11:
            k(f"v_add_f32 {V(ACC)}, {V(ACC)}, {V(vDSK)}")
        if n in (13, 21, 29):
            run(tables((n - 13) // 16, ((n - 13) // 8) & 1))
    run(cl)
    run(tables(1, 1))
    k.wait(lg=0)
    k("s_barrier")
    stamp(6)
    GV = B0
    for e in range(17):
        k(f"ds_read_b64 {V(GV+2*e,2)}, {V(GA+e)}")
    for e in range(17):
        k(f"v_add_f32 {V(GV+2*e)}, {V(GV+2*e)}, {V(GV+2*e+1)}")
    O = B0 + 34
    for c in range(2):
        for kk in range(8):
            e = 2 * kk + c
            k(f"v_cvt_pk_bf16_f32 {V(O+8*c+kk)}, {V(GV+2*e)}, {V(GV+2*e+2)}")
    for c in range(2):
        for h in range(2):
            k(f"ds_write_b128 {V(vKC)}, {V(O+8*c+4*h,4)} offset:{c*(SCR_ST+64)+16*h}")
    stamp(5)

def wave0(fn):
    skip = newlab("w0")
    k(f"s_cmp_lg_u32 {S(sW)}, 0")
    saved = list(k.vm)
    k.skip_begin("s_cbranch_scc1", skip)
    fn()
    k.skip_end(skip)
    k.vm = saved

def apoll_load(arr):
    k(f"s_add_u32 {S(sPA)}, {S(sREP)}, {hex(FA(arr))}")
    poll_load(vPA, vFP, S(sPA))

def apoll_check():
    poll_check(vPA, vFP, S(sPA))

def aflag(arr):
    wave0(lambda: flag_all(FA(arr)))

def bar():
    k.wait(lg=0)
    k("s_barrier")

CACC, CKR, CXU, CXR = WK, WK + 32, WK + 96, WK + 104
def cprep(D, T, h):
    UU, O, RAW, EPS = T, T + 4, T + 8, CXR
    k(f"s_mov_b32 {S(sC0)}, {f2u(1.0/448)}")
    k(f"s_mov_b32 {S(sC1)}, {f2u(1e-5)}")
    k(f"v_mov_b32 {V(EPS)}, {S(sC1)}")
    for j in range(2):
        M, Q, X = D + 4 * j, D + 4 * j + 2, D + 8 + 2 * j
        pk("mul", V(M, 2), V(M, 2), S(sC0, 2), bc=(1,))
        pk("fma", V(Q, 2), V(Q, 2), S(sC0, 2), V(EPS, 2), bc=(1, 2))
        pk("fma", V(Q, 2), V(M, 2), V(M, 2), V(Q, 2), neg=(0,))
        for b in range(2):
            k(f"v_max_f32 {V(Q+b)}, {S(sC1)}, {V(Q+b)}")
        for b in range(2):
            k(f"v_rsq_f32 {V(Q+b)}, {V(Q+b)}")
        for b in range(2):
            k(f"v_lshlrev_b32 {V(UU+b)}, 16, {V(X+b)}")
            k(f"v_and_b32 {V(UU+2+b)}, {S(sHIM)}, {V(X+b)}")
        pk("mul", V(M, 2), V(M, 2), V(Q, 2))
        for c in range(2):
            pk("fma", V(UU + 2 * c, 2), V(UU + 2 * c, 2), V(Q, 2), V(M, 2), neg=(2,))
            k(f"v_perm_b32 {V(RAW+2*c+j)}, {V(X+1)}, {V(X)}, {S(sPERM0+c)}")
        for c in range(2):
            k(f"v_cvt_pk_bf16_f32 {V(O+2*c+j)}, {V(UU+2*c)}, {V(UU+2*c+1)}")
    for c in range(2):
        k(f"ds_write_b64 {V(vUW)}, {V(O+2*c,2)} offset:{c*U_ST + 2048*h}")
    for c in range(2):
        k(f"ds_write_b64 {V(vXW)}, {V(RAW+2*c,2)} offset:{c*2*SCR_ST + 1024*h}")

def k_ops(I, s, reg):
    o = (128 if I % 2 == 0 else 0) + 16 * (3 - s)
    r = (V if reg[0] == "v" else A)
    return [f"ds_read2_b32 {r(reg[1]+2*h,2)}, {V(vKF+I//2)} offset0:{o+2*h} offset1:{o+2*h+1}" for h in range(2)]

def k_preload():
    return [t for s in range(4) for I in range(4) for t in k_ops(I, s, ("v", CKR + 16 * s + 4 * I))]

def conv(layer):
    k.c("=== conv")
    ACC, XU, XR = CACC, CXU, CXR
    mf = []
    for s in range(4):
        mf += [(0, s, Jp, I) for Jp in range(3, -1, -1) for I in range(4 - Jp)]
    for s in range(3, -1, -1):
        mf += [(1, s, Jp, I) for I in range(7, 0, -1) for Jp in range(4) if 4 <= Jp + I <= 7]
    for s in range(4):
        mf += [(2, s, Jp, I) for Jp in range(7, 3, -1) for I in range(8 - Jp)]
    assert len(mf) == 144
    ukey = lambda p, s, Jp: ("u", 0 if (p == 1 and s == 3) else p, s, Jp)
    kkey = lambda s, I: ("k", s, I)
    first, last = {}, {}
    for n, (p, s, Jp, I) in enumerate(mf):
        for key in (ukey(p, s, Jp), kkey(s, I)):
            first.setdefault(key, n)
            last[key] = n
    reg = {kkey(s, I): ("v", CKR + 16 * s + 4 * I) for s in range(4) for I in range(4)}
    items = sorted((key for key in first if not (layer and key in reg)), key=lambda x: first[x])
    XB, XS = opt("xb", 42), opt("xs", 48)
    slots = [("a", AX + 4 * i) for i in range(8)] + [("v", WK + 108), ("v", ACC + 12)][:opt("xslot", 2)]
    slot_free = ([-1] * 9 + [XB + 4])[:len(slots)]
    RG = lambda r: (V if r[0] == "v" else A)(r[1], 4)
    queue = []
    issued = {}
    def issue(n, budget):
        c = 0
        while True:
            if not queue:
                if not items:
                    return c
                key = items[0]
                if not (first[key] <= n + 2 or (c < budget and first[key] <= n + 20)):
                    return c
                if layer and key[0] == "u" and key[1] == 2 and n < 104:
                    return c
                if key not in reg:
                    fr = [i for i in range(len(slots)) if slot_free[i] < n]
                    if not fr:
                        assert first[key] > n, (n, key)
                        return c
                    slot_free[fr[0]] = last[key]
                    reg[key] = slots[fr[0]]
                items.pop(0)
                if key[0] == "u":
                    queue.append((key, f"ds_read_b128 {RG(reg[key])}, {V(vUF)} offset:{512*key[3] + 64*(3-key[2])}"))
                else:
                    queue.extend((key, t) for t in k_ops(key[2], key[1], reg[key]))
            elif not (first[queue[0][0]] <= n + 2 or c < budget):
                return c
            key, t = queue.pop(0)
            k(t, tag=key)
            issued[key] = n
            c += 1
    def xblock(ph, packed):
        l1, lj = newlab("x1"), newlab("xj")
        k(f"s_cmp_eq_u32 {S(sNH)}, 1")
        h0 = list(k.hist)
        k(f"s_cbranch_scc1 {l1}")
        for hf in range(2):
            if hf:
                k.label(l1)
                k.hist = h0
                k.lg = k.lg[:-2]
            a = ACC + 16 * ph
            if not packed:
                for i in range(8):
                    k(f"v_add_f32 {V(XU+i)}, {V(XU+i)}, {V(a+8*hf+i)}")
            for jl in range(2):
                k(f"ds_write_b128 {V(vEXW)}, {V(a+8*(1-hf)+4*jl,4)} offset:{2048+1024*jl}", tag="ex")
            if packed:
                for i in range(4):
                    pk("add", V(XU + 2 * i, 2), V(XU + 2 * i, 2), V(a + 8 * hf + 2 * i, 2))
            if not hf:
                k(f"s_branch {lj}")
        k.label(lj)
    def wait_lg(tag):
        idx = [i for i, p in enumerate(k.lg) if p[2] == tag]
        if idx:
            k.wait(lg=len(k.lg) - 1 - idx[-1])
    def res_ops(ph):
        o = [f"ds_read_b64_tr_b16 {V(XR+2*jl,2)}, {V(vXR)} offset:{1024*ph + 512*jl}" for jl in range(2)]
        o += [None] * 6
        for i in range(4):
            o += [f"v_lshlrev_b32 {V(XU+2*i)}, 16, {V(XR+i)}", f"v_and_b32 {V(XU+2*i+1)}, {S(sHIM)}, {V(XR+i)}"]
        return o
    def recv_ops():
        return [f"ds_read_b128 {V(ACC+4*jl,4)}, {V(vEXR)} offset:{2048+1024*jl}" for jl in range(2)]
    def out_ops(ph, packed):
        if packed:
            o = [f"v_pk_add_f32 {V(XU+2*i,2)}, {V(XU+2*i,2)}, {V(ACC+2*i,2)}" for i in range(4)]
        else:
            o = [f"v_add_f32 {V(XU+i)}, {V(XU+i)}, {V(ACC+i)}" for i in range(8)]
        o += [f"v_cvt_pk_bf16_f32 {V(ACC+8+i)}, {V(XU+2*i)}, {V(XU+2*i+1)}" for i in range(4)]
        o.append(f"s_mov_b32 {S(sT1)}, {hex(X1T + layer*XQ_SZ + 57344*ph)}")
        o.append((f"buffer_store_dwordx4 {V(ACC+8,4)}, {V(vCO)}, {S(SRD_WS,4)}, {S(sT1)} offen sc1", ("cst", ph)))
        return o
    if layer == 0:
        poll_load(vWF, vWF + 1, 0)
        cprep(WK, WK + 32, 0)
        stamp(7)
        cprep(WK + 12, WK + 44, 1)
    bar()
    stamp(9)
    bg = []
    if layer == 0:
        n1, n2 = opt("w1conv", 18), opt("w2conv", 0)
        bg = [w2_dma] * (28 - ND[0])
        def c1():
            poll_check(vWF, vWF + 1, 0)
            w1_load()
        def p2():
            poll_load(vWF, vWF + 2, 0)
            w1_load()
        def c2():
            poll_check(vWF, vWF + 2, 0)
            if n2:
                w2_load()
        w = [c1] + [w1_load] * (n1 - 1)
        pos = max(1, n1 - n2 - 7)
        w[pos] = p2
        t = w[:n1 - n2]
        for i in range(max(n2, 1)):
            t += [c2 if i == 0 else w2_load] + w[n1 - n2 + i: n1 - n2 + i + 1]
        bg += t
    nbg = len(bg)
    step = max(1, 134 // max(1, nbg))
    side = []
    seen = set()
    for n, (p, s, Jp, I) in enumerate(mf):
        if n == 104 and layer:
            assert not side
            stamp(10)
            cprep(LIN, ACC, 1)
            k.wait_tag_vm(("cst", 0))
            bar()
            aflag(F_X1[1][0])
            stamp(12)
        cnt = issue(n, (12 if layer == 0 else 5) if n == 0 else 5 if n == 104 and layer else 1)
        uk, kk = ukey(p, s, Jp), kkey(s, I)
        tags = [q[2] for q in k.lg]
        if uk in tags or kk in tags:
            cand = [i for i, q in enumerate(tags) if q in (uk, kk) or (q in first and first[q] <= n + 3 and issued[q] <= n - 7)]
            k.wait(lg=len(tags) - 1 - max(cand))
        J = Jp + I
        d = V(ACC + 4 * J, 4)
        k(f"v_mfma_f32_16x16x32_bf16 {d}, {RG(reg[uk])}, {RG(reg[kk])}, {d if J in seen else 0}")
        seen.add(J)
        if n == 18:
            side += res_ops(0)
        if n == 122:
            side += res_ops(1)
        if layer and n == opt("pcl", 0):
            apoll_load(F_CIN1[1])
        if n == XB:
            assert not side
            xblock(0, False)
        if n == XS:
            if layer:
                apoll_check()
            wait_lg("ex")
            k("s_barrier")
            run(recv_ops())
            if layer:
                side += conv_load_ops(1, 1, LIN)
            side += [None] * (0 if layer else 6) + out_ops(0, False)
        if layer == 0 and n == opt("fx0", 120):
            k.wait_tag_vm(("cst", 0))
            k("s_barrier")
            aflag(F_X1[0][0])
        if side:
            run(side, 2 if cnt == 0 else 1)
        elif bg and n >= 4 + step * (nbg - len(bg)) and (cnt == 0 or n >= 6 + step * (nbg - len(bg))):
            run(bg, 1)
    assert not items and not queue and not side
    run(bg)
    stamp(13)
    PX = opt("px", 2)
    if PX == 0:
        apoll_load(F_X1[layer][0])
    xblock(1, True)
    bar()
    run(recv_ops())
    if PX == 1:
        apoll_load(F_X1[layer][0])
    o = out_ops(1, True)
    run(o, len(o) - 1)
    if PX == 2:
        apoll_load(F_X1[layer][0])
    run(o)
    stamp(11)
    if layer == 0:
        n = min(opt("w1a", 4), 28 - NW1[0])
        k.wait_tag_vm(("w2", 27))
        tr = w2_tr_ops(0, 14)
        for i in range(n):
            w1_load()
            run(tr, len(tr) // (n - i))
        run(tr)
    apoll_check()
    bar()
    stamp(14)

def layer_turn():
    run(k_preload())
    apoll_check()
    k("s_barrier")
    stamp(20)
    run(conv_load_ops(1, 0, WK))
    k.wait_tag_vm(("st", 1))
    k("s_barrier")
    aflag(F_CIN1[1])
    stamp(21)
    LAY[0] = 1
    cprep(WK, WK + 12, 0)

G2RES = WK + 100
G2R = WK + 108

def gflag(layer, half):
    k("s_mov_b64 exec, 1")
    k(f"buffer_store_dword {V(vONE)}, {V(vFL)}, {S(SRD_WS,4)}, {S(sFG)} offen offset:{1024*half} sc1")
    k("s_mov_b64 exec, -1")

def ffn(layer):
    k.c("=== GEMM1")
    ACC = WK
    EP = WK + 64
    vXS = WK + 80
    vB0, vB1 = WK + 81, WK + 82
    if layer:
        k(f"s_add_u32 {S(sXT)}, {S(sXT)}, {hex(XQ_SZ)}")
    k(f"v_add_u32 {V(vXS)}, {S(sXT)}, {V(vL16)}")
    k(f"s_lshl_b32 {S(sT0)}, {S(sW)}, 10")
    k(f"s_mov_b32 m0, {S(sT0)}")
    nx = [0]
    def dma():
        d = nx[0]
        nx[0] += 1
        k(f"buffer_load_dwordx4 {V(vXS)}, {S(SRD_WS,4)}, m0 offen sc1 lds", tag=("x", d))
        if d == 13:
            k(f"v_subrev_u32 {V(vXS)}, 32, {V(vXS)}")
        if d < 27:
            k(f"s_add_u32 m0, m0, {4096 + (32 if d == 13 else 0)}")
    NUP = opt("nup", 9)
    af = addr_ffn(layer)
    FXL = opt("fxl", 5)
    for st in range(NUP):
        dma()
        if st >= 1:
            run(af, 3)
        if st == FXL:
            k.wait_tag_vm(("cst", 1))
            k("s_barrier")
            aflag(F_X1[layer][1])
    af += [f"v_add_u32 {V(vB0)}, {XHALF}, {V(vXA0)}", f"v_add_u32 {V(vB1)}, {XHALF}, {V(vXA1)}"]
    if layer == 0:
        touch(1)
    SKA = opt("ska", 10)
    mf = [(0, q, ks) for ks in range(28 - SKA) for q in range(2)]
    mf += [(0, q, ks) for q in range(2) for ks in range(28 - SKA, 28)]
    SK = opt("skb", 16)
    mf += [(1, q, ks) for ks in range(28 - SK) for q in range(2)]
    mf += [(1, q, ks) for q in range(2) for ks in range(28 - SK, 28)]
    NR = 8
    LEAD = opt("g1lead", 7)
    bars = [2, 5, 9, 14, 16, 19, 23, 28]
    ready = [0]
    def rd(n):
        half, q, ks = mf[n]
        st = 14 * half + ks // 2
        if st >= ready[0]:
            nb = [b for b in bars if b > st][0]
            assert nx[0] >= nb, (n, nb, nx[0])
            k.wait_tag_vm(("x", nb - 1))
            k("s_barrier")
            if ready[0] == 0 and FXL >= NUP:
                aflag(F_X1[layer][1])
            ready[0] = nb
        va = ((vXA0, vXA1), (vB0, vB1))[half][q]
        for u in range(2):
            k(f"ds_read_b64_tr_b16 {A(AX+4*(n%NR)+2*u,2)}, {V(va)} offset:{ks*2048+u*512}")
    def epi(tile):
        ops = []
        e = EP + 8 * (tile & 1)
        for a in range(2):
            for i in range(4):
                ops.append(f"v_cvt_pk_bf16_f32 {V(e+4*a+i)}, {V(ACC+16*tile+8*a+2*i)}, {V(ACC+16*tile+8*a+2*i+1)}")
            for i in range(4):
                ops.append(f"v_pk_max_i16 {V(e+4*a+i)}, {V(e+4*a+i)}, 0")
            if a == 0:
                ops.append(f"s_add_u32 {S(sT1)}, {S(sHS)}, {tile*112*1024}")
            ops.append((f"buffer_store_dwordx4 {V(e+4*a,4)}, {V(vL16)}, {S(SRD_WS,4)}, {S(sT1)} offen offset:{1024*a} sc1", ("h", tile)))
        return ops
    F = WK
    ONE4, DS_, DQ = WK + 84, WK + 88, WK + 92
    srd_ = [f"ds_read_b64_tr_b16 {V(F+4*ks+2*u,2)}, {V(vST)} offset:{ks*4096+u*512}" for ks in range(14) for u in range(2)]
    pend = af
    nrd = 0
    for n in range(LEAD):
        rd(nrd); nrd += 1
    stamp(27)
    PXL, CXL = opt("pxl", 10), opt("cxl", 28)
    LB = opt("leadb", 4)
    for n, (half, q, ks) in enumerate(mf):
        tile = 2 * half + q
        d = V(ACC + 16 * tile, 16)
        k(f"v_mfma_f32_32x32x16_bf16 {d}, {V(W1R+4*ks,4)}, {A(AX+4*(n%NR),4)}, {d if ks else 0}")
        if n == 56 - SKA + 1:
            pend += epi(0)
        if n == 57:
            pend += epi(1)
        if n == 112 - SK + 1:
            pend += epi(2)
        if n == PXL:
            apoll_load(F_X1[layer][1])
        if n == CXL:
            apoll_check()
            k("s_barrier")
            stamp(28)
        slots = 5
        if pend and isinstance(pend[0], tuple) and (nrd >= n + 4 or nrd == len(mf)):
            run(pend, 1)
        else:
            c = 0
            while nrd < len(mf) and nrd <= n + (LB if nrd == 56 else LEAD) and c < 2:
                rd(nrd); nrd += 1; c += 1
            slots -= 2 * c
            if nx[0] < 14 and 3 * (nx[0] - NUP) <= n:
                dma()
            elif n >= CXL and nx[0] < 28 and (nx[0] < 18 or 2 * (nx[0] - 16) <= n - CXL):
                dma()
            elif layer == 0 and n % 3 == 1 and NW1[0] < 28:
                w1_load()
            elif layer == 0 and NW1[0] == 28 and NW2[0] < opt("w2g1", 28) and n % opt("w2step", 2) == 1 and (n < CXL - opt("w2gap", 8) or nx[0] == 28):
                w2_load()
            while pend and slots > 0 and not isinstance(pend[0], tuple):
                run(pend, 1)
                slots -= 1
            if nrd == len(mf) and c == 0 and len(srd_) > 12:
                run(srd_, min(3, len(srd_) - 12))
        assert nrd > n + 1 or nrd == len(mf)
        if opt("g1st", 0) and n in (55, 83):
            stamp({55: 29, 83: 31}[n])
        if n == opt("pollA", 110):
            poll_load(vPL2, vF2P, S(sFG))
        if n == opt("flagA", 90):
            k.wait_tag_vm(("h", 1))
            gflag(layer, 0)
    assert not pend and nx[0] == 28 and NW1[0] == 28, (pend, nx, NW1)
    run(srd_, len(srd_) - 4)
    for i in range(4):
        k(f"v_mov_b32 {V(ONE4+i)}, {S(sONES)}")
    run(epi(3))
    stamp(15)
    run(srd_)
    for h in range(2):
        for u in range(2):
            k(f"ds_read_b64_tr_b16 {V(G2RES+4*h+2*u,2)}, {V(vRES)} offset:{h*XHALF+u*512}")
    poll_check(vPL2, vF2P, S(sFG))
    stamp(17)
    st = []
    for ks in range(14):
        st.append(f"v_mfma_f32_16x16x32_bf16 {V(DQ,4)}, {V(F+4*ks,4)}, {V(F+4*ks,4)}, {V(DQ,4) if ks else 0}")
        st.append(f"v_mfma_f32_16x16x32_bf16 {V(DS_,4)}, {V(ONE4,4)}, {V(F+4*ks,4)}, {V(DS_,4) if ks else 0}")
    vS, vQ, vT = DS_, ONE4, ONE4 + 1
    post = ["s_mov_b32 vcc_lo, 0x00100001", "s_mov_b32 vcc_hi, 0x10000100",
            f"v_cndmask_b32 {V(vQ)}, 0, {V(DQ)}, vcc"]
    for i in range(1, 4):
        post += ["s_lshl_b64 vcc, vcc, 1", f"v_cndmask_b32 {V(vQ)}, {V(vQ)}, {V(DQ+i)}, vcc"]
    post += [f"v_mov_b32 {V(vT)}, {V(vQ)}", f"v_mul_f32 {V(vS)}, {f2u(1.0/448)}, {V(vS)}", None,
             f"v_permlane32_swap_b32 {V(vQ)}, {V(vT)}", f"v_add_f32 {V(vQ)}, {V(vQ)}, {V(vT)}",
             f"v_mov_b32 {V(vT)}, {V(vQ)}", None, None,
             f"v_permlane16_swap_b32 {V(vQ)}, {V(vT)}", f"v_add_f32 {V(vQ)}, {V(vQ)}, {V(vT)}",
             f"v_mul_f32 {V(vQ)}, {f2u(1.0/448)}, {V(vQ)}",
             f"v_fma_f32 {V(vQ)}, -{V(vS)}, {V(vS)}, {V(vQ)}",
             f"v_max_f32 {V(vQ)}, 0, {V(vQ)}",
             f"v_add_f32 {V(vQ)}, {f2u(1e-5)}, {V(vQ)}",
             f"v_rsq_f32 {V(vQ)}, {V(vQ)}", None,
             f"v_mov_b32 {V(G2R)}, {V(vQ)}",
             f"v_mov_b32 {V(G2R+2)}, {V(vQ)}", None, None,
             f"v_mov_b32_dpp {V(G2R)}, {V(vQ)} row_ror:8 row_mask:0xf bank_mask:0xc",
             f"v_mov_b32_dpp {V(G2R+2)}, {V(vQ)} row_ror:8 row_mask:0xf bank_mask:0x3"]

    k.c("=== GEMM2")
    ring = [("a", AX + 4 * i) for i in range(8)] + [("v", WK + 64 + 4 * i) for i in range(5)]
    NR = opt("g2ring", 12)
    ring = ring[:NR]
    rn = lambda i: (V if ring[i % NR][0] == "v" else A)(ring[i % NR][1], 4)
    nl = [0]
    def ld():
        i = nl[0]
        nl[0] += 1
        half, s = divmod(i, 28)
        if s % 4 == 0:
            k(f"s_add_u32 {S(sT4)}, {S(sHL)}, {half*2*112*1024 + s*1024}")
        k(f"buffer_load_dwordx4 {rn(i)}, {V(vL16)}, {S(SRD_WS,4)}, {S(sT4)} offen offset:{1024*(s%4)} sc1")
        if layer == 0 and NW2[0] < 28:
            w2_load()
    def red_write(half):
        return [f"ds_write_b128 {V(vRW)}, {V(ACC+32*half+4*G,4)} offset:{half*RED_H+G*RED_G}" for G in range(8)]
    def red_read(half):
        return [f"ds_read_b128 {V(ACC+32*half+8*w+4*g,4)}, {V(vRR)} offset:{half*RED_H+w*RED_W+512*g}" for w in range(4) for g in range(2)]
    def unpack(half, u):
        o = []
        for i in range(4):
            o.append(f"v_lshlrev_b32 {V(u+2*i)}, 16, {V(G2RES+4*half+i)}")
            o.append(f"v_and_b32 {V(u+2*i+1)}, {S(sHIM)}, {V(G2RES+4*half+i)}")
        return o
    UR = WK + 84
    def fin(half, pre):
        a = ACC + 32 * half
        u = UR
        ops = []
        def P(d, x, y):
            if pre:
                ops.append(f"v_pk_add_f32 {V(d,2)}, {V(x,2)}, {V(y,2)}")
            else:
                ops.extend(f"v_add_f32 {V(d+h)}, {V(x+h)}, {V(y+h)}" for h in range(2))
        for i in range(4):
            P(a + 2 * i, a + 2 * i, a + 8 + 2 * i)
        for i in range(4):
            P(a + 16 + 2 * i, a + 16 + 2 * i, a + 24 + 2 * i)
        for i in range(4):
            P(a + 2 * i, a + 2 * i, a + 16 + 2 * i)
        for i in range(4):
            if pre:
                ops.append(f"v_pk_fma_f32 {V(a+2*i,2)}, {V(a+2*i,2)}, {V(G2R+2*half,2)}, {V(u+2*i,2)} op_sel_hi:[1,0,1]")
            else:
                ops.extend(f"v_fma_f32 {V(a+2*i+h)}, {V(a+2*i+h)}, {V(G2R+2*half)}, {V(u+2*i+h)}" for h in range(2))
        for i in range(4):
            ops.append(f"v_cvt_pk_bf16_f32 {V(a+24+i)}, {V(a+2*i)}, {V(a+2*i+1)}")
        if layer == 0:
            ops += quad_shuffle([(a + 28, a + 24)])
            ops.append(f"s_mov_b32 {S(sT1)}, {hex(XQ + XQ_SZ + 8192*half)}")
            if half:
                ops.append(lambda: apoll_load(F_CIN1[0]))
            ops.append((f"buffer_store_dwordx4 {V(a+28,4)}, {V(vO)}, {S(SRD_WS,4)}, {S(sT1)} offen sc1", ("st", half)))
            so = stats_ops(a + 24, 4, a, a + 1, a + 2)
            if not pre:
                so = so[10:]
                for i in range(4):
                    ops.append(f"v_lshlrev_b32 {V(a+16+2*i)}, 16, {V(a+24+i)}")
                    ops.append(f"v_and_b32 {V(a+16+2*i+1)}, {S(sHIM)}, {V(a+24+i)}")
                ops.append(f"v_add_f32 {V(a)}, {V(a+16)}, {V(a+17)}")
                ops.append(f"v_mul_f32 {V(a+1)}, {V(a+16)}, {V(a+16)}")
                for i in range(1, 8):
                    if i > 1:
                        ops.append(f"v_add_f32 {V(a)}, {V(a)}, {V(a+16+i)}")
                    ops.append(f"v_fmac_f32 {V(a+1)}, {V(a+16+i)}, {V(a+16+i)}")
            ops += so
            def at():
                k(f"s_mov_b32 {S(sT1)}, {hex(STATS[1] + 8192*half)}")
                k("s_mov_b32 exec_lo, 0xff")
                k("s_mov_b32 exec_hi, 0xff")
                k(f"buffer_atomic_add_f32 {V(a)}, {V(vAT)}, {S(SRD_WS,4)}, {S(sT1)} offen sc1", tag=("st", half))
                k("s_mov_b64 exec, -1")
            ops.append(at)
        else:
            ops.append(f"s_mov_b32 {S(sT1)}, {1024*896*half}")
            ops.append(f"buffer_store_dwordx4 {V(a+24,4)}, {V(vO)}, {S(SRD_OUT,4)}, {S(sT1)} offen")
        return ops
    NUP2 = opt("nup2", NR)
    for i in range(NUP2):
        ld()
        run(st, (len(st) + NUP2 - i - 1) // (NUP2 - i))
        if i == opt("flagB", 6):
            k.wait_tag_vm(("h", 3))
            gflag(layer, 1)
    assert not st
    stamp(16)
    PB = opt("pollB", 6)
    order = [(i, dt) for i in range(52) for dt in range(2)] + [(i, dt) for dt in range(2) for i in range(52, 56)]
    pend = [None] * 8 + post + unpack(0, UR)
    okB = False
    flagE = layer == 1
    RATE = opt("finrate", 5)
    for n, (i, dt) in enumerate(order):
        half, s = divmod(i, 28)
        d = V(ACC + 32 * half + 16 * dt, 16)
        k(f"v_mfma_f32_32x32x16_bf16 {d}, {A((s*2+dt)*4,4)}, {rn(i)}, {d if s else 0}")
        if dt == 1 and i < 52:
            if i == 12:
                assert not pend
                bar()
            if i == PB:
                poll_load(vPL2, vF2P, S(sFG), 1024)
            if nl[0] == 28 and not okB and i > PB and (i >= opt("chkB", 99) or not any(f"v{vPL2}" in p[0] for p in k.vm[1:])):
                poll_check(vPL2, vF2P, S(sFG), 1024)
                okB = True
            if i in (13, 27, 41):
                stamp({13: 8, 27: 23, 41: 26}[i])
            if i == 28:
                for o in red_write(0):
                    pend += [o] + [None] * (RATE - 1)
                pend += [bar]
                for o in red_read(0):
                    pend += [o]
                pend += [None] * RATE + fin(0, False) + unpack(1, UR)
        if nl[0] < 56 and nl[0] - NR < i + dt and (nl[0] < 28 or okB):
            ld()
        c = 0
        while pend and c < (3 if i < 28 else RATE) and not (layer and nl[0] < 56 and "buffer_store" in str(pend[0])):
            run(pend, 1)
            c += 1
        if n == opt("flagE", 109) and layer == 0:
            assert not pend
            k.wait_tag_vm(("st", 0))
            k("s_barrier")
            aflag(F_CIN1[0])
            flagE = True
        if n == 110:
            assert not pend
            pend += red_write(1)[:4]
    run(pend)
    assert nl[0] == 56 and okB
    stamp(18)
    run(red_write(1)[4:])
    if not flagE:
        k.wait_tag_vm(("st", 0))
    bar()
    if not flagE:
        aflag(F_CIN1[0])
    run(red_read(1) + fin(1, True))
    stamp(19)

def finish():
    if ENC >= 0:
        k.wait(vm=0)
        stamp(22)
        k(f"s_cmp_lg_u32 {S(sWG)}, 100")
        k("s_cbranch_scc1 L_end")
        k("s_sub_u32 s47, s47, s46" if ENC else "s_sub_u32 s47, s46, s98")
        k("s_mul_i32 s47, s47, 100")
        k("s_min_u32 s47, s47, 1000000")
        k(f"s_memrealtime {S(sTM,2)}")
        k.wait(lg=0)
        k(f"s_mov_b32 s46, {S(sTM)}")
        k.label("L_spin")
        k(f"s_memrealtime {S(sTM,2)}")
        k.wait(lg=0)
        k(f"s_sub_u32 {S(sT0)}, {S(sTM)}, s46")
        k(f"s_cmp_lt_u32 {S(sT0)}, s47")
        k("s_cbranch_scc1 L_spin")
    if DIAG:
        k.wait(vm=0)
        stamp(22)
        stamp(30, True)
        k(f"s_lshl_b32 {S(sT0)}, {S(sWG)}, 10")
        k(f"s_add_u32 {S(sT0)}, {S(sT0)}, {hex(STAMP)}")
        k(f"v_lshlrev_b32 {V(WK)}, 2, {V(vTID)}")
        k(f"buffer_store_dword {V(vSTAMP)}, {V(WK)}, {S(SRD_WS,4)}, {S(sT0)} offen")
    k.label("L_end")
    k("s_endpgm")

prologue()
main_start()
kgen()
conv(0)
ffn(0)
layer_turn()
conv(1)
ffn(1)
finish()
LAY[0] = 0
helper()
body = list(k.lines)
body += [".p2align 4", ".type L_table,@object", "L_table:"]
body += [".long " + ",".join(hex(w) for w in r) for r in table_words()]
body += ["L_table_end:"]

ref = open("cdna_kernels/%s.s.ref" % NAME).read().splitlines()
hdr = [l for l in ref if l.startswith(";") and "@launch" not in l]
head = f""".amdgcn_target "amdgcn-amd-amdhsa--gfx950"
.text
.globl {NAME}_kernel
.p2align 8
.type {NAME}_kernel,@function
{NAME}_kernel:
"""
if opt("align", 1):
    body = align(body, head, stubs=stub_targets())
out = "\n".join(hdr) + f"\n; @launch grid=(256,1,1) block=(256,1,1) lds={LDS_BYTES}\n"
out += head + "\n".join(body) + "\n"
out += f""".section .rodata,"a"
.p2align 6
.amdhsa_kernel {NAME}_kernel
  .amdhsa_next_free_vgpr 512
  .amdhsa_next_free_sgpr 102
  .amdhsa_accum_offset 256
  .amdhsa_group_segment_fixed_size 0
  .amdhsa_kernarg_size 120
  .amdhsa_user_sgpr_count 2
  .amdhsa_user_sgpr_kernarg_segment_ptr 1
  .amdhsa_system_sgpr_workgroup_id_x 1
.end_amdhsa_kernel
"""
dst = [a for a in sys.argv[1:] if not a.startswith("--")]
dst = dst[0] if dst else "cdna_kernels/%s.s" % NAME
open(dst, "w").write(out)
print("instructions:", k.nins, "->", dst)
```

```python
import sys, struct
from emit import Asm, V, A, S
from align import align

NAME = "interleave_layers__ssm_conv_s4__dense_activation_relu__prompt"
DIAG = "--diag" in sys.argv
OPT = {}
for a in sys.argv:
    if a.startswith("--") and "=" in a:
        n, v = a[2:].split("=")
        OPT[n] = int(v)
LAY = [0]
def opt(n, d):
    return OPT.get(f"{n}.{LAY[0]}", OPT.get(n, d))

def f2u(x):
    return "0x%08x" % struct.unpack("<I", struct.pack("<f", x))[0]

FA = lambda n: n * 0x8000
F_CIN0, F_X1, F_CIN1 = 0, ((1, 2), (5, 6)), (3, 4)
FLG_G = 0x38000
STATS = (0x50000, 0x48000)
XQ = 0x60000
XQ_SZ = 0x1C0000
X1T = 0x3E0000
HB = 0x760000
H_SZ = 0x700000
W1C = 0x1560000
FLG_W = 0x4C000
STAMP = 0x1700000
W2T = 0x1740000
WS_BYTES = 0x1810000

XHALF = 57344 + 32
SCR = 114816
SCR_ST = 8960
KC0 = 4608
ROW_ST = 544
UARR = SCR + 4 * SCR_ST
U_ST = 4576
LDS_BYTES = 163840
WREG = 28672
RED_G = 1152
RED_W = 8 * RED_G
RED_H = 4 * RED_W

sWG, sW = 2, 3
SRD_WS, SRD_OUT, SRD_W1, SRD_W2, SRD_X0, SRD_DBG = 4, 8, 12, 16, 20, 24
sCP, sGAM, sJ, sHH, sDS, sROT = 58, 59, 60, 61, 62, 63
sONES, sHIM = 64, 65
sT0, sT1, sT2, sT3, sT4, sT5 = 66, 67, 68, 69, 70, 71
sLDT, sDSK = 72, 73
sREP, sXQi, sW2B, sXT, sHL, sHS, sFG = 74, 75, 76, 77, 78, 79, 80
sSPIN = 81
sC0, sC1 = 82, 83
sPC = 84
sTM = 86
sWL = 88
sW2O = 89
sSCR, sSCH = 90, 95
sPERM0, sPERM1 = 91, 92
sNH, sCH = 93, 94
sXS = 100
sKO = 28
sW2L, sPA = 96, 97

vTID, vL, vL16 = 0, 1, 2
vCX, vUW, vXW = 3, 4, 5
vKF = 6
vUF, vXR, vCO, vEXW, vEXR = 10, 11, 12, 13, 14
vFW, vFP, vONE, vSTAMP, vPA = 15, 16, 17, 18, 19
vXA0, vXA1, vST, vRES, vRW, vRR, vO, vAT, vF2P, vFL, vHL, vPL2 = range(20, 32)
vW2S, vW2R, vWF, vDUM = 20, 21, 23, 26
LIN = 20
WK = 32
W1R = 144
AX = 224

k = Asm()
SPIN_MAX = 1 << 16

ENC = opt("enc", -1)
def stamp(idx, cyc=False):
    if ENC >= 0 and not cyc and idx + 32 * LAY[0] in (0, ENC):
        k.wait(lg=0)
        k(f"s_memrealtime {S(sTM,2)}")
        k.wait(lg=0)
        k(f"s_mov_b32 {S(46 if idx + 32*LAY[0] == 0 else 47)}, {S(sTM)}")
    if not DIAG:
        return
    if opt("lite", 0) and idx + 32 * LAY[0] not in (0, 9, 14, 19, 46, 54):
        return
    k.wait(lg=0)
    k(f"{'s_memtime' if cyc != bool(opt('cyc', 0)) else 's_memrealtime'} {S(sTM,2)}")
    k.wait(lg=0)
    k(f"v_writelane_b32 {V(vSTAMP)}, {S(sTM)}, {idx + 32*LAY[0]}")

FINE = []
def fine(name):
    if not DIAG or opt("fine", 0) != FREG[0] or opt("finel", 1) != LAY[0]:
        return
    regs = list(range(28, 46, 2)) + [12, 14, 20, 22, 24, 26, 48, 50, 54, 56]
    r = regs[len(FINE)]
    FINE.append((name, r))
    k.raw(f"    s_memtime s[{r}:{r+1}]")
FREG = [0]

def srd(base, ptr, nbytes):
    k(f"s_mov_b32 {S(base)}, {S(ptr)}")
    k(f"s_and_b32 {S(base+1)}, {S(ptr+1)}, 0xffff")
    k(f"s_mov_b32 {S(base+2)}, {hex(nbytes)}")
    k(f"s_mov_b32 {S(base+3)}, 0x20000")

_lab = [0]
def newlab(p):
    _lab[0] += 1
    return f"L_{p}_{_lab[0]}"

def branch(op, lab):
    k.fence(1)
    k(f"{op} {lab}")

def label(lab):
    k.fence()
    k.label(lab)

def poll_load(vtmp, vaddr, soff, off=0, srdn=SRD_WS):
    k(f"buffer_load_dword {V(vtmp)}, {V(vaddr)}, {S(srdn,4)}, {soff} offen offset:{off} sc1")

def poll_check(vtmp, vaddr, soff, off=0, srdn=SRD_WS):
    lp, ok = newlab("poll"), newlab("ok")
    k(f"v_cmp_eq_u32 vcc, 0, {V(vtmp)}")
    saved = list(k.vm)
    k.skip_begin("s_cbranch_vccz", ok)
    k(f"s_mov_b32 {S(sSPIN)}, 0")
    k.label(lp)
    if opt("sleep", 2):
        k(f"s_sleep {opt('sleep', 2)}")
    poll_load(vtmp, vaddr, soff, off, srdn)
    k(f"s_add_u32 {S(sSPIN)}, {S(sSPIN)}, 1")
    k.wait(vm=0)
    k(f"v_cmp_eq_u32 vcc, 0, {V(vtmp)}")
    k(f"s_cmp_gt_u32 {S(sSPIN)}, {SPIN_MAX}")
    k(f"s_cbranch_scc1 {ok}")
    k(f"s_cbranch_vccnz {lp}")
    k.skip_end(ok)
    k.vm = saved

def run(ops, n=None):
    c = 0
    while ops and (n is None or c < n):
        o = ops.pop(0)
        if callable(o):
            o()
        elif isinstance(o, tuple):
            k(o[0], tag=o[1])
        elif o is not None:
            k(o)
        c += 1

def stats_ops(P, n, vS, vQ, vT):
    o = [f"v_mov_b32 {V(vS)}, 0", f"v_mov_b32 {V(vQ)}, 0"]
    for i in range(n):
        o.append(f"v_dot2c_f32_bf16 {V(vS)}, {S(sONES)}, {V(P+i)}")
        o.append(f"v_dot2c_f32_bf16 {V(vQ)}, {V(P+i)}, {V(P+i)}")
    o += [f"v_permlane32_swap_b32 {V(vS)}, {V(vQ)}",
          f"v_add_f32 {V(vS)}, {V(vS)}, {V(vQ)}",
          f"v_mov_b32 {V(vT)}, {V(vS)}",
          f"v_permlane16_swap_b32 {V(vS)}, {V(vT)}",
          f"v_add_f32 {V(vS)}, {V(vS)}, {V(vT)}",
          f"v_add_f32_dpp {V(vS)}, {V(vS)}, {V(vS)} row_ror:8 row_mask:0xf bank_mask:0xf",
          f"v_lshrrev_b32 {V(vT)}, 1, {V(vS)}",
          f"v_add_u32 {V(vQ)}, {hex(8 << 23)}, {V(vS)}",
          f"v_add_u32 {V(vT)}, {hex(0x1FC00000 + (13 << 23))}, {V(vT)}",
          f"v_permlane32_swap_b32 {V(vT)}, {V(vQ)}",
          f"v_and_b32 {V(vQ)}, 0x7f800000, {V(vQ)}",
          f"v_mul_f32 {V(vQ)}, 0x3fc00000, {V(vQ)}",
          f"v_add_f32 {V(vS)}, {V(vS)}, {V(vQ)}",
          f"v_sub_f32 {V(vS)}, {V(vS)}, {V(vQ)}"]
    return o

def quad_shuffle(pairs):
    D = " row_mask:0xf bank_mask:0xf"
    o = ["s_mov_b32 vcc_lo, 0x0f0f0f0f", "s_mov_b32 vcc_hi, 0x0f0f0f0f"]
    for d, s in pairs:
        o.append(f"v_cndmask_b32_dpp {V(d)}, {V(s+2)}, {V(s)}, vcc row_ror:4" + D)
        o.append(f"v_cndmask_b32_dpp {V(d+2)}, {V(s+3)}, {V(s+1)}, vcc row_ror:4" + D)
    o.append("s_not_b64 vcc, vcc")
    for d, s in pairs:
        o.append(f"v_cndmask_b32_dpp {V(d+1)}, {V(s)}, {V(s+2)}, vcc row_ror:12" + D)
        o.append(f"v_cndmask_b32_dpp {V(d+3)}, {V(s+1)}, {V(s+3)}, vcc row_ror:12" + D)
    return o

X0R = WK
X0O = WK + 8
vP0A = WK + 16
vP0S = WK + 20
vGO = WK + 28

def p0x_addr():
    k.c("row re-layout unit of this wave: W = 4m+w, octet group a = W%7, rows (blk, j2) = W/7, both hh8")
    t = vP0A
    k(f"s_sub_u32 {S(sT0)}, {S(sWG)}, 32")
    k(f"s_lshl2_add_u32 {S(sT0)}, {S(sT0)}, {S(sW)}")
    k(f"s_mul_i32 {S(sT1)}, {S(sT0)}, 9363")
    k(f"s_lshr_b32 {S(sT1)}, {S(sT1)}, 16")
    k(f"s_mul_i32 {S(sT2)}, {S(sT1)}, 7")
    k(f"s_sub_u32 {S(sT0)}, {S(sT0)}, {S(sT2)}")
    k(f"s_lshr_b32 {S(sT2)}, {S(sT1)}, 2")
    k(f"s_lshl_b32 {S(sT2)}, {S(sT2)}, 6")
    k(f"s_and_b32 {S(sT3)}, {S(sT1)}, 3")
    k(f"s_lshl1_add_u32 {S(sT2)}, {S(sT3)}, {S(sT2)}")
    k(f"v_and_b32 {V(t+1)}, 0x30, {V(vL16)}")
    k(f"v_bfe_u32 {V(t)}, {V(vL)}, 2, 1")
    k(f"v_add3_u32 {V(t+3)}, {V(t+1)}, {V(t)}, {S(sT2)}")
    k(f"v_mul_u32_u24 {V(t+3)}, 896, {V(t+3)}")
    k(f"v_lshrrev_b32 {V(t+2)}, 3, {V(vL)}")
    k(f"v_lshl_add_u32 {V(t+3)}, {V(t+2)}, 4, {V(t+3)}")
    k(f"s_lshl_b32 {S(sT2)}, {S(sT0)}, 7")
    k(f"v_add_u32 {V(t+3)}, {S(sT2)}, {V(t+3)}")
    k(f"v_lshl_add_u32 {V(t)}, {V(t)}, 2, {V(t+1)}")
    k(f"v_lshrrev_b32 {V(t+2)}, 5, {V(vL)}")
    k(f"v_lshl_add_u32 {V(t)}, {V(t+2)}, 3, {V(t)}")
    k(f"s_lshl_b32 {S(sT2)}, {S(sT1)}, 7")
    k(f"v_add_u32 {V(t)}, {S(sT2)}, {V(t)}")
    k(f"v_lshrrev_b32 {V(t+2)}, 2, {V(vL)}")
    k(f"v_lshl_add_u32 {V(t+1)}, {V(t+2)}, 14, {V(t+1)}")
    k(f"s_lshl_b32 {S(sT0)}, {S(sT0)}, 18")
    k(f"s_lshl_b32 {S(sT1)}, {S(sT1)}, 7")
    k(f"s_add_u32 {S(sT0)}, {S(sT0)}, {S(sT1)}")
    k(f"v_add_u32 {V(t+1)}, {S(sT0)}, {V(t+1)}")

def p0x_loads():
    k(f"s_movk_i32 {S(sT0)}, {8*896}")
    k(f"buffer_load_dwordx4 {V(X0R,4)}, {V(vP0A+3)}, {S(SRD_X0,4)}, 0 offen")
    k(f"buffer_load_dwordx4 {V(X0R+4,4)}, {V(vP0A+3)}, {S(SRD_X0,4)}, {S(sT0)} offen")

def p0x_body():
    t = vP0A
    if opt("goearly", 0):
        k.wait(vm=len(k.vm) - 2)
        poll_load(vGO, vGO + 3, 0, 0, SRD_DBG)
    run(quad_shuffle([(X0O + 4 * a, X0R + 4 * a) for a in range(2)]))
    k(f"s_mov_b32 {S(sT0)}, {hex(XQ)}")
    for a in range(2):
        k(f"buffer_store_dwordx4 {V(X0O+4*a,4)}, {V(t+1)}, {S(SRD_WS,4)}, {S(sT0)} offen offset:{64*a} sc1")
    s0 = stats_ops(X0R, 4, vP0S, vP0S + 1, vP0S + 2)
    s1 = stats_ops(X0R + 4, 4, vP0S + 4, vP0S + 5, vP0S + 6)
    while s0:
        run(s0, 1)
        run(s1, 1)

def p0x_atomics():
    poll_check(vGO, vGO + 3, 0, 0, SRD_DBG)
    k(f"s_mov_b32 {S(sT0)}, {hex(STATS[0])}")
    k("s_mov_b32 exec_lo, 0xff")
    k("s_mov_b32 exec_hi, 0xff")
    for a in range(2):
        k(f"buffer_atomic_add_f32 {V(vP0S+4*a)}, {V(vP0A)}, {S(SRD_WS,4)}, {S(sT0)} offen offset:{64*a} sc1", tag="st")
    k("s_mov_b64 exec, -1")
    poll_load(vGO, vGO + 2, 0, 128, SRD_DBG)

def flag_all(off):
    k(f"s_mov_b32 {S(sT0)}, {hex(off)}")
    k(f"s_mov_b64 exec, 3")
    k(f"buffer_store_dword {V(vONE)}, {V(vFW)}, {S(SRD_WS,4)}, {S(sT0)} offen sc1")
    k(f"s_mov_b64 exec, -1")

ND = [0]
def w2_dma():
    d = ND[0]
    ND[0] += 1
    if opt("abl", 0) & 2:
        return
    if opt("rot", 1):
        if d == 0:
            k(f"s_and_b32 {S(sROT)}, {S(sWG)}, 7")
            k(f"s_min_u32 {S(sROT)}, {S(sROT)}, 6")
            k(f"s_mul_i32 {S(sXS)}, {S(sW)}, {WREG}")
        elif d % 4 == 0:
            k(f"s_add_u32 {S(sROT)}, {S(sROT)}, 1")
            k(f"s_cmp_eq_u32 {S(sROT)}, 7")
            k(f"s_cselect_b32 {S(sROT)}, 0, {S(sROT)}")
        if d % 4 == 0:
            k(f"s_lshl_b32 {S(sT4)}, {S(sROT)}, 12")
            k(f"s_add_u32 m0, {S(sT4)}, {S(sXS)}")
            k(f"s_mul_i32 {S(sW2O)}, {S(sT4)}, 7")
            k(f"s_add_u32 {S(sW2O)}, {S(sW2O)}, {S(sW2B)}")
        else:
            k(f"s_add_u32 {S(sW2O)}, {S(sW2O)}, {7168 - 1024}")
        k(f"buffer_load_dwordx4 {V(vW2S)}, {S(SRD_W2,4)}, {S(sW2O)} offen offset:{1024*(d%4)} lds", tag=("w2", d))
        return
    if d == 0:
        k(f"s_mul_i32 {S(sT4)}, {S(sW)}, {WREG}")
        k(f"s_mov_b32 m0, {S(sT4)}")
    elif d % 4 == 0:
        k(f"s_add_u32 m0, m0, 4096")
    if d:
        k(f"s_add_u32 {S(sW2B)}, {S(sW2B)}, {7168 - 1024 + (4096 if d % 4 == 0 else 0)}")
    k(f"buffer_load_dwordx4 {V(vW2S)}, {S(SRD_W2,4)}, {S(sW2B)} offen offset:{1024*(d%4)} lds", tag=("w2", d))

NW2 = [0]
def w2_load():
    n = NW2[0]
    NW2[0] += 1
    if opt("abl", 0) & 4:
        return
    k(f"buffer_load_dwordx4 {A(112+4*n,4)}, {V(vL16)}, {S(SRD_WS,4)}, {S(sW2L)} offen offset:{1024*(n%4)} sc1")
    if n % 4 == 3:
        k(f"s_add_u32 {S(sW2L)}, {S(sW2L)}, 4096")

def w2_tr_ops(lo, hi):
    return [f"ds_read_b64_tr_b16 {A((s*2+dt)*4+2*u,2)}, {V(vW2R+dt)} offset:{(s%14)*2048+u*1024}"
            for s in range(lo, hi) for dt in range(2) for u in range(2)]

NW1 = [0]
def w1_load():
    ks = NW1[0]
    NW1[0] += 1
    if opt("abl", 0) & 1:
        return
    k(f"buffer_load_dwordx4 {V(W1R+4*ks,4)}, {V(vL16)}, {S(SRD_WS,4)}, {S(sWL)} offen offset:{1024*(ks%4)} sc1")
    if ks % 4 == 3:
        k(f"s_add_u32 {S(sWL)}, {S(sWL)}, 4096")

def prologue():
    k(f"s_getpc_b64 {S(sPC,2)}")
    k.label("L_pc")
    if ENC == 0 or DIAG:
        k("s_memrealtime s[98:99]")
    k(f"s_cmp_ge_u32 {S(sWG)}, 256")
    k("s_cbranch_scc1 L_end")
    k("s_load_dwordx16 s[28:43], s[0:1], 0")
    k("s_load_dwordx8 s[44:51], s[0:1], 64")
    k("s_load_dwordx4 s[52:55], s[0:1], 96")
    k("s_load_dwordx2 s[56:57], s[0:1], 112")
    k.c("wave 0 of helpers 8..31 pulls a third of the code into L2")
    k(f"s_sub_u32 {S(sT0)}, {S(sWG)}, 8")
    k(f"s_cmp_ge_u32 {S(sT0)}, 24")
    k("s_cbranch_scc1 L_nopf")
    k(f"v_cmp_gt_u32 vcc, 64, {V(vTID)}")
    k(f"s_lshr_b32 {S(sT0)}, {S(sT0)}, 3")
    k(f"s_lshl_b32 {S(sT0)}, {S(sT0)}, 7")
    k(f"v_mul_u32_u24 {V(vL16)}, 384, {V(vTID)}")
    k(f"v_add_u32 {V(vL16)}, {S(sT0)}, {V(vL16)}")
    k("s_cbranch_vccz L_nopf")
    for q in range(2):
        k(f"v_min_u32 {V(vL16)}, L_table_end-L_pc-4, {V(vL16)}")
        k(f"global_load_dword {V(vDUM)}, {V(vL16)}, {S(sPC,2)}")
        k.vm = []
        if q == 0:
            k(f"v_add_u32 {V(vL16)}, {64*384}, {V(vL16)}")
    k.label("L_nopf")
    k(f"v_lshrrev_b32 {V(vONE)}, 6, {V(vTID)}")
    k(f"v_and_b32 {V(vL)}, 63, {V(vTID)}")
    k(f"v_readfirstlane_b32 {S(sW)}, {V(vONE)}")
    k(f"v_lshlrev_b32 {V(vL16)}, 4, {V(vL)}")
    k(f"v_mov_b32 {V(vONE)}, 1")
    if DIAG:
        k(f"v_mov_b32 {V(vSTAMP)}, 0")
    k(f"s_mov_b32 {S(sONES)}, 0x3f803f80")
    k(f"s_mov_b32 {S(sHIM)}, 0xffff0000")
    k(f"s_sub_u32 {S(sT0)}, {S(sWG)}, 32")
    k(f"s_and_b32 {S(sT1)}, {S(sT0)}, 7")
    k(f"s_lshr_b32 {S(sT0)}, {S(sT0)}, 3")
    k(f"s_mul_i32 {S(sCP)}, {S(sT1)}, 28")
    k(f"s_add_u32 {S(sCP)}, {S(sCP)}, {S(sT0)}")
    k(f"s_cmp_ge_u32 {S(sT0)}, 14")
    k(f"s_cselect_b32 {S(sT2)}, 1, 0")
    k(f"s_cselect_b32 {S(sT3)}, 14, 0")
    k(f"s_lshl_b32 {S(sGAM)}, {S(sT1)}, 1")
    k(f"s_add_u32 {S(sGAM)}, {S(sGAM)}, {S(sT2)}")
    k(f"s_sub_u32 {S(sJ)}, {S(sT0)}, {S(sT3)}")
    k(f"s_and_b32 {S(sHH)}, {S(sJ)}, 1")
    k(f"s_lshr_b32 {S(sDS)}, {S(sJ)}, 1")
    k(f"s_and_b32 {S(sNH)}, {S(sW)}, 1")
    k(f"s_lshr_b32 {S(sCH)}, {S(sW)}, 1")
    k(f"s_lshl_b32 {S(sREP)}, {S(sT1)}, 12")
    k(f"s_lshl_b32 {S(sT0)}, {S(sW)}, 13")
    k(f"s_lshl4_add_u32 {S(sT0)}, {S(sWG)}, {S(sT0)}")
    k(f"v_lshl_add_u32 {V(vFW)}, {V(vL)}, 12, {S(sT0)}")
    p0x_addr()
    k(f"v_and_b32 {V(vGO+1)}, 12, {V(vL)}")
    k(f"v_and_b32 {V(vGO+2)}, 4, {V(vL)}")
    k(f"v_mov_b32 {V(vGO+3)}, 0")
    k(f"s_lshl_b32 {S(sT0)}, {S(sCP)}, 10")
    k(f"v_lshl_add_u32 {V(PRM+6)}, {V(vTID)}, 2, {S(sT0)}")
    k.wait(lg=0)
    srd(SRD_X0, 28, 2048 * 896)
    srd(SRD_WS, 56, WS_BYTES)
    srd(SRD_DBG, 54, 256)
    stamp(0)
    if DIAG:
        k(f"v_writelane_b32 {V(vSTAMP)}, s98, 62")
    k(f"s_cmp_ge_u32 {S(sWG)}, 32")
    branch("s_cbranch_scc1", "L_main")
    z = HZ
    for i in range(4):
        k(f"v_mov_b32 {V(z+i)}, 0")
    k(f"s_lshl_b32 {S(sT5)}, {S(sWG)}, 7")
    k(f"s_add_u32 {S(sT5)}, {S(sT5)}, {hex(FLG_W)}")
    l1, l2 = newlab("h1"), newlab("h2")
    k(f"s_cmp_lt_u32 {S(sWG)}, 28")
    branch("s_cbranch_scc1", l1)
    k(f"s_sub_u32 {S(sT2)}, {S(sWG)}, 28")
    k(f"s_lshl2_add_u32 {S(sT0)}, {S(sT2)}, {S(sW)}")
    k(f"s_mul_i32 {S(sT0)}, {S(sT0)}, 18432")
    k(f"s_add_u32 {S(sT0)}, {S(sT0)}, 0x8000")
    k(f"s_add_u32 {S(sT1)}, {S(sT0)}, 18432")
    lz = newlab("z")
    label(lz)
    for i in range(2):
        k(f"buffer_store_dwordx4 {V(z,4)}, {V(vL16)}, {S(SRD_WS,4)}, {S(sT0)} offen offset:{1024*i} sc1")
    k(f"s_add_u32 {S(sT0)}, {S(sT0)}, 2048")
    k(f"s_cmp_lt_u32 {S(sT0)}, {S(sT1)}")
    k(f"s_cbranch_scc1 {lz}")
    k(f"s_lshl_b32 {S(sT0)}, {S(sT2)}, 2")
    k.wait(vm=0)
    k("s_barrier")
    k(f"s_cmp_lg_u32 {S(sW)}, 1")
    branch("s_cbranch_scc1", "L_end")
    k("s_mov_b64 exec, 1")
    k(f"buffer_store_dword {V(vONE)}, {V(z)}, {S(SRD_DBG,4)}, {S(sT0)} offen offset:192 sc1")
    k("s_endpgm")
    label(l1)
    k.forget()
    k(f"s_cmp_gt_u32 {S(sWG)}, 2")
    branch("s_cbranch_scc1", "L_helper")
    k(f"s_lshl2_add_u32 {S(sT0)}, {S(sWG)}, {S(sW)}")
    k(f"s_lshl_b32 {S(sT0)}, {S(sT0)}, 12")
    k(f"s_cmp_eq_u32 {S(sWG)}, 0")
    k(f"s_cselect_b32 {S(sT1)}, {hex(STATS[0] + 0x4000)}, 0")
    k(f"s_cselect_b32 {S(sT2)}, 0, 124")
    k(f"s_add_u32 {S(sT0)}, {S(sT0)}, {S(sT1)}")
    k(f"s_sub_u32 {S(sT0)}, {S(sT0)}, 0x4000")
    for i in range(4):
        k(f"buffer_store_dwordx4 {V(z,4)}, {V(vL16)}, {S(SRD_WS,4)}, {S(sT0)} offen offset:{1024*i} sc1")
    k(f"s_lshl2_add_u32 {S(sT0)}, {S(sWG)}, {S(sT2)}")
    stamp(4)
    k.wait(vm=0)
    k("s_barrier")
    stamp(5)
    k(f"s_cmp_lg_u32 {S(sW)}, 2")
    branch("s_cbranch_scc1", "L_helper")
    k("s_mov_b64 exec, 1")
    k(f"buffer_store_dword {V(vONE)}, {V(z)}, {S(SRD_DBG,4)}, {S(sT0)} offen sc1")
    k("s_mov_b64 exec, -1")
    branch("s_branch", "L_helper")
    label("L_main")
    k.forget()

def w2_lane_src(d, pitch, t0, t1):
    k(f"v_lshrrev_b32 {V(t0)}, 3, {V(vL)}")
    k(f"v_mul_u32_u24 {V(d)}, {pitch}, {V(t0)}")
    k(f"v_and_b32 {V(t0)}, 7, {V(vL)}")
    k(f"v_bfe_u32 {V(t1)}, {V(vL)}, 4, 1")
    k(f"v_lshlrev_b32 {V(t1)}, 2, {V(t1)}")
    k(f"v_xor_b32 {V(t0)}, {V(t0)}, {V(t1)}")
    k(f"v_lshl_add_u32 {V(d)}, {V(t0)}, 4, {V(d)}")

HZ = WK + 64
def helper():
    label("L_helper")
    k.forget()
    srd(SRD_W1, 48, 448 * 3584)
    srd(SRD_W2, 50, 1792 * 896)
    z = HZ
    F = WK + 112
    G = WK + 168
    t, a1, a2, aE, aO = z + 8, z + 10, z + 11, z + 12, z + 13
    IMG2 = 57344
    w2_lane_src(a1, 3584, t, t + 1)
    w2_lane_src(a2, 896, t, t + 1)
    if opt("abl", 0) & 32:
        k("s_endpgm")
    if opt("hdelay", 0):
        k(f"s_sleep {opt('hdelay', 0)}")
    k(f"s_mul_i32 {S(sT0)}, {S(sW)}, {112*3584}")
    k(f"s_lshl_b32 {S(sT1)}, {S(sWG)}, 7")
    k(f"s_add_u32 {S(sT0)}, {S(sT0)}, {S(sT1)}")
    k(f"s_mul_i32 {S(sT3)}, {S(sW)}, 14336")
    k(f"s_mov_b32 m0, {S(sT3)}")
    for c in range(14):
        k(f"buffer_load_dwordx4 {V(a1)}, {S(SRD_W1,4)}, {S(sT0)} offen lds", tag="w1")
        k(f"s_add_u32 m0, m0, 1024")
        k(f"s_add_u32 {S(sT0)}, {S(sT0)}, {8*3584}")
    k(f"v_bfe_u32 {V(t+1)}, {V(vL)}, 2, 2")
    k(f"v_lshlrev_b32 {V(t)}, 7, {V(t+1)}")
    k(f"v_bfe_u32 {V(t+1)}, {V(vL)}, 3, 1")
    k(f"v_lshl_add_u32 {V(t)}, {V(t+1)}, 6, {V(t)}")
    k(f"v_bfe_u32 {V(t+1)}, {V(vL)}, 4, 1")
    k(f"v_lshl_add_u32 {V(t)}, {V(t+1)}, 5, {V(t)}")
    k(f"v_and_b32 {V(t+1)}, 3, {V(vL)}")
    k(f"v_lshl_add_u32 {V(t)}, {V(t+1)}, 3, {V(t)}")
    k(f"v_lshrrev_b32 {V(t+1)}, 5, {V(vL)}")
    k(f"v_lshl_add_u32 {V(a1)}, {V(t+1)}, 10, {V(t)}")
    k(f"v_lshl_add_u32 {V(aE)}, {V(t+1)}, 9, {V(t)}")
    k(f"s_lshl_b32 {S(sT0)}, {S(sCH)}, 6")
    k(f"v_xor_b32 {V(a1)}, {S(sT0)}, {V(a1)}")
    k(f"s_mul_i32 {S(sT0)}, {S(sNH)}, 28672")
    k(f"v_add_u32 {V(a1)}, {S(sT0)}, {V(a1)}")
    k(f"s_lshl_b32 {S(sT0)}, {S(sNH)}, 6")
    k(f"v_xor_b32 {V(aE)}, {S(sT0)}, {V(aE)}")
    k(f"v_xor_b32 {V(aO)}, 64, {V(aE)}")
    k(f"s_mul_i32 {S(sT1)}, {S(sW)}, 7")
    k(f"s_lshr_b32 {S(sT0)}, {S(sT1)}, 1")
    k(f"s_lshl_b32 {S(sT0)}, {S(sT0)}, 11")
    k(f"s_add_u32 {S(sT0)}, {S(sT0)}, {IMG2}")
    k(f"v_add_u32 {V(aE)}, {S(sT0)}, {V(aE)}")
    k(f"s_add_u32 {S(sT0)}, {S(sT1)}, 1")
    k(f"s_lshr_b32 {S(sT0)}, {S(sT0)}, 1")
    k(f"s_lshl_b32 {S(sT0)}, {S(sT0)}, 11")
    k(f"s_add_u32 {S(sT0)}, {S(sT0)}, {IMG2}")
    k(f"v_add_u32 {V(aO)}, {S(sT0)}, {V(aO)}")
    k.wait(vm=0)
    k("s_barrier")
    stamp(3)
    for ks in range(14):
        for u in range(2):
            k(f"ds_read_b64_tr_b16 {V(F+4*ks+2*u,2)}, {V(a1)} offset:{ks*2048+u*512}")
    c, u_ = z, z + 2
    for i in range(56):
        k(f"v_dot2c_f32_bf16 {V(c)}, {S(sONES)}, {V(F+i)}")
    k(f"v_mov_b32 {V(u_)}, {V(c)}")
    k(f"v_permlane32_swap_b32 {V(c)}, {V(u_)}")
    k(f"v_add_f32 {V(c)}, {V(c)}, {V(u_)}")
    k(f"v_lshlrev_b32 {V(t)}, 2, {V(vTID)}")
    k(f"v_add_u32 {V(t)}, 0x18000, {V(t)}")
    k(f"ds_write_b32 {V(t)}, {V(c)}")
    k(f"v_xor_b32 {V(t)}, 256, {V(t)}")
    k.wait(lg=0)
    k("s_barrier")
    k(f"ds_read_b32 {V(u_)}, {V(t)}")
    k(f"s_lshl2_add_u32 {S(sT1)}, {S(sWG)}, {S(sW)}")
    k(f"s_mul_i32 {S(sT0)}, {S(sT1)}, 14336")
    k(f"s_add_u32 {S(sT0)}, {S(sT0)}, {hex(W1C)}")
    k(f"s_mul_i32 {S(sT1)}, {S(sT1)}, 7168")
    k(f"s_add_u32 {S(sT1)}, {S(sT1)}, {hex(W2T)}")
    k(f"v_add_f32 {V(c)}, {V(c)}, {V(u_)}")
    k(f"v_mul_f32 {V(c)}, {f2u(-1.0/448)}, {V(c)}")
    stamp(2)
    for i in range(56):
        tt = z + 4 + 2 * (i & 1)
        k(f"v_lshlrev_b32 {V(tt)}, 16, {V(F+i)}")
        k(f"v_and_b32 {V(tt+1)}, {S(sHIM)}, {V(F+i)}")
        pk("add", V(tt, 2), V(tt, 2), V(c, 2), bc=(1,))
        k(f"v_cvt_pk_bf16_f32 {V(F+i)}, {V(tt)}, {V(tt+1)}")
        if i % 4 == 3:
            ks = i // 4
            k(f"buffer_store_dwordx4 {V(F+4*ks,4)}, {V(vL16)}, {S(SRD_WS,4)}, {S(sT0)} offen offset:{1024*(ks%4)} sc1", tag="c")
            if ks % 4 == 3:
                k(f"s_add_u32 {S(sT0)}, {S(sT0)}, 4096")
    poll_load(vGO, vGO + 1, 0, 192, SRD_DBG)
    k.vm[-1] = (k.vm[-1][0], "c")
    k(f"s_and_b32 {S(sHL)}, {S(sWG)}, 3")
    k(f"s_lshl3_add_u32 {S(sHL)}, {S(sHL)}, {S(sW)}")
    k(f"s_add_u32 {S(sHL)}, {S(sHL)}, 4")
    k(f"s_mul_i32 {S(sHL)}, {S(sHL)}, {56*896}")
    k(f"s_lshr_b32 {S(sHS)}, {S(sWG)}, 2")
    k(f"s_lshl_b32 {S(sHS)}, {S(sHS)}, 7")
    k(f"s_add_u32 {S(sHL)}, {S(sHL)}, {S(sHS)}")
    k(f"s_mul_i32 {S(sT3)}, {S(sW)}, 7168")
    k(f"s_add_u32 m0, {S(sT3)}, {IMG2}")
    for _ in range(7):
        k(f"buffer_load_dwordx4 {V(a2)}, {S(SRD_W2,4)}, {S(sHL)} offen lds", tag="w2")
        k(f"s_add_u32 m0, m0, 1024")
        k(f"s_add_u32 {S(sHL)}, {S(sHL)}, {8*896}")
    k(f"v_mov_b32 {V(z)}, 0")
    def fl(off):
        k("s_mov_b64 exec, 1")
        k(f"buffer_store_dword {V(vONE)}, {V(z)}, {S(SRD_WS,4)}, {S(sT5)} offen offset:{off} sc1")
        k("s_mov_b64 exec, -1")
    k.wait_tag_vm("c")
    poll_check(vGO, vGO + 1, 0, 192, SRD_DBG)
    k("s_barrier")
    wave0(lambda: fl(0))
    stamp(1)
    k.wait_tag_vm("w2")
    k("s_barrier")
    for i in range(7):
        for u in range(2):
            k(f"ds_read_b64_tr_b16 {V(G+4*i+2*u,2)}, {V(aO if i & 1 else aE)} offset:{(i//2)*2048+u*1024}")
    for i in range(7):
        k(f"buffer_store_dwordx4 {V(G+4*i,4)}, {V(vL16)}, {S(SRD_WS,4)}, {S(sT1)} offen offset:{1024*(i%4)} sc1")
        if i == 3:
            k(f"s_add_u32 {S(sT1)}, {S(sT1)}, 4096")
    k.wait(vm=0)
    k("s_barrier")
    wave0(lambda: fl(64))
    stamp(25)
    label("L_end2")
    if DIAG:
        k(f"s_lshl_b32 {S(sT0)}, {S(sWG)}, 10")
        k(f"s_add_u32 {S(sT0)}, {S(sT0)}, {hex(STAMP)}")
        k(f"v_lshlrev_b32 {V(WK)}, 2, {V(vTID)}")
        k(f"buffer_store_dword {V(vSTAMP)}, {V(WK)}, {S(SRD_WS,4)}, {S(sT0)} offen")
    k("s_endpgm")

KW = W1R
PRM = KW
TBL = KW + 8
GA = KW + 20
TA = GA + 17
vKW, vKR, vKC, vDSK = KW + 42, KW + 43, KW + 44, KW + 45

def table_words():
    import numpy as np
    def bf16r(m):
        u = struct.unpack("<I", struct.pack("<f", float(m)))[0]
        return (u + 0x7FFF + ((u >> 16) & 1)) >> 16
    pad = lambda q: q + (q >> 5) + (SCR_ST // 8 - 528 if q >= 512 else 0)
    rows = []
    for lam in range(128):
        e = []
        for i in range(17):
            m = 2047 - 16 * lam - i
            e.append(pad(min(m, max(bf16r(m), 0x4300) - 0x4280)) if m >= 0 else (KC0 + 4096 + 64) // 8)
        l = lam & 63
        j, g = l & 15, l >> 4
        base, mul, pst = ((0, 8, 2), (4, 8, 2), (256, 4, 2), (384, 2, 64))[g]
        for yt in range(2):
            for pi in range(2):
                e.append(pad(base + mul * (16 * yt + j) + pi * pst))
        e.append(SCR_ST // 8 + 132 * g + j)
        e += [0, 0]
        rows.append([e[2 * i] | (e[2 * i + 1] << 16) for i in range(12)])
    out = []
    for qd in range(3):
        for lam in range(128):
            out.append(rows[lam][4 * qd:4 * qd + 4])
    return out

def addr_conv():
    t0, t1, t2, t3 = KW + 100, KW + 101, KW + 102, KW + 103
    r16, g4, cc = KW + 104, KW + 105, KW + 106
    o = []
    e = o.append
    e(f"v_and_b32 {V(r16)}, 15, {V(vL)}")
    e(f"v_lshrrev_b32 {V(g4)}, 4, {V(vL)}")
    e(f"v_and_b32 {V(cc)}, 3, {V(vL)}")
    e(f"s_mul_i32 {S(sSCR)}, {S(sW)}, {SCR_ST}")
    e(f"s_add_u32 {S(sSCR)}, {S(sSCR)}, {SCR}")
    e(f"s_mul_i32 {S(sSCH)}, {S(sCH)}, {2*SCR_ST}")
    e(f"s_add_u32 {S(sSCH)}, {S(sSCH)}, {SCR}")
    e(f"v_lshl_add_u32 {V(vKW)}, {V(vL)}, 3, {S(sSCR)}")
    e(f"v_mul_u32_u24 {V(vKR)}, {ROW_ST}, {V(r16)}")
    e(f"v_lshl_add_u32 {V(vKR)}, {V(g4)}, 4, {V(vKR)}")
    e(f"v_add_u32 {V(vKR)}, {S(sSCR)}, {V(vKR)}")
    e(f"v_and_b32 {V(t0)}, 127, {V(vTID)}")
    e(f"s_add_u32 {S(sT2)}, {S(sSCH)}, {KC0}")
    e(f"v_lshl_add_u32 {V(vKC)}, {V(t0)}, 5, {S(sT2)}")
    e(f"v_lshrrev_b32 {V(t0)}, 5, {V(vL)}")
    e(f"v_bfe_u32 {V(t1)}, {V(vL)}, 2, 2")
    e(f"v_lshlrev_b32 {V(t3)}, 9, {V(t0)}")
    e(f"v_lshl_add_u32 {V(t3)}, {V(t1)}, 7, {V(t3)}")
    e(f"v_bfe_u32 {V(t1)}, {V(vL)}, 3, 1")
    e(f"v_lshl_add_u32 {V(t3)}, {V(t1)}, 6, {V(t3)}")
    e(f"v_bfe_u32 {V(t1)}, {V(vL)}, 4, 1")
    e(f"v_lshl_add_u32 {V(t3)}, {V(t1)}, 5, {V(t3)}")
    e(f"v_lshl_add_u32 {V(t3)}, {V(cc)}, 3, {V(t3)}")
    e(f"s_mul_i32 {S(sT2)}, {S(sW)}, {WREG}")
    e(f"v_add_u32 {V(vW2R)}, {S(sT2)}, {V(t3)}")
    e(f"v_xor_b32 {V(vW2R+1)}, 64, {V(vW2R)}")
    e(f"v_lshrrev_b32 {V(t0)}, 3, {V(vTID)}")
    e(f"v_and_b32 {V(t1)}, 0x70, {V(vL16)}")
    e(f"v_lshl_add_u32 {V(vCX)}, {V(t0)}, 8, {V(t1)}")
    e(f"v_lshrrev_b32 {V(t0)}, 4, {V(vTID)}")
    e(f"v_and_b32 {V(t2)}, 8, {V(vL)}")
    e(f"v_lshl_add_u32 {V(t2)}, {V(t0)}, 7, {V(t2)}")
    e(f"v_lshl_add_u32 {V(t2)}, {V(cc)}, 5, {V(t2)}")
    e(f"v_bfe_u32 {V(t1)}, {V(vL)}, 2, 1")
    e(f"v_lshl_add_u32 {V(t2)}, {V(t1)}, 4, {V(t2)}")
    e(f"v_add_u32 {V(vUW)}, {UARR+480}, {V(t2)}")
    e(f"s_mul_i32 {S(sT2)}, {S(sCH)}, {SCR_ST-1024}")
    e(f"s_add_u32 {S(sT2)}, {S(sT2)}, {SCR}")
    e(f"v_add_u32 {V(vXW)}, {S(sT2)}, {V(t2)}")
    e(f"v_and_b32 {V(t0)}, 1, {V(vL)}")
    e(f"v_xor_b32 {V(t0)}, 1, {V(t0)}")
    e(f"v_mul_u32_u24 {V(t1)}, {SCR_ST+64-2}, {V(t0)}")
    e(f"v_lshlrev_b32 {V(t2)}, 1, {V(r16)}")
    e(f"v_sub_u32 {V(t1)}, {V(t1)}, {V(t2)}")
    e(f"v_lshl_add_u32 {V(t1)}, {V(g4)}, 4, {V(t1)}")
    e(f"s_lshl_b32 {S(sT3)}, {S(sNH)}, 8")
    e(f"s_sub_u32 {S(sT2)}, {S(sSCH)}, {S(sT3)}")
    e(f"s_add_u32 {S(sT2)}, {S(sT2)}, {KC0 + 2*2031 - 512 - 192}")
    e(f"v_add_u32 {V(vKF)}, {S(sT2)}, {V(t1)}")
    for a in range(1, 4):
        e(f"v_subrev_u32 {V(vKF+a)}, {1024*a}, {V(vKF)}")
    e(f"v_lshlrev_b32 {V(t1)}, 5, {V(r16)}")
    e(f"v_lshl_add_u32 {V(t1)}, {V(g4)}, 4, {V(t1)}")
    e(f"s_mul_i32 {S(sT2)}, {S(sCH)}, {U_ST}")
    e(f"s_sub_u32 {S(sT2)}, {S(sT2)}, {S(sT3)}")
    e(f"s_add_u32 {S(sT2)}, {S(sT2)}, {UARR + 480 - 32 - 192}")
    e(f"v_add_u32 {V(vUF)}, {S(sT2)}, {V(t1)}")
    e(f"v_mov_b32 {V(vXR)}, {V(vKW)}")
    e(f"v_add_u32 {V(vEXW)}, {S(sSCR)}, {V(vL16)}")
    e(f"s_xor_b32 {S(sT2)}, {S(sW)}, 1")
    e(f"s_mul_i32 {S(sT2)}, {S(sT2)}, {SCR_ST}")
    e(f"s_add_u32 {S(sT2)}, {S(sT2)}, {SCR}")
    e(f"v_add_u32 {V(vEXR)}, {S(sT2)}, {V(vL16)}")
    e(f"v_lshrrev_b32 {V(t0)}, 3, {V(vL)}")
    e(f"v_mul_u32_u24 {V(vCO)}, 114688, {V(t0)}")
    e(f"v_and_b32 {V(t0)}, 7, {V(vL)}")
    e(f"s_and_b32 {S(sT2)}, {S(sCP)}, 1")
    e(f"s_lshl_b32 {S(sT3)}, {S(sT2)}, 2")
    e(f"v_xor_b32 {V(t0)}, {S(sT3)}, {V(t0)}")
    e(f"v_lshl_add_u32 {V(vCO)}, {V(t0)}, 4, {V(vCO)}")
    e(f"s_lshl_b32 {S(sT2)}, {S(sT2)}, 3")
    e(f"s_lshr_b32 {S(sXQi)}, {S(sCP)}, 1")
    e(f"s_lshl_b32 {S(sXQi)}, {S(sXQi)}, 14")
    e(f"s_add_u32 {S(sXQi)}, {S(sXQi)}, {S(sT2)}")
    e(f"s_add_u32 {S(sXQi)}, {S(sXQi)}, {hex(XQ)}")
    e(f"s_lshl_b32 {S(sT2)}, {S(sCP)}, 1")
    e(f"s_add_u32 {S(sT2)}, {S(sT2)}, {S(sCH)}")
    e(f"s_lshl_b32 {S(sT2)}, {S(sT2)}, 7")
    e(f"s_mul_i32 {S(sT3)}, {S(sNH)}, {8*114688}")
    e(f"s_add_u32 {S(sT2)}, {S(sT2)}, {S(sT3)}")
    e(f"v_add_u32 {V(vCO)}, {S(sT2)}, {V(vCO)}")
    e(f"v_lshlrev_b32 {V(vFP)}, 4, {V(vTID)}")
    e(f"v_max_u32 {V(vFP)}, 512, {V(vFP)}")
    e(f"s_mov_b32 {S(sPERM0)}, 0x05040100")
    e(f"s_mov_b32 {S(sPERM1)}, 0x07060302")
    e(f"s_lshl_b32 {S(sT2)}, {S(sJ)}, 2")
    e(f"s_add_u32 {S(sT2)}, {S(sT2)}, {S(sW)}")
    e(f"s_mul_i32 {S(sWL)}, {S(sT2)}, 28672")
    e(f"s_add_u32 {S(sWL)}, {S(sWL)}, {hex(W1C)}")
    e(f"s_lshr_b32 {S(sT2)}, {S(sT2)}, 1")
    e(f"s_lshl_b32 {S(sT2)}, {S(sT2)}, 7")
    e(f"s_add_u32 {S(sT2)}, {S(sT2)}, {hex(FLG_W)}")
    e(f"v_mov_b32 {V(vWF+1)}, {S(sT2)}")
    e(f"s_lshl2_add_u32 {S(sT2)}, {S(sDS)}, {S(sW)}")
    e(f"s_mul_i32 {S(sW2L)}, {S(sT2)}, 28672")
    e(f"s_add_u32 {S(sW2L)}, {S(sW2L)}, {hex(W2T)}")
    e(f"s_lshl_b32 {S(sT2)}, {S(sT2)}, 7")
    e(f"s_add_u32 {S(sT2)}, {S(sT2)}, {hex(FLG_W+64)}")
    e(f"v_mov_b32 {V(vWF+2)}, {S(sT2)}")
    e(f"s_mul_i32 {S(sXT)}, {S(sGAM)}, 114688")
    e(f"s_add_u32 {S(sXT)}, {S(sXT)}, {hex(X1T)}")
    z = KW + 108
    for i in range(4):
        e(f"v_mov_b32 {V(z+i)}, 0")
    e(f"v_min_u32 {V(t0)}, 29, {V(vL)}")
    e(f"v_lshlrev_b32 {V(t0)}, 4, {V(t0)}")
    e(f"v_add_u32 {V(t0)}, {UARR}, {V(t0)}")
    e(f"ds_write_b128 {V(t0)}, {V(z,4)}")
    e(f"ds_write_b128 {V(t0)}, {V(z,4)} offset:{U_ST}")
    e(f"v_and_b32 {V(t0)}, 0x70, {V(vL16)}")
    e(f"v_add_u32 {V(t0)}, {S(sSCR)}, {V(t0)}")
    e(f"ds_write_b128 {V(t0)}, {V(z,4)} offset:{KC0+4096}")
    return o

def addr_ffn(layer):
    t0, t1, t2, t3 = WK + 84, WK + 85, WK + 86, WK + 87
    g4, rho, cc = WK + 88, WK + 89, WK + 90
    o = []
    e = o.append
    e(f"v_lshrrev_b32 {V(g4)}, 4, {V(vL)}")
    e(f"v_bfe_u32 {V(rho)}, {V(vL)}, 2, 2")
    e(f"v_and_b32 {V(cc)}, 3, {V(vL)}")
    e(f"v_lshrrev_b32 {V(t0)}, 5, {V(vL)}")
    e(f"v_bfe_u32 {V(t1)}, {V(vL)}, 4, 1")
    e(f"v_bfe_u32 {V(t2)}, {V(vL)}, 3, 1")
    e(f"v_lshlrev_b32 {V(t3)}, 7, {V(rho)}")
    e(f"v_lshl_add_u32 {V(t3)}, {V(t2)}, 6, {V(t3)}")
    e(f"v_lshl_add_u32 {V(vXA0)}, {V(t0)}, 10, {V(t3)}")
    e(f"v_lshl_add_u32 {V(vXA0)}, {V(cc)}, 4, {V(vXA0)}")
    e(f"v_lshl_add_u32 {V(vXA0)}, {V(t1)}, 3, {V(vXA0)}")
    e(f"v_xor_b32 {V(vXA1)}, 64, {V(vXA0)}")
    e(f"s_lshl_b32 {S(sT2)}, {S(sHH)}, 6")
    e(f"v_xor_b32 {V(t3)}, {S(sT2)}, {V(t3)}")
    e(f"s_lshl_b32 {S(sT2)}, {S(sNH)}, 5")
    e(f"s_lshl3_add_u32 {S(sT2)}, {S(sCH)}, {S(sT2)}")
    e(f"v_and_b32 {V(t0)}, 16, {V(vL16)}")
    e(f"v_add3_u32 {V(t3)}, {V(t3)}, {V(t0)}, {S(sT2)}")
    e(f"v_bfe_u32 {V(t0)}, {V(vL)}, 1, 1")
    e(f"v_mul_u32_u24 {V(vST)}, {XHALF}, {V(t0)}")
    e(f"v_lshl_add_u32 {V(vST)}, {V(g4)}, 10, {V(vST)}")
    e(f"v_add_u32 {V(vST)}, {V(vST)}, {V(t3)}")
    e(f"v_lshl_add_u32 {V(t0)}, {V(g4)}, 1, {V(t0)}")
    e(f"v_lshl_add_u32 {V(vRES)}, {V(t0)}, 10, {V(t3)}")
    e(f"s_lshl_b32 {S(sT2)}, {S(sDS)}, 13")
    e(f"v_add_u32 {V(vRES)}, {S(sT2)}, {V(vRES)}")
    e(f"s_mul_i32 {S(sT2)}, {S(sW)}, {RED_W}")
    e(f"v_add_u32 {V(vRW)}, {S(sT2)}, {V(vL16)}")
    e(f"v_lshrrev_b32 {V(t0)}, 3, {V(vL)}")
    e(f"v_and_b32 {V(t1)}, 0x70, {V(vL16)}")
    e(f"v_mul_u32_u24 {V(vRR)}, {RED_G}, {V(t0)}")
    e(f"s_lshl_b32 {S(sT2)}, {S(sW)}, 7")
    e(f"v_add3_u32 {V(vRR)}, {V(vRR)}, {V(t1)}, {S(sT2)}")
    e(f"s_and_b32 {S(sT2)}, {S(sGAM)}, 8")
    e(f"s_bfe_u32 {S(sT3)}, {S(sGAM)}, 0x20001")
    e(f"s_add_u32 {S(sT2)}, {S(sT2)}, {S(sT3)}")
    e(f"s_lshl2_add_u32 {S(sT2)}, {S(sCH)}, {S(sT2)}")
    e(f"s_lshl1_add_u32 {S(sT3)}, {S(sHH)}, {S(sNH)}")
    e(f"s_and_b32 {S(sT4)}, {S(sGAM)}, 1")
    e(f"v_lshlrev_b32 {V(t2)}, 4, {V(cc)}")
    e(f"v_bfe_u32 {V(t3)}, {V(vL)}, 2, 1")
    if layer == 0:
        e(f"s_lshl2_add_u32 {S(sT2)}, {S(sT2)}, {S(sT3)}")
        e(f"s_lshl1_add_u32 {S(sT2)}, {S(sT2)}, {S(sT4)}")
        e(f"s_lshl_b32 {S(sT2)}, {S(sT2)}, 6")
        e(f"v_lshl_add_u32 {V(vAT)}, {V(t3)}, 2, {V(t2)}")
        e(f"v_lshrrev_b32 {V(t3)}, 5, {V(vL)}")
        e(f"v_lshl_add_u32 {V(vAT)}, {V(t3)}, 3, {V(vAT)}")
        e(f"v_add_u32 {V(vAT)}, {S(sT2)}, {V(vAT)}")
        e(f"v_lshrrev_b32 {V(t3)}, 2, {V(vL)}")
        e(f"v_lshl_add_u32 {V(vO)}, {V(t3)}, 14, {V(t2)}")
        e(f"s_lshl_b32 {S(sT5)}, {S(sDS)}, 18")
        e(f"s_add_u32 {S(sT2)}, {S(sT2)}, {S(sT5)}")
        e(f"v_add_u32 {V(vO)}, {S(sT2)}, {V(vO)}")
    else:
        e(f"s_lshl3_add_u32 {S(sT2)}, {S(sT2)}, {S(sT4)}")
        e(f"s_lshl2_add_u32 {S(sT2)}, {S(sT2)}, {S(sT3)}")
        e(f"s_lshl_b32 {S(sT2)}, {S(sT2)}, 1")
        e(f"v_add3_u32 {V(t2)}, {V(t2)}, {V(t3)}, {S(sT2)}")
        e(f"v_mul_u32_u24 {V(vO)}, 896, {V(t2)}")
        e(f"v_lshl_add_u32 {V(vO)}, {V(t0)}, 4, {V(vO)}")
        e(f"s_lshl_b32 {S(sT2)}, {S(sDS)}, 7")
        e(f"v_add_u32 {V(vO)}, {S(sT2)}, {V(vO)}")
    e(f"v_min_u32 {V(t0)}, 13, {V(vL)}")
    e(f"s_mul_i32 {S(sT2)}, {S(sW)}, 14")
    e(f"v_add_lshl_u32 {V(vF2P)}, {V(t0)}, {S(sT2)}, 4")
    e(f"s_lshl2_add_u32 {S(sT3)}, {S(sJ)}, {S(sW)}")
    e(f"s_lshl_b32 {S(sT2)}, {S(sT3)}, 4")
    e(f"v_mov_b32 {V(vFL)}, {S(sT2)}")
    e(f"s_mul_i32 {S(sT2)}, {S(sGAM)}, {4*112*1024}")
    e(f"s_add_u32 {S(sT2)}, {S(sT2)}, {hex(HB + layer*H_SZ)}")
    e(f"s_lshl_b32 {S(sT3)}, {S(sT3)}, 11")
    e(f"s_add_u32 {S(sHS)}, {S(sT2)}, {S(sT3)}")
    e(f"s_lshl2_add_u32 {S(sT3)}, {S(sHH)}, {S(sW)}")
    e(f"s_mul_i32 {S(sT3)}, {S(sT3)}, {28*1024}")
    e(f"s_add_u32 {S(sHL)}, {S(sT2)}, {S(sT3)}")
    e(f"s_lshl_b32 {S(sFG)}, {S(sGAM)}, 11")
    e(f"s_add_u32 {S(sFG)}, {S(sFG)}, {hex(FLG_G + layer*0x8000)}")
    if layer:
        e(f"s_mov_b32 {S(SRD_OUT)}, s52")
        e(f"s_and_b32 {S(SRD_OUT+1)}, s53, 0xffff")
        e(f"s_mov_b32 {S(SRD_OUT+2)}, {hex(2048*896)}")
        e(f"s_mov_b32 {S(SRD_OUT+3)}, 0x20000")
    return o

def pk(op, d, a, b, c=None, bc=(), neg=(), emit=True):
    ops = [a, b] + ([c] if c is not None else [])
    n = len(ops)
    txt = f"v_pk_{op}_f32 {d}, " + ", ".join(ops)
    if bc:
        txt += " op_sel_hi:[" + ",".join("0" if i in bc else "1" for i in range(n)) + "]"
    if neg:
        m = "[" + ",".join("1" if i in neg else "0" for i in range(n)) + "]"
        txt += f" neg_lo:{m} neg_hi:{m}"
    if emit:
        k(txt)
    return txt

def cmul(d, a, b, t):
    assert d != a
    pk("mul", V(t, 2), V(a, 2), V(b, 2))
    pk("mul", V(t + 2, 2), V(a, 2), V(b + 2, 2))
    pk("fma", V(d, 2), V(a + 2, 2), V(b + 2, 2), V(t, 2), neg=(0,))
    pk("fma", V(d + 2, 2), V(a + 2, 2), V(b, 2), V(t + 2, 2))

NINIT = opt("ninit", 6)
NPG = opt("npg", 8)
def stub_targets():
    return [("L_ret0" if p <= 3 else (f"L_pg{p+4}" if p + 4 <= NPG else "L_ret1")) for p in range(1, NPG + 1)]

def touch(n):
    if not opt("touch", 1):
        k.label(f"L_ret{n}")
        return
    k("s_mov_b64 exec, 0")
    for w in range(4):
        p = w if n == 0 else 4 + w
        if 1 <= p <= NPG:
            k(f"s_cmp_eq_u32 {S(sW)}, {w}")
            k(f"s_cbranch_scc1 L_pg{p}")
    if n == 0:
        k("s_branch L_ret0")
        k.raw(".p2align 12")
    k.label(f"L_ret{n}")
    k("s_mov_b64 exec, -1")

def table_loads():
    t0 = KW + 100
    k(f"v_and_b32 {V(t0)}, 127, {V(vTID)}")
    k(f"v_lshlrev_b32 {V(t0)}, 4, {V(t0)}")
    k(f"v_add_u32 {V(t0)}, L_table-L_pc+2048, {V(t0)}")
    for q in range(3):
        k(f"global_load_dwordx4 {V(TBL+4*q,4)}, {V(t0)}, {S(sPC,2)} offset:{2048*(q-1)}")

def main_start():
    k.c("=== main workgroups")
    p0x_loads()
    for i in range(6):
        k(f"global_load_dword {V(PRM+i)}, {V(PRM+6)}, {S(30+2*i,2)}")
    k(f"s_lshl_b32 {S(sT0)}, {S(sCP)}, 2")
    k(f"s_load_dword {S(sLDT)}, s[42:43], {S(sT0)}")
    k(f"s_load_dword {S(sDSK)}, s[44:45], {S(sT0)}")
    k.lg = []
    srd(SRD_W2, 50, 1792 * 896)
    if opt("warm", 0):
        k(f"s_sub_u32 {S(sT0)}, {S(sWG)}, 32")
        k(f"s_lshl2_add_u32 {S(sT0)}, {S(sT0)}, {S(sW)}")
        k(f"s_mul_i32 {S(sT0)}, {S(sT0)}, 1792")
        k(f"v_min_u32 {V(vDUM+1)}, 13, {V(vL)}")
        k(f"v_lshl_add_u32 {V(vDUM+1)}, {V(vDUM+1)}, 7, {S(sT0)}")
        for q in range(opt("warm", 0)):
            k(f"global_load_dword {V(vDUM)}, {V(vDUM+1)}, {S(48+2*q,2)}")
            k.vm[-1] = (set(), None)
    if opt("tblearly", 0):
        table_loads()
    w2_lane_src(vW2S, 896, KW + 100, KW + 101)
    k(f"s_mul_i32 {S(sW2B)}, {S(sW)}, {448*896}")
    k(f"s_lshl_b32 {S(sT2)}, {S(sDS)}, 7")
    k(f"s_add_u32 {S(sW2B)}, {S(sW2B)}, {S(sT2)}")
    ac = addr_conv()
    for i in range(NINIT):
        w2_dma()
        run(ac, len(ac) // (NINIT - i))
    run(ac)
    stamp(24)
    p0x_body()
    stamp(1)
    if opt("atom0", 14) < 0:
        p0x_atomics()
        stamp(25)
    touch(0)

DEF0 = opt("def0", 1)
LATE0 = W1R + 100 if DEF0 else WK + 12
def conv_load_ops(layer, h, D):
    o = [f"s_mov_b32 {S(sT0)}, {hex(STATS[layer] + 8192*h)}",
         f"s_add_u32 {S(sT3)}, {S(sXQi)}, {hex(layer*XQ_SZ + 8192*h)}"]
    for j in range(2):
        o.append(f"buffer_load_dwordx4 {V(D+4*j,4)}, {V(vCX)}, {S(SRD_WS,4)}, {S(sT0)} offen offset:{128*j} sc1")
        o.append(f"buffer_load_dwordx2 {V(D+8+2*j,2)}, {V(vCX)}, {S(SRD_WS,4)}, {S(sT3)} offen offset:{128*j} sc1")
    return o

CW = []
def kgen():
    k.c("=== K generation")
    B0 = KW + 46
    U = B0
    DT = B0 + 12
    W1_, W8_, W256 = B0 + 14, B0 + 18, B0 + 22
    T = B0 + 26
    P = [B0 + 30 + 4 * i for i in range(5)]
    CV = B0 + 50
    ACC = WK + 64
    FX, FY = (112, 144), (176, 208)
    for i in range(6):
        k(f"v_lshlrev_b32 {V(U+2*i)}, 16, {V(PRM+i)}")
        k(f"v_and_b32 {V(U+2*i+1)}, {S(sHIM)}, {V(PRM+i)}")
    k.wait(lg=0)
    k(f"s_lshl_b32 {S(sT0)}, {S(sCH)}, 4")
    k(f"s_lshr_b32 {S(sLDT)}, {S(sLDT)}, {S(sT0)}")
    k(f"s_lshl_b32 {S(sLDT)}, {S(sLDT)}, 16")
    k(f"s_lshr_b32 {S(sDSK)}, {S(sDSK)}, {S(sT0)}")
    k(f"s_lshl_b32 {S(sDSK)}, {S(sDSK)}, 16")
    k(f"v_mov_b32 {V(DT)}, {f2u(1.4426950408889634)}")
    k(f"v_mul_f32 {V(DT)}, {S(sLDT)}, {V(DT)}")
    k(f"v_exp_f32 {V(DT)}, {V(DT)}")
    k(f"s_cmp_eq_u32 {S(sNH)}, 0")
    k(f"s_cselect_b32 {S(sDSK)}, {S(sDSK)}, 0")
    k(f"v_cvt_pk_bf16_f32 {V(DT)}, {V(DT)}, {V(DT)}")
    k(f"v_mov_b32 {V(vDSK)}, 0")
    k(f"v_lshlrev_b32 {V(DT)}, 16, {V(DT)}")
    k(f"v_writelane_b32 {V(vDSK)}, {S(sDSK)}, 0")
    for i in range(4):
        pk("mul", V(U + 2 * i, 2), V(U + 2 * i, 2), V(DT, 2), bc=(1,))
    k(f"s_mov_b32 {S(sC0)}, {f2u(1.4426950408889634)}")
    pk("mul", V(U, 2), V(U, 2), S(sC0, 2), bc=(1,))
    k(f"s_mov_b32 {S(sC0)}, {f2u(0.15915494309189535)}")
    pk("mul", V(U + 2, 2), V(U + 2, 2), S(sC0, 2), bc=(1,))
    cmul(P[0], U + 8, U + 4, T)
    for (Wd, sc) in ((W1_, 1.0), (W256, 256.0), (W8_, 8.0)):
        ea, an = U + 4, U + 6
        if sc == 1.0:
            sa, sb = U, U + 2
        else:
            k(f"s_mov_b32 {S(sC0)}, {f2u(sc)}")
            pk("mul", V(ea, 2), V(U, 2), S(sC0, 2), bc=(1,))
            pk("mul", V(an, 2), V(U + 2, 2), S(sC0, 2), bc=(1,))
            sa, sb = ea, an
        for h in range(2):
            k(f"v_fract_f32 {V(an+h)}, {V(sb+h)}")
        for h in range(2):
            k(f"v_exp_f32 {V(ea+h)}, {V(sa+h)}")
        for h in range(2):
            k(f"v_cos_f32 {V(Wd+h)}, {V(an+h)}")
        for h in range(2):
            k(f"v_sin_f32 {V(Wd+2+h)}, {V(an+h)}")
        pk("mul", V(Wd, 2), V(Wd, 2), V(ea, 2))
        pk("mul", V(Wd + 2, 2), V(Wd + 2, 2), V(ea, 2))
    if not opt("goearly", 0):
        poll_load(vGO, vGO + 3, 0, 0, SRD_DBG)
    if opt("atom0", 14) == 0:
        p0x_atomics()
        stamp(25)
    cvi = [0]
    ent = [0]
    vPL = WK + 80
    NKD = opt("nkd", 28 - NINIT)
    FL0, PL0 = opt("flag0", 30), opt("poll0", 50)
    cl = conv_load_ops(0, 0, WK) + conv_load_ops(0, 1, LATE0)
    PCE = opt("pce", 0)
    def put(src, row, negim, extra=None):
        c = CV + 2 * (cvi[0] & 1)
        cvi[0] += 1
        n = "-" if negim else ""
        k(f"v_cvt_pk_bf16_f32 {V(c)}, {V(src)}, {V(src+1)}")
        k(f"v_cvt_pk_bf16_f32 {V(c+1)}, {n}{V(src+2)}, {n}{V(src+3)}")
        k(f"ds_write_b64 {V(vKW)}, {V(c,2)} offset:{row*ROW_ST}")
        if extra:
            k(extra)
        ent[0] += 1
        if ent[0] == opt("atom0", 14):
            p0x_atomics()
            stamp(25)
        if ent[0] == FL0:
            poll_check(vGO, vGO + 2, 0, 128, SRD_DBG)
            k("s_barrier")
            flag_all(0)
            if not opt("tblearly", 0):
                table_loads()
            stamp(2)
        if opt("kdb", 0) and ent[0] == opt("kdb", 0):
            for _ in range(4):
                w2_dma()
        if ND[0] < NINIT + min(NKD, NKD * (ent[0] - opt("kd0", 0)) // (opt("kdspan", 42) - opt("kd0", 0))):
            w2_dma()
        if ent[0] == PL0:
            poll_load(vGO, vGO + 1, 0, 192, SRD_DBG)
            poll_load(vPL, vFP, S(sREP))
        if ent[0] == PCE:
            poll_check(vPL, vFP, S(sREP))
            poll_check(vGO, vGO + 1, 0, 192, SRD_DBG)
            k("s_barrier")
            run(cl, 6)
    def frags(b):
        for st in range(8):
            k(f"ds_read_b128 {A(b+4*st,4)}, {V(vKR)} offset:{64*st}")
    cur = 0
    for a in range(8):
        put(P[cur], a, True)
        if a % 2 == 0:
            dst = {0: 3, 4: 4}.get(a, 2)
            cmul(P[dst], P[cur], W256, T)
            put(P[dst], 8 + a // 2, True)
        if a < 7:
            cmul(P[1 - cur], P[cur], W1_, T)
            cur = 1 - cur
    cmul(P[0], P[3], W256, T); put(P[0], 12, True)
    cmul(P[1], P[4], W256, T); put(P[1], 13, True)
    cmul(P[3], P[0], W256, T); put(P[3], 14, True)
    cmul(P[4], P[1], W256, T); put(P[4], 15, True)
    frags(FX[0])
    src, dst = 3, 0
    for row in range(5):
        cmul(P[dst], P[src], W256, T)
        put(P[dst], row, True)
        src, dst = dst, (1 - dst if dst in (0, 1) else 0)
    frags(FX[1])
    k(f"v_mov_b32 {V(CV)}, {S(sONES)}")
    k(f"v_mov_b32 {V(CV+1)}, 0")
    k(f"ds_write_b64 {V(vKW)}, {V(CV,2)}")
    cvi[0] = 1
    put(W8_, 1, False)
    cmul(P[0], W8_, W8_, T)
    cur = 0
    def mfma(n):
        yt, x, st = n // 16, (n // 8) & 1, n % 8
        d = V(ACC + 8 * yt + 4 * x, 4)
        return f"v_mfma_f32_16x16x32_bf16 {d}, {A(FX[x]+4*st,4)}, {A(FY[yt]+4*st,4)}, {d if st else 0}"
    M0 = opt("km", 13)
    for j in range(2, 32):
        put(P[cur], j % 16, False, mfma(j - 32 + M0) if j >= 32 - M0 else None)
        if j % 16 == 15:
            frags(FY[j // 16])
        if j == 15:
            stamp(3)
        if j < 31:
            cmul(P[1 - cur], P[cur], W8_, T)
            cur = 1 - cur
    assert ND[0] == NINIT + NKD and opt("pchk", 3) < 13, ND
    def tables(yt, x):
        if x == 0:
            return [f"ds_write2_b32 {V(TA+2*yt+pi)}, {V(ACC+8*yt+2*pi)}, {V(ACC+8*yt+2*pi+1)} offset0:0 offset1:2" for pi in range(2)]
        return [f"ds_write2_b32 {V(TA+4)}, {V(ACC+8*yt+4+i)}, {V(ACC+8*yt+5+i)} offset0:{66*i+32*yt} offset1:{66*(i+1)+32*yt}" for i in (0, 2)]
    k(f"s_lshl2_add_u32 {S(sT1)}, {S(sNH)}, {S(sSCH)}")
    mads = []
    for i in range(22):
        n = (i + 17) % 22
        sel = " op_sel:[1,0,0,0]" if n & 1 else ""
        mads.append(f"v_mad_u32_u16 {V(GA+n)}, {V(TBL+n//2)}, 8, {S(sSCH if n < 17 else sT1)}{sel}")
    PCK = opt("pchk", 3)
    tb = [(8, [f"v_add_f32 {V(ACC)}, {V(ACC)}, {V(vDSK)}"] + tables(0, 0)), (16, tables(0, 1)), (24, tables(1, 0))]
    for n in range(M0, 32):
        k(mfma(n))
        run(mads, 2 if n - M0 < PCK else 1)
        if n - M0 == PCK:
            if not PCE:
                poll_check(vPL, vFP, S(sREP))
                poll_check(vGO, vGO + 1, 0, 192, SRD_DBG)
            k.wait(lg=0)
            k("s_barrier")
            stamp(4)
        if n - M0 >= PCK:
            run(cl, 3 if cl and cl[0].startswith("s_") else 1)
            if not cl and tb and n >= tb[0][0] + 4:
                run(tb.pop(0)[1])
    run(mads)
    for _, o in tb:
        run(o)
    run(cl)
    run(tables(1, 1))
    k.wait(lg=0)
    k("s_barrier")
    stamp(6)
    GV = B0
    for e in range(17):
        k(f"ds_read_b64 {V(GV+2*e,2)}, {V(GA+e)}")
    if opt("cpk", 1):
        CW.extend(cprep(WK, WK + 32, 0, True))
        k.wait(lg=0)
    else:
        k.wait(lg=8)
    for e in range(17):
        if e == 9 and k.lg:
            k.wait(lg=0)
        k(f"v_add_f32 {V(GV+2*e)}, {V(GV+2*e)}, {V(GV+2*e+1)}")
    k("s_barrier")
    O = B0 + 34
    for c in range(2):
        for kk in range(8):
            e = 2 * kk + c
            k(f"v_cvt_pk_bf16_f32 {V(O+8*c+kk)}, {V(GV+2*e)}, {V(GV+2*e+2)}")
    for c in range(2):
        for h in range(2):
            k(f"ds_write_b128 {V(vKC)}, {V(O+8*c+4*h,4)} offset:{c*(SCR_ST+64)+16*h}")
    stamp(5)

def wave0(fn):
    skip = newlab("w0")
    k(f"s_cmp_lg_u32 {S(sW)}, 0")
    saved = list(k.vm)
    k.skip_begin("s_cbranch_scc1", skip)
    fn()
    k.skip_end(skip)
    k.vm = saved

def apoll_load(arr):
    k(f"s_add_u32 {S(sPA)}, {S(sREP)}, {hex(FA(arr))}")
    poll_load(vPA, vFP, S(sPA))

def apoll_check():
    poll_check(vPA, vFP, S(sPA))

def aflag(arr):
    flag_all(FA(arr))

def bar():
    k.wait(lg=0)
    k("s_barrier")

CACC, CKR, CXU, CXR = WK, WK + 32, WK + 96, WK + 104
def cprep(D, T, h, defer=False):
    UU, O, RAW, EPS = T, T + 4, T + 8, CXR
    k(f"s_mov_b32 {S(sC0)}, {f2u(1.0/448)}")
    k(f"s_mov_b32 {S(sC1)}, {f2u(1e-5)}")
    k(f"v_mov_b32 {V(EPS)}, {S(sC1)}")
    for j in range(2):
        M, Q, X = D + 4 * j, D + 4 * j + 2, D + 8 + 2 * j
        pk("mul", V(M, 2), V(M, 2), S(sC0, 2), bc=(1,))
        pk("fma", V(Q, 2), V(Q, 2), S(sC0, 2), V(EPS, 2), bc=(1, 2))
        pk("fma", V(Q, 2), V(M, 2), V(M, 2), V(Q, 2), neg=(0,))
        for b in range(2):
            k(f"v_max_f32 {V(Q+b)}, {S(sC1)}, {V(Q+b)}")
        for b in range(2):
            k(f"v_rsq_f32 {V(Q+b)}, {V(Q+b)}")
        for b in range(2):
            k(f"v_lshlrev_b32 {V(UU+b)}, 16, {V(X+b)}")
            k(f"v_and_b32 {V(UU+2+b)}, {S(sHIM)}, {V(X+b)}")
        pk("mul", V(M, 2), V(M, 2), V(Q, 2))
        for c in range(2):
            pk("fma", V(UU + 2 * c, 2), V(UU + 2 * c, 2), V(Q, 2), V(M, 2), neg=(2,))
            k(f"v_perm_b32 {V(RAW+2*c+j)}, {V(X+1)}, {V(X)}, {S(sPERM0+c)}")
        for c in range(2):
            k(f"v_cvt_pk_bf16_f32 {V(O+2*c+j)}, {V(UU+2*c)}, {V(UU+2*c+1)}")
    w = [f"ds_write_b64 {V(vUW)}, {V(O+2*c,2)} offset:{c*U_ST + 2048*h}" for c in range(2)]
    w += [f"ds_write_b64 {V(vXW)}, {V(RAW+2*c,2)} offset:{c*2*SCR_ST + 1024*h}" for c in range(2)]
    if defer:
        return w
    run(w)

def k_ops(I, s, reg):
    o = (128 if I % 2 == 0 else 0) + 16 * (3 - s)
    r = (V if reg[0] == "v" else A)
    return [f"ds_read2_b32 {r(reg[1]+2*h,2)}, {V(vKF+I//2)} offset0:{o+2*h} offset1:{o+2*h+1}" for h in range(2)]

def k_preload():
    return [t for s in range(4) for I in range(4) for t in k_ops(I, s, ("v", CKR + 16 * s + 4 * I))]

def conv(layer):
    k.c("=== conv")
    ACC, XU, XR = CACC, CXU, CXR
    mf = []
    for s in range(4):
        mf += [(0, s, Jp, I) for Jp in range(3, -1, -1) for I in range(4 - Jp)]
    for s in range(3, -1, -1):
        mf += [(1, s, Jp, I) for I in range(7, 0, -1) for Jp in range(4) if 4 <= Jp + I <= 7]
    for s in range(4):
        mf += [(2, s, Jp, I) for Jp in range(7, 3, -1) for I in range(8 - Jp)]
    assert len(mf) == 144
    ukey = lambda p, s, Jp: ("u", 0 if (p == 1 and s == 3) else p, s, Jp)
    kkey = lambda s, I: ("k", s, I)
    first, last = {}, {}
    for n, (p, s, Jp, I) in enumerate(mf):
        for key in (ukey(p, s, Jp), kkey(s, I)):
            first.setdefault(key, n)
            last[key] = n
    reg = {kkey(s, I): ("v", CKR + 16 * s + 4 * I) for s in range(4) for I in range(4)}
    items = sorted((key for key in first if not (layer and key in reg)), key=lambda x: first[x])
    XB, XS = opt("xb", 42), opt("xs", 46)
    slots = [("a", AX + 4 * i) for i in range(8)] + [("v", WK + 108), ("v", ACC + 12)][:opt("xslot", 2)]
    slot_free = ([-1] * 9 + [XB + 4])[:len(slots)]
    RG = lambda r: (V if r[0] == "v" else A)(r[1], 4)
    queue = []
    issued = {}
    def issue(n, budget):
        c = 0
        while True:
            if not queue:
                if not items:
                    return c
                key = items[0]
                if not (first[key] <= n + 2 or (c < budget and first[key] <= n + 20)):
                    return c
                if (layer or DEF0) and key[0] == "u" and key[1] == 2 and n < 104:
                    return c
                if key not in reg:
                    fr = [i for i in range(len(slots)) if slot_free[i] < n]
                    if not fr:
                        assert first[key] > n, (n, key)
                        return c
                    slot_free[fr[0]] = last[key]
                    reg[key] = slots[fr[0]]
                items.pop(0)
                if key[0] == "u":
                    queue.append((key, f"ds_read_b128 {RG(reg[key])}, {V(vUF)} offset:{512*key[3] + 64*(3-key[2])}"))
                else:
                    queue.extend((key, t) for t in k_ops(key[2], key[1], reg[key]))
            elif not (first[queue[0][0]] <= n + 2 or c < budget):
                return c
            key, t = queue.pop(0)
            k(t, tag=key)
            issued[key] = n
            c += 1
    def xblock(ph, packed, addfirst=False):
        l1, lj = newlab("x1"), newlab("xj")
        k(f"s_cmp_eq_u32 {S(sNH)}, 1")
        h0 = list(k.hist)
        k(f"s_cbranch_scc1 {l1}")
        for hf in range(2):
            if hf:
                k.label(l1)
                k.hist = h0
                k.lg = k.lg[:-2]
            a = ACC + 16 * ph
            def adds():
                for i in range(4 if packed else 8):
                    if packed:
                        pk("add", V(XU + 2 * i, 2), V(XU + 2 * i, 2), V(a + 8 * hf + 2 * i, 2))
                    else:
                        k(f"v_add_f32 {V(XU+i)}, {V(XU+i)}, {V(a+8*hf+i)}")
            if addfirst:
                adds()
            for jl in range(2):
                k(f"ds_write_b128 {V(vEXW)}, {V(a+8*(1-hf)+4*jl,4)} offset:{2048+1024*jl}", tag="ex")
            if not addfirst:
                adds()
            if not hf:
                k(f"s_branch {lj}")
        k.label(lj)
    def wait_lg(tag):
        idx = [i for i, p in enumerate(k.lg) if p[2] == tag]
        if idx:
            k.wait(lg=len(k.lg) - 1 - idx[-1])
    def res_ops(ph):
        o = [f"ds_read_b64_tr_b16 {V(XR+2*jl,2)}, {V(vXR)} offset:{1024*ph + 512*jl}" for jl in range(2)]
        o += [None] * 6
        for i in range(4):
            o += [f"v_lshlrev_b32 {V(XU+2*i)}, 16, {V(XR+i)}", f"v_and_b32 {V(XU+2*i+1)}, {S(sHIM)}, {V(XR+i)}"]
        return o
    def recv_ops():
        return [f"ds_read_b128 {V(ACC+4*jl,4)}, {V(vEXR)} offset:{2048+1024*jl}" for jl in range(2)]
    def out_ops(ph, packed):
        if packed:
            o = [f"v_pk_add_f32 {V(XU+2*i,2)}, {V(XU+2*i,2)}, {V(ACC+2*i,2)}" for i in range(4)]
        else:
            o = [f"v_add_f32 {V(XU+i)}, {V(XU+i)}, {V(ACC+i)}" for i in range(8)]
        o += [f"v_cvt_pk_bf16_f32 {V(ACC+8+i)}, {V(XU+2*i)}, {V(XU+2*i+1)}" for i in range(4)]
        o.append(f"s_mov_b32 {S(sT1)}, {hex(X1T + layer*XQ_SZ + 57344*ph)}")
        o.append((f"buffer_store_dwordx4 {V(ACC+8,4)}, {V(vCO)}, {S(SRD_WS,4)}, {S(sT1)} offen sc1", ("cst", ph)))
        return o
    if layer == 0:
        if opt("pw1", -1) < 0:
            poll_load(vWF, vWF + 1, 0)
        if CW:
            run(CW)
        else:
            cprep(WK, WK + 32, 0)
        stamp(7)
        if not DEF0:
            cprep(WK + 12, WK + 44, 1)
    bar()
    FREG[0] = 3
    fine("start")
    stamp(9)
    bg = []
    if layer == 0:
        n1, n2 = opt("w1conv", 18), opt("w2conv", 0)
        bg = [w2_dma] * (28 - ND[0])
        def c1():
            if not opt("abl", 0) & 8:
                poll_check(vWF, vWF + 1, 0)
            w1_load()
        def p2():
            poll_load(vWF, vWF + 2, 0)
            w1_load()
        def c2():
            if not opt("abl", 0) & 16:
                poll_check(vWF, vWF + 2, 0)
            if n2:
                w2_load()
        w = [c1] + [w1_load] * (n1 - 1)
        pos = max(1, n1 - n2 - 7)
        w[pos] = p2
        t = w[:n1 - n2]
        for i in range(max(n2, 1)):
            t += [c2 if i == 0 else w2_load] + w[n1 - n2 + i: n1 - n2 + i + 1]
        bg += t
    nbg = len(bg)
    BG0 = opt("bg0", 4)
    step = max(1, (opt("bg1", 138) - BG0) // max(1, nbg))
    side = []
    seen = set()
    CL, FE, PE = opt("cl", XS), opt("fe", 100), opt("pe", 128)
    for n, (p, s, Jp, I) in enumerate(mf):
        if n == 104 and (layer or DEF0):
            assert not side and (layer or NW1[0] <= 25)
            stamp(10)
            cprep(LIN if layer else LATE0, ACC, 1)
            k.wait_tag_vm(("cst", 0))
            bar()
            if FE >= 104:
                aflag(F_X1[layer][0])
            stamp(12)
        cnt = issue(n, (12 if layer == 0 else 5) if n == 0 else 5 if n == 104 and (layer or DEF0) else 1)
        uk, kk = ukey(p, s, Jp), kkey(s, I)
        tags = [q[2] for q in k.lg]
        if uk in tags or kk in tags:
            cand = [i for i, q in enumerate(tags) if q in (uk, kk) or (q in first and first[q] <= n + 3 and issued[q] <= n - 7)]
            k.wait(lg=len(tags) - 1 - max(cand))
        J = Jp + I
        d = V(ACC + 4 * J, 4)
        k(f"v_mfma_f32_16x16x32_bf16 {d}, {RG(reg[uk])}, {RG(reg[kk])}, {d if J in seen else 0}")
        seen.add(J)
        if n == 18:
            side += res_ops(0)
        if n == 122:
            side += res_ops(1)
        if layer == 0 and n == opt("pw1", -1):
            poll_load(vWF, vWF + 1, 0)
        if layer and n == opt("pcl", 0):
            apoll_load(F_CIN1[1])
        if n == XB:
            assert not side
            xblock(0, bool(opt("xpk", 1)), True)
        if layer and n == CL and CL != XS:
            apoll_check()
            k("s_barrier")
            side += conv_load_ops(1, 1, LIN)
        if n == XS:
            if layer and CL == XS:
                apoll_check()
            wait_lg("ex")
            k("s_barrier")
            run(recv_ops())
            if layer and CL == XS:
                side += conv_load_ops(1, 1, LIN)
        if n == XS + opt("xo", 5):
            run(out_ops(0, bool(opt("xpk", 1))))
        if n == FE and (FE < 104 or not (layer or DEF0)):
            k.wait_tag_vm(("cst", 0))
            k("s_barrier")
            aflag(F_X1[layer][0])
        if n == PE:
            apoll_load(F_X1[layer][0])
        if n in (0, 19, 39, 47, 55, 63, 71, 87, 103, 104, 123, 143):
            fine(f"m{n}")
        if side:
            run(side, 2 if cnt == 0 else 1)
        elif bg and n >= BG0 + step * (nbg - len(bg)) and (cnt == 0 or n >= BG0 + 2 + step * (nbg - len(bg))):
            run(bg, 1)
    assert not items and not queue and not side
    run(bg)
    stamp(13)
    PX = opt("px", 2) if PE > 143 else -1
    if PX == 0:
        apoll_load(F_X1[layer][0])
    xblock(1, True)
    bar()
    run(recv_ops())
    if PX == 1:
        apoll_load(F_X1[layer][0])
    o = out_ops(1, True)
    run(o, len(o) - 1)
    if PX == 2:
        apoll_load(F_X1[layer][0])
    run(o)
    fine("store")
    stamp(11)
    if layer == 0:
        n = min(opt("w1a", 4), 28 - NW1[0])
        k.wait_tag_vm(("w2", 27))
        tr = w2_tr_ops(0, 14)
        for i in range(n):
            w1_load()
            run(tr, len(tr) // (n - i))
        run(tr)
    apoll_check()
    bar()
    fine("pollE")
    stamp(14)

def layer_turn():
    run(k_preload())
    apoll_check()
    k("s_barrier")
    stamp(20)
    run(conv_load_ops(1, 0, WK))
    k.wait_tag_vm(("st", 1))
    k("s_barrier")
    aflag(F_CIN1[1])
    stamp(21)
    LAY[0] = 1
    if opt("pcl", 0) < 0:
        k.wait(vm=0)
        apoll_load(F_CIN1[1])
    cprep(WK, WK + 12, 0)

G2RES = WK + 100
G2R = WK + 108

def gflag(layer, half):
    k("s_mov_b64 exec, 1")
    k(f"buffer_store_dword {V(vONE)}, {V(vFL)}, {S(SRD_WS,4)}, {S(sFG)} offen offset:{1024*half} sc1")
    k("s_mov_b64 exec, -1")

def ffn(layer):
    k.c("=== GEMM1")
    FREG[0] = 1
    fine("start")
    ACC = WK
    EP = WK + 64
    vXS = WK + 80
    vB0, vB1 = WK + 81, WK + 82
    if layer:
        k(f"s_add_u32 {S(sXT)}, {S(sXT)}, {hex(XQ_SZ)}")
    k(f"v_add_u32 {V(vXS)}, {S(sXT)}, {V(vL16)}")
    k(f"s_lshl_b32 {S(sT0)}, {S(sW)}, 10")
    k(f"s_mov_b32 m0, {S(sT0)}")
    nx = [0]
    def dma():
        d = nx[0]
        nx[0] += 1
        k(f"buffer_load_dwordx4 {V(vXS)}, {S(SRD_WS,4)}, m0 offen sc1 lds", tag=("x", d))
        if d == 13:
            k(f"v_subrev_u32 {V(vXS)}, 32, {V(vXS)}")
        if d < 27:
            k(f"s_add_u32 m0, m0, {4096 + (32 if d == 13 else 0)}")
    NUP = opt("nup", 9)
    af = addr_ffn(layer)
    FXL = opt("fxl", 5)
    for st in range(NUP):
        dma()
        if st >= 1:
            run(af, 3)
        if st == FXL:
            k.wait_tag_vm(("cst", 1))
            k("s_barrier")
            aflag(F_X1[layer][1])
    af += [f"v_add_u32 {V(vB0)}, {XHALF}, {V(vXA0)}", f"v_add_u32 {V(vB1)}, {XHALF}, {V(vXA1)}"]
    if layer == 0:
        touch(1)
    SKA = opt("ska", 10)
    mf = [(0, q, ks) for ks in range(28 - SKA) for q in range(2)]
    mf += [(0, q, ks) for q in range(2) for ks in range(28 - SKA, 28)]
    SK = opt("skb", 16)
    mf += [(1, q, ks) for ks in range(28 - SK) for q in range(2)]
    mf += [(1, q, ks) for q in range(2) for ks in range(28 - SK, 28)]
    NR = 8
    LEAD = opt("g1lead", 7)
    bars = [[2, 5, 9, 14, 16, 19, 23, 28], [1, 3, 6, 9, 14, 17, 21, 28], [2, 5, 9, 14, 18, 23, 28], [2, 6, 14, 20, 28]][opt("bars", 0)]
    ready = [0]
    def rd(n):
        half, q, ks = mf[n]
        st = 14 * half + ks // 2
        if st >= ready[0]:
            nb = [b for b in bars if b > st][0]
            assert nx[0] >= nb, (n, nb, nx[0])
            k.wait_tag_vm(("x", nb - 1))
            k("s_barrier")
            if ready[0] == 0 and FXL >= NUP:
                aflag(F_X1[layer][1])
            ready[0] = nb
        va = ((vXA0, vXA1), (vB0, vB1))[half][q]
        for u in range(2):
            k(f"ds_read_b64_tr_b16 {A(AX+4*(n%NR)+2*u,2)}, {V(va)} offset:{ks*2048+u*512}")
    def epi(tile):
        ops = []
        e = EP + 8 * (tile & 1)
        for a in range(2):
            for i in range(4):
                ops.append(f"v_cvt_pk_bf16_f32 {V(e+4*a+i)}, {V(ACC+16*tile+8*a+2*i)}, {V(ACC+16*tile+8*a+2*i+1)}")
            for i in range(4):
                ops.append(f"v_pk_max_i16 {V(e+4*a+i)}, {V(e+4*a+i)}, 0")
            if a == 0:
                ops.append(f"s_add_u32 {S(sT1)}, {S(sHS)}, {tile*112*1024}")
            ops.append((f"buffer_store_dwordx4 {V(e+4*a,4)}, {V(vL16)}, {S(SRD_WS,4)}, {S(sT1)} offen offset:{1024*a} sc1", ("h", tile)))
        return ops
    F = WK
    ONE4, DS_, DQ = WK + 84, WK + 88, WK + 92
    srd_ = [f"ds_read_b64_tr_b16 {V(F+4*ks+2*u,2)}, {V(vST)} offset:{ks*4096+u*512}" for ks in range(14) for u in range(2)]
    pend = af
    nrd = 0
    for n in range(opt("lead0", LEAD)):
        rd(nrd); nrd += 1
    stamp(27)
    PXL, CXL = opt("pxl", 10), opt("cxl", 28)
    LB = opt("leadb", 4)
    for n, (half, q, ks) in enumerate(mf):
        tile = 2 * half + q
        d = V(ACC + 16 * tile, 16)
        assert NW1[0] > ks, "W1 fragment used before its load"
        k(f"v_mfma_f32_32x32x16_bf16 {d}, {V(W1R+4*ks,4)}, {A(AX+4*(n%NR),4)}, {d if ks else 0}")
        if n == 56 - SKA + 1:
            pend += epi(0)
        if n == 57:
            pend += epi(1)
        if n == 112 - SK + 1:
            pend += epi(2)
        if n == PXL:
            apoll_load(F_X1[layer][1])
        if n == CXL:
            apoll_check()
            k("s_barrier")
            stamp(28)
        slots = opt("slots", 5)
        if pend and isinstance(pend[0], tuple) and (nrd >= n + 4 or nrd == len(mf)):
            run(pend, 1)
        else:
            c = 0
            while nrd < len(mf) and nrd <= n + (LB if nrd == 56 else LEAD) and c < 2:
                rd(nrd); nrd += 1; c += 1
            slots -= 2 * c
            if nx[0] < 14 and 3 * (nx[0] - NUP) <= n:
                dma()
                slots -= opt("dcost", 0)
            elif n >= CXL and nx[0] < 28 and opt("bstep", 2) * (nx[0] - 14 - opt("bburst", 2)) <= n - CXL:
                dma()
                slots -= opt("dcost", 0)
            elif layer == 0 and n % 3 == 1 and NW1[0] < 28:
                w1_load()
            elif layer == 0 and NW1[0] == 28 and NW2[0] < opt("w2g1", 28) and n % opt("w2step", 2) == 1 and (n < CXL - opt("w2gap", 8) or nx[0] == 28):
                w2_load()
            while pend and slots > 0 and not isinstance(pend[0], tuple):
                run(pend, 1)
                slots -= 1
            if nrd == len(mf) and c == 0 and len(srd_) > 12:
                run(srd_, min(3, len(srd_) - 12))
        assert nrd > n + 1 or nrd == len(mf)
        if n % 8 == 0 or n == 111:
            fine(f"m{n}")
        if opt("g1st", 0) and n in (55, 83):
            stamp({55: 29, 83: 31}[n])
        if n == opt("pollA", 110):
            poll_load(vPL2, vF2P, S(sFG))
        if n == opt("flagA", 90):
            k.wait_tag_vm(("h", 1))
            gflag(layer, 0)
    assert not pend and nx[0] == 28 and NW1[0] == 28, (pend, nx, NW1)
    FREG[0] = 2
    fine("g1end")
    run(srd_, len(srd_) - 4)
    for i in range(4):
        k(f"v_mov_b32 {V(ONE4+i)}, {S(sONES)}")
    run(epi(3))
    fine("epi3")
    stamp(15)
    run(srd_)
    for h in range(2):
        for u in range(2):
            k(f"ds_read_b64_tr_b16 {V(G2RES+4*h+2*u,2)}, {V(vRES)} offset:{h*XHALF+u*512}")
    poll_check(vPL2, vF2P, S(sFG))
    fine("pollA")
    stamp(17)
    st = []
    for ks in range(14):
        st.append(f"v_mfma_f32_16x16x32_bf16 {V(DQ,4)}, {V(F+4*ks,4)}, {V(F+4*ks,4)}, {V(DQ,4) if ks else 0}")
        st.append(f"v_mfma_f32_16x16x32_bf16 {V(DS_,4)}, {V(ONE4,4)}, {V(F+4*ks,4)}, {V(DS_,4) if ks else 0}")
    vS, vQ, vT = DS_, ONE4, ONE4 + 1
    post = ["s_mov_b32 vcc_lo, 0x00100001", "s_mov_b32 vcc_hi, 0x10000100",
            f"v_cndmask_b32 {V(vQ)}, 0, {V(DQ)}, vcc"]
    for i in range(1, 4):
        post += ["s_lshl_b64 vcc, vcc, 1", f"v_cndmask_b32 {V(vQ)}, {V(vQ)}, {V(DQ+i)}, vcc"]
    post += [f"v_mov_b32 {V(vT)}, {V(vQ)}", f"v_mul_f32 {V(vS)}, {f2u(1.0/448)}, {V(vS)}", None,
             f"v_permlane32_swap_b32 {V(vQ)}, {V(vT)}", f"v_add_f32 {V(vQ)}, {V(vQ)}, {V(vT)}",
             f"v_mov_b32 {V(vT)}, {V(vQ)}", None, None,
             f"v_permlane16_swap_b32 {V(vQ)}, {V(vT)}", f"v_add_f32 {V(vQ)}, {V(vQ)}, {V(vT)}",
             f"v_mul_f32 {V(vQ)}, {f2u(1.0/448)}, {V(vQ)}",
             f"v_fma_f32 {V(vQ)}, -{V(vS)}, {V(vS)}, {V(vQ)}",
             f"v_max_f32 {V(vQ)}, 0, {V(vQ)}",
             f"v_add_f32 {V(vQ)}, {f2u(1e-5)}, {V(vQ)}",
             f"v_rsq_f32 {V(vQ)}, {V(vQ)}", None,
             f"v_mov_b32 {V(G2R)}, {V(vQ)}",
             f"v_mov_b32 {V(G2R+2)}, {V(vQ)}", None, None,
             f"v_mov_b32_dpp {V(G2R)}, {V(vQ)} row_ror:8 row_mask:0xf bank_mask:0xc",
             f"v_mov_b32_dpp {V(G2R+2)}, {V(vQ)} row_ror:8 row_mask:0xf bank_mask:0x3"]

    k.c("=== GEMM2")
    ring = [("a", AX + 4 * i) for i in range(8)] + [("v", WK + 64 + 4 * i) for i in range(5)]
    NR = opt("g2ring", 12)
    ring = ring[:NR]
    rn = lambda i: (V if ring[i % NR][0] == "v" else A)(ring[i % NR][1], 4)
    nl = [0]
    def ld():
        i = nl[0]
        nl[0] += 1
        half, s = divmod(i, 28)
        if s % 4 == 0:
            k(f"s_add_u32 {S(sT4)}, {S(sHL)}, {half*2*112*1024 + s*1024}")
        k(f"buffer_load_dwordx4 {rn(i)}, {V(vL16)}, {S(SRD_WS,4)}, {S(sT4)} offen offset:{1024*(s%4)} sc1")
        if layer == 0 and NW2[0] < 28:
            w2_load()
    def red_write(half):
        return [f"ds_write_b128 {V(vRW)}, {V(ACC+32*half+4*G,4)} offset:{half*RED_H+G*RED_G}" for G in range(8)]
    def red_read(half):
        return [f"ds_read_b128 {V(ACC+32*half+8*w+4*g,4)}, {V(vRR)} offset:{half*RED_H+w*RED_W+512*g}" for w in range(4) for g in range(2)]
    def unpack(half, u):
        o = []
        for i in range(4):
            o.append(f"v_lshlrev_b32 {V(u+2*i)}, 16, {V(G2RES+4*half+i)}")
            o.append(f"v_and_b32 {V(u+2*i+1)}, {S(sHIM)}, {V(G2RES+4*half+i)}")
        return o
    UR = WK + 84
    def fin(half, pre):
        a = ACC + 32 * half
        u = UR
        ops = []
        def P(d, x, y):
            if pre:
                ops.append(f"v_pk_add_f32 {V(d,2)}, {V(x,2)}, {V(y,2)}")
            else:
                ops.extend(f"v_add_f32 {V(d+h)}, {V(x+h)}, {V(y+h)}" for h in range(2))
        for i in range(4):
            P(a + 2 * i, a + 2 * i, a + 8 + 2 * i)
        for i in range(4):
            P(a + 16 + 2 * i, a + 16 + 2 * i, a + 24 + 2 * i)
        for i in range(4):
            P(a + 2 * i, a + 2 * i, a + 16 + 2 * i)
        for i in range(4):
            if pre:
                ops.append(f"v_pk_fma_f32 {V(a+2*i,2)}, {V(a+2*i,2)}, {V(G2R+2*half,2)}, {V(u+2*i,2)} op_sel_hi:[1,0,1]")
            else:
                ops.extend(f"v_fma_f32 {V(a+2*i+h)}, {V(a+2*i+h)}, {V(G2R+2*half)}, {V(u+2*i+h)}" for h in range(2))
        for i in range(4):
            ops.append(f"v_cvt_pk_bf16_f32 {V(a+24+i)}, {V(a+2*i)}, {V(a+2*i+1)}")
        if layer == 0:
            ops += quad_shuffle([(a + 28, a + 24)])
            ops.append(f"s_mov_b32 {S(sT1)}, {hex(XQ + XQ_SZ + 8192*half)}")
            if half:
                ops.append(lambda: apoll_load(F_CIN1[0]))
            ops.append((f"buffer_store_dwordx4 {V(a+28,4)}, {V(vO)}, {S(SRD_WS,4)}, {S(sT1)} offen sc1", ("st", half)))
            so = stats_ops(a + 24, 4, a, a + 1, a + 2)
            if not pre:
                so = so[10:]
                for i in range(4):
                    ops.append(f"v_lshlrev_b32 {V(a+16+2*i)}, 16, {V(a+24+i)}")
                    ops.append(f"v_and_b32 {V(a+16+2*i+1)}, {S(sHIM)}, {V(a+24+i)}")
                ops.append(f"v_add_f32 {V(a)}, {V(a+16)}, {V(a+17)}")
                ops.append(f"v_mul_f32 {V(a+1)}, {V(a+16)}, {V(a+16)}")
                for i in range(1, 8):
                    if i > 1:
                        ops.append(f"v_add_f32 {V(a)}, {V(a)}, {V(a+16+i)}")
                    ops.append(f"v_fmac_f32 {V(a+1)}, {V(a+16+i)}, {V(a+16+i)}")
            ops += so
            def at():
                k(f"s_mov_b32 {S(sT1)}, {hex(STATS[1] + 8192*half)}")
                k("s_mov_b32 exec_lo, 0xff")
                k("s_mov_b32 exec_hi, 0xff")
                k(f"buffer_atomic_add_f32 {V(a)}, {V(vAT)}, {S(SRD_WS,4)}, {S(sT1)} offen sc1", tag=("st", half))
                k("s_mov_b64 exec, -1")
            ops.append(at)
        else:
            ops.append(f"s_mov_b32 {S(sT1)}, {1024*896*half}")
            ops.append(f"buffer_store_dwordx4 {V(a+24,4)}, {V(vO)}, {S(SRD_OUT,4)}, {S(sT1)} offen" + ("", " sc1", " nt", " sc0 sc1")[opt("osc", 0) if half or opt("osc", 0) < 10 else 0])
        return ops
    NUP2 = opt("nup2", NR)
    for i in range(NUP2):
        ld()
        run(st, (len(st) + NUP2 - i - 1) // (NUP2 - i))
        if i == opt("flagB", 6):
            k.wait_tag_vm(("h", 3))
            gflag(layer, 1)
    assert not st
    fine("up2")
    stamp(16)
    PB = opt("pollB", 6)
    TL = opt("tl", 4)
    order = [(i, dt) for i in range(56 - TL) for dt in range(2)] + [(i, dt) for dt in range(2) for i in range(56 - TL, 56)]
    pend = [None] * 8 + post + unpack(0, UR)
    okB = False
    flagE = layer == 1
    RATE = opt("finrate", 5)
    for n, (i, dt) in enumerate(order):
        half, s = divmod(i, 28)
        d = V(ACC + 32 * half + 16 * dt, 16)
        assert NW2[0] + 28 > s * 2 + dt, "W2 fragment used before its load"
        k(f"v_mfma_f32_32x32x16_bf16 {d}, {A((s*2+dt)*4,4)}, {rn(i)}, {d if s else 0}")
        if dt == 1 and i < 56 - TL:
            if i == 12:
                assert not pend
                bar()
            if i + NUP2 == opt("flagB", 6):
                k.wait_tag_vm(("h", 3))
                gflag(layer, 1)
            if i == PB:
                poll_load(vPL2, vF2P, S(sFG), 1024)
            if nl[0] == 28 and not okB and i > PB and (i >= opt("chkB", 99) or not any(f"v{vPL2}" in p[0] for p in k.vm[1:])):
                poll_check(vPL2, vF2P, S(sFG), 1024)
                okB = True
            if i in (13, 27, 41):
                stamp({13: 8, 27: 23, 41: 26}[i])
            if i == opt("red0", 28):
                for o in red_write(0):
                    pend += [o] + [None] * (opt("rwg", RATE) - 1)
                pend += [bar]
                for o in red_read(0):
                    pend += [o]
                pend += [None] * RATE + fin(0, False) + unpack(1, UR)
        assert i < 56 - TL or nl[0] == 56
        if nl[0] < 56 and nl[0] - NR < i + dt and (nl[0] < 28 or okB):
            ld()
        c = 0
        while pend and c < (3 if i < 28 else RATE) and not (layer and nl[0] < 56 and "buffer_store" in str(pend[0])):
            run(pend, 1)
            c += 1
        if n == opt("flagE", 109) and layer == 0:
            assert not any("atomic" in str(o) or callable(o) for o in pend)
            k.wait_tag_vm(("st", 0))
            k("s_barrier")
            aflag(F_CIN1[0])
            flagE = True
        if n % 10 == 1:
            fine(f"m{n}")
        if n == 112 - TL - 1:
            assert not pend
            pend += ["s_nop 3"] + [None] * (RATE - 1) + ["s_nop 3"] + [None] * (RATE - 1)
            for o in red_write(1)[:4]:
                pend += [o] + [None] * (RATE - 1)
    run(pend)
    assert nl[0] == 56 and okB
    stamp(18)
    run(red_write(1)[4:])
    if not flagE:
        k.wait_tag_vm(("st", 0))
    bar()
    if not flagE:
        aflag(F_CIN1[0])
    fine("bar")
    run(red_read(1) + fin(1, True))
    fine("out")
    stamp(19)

def finish():
    if ENC >= 0:
        k.wait(vm=0)
        stamp(22)
        k(f"s_cmp_lg_u32 {S(sWG)}, 100")
        k("s_cbranch_scc1 L_end")
        k("s_sub_u32 s47, s47, s46" if ENC else "s_sub_u32 s47, s46, s98")
        k("s_mul_i32 s47, s47, 100")
        k("s_min_u32 s47, s47, 1000000")
        k(f"s_memrealtime {S(sTM,2)}")
        k.wait(lg=0)
        k(f"s_mov_b32 s46, {S(sTM)}")
        k.label("L_spin")
        k(f"s_memrealtime {S(sTM,2)}")
        k.wait(lg=0)
        k(f"s_sub_u32 {S(sT0)}, {S(sTM)}, s46")
        k(f"s_cmp_lt_u32 {S(sT0)}, s47")
        k("s_cbranch_scc1 L_spin")
    if DIAG:
        k.wait(vm=0)
        stamp(22)
        for n, (name, r) in enumerate(FINE):
            k(f"v_writelane_b32 {V(vSTAMP)}, s{r}, {20 + n}")
        if FINE:
            k.raw("; FINE " + " ".join(n for n, _ in FINE))
        k(f"s_lshl_b32 {S(sT0)}, {S(sWG)}, 10")
        k(f"s_add_u32 {S(sT0)}, {S(sT0)}, {hex(STAMP)}")
        k(f"v_lshlrev_b32 {V(WK)}, 2, {V(vTID)}")
        k(f"buffer_store_dword {V(vSTAMP)}, {V(WK)}, {S(SRD_WS,4)}, {S(sT0)} offen")
    k.label("L_end")
    k("s_endpgm")

prologue()
main_start()
kgen()
conv(0)
ffn(0)
layer_turn()
conv(1)
ffn(1)
finish()
LAY[0] = 0
helper()
body = list(k.lines)
body += [".p2align 4", ".type L_table,@object", "L_table:"]
body += [".long " + ",".join(hex(w) for w in r) for r in table_words()]
body += ["L_table_end:"]

ref = open("cdna_kernels/%s.s.ref" % NAME).read().splitlines()
hdr = [l for l in ref if l.startswith(";") and "@launch" not in l]
head = f""".amdgcn_target "amdgcn-amd-amdhsa--gfx950"
.text
.globl {NAME}_kernel
.p2align 8
.type {NAME}_kernel,@function
{NAME}_kernel:
"""
if opt("align", 1):
    body = align(body, head, stubs=stub_targets())
out = "\n".join(hdr) + f"\n; @launch grid=(256,1,1) block=(256,1,1) lds={LDS_BYTES}\n"
out += head + "\n".join(body) + "\n"
out += f""".section .rodata,"a"
.p2align 6
.amdhsa_kernel {NAME}_kernel
  .amdhsa_next_free_vgpr 512
  .amdhsa_next_free_sgpr 102
  .amdhsa_accum_offset 256
  .amdhsa_group_segment_fixed_size 0
  .amdhsa_kernarg_size 120
  .amdhsa_user_sgpr_count 2
  .amdhsa_user_sgpr_kernarg_segment_ptr 1
  .amdhsa_system_sgpr_workgroup_id_x 1
.end_amdhsa_kernel
"""
dst = [a for a in sys.argv[1:] if not a.startswith("--")]
dst = dst[0] if dst else "cdna_kernels/%s.s" % NAME
open(dst, "w").write(out)
print("instructions:", k.nins, "->", dst)
```

```python
import sys, struct
from emit import Asm, V, A, S
from align import align

NAME = "interleave_layers__ssm_conv_s4__dense_activation_relu__prompt"
DIAG = "--diag" in sys.argv
OPT = {"pe.0": 142, "pxl.0": 18, "cxl.0": 36, "pxl.1": 13, "cxl.1": 31, "pollB.0": 9}
for a in sys.argv:
    if a.startswith("--") and "=" in a:
        n, v = a[2:].split("=")
        OPT[n] = int(v)
LAY = [0]
def opt(n, d):
    return OPT.get(f"{n}.{LAY[0]}", OPT.get(n, d))

def f2u(x):
    return "0x%08x" % struct.unpack("<I", struct.pack("<f", x))[0]

GL, AL = opt("gl", 5), opt("al", 0)
FA = (lambda n: 0x8000 + 4 * n if n else 0) if AL else (lambda n: n * 0x8000)
F_CIN0, F_X1, F_CIN1 = 0, ((1, 2), (5, 6)), (3, 4)
FLG_G = 0x8000 + (2048 << AL if AL else 0x30000)
ZEND = FLG_G + (1024 << GL if GL else 0x10000) + 0x8000
STATS = (0x1804000, ZEND - 0x8000)
XQ = 0x1820000
XQ_SZ = 0x1C0000
X1T = 0x3E0000
HB = 0x760000
H_SZ = 0x700000
W1C = 0x1560000
FLG_W = ZEND - 0x4000
STAMP = 0x1700000
W2T = 0x1740000
WS_BYTES = 0x1BA0000

XHALF = 57344 + 32
SCR = 114816
SCR_ST = 8960
KC0 = 4608
ROW_ST = 544
UARR = SCR + 4 * SCR_ST
U_ST = 4576
LDS_BYTES = 163840
WREG = 28672
RED_G = 1152
RED_W = 8 * RED_G
RED_H = 4 * RED_W

sWG, sW = 2, 3
SRD_WS, SRD_OUT, SRD_W1, SRD_W2, SRD_X0, SRD_DBG = 4, 8, 12, 16, 20, 24
sCP, sGAM, sJ, sHH, sDS, sROT = 58, 59, 60, 61, 62, 63
sONES, sHIM = 64, 65
sT0, sT1, sT2, sT3, sT4, sT5 = 66, 67, 68, 69, 70, 71
sLDT, sDSK = 72, 73
sREP, sXQi, sW2B, sXT, sHL, sHS, sFG = 74, 75, 76, 77, 78, 79, 80
sSPIN = 81
sC0, sC1 = 82, 83
sPC = 84
sTM = 86
sWL = 88
sW2O = 89
sSCR, sSCH = 90, 95
sPERM0, sPERM1 = 91, 92
sNH, sCH = 93, 94
sXS = 100
sLDT2 = 99
sKO = 28
sW2L, sPA = 96, 97

vTID, vL, vL16 = 0, 1, 2
vCX, vUW, vXW = 3, 4, 5
vKF = 6
vUF, vXR, vCO, vEXW, vEXR = 10, 11, 12, 13, 14
vFW, vFP, vONE, vSTAMP, vPA = 15, 16, 17, 18, 19
vXA0, vXA1, vST, vRES, vRW, vRR, vO, vAT, vF2P, vFL, vHL, vPL2 = range(20, 32)
vW2S, vW2R, vWF, vDUM = 20, 21, 23, 26
LIN = 20
WK = 32
W1R = 144
AX = 224

k = Asm()
SPIN_MAX = 1 << 16

ENC = opt("enc", -1)
def stamp(idx, cyc=False):
    if ENC >= 0 and not cyc and idx + 32 * LAY[0] in (0, ENC):
        k.wait(lg=0)
        k(f"s_memrealtime {S(sTM,2)}")
        k.wait(lg=0)
        k(f"s_mov_b32 {S(46 if idx + 32*LAY[0] == 0 else 47)}, {S(sTM)}")
    if not DIAG:
        return
    if opt("lite", 0) and idx + 32 * LAY[0] not in (0, 9, 14, 19, 46, 54):
        return
    k.wait(lg=0)
    k(f"{'s_memtime' if cyc != bool(opt('cyc', 0)) else 's_memrealtime'} {S(sTM,2)}")
    k.wait(lg=0)
    k(f"v_writelane_b32 {V(vSTAMP)}, {S(sTM)}, {idx + 32*LAY[0]}")

FINE = []
def fine(name):
    if not DIAG or opt("fine", 0) != FREG[0] or opt("finel", 1) != LAY[0]:
        return
    regs = list(range(28, 46, 2)) + [12, 14, 20, 22, 48, 50, 54, 56] + ([] if FREG[0] == 4 else [24, 26])
    r = regs[len(FINE)]
    FINE.append((name, r))
    k.raw(f"    s_memtime s[{r}:{r+1}]")
FREG = [0]

def srd(base, ptr, nbytes):
    k(f"s_mov_b32 {S(base)}, {S(ptr)}")
    k(f"s_and_b32 {S(base+1)}, {S(ptr+1)}, 0xffff")
    k(f"s_mov_b32 {S(base+2)}, {hex(nbytes)}")
    k(f"s_mov_b32 {S(base+3)}, 0x20000")

_lab = [0]
def newlab(p):
    _lab[0] += 1
    return f"L_{p}_{_lab[0]}"

def branch(op, lab):
    k.fence(1)
    k(f"{op} {lab}")

def label(lab):
    k.fence()
    k.label(lab)

def poll_load(vtmp, vaddr, soff, off=0, srdn=SRD_WS):
    k(f"buffer_load_dword {V(vtmp)}, {V(vaddr)}, {S(srdn,4)}, {soff} offen offset:{off} sc1")

SLOW = []
SITES = []
def poll_check(vtmp, vaddr, soff, off=0, srdn=SRD_WS):
    sl, lp, ok = newlab("slow"), newlab("poll"), newlab("ok")
    k(f"v_cmp_eq_u32 vcc, 0, {V(vtmp)}")
    k(f"s_cbranch_vccnz {sl}")
    k.label(ok)
    import inspect
    SITES.append(inspect.stack()[2 if inspect.stack()[1].function == "apoll_check" else 1].function + str(LAY[0]))
    slp = opt("sl_" + SITES[-1], opt("sleep", 2))
    SLOW.extend([f"{sl}:"] + ([f"    s_bitset1_b32 s101, {len(SITES)-1}"] if DIAG else []) +
                [f"    s_mov_b32 {S(sSPIN)}, 0",
                 f"{lp}:"] +
                ([f"    s_sleep {slp}"] if slp else []) +
                [f"    buffer_load_dword {V(vtmp)}, {V(vaddr)}, {S(srdn,4)}, {soff} offen offset:{off} sc1",
                 f"    s_add_u32 {S(sSPIN)}, {S(sSPIN)}, 1",
                 "    s_waitcnt vmcnt(0)",
                 f"    v_cmp_eq_u32 vcc, 0, {V(vtmp)}",
                 f"    s_cmp_gt_u32 {S(sSPIN)}, {SPIN_MAX}",
                 f"    s_cbranch_scc1 {ok}",
                 f"    s_cbranch_vccnz {lp}",
                 f"    s_branch {ok}"])

def run(ops, n=None):
    c = 0
    while ops and (n is None or c < n):
        o = ops.pop(0)
        if callable(o):
            o()
        elif isinstance(o, tuple):
            k(o[0], tag=o[1])
        elif o is not None:
            k(o)
        c += 1

def stats_ops(P, n, vS, vQ, vT):
    o = [f"v_mov_b32 {V(vS)}, 0", f"v_mov_b32 {V(vQ)}, 0"]
    for i in range(n):
        o.append(f"v_dot2c_f32_bf16 {V(vS)}, {S(sONES)}, {V(P+i)}")
        o.append(f"v_dot2c_f32_bf16 {V(vQ)}, {V(P+i)}, {V(P+i)}")
    o += [f"v_permlane32_swap_b32 {V(vS)}, {V(vQ)}",
          f"v_add_f32 {V(vS)}, {V(vS)}, {V(vQ)}",
          f"v_mov_b32 {V(vT)}, {V(vS)}",
          f"v_permlane16_swap_b32 {V(vS)}, {V(vT)}",
          f"v_add_f32 {V(vS)}, {V(vS)}, {V(vT)}",
          f"v_add_f32_dpp {V(vS)}, {V(vS)}, {V(vS)} row_ror:8 row_mask:0xf bank_mask:0xf",
          f"v_lshrrev_b32 {V(vT)}, 1, {V(vS)}",
          f"v_add_u32 {V(vQ)}, {hex(8 << 23)}, {V(vS)}",
          f"v_add_u32 {V(vT)}, {hex(0x1FC00000 + (13 << 23))}, {V(vT)}",
          f"v_permlane32_swap_b32 {V(vT)}, {V(vQ)}",
          f"v_and_b32 {V(vQ)}, 0x7f800000, {V(vQ)}",
          f"v_mul_f32 {V(vQ)}, 0x3fc00000, {V(vQ)}",
          f"v_add_f32 {V(vS)}, {V(vS)}, {V(vQ)}",
          f"v_sub_f32 {V(vS)}, {V(vS)}, {V(vQ)}"]
    return o

def quad_shuffle(pairs):
    D = " row_mask:0xf bank_mask:0xf"
    o = ["s_mov_b32 vcc_lo, 0x0f0f0f0f", "s_mov_b32 vcc_hi, 0x0f0f0f0f"]
    for d, s in pairs:
        o.append(f"v_cndmask_b32_dpp {V(d)}, {V(s+2)}, {V(s)}, vcc row_ror:4" + D)
        o.append(f"v_cndmask_b32_dpp {V(d+2)}, {V(s+3)}, {V(s+1)}, vcc row_ror:4" + D)
    o.append("s_not_b64 vcc, vcc")
    for d, s in pairs:
        o.append(f"v_cndmask_b32_dpp {V(d+1)}, {V(s)}, {V(s+2)}, vcc row_ror:12" + D)
        o.append(f"v_cndmask_b32_dpp {V(d+3)}, {V(s+1)}, {V(s+3)}, vcc row_ror:12" + D)
    return o

X0R = WK
X0O = WK + 8
vP0A = WK + 16
vP0S = WK + 20
vGO = WK + 28

def p0x_addr():
    k.c("row re-layout unit of this wave: W = 4m+w, octet group a = W%7, rows (blk, j2) = W/7, both hh8")
    t = vP0A
    k(f"s_sub_u32 {S(sT0)}, {S(sWG)}, 32")
    k(f"s_lshl2_add_u32 {S(sT0)}, {S(sT0)}, {S(sW)}")
    k(f"s_mul_i32 {S(sT1)}, {S(sT0)}, 9363")
    k(f"s_lshr_b32 {S(sT1)}, {S(sT1)}, 16")
    k(f"s_mul_i32 {S(sT2)}, {S(sT1)}, 7")
    k(f"s_sub_u32 {S(sT0)}, {S(sT0)}, {S(sT2)}")
    k(f"s_lshr_b32 {S(sT2)}, {S(sT1)}, 2")
    k(f"s_lshl_b32 {S(sT2)}, {S(sT2)}, 6")
    k(f"s_and_b32 {S(sT3)}, {S(sT1)}, 3")
    k(f"s_lshl1_add_u32 {S(sT2)}, {S(sT3)}, {S(sT2)}")
    k(f"v_and_b32 {V(t+1)}, 0x30, {V(vL16)}")
    k(f"v_bfe_u32 {V(t)}, {V(vL)}, 2, 1")
    k(f"v_add3_u32 {V(t+3)}, {V(t+1)}, {V(t)}, {S(sT2)}")
    k(f"v_mul_u32_u24 {V(t+3)}, 896, {V(t+3)}")
    k(f"v_lshrrev_b32 {V(t+2)}, 3, {V(vL)}")
    k(f"v_lshl_add_u32 {V(t+3)}, {V(t+2)}, 4, {V(t+3)}")
    k(f"s_lshl_b32 {S(sT2)}, {S(sT0)}, 7")
    k(f"v_add_u32 {V(t+3)}, {S(sT2)}, {V(t+3)}")
    k(f"v_lshl_add_u32 {V(t)}, {V(t)}, 2, {V(t+1)}")
    k(f"v_lshrrev_b32 {V(t+2)}, 5, {V(vL)}")
    k(f"v_lshl_add_u32 {V(t)}, {V(t+2)}, 3, {V(t)}")
    k(f"s_lshl_b32 {S(sT2)}, {S(sT1)}, 7")
    k(f"v_add_u32 {V(t)}, {S(sT2)}, {V(t)}")
    k(f"v_lshrrev_b32 {V(t+2)}, 2, {V(vL)}")
    k(f"v_lshl_add_u32 {V(t+1)}, {V(t+2)}, 14, {V(t+1)}")
    k(f"s_lshl_b32 {S(sT0)}, {S(sT0)}, 18")
    k(f"s_lshl_b32 {S(sT1)}, {S(sT1)}, 7")
    k(f"s_add_u32 {S(sT0)}, {S(sT0)}, {S(sT1)}")
    k(f"v_add_u32 {V(t+1)}, {S(sT0)}, {V(t+1)}")

def p0x_loads():
    k(f"s_movk_i32 {S(sT0)}, {8*896}")
    k(f"buffer_load_dwordx4 {V(X0R,4)}, {V(vP0A+3)}, {S(SRD_X0,4)}, 0 offen")
    k(f"buffer_load_dwordx4 {V(X0R+4,4)}, {V(vP0A+3)}, {S(SRD_X0,4)}, {S(sT0)} offen")

def p0x_body():
    t = vP0A
    if opt("goearly", 0):
        k.wait(vm=len(k.vm) - 2)
        poll_load(vGO, vGO + 3, 0, 0, SRD_DBG)
    run(quad_shuffle([(X0O + 4 * a, X0R + 4 * a) for a in range(2)]))
    k(f"s_mov_b32 {S(sT0)}, {hex(XQ)}")
    for a in range(2):
        k(f"buffer_store_dwordx4 {V(X0O+4*a,4)}, {V(t+1)}, {S(SRD_WS,4)}, {S(sT0)} offen offset:{64*a} sc1")
    s0 = stats_ops(X0R, 4, vP0S, vP0S + 1, vP0S + 2)
    s1 = stats_ops(X0R + 4, 4, vP0S + 4, vP0S + 5, vP0S + 6)
    while s0:
        run(s0, 1)
        run(s1, 1)

def p0x_atomics():
    poll_check(vGO, vGO + 3, 0, 0, SRD_DBG)
    k(f"s_mov_b32 {S(sT0)}, {hex(STATS[0])}")
    k("s_mov_b32 exec_lo, 0xff")
    k("s_mov_b32 exec_hi, 0xff")
    for a in range(2):
        k(f"buffer_atomic_add_f32 {V(vP0S+4*a)}, {V(vP0A)}, {S(SRD_WS,4)}, {S(sT0)} offen offset:{64*a} sc1", tag="st")
    k("s_mov_b64 exec, -1")
    poll_load(vGO, vGO + 2, 0, 128, SRD_DBG)

def flag_all(off):
    k(f"s_mov_b32 {S(sT0)}, {hex(off)}")
    k(f"s_mov_b64 exec, 3")
    k(f"buffer_store_dword {V(vONE)}, {V(vFW)}, {S(SRD_WS,4)}, {S(sT0)} offen sc1")
    k(f"s_mov_b64 exec, -1")

ND = [0]
def w2_dma():
    d = ND[0]
    ND[0] += 1
    if opt("abl", 0) & 2:
        return
    if opt("rot", 1):
        if d == 0:
            k(f"s_and_b32 {S(sROT)}, {S(sWG)}, 7")
            k(f"s_min_u32 {S(sROT)}, {S(sROT)}, 6")
            k(f"s_mul_i32 {S(sXS)}, {S(sW)}, {WREG}")
        elif d % 4 == 0:
            k(f"s_add_u32 {S(sROT)}, {S(sROT)}, 1")
            k(f"s_cmp_eq_u32 {S(sROT)}, 7")
            k(f"s_cselect_b32 {S(sROT)}, 0, {S(sROT)}")
        if d % 4 == 0:
            k(f"s_lshl_b32 {S(sT4)}, {S(sROT)}, 12")
            k(f"s_add_u32 m0, {S(sT4)}, {S(sXS)}")
            k(f"s_mul_i32 {S(sW2O)}, {S(sT4)}, 7")
            k(f"s_add_u32 {S(sW2O)}, {S(sW2O)}, {S(sW2B)}")
        else:
            k(f"s_add_u32 {S(sW2O)}, {S(sW2O)}, {7168 - 1024}")
        k(f"buffer_load_dwordx4 {V(vW2S)}, {S(SRD_W2,4)}, {S(sW2O)} offen offset:{1024*(d%4)} lds", tag=("w2", d))
        return
    if d == 0:
        k(f"s_mul_i32 {S(sT4)}, {S(sW)}, {WREG}")
        k(f"s_mov_b32 m0, {S(sT4)}")
    elif d % 4 == 0:
        k(f"s_add_u32 m0, m0, 4096")
    if d:
        k(f"s_add_u32 {S(sW2B)}, {S(sW2B)}, {7168 - 1024 + (4096 if d % 4 == 0 else 0)}")
    k(f"buffer_load_dwordx4 {V(vW2S)}, {S(SRD_W2,4)}, {S(sW2B)} offen offset:{1024*(d%4)} lds", tag=("w2", d))

NW2 = [0]
def w2_load():
    n = NW2[0]
    NW2[0] += 1
    if opt("abl", 0) & 4:
        return
    k(f"buffer_load_dwordx4 {A(112+4*n,4)}, {V(vL16)}, {S(SRD_WS,4)}, {S(sW2L)} offen offset:{1024*(n%4)} sc1")
    if n % 4 == 3:
        k(f"s_add_u32 {S(sW2L)}, {S(sW2L)}, 4096")

def w2_tr_ops(lo, hi):
    return [f"ds_read_b64_tr_b16 {A((s*2+dt)*4+2*u,2)}, {V(vW2R+dt)} offset:{(s%14)*2048+u*1024}"
            for s in range(lo, hi) for dt in range(2) for u in range(2)]

NW1 = [0]
def w1_load():
    ks = NW1[0]
    NW1[0] += 1
    if opt("abl", 0) & 1:
        return
    k(f"buffer_load_dwordx4 {V(W1R+4*ks,4)}, {V(vL16)}, {S(SRD_WS,4)}, {S(sWL)} offen offset:{1024*(ks%4)} sc1")
    if ks % 4 == 3:
        k(f"s_add_u32 {S(sWL)}, {S(sWL)}, 4096")

def prologue():
    k(f"s_getpc_b64 {S(sPC,2)}")
    k.label("L_pc")
    k(f"s_cmp_ge_u32 {S(sWG)}, 256")
    k("s_cbranch_scc1 L_end")
    k("s_load_dwordx16 s[28:43], s[0:1], 0")
    k("s_load_dwordx8 s[44:51], s[0:1], 64")
    k("s_load_dwordx4 s[52:55], s[0:1], 96")
    k("s_load_dwordx2 s[56:57], s[0:1], 112")
    k.c("wave 0 of helpers 8..31 pulls a third of the code into L2")
    k(f"s_sub_u32 {S(sT0)}, {S(sWG)}, 8")
    k(f"s_cmp_ge_u32 {S(sT0)}, 24")
    k("s_cbranch_scc1 L_nopf")
    k(f"v_cmp_gt_u32 vcc, 64, {V(vTID)}")
    k(f"s_lshr_b32 {S(sT0)}, {S(sT0)}, 3")
    k(f"s_lshl_b32 {S(sT0)}, {S(sT0)}, 7")
    k(f"v_mul_u32_u24 {V(vL16)}, 384, {V(vTID)}")
    k(f"v_add_u32 {V(vL16)}, {S(sT0)}, {V(vL16)}")
    k("s_cbranch_vccz L_nopf")
    for q in range(2):
        k(f"v_min_u32 {V(vL16)}, L_table_end-L_pc-4, {V(vL16)}")
        k(f"global_load_dword {V(vDUM)}, {V(vL16)}, {S(sPC,2)}")
        k.vm = []
        if q == 0:
            k(f"v_add_u32 {V(vL16)}, {64*384}, {V(vL16)}")
    k.label("L_nopf")
    k(f"v_lshrrev_b32 {V(vONE)}, 6, {V(vTID)}")
    k(f"v_and_b32 {V(vL)}, 63, {V(vTID)}")
    k(f"v_readfirstlane_b32 {S(sW)}, {V(vONE)}")
    k(f"v_lshlrev_b32 {V(vL16)}, 4, {V(vL)}")
    k(f"v_mov_b32 {V(vONE)}, 1")
    if DIAG:
        k(f"v_mov_b32 {V(vSTAMP)}, 0")
        k("s_mov_b32 s101, 0")
    k(f"s_mov_b32 {S(sONES)}, 0x3f803f80")
    k(f"s_mov_b32 {S(sHIM)}, 0xffff0000")
    k(f"s_sub_u32 {S(sT0)}, {S(sWG)}, 32")
    k(f"s_and_b32 {S(sT1)}, {S(sT0)}, 7")
    k(f"s_lshr_b32 {S(sT0)}, {S(sT0)}, 3")
    k(f"s_mul_i32 {S(sCP)}, {S(sT1)}, 28")
    k(f"s_add_u32 {S(sCP)}, {S(sCP)}, {S(sT0)}")
    k(f"s_cmp_ge_u32 {S(sT0)}, 14")
    k(f"s_cselect_b32 {S(sT2)}, 1, 0")
    k(f"s_cselect_b32 {S(sT3)}, 14, 0")
    k(f"s_lshl_b32 {S(sGAM)}, {S(sT1)}, 1")
    k(f"s_add_u32 {S(sGAM)}, {S(sGAM)}, {S(sT2)}")
    k(f"s_sub_u32 {S(sJ)}, {S(sT0)}, {S(sT3)}")
    k(f"s_and_b32 {S(sHH)}, {S(sJ)}, 1")
    k(f"s_lshr_b32 {S(sDS)}, {S(sJ)}, 1")
    k(f"s_and_b32 {S(sNH)}, {S(sW)}, 1")
    k(f"s_lshr_b32 {S(sCH)}, {S(sW)}, 1")
    k(f"s_lshl_b32 {S(sREP)}, {S(sT1)}, 12")
    k(f"s_lshl_b32 {S(sT0)}, {S(sW)}, 13")
    k(f"s_lshl4_add_u32 {S(sT0)}, {S(sWG)}, {S(sT0)}")
    k(f"v_lshl_add_u32 {V(vFW)}, {V(vL)}, 12, {S(sT0)}")
    p0x_addr()
    k(f"v_and_b32 {V(vGO+1)}, 12, {V(vL)}")
    k(f"v_and_b32 {V(vGO+2)}, 4, {V(vL)}")
    k(f"v_mov_b32 {V(vGO+3)}, 0")
    k(f"s_lshl_b32 {S(sT0)}, {S(sCP)}, 10")
    k(f"v_lshl_add_u32 {V(PRM+6)}, {V(vTID)}, 2, {S(sT0)}")
    k.wait(lg=0)
    srd(SRD_X0, 28, 2048 * 896)
    srd(SRD_WS, 56, WS_BYTES)
    srd(SRD_DBG, 54, 256)
    stamp(0)
    if DIAG:
        pass
    k(f"s_cmp_ge_u32 {S(sWG)}, 32")
    branch("s_cbranch_scc1", "L_main")
    z = HZ
    for i in range(4):
        k(f"v_mov_b32 {V(z+i)}, 0")
    k(f"s_lshl_b32 {S(sT5)}, {S(sWG)}, 7")
    k(f"s_add_u32 {S(sT5)}, {S(sT5)}, {hex(FLG_W)}")
    l1, l2 = newlab("h1"), newlab("h2")
    k(f"s_cmp_lt_u32 {S(sWG)}, 28")
    branch("s_cbranch_scc1", l1)
    k(f"s_sub_u32 {S(sT2)}, {S(sWG)}, 28")
    k(f"s_lshl2_add_u32 {S(sT0)}, {S(sT2)}, {S(sW)}")
    k(f"s_mul_i32 {S(sT0)}, {S(sT0)}, {(ZEND - 0x8000) // 16}")
    k(f"s_add_u32 {S(sT0)}, {S(sT0)}, 0x8000")
    k(f"s_add_u32 {S(sT1)}, {S(sT0)}, {(ZEND - 0x8000) // 16}")
    lz = newlab("z")
    label(lz)
    for i in range(2):
        k(f"buffer_store_dwordx4 {V(z,4)}, {V(vL16)}, {S(SRD_WS,4)}, {S(sT0)} offen offset:{1024*i} sc1")
    k(f"s_add_u32 {S(sT0)}, {S(sT0)}, 2048")
    k(f"s_cmp_lt_u32 {S(sT0)}, {S(sT1)}")
    k(f"s_cbranch_scc1 {lz}")
    k(f"s_lshl_b32 {S(sT0)}, {S(sT2)}, 2")
    k.wait(vm=0)
    k("s_barrier")
    k(f"s_cmp_lg_u32 {S(sW)}, 1")
    branch("s_cbranch_scc1", "L_end")
    k("s_mov_b64 exec, 1")
    k(f"buffer_store_dword {V(vONE)}, {V(z)}, {S(SRD_DBG,4)}, {S(sT0)} offen offset:192 sc1")
    k("s_endpgm")
    label(l1)
    k.forget()
    k(f"s_cmp_gt_u32 {S(sWG)}, 2")
    branch("s_cbranch_scc1", "L_helper")
    k(f"s_lshl2_add_u32 {S(sT0)}, {S(sWG)}, {S(sW)}")
    k(f"s_lshl_b32 {S(sT0)}, {S(sT0)}, 12")
    k(f"s_cmp_eq_u32 {S(sWG)}, 0")
    k(f"s_cselect_b32 {S(sT1)}, {hex(STATS[0] + 0x4000)}, 0")
    k(f"s_cselect_b32 {S(sT2)}, 0, 124")
    k(f"s_add_u32 {S(sT0)}, {S(sT0)}, {S(sT1)}")
    k(f"s_sub_u32 {S(sT0)}, {S(sT0)}, 0x4000")
    for i in range(4):
        k(f"buffer_store_dwordx4 {V(z,4)}, {V(vL16)}, {S(SRD_WS,4)}, {S(sT0)} offen offset:{1024*i} sc1")
    k(f"s_lshl2_add_u32 {S(sT0)}, {S(sWG)}, {S(sT2)}")
    stamp(4)
    k.wait(vm=0)
    k("s_barrier")
    stamp(5)
    k(f"s_cmp_lg_u32 {S(sW)}, 2")
    branch("s_cbranch_scc1", "L_helper")
    k("s_mov_b64 exec, 1")
    k(f"buffer_store_dword {V(vONE)}, {V(z)}, {S(SRD_DBG,4)}, {S(sT0)} offen sc1")
    k("s_mov_b64 exec, -1")
    branch("s_branch", "L_helper")
    label("L_main")
    k.forget()

def w2_lane_src(d, pitch, t0, t1):
    k(f"v_lshrrev_b32 {V(t0)}, 3, {V(vL)}")
    k(f"v_mul_u32_u24 {V(d)}, {pitch}, {V(t0)}")
    k(f"v_and_b32 {V(t0)}, 7, {V(vL)}")
    k(f"v_bfe_u32 {V(t1)}, {V(vL)}, 4, 1")
    k(f"v_lshlrev_b32 {V(t1)}, 2, {V(t1)}")
    k(f"v_xor_b32 {V(t0)}, {V(t0)}, {V(t1)}")
    k(f"v_lshl_add_u32 {V(d)}, {V(t0)}, 4, {V(d)}")

HZ = WK + 64
def helper():
    label("L_helper")
    k.forget()
    srd(SRD_W1, 48, 448 * 3584)
    srd(SRD_W2, 50, 1792 * 896)
    z = HZ
    F = WK + 112
    G = WK + 168
    t, a1, a2, aE, aO = z + 8, z + 10, z + 11, z + 12, z + 13
    IMG2 = 57344
    w2_lane_src(a1, 3584, t, t + 1)
    w2_lane_src(a2, 896, t, t + 1)
    if opt("abl", 0) & 32:
        k("s_endpgm")
    if opt("hdelay", 0):
        k(f"s_sleep {opt('hdelay', 0)}")
    k(f"s_mul_i32 {S(sT0)}, {S(sW)}, {112*3584}")
    k(f"s_lshl_b32 {S(sT1)}, {S(sWG)}, 7")
    k(f"s_add_u32 {S(sT0)}, {S(sT0)}, {S(sT1)}")
    k(f"s_mul_i32 {S(sT3)}, {S(sW)}, 14336")
    k(f"s_mov_b32 m0, {S(sT3)}")
    for c in range(14):
        k(f"buffer_load_dwordx4 {V(a1)}, {S(SRD_W1,4)}, {S(sT0)} offen lds", tag="w1")
        k(f"s_add_u32 m0, m0, 1024")
        k(f"s_add_u32 {S(sT0)}, {S(sT0)}, {8*3584}")
    k(f"v_bfe_u32 {V(t+1)}, {V(vL)}, 2, 2")
    k(f"v_lshlrev_b32 {V(t)}, 7, {V(t+1)}")
    k(f"v_bfe_u32 {V(t+1)}, {V(vL)}, 3, 1")
    k(f"v_lshl_add_u32 {V(t)}, {V(t+1)}, 6, {V(t)}")
    k(f"v_bfe_u32 {V(t+1)}, {V(vL)}, 4, 1")
    k(f"v_lshl_add_u32 {V(t)}, {V(t+1)}, 5, {V(t)}")
    k(f"v_and_b32 {V(t+1)}, 3, {V(vL)}")
    k(f"v_lshl_add_u32 {V(t)}, {V(t+1)}, 3, {V(t)}")
    k(f"v_lshrrev_b32 {V(t+1)}, 5, {V(vL)}")
    k(f"v_lshl_add_u32 {V(a1)}, {V(t+1)}, 10, {V(t)}")
    k(f"v_lshl_add_u32 {V(aE)}, {V(t+1)}, 9, {V(t)}")
    k(f"s_lshl_b32 {S(sT0)}, {S(sCH)}, 6")
    k(f"v_xor_b32 {V(a1)}, {S(sT0)}, {V(a1)}")
    k(f"s_mul_i32 {S(sT0)}, {S(sNH)}, 28672")
    k(f"v_add_u32 {V(a1)}, {S(sT0)}, {V(a1)}")
    k(f"s_lshl_b32 {S(sT0)}, {S(sNH)}, 6")
    k(f"v_xor_b32 {V(aE)}, {S(sT0)}, {V(aE)}")
    k(f"v_xor_b32 {V(aO)}, 64, {V(aE)}")
    k(f"s_mul_i32 {S(sT1)}, {S(sW)}, 7")
    k(f"s_lshr_b32 {S(sT0)}, {S(sT1)}, 1")
    k(f"s_lshl_b32 {S(sT0)}, {S(sT0)}, 11")
    k(f"s_add_u32 {S(sT0)}, {S(sT0)}, {IMG2}")
    k(f"v_add_u32 {V(aE)}, {S(sT0)}, {V(aE)}")
    k(f"s_add_u32 {S(sT0)}, {S(sT1)}, 1")
    k(f"s_lshr_b32 {S(sT0)}, {S(sT0)}, 1")
    k(f"s_lshl_b32 {S(sT0)}, {S(sT0)}, 11")
    k(f"s_add_u32 {S(sT0)}, {S(sT0)}, {IMG2}")
    k(f"v_add_u32 {V(aO)}, {S(sT0)}, {V(aO)}")
    k.wait(vm=0)
    k("s_barrier")
    stamp(3)
    for ks in range(14):
        for u in range(2):
            k(f"ds_read_b64_tr_b16 {V(F+4*ks+2*u,2)}, {V(a1)} offset:{ks*2048+u*512}")
    k(f"s_and_b32 {S(sHL)}, {S(sWG)}, 3")
    k(f"s_lshl3_add_u32 {S(sHL)}, {S(sHL)}, {S(sW)}")
    k(f"s_add_u32 {S(sHL)}, {S(sHL)}, 4")
    k(f"s_mul_i32 {S(sHL)}, {S(sHL)}, {56*896}")
    k(f"s_lshr_b32 {S(sHS)}, {S(sWG)}, 2")
    k(f"s_lshl_b32 {S(sHS)}, {S(sHS)}, 7")
    k(f"s_add_u32 {S(sHL)}, {S(sHL)}, {S(sHS)}")
    k(f"s_mul_i32 {S(sT3)}, {S(sW)}, 7168")
    k(f"s_add_u32 m0, {S(sT3)}, {IMG2}")
    for _ in range(7):
        k(f"buffer_load_dwordx4 {V(a2)}, {S(SRD_W2,4)}, {S(sHL)} offen lds", tag="w2")
        k(f"s_add_u32 m0, m0, 1024")
        k(f"s_add_u32 {S(sHL)}, {S(sHL)}, {8*896}")
    c, u_ = z, z + 2
    for i in range(56):
        k(f"v_dot2c_f32_bf16 {V(c)}, {S(sONES)}, {V(F+i)}")
    k(f"v_mov_b32 {V(u_)}, {V(c)}")
    k(f"v_permlane32_swap_b32 {V(c)}, {V(u_)}")
    k(f"v_add_f32 {V(c)}, {V(c)}, {V(u_)}")
    k(f"v_lshlrev_b32 {V(t)}, 2, {V(vTID)}")
    k(f"v_add_u32 {V(t)}, 0x18000, {V(t)}")
    k(f"ds_write_b32 {V(t)}, {V(c)}")
    k(f"v_xor_b32 {V(t)}, 256, {V(t)}")
    k.wait(lg=0)
    k("s_barrier")
    k(f"ds_read_b32 {V(u_)}, {V(t)}")
    k(f"s_lshl2_add_u32 {S(sT1)}, {S(sWG)}, {S(sW)}")
    k(f"s_mul_i32 {S(sT0)}, {S(sT1)}, 14336")
    k(f"s_add_u32 {S(sT0)}, {S(sT0)}, {hex(W1C)}")
    k(f"s_mul_i32 {S(sT1)}, {S(sT1)}, 7168")
    k(f"s_add_u32 {S(sT1)}, {S(sT1)}, {hex(W2T)}")
    k(f"v_add_f32 {V(c)}, {V(c)}, {V(u_)}")
    k(f"v_mul_f32 {V(c)}, {f2u(-1.0/448)}, {V(c)}")
    stamp(2)
    for i in range(56):
        tt = z + 4 + 2 * (i & 1)
        k(f"v_lshlrev_b32 {V(tt)}, 16, {V(F+i)}")
        k(f"v_and_b32 {V(tt+1)}, {S(sHIM)}, {V(F+i)}")
        pk("add", V(tt, 2), V(tt, 2), V(c, 2), bc=(1,))
        k(f"v_cvt_pk_bf16_f32 {V(F+i)}, {V(tt)}, {V(tt+1)}")
        if i % 4 == 3:
            ks = i // 4
            k(f"buffer_store_dwordx4 {V(F+4*ks,4)}, {V(vL16)}, {S(SRD_WS,4)}, {S(sT0)} offen offset:{1024*(ks%4)} sc1", tag="c")
            if ks % 4 == 3:
                k(f"s_add_u32 {S(sT0)}, {S(sT0)}, 4096")
    poll_load(vGO, vGO + 1, 0, 192, SRD_DBG)
    k.vm[-1] = (k.vm[-1][0], "c")
    k(f"v_mov_b32 {V(z)}, 0")
    def fl(off):
        k("s_mov_b64 exec, 1")
        k(f"buffer_store_dword {V(vONE)}, {V(z)}, {S(SRD_WS,4)}, {S(sT5)} offen offset:{off} sc1")
        k("s_mov_b64 exec, -1")
    k.wait_tag_vm("c")
    poll_check(vGO, vGO + 1, 0, 192, SRD_DBG)
    k("s_barrier")
    wave0(lambda: fl(0))
    stamp(1)
    for i in range(7):
        for u in range(2):
            k(f"ds_read_b64_tr_b16 {V(G+4*i+2*u,2)}, {V(aO if i & 1 else aE)} offset:{(i//2)*2048+u*1024}")
    for i in range(7):
        k(f"buffer_store_dwordx4 {V(G+4*i,4)}, {V(vL16)}, {S(SRD_WS,4)}, {S(sT1)} offen offset:{1024*(i%4)} sc1")
        if i == 3:
            k(f"s_add_u32 {S(sT1)}, {S(sT1)}, 4096")
    k.wait(vm=0)
    k("s_barrier")
    wave0(lambda: fl(64))
    stamp(25)
    label("L_end2")
    if DIAG:
        k(f"s_lshl_b32 {S(sT0)}, {S(sWG)}, 10")
        k(f"s_add_u32 {S(sT0)}, {S(sT0)}, {hex(STAMP)}")
        k(f"v_lshlrev_b32 {V(WK)}, 2, {V(vTID)}")
        k(f"buffer_store_dword {V(vSTAMP)}, {V(WK)}, {S(SRD_WS,4)}, {S(sT0)} offen")
    k("s_endpgm")

KW = W1R
PRM = KW
TBL = KW + 8
GA = KW + 20
TA = GA + 17
vKW, vKR, vKC, vDSK = KW + 42, KW + 43, KW + 44, KW + 45

def table_words():
    def bf16v(m):
        u = struct.unpack("<I", struct.pack("<f", float(m)))[0]
        u = ((u + 0x7FFF + ((u >> 16) & 1)) >> 16) << 16
        return int(struct.unpack("<f", struct.pack("<I", u))[0])
    rowv = list(range(8)) + [256, 258, 260, 262, 512, 516, 768, 772, 1024, 1280, 1536, 1792, 2048]
    def idx(m):
        if m < 0:
            return (KC0 + 4096 + 64) // 8
        l = bf16v(m)
        r = [r for r, a in enumerate(rowv) if l >= a and (l - a) % 8 == 0 and l - a < 256][-1]
        return (r % 16) * 33 + (l - rowv[r]) // 8 + (SCR_ST // 8 if r >= 16 else 0)
    rows = []
    for lam in range(128):
        e = [idx(2047 - 16 * lam - i) for i in range(17)] + [0] * 7
        rows.append([e[2 * i] | (e[2 * i + 1] << 16) for i in range(12)])
    out = []
    for qd in range(3):
        for lam in range(128):
            out.append(rows[lam][4 * qd:4 * qd + 4])
    return out

def addr_conv():
    t0, t1, t2, t3 = KW + 100, KW + 101, KW + 102, KW + 103
    r16, g4, cc = KW + 104, KW + 105, KW + 106
    o = []
    e = o.append
    e(f"v_and_b32 {V(r16)}, 15, {V(vL)}")
    e(f"v_lshrrev_b32 {V(g4)}, 4, {V(vL)}")
    e(f"v_and_b32 {V(cc)}, 3, {V(vL)}")
    e(f"s_mul_i32 {S(sSCR)}, {S(sW)}, {SCR_ST}")
    e(f"s_add_u32 {S(sSCR)}, {S(sSCR)}, {SCR}")
    e(f"s_mul_i32 {S(sSCH)}, {S(sCH)}, {2*SCR_ST}")
    e(f"s_add_u32 {S(sSCH)}, {S(sSCH)}, {SCR}")
    e(f"v_lshl_add_u32 {V(vKW)}, {V(vL)}, 3, {S(sSCR)}")
    e(f"v_mul_u32_u24 {V(vKR)}, {ROW_ST}, {V(r16)}")
    e(f"v_lshl_add_u32 {V(vKR)}, {V(g4)}, 4, {V(vKR)}")
    e(f"v_add_u32 {V(vKR)}, {S(sSCR)}, {V(vKR)}")
    e(f"v_mul_u32_u24 {V(t0)}, 132, {V(g4)}")
    e(f"v_add_u32 {V(t0)}, {V(t0)}, {V(r16)}")
    e(f"s_lshl2_add_u32 {S(sT2)}, {S(sNH)}, {S(sSCH)}")
    e(f"v_lshl_add_u32 {V(TA)}, {V(t0)}, 3, {S(sT2)}")
    e(f"v_add_u32 {V(TA+1)}, {SCR_ST}, {V(TA)}")
    e(f"v_and_b32 {V(t0)}, 127, {V(vTID)}")
    e(f"s_add_u32 {S(sT2)}, {S(sSCH)}, {KC0}")
    e(f"v_lshl_add_u32 {V(vKC)}, {V(t0)}, 5, {S(sT2)}")
    e(f"v_lshrrev_b32 {V(t0)}, 5, {V(vL)}")
    e(f"v_bfe_u32 {V(t1)}, {V(vL)}, 2, 2")
    e(f"v_lshlrev_b32 {V(t3)}, 9, {V(t0)}")
    e(f"v_lshl_add_u32 {V(t3)}, {V(t1)}, 7, {V(t3)}")
    e(f"v_bfe_u32 {V(t1)}, {V(vL)}, 3, 1")
    e(f"v_lshl_add_u32 {V(t3)}, {V(t1)}, 6, {V(t3)}")
    e(f"v_bfe_u32 {V(t1)}, {V(vL)}, 4, 1")
    e(f"v_lshl_add_u32 {V(t3)}, {V(t1)}, 5, {V(t3)}")
    e(f"v_lshl_add_u32 {V(t3)}, {V(cc)}, 3, {V(t3)}")
    e(f"s_mul_i32 {S(sT2)}, {S(sW)}, {WREG}")
    e(f"v_add_u32 {V(vW2R)}, {S(sT2)}, {V(t3)}")
    e(f"v_xor_b32 {V(vW2R+1)}, 64, {V(vW2R)}")
    e(f"v_lshrrev_b32 {V(t0)}, 3, {V(vTID)}")
    e(f"v_and_b32 {V(t1)}, 0x70, {V(vL16)}")
    e(f"v_lshl_add_u32 {V(vCX)}, {V(t0)}, 8, {V(t1)}")
    e(f"v_lshrrev_b32 {V(t0)}, 4, {V(vTID)}")
    e(f"v_and_b32 {V(t2)}, 8, {V(vL)}")
    e(f"v_lshl_add_u32 {V(t2)}, {V(t0)}, 7, {V(t2)}")
    e(f"v_lshl_add_u32 {V(t2)}, {V(cc)}, 5, {V(t2)}")
    e(f"v_bfe_u32 {V(t1)}, {V(vL)}, 2, 1")
    e(f"v_lshl_add_u32 {V(t2)}, {V(t1)}, 4, {V(t2)}")
    e(f"v_add_u32 {V(vUW)}, {UARR+480}, {V(t2)}")
    e(f"s_mul_i32 {S(sT2)}, {S(sCH)}, {SCR_ST-1024}")
    e(f"s_add_u32 {S(sT2)}, {S(sT2)}, {SCR}")
    e(f"v_add_u32 {V(vXW)}, {S(sT2)}, {V(t2)}")
    e(f"v_and_b32 {V(t0)}, 1, {V(vL)}")
    e(f"v_xor_b32 {V(t0)}, 1, {V(t0)}")
    e(f"v_mul_u32_u24 {V(t1)}, {SCR_ST+64-2}, {V(t0)}")
    e(f"v_lshlrev_b32 {V(t2)}, 1, {V(r16)}")
    e(f"v_sub_u32 {V(t1)}, {V(t1)}, {V(t2)}")
    e(f"v_lshl_add_u32 {V(t1)}, {V(g4)}, 4, {V(t1)}")
    e(f"s_lshl_b32 {S(sT3)}, {S(sNH)}, 8")
    e(f"s_sub_u32 {S(sT2)}, {S(sSCH)}, {S(sT3)}")
    e(f"s_add_u32 {S(sT2)}, {S(sT2)}, {KC0 + 2*2031 - 512 - 192}")
    e(f"v_add_u32 {V(vKF)}, {S(sT2)}, {V(t1)}")
    for a in range(1, 4):
        e(f"v_subrev_u32 {V(vKF+a)}, {1024*a}, {V(vKF)}")
    e(f"v_lshlrev_b32 {V(t1)}, 5, {V(r16)}")
    e(f"v_lshl_add_u32 {V(t1)}, {V(g4)}, 4, {V(t1)}")
    e(f"s_mul_i32 {S(sT2)}, {S(sCH)}, {U_ST}")
    e(f"s_sub_u32 {S(sT2)}, {S(sT2)}, {S(sT3)}")
    e(f"s_add_u32 {S(sT2)}, {S(sT2)}, {UARR + 480 - 32 - 192}")
    e(f"v_add_u32 {V(vUF)}, {S(sT2)}, {V(t1)}")
    e(f"v_mov_b32 {V(vXR)}, {V(vKW)}")
    e(f"v_add_u32 {V(vEXW)}, {S(sSCR)}, {V(vL16)}")
    e(f"s_xor_b32 {S(sT2)}, {S(sW)}, 1")
    e(f"s_mul_i32 {S(sT2)}, {S(sT2)}, {SCR_ST}")
    e(f"s_add_u32 {S(sT2)}, {S(sT2)}, {SCR}")
    e(f"v_add_u32 {V(vEXR)}, {S(sT2)}, {V(vL16)}")
    e(f"v_lshrrev_b32 {V(t0)}, 3, {V(vL)}")
    e(f"v_mul_u32_u24 {V(vCO)}, 114688, {V(t0)}")
    e(f"v_and_b32 {V(t0)}, 7, {V(vL)}")
    e(f"s_and_b32 {S(sT2)}, {S(sCP)}, 1")
    e(f"s_lshl_b32 {S(sT3)}, {S(sT2)}, 2")
    e(f"v_xor_b32 {V(t0)}, {S(sT3)}, {V(t0)}")
    e(f"v_lshl_add_u32 {V(vCO)}, {V(t0)}, 4, {V(vCO)}")
    e(f"s_lshl_b32 {S(sT2)}, {S(sT2)}, 3")
    e(f"s_lshr_b32 {S(sXQi)}, {S(sCP)}, 1")
    e(f"s_lshl_b32 {S(sXQi)}, {S(sXQi)}, 14")
    e(f"s_add_u32 {S(sXQi)}, {S(sXQi)}, {S(sT2)}")
    e(f"s_add_u32 {S(sXQi)}, {S(sXQi)}, {hex(XQ)}")
    e(f"s_lshl_b32 {S(sT2)}, {S(sCP)}, 1")
    e(f"s_add_u32 {S(sT2)}, {S(sT2)}, {S(sCH)}")
    e(f"s_lshl_b32 {S(sT2)}, {S(sT2)}, 7")
    e(f"s_mul_i32 {S(sT3)}, {S(sNH)}, {8*114688}")
    e(f"s_add_u32 {S(sT2)}, {S(sT2)}, {S(sT3)}")
    e(f"v_add_u32 {V(vCO)}, {S(sT2)}, {V(vCO)}")
    e(f"v_lshlrev_b32 {V(vFP)}, 4, {V(vTID)}")
    e(f"v_max_u32 {V(vFP)}, 512, {V(vFP)}")
    e(f"s_mov_b32 {S(sPERM0)}, 0x05040100")
    e(f"s_mov_b32 {S(sPERM1)}, 0x07060302")
    e(f"s_lshl_b32 {S(sT2)}, {S(sJ)}, 2")
    e(f"s_add_u32 {S(sT2)}, {S(sT2)}, {S(sW)}")
    e(f"s_mul_i32 {S(sWL)}, {S(sT2)}, 28672")
    e(f"s_add_u32 {S(sWL)}, {S(sWL)}, {hex(W1C)}")
    e(f"s_lshr_b32 {S(sT2)}, {S(sT2)}, 1")
    e(f"s_lshl_b32 {S(sT2)}, {S(sT2)}, 7")
    e(f"s_add_u32 {S(sT2)}, {S(sT2)}, {hex(FLG_W)}")
    e(f"v_mov_b32 {V(vWF+1)}, {S(sT2)}")
    e(f"s_lshl2_add_u32 {S(sT2)}, {S(sDS)}, {S(sW)}")
    e(f"s_mul_i32 {S(sW2L)}, {S(sT2)}, 28672")
    e(f"s_add_u32 {S(sW2L)}, {S(sW2L)}, {hex(W2T)}")
    e(f"s_lshl_b32 {S(sT2)}, {S(sT2)}, 7")
    e(f"s_add_u32 {S(sT2)}, {S(sT2)}, {hex(FLG_W+64)}")
    e(f"v_mov_b32 {V(vWF+2)}, {S(sT2)}")
    e(f"s_mov_b32 {S(sLDT2)}, {S(sT2)}")
    e(f"s_mul_i32 {S(sXT)}, {S(sGAM)}, 114688")
    e(f"s_add_u32 {S(sXT)}, {S(sXT)}, {hex(X1T)}")
    z = KW + 108
    for i in range(4):
        e(f"v_mov_b32 {V(z+i)}, 0")
    e(f"v_min_u32 {V(t0)}, 29, {V(vL)}")
    e(f"v_lshlrev_b32 {V(t0)}, 4, {V(t0)}")
    e(f"v_add_u32 {V(t0)}, {UARR}, {V(t0)}")
    e(f"ds_write_b128 {V(t0)}, {V(z,4)}")
    e(f"ds_write_b128 {V(t0)}, {V(z,4)} offset:{U_ST}")
    e(f"v_and_b32 {V(t0)}, 0x70, {V(vL16)}")
    e(f"v_add_u32 {V(t0)}, {S(sSCR)}, {V(t0)}")
    e(f"ds_write_b128 {V(t0)}, {V(z,4)} offset:{KC0+4096}")
    return o

def addr_ffn(layer):
    t0, t1, t2, t3 = WK + 84, WK + 85, WK + 86, WK + 87
    g4, rho, cc = WK + 88, WK + 89, WK + 90
    o = []
    e = o.append
    e(f"v_lshrrev_b32 {V(g4)}, 4, {V(vL)}")
    e(f"v_bfe_u32 {V(rho)}, {V(vL)}, 2, 2")
    e(f"v_and_b32 {V(cc)}, 3, {V(vL)}")
    e(f"v_lshrrev_b32 {V(t0)}, 5, {V(vL)}")
    e(f"v_bfe_u32 {V(t1)}, {V(vL)}, 4, 1")
    e(f"v_bfe_u32 {V(t2)}, {V(vL)}, 3, 1")
    e(f"v_lshlrev_b32 {V(t3)}, 7, {V(rho)}")
    e(f"v_lshl_add_u32 {V(t3)}, {V(t2)}, 6, {V(t3)}")
    e(f"v_lshl_add_u32 {V(vXA0)}, {V(t0)}, 10, {V(t3)}")
    e(f"v_lshl_add_u32 {V(vXA0)}, {V(cc)}, 4, {V(vXA0)}")
    e(f"v_lshl_add_u32 {V(vXA0)}, {V(t1)}, 3, {V(vXA0)}")
    e(f"v_xor_b32 {V(vXA1)}, 64, {V(vXA0)}")
    e(f"s_lshl_b32 {S(sT2)}, {S(sHH)}, 6")
    e(f"v_xor_b32 {V(t3)}, {S(sT2)}, {V(t3)}")
    e(f"s_lshl_b32 {S(sT2)}, {S(sNH)}, 5")
    e(f"s_lshl3_add_u32 {S(sT2)}, {S(sCH)}, {S(sT2)}")
    e(f"v_and_b32 {V(t0)}, 16, {V(vL16)}")
    e(f"v_add3_u32 {V(t3)}, {V(t3)}, {V(t0)}, {S(sT2)}")
    e(f"v_bfe_u32 {V(t0)}, {V(vL)}, 1, 1")
    e(f"v_mul_u32_u24 {V(vST)}, {XHALF}, {V(t0)}")
    e(f"v_lshl_add_u32 {V(vST)}, {V(g4)}, 10, {V(vST)}")
    e(f"v_add_u32 {V(vST)}, {V(vST)}, {V(t3)}")
    e(f"v_lshl_add_u32 {V(t0)}, {V(g4)}, 1, {V(t0)}")
    e(f"v_lshl_add_u32 {V(vRES)}, {V(t0)}, 10, {V(t3)}")
    e(f"s_lshl_b32 {S(sT2)}, {S(sDS)}, 13")
    e(f"v_add_u32 {V(vRES)}, {S(sT2)}, {V(vRES)}")
    e(f"s_mul_i32 {S(sT2)}, {S(sW)}, {RED_W}")
    e(f"v_add_u32 {V(vRW)}, {S(sT2)}, {V(vL16)}")
    e(f"v_lshrrev_b32 {V(t0)}, 3, {V(vL)}")
    e(f"v_and_b32 {V(t1)}, 0x70, {V(vL16)}")
    e(f"v_mul_u32_u24 {V(vRR)}, {RED_G}, {V(t0)}")
    e(f"s_lshl_b32 {S(sT2)}, {S(sW)}, 7")
    e(f"v_add3_u32 {V(vRR)}, {V(vRR)}, {V(t1)}, {S(sT2)}")
    e(f"s_and_b32 {S(sT2)}, {S(sGAM)}, 8")
    e(f"s_bfe_u32 {S(sT3)}, {S(sGAM)}, 0x20001")
    e(f"s_add_u32 {S(sT2)}, {S(sT2)}, {S(sT3)}")
    e(f"s_lshl2_add_u32 {S(sT2)}, {S(sCH)}, {S(sT2)}")
    e(f"s_lshl1_add_u32 {S(sT3)}, {S(sHH)}, {S(sNH)}")
    e(f"s_and_b32 {S(sT4)}, {S(sGAM)}, 1")
    e(f"v_lshlrev_b32 {V(t2)}, 4, {V(cc)}")
    e(f"v_bfe_u32 {V(t3)}, {V(vL)}, 2, 1")
    if layer == 0:
        e(f"s_lshl2_add_u32 {S(sT2)}, {S(sT2)}, {S(sT3)}")
        e(f"s_lshl1_add_u32 {S(sT2)}, {S(sT2)}, {S(sT4)}")
        e(f"s_lshl_b32 {S(sT2)}, {S(sT2)}, 6")
        e(f"v_lshl_add_u32 {V(vAT)}, {V(t3)}, 2, {V(t2)}")
        e(f"v_lshrrev_b32 {V(t3)}, 5, {V(vL)}")
        e(f"v_lshl_add_u32 {V(vAT)}, {V(t3)}, 3, {V(vAT)}")
        e(f"v_add_u32 {V(vAT)}, {S(sT2)}, {V(vAT)}")
        e(f"v_lshrrev_b32 {V(t3)}, 2, {V(vL)}")
        e(f"v_lshl_add_u32 {V(vO)}, {V(t3)}, 14, {V(t2)}")
        e(f"s_lshl_b32 {S(sT5)}, {S(sDS)}, 18")
        e(f"s_add_u32 {S(sT2)}, {S(sT2)}, {S(sT5)}")
        e(f"v_add_u32 {V(vO)}, {S(sT2)}, {V(vO)}")
    else:
        e(f"s_lshl3_add_u32 {S(sT2)}, {S(sT2)}, {S(sT4)}")
        e(f"s_lshl2_add_u32 {S(sT2)}, {S(sT2)}, {S(sT3)}")
        e(f"s_lshl_b32 {S(sT2)}, {S(sT2)}, 1")
        e(f"v_add3_u32 {V(t2)}, {V(t2)}, {V(t3)}, {S(sT2)}")
        e(f"v_mul_u32_u24 {V(vO)}, 896, {V(t2)}")
        e(f"v_lshl_add_u32 {V(vO)}, {V(t0)}, 4, {V(vO)}")
        e(f"s_lshl_b32 {S(sT2)}, {S(sDS)}, 7")
        e(f"v_add_u32 {V(vO)}, {S(sT2)}, {V(vO)}")
    e(f"v_min_u32 {V(t0)}, 13, {V(vL)}")
    e(f"s_mul_i32 {S(sT2)}, {S(sW)}, 14")
    e(f"v_add_lshl_u32 {V(vF2P)}, {V(t0)}, {S(sT2)}, {GL or 4}")
    e(f"s_lshl2_add_u32 {S(sT3)}, {S(sJ)}, {S(sW)}")
    e(f"s_lshl_b32 {S(sT2)}, {S(sT3)}, {GL or 4}")
    e(f"v_mov_b32 {V(vFL)}, {S(sT2)}")
    e(f"s_mul_i32 {S(sT2)}, {S(sGAM)}, {4*112*1024}")
    e(f"s_add_u32 {S(sT2)}, {S(sT2)}, {hex(HB + layer*H_SZ)}")
    e(f"s_lshl_b32 {S(sT3)}, {S(sT3)}, 11")
    e(f"s_add_u32 {S(sHS)}, {S(sT2)}, {S(sT3)}")
    e(f"s_lshl2_add_u32 {S(sT3)}, {S(sHH)}, {S(sW)}")
    e(f"s_mul_i32 {S(sT3)}, {S(sT3)}, {28*1024}")
    e(f"s_add_u32 {S(sHL)}, {S(sT2)}, {S(sT3)}")
    e(f"s_lshl_b32 {S(sFG)}, {S(sGAM)}, {GL + 6 if GL else 11}")
    e(f"s_add_u32 {S(sFG)}, {S(sFG)}, {hex(FLG_G + layer*(8 if GL else 0x8000))}")
    if layer:
        e(f"s_mov_b32 {S(SRD_OUT)}, s52")
        e(f"s_and_b32 {S(SRD_OUT+1)}, s53, 0xffff")
        e(f"s_mov_b32 {S(SRD_OUT+2)}, {hex(2048*896)}")
        e(f"s_mov_b32 {S(SRD_OUT+3)}, 0x20000")
    return o

def pk(op, d, a, b, c=None, bc=(), neg=(), emit=True):
    ops = [a, b] + ([c] if c is not None else [])
    n = len(ops)
    txt = f"v_pk_{op}_f32 {d}, " + ", ".join(ops)
    if bc:
        txt += " op_sel_hi:[" + ",".join("0" if i in bc else "1" for i in range(n)) + "]"
    if neg:
        m = "[" + ",".join("1" if i in neg else "0" for i in range(n)) + "]"
        txt += f" neg_lo:{m} neg_hi:{m}"
    if emit:
        k(txt)
    return txt

def cmul(d, a, b, t):
    assert d != a
    pk("mul", V(t, 2), V(a, 2), V(b, 2))
    pk("mul", V(t + 2, 2), V(a, 2), V(b + 2, 2))
    pk("fma", V(d, 2), V(a + 2, 2), V(b + 2, 2), V(t, 2), neg=(0,))
    pk("fma", V(d + 2, 2), V(a + 2, 2), V(b, 2), V(t + 2, 2))

NINIT = opt("ninit", 6)
NPG = opt("npg", 8)
def stub_targets():
    return [("L_ret0" if p <= 3 else (f"L_pg{p+4}" if p + 4 <= NPG else "L_ret1")) for p in range(1, NPG + 1)]

def touch(n):
    if not opt("touch", 1):
        k.label(f"L_ret{n}")
        return
    k("s_mov_b64 exec, 0")
    for w in range(4):
        p = w if n == 0 else 4 + w
        if 1 <= p <= NPG and not (n == 0 and opt("touch", 1) == 2):
            k(f"s_cmp_eq_u32 {S(sW)}, {w}")
            k(f"s_cbranch_scc1 L_pg{p}")
    if n == 0:
        k("s_branch L_ret0")
        k.raw(".p2align 12")
    k.label(f"L_ret{n}")
    k("s_mov_b64 exec, -1")

def table_loads():
    t0 = KW + 100
    k(f"v_and_b32 {V(t0)}, 127, {V(vTID)}")
    k(f"v_lshlrev_b32 {V(t0)}, 4, {V(t0)}")
    k(f"v_add_u32 {V(t0)}, L_table-L_pc+2048, {V(t0)}")
    for q in range(3):
        if q < 2:
            k(f"global_load_dwordx4 {V(TBL+4*q,4)}, {V(t0)}, {S(sPC,2)} offset:{2048*(q-1)}")
        else:
            k(f"global_load_dword {V(TBL+8)}, {V(t0)}, {S(sPC,2)} offset:2048")

def main_start():
    k.c("=== main workgroups")
    p0x_loads()
    for i in range(6):
        k(f"global_load_dword {V(PRM+i)}, {V(PRM+6)}, {S(30+2*i,2)}")
    k(f"s_lshl_b32 {S(sT0)}, {S(sCP)}, 2")
    k(f"s_load_dword {S(sLDT)}, s[42:43], {S(sT0)}")
    k(f"s_load_dword {S(sDSK)}, s[44:45], {S(sT0)}")
    k.lg = []
    srd(SRD_W2, 50, 1792 * 896)
    if opt("warm", 1):
        k(f"s_sub_u32 {S(sT0)}, {S(sWG)}, 32")
        k(f"s_lshl2_add_u32 {S(sT0)}, {S(sT0)}, {S(sW)}")
        k(f"s_mul_i32 {S(sT0)}, {S(sT0)}, 1792")
        k(f"v_min_u32 {V(vDUM+1)}, 13, {V(vL)}")
        k(f"v_lshl_add_u32 {V(vDUM+1)}, {V(vDUM+1)}, 7, {S(sT0)}")
        for q in range(opt("warm", 1)):
            k(f"global_load_dword {V(vDUM)}, {V(vDUM+1)}, {S(48+2*q,2)}")
            k.vm[-1] = (set(), None)
    if opt("tblearly", 0):
        table_loads()
    w2_lane_src(vW2S, 896, KW + 100, KW + 101)
    k(f"s_mul_i32 {S(sW2B)}, {S(sW)}, {448*896}")
    k(f"s_lshl_b32 {S(sT2)}, {S(sDS)}, 7")
    k(f"s_add_u32 {S(sW2B)}, {S(sW2B)}, {S(sT2)}")
    FREG[0] = 4
    fine("ld")
    ac = addr_conv()
    for i in range(NINIT):
        w2_dma()
        run(ac, len(ac) // (NINIT - i))
    run(ac)
    stamp(24)
    fine("addr")
    p0x_body()
    fine("p0x")
    stamp(1)
    if opt("atom0", 14) < 0:
        p0x_atomics()
        stamp(25)
    touch(0)

DEF0 = opt("def0", 1)
LATE0 = W1R + 100 if DEF0 else WK + 12
def conv_load_ops(layer, h, D):
    o = [f"s_mov_b32 {S(sT0)}, {hex(STATS[layer] + 8192*h)}",
         f"s_add_u32 {S(sT3)}, {S(sXQi)}, {hex(layer*XQ_SZ + 8192*h)}"]
    for j in range(2):
        o.append(f"buffer_load_dwordx4 {V(D+4*j,4)}, {V(vCX)}, {S(SRD_WS,4)}, {S(sT0)} offen offset:{128*j} sc1")
        o.append(f"buffer_load_dwordx2 {V(D+8+2*j,2)}, {V(vCX)}, {S(SRD_WS,4)}, {S(sT3)} offen offset:{128*j} sc1")
    return o

CW = []
def kgen():
    k.c("=== K generation")
    B0 = KW + 46
    U = B0
    DT = B0 + 12
    W1_, W8_, W256 = B0 + 14, B0 + 18, B0 + 22
    T = B0 + 26
    P = [B0 + 30 + 4 * i for i in range(5)]
    CV = B0 + 50
    ACC = WK + 64
    FX, FY = (112, 144), (176, 208)
    for i in range(6):
        k(f"v_lshlrev_b32 {V(U+2*i)}, 16, {V(PRM+i)}")
        k(f"v_and_b32 {V(U+2*i+1)}, {S(sHIM)}, {V(PRM+i)}")
    k.wait(lg=0)
    fine("prm")
    k(f"s_lshl_b32 {S(sT0)}, {S(sCH)}, 4")
    k(f"s_lshr_b32 {S(sLDT)}, {S(sLDT)}, {S(sT0)}")
    k(f"s_lshl_b32 {S(sLDT)}, {S(sLDT)}, 16")
    k(f"s_lshr_b32 {S(sDSK)}, {S(sDSK)}, {S(sT0)}")
    k(f"s_lshl_b32 {S(sDSK)}, {S(sDSK)}, 16")
    k(f"v_mov_b32 {V(DT)}, {f2u(1.4426950408889634)}")
    k(f"v_mul_f32 {V(DT)}, {S(sLDT)}, {V(DT)}")
    k(f"v_exp_f32 {V(DT)}, {V(DT)}")
    k(f"s_cmp_eq_u32 {S(sNH)}, 0")
    k(f"s_cselect_b32 {S(sDSK)}, {S(sDSK)}, 0")
    k(f"v_cvt_pk_bf16_f32 {V(DT)}, {V(DT)}, {V(DT)}")
    k(f"v_mov_b32 {V(vDSK)}, 0")
    k(f"v_lshlrev_b32 {V(DT)}, 16, {V(DT)}")
    k(f"v_writelane_b32 {V(vDSK)}, {S(sDSK)}, 0")
    for i in range(4):
        pk("mul", V(U + 2 * i, 2), V(U + 2 * i, 2), V(DT, 2), bc=(1,))
    k(f"s_mov_b32 {S(sC0)}, {f2u(1.4426950408889634)}")
    pk("mul", V(U, 2), V(U, 2), S(sC0, 2), bc=(1,))
    k(f"s_mov_b32 {S(sC0)}, {f2u(0.15915494309189535)}")
    pk("mul", V(U + 2, 2), V(U + 2, 2), S(sC0, 2), bc=(1,))
    cmul(P[0], U + 8, U + 4, T)
    for (Wd, sc) in ((W1_, 1.0), (W256, 256.0), (W8_, 8.0)):
        ea, an = U + 4, U + 6
        if sc == 1.0:
            sa, sb = U, U + 2
        else:
            k(f"s_mov_b32 {S(sC0)}, {f2u(sc)}")
            pk("mul", V(ea, 2), V(U, 2), S(sC0, 2), bc=(1,))
            pk("mul", V(an, 2), V(U + 2, 2), S(sC0, 2), bc=(1,))
            sa, sb = ea, an
        for h in range(2):
            k(f"v_fract_f32 {V(an+h)}, {V(sb+h)}")
        for h in range(2):
            k(f"v_exp_f32 {V(ea+h)}, {V(sa+h)}")
        for h in range(2):
            k(f"v_cos_f32 {V(Wd+h)}, {V(an+h)}")
        for h in range(2):
            k(f"v_sin_f32 {V(Wd+2+h)}, {V(an+h)}")
        pk("mul", V(Wd, 2), V(Wd, 2), V(ea, 2))
        pk("mul", V(Wd + 2, 2), V(Wd + 2, 2), V(ea, 2))
    if not opt("goearly", 0):
        poll_load(vGO, vGO + 3, 0, 0, SRD_DBG)
    if opt("atom0", 14) == 0:
        p0x_atomics()
        stamp(25)
    fine("setup")
    cvi = [0]
    ent = [0]
    vPL = WK + 80
    NKD = opt("nkd", 0)
    FL0, PL0 = opt("flag0", 30), opt("poll0", 46)
    cl = conv_load_ops(0, 0, WK) + ([] if DEF0 else conv_load_ops(0, 1, LATE0))
    PCE = opt("pce", 0)
    def put(src, row, negim, extra=None):
        c = CV + 2 * (cvi[0] & 1)
        cvi[0] += 1
        n = "-" if negim else ""
        k(f"v_cvt_pk_bf16_f32 {V(c)}, {V(src)}, {V(src+1)}")
        k(f"v_cvt_pk_bf16_f32 {V(c+1)}, {n}{V(src+2)}, {n}{V(src+3)}")
        k(f"ds_write_b64 {V(vKW)}, {V(c,2)} offset:{row*ROW_ST}")
        if extra:
            k(extra)
        ent[0] += 1
        if ent[0] == opt("atom0", 14):
            p0x_atomics()
            stamp(25)
        if ent[0] == FL0:
            poll_check(vGO, vGO + 2, 0, 128, SRD_DBG)
            k("s_barrier")
            flag_all(0)
            if not opt("tblearly", 0):
                table_loads()
            stamp(2)
        if opt("kdb", 0) and ent[0] == opt("kdb", 0):
            for _ in range(4):
                w2_dma()
        if ND[0] < NINIT + min(NKD, NKD * (ent[0] - opt("kd0", 0)) // (opt("kdspan", 42) - opt("kd0", 0))):
            w2_dma()
        if ent[0] in (opt("atom0", 14) - 1, opt("atom0", 14), FL0 - 1, FL0, 52):
            fine(f"e{ent[0]}")
        if ent[0] == PL0:
            poll_load(vGO, vGO + 1, 0, 192, SRD_DBG)
            poll_load(vPL, vFP, S(sREP))
        if ent[0] == PCE:
            poll_check(vPL, vFP, S(sREP))
            poll_check(vGO, vGO + 1, 0, 192, SRD_DBG)
            k("s_barrier")
            run(cl, 6)
    def frags(b):
        for st in range(8):
            k(f"ds_read_b128 {A(b+4*st,4)}, {V(vKR)} offset:{64*st}")
    cur = 0
    for a in range(8):
        put(P[cur], a, True)
        if a % 2 == 0:
            dst = {0: 3, 4: 4}.get(a, 2)
            cmul(P[dst], P[cur], W256, T)
            put(P[dst], 8 + a // 2, True)
        if a < 7:
            cmul(P[1 - cur], P[cur], W1_, T)
            cur = 1 - cur
    cmul(P[0], P[3], W256, T); put(P[0], 12, True)
    cmul(P[1], P[4], W256, T); put(P[1], 13, True)
    cmul(P[3], P[0], W256, T); put(P[3], 14, True)
    cmul(P[4], P[1], W256, T); put(P[4], 15, True)
    frags(FX[0])
    src, dst = 3, 0
    for row in range(5):
        cmul(P[dst], P[src], W256, T)
        put(P[dst], row, True)
        src, dst = dst, (1 - dst if dst in (0, 1) else 0)
    frags(FX[1])
    k(f"v_mov_b32 {V(CV)}, {S(sONES)}")
    k(f"v_mov_b32 {V(CV+1)}, 0")
    k(f"ds_write_b64 {V(vKW)}, {V(CV,2)}")
    cvi[0] = 1
    put(W8_, 1, False)
    cmul(P[0], W8_, W8_, T)
    cur = 0
    def mfma(n):
        yt, x, st = n // 16, (n // 8) & 1, n % 8
        d = V(ACC + 8 * yt + 4 * x, 4)
        return f"v_mfma_f32_16x16x32_bf16 {d}, {A(FX[x]+4*st,4)}, {A(FY[yt]+4*st,4)}, {d if st else 0}"
    M0 = opt("km", 0)
    for j in range(2, 32):
        put(P[cur], j % 16, False, mfma(j - 32 + M0) if j >= 32 - M0 else None)
        if j % 16 == 15:
            frags(FY[j // 16])
        if j == 15:
            stamp(3)
        if j < 31:
            cmul(P[1 - cur], P[cur], W8_, T)
            cur = 1 - cur
    assert ND[0] == NINIT + NKD and opt("pchk", 8) < 13, ND
    def tables(yt, x):
        a = ACC + 8 * yt + 4 * x
        return [f"ds_write2_b32 {V(TA+x)}, {V(a+i)}, {V(a+i+1)} offset0:{66*i+32*yt} offset1:{66*(i+1)+32*yt}" for i in (0, 2)]
    mads = []
    for n in range(17):
        sel = " op_sel:[1,0,0,0]" if n & 1 else ""
        mads.append(f"v_mad_u32_u16 {V(GA+n)}, {V(TBL+n//2)}, 8, {S(sSCH)}{sel}")
    PCK = opt("pchk", 8)
    tb = [(8, [f"v_add_f32 {V(ACC)}, {V(ACC)}, {V(vDSK)}"] + tables(0, 0)), (16, tables(0, 1)), (24, tables(1, 0))]
    for n in range(M0, 32):
        k(mfma(n))
        run(mads, 1)
        if n - M0 == PCK:
            if not PCE:
                poll_check(vPL, vFP, S(sREP))
                poll_check(vGO, vGO + 1, 0, 192, SRD_DBG)
            k.wait(lg=0)
            k("s_barrier")
            fine("pbar")
            stamp(4)
        if n - M0 >= PCK:
            if (n - M0 - PCK) % 2 == 0:
                run(cl, 3 if cl and cl[0].startswith("s_") else 1)
            if not cl and tb and n >= tb[0][0] + 4:
                run(tb.pop(0)[1])
    if AL:
        mads += [f"v_lshlrev_b32 {V(vFW)}, {AL-4}, {V(vFW)}", f"v_lshlrev_b32 {V(vFP)}, {AL-4}, {V(vFP)}", f"s_lshl_b32 {S(sREP)}, {S(sREP)}, {AL-4}"]
    run(mads)
    for _, o in tb:
        run(o)
    run(cl)
    run(tables(1, 1))
    k.wait(lg=0)
    k("s_barrier")
    fine("tbar")
    stamp(6)
    GV = B0
    for e in range(17):
        k(f"ds_read_b64 {V(GV+2*e,2)}, {V(GA+e)}")
    if opt("cpk", 1):
        CW.extend(cprep(WK, WK + 32, 0, True))
        k.wait(lg=0)
    else:
        k.wait(lg=8)
    for e in range(17):
        if e == 9 and k.lg:
            k.wait(lg=0)
        k(f"v_add_f32 {V(GV+2*e)}, {V(GV+2*e)}, {V(GV+2*e+1)}")
    fine("gath")
    k("s_barrier")
    O = B0 + 34
    for c in range(2):
        for kk in range(8):
            e = 2 * kk + c
            k(f"v_cvt_pk_bf16_f32 {V(O+8*c+kk)}, {V(GV+2*e)}, {V(GV+2*e+2)}")
    for c in range(2):
        for h in range(2):
            k(f"ds_write_b128 {V(vKC)}, {V(O+8*c+4*h,4)} offset:{c*(SCR_ST+64)+16*h}")
    stamp(5)

def wave0(fn):
    skip = newlab("w0")
    k(f"s_cmp_lg_u32 {S(sW)}, 0")
    saved = list(k.vm)
    k.skip_begin("s_cbranch_scc1", skip)
    fn()
    k.skip_end(skip)
    k.vm = saved

EARLY = opt("early", 0)
def apoll_load(arr):
    k(f"s_add_u32 {S(sPA)}, {S(sREP)}, {hex(FA(arr))}")
    poll_load(vPA, vFP, S(sPA))

def apoll_check():
    poll_check(vPA, vFP, S(sPA))

def aflag(arr):
    flag_all(FA(arr))

def bar():
    k.wait(lg=0)
    k("s_barrier")

CACC, CKR, CXU, CXR = WK, WK + 32, WK + 96, WK + 104
def cprep(D, T, h, defer=False):
    UU, O, RAW, EPS = T, T + 4, T + 8, CXR
    k(f"s_mov_b32 {S(sC0)}, {f2u(1.0/448)}")
    k(f"s_mov_b32 {S(sC1)}, {f2u(1e-5)}")
    k(f"v_mov_b32 {V(EPS)}, {S(sC1)}")
    for j in range(2):
        M, Q, X = D + 4 * j, D + 4 * j + 2, D + 8 + 2 * j
        pk("mul", V(M, 2), V(M, 2), S(sC0, 2), bc=(1,))
        pk("fma", V(Q, 2), V(Q, 2), S(sC0, 2), V(EPS, 2), bc=(1, 2))
        pk("fma", V(Q, 2), V(M, 2), V(M, 2), V(Q, 2), neg=(0,))
        for b in range(2):
            k(f"v_max_f32 {V(Q+b)}, {S(sC1)}, {V(Q+b)}")
        for b in range(2):
            k(f"v_rsq_f32 {V(Q+b)}, {V(Q+b)}")
        for b in range(2):
            k(f"v_lshlrev_b32 {V(UU+b)}, 16, {V(X+b)}")
            k(f"v_and_b32 {V(UU+2+b)}, {S(sHIM)}, {V(X+b)}")
        pk("mul", V(M, 2), V(M, 2), V(Q, 2))
        for c in range(2):
            pk("fma", V(UU + 2 * c, 2), V(UU + 2 * c, 2), V(Q, 2), V(M, 2), neg=(2,))
            k(f"v_perm_b32 {V(RAW+2*c+j)}, {V(X+1)}, {V(X)}, {S(sPERM0+c)}")
        for c in range(2):
            k(f"v_cvt_pk_bf16_f32 {V(O+2*c+j)}, {V(UU+2*c)}, {V(UU+2*c+1)}")
    w = [f"ds_write_b64 {V(vUW)}, {V(O+2*c,2)} offset:{c*U_ST + 2048*h}" for c in range(2)]
    w += [f"ds_write_b64 {V(vXW)}, {V(RAW+2*c,2)} offset:{c*2*SCR_ST + 1024*h}" for c in range(2)]
    if defer:
        return w
    run(w)

def k_ops(I, s, reg):
    o = (128 if I % 2 == 0 else 0) + 16 * (3 - s)
    r = (V if reg[0] == "v" else A)
    return [f"ds_read2_b32 {r(reg[1]+2*h,2)}, {V(vKF+I//2)} offset0:{o+2*h} offset1:{o+2*h+1}" for h in range(2)]

def k_preload():
    return [t for s in range(4) for I in range(4) for t in k_ops(I, s, ("v", CKR + 16 * s + 4 * I))]

def conv(layer):
    k.c("=== conv")
    ACC, XU, XR = CACC, CXU, CXR
    mf = []
    for s in range(4):
        mf += [(0, s, Jp, I) for Jp in range(3, -1, -1) for I in range(4 - Jp)]
    for s in range(3, -1, -1):
        mf += [(1, s, Jp, I) for I in range(7, 0, -1) for Jp in range(4) if 4 <= Jp + I <= 7]
    for s in range(4):
        mf += [(2, s, Jp, I) for Jp in range(7, 3, -1) for I in range(8 - Jp)]
    assert len(mf) == 144
    ukey = lambda p, s, Jp: ("u", 0 if (p == 1 and s == 3) else p, s, Jp)
    kkey = lambda s, I: ("k", s, I)
    first, last = {}, {}
    for n, (p, s, Jp, I) in enumerate(mf):
        for key in (ukey(p, s, Jp), kkey(s, I)):
            first.setdefault(key, n)
            last[key] = n
    reg = {kkey(s, I): ("v", CKR + 16 * s + 4 * I) for s in range(4) for I in range(4)}
    items = sorted((key for key in first if not (layer and key in reg)), key=lambda x: first[x])
    XB, XS = opt("xb", 42), opt("xs", 46)
    slots = [("a", AX + 4 * i) for i in range(8)] + [("v", WK + 108), ("v", ACC + 12)][:opt("xslot", 2)]
    slot_free = ([-1] * 9 + [XB + 4])[:len(slots)]
    RG = lambda r: (V if r[0] == "v" else A)(r[1], 4)
    queue = []
    issued = {}
    def issue(n, budget):
        c = 0
        while True:
            if not queue:
                if not items:
                    return c
                key = items[0]
                if not (first[key] <= n + 2 or (c < budget and first[key] <= n + 20)):
                    return c
                if (layer or DEF0) and key[0] == "u" and key[1] == 2 and n < 104:
                    return c
                if key not in reg:
                    fr = [i for i in range(len(slots)) if slot_free[i] < n]
                    if not fr:
                        assert first[key] > n, (n, key)
                        return c
                    slot_free[fr[0]] = last[key]
                    reg[key] = slots[fr[0]]
                items.pop(0)
                if key[0] == "u":
                    queue.append((key, f"ds_read_b128 {RG(reg[key])}, {V(vUF)} offset:{512*key[3] + 64*(3-key[2])}"))
                else:
                    queue.extend((key, t) for t in k_ops(key[2], key[1], reg[key]))
            elif not (first[queue[0][0]] <= n + 2 or c < budget):
                return c
            key, t = queue.pop(0)
            k(t, tag=key)
            issued[key] = n
            c += 1
    def xblock(ph, packed, addfirst=False):
        l1, lj = newlab("x1"), newlab("xj")
        k(f"s_cmp_eq_u32 {S(sNH)}, 1")
        h0 = list(k.hist)
        k(f"s_cbranch_scc1 {l1}")
        for hf in range(2):
            if hf:
                k.label(l1)
                k.hist = h0
                k.lg = k.lg[:-2]
            a = ACC + 16 * ph
            def adds():
                for i in range(4 if packed else 8):
                    if packed:
                        pk("add", V(XU + 2 * i, 2), V(XU + 2 * i, 2), V(a + 8 * hf + 2 * i, 2))
                    else:
                        k(f"v_add_f32 {V(XU+i)}, {V(XU+i)}, {V(a+8*hf+i)}")
            if addfirst:
                adds()
            for jl in range(2):
                k(f"ds_write_b128 {V(vEXW)}, {V(a+8*(1-hf)+4*jl,4)} offset:{2048+1024*jl}", tag="ex")
            if not addfirst:
                adds()
            if not hf:
                k(f"s_branch {lj}")
        k.label(lj)
    def wait_lg(tag):
        idx = [i for i, p in enumerate(k.lg) if p[2] == tag]
        if idx:
            k.wait(lg=len(k.lg) - 1 - idx[-1])
    def res_ops(ph):
        o = [f"ds_read_b64_tr_b16 {V(XR+2*jl,2)}, {V(vXR)} offset:{1024*ph + 512*jl}" for jl in range(2)]
        o += [None] * 6
        for i in range(4):
            o += [f"v_lshlrev_b32 {V(XU+2*i)}, 16, {V(XR+i)}", f"v_and_b32 {V(XU+2*i+1)}, {S(sHIM)}, {V(XR+i)}"]
        return o
    def recv_ops():
        return [f"ds_read_b128 {V(ACC+4*jl,4)}, {V(vEXR)} offset:{2048+1024*jl}" for jl in range(2)]
    def out_ops(ph, packed):
        if packed:
            o = [f"v_pk_add_f32 {V(XU+2*i,2)}, {V(XU+2*i,2)}, {V(ACC+2*i,2)}" for i in range(4)]
        else:
            o = [f"v_add_f32 {V(XU+i)}, {V(XU+i)}, {V(ACC+i)}" for i in range(8)]
        o += [f"v_cvt_pk_bf16_f32 {V(ACC+8+i)}, {V(XU+2*i)}, {V(XU+2*i+1)}" for i in range(4)]
        o.append(f"s_mov_b32 {S(sT1)}, {hex(X1T + layer*XQ_SZ + 57344*ph)}")
        o.append((f"buffer_store_dwordx4 {V(ACC+8,4)}, {V(vCO)}, {S(SRD_WS,4)}, {S(sT1)} offen sc1", ("cst", ph)))
        return o
    if layer == 0:
        if opt("pw1", -1) < 0:
            poll_load(vWF, vWF + 1, 0)
        if CW:
            run(CW)
        else:
            cprep(WK, WK + 32, 0)
        stamp(7)
        if not DEF0:
            cprep(WK + 12, WK + 44, 1)
    bar()
    if layer and EARLY and opt("fl", 4) < 0:
        aflag(F_CIN1[1])
    fine("cbar")
    FREG[0] = 3
    fine("start")
    stamp(9)
    bg = []
    if layer == 0:
        n1, n2 = opt("w1conv", 18), opt("w2conv", 0)
        bg = [w2_dma] * (28 - ND[0])
        def c1():
            if not opt("abl", 0) & 8:
                poll_check(vWF, vWF + 1, 0)
            w1_load()
        def p2():
            poll_load(vWF, vWF + 2, 0)
            w1_load()
        def c2():
            if not opt("abl", 0) & 16:
                poll_check(vWF, vWF + 2, 0)
            if n2:
                w2_load()
        w = [c1] + [w1_load] * (n1 - 1)
        pos = max(1, n1 - n2 - 7)
        if n2:
            w[pos] = p2
        t = w[:n1 - n2]
        for i in range(n2):
            t += [c2 if i == 0 else w2_load] + w[n1 - n2 + i: n1 - n2 + i + 1]
        if opt("bgord", 2) == 0:
            bg += t
        elif opt("bgord", 2) == 1:
            bg = t + bg
        else:
            m = []
            while bg or t:
                m += t[:1] + bg[:1]
                t, bg = t[1:], bg[1:]
            bg = m
    nbg = len(bg)
    BG0 = opt("bg0", 4)
    step = max(1, (opt("bg1", 138) - BG0) / max(1, nbg))
    side = []
    seen = set()
    CL, FE, PE = opt("cl", XS), opt("fe", 100), opt("pe", 128)
    for n, (p, s, Jp, I) in enumerate(mf):
        if n == 104 and (layer or DEF0):
            assert not side and (layer or NW1[0] <= 25)
            stamp(10)
            cprep(LIN if layer else LATE0, ACC, 1)
            k.wait_tag_vm(("cst", 0))
            bar()
            if FE >= 104:
                aflag(F_X1[layer][0])
            stamp(12)
        cnt = issue(n, (12 if layer == 0 else 5) if n == 0 else 5 if n == 104 and (layer or DEF0) else 1)
        uk, kk = ukey(p, s, Jp), kkey(s, I)
        tags = [q[2] for q in k.lg]
        if uk in tags or kk in tags:
            cand = [i for i, q in enumerate(tags) if q in (uk, kk) or (q in first and first[q] <= n + 3 and issued[q] <= n - 7)]
            k.wait(lg=len(tags) - 1 - max(cand))
        J = Jp + I
        d = V(ACC + 4 * J, 4)
        k(f"v_mfma_f32_16x16x32_bf16 {d}, {RG(reg[uk])}, {RG(reg[kk])}, {d if J in seen else 0}")
        seen.add(J)
        if n == opt("ll0", 8) and layer == 0 and DEF0:
            side += conv_load_ops(0, 1, LATE0)
        if n == 18:
            side += res_ops(0)
        if n == 122:
            side += res_ops(1)
        if layer == 0 and n == opt("pw1", -1):
            poll_load(vWF, vWF + 1, 0)
        if layer and EARLY and n == opt("fl", 4):
            k.wait_tag_vm(("st", 1))
            k("s_barrier")
            aflag(F_CIN1[1])
        if layer and n == opt("pcl", 0):
            apoll_load(F_CIN1[1])
        if n == XB:
            assert not side
            xblock(0, bool(opt("xpk", 1)), True)
        if layer and n == CL and CL != XS:
            apoll_check()
            k("s_barrier")
            side += conv_load_ops(1, 1, LIN)
        if n == XS:
            if layer and CL == XS:
                apoll_check()
            wait_lg("ex")
            k("s_barrier")
            run(recv_ops())
            if layer and CL == XS:
                side += conv_load_ops(1, 1, LIN)
        if n == XS + opt("xo", 5):
            run(out_ops(0, bool(opt("xpk", 1))))
        if n == FE and (FE < 104 or not (layer or DEF0)):
            k.wait_tag_vm(("cst", 0))
            k("s_barrier")
            aflag(F_X1[layer][0])
        if n == PE:
            apoll_load(F_X1[layer][0])
        if n in (0, 19, 39, 47, 55, 63, 71, 87, 103, 104, 123, 143):
            fine(f"m{n}")
        if side:
            run(side, 2 if cnt == 0 else 1)
        elif bg and n >= BG0 + step * (nbg - len(bg)) and (cnt == 0 or n >= BG0 + 2 + step * (nbg - len(bg))):
            run(bg, 1)
    assert not items and not queue and not side
    run(bg)
    stamp(13)
    PX = opt("px", 2) if PE > 143 else -1
    if PX == 0:
        apoll_load(F_X1[layer][0])
    xblock(1, True)
    bar()
    run(recv_ops())
    if PX == 1:
        apoll_load(F_X1[layer][0])
    o = out_ops(1, True)
    run(o, len(o) - 1)
    if PX == 2:
        apoll_load(F_X1[layer][0])
    run(o)
    fine("store")
    stamp(11)
    if layer == 0:
        n = min(opt("w1a", 4), 28 - NW1[0])
        k.wait_tag_vm(("w2", 27))
        tr = w2_tr_ops(0, 14)
        for i in range(n):
            w1_load()
            run(tr, len(tr) // (n - i))
        run(tr)
    apoll_check()
    bar()
    fine("pollE")
    stamp(14)

def layer_turn():
    run(k_preload())
    if EARLY:
        LAY[0] = 1
        w = cprep(WK, WK + 12, 0, True)
        run(w)
        if opt("fl", 4) < 0:
            k.wait_tag_vm(("st", 1))
        return
    apoll_check()
    k("s_barrier")
    stamp(20)
    run(conv_load_ops(1, 0, WK))
    k.wait_tag_vm(("st", 1))
    k("s_barrier")
    aflag(F_CIN1[1])
    stamp(21)
    LAY[0] = 1
    if opt("pcl", 0) < 0:
        k.wait(vm=0)
        apoll_load(F_CIN1[1])
    cprep(WK, WK + 12, 0)

G2RES = WK + 100
G2R = WK + 108

GB = 4 if GL else 1024
def gflag(layer, half):
    k("s_mov_b64 exec, 1")
    k(f"buffer_store_dword {V(vONE)}, {V(vFL)}, {S(SRD_WS,4)}, {S(sFG)} offen offset:{GB*half} sc1")
    k("s_mov_b64 exec, -1")

def ffn(layer):
    k.c("=== GEMM1")
    FREG[0] = 1
    fine("start")
    ACC = WK
    EP = WK + 64
    vXS = WK + 80
    vB0, vB1 = WK + 81, WK + 82
    if layer:
        k(f"s_add_u32 {S(sXT)}, {S(sXT)}, {hex(XQ_SZ)}")
    k(f"v_add_u32 {V(vXS)}, {S(sXT)}, {V(vL16)}")
    k(f"s_lshl_b32 {S(sT0)}, {S(sW)}, 10")
    k(f"s_mov_b32 m0, {S(sT0)}")
    nx = [0]
    def dma():
        d = nx[0]
        nx[0] += 1
        k(f"buffer_load_dwordx4 {V(vXS)}, {S(SRD_WS,4)}, m0 offen sc1 lds", tag=("x", d))
        if d == 13:
            k(f"v_subrev_u32 {V(vXS)}, 32, {V(vXS)}")
        if d < 27:
            k(f"s_add_u32 m0, m0, {4096 + (32 if d == 13 else 0)}")
    NUP = opt("nup", 9)
    af = addr_ffn(layer)
    FXL = opt("fxl", 5)
    for st in range(NUP):
        dma()
        if st >= 1:
            run(af, opt("afr", 11))
        if st == FXL:
            k.wait_tag_vm(("cst", 1))
            k("s_barrier")
            aflag(F_X1[layer][1])
    af += [f"v_add_u32 {V(vB0)}, {XHALF}, {V(vXA0)}", f"v_add_u32 {V(vB1)}, {XHALF}, {V(vXA1)}"]
    W2CHK = [layer == 0 and NW2[0] == 0]
    if W2CHK[0]:
        k(f"v_mov_b32 {V(WK+97)}, {S(sLDT2)}")
        poll_load(WK + 96, WK + 97, 0)
    if layer == 0:
        touch(1)
    SKA = opt("ska", 10)
    mf = [(0, q, ks) for ks in range(28 - SKA) for q in range(2)]
    mf += [(0, q, ks) for q in range(2) for ks in range(28 - SKA, 28)]
    SK = opt("skb", 16)
    mf += [(1, q, ks) for ks in range(28 - SK) for q in range(2)]
    mf += [(1, q, ks) for q in range(2) for ks in range(28 - SK, 28)]
    NR = 8
    LEAD = opt("g1lead", 7)
    bars = [[2, 5, 9, 14, 16, 19, 23, 28], [1, 3, 6, 9, 14, 17, 21, 28], [2, 5, 9, 14, 18, 23, 28], [2, 6, 14, 20, 28]][opt("bars", 0)]
    ready = [0]
    def rd(n):
        half, q, ks = mf[n]
        st = 14 * half + ks // 2
        if st >= ready[0]:
            nb = [b for b in bars if b > st][0]
            assert nx[0] >= nb, (n, nb, nx[0])
            k.wait_tag_vm(("x", nb - 1))
            k("s_barrier")
            if ready[0] == 0 and FXL >= NUP:
                aflag(F_X1[layer][1])
            ready[0] = nb
        va = ((vXA0, vXA1), (vB0, vB1))[half][q]
        for u in range(2):
            k(f"ds_read_b64_tr_b16 {A(AX+4*(n%NR)+2*u,2)}, {V(va)} offset:{ks*2048+u*512}", tag=("f", n))
        rdat[n] = cur[0]
    rdat, cur, lastw = {}, [-9], [-9]
    def epi(tile):
        ops = []
        e = EP + 8 * (tile & 1)
        for a in range(2):
            for i in range(4):
                ops.append(f"v_cvt_pk_bf16_f32 {V(e+4*a+i)}, {V(ACC+16*tile+8*a+2*i)}, {V(ACC+16*tile+8*a+2*i+1)}")
            for i in range(4):
                ops.append(f"v_pk_max_i16 {V(e+4*a+i)}, {V(e+4*a+i)}, 0")
            if a == 0:
                ops.append(f"s_add_u32 {S(sT1)}, {S(sHS)}, {tile*112*1024}")
            ops.append((f"buffer_store_dwordx4 {V(e+4*a,4)}, {V(vL16)}, {S(SRD_WS,4)}, {S(sT1)} offen offset:{1024*a} sc1", ("h", tile)))
        return ops
    F = WK
    ONE4, DS_, DQ = WK + 84, WK + 88, WK + 92
    srd_ = [f"ds_read_b64_tr_b16 {V(F+4*ks+2*u,2)}, {V(vST)} offset:{ks*4096+u*512}" for ks in range(14) for u in range(2)]
    pend = af
    nrd = 0
    for n in range(opt("lead0", LEAD)):
        rd(nrd); nrd += 1
    stamp(27)
    cur[0] = 0
    PXL, CXL = opt("pxl", 10), opt("cxl", 28)
    LB = opt("leadb", 4)
    BUD, CVM, CST, CRD = opt("bud", 28), opt("cvm", 12), opt("cst", 24), opt("crd", 4)
    MINL = opt("minl", 5)
    for n, (half, q, ks) in enumerate(mf):
        tile = 2 * half + q
        d = V(ACC + 16 * tile, 16)
        assert NW1[0] > ks, "W1 fragment used before its load"
        k(f"v_mfma_f32_32x32x16_bf16 {d}, {V(W1R+4*ks,4)}, {A(AX+4*(n%NR),4)}, {d if ks else 0}")
        if n == 56 - SKA + 1:
            pend += epi(0)
        if n == 57:
            pend += epi(1)
        if n == 112 - SK + 1:
            pend += epi(2)
        b = BUD
        tags = [p[2] for p in k.lg]
        needw = ("f", n + 1) in tags
        if needw:
            b -= 4
        def newbar(m):
            return 14 * mf[m][0] + mf[m][2] // 2 >= ready[0]
        def may(m):
            return m < len(mf) and m <= n + (LB if m == 56 else LEAD)
        if n == PXL:
            apoll_load(F_X1[layer][1]); b -= CVM + 4
        if n == CXL:
            apoll_check()
            if nx[0] == 14 and ready[0] < 14:
                k.wait_tag_vm(("x", 13))
                ready[0] = 14
            k("s_barrier")
            stamp(28); b -= 20
        if n == opt("pollA", 110):
            poll_load(vPL2, vF2P, S(sFG)); b -= CVM
        if n == opt("flagA", 90):
            k.wait_tag_vm(("h", 1))
            gflag(layer, 0); b -= CVM + 12
        while may(nrd) and nrd <= n + MINL - 1:
            b -= 2 * CRD + (12 if newbar(nrd) else 0)
            rd(nrd); nrd += 1
        full = b >= BUD - 4
        if pend and isinstance(pend[0], tuple):
            if full or b >= CST:
                run(pend, 1); b -= CST
        elif full or b >= CVM + 4:
            if nx[0] < 14 and 3 * (nx[0] - NUP) <= n:
                dma(); b -= CVM + 4
            elif n >= CXL and nx[0] < 28 and opt("bstep", 2) * (nx[0] - 14 - opt("bburst", 1)) <= n - CXL:
                dma(); b -= CVM + 4
            elif layer == 0 and n >= lastw[0] + 3 and NW1[0] < 28:
                w1_load(); b -= CVM; lastw[0] = n
            elif layer == 0 and NW1[0] == 28 and NW2[0] < opt("w2g1", 28) and n >= lastw[0] + opt("w2step", 2) and (n < CXL - opt("w2gap", 8) or nx[0] == 28):
                if W2CHK[0]:
                    poll_check(WK + 96, WK + 97, 0)
                    W2CHK[0] = False
                w2_load(); b -= CVM; lastw[0] = n
        while True:
            if may(nrd) and b >= 2 * CRD and (nrd <= n + MINL + 1 or not pend or isinstance(pend[0], tuple)):
                b -= 2 * CRD + (12 if newbar(nrd) else 0)
                rd(nrd); nrd += 1
            elif pend and not isinstance(pend[0], tuple) and b >= 4:
                run(pend, 1); b -= 4
            elif nrd == len(mf) and len(srd_) > 12 and b >= CRD and n > 72:
                run(srd_, 1); b -= CRD
            else:
                break
        if needw:
            tags = [p[2] for p in k.lg]
            tgt = ("f", n + 2) if ("f", n + 2) in tags and rdat[n + 2] <= n - opt("wage", 3) else ("f", n + 1)
            idx = [i for i, t_ in enumerate(tags) if t_ == tgt]
            if idx:
                k.wait(lg=len(tags) - 1 - idx[-1])
        cur[0] = n + 1
        assert nrd > n + 1 or nrd == len(mf)
        if n % 8 == 0 or n == 111:
            fine(f"m{n}")
        if opt("g1st", 0) and n in (55, 83):
            stamp({55: 29, 83: 31}[n])
    assert not pend and nx[0] == 28 and NW1[0] == 28 and not W2CHK[0], (pend, nx, NW1)
    FREG[0] = 2
    fine("g1end")
    run(srd_, len(srd_) - 4)
    for i in range(4):
        k(f"v_mov_b32 {V(ONE4+i)}, {S(sONES)}")
    run(epi(3))
    fine("epi3")
    stamp(15)
    run(srd_)
    for h in range(2):
        for u in range(2):
            k(f"ds_read_b64_tr_b16 {V(G2RES+4*h+2*u,2)}, {V(vRES)} offset:{h*XHALF+u*512}")
    poll_check(vPL2, vF2P, S(sFG))
    fine("pollA")
    stamp(17)
    st = []
    for ks in range(14):
        st.append(f"v_mfma_f32_16x16x32_bf16 {V(DQ,4)}, {V(F+4*ks,4)}, {V(F+4*ks,4)}, {V(DQ,4) if ks else 0}")
        st.append(f"v_mfma_f32_16x16x32_bf16 {V(DS_,4)}, {V(ONE4,4)}, {V(F+4*ks,4)}, {V(DS_,4) if ks else 0}")
    vS, vQ, vT = DS_, ONE4, ONE4 + 1
    post = ["s_mov_b32 vcc_lo, 0x00100001", "s_mov_b32 vcc_hi, 0x10000100",
            f"v_cndmask_b32 {V(vQ)}, 0, {V(DQ)}, vcc"]
    for i in range(1, 4):
        post += ["s_lshl_b64 vcc, vcc, 1", f"v_cndmask_b32 {V(vQ)}, {V(vQ)}, {V(DQ+i)}, vcc"]
    post += [f"v_mov_b32 {V(vT)}, {V(vQ)}", f"v_mul_f32 {V(vS)}, {f2u(1.0/448)}, {V(vS)}", None,
             f"v_permlane32_swap_b32 {V(vQ)}, {V(vT)}", f"v_add_f32 {V(vQ)}, {V(vQ)}, {V(vT)}",
             f"v_mov_b32 {V(vT)}, {V(vQ)}", None, None,
             f"v_permlane16_swap_b32 {V(vQ)}, {V(vT)}", f"v_add_f32 {V(vQ)}, {V(vQ)}, {V(vT)}",
             f"v_mul_f32 {V(vQ)}, {f2u(1.0/448)}, {V(vQ)}",
             f"v_fma_f32 {V(vQ)}, -{V(vS)}, {V(vS)}, {V(vQ)}",
             f"v_max_f32 {V(vQ)}, 0, {V(vQ)}",
             f"v_add_f32 {V(vQ)}, {f2u(1e-5)}, {V(vQ)}",
             f"v_rsq_f32 {V(vQ)}, {V(vQ)}", None,
             f"v_mov_b32 {V(G2R)}, {V(vQ)}",
             f"v_mov_b32 {V(G2R+2)}, {V(vQ)}", None, None,
             f"v_mov_b32_dpp {V(G2R)}, {V(vQ)} row_ror:8 row_mask:0xf bank_mask:0xc",
             f"v_mov_b32_dpp {V(G2R+2)}, {V(vQ)} row_ror:8 row_mask:0xf bank_mask:0x3"]

    k.c("=== GEMM2")
    ring = [("a", AX + 4 * i) for i in range(8)] + [("v", WK + 64 + 4 * i) for i in range(5)]
    NR = opt("g2ring", 12)
    ring = ring[:NR]
    rn = lambda i: (V if ring[i % NR][0] == "v" else A)(ring[i % NR][1], 4)
    nl = [0]
    def ld():
        i = nl[0]
        nl[0] += 1
        half, s = divmod(i, 28)
        if s % 4 == 0:
            k(f"s_add_u32 {S(sT4)}, {S(sHL)}, {half*2*112*1024 + s*1024}")
        k(f"buffer_load_dwordx4 {rn(i)}, {V(vL16)}, {S(SRD_WS,4)}, {S(sT4)} offen offset:{1024*(s%4)} sc1" + (" nt" if opt("hnt", 0) else ""))
        if layer == 0 and NW2[0] < 28:
            w2_load()
    def red_write(half):
        return [f"ds_write_b128 {V(vRW)}, {V(ACC+32*half+4*G,4)} offset:{half*RED_H+G*RED_G}" for G in range(8)]
    def red_read(half):
        return [f"ds_read_b128 {V(ACC+32*half+8*w+4*g,4)}, {V(vRR)} offset:{half*RED_H+w*RED_W+512*g}" for w in range(4) for g in range(2)]
    def unpack(half, u):
        o = []
        for i in range(4):
            o.append(f"v_lshlrev_b32 {V(u+2*i)}, 16, {V(G2RES+4*half+i)}")
            o.append(f"v_and_b32 {V(u+2*i+1)}, {S(sHIM)}, {V(G2RES+4*half+i)}")
        return o
    UR = WK + 84
    def fin(half, pre):
        a = ACC + 32 * half
        u = UR
        ops = []
        def P(d, x, y):
            if pre:
                ops.append(f"v_pk_add_f32 {V(d,2)}, {V(x,2)}, {V(y,2)}")
            else:
                ops.extend(f"v_add_f32 {V(d+h)}, {V(x+h)}, {V(y+h)}" for h in range(2))
        for i in range(4):
            P(a + 2 * i, a + 2 * i, a + 8 + 2 * i)
        for i in range(4):
            P(a + 16 + 2 * i, a + 16 + 2 * i, a + 24 + 2 * i)
        for i in range(4):
            P(a + 2 * i, a + 2 * i, a + 16 + 2 * i)
        for i in range(4):
            if pre:
                ops.append(f"v_pk_fma_f32 {V(a+2*i,2)}, {V(a+2*i,2)}, {V(G2R+2*half,2)}, {V(u+2*i,2)} op_sel_hi:[1,0,1]")
            else:
                ops.extend(f"v_fma_f32 {V(a+2*i+h)}, {V(a+2*i+h)}, {V(G2R+2*half)}, {V(u+2*i+h)}" for h in range(2))
        for i in range(4):
            ops.append(f"v_cvt_pk_bf16_f32 {V(a+24+i)}, {V(a+2*i)}, {V(a+2*i+1)}")
        if layer == 0:
            ops += quad_shuffle([(a + 28, a + 24)])
            ops.append(f"s_mov_b32 {S(sT1)}, {hex(XQ + XQ_SZ + 8192*half)}")
            if half and not EARLY:
                ops.append(lambda: apoll_load(F_CIN1[0]))
            ops.append((f"buffer_store_dwordx4 {V(a+28,4)}, {V(vO)}, {S(SRD_WS,4)}, {S(sT1)} offen sc1", ("st", half)))
            so = stats_ops(a + 24, 4, a, a + 1, a + 2)
            if not pre:
                so = so[10:]
                for i in range(4):
                    ops.append(f"v_lshlrev_b32 {V(a+16+2*i)}, 16, {V(a+24+i)}")
                    ops.append(f"v_and_b32 {V(a+16+2*i+1)}, {S(sHIM)}, {V(a+24+i)}")
                ops.append(f"v_add_f32 {V(a)}, {V(a+16)}, {V(a+17)}")
                ops.append(f"v_mul_f32 {V(a+1)}, {V(a+16)}, {V(a+16)}")
                for i in range(1, 8):
                    if i > 1:
                        ops.append(f"v_add_f32 {V(a)}, {V(a)}, {V(a+16+i)}")
                    ops.append(f"v_fmac_f32 {V(a+1)}, {V(a+16+i)}, {V(a+16+i)}")
            ops += so
            def at():
                k(f"s_mov_b32 {S(sT1)}, {hex(STATS[1] + 8192*half)}")
                k("s_mov_b32 exec_lo, 0xff")
                k("s_mov_b32 exec_hi, 0xff")
                k(f"buffer_atomic_add_f32 {V(a)}, {V(vAT)}, {S(SRD_WS,4)}, {S(sT1)} offen sc1", tag=("st", half))
                k("s_mov_b64 exec, -1")
            ops.append(at)
        else:
            ops.append(f"s_mov_b32 {S(sT1)}, {1024*896*half}")
            ops.append(f"buffer_store_dwordx4 {V(a+24,4)}, {V(vO)}, {S(SRD_OUT,4)}, {S(sT1)} offen" + ("", " sc1", " nt", " sc0 sc1")[opt("osc", 0) if half or opt("osc", 0) < 10 else 0])
        return ops
    NUP2 = opt("nup2", NR)
    for i in range(NUP2):
        ld()
        run(st, (len(st) + NUP2 - i - 1) // (NUP2 - i))
        if i == opt("flagB", 6):
            k.wait_tag_vm(("h", 3))
            gflag(layer, 1)
    assert not st
    fine("up2")
    stamp(16)
    PB = opt("pollB", 7)
    TL = opt("tl", 4)
    order = [(i, dt) for i in range(56 - TL) for dt in range(2)] + [(i, dt) for dt in range(2) for i in range(56 - TL, 56)]
    pend = [None] * 8 + post + unpack(0, UR)
    okB = False
    flagE = layer == 1
    RATE = opt("finrate", 5)
    for n, (i, dt) in enumerate(order):
        half, s = divmod(i, 28)
        d = V(ACC + 32 * half + 16 * dt, 16)
        assert NW2[0] + 28 > s * 2 + dt, "W2 fragment used before its load"
        k(f"v_mfma_f32_32x32x16_bf16 {d}, {A((s*2+dt)*4,4)}, {rn(i)}, {d if s else 0}")
        if dt == 1 and i < 56 - TL:
            if i == 12:
                assert not pend
                bar()
            if i + NUP2 == opt("flagB", 6):
                k.wait_tag_vm(("h", 3))
                gflag(layer, 1)
            if i == PB:
                poll_load(vPL2, vF2P, S(sFG), GB)
            if nl[0] == 28 and not okB and i > PB and (i >= opt("chkB", 99) or not any(f"v{vPL2}" in p[0] for p in k.vm[1:])):
                poll_check(vPL2, vF2P, S(sFG), GB)
                okB = True
            if i in (13, 27, 41):
                stamp({13: 8, 27: 23, 41: 26}[i])
            if i == opt("red0", 29):
                for o in red_write(0):
                    pend += [o] + [None] * (opt("rwg", RATE) - 1)
                pend += [None] * opt("rw2", 5) + [bar]
                for o in red_read(0):
                    pend += [o] + [None] * opt("rrg", 1)
                pend += [None] * opt("rr2", RATE) + fin(0, False) + unpack(1, UR)
        assert i < 56 - TL or nl[0] == 56
        if nl[0] < 56 and nl[0] - NR < i + dt and (nl[0] < 28 or okB):
            ld()
        c = 0
        while pend and c < (3 if i < 28 else RATE) - (opt("ldc", 0) if dt and nl[0] < 56 and pend[0] is not None and c else 0) and not (layer and nl[0] < 56 and "buffer_store" in str(pend[0])):
            run(pend, 1)
            c += 1
        if n == opt("flagE", 109) and layer == 0:
            assert not any("atomic" in str(o) or callable(o) for o in pend)
            k.wait_tag_vm(("st", 0))
            k("s_barrier")
            aflag(F_CIN1[0])
            flagE = True
        if EARLY and layer == 0 and n == opt("pollE", 108):
            assert flagE
            apoll_load(F_CIN1[0])
        if n % 10 == 1:
            fine(f"m{n}")
        if n == 112 - TL - 1:
            assert not pend
            pend += ["s_nop 3"] + [None] * (RATE - 1) + ["s_nop 3"] + [None] * (RATE - 1)
            for o in red_write(1)[:4]:
                pend += [o] + [None] * (RATE - 1)
    run(pend)
    assert nl[0] == 56 and okB
    stamp(18)
    run(red_write(1)[4:])
    if not flagE:
        k.wait_tag_vm(("st", 0))
    if EARLY == 1 and layer == 0:
        apoll_check()
    bar()
    if not flagE:
        aflag(F_CIN1[0])
    fine("bar")
    run(red_read(1))
    if EARLY == 1 and layer == 0:
        run(conv_load_ops(1, 0, WK))
    o = fin(1, True)
    if EARLY == 2 and layer == 0:
        run(o, [i for i, x in enumerate(o) if isinstance(x, tuple)][0])
        apoll_check()
        k("s_barrier")
        run(conv_load_ops(1, 0, WK))
    run(o)
    fine("out")
    stamp(19)

def finish():
    if ENC >= 0:
        k.wait(vm=0)
        stamp(22)
        k(f"s_cmp_lg_u32 {S(sWG)}, 100")
        k("s_cbranch_scc1 L_end")
        k("s_sub_u32 s47, s47, s46" if ENC else "s_sub_u32 s47, s46, s46")
        k("s_mul_i32 s47, s47, 100")
        k("s_min_u32 s47, s47, 1000000")
        k(f"s_memrealtime {S(sTM,2)}")
        k.wait(lg=0)
        k(f"s_mov_b32 s46, {S(sTM)}")
        k.label("L_spin")
        k(f"s_memrealtime {S(sTM,2)}")
        k.wait(lg=0)
        k(f"s_sub_u32 {S(sT0)}, {S(sTM)}, s46")
        k(f"s_cmp_lt_u32 {S(sT0)}, s47")
        k("s_cbranch_scc1 L_spin")
    if DIAG:
        k.wait(vm=0)
        stamp(22)
        for n, (name, r) in enumerate(FINE):
            k(f"v_writelane_b32 {V(vSTAMP)}, s{r}, {20 + n}")
        k(f"v_writelane_b32 {V(vSTAMP)}, s101, 61")
        k.raw("; SITES " + " ".join(SITES))
        if FINE:
            k.raw("; FINE " + " ".join(n for n, _ in FINE))
        k(f"s_lshl_b32 {S(sT0)}, {S(sWG)}, 10")
        k(f"s_add_u32 {S(sT0)}, {S(sT0)}, {hex(STAMP)}")
        k(f"v_lshlrev_b32 {V(WK)}, 2, {V(vTID)}")
        k(f"buffer_store_dword {V(vSTAMP)}, {V(WK)}, {S(SRD_WS,4)}, {S(sT0)} offen")
    k.label("L_end")
    k("s_endpgm")

prologue()
main_start()
kgen()
conv(0)
ffn(0)
layer_turn()
conv(1)
ffn(1)
finish()
LAY[0] = 0
helper()
body = list(k.lines) + SLOW
body += [".p2align 4", ".type L_table,@object", "L_table:"]
body += [".long " + ",".join(hex(w) for w in r) for r in table_words()]
body += ["L_table_end:"]

ref = open("cdna_kernels/%s.s.ref" % NAME).read().splitlines()
hdr = [l for l in ref if l.startswith(";") and "@launch" not in l]
head = f""".amdgcn_target "amdgcn-amd-amdhsa--gfx950"
.text
.globl {NAME}_kernel
.p2align 8
.type {NAME}_kernel,@function
{NAME}_kernel:
"""
if opt("align", 1):
    body = align(body, head, stubs=stub_targets())
out = "\n".join(hdr) + f"\n; @launch grid=(256,1,1) block=(256,1,1) lds={LDS_BYTES}\n"
out += head + "\n".join(body) + "\n"
out += f""".section .rodata,"a"
.p2align 6
.amdhsa_kernel {NAME}_kernel
  .amdhsa_next_free_vgpr 512
  .amdhsa_next_free_sgpr 102
  .amdhsa_accum_offset 256
  .amdhsa_group_segment_fixed_size 0
  .amdhsa_kernarg_size 120
  .amdhsa_user_sgpr_count 2
  .amdhsa_user_sgpr_kernarg_segment_ptr 1
  .amdhsa_system_sgpr_workgroup_id_x 1
.end_amdhsa_kernel
"""
dst = [a for a in sys.argv[1:] if not a.startswith("--")]
dst = dst[0] if dst else "cdna_kernels/%s.s" % NAME
open(dst, "w").write(out)
print("instructions:", k.nins, "->", dst)
```

```python
import sys, struct
from emit import Asm, V, A, S
from align import align

NAME = "interleave_layers__ssm_conv_s4__dense_activation_relu__prompt"
DIAG = "--diag" in sys.argv
OPT = {"pe.0": 142, "pxl.0": 18, "cxl.0": 36, "pxl.1": 13, "cxl.1": 31, "pollB.0": 8, "pollB.1": 7, "bud3.0": 36}
for a in sys.argv:
    if a.startswith("--") and "=" in a:
        n, v = a[2:].split("=")
        OPT[n] = int(v)
LAY = [0]
def opt(n, d):
    return OPT.get(f"{n}.{LAY[0]}", OPT.get(n, d))

def f2u(x):
    return "0x%08x" % struct.unpack("<I", struct.pack("<f", x))[0]

GL, AL = opt("gl", 5), opt("al", 0)
FA = (lambda n: 0x8000 + 4 * n if n else 0) if AL else (lambda n: n * 0x8000)
F_CIN0, F_X1, F_CIN1 = 0, ((1, 2), (5, 6)), (3, 4)
FLG_G = 0x8000 + (2048 << AL if AL else 0x30000)
FAST = opt("fast", 1)
PQ = 1024 << GL
ZEND = FLG_G + (PQ if FAST else 0) + (1024 << GL if GL else 0x10000) + 0x8000
STATS = (0x1804000, ZEND - 0x8000)
XQ = 0x1820000
XQ_SZ = 0x1C0000
X1T = 0x3E0000
HB = 0x760000
H_SZ = 0x700000
W1C = 0x1560000
FLG_W = ZEND - 0x4000
STAMP = 0x1700000
W2T = 0x1740000
WS_BYTES = 0x1BA0000

XHALF = 57344 + 32
SCR = 114816
SCR_ST = 8960
KC0 = 4608
ROW_ST = 544
UARR = SCR + 4 * SCR_ST
U_ST = 4576
LDS_BYTES = 163840
WREG = 28672
RED_G = 1152
RED_W = 8 * RED_G
RED_H = 4 * RED_W

sWG, sW = 2, 3
SRD_WS, SRD_OUT, SRD_W1, SRD_W2, SRD_X0, SRD_DBG = 4, 8, 12, 16, 20, 24
sCP, sGAM, sJ, sHH, sDS, sROT = 58, 59, 60, 61, 62, 63
sONES, sHIM = 64, 65
sT0, sT1, sT2, sT3, sT4, sT5 = 66, 67, 68, 69, 70, 71
sLDT, sDSK = 72, 73
sREP, sXQi, sW2B, sXT, sHL, sHS, sFG = 74, 75, 76, 77, 78, 79, 80
sSPIN = 81
sC0, sC1 = 82, 83
sPC = 84
sTM = 86
sWL = 88
sW2O = 89
sSCR, sSCH = 90, 95
sPERM0, sPERM1 = 91, 92
sNH, sCH = 93, 94
sXS = 100
sLDT2 = 99
sFP = 98
sKO = 28
sW2L, sPA = 96, 97

vTID, vL, vL16 = 0, 1, 2
vCX, vUW, vXW = 3, 4, 5
vKF = 6
vUF, vXR, vCO, vEXW, vEXR = 10, 11, 12, 13, 14
vFW, vFP, vONE, vSTAMP, vPA = 15, 16, 17, 18, 19
vXA0, vXA1, vST, vRES, vRW, vRR, vO, vAT, vF2P, vFL, vHL, vPL2 = range(20, 32)
vW2S, vW2R, vWF, vDUM = 20, 21, 23, 26
LIN = 20
WK = 32
W1R = 144
AX = 224

k = Asm()
SPIN_MAX = 1 << 16

ENC = opt("enc", -1)
def stamp(idx, cyc=False):
    if ENC >= 0 and not cyc and idx + 32 * LAY[0] in (0, ENC):
        k.wait(lg=0)
        k(f"s_memrealtime {S(sTM,2)}")
        k.wait(lg=0)
        k(f"s_mov_b32 {S(46 if idx + 32*LAY[0] == 0 else 47)}, {S(sTM)}")
    if not DIAG:
        return
    if opt("lite", 0) and idx + 32 * LAY[0] not in (0, 9, 14, 19, 46, 54):
        return
    k.wait(lg=0)
    k(f"{'s_memtime' if cyc != bool(opt('cyc', 0)) else 's_memrealtime'} {S(sTM,2)}")
    k.wait(lg=0)
    k(f"v_writelane_b32 {V(vSTAMP)}, {S(sTM)}, {idx + 32*LAY[0]}")

FINE = []
def fine(name):
    if not DIAG or opt("fine", 0) != FREG[0] or opt("finel", 1) != LAY[0]:
        return
    regs = list(range(28, 46, 2)) + [12, 14, 20, 22, 48, 50, 54, 56] + ([] if FREG[0] == 4 else [24, 26])
    r = regs[len(FINE)]
    FINE.append((name, r))
    k.raw(f"    s_memtime s[{r}:{r+1}]")
FREG = [0]

def srd(base, ptr, nbytes):
    k(f"s_mov_b32 {S(base)}, {S(ptr)}")
    k(f"s_and_b32 {S(base+1)}, {S(ptr+1)}, 0xffff")
    k(f"s_mov_b32 {S(base+2)}, {hex(nbytes)}")
    k(f"s_mov_b32 {S(base+3)}, 0x20000")

_lab = [0]
def newlab(p):
    _lab[0] += 1
    return f"L_{p}_{_lab[0]}"

def branch(op, lab):
    k.fence(1)
    k(f"{op} {lab}")

def label(lab):
    k.fence()
    k.label(lab)

def poll_load(vtmp, vaddr, soff, off=0, srdn=SRD_WS):
    k(f"buffer_load_dword {V(vtmp)}, {V(vaddr)}, {S(srdn,4)}, {soff} offen offset:{off} sc1")

PRECMP = [None]
def precmp(vtmp):
    if opt("pre", 1):
        k(f"v_cmp_eq_u32 vcc, 0, {V(vtmp)}")
        PRECMP[0] = vtmp
SLOW = []
SITES = []
def poll_check(vtmp, vaddr, soff, off=0, srdn=SRD_WS, pre=(), alt=None):
    sl, lp, ok = newlab("slow"), newlab("poll"), newlab("ok")
    if PRECMP[0] != vtmp:
        k(f"v_cmp_eq_u32 vcc, 0, {V(vtmp)}")
    PRECMP[0] = None
    k(f"s_cbranch_vccnz {sl}")
    k.label(ok)
    import inspect
    SITES.append(inspect.stack()[2 if inspect.stack()[1].function == "apoll_check" else 1].function + str(LAY[0]))
    slp = opt("sl_" + SITES[-1], opt("sleep", 0))
    if opt("pipe", 3) and vaddr == vFP:
        ld_ = lambda r: f"    buffer_load_dword {V(r)}, {V(vaddr)}, {S(srdn,4)}, {soff} offen offset:{off} sc1"
        SLOW.extend([f"{sl}:"] + ([f"    s_bitset1_b32 s101, {len(SITES)-1}"] if DIAG else []) +
                    [ld_(vtmp), f"    s_mov_b32 {S(sSPIN)}, 0", f"    s_sleep {opt('pipe', 3)}", f"{lp}:",
                     ld_(vTID), f"    s_add_u32 {S(sSPIN)}, {S(sSPIN)}, 1", "    s_waitcnt vmcnt(1)",
                     f"    v_cmp_eq_u32 vcc, 0, {V(vtmp)}", f"    s_cmp_gt_u32 {S(sSPIN)}, {SPIN_MAX}",
                     f"    s_cbranch_vccz {ok}",
                     ld_(vtmp), "    s_waitcnt vmcnt(1)",
                     f"    v_cmp_eq_u32 vcc, 0, {V(vTID)}",
                     f"    s_cbranch_scc1 {ok}",
                     f"    s_cbranch_vccnz {lp}",
                     f"    s_branch {ok}"])
        return
    SLOW.extend([f"{sl}:"] + ([f"    s_bitset1_b32 s101, {len(SITES)-1}"] if DIAG else []) +
                ([f"    s_mov_b32 {S(sSPIN)}, 0",
                  f"{lp}q:",
                  f"    buffer_load_dword {V(vtmp)}, {V(vaddr)}, {S(srdn,4)}, {soff} offen offset:{off} sc1",
                  f"    s_add_u32 {S(sSPIN)}, {S(sSPIN)}, 1",
                  "    s_waitcnt vmcnt(0)",
                  f"    v_cmp_eq_u32 vcc, 0, {V(vtmp)}",
                  f"    s_cmp_lt_u32 {S(sSPIN)}, 10",
                  f"    s_cbranch_vccz {ok}",
                  f"    s_cbranch_scc1 {lp}q"] if alt else []) +
                ["    " + p for p in pre] +
                [f"    s_mov_b32 {S(sSPIN)}, 0",
                 f"{lp}:"] +
                ([f"    s_sleep {slp}"] if slp else []) +
                [f"    buffer_load_dword {V(vtmp)}, {V(vaddr)}, {S(srdn,4)}, {soff} offen offset:{off} sc1",
                 f"    s_add_u32 {S(sSPIN)}, {S(sSPIN)}, 1"] +
                ([f"    buffer_load_dword {V(alt[0])}, {V(vaddr)}, {S(srdn,4)}, {alt[1]} offen offset:{off} sc1"] if alt else []) +
                ["    s_waitcnt vmcnt(0)"] +
                ([f"    v_or_b32 {V(vtmp)}, {V(vtmp)}, {V(alt[0])}"] if alt else []) +
                [
                 f"    v_cmp_eq_u32 vcc, 0, {V(vtmp)}",
                 f"    s_cmp_gt_u32 {S(sSPIN)}, {SPIN_MAX}",
                 f"    s_cbranch_scc1 {ok}",
                 f"    s_cbranch_vccnz {lp}",
                 f"    s_branch {ok}"])

def run(ops, n=None):
    c = 0
    while ops and (n is None or c < n):
        o = ops.pop(0)
        if callable(o):
            o()
        elif isinstance(o, tuple):
            k(o[0], tag=o[1])
        elif o is not None:
            k(o)
        c += 1

def stats_ops(P, n, vS, vQ, vT):
    o = [f"v_mov_b32 {V(vS)}, 0", f"v_mov_b32 {V(vQ)}, 0"]
    for i in range(n):
        o.append(f"v_dot2c_f32_bf16 {V(vS)}, {S(sONES)}, {V(P+i)}")
        o.append(f"v_dot2c_f32_bf16 {V(vQ)}, {V(P+i)}, {V(P+i)}")
    o += [f"v_permlane32_swap_b32 {V(vS)}, {V(vQ)}",
          f"v_add_f32 {V(vS)}, {V(vS)}, {V(vQ)}",
          f"v_mov_b32 {V(vT)}, {V(vS)}",
          f"v_permlane16_swap_b32 {V(vS)}, {V(vT)}",
          f"v_add_f32 {V(vS)}, {V(vS)}, {V(vT)}",
          f"v_add_f32_dpp {V(vS)}, {V(vS)}, {V(vS)} row_ror:8 row_mask:0xf bank_mask:0xf",
          f"v_lshrrev_b32 {V(vT)}, 1, {V(vS)}",
          f"v_add_u32 {V(vQ)}, {hex(8 << 23)}, {V(vS)}",
          f"v_add_u32 {V(vT)}, {hex(0x1FC00000 + (13 << 23))}, {V(vT)}",
          f"v_permlane32_swap_b32 {V(vT)}, {V(vQ)}",
          f"v_and_b32 {V(vQ)}, 0x7f800000, {V(vQ)}",
          f"v_mul_f32 {V(vQ)}, 0x3fc00000, {V(vQ)}",
          f"v_add_f32 {V(vS)}, {V(vS)}, {V(vQ)}",
          f"v_sub_f32 {V(vS)}, {V(vS)}, {V(vQ)}"]
    return o

def quad_shuffle(pairs):
    D = " row_mask:0xf bank_mask:0xf"
    o = ["s_mov_b32 vcc_lo, 0x0f0f0f0f", "s_mov_b32 vcc_hi, 0x0f0f0f0f"]
    for d, s in pairs:
        o.append(f"v_cndmask_b32_dpp {V(d)}, {V(s+2)}, {V(s)}, vcc row_ror:4" + D)
        o.append(f"v_cndmask_b32_dpp {V(d+2)}, {V(s+3)}, {V(s+1)}, vcc row_ror:4" + D)
    o.append("s_not_b64 vcc, vcc")
    for d, s in pairs:
        o.append(f"v_cndmask_b32_dpp {V(d+1)}, {V(s)}, {V(s+2)}, vcc row_ror:12" + D)
        o.append(f"v_cndmask_b32_dpp {V(d+3)}, {V(s+1)}, {V(s+3)}, vcc row_ror:12" + D)
    return o

X0R = WK
X0O = WK + 8
vP0A = WK + 16
vP0S = WK + 20
vGO = WK + 28

def p0x_addr():
    k.c("row re-layout unit of this wave: W = 4m+w, octet group a = W%7, rows (blk, j2) = W/7, both hh8")
    t = vP0A
    k(f"s_sub_u32 {S(sT0)}, {S(sWG)}, 32")
    k(f"s_lshl2_add_u32 {S(sT0)}, {S(sT0)}, {S(sW)}")
    k(f"s_mul_i32 {S(sT1)}, {S(sT0)}, 9363")
    k(f"s_lshr_b32 {S(sT1)}, {S(sT1)}, 16")
    k(f"s_mul_i32 {S(sT2)}, {S(sT1)}, 7")
    k(f"s_sub_u32 {S(sT0)}, {S(sT0)}, {S(sT2)}")
    k(f"s_lshr_b32 {S(sT2)}, {S(sT1)}, 2")
    k(f"s_lshl_b32 {S(sT2)}, {S(sT2)}, 6")
    k(f"s_and_b32 {S(sT3)}, {S(sT1)}, 3")
    k(f"s_lshl1_add_u32 {S(sT2)}, {S(sT3)}, {S(sT2)}")
    k(f"v_and_b32 {V(t+1)}, 0x30, {V(vL16)}")
    k(f"v_bfe_u32 {V(t)}, {V(vL)}, 2, 1")
    k(f"v_add3_u32 {V(t+3)}, {V(t+1)}, {V(t)}, {S(sT2)}")
    k(f"v_mul_u32_u24 {V(t+3)}, 896, {V(t+3)}")
    k(f"v_lshrrev_b32 {V(t+2)}, 3, {V(vL)}")
    k(f"v_lshl_add_u32 {V(t+3)}, {V(t+2)}, 4, {V(t+3)}")
    k(f"s_lshl_b32 {S(sT2)}, {S(sT0)}, 7")
    k(f"v_add_u32 {V(t+3)}, {S(sT2)}, {V(t+3)}")
    k(f"v_lshl_add_u32 {V(t)}, {V(t)}, 2, {V(t+1)}")
    k(f"v_lshrrev_b32 {V(t+2)}, 5, {V(vL)}")
    k(f"v_lshl_add_u32 {V(t)}, {V(t+2)}, 3, {V(t)}")
    k(f"s_lshl_b32 {S(sT2)}, {S(sT1)}, 7")
    k(f"v_add_u32 {V(t)}, {S(sT2)}, {V(t)}")
    k(f"v_lshrrev_b32 {V(t+2)}, 2, {V(vL)}")
    k(f"v_lshl_add_u32 {V(t+1)}, {V(t+2)}, 14, {V(t+1)}")
    k(f"s_lshl_b32 {S(sT0)}, {S(sT0)}, 18")
    k(f"s_lshl_b32 {S(sT1)}, {S(sT1)}, 7")
    k(f"s_add_u32 {S(sT0)}, {S(sT0)}, {S(sT1)}")
    k(f"v_add_u32 {V(t+1)}, {S(sT0)}, {V(t+1)}")

def p0x_loads():
    k(f"s_movk_i32 {S(sT0)}, {8*896}")
    k(f"buffer_load_dwordx4 {V(X0R,4)}, {V(vP0A+3)}, {S(SRD_X0,4)}, 0 offen")
    k(f"buffer_load_dwordx4 {V(X0R+4,4)}, {V(vP0A+3)}, {S(SRD_X0,4)}, {S(sT0)} offen")

def p0x_body():
    t = vP0A
    if opt("goearly", 0):
        k.wait(vm=len(k.vm) - 2)
        poll_load(vGO, vGO + 3, 0, 0, SRD_DBG)
    run(quad_shuffle([(X0O + 4 * a, X0R + 4 * a) for a in range(2)]))
    k(f"s_mov_b32 {S(sT0)}, {hex(XQ)}")
    for a in range(2):
        k(f"buffer_store_dwordx4 {V(X0O+4*a,4)}, {V(t+1)}, {S(SRD_WS,4)}, {S(sT0)} offen offset:{64*a} sc1")
    s0 = stats_ops(X0R, 4, vP0S, vP0S + 1, vP0S + 2)
    s1 = stats_ops(X0R + 4, 4, vP0S + 4, vP0S + 5, vP0S + 6)
    while s0:
        run(s0, 1)
        run(s1, 1)

def p0x_atomics():
    poll_check(vGO, vGO + 3, 0, 0, SRD_DBG)
    k(f"s_mov_b32 {S(sT0)}, {hex(STATS[0])}")
    k("s_mov_b32 exec_lo, 0xff")
    k("s_mov_b32 exec_hi, 0xff")
    for a in range(2):
        k(f"buffer_atomic_add_f32 {V(vP0S+4*a)}, {V(vP0A)}, {S(SRD_WS,4)}, {S(sT0)} offen offset:{64*a} sc1", tag="st")
    k("s_mov_b64 exec, -1")
    poll_load(vGO, vGO + 2, 0, 128, SRD_DBG)
    if opt("warmat", 0) == 3:
        warm_loads()

def flag_all(off):
    k(f"s_mov_b32 {S(sT0)}, {hex(off)}")
    k(f"s_mov_b64 exec, 3")
    k(f"buffer_store_dword {V(vONE)}, {V(vFW)}, {S(SRD_WS,4)}, {S(sT0)} offen sc1")
    k(f"s_mov_b64 exec, -1")

ND = [0]
def w2_dma():
    d = ND[0]
    ND[0] += 1
    if opt("abl", 0) & 2:
        return
    if opt("rot", 1):
        if d == 0:
            k(f"s_and_b32 {S(sROT)}, {S(sWG)}, 7")
            k(f"s_min_u32 {S(sROT)}, {S(sROT)}, 6")
            k(f"s_mul_i32 {S(sXS)}, {S(sW)}, {WREG}")
        elif d % 4 == 0:
            k(f"s_add_u32 {S(sROT)}, {S(sROT)}, 1")
            k(f"s_cmp_eq_u32 {S(sROT)}, 7")
            k(f"s_cselect_b32 {S(sROT)}, 0, {S(sROT)}")
        if d % 4 == 0:
            k(f"s_lshl_b32 {S(sT4)}, {S(sROT)}, 12")
            k(f"s_add_u32 m0, {S(sT4)}, {S(sXS)}")
            k(f"s_mul_i32 {S(sW2O)}, {S(sT4)}, 7")
            k(f"s_add_u32 {S(sW2O)}, {S(sW2O)}, {S(sW2B)}")
        else:
            k(f"s_add_u32 {S(sW2O)}, {S(sW2O)}, {7168 - 1024}")
        k(f"buffer_load_dwordx4 {V(vW2S)}, {S(SRD_W2,4)}, {S(sW2O)} offen offset:{1024*(d%4)} lds", tag=("w2", d))
        return
    if d == 0:
        k(f"s_mul_i32 {S(sT4)}, {S(sW)}, {WREG}")
        k(f"s_mov_b32 m0, {S(sT4)}")
    elif d % 4 == 0:
        k(f"s_add_u32 m0, m0, 4096")
    if d:
        k(f"s_add_u32 {S(sW2B)}, {S(sW2B)}, {7168 - 1024 + (4096 if d % 4 == 0 else 0)}")
    k(f"buffer_load_dwordx4 {V(vW2S)}, {S(SRD_W2,4)}, {S(sW2B)} offen offset:{1024*(d%4)} lds", tag=("w2", d))

NW2 = [0]
def w2_load():
    n = NW2[0]
    NW2[0] += 1
    if opt("abl", 0) & 4:
        return
    k(f"buffer_load_dwordx4 {A(112+4*n,4)}, {V(vL16)}, {S(SRD_WS,4)}, {S(sW2L)} offen offset:{1024*(n%4)} sc1")
    if n % 4 == 3:
        k(f"s_add_u32 {S(sW2L)}, {S(sW2L)}, 4096")

def w2_tr_ops(lo, hi):
    return [f"ds_read_b64_tr_b16 {A((s*2+dt)*4+2*u,2)}, {V(vW2R+dt)} offset:{(s%14)*2048+u*1024}"
            for s in range(lo, hi) for dt in range(2) for u in range(2)]

NW1 = [0]
def w1_load():
    ks = NW1[0]
    NW1[0] += 1
    if opt("abl", 0) & 1:
        return
    k(f"buffer_load_dwordx4 {V(W1R+4*ks,4)}, {V(vL16)}, {S(SRD_WS,4)}, {S(sWL)} offen offset:{1024*(ks%4)} sc1")
    if ks % 4 == 3:
        k(f"s_add_u32 {S(sWL)}, {S(sWL)}, 4096")

def prologue():
    k(f"s_getpc_b64 {S(sPC,2)}")
    k.label("L_pc")
    k(f"s_cmp_ge_u32 {S(sWG)}, 256")
    k("s_cbranch_scc1 L_end")
    k("s_load_dwordx16 s[28:43], s[0:1], 0")
    k("s_load_dwordx8 s[44:51], s[0:1], 64")
    k("s_load_dwordx4 s[52:55], s[0:1], 96")
    k("s_load_dwordx2 s[56:57], s[0:1], 112")
    k.c("wave 0 of helpers 8..31 pulls a third of the code into L2")
    k(f"s_sub_u32 {S(sT0)}, {S(sWG)}, 8")
    k(f"s_cmp_ge_u32 {S(sT0)}, 24")
    k("s_cbranch_scc1 L_nopf")
    k(f"v_cmp_gt_u32 vcc, 64, {V(vTID)}")
    k(f"s_lshr_b32 {S(sT0)}, {S(sT0)}, 3")
    k(f"s_lshl_b32 {S(sT0)}, {S(sT0)}, 7")
    k(f"v_mul_u32_u24 {V(vL16)}, 384, {V(vTID)}")
    k(f"v_add_u32 {V(vL16)}, {S(sT0)}, {V(vL16)}")
    k("s_cbranch_vccz L_nopf")
    for q in range(2):
        k(f"v_min_u32 {V(vL16)}, L_table_end-L_pc-4, {V(vL16)}")
        k(f"global_load_dword {V(vDUM)}, {V(vL16)}, {S(sPC,2)}")
        k.vm = []
        if q == 0:
            k(f"v_add_u32 {V(vL16)}, {64*384}, {V(vL16)}")
    k.label("L_nopf")
    k(f"v_lshrrev_b32 {V(vONE)}, 6, {V(vTID)}")
    k(f"v_and_b32 {V(vL)}, 63, {V(vTID)}")
    k(f"v_readfirstlane_b32 {S(sW)}, {V(vONE)}")
    k(f"v_lshlrev_b32 {V(vL16)}, 4, {V(vL)}")
    k(f"v_mov_b32 {V(vONE)}, 1")
    if DIAG:
        k(f"v_mov_b32 {V(vSTAMP)}, 0")
        k("s_mov_b32 s101, 0")
    k(f"s_mov_b32 {S(sONES)}, 0x3f803f80")
    k(f"s_mov_b32 {S(sHIM)}, 0xffff0000")
    k(f"s_sub_u32 {S(sT0)}, {S(sWG)}, 32")
    k(f"s_and_b32 {S(sT1)}, {S(sT0)}, 7")
    k(f"s_lshr_b32 {S(sT0)}, {S(sT0)}, 3")
    k(f"s_mul_i32 {S(sCP)}, {S(sT1)}, 28")
    k(f"s_add_u32 {S(sCP)}, {S(sCP)}, {S(sT0)}")
    k(f"s_cmp_ge_u32 {S(sT0)}, 14")
    k(f"s_cselect_b32 {S(sT2)}, 1, 0")
    k(f"s_cselect_b32 {S(sT3)}, 14, 0")
    k(f"s_lshl_b32 {S(sGAM)}, {S(sT1)}, 1")
    k(f"s_add_u32 {S(sGAM)}, {S(sGAM)}, {S(sT2)}")
    k(f"s_sub_u32 {S(sJ)}, {S(sT0)}, {S(sT3)}")
    k(f"s_and_b32 {S(sHH)}, {S(sJ)}, 1")
    k(f"s_lshr_b32 {S(sDS)}, {S(sJ)}, 1")
    k(f"s_and_b32 {S(sNH)}, {S(sW)}, 1")
    k(f"s_lshr_b32 {S(sCH)}, {S(sW)}, 1")
    k(f"s_lshl_b32 {S(sREP)}, {S(sT1)}, 12")
    k(f"s_lshl_b32 {S(sT0)}, {S(sW)}, 13")
    k(f"s_lshl4_add_u32 {S(sT0)}, {S(sWG)}, {S(sT0)}")
    k(f"v_lshl_add_u32 {V(vFW)}, {V(vL)}, 12, {S(sT0)}")
    p0x_addr()
    k(f"v_and_b32 {V(vGO+1)}, 12, {V(vL)}")
    k(f"v_and_b32 {V(vGO+2)}, 4, {V(vL)}")
    k(f"v_mov_b32 {V(vGO+3)}, 0")
    k(f"s_lshl_b32 {S(sT0)}, {S(sCP)}, 10")
    k(f"v_lshl_add_u32 {V(PRM+6)}, {V(vTID)}, 2, {S(sT0)}")
    k.wait(lg=0)
    srd(SRD_X0, 28, 2048 * 896)
    srd(SRD_WS, 56, WS_BYTES)
    srd(SRD_DBG, 54, 256)
    stamp(0)
    if DIAG:
        pass
    k(f"s_cmp_ge_u32 {S(sWG)}, 32")
    branch("s_cbranch_scc1", "L_main")
    z = HZ
    for i in range(4):
        k(f"v_mov_b32 {V(z+i)}, 0")
    k(f"s_lshl_b32 {S(sT5)}, {S(sWG)}, 7")
    k(f"s_add_u32 {S(sT5)}, {S(sT5)}, {hex(FLG_W)}")
    l1, l2 = newlab("h1"), newlab("h2")
    k(f"s_cmp_lt_u32 {S(sWG)}, 28")
    branch("s_cbranch_scc1", l1)
    k(f"s_sub_u32 {S(sT2)}, {S(sWG)}, 28")
    k(f"s_lshl2_add_u32 {S(sT0)}, {S(sT2)}, {S(sW)}")
    k(f"s_mul_i32 {S(sT0)}, {S(sT0)}, {(ZEND - 0x8000) // 16}")
    k(f"s_add_u32 {S(sT0)}, {S(sT0)}, 0x8000")
    k(f"s_add_u32 {S(sT1)}, {S(sT0)}, {(ZEND - 0x8000) // 16}")
    lz = newlab("z")
    label(lz)
    for i in range(2):
        k(f"buffer_store_dwordx4 {V(z,4)}, {V(vL16)}, {S(SRD_WS,4)}, {S(sT0)} offen offset:{1024*i} sc1")
    k(f"s_add_u32 {S(sT0)}, {S(sT0)}, 2048")
    k(f"s_cmp_lt_u32 {S(sT0)}, {S(sT1)}")
    k(f"s_cbranch_scc1 {lz}")
    k(f"s_lshl_b32 {S(sT0)}, {S(sT2)}, 2")
    k.wait(vm=0)
    k("s_barrier")
    k(f"s_cmp_lg_u32 {S(sW)}, 1")
    branch("s_cbranch_scc1", "L_end2")
    k("s_mov_b64 exec, 1")
    k(f"buffer_store_dword {V(vONE)}, {V(z)}, {S(SRD_DBG,4)}, {S(sT0)} offen offset:192 sc1")
    k("s_mov_b64 exec, -1")
    branch("s_branch", "L_end2")
    label(l1)
    k.forget()
    k(f"s_cmp_gt_u32 {S(sWG)}, 2")
    branch("s_cbranch_scc1", "L_helper")
    k(f"s_lshl2_add_u32 {S(sT0)}, {S(sWG)}, {S(sW)}")
    k(f"s_lshl_b32 {S(sT0)}, {S(sT0)}, 12")
    k(f"s_cmp_eq_u32 {S(sWG)}, 0")
    k(f"s_cselect_b32 {S(sT1)}, {hex(STATS[0] + 0x4000)}, 0")
    k(f"s_cselect_b32 {S(sT2)}, 0, 124")
    k(f"s_add_u32 {S(sT0)}, {S(sT0)}, {S(sT1)}")
    k(f"s_sub_u32 {S(sT0)}, {S(sT0)}, 0x4000")
    for i in range(4):
        k(f"buffer_store_dwordx4 {V(z,4)}, {V(vL16)}, {S(SRD_WS,4)}, {S(sT0)} offen offset:{1024*i} sc1")
    k(f"s_lshl2_add_u32 {S(sT0)}, {S(sWG)}, {S(sT2)}")
    stamp(4)
    k.wait(vm=0)
    k("s_barrier")
    stamp(5)
    k(f"s_cmp_lg_u32 {S(sW)}, 2")
    branch("s_cbranch_scc1", "L_helper")
    k("s_mov_b64 exec, 1")
    k(f"buffer_store_dword {V(vONE)}, {V(z)}, {S(SRD_DBG,4)}, {S(sT0)} offen sc1")
    k("s_mov_b64 exec, -1")
    branch("s_branch", "L_helper")
    label("L_main")
    k.forget()

def w2_lane_src(d, pitch, t0, t1):
    k(f"v_lshrrev_b32 {V(t0)}, 3, {V(vL)}")
    k(f"v_mul_u32_u24 {V(d)}, {pitch}, {V(t0)}")
    k(f"v_and_b32 {V(t0)}, 7, {V(vL)}")
    k(f"v_bfe_u32 {V(t1)}, {V(vL)}, 4, 1")
    k(f"v_lshlrev_b32 {V(t1)}, 2, {V(t1)}")
    k(f"v_xor_b32 {V(t0)}, {V(t0)}, {V(t1)}")
    k(f"v_lshl_add_u32 {V(d)}, {V(t0)}, 4, {V(d)}")

def h_prefetch():
    k.forget()
    a, f, d = WK, WK + 1, WK + 2
    poll_load(vGO, vGO + 1, 0, 192, SRD_DBG)
    k(f"s_and_b32 {S(sT0)}, {S(sWG)}, 7")
    k(f"s_lshr_b32 {S(sT1)}, {S(sWG)}, 4")
    k(f"s_lshl1_add_u32 {S(sGAM)}, {S(sT0)}, {S(sT1)}")
    k(f"s_bfe_u32 {S(sHH)}, {S(sWG)}, 0x10003")
    k(f"s_mul_i32 {S(sHL)}, {S(sGAM)}, {4*112*1024}")
    k(f"s_lshl2_add_u32 {S(sT3)}, {S(sHH)}, {S(sW)}")
    k(f"s_mul_i32 {S(sT3)}, {S(sT3)}, {28*1024}")
    k(f"s_add_u32 {S(sHL)}, {S(sHL)}, {S(sT3)}")
    k(f"s_lshl_b32 {S(sFG)}, {S(sGAM)}, {GL + 6}")
    k(f"s_add_u32 {S(sFG)}, {S(sFG)}, {hex(FLG_G + (PQ if FAST and opt('hpf', 0) == 2 else 0))}")
    k(f"v_min_u32 {V(f)}, 13, {V(vL)}")
    k(f"s_mul_i32 {S(sT2)}, {S(sW)}, 14")
    k(f"v_add_lshl_u32 {V(f)}, {V(f)}, {S(sT2)}, {GL}")
    k(f"v_min_u32 {V(a)}, 55, {V(vL)}")
    k(f"v_lshlrev_b32 {V(a)}, 7, {V(a)}")
    poll_check(vGO, vGO + 1, 0, 192, SRD_DBG)
    for ph in range(4):
        lp, go = newlab("hp"), newlab("hg")
        k(f"s_mov_b32 {S(sSPIN)}, 0")
        k(f"s_add_u32 {S(sT0)}, {S(sHL)}, {hex(HB + (ph >> 1)*H_SZ + (ph & 1)*2*112*1024)}")
        label(lp)
        k(f"s_sleep {opt('hsl', 1)}")
        poll_load(d, f, S(sFG), 4 * ph)
        k(f"s_add_u32 {S(sSPIN)}, {S(sSPIN)}, 1")
        k(f"v_cmp_eq_u32 vcc, 0, {V(d)}")
        k(f"s_cmp_gt_u32 {S(sSPIN)}, 150")
        k(f"s_cbranch_scc1 L_end3")
        k(f"s_cbranch_vccnz {lp}")
        for q in range(4):
            k(f"buffer_load_dword {V(d+1+q)}, {V(a)}, {S(SRD_WS,4)}, {S(sT0)} offen sc1")
            k(f"s_add_u32 {S(sT0)}, {S(sT0)}, 7168")
        k.vm = []
    label("L_end3")

HZ = WK + 64
def helper():
    label("L_helper")
    k.forget()
    srd(SRD_W1, 48, 448 * 3584)
    srd(SRD_W2, 50, 1792 * 896)
    z = HZ
    F = WK + 112
    G = WK + 168
    t, a1, a2, aE, aO = z + 8, z + 10, z + 11, z + 12, z + 13
    IMG2 = 57344
    w2_lane_src(a1, 3584, t, t + 1)
    w2_lane_src(a2, 896, t, t + 1)
    if opt("abl", 0) & 32:
        k("s_endpgm")
    if opt("hdelay", 0):
        k(f"s_sleep {opt('hdelay', 0)}")
    k(f"s_mul_i32 {S(sT0)}, {S(sW)}, {112*3584}")
    k(f"s_lshl_b32 {S(sT1)}, {S(sWG)}, 7")
    k(f"s_add_u32 {S(sT0)}, {S(sT0)}, {S(sT1)}")
    k(f"s_mul_i32 {S(sT3)}, {S(sW)}, 14336")
    k(f"s_mov_b32 m0, {S(sT3)}")
    for c in range(14):
        k(f"buffer_load_dwordx4 {V(a1)}, {S(SRD_W1,4)}, {S(sT0)} offen lds", tag="w1")
        k(f"s_add_u32 m0, m0, 1024")
        k(f"s_add_u32 {S(sT0)}, {S(sT0)}, {8*3584}")
    k(f"v_bfe_u32 {V(t+1)}, {V(vL)}, 2, 2")
    k(f"v_lshlrev_b32 {V(t)}, 7, {V(t+1)}")
    k(f"v_bfe_u32 {V(t+1)}, {V(vL)}, 3, 1")
    k(f"v_lshl_add_u32 {V(t)}, {V(t+1)}, 6, {V(t)}")
    k(f"v_bfe_u32 {V(t+1)}, {V(vL)}, 4, 1")
    k(f"v_lshl_add_u32 {V(t)}, {V(t+1)}, 5, {V(t)}")
    k(f"v_and_b32 {V(t+1)}, 3, {V(vL)}")
    k(f"v_lshl_add_u32 {V(t)}, {V(t+1)}, 3, {V(t)}")
    k(f"v_lshrrev_b32 {V(t+1)}, 5, {V(vL)}")
    k(f"v_lshl_add_u32 {V(a1)}, {V(t+1)}, 10, {V(t)}")
    k(f"v_lshl_add_u32 {V(aE)}, {V(t+1)}, 9, {V(t)}")
    k(f"s_lshl_b32 {S(sT0)}, {S(sCH)}, 6")
    k(f"v_xor_b32 {V(a1)}, {S(sT0)}, {V(a1)}")
    k(f"s_mul_i32 {S(sT0)}, {S(sNH)}, 28672")
    k(f"v_add_u32 {V(a1)}, {S(sT0)}, {V(a1)}")
    k(f"s_lshl_b32 {S(sT0)}, {S(sNH)}, 6")
    k(f"v_xor_b32 {V(aE)}, {S(sT0)}, {V(aE)}")
    k(f"v_xor_b32 {V(aO)}, 64, {V(aE)}")
    k(f"s_mul_i32 {S(sT1)}, {S(sW)}, 7")
    k(f"s_lshr_b32 {S(sT0)}, {S(sT1)}, 1")
    k(f"s_lshl_b32 {S(sT0)}, {S(sT0)}, 11")
    k(f"s_add_u32 {S(sT0)}, {S(sT0)}, {IMG2}")
    k(f"v_add_u32 {V(aE)}, {S(sT0)}, {V(aE)}")
    k(f"s_add_u32 {S(sT0)}, {S(sT1)}, 1")
    k(f"s_lshr_b32 {S(sT0)}, {S(sT0)}, 1")
    k(f"s_lshl_b32 {S(sT0)}, {S(sT0)}, 11")
    k(f"s_add_u32 {S(sT0)}, {S(sT0)}, {IMG2}")
    k(f"v_add_u32 {V(aO)}, {S(sT0)}, {V(aO)}")
    k.wait(vm=0)
    k("s_barrier")
    stamp(3)
    for ks in range(14):
        for u in range(2):
            k(f"ds_read_b64_tr_b16 {V(F+4*ks+2*u,2)}, {V(a1)} offset:{ks*2048+u*512}")
    k(f"s_and_b32 {S(sHL)}, {S(sWG)}, 3")
    k(f"s_lshl3_add_u32 {S(sHL)}, {S(sHL)}, {S(sW)}")
    k(f"s_add_u32 {S(sHL)}, {S(sHL)}, 4")
    k(f"s_mul_i32 {S(sHL)}, {S(sHL)}, {56*896}")
    k(f"s_lshr_b32 {S(sHS)}, {S(sWG)}, 2")
    k(f"s_lshl_b32 {S(sHS)}, {S(sHS)}, 7")
    k(f"s_add_u32 {S(sHL)}, {S(sHL)}, {S(sHS)}")
    k(f"s_mul_i32 {S(sT3)}, {S(sW)}, 7168")
    k(f"s_add_u32 m0, {S(sT3)}, {IMG2}")
    for _ in range(7):
        k(f"buffer_load_dwordx4 {V(a2)}, {S(SRD_W2,4)}, {S(sHL)} offen lds", tag="w2")
        k(f"s_add_u32 m0, m0, 1024")
        k(f"s_add_u32 {S(sHL)}, {S(sHL)}, {8*896}")
    c, u_ = z, z + 2
    for i in range(56):
        k(f"v_dot2c_f32_bf16 {V(c)}, {S(sONES)}, {V(F+i)}")
    k(f"v_mov_b32 {V(u_)}, {V(c)}")
    k(f"v_permlane32_swap_b32 {V(c)}, {V(u_)}")
    k(f"v_add_f32 {V(c)}, {V(c)}, {V(u_)}")
    k(f"v_lshlrev_b32 {V(t)}, 2, {V(vTID)}")
    k(f"v_add_u32 {V(t)}, 0x18000, {V(t)}")
    k(f"ds_write_b32 {V(t)}, {V(c)}")
    k(f"v_xor_b32 {V(t)}, 256, {V(t)}")
    k.wait(lg=0)
    k("s_barrier")
    k(f"ds_read_b32 {V(u_)}, {V(t)}")
    k(f"s_lshl2_add_u32 {S(sT1)}, {S(sWG)}, {S(sW)}")
    k(f"s_mul_i32 {S(sT0)}, {S(sT1)}, 14336")
    k(f"s_add_u32 {S(sT0)}, {S(sT0)}, {hex(W1C)}")
    k(f"s_mul_i32 {S(sT1)}, {S(sT1)}, 7168")
    k(f"s_add_u32 {S(sT1)}, {S(sT1)}, {hex(W2T)}")
    k(f"v_add_f32 {V(c)}, {V(c)}, {V(u_)}")
    k(f"v_mul_f32 {V(c)}, {f2u(-1.0/448)}, {V(c)}")
    stamp(2)
    for i in range(56):
        tt = z + 4 + 2 * (i & 1)
        k(f"v_lshlrev_b32 {V(tt)}, 16, {V(F+i)}")
        k(f"v_and_b32 {V(tt+1)}, {S(sHIM)}, {V(F+i)}")
        pk("add", V(tt, 2), V(tt, 2), V(c, 2), bc=(1,))
        k(f"v_cvt_pk_bf16_f32 {V(F+i)}, {V(tt)}, {V(tt+1)}")
        if i % 4 == 3:
            ks = i // 4
            k(f"buffer_store_dwordx4 {V(F+4*ks,4)}, {V(vL16)}, {S(SRD_WS,4)}, {S(sT0)} offen offset:{1024*(ks%4)} sc1", tag="c")
            if ks % 4 == 3:
                k(f"s_add_u32 {S(sT0)}, {S(sT0)}, 4096")
    poll_load(vGO, vGO + 1, 0, 192, SRD_DBG)
    k.vm[-1] = (k.vm[-1][0], "c")
    k(f"v_mov_b32 {V(z)}, 0")
    def fl(off):
        k("s_mov_b64 exec, 1")
        k(f"buffer_store_dword {V(vONE)}, {V(z)}, {S(SRD_WS,4)}, {S(sT5)} offen offset:{off} sc1")
        k("s_mov_b64 exec, -1")
    k.wait_tag_vm("c")
    poll_check(vGO, vGO + 1, 0, 192, SRD_DBG)
    k("s_barrier")
    wave0(lambda: fl(0))
    stamp(1)
    for i in range(7):
        for u in range(2):
            k(f"ds_read_b64_tr_b16 {V(G+4*i+2*u,2)}, {V(aO if i & 1 else aE)} offset:{(i//2)*2048+u*1024}")
    for i in range(7):
        k(f"buffer_store_dwordx4 {V(G+4*i,4)}, {V(vL16)}, {S(SRD_WS,4)}, {S(sT1)} offen offset:{1024*(i%4)} sc1")
        if i == 3:
            k(f"s_add_u32 {S(sT1)}, {S(sT1)}, 4096")
    k.wait(vm=0)
    k("s_barrier")
    wave0(lambda: fl(64))
    stamp(25)
    label("L_end2")
    if opt("hpf", 0):
        h_prefetch()
    if DIAG:
        k(f"s_lshl_b32 {S(sT0)}, {S(sWG)}, 10")
        k(f"s_add_u32 {S(sT0)}, {S(sT0)}, {hex(STAMP)}")
        k(f"v_lshlrev_b32 {V(WK)}, 2, {V(vTID)}")
        k(f"buffer_store_dword {V(vSTAMP)}, {V(WK)}, {S(SRD_WS,4)}, {S(sT0)} offen")
    k("s_endpgm")

KW = W1R
PRM = KW
TBL = KW + 8
GA = KW + 20
TA = GA + 17
vKW, vKR, vKC, vDSK = KW + 42, KW + 43, KW + 44, KW + 45

def table_words():
    def bf16v(m):
        u = struct.unpack("<I", struct.pack("<f", float(m)))[0]
        u = ((u + 0x7FFF + ((u >> 16) & 1)) >> 16) << 16
        return int(struct.unpack("<f", struct.pack("<I", u))[0])
    rowv = list(range(8)) + [256, 258, 260, 262, 512, 516, 768, 772, 1024, 1280, 1536, 1792, 2048]
    def idx(m):
        if m < 0:
            return (KC0 + 4096 + 64) // 8
        l = bf16v(m)
        r = [r for r, a in enumerate(rowv) if l >= a and (l - a) % 8 == 0 and l - a < 256][-1]
        return (r % 16) * 33 + (l - rowv[r]) // 8 + (SCR_ST // 8 if r >= 16 else 0)
    rows = []
    for lam in range(128):
        e = [idx(2047 - 16 * lam - i) for i in range(17)] + [0] * 7
        rows.append([e[2 * i] | (e[2 * i + 1] << 16) for i in range(12)])
    out = []
    for qd in range(3):
        for lam in range(128):
            out.append(rows[lam][4 * qd:4 * qd + 4])
    return out

def addr_conv():
    t0, t1, t2, t3 = KW + 100, KW + 101, KW + 102, KW + 103
    r16, g4, cc = KW + 104, KW + 105, KW + 106
    o = []
    e = o.append
    e(f"v_and_b32 {V(r16)}, 15, {V(vL)}")
    e(f"v_lshrrev_b32 {V(g4)}, 4, {V(vL)}")
    e(f"v_and_b32 {V(cc)}, 3, {V(vL)}")
    e(f"s_mul_i32 {S(sSCR)}, {S(sW)}, {SCR_ST}")
    e(f"s_add_u32 {S(sSCR)}, {S(sSCR)}, {SCR}")
    e(f"s_mul_i32 {S(sSCH)}, {S(sCH)}, {2*SCR_ST}")
    e(f"s_add_u32 {S(sSCH)}, {S(sSCH)}, {SCR}")
    e(f"v_lshl_add_u32 {V(vKW)}, {V(vL)}, 3, {S(sSCR)}")
    e(f"v_mul_u32_u24 {V(vKR)}, {ROW_ST}, {V(r16)}")
    e(f"v_lshl_add_u32 {V(vKR)}, {V(g4)}, 4, {V(vKR)}")
    e(f"v_add_u32 {V(vKR)}, {S(sSCR)}, {V(vKR)}")
    e(f"v_mul_u32_u24 {V(t0)}, 132, {V(g4)}")
    e(f"v_add_u32 {V(t0)}, {V(t0)}, {V(r16)}")
    e(f"s_lshl2_add_u32 {S(sT2)}, {S(sNH)}, {S(sSCH)}")
    e(f"v_lshl_add_u32 {V(TA)}, {V(t0)}, 3, {S(sT2)}")
    e(f"v_add_u32 {V(TA+1)}, {SCR_ST}, {V(TA)}")
    e(f"v_and_b32 {V(t0)}, 127, {V(vTID)}")
    e(f"s_add_u32 {S(sT2)}, {S(sSCH)}, {KC0}")
    e(f"v_lshl_add_u32 {V(vKC)}, {V(t0)}, 5, {S(sT2)}")
    e(f"v_lshrrev_b32 {V(t0)}, 5, {V(vL)}")
    e(f"v_bfe_u32 {V(t1)}, {V(vL)}, 2, 2")
    e(f"v_lshlrev_b32 {V(t3)}, 9, {V(t0)}")
    e(f"v_lshl_add_u32 {V(t3)}, {V(t1)}, 7, {V(t3)}")
    e(f"v_bfe_u32 {V(t1)}, {V(vL)}, 3, 1")
    e(f"v_lshl_add_u32 {V(t3)}, {V(t1)}, 6, {V(t3)}")
    e(f"v_bfe_u32 {V(t1)}, {V(vL)}, 4, 1")
    e(f"v_lshl_add_u32 {V(t3)}, {V(t1)}, 5, {V(t3)}")
    e(f"v_lshl_add_u32 {V(t3)}, {V(cc)}, 3, {V(t3)}")
    e(f"s_mul_i32 {S(sT2)}, {S(sW)}, {WREG}")
    e(f"v_add_u32 {V(vW2R)}, {S(sT2)}, {V(t3)}")
    e(f"v_xor_b32 {V(vW2R+1)}, 64, {V(vW2R)}")
    e(f"v_lshrrev_b32 {V(t0)}, 3, {V(vTID)}")
    e(f"v_and_b32 {V(t1)}, 0x70, {V(vL16)}")
    e(f"v_lshl_add_u32 {V(vCX)}, {V(t0)}, 8, {V(t1)}")
    e(f"v_lshrrev_b32 {V(t0)}, 4, {V(vTID)}")
    e(f"v_and_b32 {V(t2)}, 8, {V(vL)}")
    e(f"v_lshl_add_u32 {V(t2)}, {V(t0)}, 7, {V(t2)}")
    e(f"v_lshl_add_u32 {V(t2)}, {V(cc)}, 5, {V(t2)}")
    e(f"v_bfe_u32 {V(t1)}, {V(vL)}, 2, 1")
    e(f"v_lshl_add_u32 {V(t2)}, {V(t1)}, 4, {V(t2)}")
    e(f"v_add_u32 {V(vUW)}, {UARR+480}, {V(t2)}")
    e(f"s_mul_i32 {S(sT2)}, {S(sCH)}, {SCR_ST-1024}")
    e(f"s_add_u32 {S(sT2)}, {S(sT2)}, {SCR}")
    e(f"v_add_u32 {V(vXW)}, {S(sT2)}, {V(t2)}")
    e(f"v_and_b32 {V(t0)}, 1, {V(vL)}")
    e(f"v_xor_b32 {V(t0)}, 1, {V(t0)}")
    e(f"v_mul_u32_u24 {V(t1)}, {SCR_ST+64-2}, {V(t0)}")
    e(f"v_lshlrev_b32 {V(t2)}, 1, {V(r16)}")
    e(f"v_sub_u32 {V(t1)}, {V(t1)}, {V(t2)}")
    e(f"v_lshl_add_u32 {V(t1)}, {V(g4)}, 4, {V(t1)}")
    e(f"s_lshl_b32 {S(sT3)}, {S(sNH)}, 8")
    e(f"s_sub_u32 {S(sT2)}, {S(sSCH)}, {S(sT3)}")
    e(f"s_add_u32 {S(sT2)}, {S(sT2)}, {KC0 + 2*2031 - 512 - 192}")
    e(f"v_add_u32 {V(vKF)}, {S(sT2)}, {V(t1)}")
    for a in range(1, 4):
        e(f"v_subrev_u32 {V(vKF+a)}, {1024*a}, {V(vKF)}")
    e(f"v_lshlrev_b32 {V(t1)}, 5, {V(r16)}")
    e(f"v_lshl_add_u32 {V(t1)}, {V(g4)}, 4, {V(t1)}")
    e(f"s_mul_i32 {S(sT2)}, {S(sCH)}, {U_ST}")
    e(f"s_sub_u32 {S(sT2)}, {S(sT2)}, {S(sT3)}")
    e(f"s_add_u32 {S(sT2)}, {S(sT2)}, {UARR + 480 - 32 - 192}")
    e(f"v_add_u32 {V(vUF)}, {S(sT2)}, {V(t1)}")
    e(f"v_mov_b32 {V(vXR)}, {V(vKW)}")
    e(f"v_add_u32 {V(vEXW)}, {S(sSCR)}, {V(vL16)}")
    e(f"s_xor_b32 {S(sT2)}, {S(sW)}, 1")
    e(f"s_mul_i32 {S(sT2)}, {S(sT2)}, {SCR_ST}")
    e(f"s_add_u32 {S(sT2)}, {S(sT2)}, {SCR}")
    e(f"v_add_u32 {V(vEXR)}, {S(sT2)}, {V(vL16)}")
    e(f"v_lshrrev_b32 {V(t0)}, 3, {V(vL)}")
    e(f"v_mul_u32_u24 {V(vCO)}, 114688, {V(t0)}")
    e(f"v_and_b32 {V(t0)}, 7, {V(vL)}")
    e(f"s_and_b32 {S(sT2)}, {S(sCP)}, 1")
    e(f"s_lshl_b32 {S(sT3)}, {S(sT2)}, 2")
    e(f"v_xor_b32 {V(t0)}, {S(sT3)}, {V(t0)}")
    e(f"v_lshl_add_u32 {V(vCO)}, {V(t0)}, 4, {V(vCO)}")
    e(f"s_lshl_b32 {S(sT2)}, {S(sT2)}, 3")
    e(f"s_lshr_b32 {S(sXQi)}, {S(sCP)}, 1")
    e(f"s_lshl_b32 {S(sXQi)}, {S(sXQi)}, 14")
    e(f"s_add_u32 {S(sXQi)}, {S(sXQi)}, {S(sT2)}")
    e(f"s_add_u32 {S(sXQi)}, {S(sXQi)}, {hex(XQ)}")
    e(f"s_lshl_b32 {S(sT2)}, {S(sCP)}, 1")
    e(f"s_add_u32 {S(sT2)}, {S(sT2)}, {S(sCH)}")
    e(f"s_lshl_b32 {S(sT2)}, {S(sT2)}, 7")
    e(f"s_mul_i32 {S(sT3)}, {S(sNH)}, {8*114688}")
    e(f"s_add_u32 {S(sT2)}, {S(sT2)}, {S(sT3)}")
    e(f"v_add_u32 {V(vCO)}, {S(sT2)}, {V(vCO)}")
    e(f"v_lshlrev_b32 {V(vFP)}, 4, {V(vTID)}")
    e(f"v_max_u32 {V(vFP)}, 512, {V(vFP)}")
    e(f"s_mov_b32 {S(sPERM0)}, 0x05040100")
    e(f"s_mov_b32 {S(sPERM1)}, 0x07060302")
    e(f"s_lshl_b32 {S(sT2)}, {S(sJ)}, 2")
    e(f"s_add_u32 {S(sT2)}, {S(sT2)}, {S(sW)}")
    e(f"s_mul_i32 {S(sWL)}, {S(sT2)}, 28672")
    e(f"s_add_u32 {S(sWL)}, {S(sWL)}, {hex(W1C)}")
    e(f"s_lshr_b32 {S(sT2)}, {S(sT2)}, 1")
    e(f"s_lshl_b32 {S(sT2)}, {S(sT2)}, 7")
    e(f"s_add_u32 {S(sT2)}, {S(sT2)}, {hex(FLG_W)}")
    e(f"v_mov_b32 {V(vWF+1)}, {S(sT2)}")
    e(f"s_lshl2_add_u32 {S(sT2)}, {S(sDS)}, {S(sW)}")
    e(f"s_mul_i32 {S(sW2L)}, {S(sT2)}, 28672")
    e(f"s_add_u32 {S(sW2L)}, {S(sW2L)}, {hex(W2T)}")
    e(f"s_lshl_b32 {S(sT2)}, {S(sT2)}, 7")
    e(f"s_add_u32 {S(sT2)}, {S(sT2)}, {hex(FLG_W+64)}")
    e(f"v_mov_b32 {V(vWF+2)}, {S(sT2)}")
    e(f"s_mov_b32 {S(sLDT2)}, {S(sT2)}")
    e(f"s_mul_i32 {S(sXT)}, {S(sGAM)}, 114688")
    e(f"s_add_u32 {S(sXT)}, {S(sXT)}, {hex(X1T)}")
    z = KW + 108
    for i in range(4):
        e(f"v_mov_b32 {V(z+i)}, 0")
    e(f"v_min_u32 {V(t0)}, 29, {V(vL)}")
    e(f"v_lshlrev_b32 {V(t0)}, 4, {V(t0)}")
    e(f"v_add_u32 {V(t0)}, {UARR}, {V(t0)}")
    e(f"ds_write_b128 {V(t0)}, {V(z,4)}")
    e(f"ds_write_b128 {V(t0)}, {V(z,4)} offset:{U_ST}")
    e(f"v_and_b32 {V(t0)}, 0x70, {V(vL16)}")
    e(f"v_add_u32 {V(t0)}, {S(sSCR)}, {V(t0)}")
    e(f"ds_write_b128 {V(t0)}, {V(z,4)} offset:{KC0+4096}")
    return o

def addr_ffn(layer):
    t0, t1, t2, t3 = WK + 84, WK + 85, WK + 86, WK + 87
    g4, rho, cc = WK + 88, WK + 89, WK + 90
    o = []
    e = o.append
    e(f"v_lshrrev_b32 {V(g4)}, 4, {V(vL)}")
    e(f"v_bfe_u32 {V(rho)}, {V(vL)}, 2, 2")
    e(f"v_and_b32 {V(cc)}, 3, {V(vL)}")
    e(f"v_lshrrev_b32 {V(t0)}, 5, {V(vL)}")
    e(f"v_bfe_u32 {V(t1)}, {V(vL)}, 4, 1")
    e(f"v_bfe_u32 {V(t2)}, {V(vL)}, 3, 1")
    e(f"v_lshlrev_b32 {V(t3)}, 7, {V(rho)}")
    e(f"v_lshl_add_u32 {V(t3)}, {V(t2)}, 6, {V(t3)}")
    e(f"v_lshl_add_u32 {V(vXA0)}, {V(t0)}, 10, {V(t3)}")
    e(f"v_lshl_add_u32 {V(vXA0)}, {V(cc)}, 4, {V(vXA0)}")
    e(f"v_lshl_add_u32 {V(vXA0)}, {V(t1)}, 3, {V(vXA0)}")
    e(f"v_xor_b32 {V(vXA1)}, 64, {V(vXA0)}")
    e(f"s_lshl_b32 {S(sT2)}, {S(sHH)}, 6")
    e(f"v_xor_b32 {V(t3)}, {S(sT2)}, {V(t3)}")
    e(f"s_lshl_b32 {S(sT2)}, {S(sNH)}, 5")
    e(f"s_lshl3_add_u32 {S(sT2)}, {S(sCH)}, {S(sT2)}")
    e(f"v_and_b32 {V(t0)}, 16, {V(vL16)}")
    e(f"v_add3_u32 {V(t3)}, {V(t3)}, {V(t0)}, {S(sT2)}")
    e(f"v_bfe_u32 {V(t0)}, {V(vL)}, 1, 1")
    e(f"v_mul_u32_u24 {V(vST)}, {XHALF}, {V(t0)}")
    e(f"v_lshl_add_u32 {V(vST)}, {V(g4)}, 10, {V(vST)}")
    e(f"v_add_u32 {V(vST)}, {V(vST)}, {V(t3)}")
    e(f"v_lshl_add_u32 {V(t0)}, {V(g4)}, 1, {V(t0)}")
    e(f"v_lshl_add_u32 {V(vRES)}, {V(t0)}, 10, {V(t3)}")
    e(f"s_lshl_b32 {S(sT2)}, {S(sDS)}, 13")
    e(f"v_add_u32 {V(vRES)}, {S(sT2)}, {V(vRES)}")
    e(f"s_mul_i32 {S(sT2)}, {S(sW)}, {RED_W}")
    e(f"v_add_u32 {V(vRW)}, {S(sT2)}, {V(vL16)}")
    e(f"v_lshrrev_b32 {V(t0)}, 3, {V(vL)}")
    e(f"v_and_b32 {V(t1)}, 0x70, {V(vL16)}")
    e(f"v_mul_u32_u24 {V(vRR)}, {RED_G}, {V(t0)}")
    e(f"s_lshl_b32 {S(sT2)}, {S(sW)}, 7")
    e(f"v_add3_u32 {V(vRR)}, {V(vRR)}, {V(t1)}, {S(sT2)}")
    e(f"s_and_b32 {S(sT2)}, {S(sGAM)}, 8")
    e(f"s_bfe_u32 {S(sT3)}, {S(sGAM)}, 0x20001")
    e(f"s_add_u32 {S(sT2)}, {S(sT2)}, {S(sT3)}")
    e(f"s_lshl2_add_u32 {S(sT2)}, {S(sCH)}, {S(sT2)}")
    e(f"s_lshl1_add_u32 {S(sT3)}, {S(sHH)}, {S(sNH)}")
    e(f"s_and_b32 {S(sT4)}, {S(sGAM)}, 1")
    e(f"v_lshlrev_b32 {V(t2)}, 4, {V(cc)}")
    e(f"v_bfe_u32 {V(t3)}, {V(vL)}, 2, 1")
    if layer == 0:
        e(f"s_lshl2_add_u32 {S(sT2)}, {S(sT2)}, {S(sT3)}")
        e(f"s_lshl1_add_u32 {S(sT2)}, {S(sT2)}, {S(sT4)}")
        e(f"s_lshl_b32 {S(sT2)}, {S(sT2)}, 6")
        e(f"v_lshl_add_u32 {V(vAT)}, {V(t3)}, 2, {V(t2)}")
        e(f"v_lshrrev_b32 {V(t3)}, 5, {V(vL)}")
        e(f"v_lshl_add_u32 {V(vAT)}, {V(t3)}, 3, {V(vAT)}")
        e(f"v_add_u32 {V(vAT)}, {S(sT2)}, {V(vAT)}")
        e(f"v_lshrrev_b32 {V(t3)}, 2, {V(vL)}")
        e(f"v_lshl_add_u32 {V(vO)}, {V(t3)}, 14, {V(t2)}")
        e(f"s_lshl_b32 {S(sT5)}, {S(sDS)}, 18")
        e(f"s_add_u32 {S(sT2)}, {S(sT2)}, {S(sT5)}")
        e(f"v_add_u32 {V(vO)}, {S(sT2)}, {V(vO)}")
    else:
        e(f"s_lshl3_add_u32 {S(sT2)}, {S(sT2)}, {S(sT4)}")
        e(f"s_lshl2_add_u32 {S(sT2)}, {S(sT2)}, {S(sT3)}")
        e(f"s_lshl_b32 {S(sT2)}, {S(sT2)}, 1")
        e(f"v_add3_u32 {V(t2)}, {V(t2)}, {V(t3)}, {S(sT2)}")
        e(f"v_mul_u32_u24 {V(vO)}, 896, {V(t2)}")
        e(f"v_lshl_add_u32 {V(vO)}, {V(t0)}, 4, {V(vO)}")
        e(f"s_lshl_b32 {S(sT2)}, {S(sDS)}, 7")
        e(f"v_add_u32 {V(vO)}, {S(sT2)}, {V(vO)}")
    e(f"v_min_u32 {V(t0)}, 13, {V(vL)}")
    e(f"s_mul_i32 {S(sT2)}, {S(sW)}, 14")
    e(f"v_add_lshl_u32 {V(vF2P)}, {V(t0)}, {S(sT2)}, {GL or 4}")
    e(f"s_lshl2_add_u32 {S(sT3)}, {S(sJ)}, {S(sW)}")
    e(f"s_lshl_b32 {S(sT2)}, {S(sT3)}, {GL or 4}")
    e(f"v_mov_b32 {V(vFL)}, {S(sT2)}")
    e(f"s_mul_i32 {S(sT2)}, {S(sGAM)}, {4*112*1024}")
    e(f"s_add_u32 {S(sT2)}, {S(sT2)}, {hex(HB + layer*H_SZ)}")
    e(f"s_lshl_b32 {S(sT3)}, {S(sT3)}, 11")
    e(f"s_add_u32 {S(sHS)}, {S(sT2)}, {S(sT3)}")
    e(f"s_lshl2_add_u32 {S(sT3)}, {S(sHH)}, {S(sW)}")
    e(f"s_mul_i32 {S(sT3)}, {S(sT3)}, {28*1024}")
    e(f"s_add_u32 {S(sHL)}, {S(sT2)}, {S(sT3)}")
    e(f"s_lshl_b32 {S(sFG)}, {S(sGAM)}, {GL + 6 if GL else 11}")
    e(f"s_add_u32 {S(sFG)}, {S(sFG)}, {hex(FLG_G + layer*(8 if GL else 0x8000))}")
    e(f"s_add_u32 {S(sFP)}, {S(sFG)}, {PQ if FAST else 0}")
    if FAST and layer == 0:
        e(lambda: poll_load(vPL2, vF2P, S(sFP)))
    if layer:
        e(f"s_mov_b32 {S(SRD_OUT)}, s52")
        e(f"s_and_b32 {S(SRD_OUT+1)}, s53, 0xffff")
        e(f"s_mov_b32 {S(SRD_OUT+2)}, {hex(2048*896)}")
        e(f"s_mov_b32 {S(SRD_OUT+3)}, 0x20000")
    return o

def pk(op, d, a, b, c=None, bc=(), neg=(), emit=True):
    ops = [a, b] + ([c] if c is not None else [])
    n = len(ops)
    txt = f"v_pk_{op}_f32 {d}, " + ", ".join(ops)
    if bc:
        txt += " op_sel_hi:[" + ",".join("0" if i in bc else "1" for i in range(n)) + "]"
    if neg:
        m = "[" + ",".join("1" if i in neg else "0" for i in range(n)) + "]"
        txt += f" neg_lo:{m} neg_hi:{m}"
    if emit:
        k(txt)
    return txt

def cmul(d, a, b, t):
    assert d != a
    pk("mul", V(t, 2), V(a, 2), V(b, 2))
    pk("mul", V(t + 2, 2), V(a, 2), V(b + 2, 2))
    pk("fma", V(d, 2), V(a + 2, 2), V(b + 2, 2), V(t, 2), neg=(0,))
    pk("fma", V(d + 2, 2), V(a + 2, 2), V(b, 2), V(t + 2, 2))

NINIT = opt("ninit", 6)
NPG = opt("npg", 8)
def stub_targets():
    return [("L_ret0" if p <= 3 else (f"L_pg{p+4}" if p + 4 <= NPG else f"L_st{p % 4}" if opt("tslow", 1) else "L_ret1")) for p in range(1, NPG + 1)]

def touch(n):
    if not opt("touch", 1):
        k.label(f"L_ret{n}")
        return
    k("s_mov_b64 exec, 0")
    for w in range(4):
        p = w if n == 0 else 4 + w
        if 1 <= p <= NPG and not (n == 0 and opt("touch", 1) == 2):
            k(f"s_cmp_eq_u32 {S(sW)}, {w}")
            k(f"s_cbranch_scc1 L_pg{p}")
        elif n == 1 and opt("tslow", 1):
            k(f"s_cmp_eq_u32 {S(sW)}, {w}")
            k(f"s_cbranch_scc1 L_st{w}")
    if n == 0:
        k("s_branch L_ret0")
        k.raw(".p2align 12")
    k.label(f"L_ret{n}")
    k("s_mov_b64 exec, -1")

def table_loads():
    t0 = KW + 100
    k(f"v_and_b32 {V(t0)}, 127, {V(vTID)}")
    k(f"v_lshlrev_b32 {V(t0)}, 4, {V(t0)}")
    k(f"v_add_u32 {V(t0)}, L_table-L_pc+2048, {V(t0)}")
    for q in range(3):
        if q < 2:
            k(f"global_load_dwordx4 {V(TBL+4*q,4)}, {V(t0)}, {S(sPC,2)} offset:{2048*(q-1)}")
        else:
            k(f"global_load_dword {V(TBL+8)}, {V(t0)}, {S(sPC,2)} offset:2048")

def warm_loads():
    if opt("warm", 1):
        k(f"s_sub_u32 {S(sT0)}, {S(sWG)}, 32")
        k(f"s_lshl2_add_u32 {S(sT0)}, {S(sT0)}, {S(sW)}")
        k(f"s_mul_i32 {S(sT0)}, {S(sT0)}, 1792")
        k(f"v_min_u32 {V(vDUM+1)}, 13, {V(vL)}")
        k(f"v_lshl_add_u32 {V(vDUM+1)}, {V(vDUM+1)}, 7, {S(sT0)}")
        for q in range(opt("warm", 1)):
            k(f"global_load_dword {V(vDUM)}, {V(vDUM+1)}, {S(48+2*q,2)}")
            k.vm[-1] = (set(), None)

def main_start():
    k.c("=== main workgroups")
    p0x_loads()
    if opt("pdelay", 0):
        ac0 = addr_conv()
        run(ac0, opt("pdelay", 0))
    for i in range(6):
        k(f"global_load_dword {V(PRM+i)}, {V(PRM+6)}, {S(30+2*i,2)}")
    k(f"s_lshl_b32 {S(sT0)}, {S(sCP)}, 2")
    k(f"s_load_dword {S(sLDT)}, s[42:43], {S(sT0)}")
    k(f"s_load_dword {S(sDSK)}, s[44:45], {S(sT0)}")
    k.lg = []
    srd(SRD_W2, 50, 1792 * 896)
    if opt("warmat", 0) == 0:
        warm_loads()
    if opt("tblearly", 0):
        table_loads()
    w2_lane_src(vW2S, 896, KW + 100, KW + 101)
    k(f"s_mul_i32 {S(sW2B)}, {S(sW)}, {448*896}")
    k(f"s_lshl_b32 {S(sT2)}, {S(sDS)}, 7")
    k(f"s_add_u32 {S(sW2B)}, {S(sW2B)}, {S(sT2)}")
    FREG[0] = 4
    fine("ld")
    ac = ac0 if opt("pdelay", 0) else addr_conv()
    for i in range(NINIT):
        w2_dma()
        run(ac, len(ac) // (NINIT - i))
    run(ac)
    stamp(24)
    fine("addr")
    if opt("warmat", 0) == 1:
        warm_loads()
    p0x_body()
    if opt("warmat", 0) == 2:
        warm_loads()
    fine("p0x")
    stamp(1)
    if opt("atom0", 14) < 0:
        p0x_atomics()
        stamp(25)
    touch(0)

DEF0 = opt("def0", 1)
LATE0 = W1R + 100 if DEF0 else WK + 12
def conv_load_ops(layer, h, D):
    o = [f"s_mov_b32 {S(sT0)}, {hex(STATS[layer] + 8192*h)}",
         f"s_add_u32 {S(sT3)}, {S(sXQi)}, {hex(layer*XQ_SZ + 8192*h)}"]
    for j in range(2):
        o.append(f"buffer_load_dwordx4 {V(D+4*j,4)}, {V(vCX)}, {S(SRD_WS,4)}, {S(sT0)} offen offset:{128*j} sc1")
        o.append(f"buffer_load_dwordx2 {V(D+8+2*j,2)}, {V(vCX)}, {S(SRD_WS,4)}, {S(sT3)} offen offset:{128*j} sc1")
    return o

CW = []
def kgen():
    k.c("=== K generation")
    B0 = KW + 46
    U = B0
    DT = B0 + 12
    W1_, W8_, W256 = B0 + 14, B0 + 18, B0 + 22
    T = B0 + 26
    P = [B0 + 30 + 4 * i for i in range(5)]
    CV = B0 + 50
    ACC = WK + 64
    FX, FY = (112, 144), (176, 208)
    for i in range(6):
        k(f"v_lshlrev_b32 {V(U+2*i)}, 16, {V(PRM+i)}")
        k(f"v_and_b32 {V(U+2*i+1)}, {S(sHIM)}, {V(PRM+i)}")
    k.wait(lg=0)
    fine("prm")
    k(f"s_lshl_b32 {S(sT0)}, {S(sCH)}, 4")
    k(f"s_lshr_b32 {S(sLDT)}, {S(sLDT)}, {S(sT0)}")
    k(f"s_lshl_b32 {S(sLDT)}, {S(sLDT)}, 16")
    k(f"s_lshr_b32 {S(sDSK)}, {S(sDSK)}, {S(sT0)}")
    k(f"s_lshl_b32 {S(sDSK)}, {S(sDSK)}, 16")
    k(f"v_mov_b32 {V(DT)}, {f2u(1.4426950408889634)}")
    k(f"v_mul_f32 {V(DT)}, {S(sLDT)}, {V(DT)}")
    k(f"v_exp_f32 {V(DT)}, {V(DT)}")
    k(f"s_cmp_eq_u32 {S(sNH)}, 0")
    k(f"s_cselect_b32 {S(sDSK)}, {S(sDSK)}, 0")
    k(f"v_cvt_pk_bf16_f32 {V(DT)}, {V(DT)}, {V(DT)}")
    k(f"v_mov_b32 {V(vDSK)}, 0")
    k(f"v_lshlrev_b32 {V(DT)}, 16, {V(DT)}")
    k(f"v_writelane_b32 {V(vDSK)}, {S(sDSK)}, 0")
    for i in range(4):
        pk("mul", V(U + 2 * i, 2), V(U + 2 * i, 2), V(DT, 2), bc=(1,))
    k(f"s_mov_b32 {S(sC0)}, {f2u(1.4426950408889634)}")
    pk("mul", V(U, 2), V(U, 2), S(sC0, 2), bc=(1,))
    k(f"s_mov_b32 {S(sC0)}, {f2u(0.15915494309189535)}")
    pk("mul", V(U + 2, 2), V(U + 2, 2), S(sC0, 2), bc=(1,))
    cmul(P[0], U + 8, U + 4, T)
    for (Wd, sc) in ((W1_, 1.0), (W256, 256.0), (W8_, 8.0)):
        ea, an = U + 4, U + 6
        if sc == 1.0:
            sa, sb = U, U + 2
        else:
            k(f"s_mov_b32 {S(sC0)}, {f2u(sc)}")
            pk("mul", V(ea, 2), V(U, 2), S(sC0, 2), bc=(1,))
            pk("mul", V(an, 2), V(U + 2, 2), S(sC0, 2), bc=(1,))
            sa, sb = ea, an
        for h in range(2):
            k(f"v_fract_f32 {V(an+h)}, {V(sb+h)}")
        for h in range(2):
            k(f"v_exp_f32 {V(ea+h)}, {V(sa+h)}")
        for h in range(2):
            k(f"v_cos_f32 {V(Wd+h)}, {V(an+h)}")
        for h in range(2):
            k(f"v_sin_f32 {V(Wd+2+h)}, {V(an+h)}")
        pk("mul", V(Wd, 2), V(Wd, 2), V(ea, 2))
        pk("mul", V(Wd + 2, 2), V(Wd + 2, 2), V(ea, 2))
    if not opt("goearly", 0):
        poll_load(vGO, vGO + 3, 0, 0, SRD_DBG)
    if opt("atom0", 14) == 0:
        p0x_atomics()
        stamp(25)
    fine("setup")
    cvi = [0]
    ent = [0]
    vPL = vPA
    NKD = opt("nkd", 0)
    FL0, PL0 = opt("flag0", 30), opt("poll0", 46)
    cl = conv_load_ops(0, 0, WK) + ([] if DEF0 else conv_load_ops(0, 1, LATE0))
    PCE = opt("pce", 0)
    def put(src, row, negim, extra=None):
        c = CV + 2 * (cvi[0] & 1)
        cvi[0] += 1
        n = "-" if negim else ""
        k(f"v_cvt_pk_bf16_f32 {V(c)}, {V(src)}, {V(src+1)}")
        k(f"v_cvt_pk_bf16_f32 {V(c+1)}, {n}{V(src+2)}, {n}{V(src+3)}")
        k(f"ds_write_b64 {V(vKW)}, {V(c,2)} offset:{row*ROW_ST}")
        if extra:
            k(extra)
        ent[0] += 1
        if ent[0] == opt("atom0", 14):
            p0x_atomics()
            stamp(25)
        if ent[0] == FL0:
            poll_check(vGO, vGO + 2, 0, 128, SRD_DBG)
            k("s_barrier")
            flag_all(0)
            if not opt("tblearly", 0):
                table_loads()
            stamp(2)
        if opt("kdb", 0) and ent[0] == opt("kdb", 0):
            for _ in range(4):
                w2_dma()
        if ND[0] < NINIT + min(NKD, NKD * (ent[0] - opt("kd0", 0)) // (opt("kdspan", 42) - opt("kd0", 0))):
            w2_dma()
        if ent[0] in (opt("atom0", 14) - 1, opt("atom0", 14), FL0 - 1, FL0, 52):
            fine(f"e{ent[0]}")
        if ent[0] == PL0:
            poll_load(vGO, vGO + 1, 0, 192, SRD_DBG)
            poll_load(vPL, vFP, S(sREP))
        if ent[0] == PCE:
            poll_check(vPL, vFP, S(sREP))
            poll_check(vGO, vGO + 1, 0, 192, SRD_DBG)
            k("s_barrier")
            run(cl, 6)
    def frags(b):
        for st in range(8):
            k(f"ds_read_b128 {A(b+4*st,4)}, {V(vKR)} offset:{64*st}")
    cur = 0
    for a in range(8):
        put(P[cur], a, True)
        if a % 2 == 0:
            dst = {0: 3, 4: 4}.get(a, 2)
            cmul(P[dst], P[cur], W256, T)
            put(P[dst], 8 + a // 2, True)
        if a < 7:
            cmul(P[1 - cur], P[cur], W1_, T)
            cur = 1 - cur
    cmul(P[0], P[3], W256, T); put(P[0], 12, True)
    cmul(P[1], P[4], W256, T); put(P[1], 13, True)
    cmul(P[3], P[0], W256, T); put(P[3], 14, True)
    cmul(P[4], P[1], W256, T); put(P[4], 15, True)
    frags(FX[0])
    src, dst = 3, 0
    for row in range(5):
        cmul(P[dst], P[src], W256, T)
        put(P[dst], row, True)
        src, dst = dst, (1 - dst if dst in (0, 1) else 0)
    frags(FX[1])
    k(f"v_mov_b32 {V(CV)}, {S(sONES)}")
    k(f"v_mov_b32 {V(CV+1)}, 0")
    k(f"ds_write_b64 {V(vKW)}, {V(CV,2)}")
    cvi[0] = 1
    put(W8_, 1, False)
    cmul(P[0], W8_, W8_, T)
    cur = 0
    def mfma(n):
        yt, x, st = n // 16, (n // 8) & 1, n % 8
        d = V(ACC + 8 * yt + 4 * x, 4)
        return f"v_mfma_f32_16x16x32_bf16 {d}, {A(FX[x]+4*st,4)}, {A(FY[yt]+4*st,4)}, {d if st else 0}"
    M0 = opt("km", 0)
    for j in range(2, 32):
        put(P[cur], j % 16, False, mfma(j - 32 + M0) if j >= 32 - M0 else None)
        if j % 16 == 15:
            frags(FY[j // 16])
        if j == 15:
            stamp(3)
        if j < 31:
            cmul(P[1 - cur], P[cur], W8_, T)
            cur = 1 - cur
    assert ND[0] == NINIT + NKD and opt("pchk", 8) < 13, ND
    def tables(yt, x):
        a = ACC + 8 * yt + 4 * x
        return [f"ds_write2_b32 {V(TA+x)}, {V(a+i)}, {V(a+i+1)} offset0:{66*i+32*yt} offset1:{66*(i+1)+32*yt}" for i in (0, 2)]
    mads = []
    for n in range(17):
        sel = " op_sel:[1,0,0,0]" if n & 1 else ""
        mads.append(f"v_mad_u32_u16 {V(GA+n)}, {V(TBL+n//2)}, 8, {S(sSCH)}{sel}")
    PCK = opt("pchk", 8)
    tb = [(8, [f"v_add_f32 {V(ACC)}, {V(ACC)}, {V(vDSK)}"] + tables(0, 0)), (16, tables(0, 1)), (24, tables(1, 0))]
    for n in range(M0, 32):
        k(mfma(n))
        run(mads, 1)
        if n - M0 == PCK:
            if not PCE:
                poll_check(vPL, vFP, S(sREP))
                poll_check(vGO, vGO + 1, 0, 192, SRD_DBG)
            k.wait(lg=0)
            k("s_barrier")
            fine("pbar")
            stamp(4)
        if n - M0 >= PCK:
            if (n - M0 - PCK) % 2 == 0:
                run(cl, 3 if cl and cl[0].startswith("s_") else 1)
            if not cl and tb and n >= tb[0][0] + 4:
                run(tb.pop(0)[1])
    if AL:
        mads += [f"v_lshlrev_b32 {V(vFW)}, {AL-4}, {V(vFW)}", f"v_lshlrev_b32 {V(vFP)}, {AL-4}, {V(vFP)}", f"s_lshl_b32 {S(sREP)}, {S(sREP)}, {AL-4}"]
    run(mads)
    for _, o in tb:
        run(o)
    run(cl)
    run(tables(1, 1))
    k.wait(lg=0)
    k("s_barrier")
    fine("tbar")
    stamp(6)
    GV = B0
    for e in range(17):
        k(f"ds_read_b64 {V(GV+2*e,2)}, {V(GA+e)}")
    if opt("cpk", 1):
        CW.extend(cprep(WK, WK + 32, 0, True))
        k.wait(lg=0)
    else:
        k.wait(lg=8)
    for e in range(17):
        if e == 9 and k.lg:
            k.wait(lg=0)
        k(f"v_add_f32 {V(GV+2*e)}, {V(GV+2*e)}, {V(GV+2*e+1)}")
    fine("gath")
    k("s_barrier")
    O = B0 + 34
    for c in range(2):
        for kk in range(8):
            e = 2 * kk + c
            k(f"v_cvt_pk_bf16_f32 {V(O+8*c+kk)}, {V(GV+2*e)}, {V(GV+2*e+2)}")
    for c in range(2):
        for h in range(2):
            k(f"ds_write_b128 {V(vKC)}, {V(O+8*c+4*h,4)} offset:{c*(SCR_ST+64)+16*h}")
    stamp(5)

def wave0(fn):
    skip = newlab("w0")
    k(f"s_cmp_lg_u32 {S(sW)}, 0")
    saved = list(k.vm)
    k.skip_begin("s_cbranch_scc1", skip)
    fn()
    k.skip_end(skip)
    k.vm = saved

EARLY = opt("early", 0)
def apoll_load(arr):
    k(f"s_add_u32 {S(sPA)}, {S(sREP)}, {hex(FA(arr))}")
    poll_load(vPA, vFP, S(sPA))

def apoll_check():
    poll_check(vPA, vFP, S(sPA))

def aflag(arr):
    flag_all(FA(arr))

def bar():
    k.wait(lg=0)
    k("s_barrier")

CACC, CKR, CXU, CXR = WK, WK + 32, WK + 96, WK + 104
def cprep(D, T, h, defer=False):
    UU, O, RAW, EPS = T, T + 4, T + 8, CXR
    k(f"s_mov_b32 {S(sC0)}, {f2u(1.0/448)}")
    k(f"s_mov_b32 {S(sC1)}, {f2u(1e-5)}")
    k(f"v_mov_b32 {V(EPS)}, {S(sC1)}")
    for j in range(2):
        M, Q, X = D + 4 * j, D + 4 * j + 2, D + 8 + 2 * j
        pk("mul", V(M, 2), V(M, 2), S(sC0, 2), bc=(1,))
        pk("fma", V(Q, 2), V(Q, 2), S(sC0, 2), V(EPS, 2), bc=(1, 2))
        pk("fma", V(Q, 2), V(M, 2), V(M, 2), V(Q, 2), neg=(0,))
        for b in range(2):
            k(f"v_max_f32 {V(Q+b)}, {S(sC1)}, {V(Q+b)}")
        for b in range(2):
            k(f"v_rsq_f32 {V(Q+b)}, {V(Q+b)}")
        for b in range(2):
            k(f"v_lshlrev_b32 {V(UU+b)}, 16, {V(X+b)}")
            k(f"v_and_b32 {V(UU+2+b)}, {S(sHIM)}, {V(X+b)}")
        pk("mul", V(M, 2), V(M, 2), V(Q, 2))
        for c in range(2):
            pk("fma", V(UU + 2 * c, 2), V(UU + 2 * c, 2), V(Q, 2), V(M, 2), neg=(2,))
            k(f"v_perm_b32 {V(RAW+2*c+j)}, {V(X+1)}, {V(X)}, {S(sPERM0+c)}")
        for c in range(2):
            k(f"v_cvt_pk_bf16_f32 {V(O+2*c+j)}, {V(UU+2*c)}, {V(UU+2*c+1)}")
    w = [f"ds_write_b64 {V(vUW)}, {V(O+2*c,2)} offset:{c*U_ST + 2048*h}" for c in range(2)]
    w += [f"ds_write_b64 {V(vXW)}, {V(RAW+2*c,2)} offset:{c*2*SCR_ST + 1024*h}" for c in range(2)]
    if defer:
        return w
    run(w)

def k_ops(I, s, reg):
    o = (128 if I % 2 == 0 else 0) + 16 * (3 - s)
    r = (V if reg[0] == "v" else A)
    return [f"ds_read2_b32 {r(reg[1]+2*h,2)}, {V(vKF+I//2)} offset0:{o+2*h} offset1:{o+2*h+1}" for h in range(2)]

def k_preload():
    return [t for s in range(4) for I in range(4) for t in k_ops(I, s, ("v", CKR + 16 * s + 4 * I))]

def conv(layer):
    k.c("=== conv")
    ACC, XU, XR = CACC, CXU, CXR
    mf = []
    for s in range(4):
        mf += [(0, s, Jp, I) for Jp in range(3, -1, -1) for I in range(4 - Jp)]
    for s in range(3, -1, -1):
        mf += [(1, s, Jp, I) for I in range(7, 0, -1) for Jp in range(4) if 4 <= Jp + I <= 7]
    for s in range(4):
        mf += [(2, s, Jp, I) for Jp in range(7, 3, -1) for I in range(8 - Jp)]
    assert len(mf) == 144
    ukey = lambda p, s, Jp: ("u", 0 if (p == 1 and s == 3) else p, s, Jp)
    kkey = lambda s, I: ("k", s, I)
    first, last = {}, {}
    for n, (p, s, Jp, I) in enumerate(mf):
        for key in (ukey(p, s, Jp), kkey(s, I)):
            first.setdefault(key, n)
            last[key] = n
    reg = {kkey(s, I): ("v", CKR + 16 * s + 4 * I) for s in range(4) for I in range(4)}
    items = sorted((key for key in first if not (layer and key in reg)), key=lambda x: first[x])
    XB, XS = opt("xb", 42), opt("xs", 46)
    slots = [("a", AX + 4 * i) for i in range(8)] + [("v", WK + 108), ("v", ACC + 12)][:opt("xslot", 2)]
    slot_free = ([-1] * 9 + [XB + 4])[:len(slots)]
    RG = lambda r: (V if r[0] == "v" else A)(r[1], 4)
    queue = []
    issued = {}
    def issue(n, budget):
        c = 0
        while True:
            if not queue:
                if not items:
                    return c
                key = items[0]
                if not (first[key] <= n + 2 or (c < budget and first[key] <= n + 20)):
                    return c
                if (layer or DEF0) and key[0] == "u" and key[1] == 2 and n < 104:
                    return c
                if key not in reg:
                    fr = [i for i in range(len(slots)) if slot_free[i] < n]
                    if not fr:
                        assert first[key] > n, (n, key)
                        return c
                    slot_free[fr[0]] = last[key]
                    reg[key] = slots[fr[0]]
                items.pop(0)
                if key[0] == "u":
                    queue.append((key, f"ds_read_b128 {RG(reg[key])}, {V(vUF)} offset:{512*key[3] + 64*(3-key[2])}"))
                else:
                    queue.extend((key, t) for t in k_ops(key[2], key[1], reg[key]))
            elif not (first[queue[0][0]] <= n + 2 or c < budget):
                return c
            key, t = queue.pop(0)
            k(t, tag=key)
            issued[key] = n
            c += 1
    def xblock(ph, packed, addfirst=False):
        l1, lj = newlab("x1"), newlab("xj")
        k(f"s_cmp_eq_u32 {S(sNH)}, 1")
        h0 = list(k.hist)
        k(f"s_cbranch_scc1 {l1}")
        for hf in range(2):
            if hf:
                k.label(l1)
                k.hist = h0
                k.lg = k.lg[:-2]
            a = ACC + 16 * ph
            def adds():
                for i in range(4 if packed else 8):
                    if packed:
                        pk("add", V(XU + 2 * i, 2), V(XU + 2 * i, 2), V(a + 8 * hf + 2 * i, 2))
                    else:
                        k(f"v_add_f32 {V(XU+i)}, {V(XU+i)}, {V(a+8*hf+i)}")
            if addfirst:
                adds()
            for jl in range(2):
                k(f"ds_write_b128 {V(vEXW)}, {V(a+8*(1-hf)+4*jl,4)} offset:{2048+1024*jl}", tag="ex")
            if not addfirst:
                adds()
            if not hf:
                k(f"s_branch {lj}")
        k.label(lj)
    def wait_lg(tag):
        idx = [i for i, p in enumerate(k.lg) if p[2] == tag]
        if idx:
            k.wait(lg=len(k.lg) - 1 - idx[-1])
    def res_ops(ph):
        o = [f"ds_read_b64_tr_b16 {V(XR+2*jl,2)}, {V(vXR)} offset:{1024*ph + 512*jl}" for jl in range(2)]
        o += [None] * 6
        for i in range(4):
            o += [f"v_lshlrev_b32 {V(XU+2*i)}, 16, {V(XR+i)}", f"v_and_b32 {V(XU+2*i+1)}, {S(sHIM)}, {V(XR+i)}"]
        return o
    def recv_ops():
        return [f"ds_read_b128 {V(ACC+4*jl,4)}, {V(vEXR)} offset:{2048+1024*jl}" for jl in range(2)]
    def out_ops(ph, packed):
        if packed:
            o = [f"v_pk_add_f32 {V(XU+2*i,2)}, {V(XU+2*i,2)}, {V(ACC+2*i,2)}" for i in range(4)]
        else:
            o = [f"v_add_f32 {V(XU+i)}, {V(XU+i)}, {V(ACC+i)}" for i in range(8)]
        o += [f"v_cvt_pk_bf16_f32 {V(ACC+8+i)}, {V(XU+2*i)}, {V(XU+2*i+1)}" for i in range(4)]
        o.append(f"s_mov_b32 {S(sT1)}, {hex(X1T + layer*XQ_SZ + 57344*ph)}")
        o.append((f"buffer_store_dwordx4 {V(ACC+8,4)}, {V(vCO)}, {S(SRD_WS,4)}, {S(sT1)} offen sc1", ("cst", ph)))
        return o
    if layer == 0:
        if opt("pw1", -1) < 0:
            poll_load(vWF, vWF + 1, 0)
        if CW:
            run(CW)
        else:
            cprep(WK, WK + 32, 0)
        stamp(7)
        if not DEF0:
            cprep(WK + 12, WK + 44, 1)
    bar()
    if layer and EARLY and opt("fl", 4) < 0:
        aflag(F_CIN1[1])
    fine("cbar")
    FREG[0] = 3
    fine("start")
    stamp(9)
    bg = []
    if layer == 0:
        n1, n2 = opt("w1conv", 18), opt("w2conv", 0)
        bg = [w2_dma] * (28 - ND[0])
        def c1():
            if not opt("abl", 0) & 8:
                poll_check(vWF, vWF + 1, 0)
            w1_load()
        def p2():
            poll_load(vWF, vWF + 2, 0)
            w1_load()
        def c2():
            if not opt("abl", 0) & 16:
                poll_check(vWF, vWF + 2, 0)
            if n2:
                w2_load()
        w = [c1] + [w1_load] * (n1 - 1)
        pos = max(1, n1 - n2 - 7)
        if n2:
            w[pos] = p2
        t = w[:n1 - n2]
        for i in range(n2):
            t += [c2 if i == 0 else w2_load] + w[n1 - n2 + i: n1 - n2 + i + 1]
        if opt("bgord", 2) == 0:
            bg += t
        elif opt("bgord", 2) == 1:
            bg = t + bg
        else:
            m = []
            while bg or t:
                m += t[:1] + bg[:1]
                t, bg = t[1:], bg[1:]
            bg = m
    nbg = len(bg)
    BG0 = opt("bg0", 4)
    step = max(1, (opt("bg1", 138) - BG0) / max(1, nbg))
    side = []
    lastbg = -9
    seen = set()
    CL, FE, PE = opt("cl", XS), opt("fe", 100), opt("pe", 128)
    for n, (p, s, Jp, I) in enumerate(mf):
        if n == 104 and (layer or DEF0):
            assert not side and (layer or NW1[0] <= 25)
            stamp(10)
            cprep(LIN if layer else LATE0, ACC, 1)
            k.wait_tag_vm(("cst", 0))
            bar()
            if FE >= 104:
                aflag(F_X1[layer][0])
            stamp(12)
        cnt = issue(n, (12 if layer == 0 else 5) if n == 0 else 5 if n == 104 and (layer or DEF0) else 1)
        uk, kk = ukey(p, s, Jp), kkey(s, I)
        tags = [q[2] for q in k.lg]
        if uk in tags or kk in tags:
            cand = [i for i, q in enumerate(tags) if q in (uk, kk) or (q in first and first[q] <= n + 3 and issued[q] <= n - 7)]
            k.wait(lg=len(tags) - 1 - max(cand))
        J = Jp + I
        d = V(ACC + 4 * J, 4)
        k(f"v_mfma_f32_16x16x32_bf16 {d}, {RG(reg[uk])}, {RG(reg[kk])}, {d if J in seen else 0}")
        seen.add(J)
        if n == opt("ll0", 8) and layer == 0 and DEF0:
            side += conv_load_ops(0, 1, LATE0)
        if n == 18:
            side += res_ops(0)
        if n == 122:
            side[0:0] = res_ops(1)
        if layer == 0 and n == opt("pw1", -1):
            poll_load(vWF, vWF + 1, 0)
        if layer and EARLY and n == opt("fl", 4):
            k.wait_tag_vm(("st", 1))
            k("s_barrier")
            aflag(F_CIN1[1])
        if layer and n == opt("pcl", 0):
            apoll_load(F_CIN1[1])
        if n == XB:
            assert not side
            xblock(0, bool(opt("xpk", 1)), True)
        if layer and n == CL - 2:
            precmp(vPA)
        if layer and n == CL and CL != XS:
            apoll_check()
            k("s_barrier")
            side += conv_load_ops(1, 1, LIN)
        if n == XS:
            if layer and CL == XS:
                apoll_check()
            wait_lg("ex")
            k("s_barrier")
            run(recv_ops())
            if layer and CL == XS:
                side += conv_load_ops(1, 1, LIN)
        if n == XS + opt("xo", 5):
            run(out_ops(0, bool(opt("xpk", 1))))
        if n == FE and (FE < 104 or not (layer or DEF0)):
            k.wait_tag_vm(("cst", 0))
            k("s_barrier")
            aflag(F_X1[layer][0])
        if n == PE:
            apoll_load(F_X1[layer][0])
        if n in (0, 19, 39, 47, 55, 63, 71, 87, 103, 104, 123, 143):
            fine(f"m{n}")
        if side:
            run(side, 2 if cnt == 0 else 1)
        elif bg and n >= BG0 + step * (nbg - len(bg)) and (cnt == 0 or n >= BG0 + 2 + step * (nbg - len(bg))):
            run(bg, 1)
    assert not items and not queue and not any(x and "v_" in x[:2] for x in side)
    run(side)
    run(bg)
    stamp(13)
    PX = opt("px", 2) if PE > 143 else -1
    if PX == 0:
        apoll_load(F_X1[layer][0])
    xblock(1, True)
    bar()
    run(recv_ops())
    if PX == 1:
        apoll_load(F_X1[layer][0])
    o = out_ops(1, True)
    run(o, len(o) - 1)
    if PX == 2:
        apoll_load(F_X1[layer][0])
    run(o)
    fine("store")
    stamp(11)
    if layer == 0:
        n = min(opt("w1a", 4), 28 - NW1[0])
        k.wait_tag_vm(("w2", 27))
        tr = w2_tr_ops(0, 14)
        for i in range(n):
            w1_load()
            run(tr, len(tr) // (n - i))
        run(tr)
    apoll_check()
    bar()
    fine("pollE")
    stamp(14)

def layer_turn():
    run(k_preload())
    if EARLY:
        LAY[0] = 1
        w = cprep(WK, WK + 12, 0, True)
        run(w)
        if opt("fl", 4) < 0:
            k.wait_tag_vm(("st", 1))
        return
    apoll_check()
    k("s_barrier")
    stamp(20)
    run(conv_load_ops(1, 0, WK))
    k.wait_tag_vm(("st", 1))
    k("s_barrier")
    aflag(F_CIN1[1])
    stamp(21)
    LAY[0] = 1
    if opt("pcl", 0) < 0:
        k.wait(vm=0)
        apoll_load(F_CIN1[1])
    cprep(WK, WK + 12, 0)

G2RES = WK + 100
G2R = WK + 108

GB = 4 if GL else 1024
def gflag_ops(half, local):
    return ["s_mov_b64 exec, 1",
            f"buffer_store_dword {V(vONE)}, {V(vFL)}, {S(SRD_WS,4)}, {S(sFP if local else sFG)} offen offset:{GB*half}" + ("" if local else " sc1"),
            "s_mov_b64 exec, -1"]

def gflag(layer, half):
    run(gflag_ops(half, FAST))

def gcheck(half, pre=()):
    if FAST:
        poll_check(vPL2, vF2P, S(sFP), GB * half, pre=gflag_ops(half, False), alt=(vHL, S(sFG)))
    else:
        poll_check(vPL2, vF2P, S(sFG), GB * half, pre=pre)

def ffn(layer):
    k.c("=== GEMM1")
    FREG[0] = 1
    fine("start")
    ACC = WK
    EP = WK + 64
    vXS = WK + 80
    vB0, vB1 = WK + 81, WK + 82
    if layer:
        k(f"s_add_u32 {S(sXT)}, {S(sXT)}, {hex(XQ_SZ)}")
    k(f"v_add_u32 {V(vXS)}, {S(sXT)}, {V(vL16)}")
    k(f"s_lshl_b32 {S(sT0)}, {S(sW)}, 10")
    k(f"s_mov_b32 m0, {S(sT0)}")
    nx = [0]
    def dma():
        d = nx[0]
        nx[0] += 1
        k(f"buffer_load_dwordx4 {V(vXS)}, {S(SRD_WS,4)}, m0 offen sc1 lds", tag=("x", d))
        if d == 13:
            k(f"v_subrev_u32 {V(vXS)}, 32, {V(vXS)}")
        if d < 27:
            k(f"s_add_u32 m0, m0, {4096 + (32 if d == 13 else 0)}")
    NUP = opt("nup", 9)
    af = addr_ffn(layer)
    FXL = opt("fxl", 5)
    for st in range(NUP):
        dma()
        if st >= 1:
            run(af, opt("afr", 11))
        if st == FXL:
            k.wait_tag_vm(("cst", 1))
            k("s_barrier")
            aflag(F_X1[layer][1])
    af += [f"v_add_u32 {V(vB0)}, {XHALF}, {V(vXA0)}", f"v_add_u32 {V(vB1)}, {XHALF}, {V(vXA1)}"]
    W2CHK = [layer == 0 and NW2[0] == 0]
    if W2CHK[0]:
        k(f"v_mov_b32 {V(WK+97)}, {S(sLDT2)}")
        poll_load(WK + 96, WK + 97, 0)
    if layer == 0:
        touch(1)
    SKA = opt("ska", 10)
    mf = [(0, q, ks) for ks in range(28 - SKA) for q in range(2)]
    mf += [(0, q, ks) for q in range(2) for ks in range(28 - SKA, 28)]
    SK = opt("skb", 22)
    mf += [(1, q, ks) for ks in range(28 - SK) for q in range(2)]
    mf += [(1, q, ks) for q in range(2) for ks in range(28 - SK, 28)]
    NR = 8
    LEAD = opt("g1lead", 7)
    bars = [[2, 5, 9, 14, 16, 19, 23, 28], [1, 3, 6, 9, 14, 17, 21, 28], [2, 5, 9, 14, 18, 23, 28], [2, 6, 14, 20, 28]][opt("bars", 0)]
    ready = [0]
    def rd(n):
        half, q, ks = mf[n]
        st = 14 * half + ks // 2
        if st >= ready[0]:
            nb = [b for b in bars if b > st][0]
            assert nx[0] >= nb, (n, nb, nx[0])
            k.wait_tag_vm(("x", nb - 1))
            k("s_barrier")
            if ready[0] == 0 and FXL >= NUP:
                aflag(F_X1[layer][1])
            ready[0] = nb
        va = ((vXA0, vXA1), (vB0, vB1))[half][q]
        for u in range(2):
            k(f"ds_read_b64_tr_b16 {A(AX+4*(n%NR)+2*u,2)}, {V(va)} offset:{ks*2048+u*512}", tag=("f", n))
        rdat[n] = cur[0]
    rdat, cur, lastw = {}, [-9], [-9]
    def epi(tile):
        ops = []
        e = EP + 8 * (tile & 1)
        for a in range(2):
            for i in range(4):
                ops.append(f"v_cvt_pk_bf16_f32 {V(e+4*a+i)}, {V(ACC+16*tile+8*a+2*i)}, {V(ACC+16*tile+8*a+2*i+1)}")
            for i in range(4):
                ops.append(f"v_pk_max_i16 {V(e+4*a+i)}, {V(e+4*a+i)}, 0")
            if a == 0:
                ops.append(f"s_add_u32 {S(sT1)}, {S(sHS)}, {tile*112*1024}")
            ops.append((f"buffer_store_dwordx4 {V(e+4*a,4)}, {V(vL16)}, {S(SRD_WS,4)}, {S(sT1)} offen offset:{1024*a} sc1", ("h", tile)))
        return ops
    F = WK
    ONE4, DS_, DQ = WK + 84, WK + 88, WK + 92
    srd_ = [f"ds_read_b64_tr_b16 {V(F+4*ks+2*u,2)}, {V(vST)} offset:{ks*4096+u*512}" for ks in range(14) for u in range(2)]
    ring = [("a", AX + 4 * i) for i in range(8)] + [("v", WK + 64 + 4 * i) for i in range(5)]
    NR2 = opt("g2ring", 11)
    ring = ring[:NR2]
    rn = lambda i: (V if ring[i % NR2][0] == "v" else A)(ring[i % NR2][1], 4)
    nl = [0]
    def ld():
        i = nl[0]
        nl[0] += 1
        half, s = divmod(i, 28)
        if s % 4 == 0:
            k(f"s_add_u32 {S(sT4)}, {S(sHL)}, {half*2*112*1024 + s*1024}")
        k(f"buffer_load_dwordx4 {rn(i)}, {V(vL16)}, {S(SRD_WS,4)}, {S(sT4)} offen offset:{1024*(s%4)} sc1" + (" nt" if opt("hnt", 0) else ""))
        if layer == 0 and NW2[0] < 28:
            w2_load()
    CHKA = opt("chkA", 999)
    HOLD = opt("hold", 0)
    held = []
    sentB = False
    pend = af
    nrd = 0
    for n in range(opt("lead0", LEAD)):
        rd(nrd); nrd += 1
    stamp(27)
    cur[0] = 0
    PXL, CXL = opt("pxl", 10), opt("cxl", 28)
    LB = opt("leadb", 4)
    BUD, CVM, CST, CRD = opt("bud", 28), opt("cvm", 12), opt("cst", 24), opt("crd", 4)
    MINL = opt("minl", 5)
    for n, (half, q, ks) in enumerate(mf):
        tile = 2 * half + q
        d = V(ACC + 16 * tile, 16)
        assert NW1[0] > ks, "W1 fragment used before its load"
        k(f"v_mfma_f32_32x32x16_bf16 {d}, {V(W1R+4*ks,4)}, {A(AX+4*(n%NR),4)}, {d if ks else 0}")
        if n == 56 - SKA + opt("ed", 2):
            pend += epi(0)
        if n == 56 + opt("ed", 2):
            pend += epi(1)
        if n == 112 - SK + opt("ed", 2):
            e2 = epi(2)
            if HOLD:
                held = [o for o in e2 if isinstance(o, tuple) or o.startswith("s_")]
                e2 = [o for o in e2 if o not in held]
            pend += e2
        b = BUD
        tags = [p[2] for p in k.lg]
        needw = ("f", n + 1) in tags
        if needw:
            b -= 4
        def newbar(m):
            return 14 * mf[m][0] + mf[m][2] // 2 >= ready[0]
        def may(m):
            return m < len(mf) and m <= n + (LB if m == 56 else LEAD)
        if n == PXL:
            apoll_load(F_X1[layer][1]); b -= CVM + 4
        if n == CXL - 1:
            assert PRECMP[0] is None
            precmp(vPA); b -= 8
        if n == CXL:
            apoll_check()
            if nx[0] == 14 and ready[0] < 14:
                k.wait_tag_vm(("x", 13))
                ready[0] = 14
            k("s_barrier")
            stamp(28); b -= 20
        if n == opt("pollA", 107):
            poll_load(vPL2, vF2P, S(sFP)); b -= CVM
        if n == opt("flagA", 88):
            k.wait_tag_vm(("h", 1))
            gflag(layer, 0); b -= CVM + 12
        if n == CHKA:
            assert opt("flagA", 88) < opt("pollA", 107) < n
            gcheck(0); b -= 12
        if n >= max(CHKA, 104) and nl[0] <= n - 104 and nrd == len(mf) and (n - CHKA) % opt("hstep", 2) == 0:
            ld(); b -= CVM
        while may(nrd) and nrd <= n + MINL - 1:
            b -= 2 * CRD + (12 if newbar(nrd) else 0)
            rd(nrd); nrd += 1
        full = b >= BUD - 4
        if pend and isinstance(pend[0], tuple):
            if full or b >= CST:
                run(pend, 1); b -= CST
        elif full or b >= CVM + 4:
            if nx[0] < 14 and 3 * (nx[0] - NUP) <= n:
                dma(); b -= CVM + 4
            elif n >= CXL and nx[0] < 28 and opt("bstep", 2) * (nx[0] - 14 - opt("bburst", 1)) <= n - CXL:
                dma(); b -= CVM + 4
            elif layer == 0 and n >= lastw[0] + opt("w1step", 3) and NW1[0] < 28:
                w1_load(); b -= CVM; lastw[0] = n
            elif layer == 0 and NW1[0] == 28 and NW2[0] < opt("w2g1", 28) and n >= lastw[0] + opt("w2step", 2) and (n < CXL - opt("w2gap", 8) or nx[0] >= opt("w2x", 28)) and n < opt("w2end", 999):
                if W2CHK[0]:
                    assert PRECMP[0] is None
                    poll_check(WK + 96, WK + 97, 0)
                    W2CHK[0] = False
                w2_load(); b -= CVM; lastw[0] = n
        while True:
            if may(nrd) and b >= 2 * CRD and (nrd <= n + MINL + 1 or not pend or isinstance(pend[0], tuple)):
                b -= 2 * CRD + (12 if newbar(nrd) else 0)
                rd(nrd); nrd += 1
            elif pend and not isinstance(pend[0], tuple) and b >= 4:
                run(pend, 1); b -= 4
            elif nrd == len(mf) and len(srd_) > 12 and b >= CRD and n > 72:
                run(srd_, 1); b -= CRD
            else:
                break
        if needw:
            tags = [p[2] for p in k.lg]
            tgt = ("f", n + 2) if ("f", n + 2) in tags and rdat[n + 2] <= n - opt("wage", 3) else ("f", n + 1)
            idx = [i for i, t_ in enumerate(tags) if t_ == tgt]
            if idx:
                k.wait(lg=len(tags) - 1 - idx[-1])
        cur[0] = n + 1
        assert nrd > n + 1 or nrd == len(mf)
        if n % 8 == 0 or n == 111:
            fine(f"m{n}")
        if opt("g1st", 0) and n in (55, 83):
            stamp({55: 29, 83: 31}[n])
    assert not pend and nx[0] == 28 and NW1[0] == 28 and not W2CHK[0], (pend, nx, NW1)
    FREG[0] = 2
    fine("g1end")
    run(srd_, len(srd_) - 4)
    for i in range(4):
        k(f"v_mov_b32 {V(ONE4+i)}, {S(sONES)}")
    e3 = epi(3)
    if CHKA <= 111:
        held += [o for o in e3 if isinstance(o, tuple) or o.startswith("s_")]
        e3 = [o for o in e3 if o not in held]
        n_pre = opt("hpre", 7) - nl[0]
        for i in range(n_pre):
            ld()
            run(e3, len(e3) // (n_pre - i))
    run(e3)
    run(held)
    if FAST:
        run(gflag_ops(0, False))
    fine("epi3")
    stamp(15)
    run(srd_)
    for h in range(2):
        for u in range(2):
            k(f"ds_read_b64_tr_b16 {V(G2RES+4*h+2*u,2)}, {V(vRES)} offset:{h*XHALF+u*512}")
    if CHKA > 111:
        gcheck(0, ["s_waitcnt vmcnt(0)"] + gflag_ops(1, False))
    fine("pollA")
    stamp(17)
    st = []
    for ks in range(14):
        st.append(f"v_mfma_f32_16x16x32_bf16 {V(DQ,4)}, {V(F+4*ks,4)}, {V(F+4*ks,4)}, {V(DQ,4) if ks else 0}")
        st.append(f"v_mfma_f32_16x16x32_bf16 {V(DS_,4)}, {V(ONE4,4)}, {V(F+4*ks,4)}, {V(DS_,4) if ks else 0}")
    vS, vQ, vT = DS_, ONE4, ONE4 + 1
    post = ["s_mov_b32 vcc_lo, 0x00100001", "s_mov_b32 vcc_hi, 0x10000100",
            f"v_cndmask_b32 {V(vQ)}, 0, {V(DQ)}, vcc"]
    for i in range(1, 4):
        post += ["s_lshl_b64 vcc, vcc, 1", f"v_cndmask_b32 {V(vQ)}, {V(vQ)}, {V(DQ+i)}, vcc"]
    post += [f"v_mov_b32 {V(vT)}, {V(vQ)}", f"v_mul_f32 {V(vS)}, {f2u(1.0/448)}, {V(vS)}", None,
             f"v_permlane32_swap_b32 {V(vQ)}, {V(vT)}", f"v_add_f32 {V(vQ)}, {V(vQ)}, {V(vT)}",
             f"v_mov_b32 {V(vT)}, {V(vQ)}", None, None,
             f"v_permlane16_swap_b32 {V(vQ)}, {V(vT)}", f"v_add_f32 {V(vQ)}, {V(vQ)}, {V(vT)}",
             f"v_mul_f32 {V(vQ)}, {f2u(1.0/448)}, {V(vQ)}",
             f"v_fma_f32 {V(vQ)}, -{V(vS)}, {V(vS)}, {V(vQ)}",
             f"v_max_f32 {V(vQ)}, 0, {V(vQ)}",
             f"v_add_f32 {V(vQ)}, {f2u(1e-5)}, {V(vQ)}",
             f"v_rsq_f32 {V(vQ)}, {V(vQ)}", None,
             f"v_mov_b32 {V(G2R)}, {V(vQ)}",
             f"v_mov_b32 {V(G2R+2)}, {V(vQ)}", None, None,
             f"v_mov_b32_dpp {V(G2R)}, {V(vQ)} row_ror:8 row_mask:0xf bank_mask:0xc",
             f"v_mov_b32_dpp {V(G2R+2)}, {V(vQ)} row_ror:8 row_mask:0xf bank_mask:0x3"]

    k.c("=== GEMM2")
    NR = NR2
    def red_write(half):
        return [f"ds_write_b128 {V(vRW)}, {V(ACC+32*half+4*G,4)} offset:{half*RED_H+G*RED_G}" for G in range(8)]
    def red_read(half):
        return [f"ds_read_b128 {V(ACC+32*half+8*w+4*g,4)}, {V(vRR)} offset:{half*RED_H+w*RED_W+512*g}" for w in range(4) for g in range(2)]
    def unpack(half, u):
        o = []
        for i in range(4):
            o.append(f"v_lshlrev_b32 {V(u+2*i)}, 16, {V(G2RES+4*half+i)}")
            o.append(f"v_and_b32 {V(u+2*i+1)}, {S(sHIM)}, {V(G2RES+4*half+i)}")
        return o
    UR = WK + 84
    def fin(half, pre):
        a = ACC + 32 * half
        u = UR
        ops = []
        def P(d, x, y):
            if pre:
                ops.append(f"v_pk_add_f32 {V(d,2)}, {V(x,2)}, {V(y,2)}")
            else:
                ops.extend(f"v_add_f32 {V(d+h)}, {V(x+h)}, {V(y+h)}" for h in range(2))
        for i in range(4):
            P(a + 2 * i, a + 2 * i, a + 8 + 2 * i)
        for i in range(4):
            P(a + 16 + 2 * i, a + 16 + 2 * i, a + 24 + 2 * i)
        for i in range(4):
            P(a + 2 * i, a + 2 * i, a + 16 + 2 * i)
        for i in range(4):
            if pre:
                ops.append(f"v_pk_fma_f32 {V(a+2*i,2)}, {V(a+2*i,2)}, {V(G2R+2*half,2)}, {V(u+2*i,2)} op_sel_hi:[1,0,1]")
            else:
                ops.extend(f"v_fma_f32 {V(a+2*i+h)}, {V(a+2*i+h)}, {V(G2R+2*half)}, {V(u+2*i+h)}" for h in range(2))
        for i in range(4):
            ops.append(f"v_cvt_pk_bf16_f32 {V(a+24+i)}, {V(a+2*i)}, {V(a+2*i+1)}")
        if layer == 0:
            ops += quad_shuffle([(a + 28, a + 24)])
            ops.append(f"s_mov_b32 {S(sT1)}, {hex(XQ + XQ_SZ + 8192*half)}")
            if half and not EARLY:
                ops.append(lambda: apoll_load(F_CIN1[0]))
            ops.append((f"buffer_store_dwordx4 {V(a+28,4)}, {V(vO)}, {S(SRD_WS,4)}, {S(sT1)} offen sc1", ("st", half)))
            so = stats_ops(a + 24, 4, a, a + 1, a + 2)
            if not pre:
                so = so[10:]
                for i in range(4):
                    ops.append(f"v_lshlrev_b32 {V(a+16+2*i)}, 16, {V(a+24+i)}")
                    ops.append(f"v_and_b32 {V(a+16+2*i+1)}, {S(sHIM)}, {V(a+24+i)}")
                ops.append(f"v_add_f32 {V(a)}, {V(a+16)}, {V(a+17)}")
                ops.append(f"v_mul_f32 {V(a+1)}, {V(a+16)}, {V(a+16)}")
                for i in range(1, 8):
                    if i > 1:
                        ops.append(f"v_add_f32 {V(a)}, {V(a)}, {V(a+16+i)}")
                    ops.append(f"v_fmac_f32 {V(a+1)}, {V(a+16+i)}, {V(a+16+i)}")
            ops += so
            def at():
                k(f"s_mov_b32 {S(sT1)}, {hex(STATS[1] + 8192*half)}")
                k("s_mov_b32 exec_lo, 0xff")
                k("s_mov_b32 exec_hi, 0xff")
                k(f"buffer_atomic_add_f32 {V(a)}, {V(vAT)}, {S(SRD_WS,4)}, {S(sT1)} offen sc1", tag=("st", half))
                k("s_mov_b64 exec, -1")
            ops.append(at)
        else:
            ops.append(f"s_mov_b32 {S(sT1)}, {1024*896*half}")
            ops.append(f"buffer_store_dwordx4 {V(a+24,4)}, {V(vO)}, {S(SRD_OUT,4)}, {S(sT1)} offen" + ("", " sc1", " nt", " sc0 sc1")[opt("osc", 0) if half or opt("osc", 0) < 10 else 0])
        return ops
    NUP2 = opt("nup2", NR)
    for i in range(nl[0], NUP2):
        ld()
        run(st, (len(st) + NUP2 - i - 1) // (NUP2 - i))
        if i == opt("flagB", 9):
            k.wait_tag_vm(("h", 3))
            gflag(layer, 1)
            sentB = True
    assert not st
    fine("up2")
    stamp(16)
    PB = opt("pollB", 7)
    TL = opt("tl", 4)
    order = [(i, dt) for i in range(56 - TL) for dt in range(2)] + [(i, dt) for dt in range(2) for i in range(56 - TL, 56)]
    bar()
    GAP = "gap"
    pend = [GAP] * 2 + [GAP if o is None else o for o in post] + unpack(0, UR)
    okB = False
    flagE = layer == 1
    BUD2 = opt("bud2", 24)
    for n, (i, dt) in enumerate(order):
        half, s = divmod(i, 28)
        d = V(ACC + 32 * half + 16 * dt, 16)
        assert NW2[0] + 28 > s * 2 + dt, "W2 fragment used before its load"
        k(f"v_mfma_f32_32x32x16_bf16 {d}, {A((s*2+dt)*4,4)}, {rn(i)}, {d if s else 0}")
        b = (BUD2 if i < 28 else opt("bud3", BUD2)) - (4 if dt else 0)
        if dt == 0 and i < 56 - TL:
            if i + NUP2 == opt("flagB", 9):
                k.wait_tag_vm(("h", 3))
                gflag(layer, 1)
                sentB = True
                b = 0
            if i == PB:
                poll_load(vPL2, vF2P, S(sFP), GB)
                assert sentB
                b -= 14
            if nl[0] == 28 and not okB and i > PB and (i >= opt("chkB", 99) or not any(f"v{vPL2}" in p[0] for p in k.vm[1:])):
                assert not pend
                precmp(vPL2)
                okB = None
        if dt == 1 and okB is None:
            gcheck(1)
            if FAST:
                pend += [GAP, lambda: run(gflag_ops(1, False))]
            okB = True
            b -= 4
        if dt == 1 and i < 56 - TL:
            if i in (13, 27, 41):
                stamp({13: 8, 27: 23, 41: 26}[i])
            if i == opt("red0", 29):
                for o in red_write(0):
                    pend += [o] + [GAP] * opt("rwg", 1)
                pend += [GAP] * opt("rw2", 1) + [bar] + red_read(0) + [GAP] * opt("rr2", 2) + fin(0, False) + unpack(1, UR)
        assert i < 56 - TL or nl[0] == 56
        if nl[0] < 56 and nl[0] - NR < i + dt and (nl[0] < 28 or okB) and (dt or opt("catch", 1)):
            ld()
            b -= 14
        while pend and not (layer and nl[0] < 56 and "buffer_store" in str(pend[0])):
            o = pend[0]
            if o is GAP:
                pend.pop(0)
                break
            cost = 8 if str(o).startswith("ds_read") else 4
            if b < cost and not str(o).startswith("ds_write"):
                break
            run(pend, 1)
            b -= cost if isinstance(o, str) else 16
        if n == opt("flagE", 109) and layer == 0:
            assert not any("atomic" in str(o) or callable(o) for o in pend)
            k.wait_tag_vm(("st", 0))
            k("s_barrier")
            aflag(F_CIN1[0])
            flagE = True
        if EARLY and layer == 0 and n == opt("pollE", 108):
            assert flagE
            apoll_load(F_CIN1[0])
        if n % 10 == 1:
            fine(f"m{n}")
        if n == 112 - TL - 1:
            assert not pend
            pend += ["s_nop 3", GAP, "s_nop 3", GAP]
            for o in red_write(1)[:4]:
                pend += [o, GAP]
    run([o for o in pend if o is not GAP])
    assert nl[0] == 56 and okB
    stamp(18)
    run(red_write(1)[4:])
    if not flagE:
        k.wait_tag_vm(("st", 0))
    if EARLY == 1 and layer == 0:
        apoll_check()
    bar()
    if not flagE:
        aflag(F_CIN1[0])
    fine("bar")
    run(red_read(1))
    if EARLY == 1 and layer == 0:
        run(conv_load_ops(1, 0, WK))
    o = fin(1, True)
    if EARLY == 2 and layer == 0:
        run(o, [i for i, x in enumerate(o) if isinstance(x, tuple)][0])
        apoll_check()
        k("s_barrier")
        run(conv_load_ops(1, 0, WK))
    run(o)
    fine("out")
    stamp(19)

def finish():
    if ENC >= 0:
        k.wait(vm=0)
        stamp(22)
        k(f"s_cmp_lg_u32 {S(sWG)}, 100")
        k("s_cbranch_scc1 L_end")
        k("s_sub_u32 s47, s47, s46" if ENC else "s_sub_u32 s47, s46, s46")
        k("s_mul_i32 s47, s47, 100")
        k("s_min_u32 s47, s47, 1000000")
        k(f"s_memrealtime {S(sTM,2)}")
        k.wait(lg=0)
        k(f"s_mov_b32 s46, {S(sTM)}")
        k.label("L_spin")
        k(f"s_memrealtime {S(sTM,2)}")
        k.wait(lg=0)
        k(f"s_sub_u32 {S(sT0)}, {S(sTM)}, s46")
        k(f"s_cmp_lt_u32 {S(sT0)}, s47")
        k("s_cbranch_scc1 L_spin")
    if DIAG:
        k.wait(vm=0)
        stamp(22)
        for n, (name, r) in enumerate(FINE):
            k(f"v_writelane_b32 {V(vSTAMP)}, s{r}, {20 + n}")
        k(f"v_writelane_b32 {V(vSTAMP)}, s101, 61")
        k.raw("; SITES " + " ".join(SITES))
        if FINE:
            k.raw("; FINE " + " ".join(n for n, _ in FINE))
        k(f"s_lshl_b32 {S(sT0)}, {S(sWG)}, 10")
        k(f"s_add_u32 {S(sT0)}, {S(sT0)}, {hex(STAMP)}")
        k(f"s_lshl_b32 {S(sT1)}, {S(sW)}, 8")
        k(f"v_lshl_add_u32 {V(WK)}, {V(vL)}, 2, {S(sT1)}")
        k(f"buffer_store_dword {V(vSTAMP)}, {V(WK)}, {S(SRD_WS,4)}, {S(sT0)} offen")
    k.label("L_end")
    k("s_endpgm")

prologue()
main_start()
kgen()
conv(0)
ffn(0)
layer_turn()
conv(1)
ffn(1)
finish()
cut = [i for i, l in enumerate(SLOW) if l.startswith("L_slow")]
NS = opt("ns", 4)
first = len(cut) - 10
for n, i in enumerate(cut):
    if n >= first and (n - first) % 3 == 0 and (n - first) // 3 < 4:
        k.raw(f"L_st{(n - first) // 3}:")
        k.raw("    s_branch L_ret1")
    for l in SLOW[i:(cut + [len(SLOW)])[n + 1]]:
        k.raw(l)
SLOW.clear()
LAY[0] = 0
helper()
body = list(k.lines) + SLOW
body += [".p2align 4", ".type L_table,@object", "L_table:"]
body += [".long " + ",".join(hex(w) for w in r) for r in table_words()]
body += ["L_table_end:"]

ref = open("cdna_kernels/%s.s.ref" % NAME).read().splitlines()
hdr = [l for l in ref if l.startswith(";") and "@launch" not in l]
head = f""".amdgcn_target "amdgcn-amd-amdhsa--gfx950"
.text
.globl {NAME}_kernel
.p2align 8
.type {NAME}_kernel,@function
{NAME}_kernel:
"""
if opt("align", 1):
    body = align(body, head, stubs=stub_targets())
out = "\n".join(hdr) + f"\n; @launch grid=(256,1,1) block=(256,1,1) lds={LDS_BYTES}\n"
out += head + "\n".join(body) + "\n"
out += f""".section .rodata,"a"
.p2align 6
.amdhsa_kernel {NAME}_kernel
  .amdhsa_next_free_vgpr 512
  .amdhsa_next_free_sgpr 102
  .amdhsa_accum_offset 256
  .amdhsa_group_segment_fixed_size 0
  .amdhsa_kernarg_size 120
  .amdhsa_user_sgpr_count 2
  .amdhsa_user_sgpr_kernarg_segment_ptr 1
  .amdhsa_system_sgpr_workgroup_id_x 1
.end_amdhsa_kernel
"""
dst = [a for a in sys.argv[1:] if not a.startswith("--")]
dst = dst[0] if dst else "cdna_kernels/%s.s" % NAME
open(dst, "w").write(out)
print("instructions:", k.nins, "->", dst)
```

```python
import sys, struct
from emit import Asm, V, A, S
from align import align

NAME = "interleave_layers__ssm_conv_s4__dense_activation_relu__prompt"
DIAG = "--diag" in sys.argv
OPT = {"pe.0": 142, "pxl.0": 18, "cxl.0": 36, "pxl.1": 13, "cxl.1": 31, "pollB.0": 10, "pollB.1": 9, "bud3.0": 36}
for a in sys.argv:
    if a.startswith("--") and "=" in a:
        n, v = a[2:].split("=")
        OPT[n] = int(v)
LAY = [0]
def opt(n, d):
    return OPT.get(f"{n}.{LAY[0]}", OPT.get(n, d))

def f2u(x):
    return "0x%08x" % struct.unpack("<I", struct.pack("<f", x))[0]

GL, AL = opt("gl", 5), opt("al", 0)
FA = (lambda n: 0x8000 + 4 * n if n else 0) if AL else (lambda n: n * 0x8000)
F_CIN0, F_X1, F_CIN1 = 0, ((1, 2), (5, 6)), (3, 4)
FLG_G = 0x8000 + (2048 << AL if AL else 0x30000)
FAST = opt("fast", 1)
PQ = 1024 << GL
ZEND = FLG_G + (PQ if FAST else 0) + (1024 << GL if GL else 0x10000) + 0x8000
STATS = (0x1804000, ZEND - 0x8000)
XQ = 0x1820000
XQ_SZ = 0x1C0000
X1T = 0x3E0000
HB = 0x760000
H_SZ = 0x700000
W1C = 0x1560000
FLG_W = ZEND - 0x4000
STAMP = 0x1700000
W2T = 0x1740000
WS_BYTES = 0x1BA0000

XHALF = 57344 + 32
SCR = 114816
SCR_ST = 8960
KC0 = 4608
ROW_ST = 544
UARR = SCR + 4 * SCR_ST
U_ST = 4576
LDS_BYTES = 163840
WREG = 28672
RED_G = 1152
RED_W = 8 * RED_G
RED_H = 4 * RED_W

sWG, sW = 2, 3
SRD_WS, SRD_OUT, SRD_W1, SRD_W2, SRD_X0, SRD_DBG = 4, 8, 12, 16, 20, 24
sCP, sGAM, sJ, sHH, sDS, sROT = 58, 59, 60, 61, 62, 63
sONES, sHIM = 64, 65
sT0, sT1, sT2, sT3, sT4, sT5 = 66, 67, 68, 69, 70, 71
sLDT, sDSK = 72, 73
sREP, sXQi, sW2B, sXT, sHL, sHS, sFG = 74, 75, 76, 77, 78, 79, 80
sSPIN = 81
sC0, sC1 = 82, 83
sPC = 84
sTM = 86
sWL = 88
sW2O = 89
sSCR, sSCH = 90, 95
sPERM0, sPERM1 = 91, 92
sNH, sCH = 93, 94
sXS = 100
sLDT2 = 99
sFP = 98
sKO = 28
sW2L, sPA = 96, 97

vTID, vL, vL16 = 0, 1, 2
vCX, vUW, vXW = 3, 4, 5
vKF = 6
vUF, vXR, vCO, vEXW, vEXR = 10, 11, 12, 13, 14
vFW, vFP, vONE, vSTAMP, vPA = 15, 16, 17, 18, 19
vXA0, vXA1, vST, vRES, vRW, vRR, vO, vAT, vF2P, vFL, vHL, vPL2 = range(20, 32)
vW2S, vW2R, vWF, vDUM = 20, 21, 23, 26
LIN = 20
WK = 32
W1R = 144
AX = 224

k = Asm()
SPIN_MAX = 1 << 16

ENC = opt("enc", -1)
def stamp(idx, cyc=False):
    if ENC >= 0 and not cyc and idx + 32 * LAY[0] in (0, ENC):
        k.wait(lg=0)
        k(f"s_memrealtime {S(sTM,2)}")
        k.wait(lg=0)
        k(f"s_mov_b32 {S(46 if idx + 32*LAY[0] == 0 else 47)}, {S(sTM)}")
    if not DIAG:
        return
    if opt("lite", 0) and idx + 32 * LAY[0] not in (0, 9, 14, 19, 46, 54):
        return
    k.wait(lg=0)
    k(f"{'s_memtime' if cyc != bool(opt('cyc', 0)) else 's_memrealtime'} {S(sTM,2)}")
    k.wait(lg=0)
    k(f"v_writelane_b32 {V(vSTAMP)}, {S(sTM)}, {idx + 32*LAY[0]}")

FINE = []
def fine(name):
    if not DIAG or opt("fine", 0) != FREG[0] or opt("finel", 1) != LAY[0]:
        return
    regs = list(range(28, 46, 2)) + [12, 14, 20, 22, 48, 50, 54, 56] + ([] if FREG[0] == 4 else [24, 26])
    r = regs[len(FINE)]
    FINE.append((name, r))
    k.raw(f"    s_memtime s[{r}:{r+1}]")
FREG = [0]

def srd(base, ptr, nbytes):
    k(f"s_mov_b32 {S(base)}, {S(ptr)}")
    k(f"s_and_b32 {S(base+1)}, {S(ptr+1)}, 0xffff")
    k(f"s_mov_b32 {S(base+2)}, {hex(nbytes)}")
    k(f"s_mov_b32 {S(base+3)}, 0x20000")

_lab = [0]
def newlab(p):
    _lab[0] += 1
    return f"L_{p}_{_lab[0]}"

def branch(op, lab):
    k.fence(1)
    k(f"{op} {lab}")

def label(lab):
    k.fence()
    k.label(lab)

def poll_load(vtmp, vaddr, soff, off=0, srdn=SRD_WS):
    k(f"buffer_load_dword {V(vtmp)}, {V(vaddr)}, {S(srdn,4)}, {soff} offen offset:{off} sc1")

PRECMP = [None]
def precmp(vtmp):
    if opt("pre", 1):
        k(f"v_cmp_eq_u32 vcc, 0, {V(vtmp)}")
        PRECMP[0] = vtmp
SLOW = []
SITES = []
def poll_check(vtmp, vaddr, soff, off=0, srdn=SRD_WS, pre=(), alt=None):
    sl, lp, ok = newlab("slow"), newlab("poll"), newlab("ok")
    if PRECMP[0] != vtmp:
        k(f"v_cmp_eq_u32 vcc, 0, {V(vtmp)}")
    PRECMP[0] = None
    k(f"s_cbranch_vccnz {sl}")
    k.label(ok)
    import inspect
    SITES.append(inspect.stack()[2 if inspect.stack()[1].function == "apoll_check" else 1].function + str(LAY[0]))
    slp = opt("sl_" + SITES[-1], opt("sleep", 0))
    if opt("pipe", 3) and vaddr == vFP:
        ld_ = lambda r: f"    buffer_load_dword {V(r)}, {V(vaddr)}, {S(srdn,4)}, {soff} offen offset:{off} sc1"
        SLOW.extend([f"{sl}:"] + ([f"    s_bitset1_b32 s101, {len(SITES)-1}"] if DIAG else []) +
                    [ld_(vtmp), f"    s_mov_b32 {S(sSPIN)}, 0", f"    s_sleep {opt('pipe', 3)}", f"{lp}:",
                     ld_(vTID), f"    s_add_u32 {S(sSPIN)}, {S(sSPIN)}, 1", "    s_waitcnt vmcnt(1)",
                     f"    v_cmp_eq_u32 vcc, 0, {V(vtmp)}", f"    s_cmp_gt_u32 {S(sSPIN)}, {SPIN_MAX}",
                     f"    s_cbranch_vccz {ok}",
                     ld_(vtmp), "    s_waitcnt vmcnt(1)",
                     f"    v_cmp_eq_u32 vcc, 0, {V(vTID)}",
                     f"    s_cbranch_scc1 {ok}",
                     f"    s_cbranch_vccnz {lp}",
                     f"    s_branch {ok}"])
        return
    SLOW.extend([f"{sl}:"] + ([f"    s_bitset1_b32 s101, {len(SITES)-1}"] if DIAG else []) +
                ([f"    s_mov_b32 {S(sSPIN)}, 0",
                  f"{lp}q:",
                  f"    buffer_load_dword {V(vtmp)}, {V(vaddr)}, {S(srdn,4)}, {soff} offen offset:{off} sc1",
                  f"    s_add_u32 {S(sSPIN)}, {S(sSPIN)}, 1",
                  "    s_waitcnt vmcnt(0)",
                  f"    v_cmp_eq_u32 vcc, 0, {V(vtmp)}",
                  f"    s_cmp_lt_u32 {S(sSPIN)}, 10",
                  f"    s_cbranch_vccz {ok}",
                  f"    s_cbranch_scc1 {lp}q"] if alt else []) +
                ["    " + p for p in pre] +
                [f"    s_mov_b32 {S(sSPIN)}, 0",
                 f"{lp}:"] +
                ([f"    s_sleep {slp}"] if slp else []) +
                [f"    buffer_load_dword {V(vtmp)}, {V(vaddr)}, {S(srdn,4)}, {soff} offen offset:{off} sc1",
                 f"    s_add_u32 {S(sSPIN)}, {S(sSPIN)}, 1"] +
                ([f"    buffer_load_dword {V(alt[0])}, {V(vaddr)}, {S(srdn,4)}, {alt[1]} offen offset:{off} sc1"] if alt else []) +
                ["    s_waitcnt vmcnt(0)"] +
                ([f"    v_or_b32 {V(vtmp)}, {V(vtmp)}, {V(alt[0])}"] if alt else []) +
                [
                 f"    v_cmp_eq_u32 vcc, 0, {V(vtmp)}",
                 f"    s_cmp_gt_u32 {S(sSPIN)}, {SPIN_MAX}",
                 f"    s_cbranch_scc1 {ok}",
                 f"    s_cbranch_vccnz {lp}",
                 f"    s_branch {ok}"])

def run(ops, n=None):
    c = 0
    while ops and (n is None or c < n):
        o = ops.pop(0)
        if callable(o):
            o()
        elif isinstance(o, tuple):
            k(o[0], tag=o[1])
        elif o is not None:
            k(o)
        c += 1

def stats_ops(P, n, vS, vQ, vT):
    o = [f"v_mov_b32 {V(vS)}, 0", f"v_mov_b32 {V(vQ)}, 0"]
    for i in range(n):
        o.append(f"v_dot2c_f32_bf16 {V(vS)}, {S(sONES)}, {V(P+i)}")
        o.append(f"v_dot2c_f32_bf16 {V(vQ)}, {V(P+i)}, {V(P+i)}")
    o += [f"v_permlane32_swap_b32 {V(vS)}, {V(vQ)}",
          f"v_add_f32 {V(vS)}, {V(vS)}, {V(vQ)}",
          f"v_mov_b32 {V(vT)}, {V(vS)}",
          f"v_permlane16_swap_b32 {V(vS)}, {V(vT)}",
          f"v_add_f32 {V(vS)}, {V(vS)}, {V(vT)}",
          f"v_add_f32_dpp {V(vS)}, {V(vS)}, {V(vS)} row_ror:8 row_mask:0xf bank_mask:0xf",
          f"v_lshrrev_b32 {V(vT)}, 1, {V(vS)}",
          f"v_add_u32 {V(vQ)}, {hex(8 << 23)}, {V(vS)}",
          f"v_add_u32 {V(vT)}, {hex(0x1FC00000 + (13 << 23))}, {V(vT)}",
          f"v_permlane32_swap_b32 {V(vT)}, {V(vQ)}",
          f"v_and_b32 {V(vQ)}, 0x7f800000, {V(vQ)}",
          f"v_mul_f32 {V(vQ)}, 0x3fc00000, {V(vQ)}",
          f"v_add_f32 {V(vS)}, {V(vS)}, {V(vQ)}",
          f"v_sub_f32 {V(vS)}, {V(vS)}, {V(vQ)}"]
    return o

def quad_shuffle(pairs):
    D = " row_mask:0xf bank_mask:0xf"
    o = ["s_mov_b32 vcc_lo, 0x0f0f0f0f", "s_mov_b32 vcc_hi, 0x0f0f0f0f"]
    for d, s in pairs:
        o.append(f"v_cndmask_b32_dpp {V(d)}, {V(s+2)}, {V(s)}, vcc row_ror:4" + D)
        o.append(f"v_cndmask_b32_dpp {V(d+2)}, {V(s+3)}, {V(s+1)}, vcc row_ror:4" + D)
    o.append("s_not_b64 vcc, vcc")
    for d, s in pairs:
        o.append(f"v_cndmask_b32_dpp {V(d+1)}, {V(s)}, {V(s+2)}, vcc row_ror:12" + D)
        o.append(f"v_cndmask_b32_dpp {V(d+3)}, {V(s+1)}, {V(s+3)}, vcc row_ror:12" + D)
    return o

X0R = WK
X0O = WK + 8
vP0A = WK + 16
vP0S = WK + 20
vGO = WK + 28

def p0x_addr():
    k.c("row re-layout unit of this wave: W = 4m+w, octet group a = W%7, rows (blk, j2) = W/7, both hh8")
    t = vP0A
    k(f"s_sub_u32 {S(sT0)}, {S(sWG)}, 32")
    k(f"s_lshl2_add_u32 {S(sT0)}, {S(sT0)}, {S(sW)}")
    k(f"s_mul_i32 {S(sT1)}, {S(sT0)}, 9363")
    k(f"s_lshr_b32 {S(sT1)}, {S(sT1)}, 16")
    k(f"s_mul_i32 {S(sT2)}, {S(sT1)}, 7")
    k(f"s_sub_u32 {S(sT0)}, {S(sT0)}, {S(sT2)}")
    k(f"s_lshr_b32 {S(sT2)}, {S(sT1)}, 2")
    k(f"s_lshl_b32 {S(sT2)}, {S(sT2)}, 6")
    k(f"s_and_b32 {S(sT3)}, {S(sT1)}, 3")
    k(f"s_lshl1_add_u32 {S(sT2)}, {S(sT3)}, {S(sT2)}")
    k(f"v_and_b32 {V(t+1)}, 0x30, {V(vL16)}")
    k(f"v_bfe_u32 {V(t)}, {V(vL)}, 2, 1")
    k(f"v_add3_u32 {V(t+3)}, {V(t+1)}, {V(t)}, {S(sT2)}")
    k(f"v_mul_u32_u24 {V(t+3)}, 896, {V(t+3)}")
    k(f"v_lshrrev_b32 {V(t+2)}, 3, {V(vL)}")
    k(f"v_lshl_add_u32 {V(t+3)}, {V(t+2)}, 4, {V(t+3)}")
    k(f"s_lshl_b32 {S(sT2)}, {S(sT0)}, 7")
    k(f"v_add_u32 {V(t+3)}, {S(sT2)}, {V(t+3)}")
    k(f"v_lshl_add_u32 {V(t)}, {V(t)}, 2, {V(t+1)}")
    k(f"v_lshrrev_b32 {V(t+2)}, 5, {V(vL)}")
    k(f"v_lshl_add_u32 {V(t)}, {V(t+2)}, 3, {V(t)}")
    k(f"s_lshl_b32 {S(sT2)}, {S(sT1)}, 7")
    k(f"v_add_u32 {V(t)}, {S(sT2)}, {V(t)}")
    k(f"v_lshrrev_b32 {V(t+2)}, 2, {V(vL)}")
    k(f"v_lshl_add_u32 {V(t+1)}, {V(t+2)}, 14, {V(t+1)}")
    k(f"s_lshl_b32 {S(sT0)}, {S(sT0)}, 18")
    k(f"s_lshl_b32 {S(sT1)}, {S(sT1)}, 7")
    k(f"s_add_u32 {S(sT0)}, {S(sT0)}, {S(sT1)}")
    k(f"v_add_u32 {V(t+1)}, {S(sT0)}, {V(t+1)}")

def p0x_loads():
    k(f"s_movk_i32 {S(sT0)}, {8*896}")
    k(f"buffer_load_dwordx4 {V(X0R,4)}, {V(vP0A+3)}, {S(SRD_X0,4)}, 0 offen")
    k(f"buffer_load_dwordx4 {V(X0R+4,4)}, {V(vP0A+3)}, {S(SRD_X0,4)}, {S(sT0)} offen")

def p0x_body():
    t = vP0A
    if opt("goearly", 2) == 1:
        k.wait(vm=len(k.vm) - 2)
        poll_load(vGO, vGO + 3, 0, 0, SRD_DBG)
    run(quad_shuffle([(X0O + 4 * a, X0R + 4 * a) for a in range(2)]))
    k(f"s_mov_b32 {S(sT0)}, {hex(XQ)}")
    for a in range(2):
        k(f"buffer_store_dwordx4 {V(X0O+4*a,4)}, {V(t+1)}, {S(SRD_WS,4)}, {S(sT0)} offen offset:{64*a} sc1")
    s0 = stats_ops(X0R, 4, vP0S, vP0S + 1, vP0S + 2)
    s1 = stats_ops(X0R + 4, 4, vP0S + 4, vP0S + 5, vP0S + 6)
    while s0:
        run(s0, 1)
        run(s1, 1)
    if opt("goearly", 2) == 2:
        poll_load(vGO, vGO + 3, 0, 0, SRD_DBG)

def p0x_atomics():
    poll_check(vGO, vGO + 3, 0, 0, SRD_DBG)
    k(f"s_mov_b32 {S(sT0)}, {hex(STATS[0])}")
    k("s_mov_b32 exec_lo, 0xff")
    k("s_mov_b32 exec_hi, 0xff")
    for a in range(2):
        k(f"buffer_atomic_add_f32 {V(vP0S+4*a)}, {V(vP0A)}, {S(SRD_WS,4)}, {S(sT0)} offen offset:{64*a} sc1", tag="st")
    k("s_mov_b64 exec, -1")
    poll_load(vGO, vGO + 2, 0, 128, SRD_DBG)
    if opt("warmat", 2) == 3:
        warm_loads()

def flag_all(off):
    k(f"s_mov_b32 {S(sT0)}, {hex(off)}")
    k(f"s_mov_b64 exec, 3")
    k(f"buffer_store_dword {V(vONE)}, {V(vFW)}, {S(SRD_WS,4)}, {S(sT0)} offen sc1")
    k(f"s_mov_b64 exec, -1")

ND = [0]
def w2_dma():
    d = ND[0]
    ND[0] += 1
    if opt("abl", 0) & 2:
        return
    if opt("rot", 1):
        if d == 0:
            k(f"s_and_b32 {S(sROT)}, {S(sWG)}, 7")
            k(f"s_min_u32 {S(sROT)}, {S(sROT)}, 6")
            k(f"s_mul_i32 {S(sXS)}, {S(sW)}, {WREG}")
        elif d % 4 == 0:
            k(f"s_add_u32 {S(sROT)}, {S(sROT)}, 1")
            k(f"s_cmp_eq_u32 {S(sROT)}, 7")
            k(f"s_cselect_b32 {S(sROT)}, 0, {S(sROT)}")
        if d % 4 == 0:
            k(f"s_lshl_b32 {S(sT4)}, {S(sROT)}, 12")
            k(f"s_add_u32 m0, {S(sT4)}, {S(sXS)}")
            k(f"s_mul_i32 {S(sW2O)}, {S(sT4)}, 7")
            k(f"s_add_u32 {S(sW2O)}, {S(sW2O)}, {S(sW2B)}")
        else:
            k(f"s_add_u32 {S(sW2O)}, {S(sW2O)}, {7168 - 1024}")
        k(f"buffer_load_dwordx4 {V(vW2S)}, {S(SRD_W2,4)}, {S(sW2O)} offen offset:{1024*(d%4)} lds", tag=("w2", d))
        return
    if d == 0:
        k(f"s_mul_i32 {S(sT4)}, {S(sW)}, {WREG}")
        k(f"s_mov_b32 m0, {S(sT4)}")
    elif d % 4 == 0:
        k(f"s_add_u32 m0, m0, 4096")
    if d:
        k(f"s_add_u32 {S(sW2B)}, {S(sW2B)}, {7168 - 1024 + (4096 if d % 4 == 0 else 0)}")
    k(f"buffer_load_dwordx4 {V(vW2S)}, {S(SRD_W2,4)}, {S(sW2B)} offen offset:{1024*(d%4)} lds", tag=("w2", d))

NW2 = [0]
def w2_load():
    n = NW2[0]
    NW2[0] += 1
    if opt("abl", 0) & 4:
        return
    k(f"buffer_load_dwordx4 {A(112+4*n,4)}, {V(vL16)}, {S(SRD_WS,4)}, {S(sW2L)} offen offset:{1024*(n%4)} sc1")
    if n % 4 == 3:
        k(f"s_add_u32 {S(sW2L)}, {S(sW2L)}, 4096")

def w2_tr_ops(lo, hi):
    return [f"ds_read_b64_tr_b16 {A((s*2+dt)*4+2*u,2)}, {V(vW2R+dt)} offset:{(s%14)*2048+u*1024}"
            for s in range(lo, hi) for dt in range(2) for u in range(2)]

NW1 = [0]
def w1_load():
    ks = NW1[0]
    NW1[0] += 1
    if opt("abl", 0) & 1:
        return
    k(f"buffer_load_dwordx4 {V(W1R+4*ks,4)}, {V(vL16)}, {S(SRD_WS,4)}, {S(sWL)} offen offset:{1024*(ks%4)} sc1")
    if ks % 4 == 3:
        k(f"s_add_u32 {S(sWL)}, {S(sWL)}, 4096")

def prologue():
    k(f"s_getpc_b64 {S(sPC,2)}")
    k.label("L_pc")
    k(f"s_cmp_ge_u32 {S(sWG)}, 256")
    k("s_cbranch_scc1 L_end")
    k("s_load_dwordx16 s[28:43], s[0:1], 0")
    k("s_load_dwordx8 s[44:51], s[0:1], 64")
    k("s_load_dwordx4 s[52:55], s[0:1], 96")
    k("s_load_dwordx2 s[56:57], s[0:1], 112")
    k.c("wave 0 of helpers 8..31 pulls a third of the code into L2")
    k(f"s_sub_u32 {S(sT0)}, {S(sWG)}, 8")
    k(f"s_cmp_ge_u32 {S(sT0)}, 24")
    k("s_cbranch_scc1 L_nopf")
    k(f"v_cmp_gt_u32 vcc, 64, {V(vTID)}")
    k(f"s_lshr_b32 {S(sT0)}, {S(sT0)}, 3")
    k(f"s_lshl_b32 {S(sT0)}, {S(sT0)}, 7")
    k(f"v_mul_u32_u24 {V(vL16)}, 384, {V(vTID)}")
    k(f"v_add_u32 {V(vL16)}, {S(sT0)}, {V(vL16)}")
    k("s_cbranch_vccz L_nopf")
    for q in range(2):
        k(f"v_min_u32 {V(vL16)}, L_table_end-L_pc-4, {V(vL16)}")
        k(f"global_load_dword {V(vDUM)}, {V(vL16)}, {S(sPC,2)}")
        k.vm = []
        if q == 0:
            k(f"v_add_u32 {V(vL16)}, {64*384}, {V(vL16)}")
    k.label("L_nopf")
    k(f"v_lshrrev_b32 {V(vONE)}, 6, {V(vTID)}")
    k(f"v_and_b32 {V(vL)}, 63, {V(vTID)}")
    k(f"v_readfirstlane_b32 {S(sW)}, {V(vONE)}")
    k(f"v_lshlrev_b32 {V(vL16)}, 4, {V(vL)}")
    k(f"v_mov_b32 {V(vONE)}, 1")
    if DIAG:
        k(f"v_mov_b32 {V(vSTAMP)}, 0")
        k("s_mov_b32 s101, 0")
    k(f"s_mov_b32 {S(sONES)}, 0x3f803f80")
    k(f"s_mov_b32 {S(sHIM)}, 0xffff0000")
    k(f"s_sub_u32 {S(sT0)}, {S(sWG)}, 32")
    k(f"s_and_b32 {S(sT1)}, {S(sT0)}, 7")
    k(f"s_lshr_b32 {S(sT0)}, {S(sT0)}, 3")
    k(f"s_mul_i32 {S(sCP)}, {S(sT1)}, 28")
    k(f"s_add_u32 {S(sCP)}, {S(sCP)}, {S(sT0)}")
    k(f"s_cmp_ge_u32 {S(sT0)}, 14")
    k(f"s_cselect_b32 {S(sT2)}, 1, 0")
    k(f"s_cselect_b32 {S(sT3)}, 14, 0")
    k(f"s_lshl_b32 {S(sGAM)}, {S(sT1)}, 1")
    k(f"s_add_u32 {S(sGAM)}, {S(sGAM)}, {S(sT2)}")
    k(f"s_sub_u32 {S(sJ)}, {S(sT0)}, {S(sT3)}")
    k(f"s_and_b32 {S(sHH)}, {S(sJ)}, 1")
    k(f"s_lshr_b32 {S(sDS)}, {S(sJ)}, 1")
    k(f"s_and_b32 {S(sNH)}, {S(sW)}, 1")
    k(f"s_lshr_b32 {S(sCH)}, {S(sW)}, 1")
    k(f"s_lshl_b32 {S(sREP)}, {S(sT1)}, 12")
    k(f"s_lshl_b32 {S(sT0)}, {S(sW)}, 13")
    k(f"s_lshl4_add_u32 {S(sT0)}, {S(sWG)}, {S(sT0)}")
    k(f"v_lshl_add_u32 {V(vFW)}, {V(vL)}, 12, {S(sT0)}")
    p0x_addr()
    k(f"v_and_b32 {V(vGO+1)}, 12, {V(vL)}")
    k(f"v_and_b32 {V(vGO+2)}, 4, {V(vL)}")
    k(f"v_mov_b32 {V(vGO+3)}, 0")
    k(f"s_lshl_b32 {S(sT0)}, {S(sCP)}, 10")
    k(f"v_lshl_add_u32 {V(PRM+6)}, {V(vTID)}, 2, {S(sT0)}")
    k.wait(lg=0)
    srd(SRD_X0, 28, 2048 * 896)
    srd(SRD_WS, 56, WS_BYTES)
    srd(SRD_DBG, 54, 256)
    stamp(0)
    if DIAG:
        pass
    k(f"s_cmp_ge_u32 {S(sWG)}, 32")
    branch("s_cbranch_scc1", "L_main")
    z = HZ
    for i in range(4):
        k(f"v_mov_b32 {V(z+i)}, 0")
    k(f"s_lshl_b32 {S(sT5)}, {S(sWG)}, 7")
    k(f"s_add_u32 {S(sT5)}, {S(sT5)}, {hex(FLG_W)}")
    l1, l2 = newlab("h1"), newlab("h2")
    k(f"s_cmp_lt_u32 {S(sWG)}, 28")
    branch("s_cbranch_scc1", l1)
    k(f"s_sub_u32 {S(sT2)}, {S(sWG)}, 28")
    k(f"s_lshl2_add_u32 {S(sT0)}, {S(sT2)}, {S(sW)}")
    k(f"s_mul_i32 {S(sT0)}, {S(sT0)}, {(ZEND - 0x8000) // 16}")
    k(f"s_add_u32 {S(sT0)}, {S(sT0)}, 0x8000")
    k(f"s_add_u32 {S(sT1)}, {S(sT0)}, {(ZEND - 0x8000) // 16}")
    lz = newlab("z")
    label(lz)
    for i in range(2):
        k(f"buffer_store_dwordx4 {V(z,4)}, {V(vL16)}, {S(SRD_WS,4)}, {S(sT0)} offen offset:{1024*i} sc1")
    k(f"s_add_u32 {S(sT0)}, {S(sT0)}, 2048")
    k(f"s_cmp_lt_u32 {S(sT0)}, {S(sT1)}")
    k(f"s_cbranch_scc1 {lz}")
    k(f"s_lshl_b32 {S(sT0)}, {S(sT2)}, 2")
    k.wait(vm=0)
    k("s_barrier")
    k(f"s_cmp_lg_u32 {S(sW)}, 1")
    branch("s_cbranch_scc1", "L_end2")
    k("s_mov_b64 exec, 1")
    k(f"buffer_store_dword {V(vONE)}, {V(z)}, {S(SRD_DBG,4)}, {S(sT0)} offen offset:192 sc1")
    k("s_mov_b64 exec, -1")
    branch("s_branch", "L_end2")
    label(l1)
    k.forget()
    k(f"s_cmp_gt_u32 {S(sWG)}, 2")
    branch("s_cbranch_scc1", "L_helper")
    k(f"s_lshl2_add_u32 {S(sT0)}, {S(sWG)}, {S(sW)}")
    k(f"s_lshl_b32 {S(sT0)}, {S(sT0)}, 12")
    k(f"s_cmp_eq_u32 {S(sWG)}, 0")
    k(f"s_cselect_b32 {S(sT1)}, {hex(STATS[0] + 0x4000)}, 0")
    k(f"s_cselect_b32 {S(sT2)}, 0, 124")
    k(f"s_add_u32 {S(sT0)}, {S(sT0)}, {S(sT1)}")
    k(f"s_sub_u32 {S(sT0)}, {S(sT0)}, 0x4000")
    for i in range(4):
        k(f"buffer_store_dwordx4 {V(z,4)}, {V(vL16)}, {S(SRD_WS,4)}, {S(sT0)} offen offset:{1024*i} sc1")
    k(f"s_lshl2_add_u32 {S(sT0)}, {S(sWG)}, {S(sT2)}")
    stamp(4)
    k.wait(vm=0)
    k("s_barrier")
    stamp(5)
    k(f"s_cmp_lg_u32 {S(sW)}, 2")
    branch("s_cbranch_scc1", "L_helper")
    k("s_mov_b64 exec, 1")
    k(f"buffer_store_dword {V(vONE)}, {V(z)}, {S(SRD_DBG,4)}, {S(sT0)} offen sc1")
    k("s_mov_b64 exec, -1")
    branch("s_branch", "L_helper")
    label("L_main")
    k.forget()

def w2_lane_src(d, pitch, t0, t1):
    k(f"v_lshrrev_b32 {V(t0)}, 3, {V(vL)}")
    k(f"v_mul_u32_u24 {V(d)}, {pitch}, {V(t0)}")
    k(f"v_and_b32 {V(t0)}, 7, {V(vL)}")
    k(f"v_bfe_u32 {V(t1)}, {V(vL)}, 4, 1")
    k(f"v_lshlrev_b32 {V(t1)}, 2, {V(t1)}")
    k(f"v_xor_b32 {V(t0)}, {V(t0)}, {V(t1)}")
    k(f"v_lshl_add_u32 {V(d)}, {V(t0)}, 4, {V(d)}")

def h_prefetch():
    k.forget()
    a, f, d = WK, WK + 1, WK + 2
    poll_load(vGO, vGO + 1, 0, 192, SRD_DBG)
    k(f"s_and_b32 {S(sT0)}, {S(sWG)}, 7")
    k(f"s_lshr_b32 {S(sT1)}, {S(sWG)}, 4")
    k(f"s_lshl1_add_u32 {S(sGAM)}, {S(sT0)}, {S(sT1)}")
    k(f"s_bfe_u32 {S(sHH)}, {S(sWG)}, 0x10003")
    k(f"s_mul_i32 {S(sHL)}, {S(sGAM)}, {4*112*1024}")
    k(f"s_lshl2_add_u32 {S(sT3)}, {S(sHH)}, {S(sW)}")
    k(f"s_mul_i32 {S(sT3)}, {S(sT3)}, {28*1024}")
    k(f"s_add_u32 {S(sHL)}, {S(sHL)}, {S(sT3)}")
    k(f"s_lshl_b32 {S(sFG)}, {S(sGAM)}, {GL + 6}")
    k(f"s_add_u32 {S(sFG)}, {S(sFG)}, {hex(FLG_G + (PQ if FAST and opt('hpf', 0) == 2 else 0))}")
    k(f"v_min_u32 {V(f)}, 13, {V(vL)}")
    k(f"s_mul_i32 {S(sT2)}, {S(sW)}, 14")
    k(f"v_add_lshl_u32 {V(f)}, {V(f)}, {S(sT2)}, {GL}")
    k(f"v_min_u32 {V(a)}, 55, {V(vL)}")
    k(f"v_lshlrev_b32 {V(a)}, 7, {V(a)}")
    poll_check(vGO, vGO + 1, 0, 192, SRD_DBG)
    for ph in range(4):
        lp, go = newlab("hp"), newlab("hg")
        k(f"s_mov_b32 {S(sSPIN)}, 0")
        k(f"s_add_u32 {S(sT0)}, {S(sHL)}, {hex(HB + (ph >> 1)*H_SZ + (ph & 1)*2*112*1024)}")
        label(lp)
        k(f"s_sleep {opt('hsl', 1)}")
        poll_load(d, f, S(sFG), 4 * ph)
        k(f"s_add_u32 {S(sSPIN)}, {S(sSPIN)}, 1")
        k(f"v_cmp_eq_u32 vcc, 0, {V(d)}")
        k(f"s_cmp_gt_u32 {S(sSPIN)}, 150")
        k(f"s_cbranch_scc1 L_end3")
        k(f"s_cbranch_vccnz {lp}")
        for q in range(4):
            k(f"buffer_load_dword {V(d+1+q)}, {V(a)}, {S(SRD_WS,4)}, {S(sT0)} offen sc1")
            k(f"s_add_u32 {S(sT0)}, {S(sT0)}, 7168")
        k.vm = []
    label("L_end3")

HZ = WK + 64
def helper():
    label("L_helper")
    k.forget()
    srd(SRD_W1, 48, 448 * 3584)
    srd(SRD_W2, 50, 1792 * 896)
    z = HZ
    F = WK + 112
    G = WK + 168
    t, a1, a2, aE, aO = z + 8, z + 10, z + 11, z + 12, z + 13
    IMG2 = 57344
    w2_lane_src(a1, 3584, t, t + 1)
    w2_lane_src(a2, 896, t, t + 1)
    if opt("abl", 0) & 32:
        k("s_endpgm")
    if opt("hwait", 3):
        srd(SRD_OUT, 28 if opt("hwait", 3) < 3 else 40, 2048 * 896 if opt("hwait", 3) < 3 else 448 * 512)
        k(f"s_lshl_b32 {S(sT0)}, {S(sWG)}, {16 if opt('hwait', 3) < 3 else 13}")
        k(f"v_lshlrev_b32 {V(t)}, {(8, 8, 5)[opt('hwait', 3) - 1]}, {V(vTID)}")
        if opt("hwait", 3) == 2:
            k(f"v_and_b32 {V(t)}, 0xc000, {V(t)}")
        k(f"buffer_load_dword {V(t+1)}, {V(t)}, {S(SRD_OUT,4)}, {S(sT0)} offen")
        k.wait(vm=0)
    if opt("hdelay", 0):
        k(f"s_sleep {opt('hdelay', 0)}")
    k(f"s_mul_i32 {S(sT0)}, {S(sW)}, {112*3584}")
    k(f"s_lshl_b32 {S(sT1)}, {S(sWG)}, 7")
    k(f"s_add_u32 {S(sT0)}, {S(sT0)}, {S(sT1)}")
    k(f"s_mul_i32 {S(sT3)}, {S(sW)}, 14336")
    k(f"s_mov_b32 m0, {S(sT3)}")
    for c in range(14):
        k(f"buffer_load_dwordx4 {V(a1)}, {S(SRD_W1,4)}, {S(sT0)} offen lds", tag="w1")
        k(f"s_add_u32 m0, m0, 1024")
        k(f"s_add_u32 {S(sT0)}, {S(sT0)}, {8*3584}")
    k(f"v_bfe_u32 {V(t+1)}, {V(vL)}, 2, 2")
    k(f"v_lshlrev_b32 {V(t)}, 7, {V(t+1)}")
    k(f"v_bfe_u32 {V(t+1)}, {V(vL)}, 3, 1")
    k(f"v_lshl_add_u32 {V(t)}, {V(t+1)}, 6, {V(t)}")
    k(f"v_bfe_u32 {V(t+1)}, {V(vL)}, 4, 1")
    k(f"v_lshl_add_u32 {V(t)}, {V(t+1)}, 5, {V(t)}")
    k(f"v_and_b32 {V(t+1)}, 3, {V(vL)}")
    k(f"v_lshl_add_u32 {V(t)}, {V(t+1)}, 3, {V(t)}")
    k(f"v_lshrrev_b32 {V(t+1)}, 5, {V(vL)}")
    k(f"v_lshl_add_u32 {V(a1)}, {V(t+1)}, 10, {V(t)}")
    k(f"v_lshl_add_u32 {V(aE)}, {V(t+1)}, 9, {V(t)}")
    k(f"s_lshl_b32 {S(sT0)}, {S(sCH)}, 6")
    k(f"v_xor_b32 {V(a1)}, {S(sT0)}, {V(a1)}")
    k(f"s_mul_i32 {S(sT0)}, {S(sNH)}, 28672")
    k(f"v_add_u32 {V(a1)}, {S(sT0)}, {V(a1)}")
    k(f"s_lshl_b32 {S(sT0)}, {S(sNH)}, 6")
    k(f"v_xor_b32 {V(aE)}, {S(sT0)}, {V(aE)}")
    k(f"v_xor_b32 {V(aO)}, 64, {V(aE)}")
    k(f"s_mul_i32 {S(sT1)}, {S(sW)}, 7")
    k(f"s_lshr_b32 {S(sT0)}, {S(sT1)}, 1")
    k(f"s_lshl_b32 {S(sT0)}, {S(sT0)}, 11")
    k(f"s_add_u32 {S(sT0)}, {S(sT0)}, {IMG2}")
    k(f"v_add_u32 {V(aE)}, {S(sT0)}, {V(aE)}")
    k(f"s_add_u32 {S(sT0)}, {S(sT1)}, 1")
    k(f"s_lshr_b32 {S(sT0)}, {S(sT0)}, 1")
    k(f"s_lshl_b32 {S(sT0)}, {S(sT0)}, 11")
    k(f"s_add_u32 {S(sT0)}, {S(sT0)}, {IMG2}")
    k(f"v_add_u32 {V(aO)}, {S(sT0)}, {V(aO)}")
    k.wait(vm=0)
    k("s_barrier")
    stamp(3)
    for ks in range(14):
        for u in range(2):
            k(f"ds_read_b64_tr_b16 {V(F+4*ks+2*u,2)}, {V(a1)} offset:{ks*2048+u*512}")
    k(f"s_and_b32 {S(sHL)}, {S(sWG)}, 3")
    k(f"s_lshl3_add_u32 {S(sHL)}, {S(sHL)}, {S(sW)}")
    k(f"s_add_u32 {S(sHL)}, {S(sHL)}, 4")
    k(f"s_mul_i32 {S(sHL)}, {S(sHL)}, {56*896}")
    k(f"s_lshr_b32 {S(sHS)}, {S(sWG)}, 2")
    k(f"s_lshl_b32 {S(sHS)}, {S(sHS)}, 7")
    k(f"s_add_u32 {S(sHL)}, {S(sHL)}, {S(sHS)}")
    k(f"s_mul_i32 {S(sT3)}, {S(sW)}, 7168")
    k(f"s_add_u32 m0, {S(sT3)}, {IMG2}")
    for _ in range(7):
        k(f"buffer_load_dwordx4 {V(a2)}, {S(SRD_W2,4)}, {S(sHL)} offen lds", tag="w2")
        k(f"s_add_u32 m0, m0, 1024")
        k(f"s_add_u32 {S(sHL)}, {S(sHL)}, {8*896}")
    c, u_ = z, z + 2
    for i in range(56):
        k(f"v_dot2c_f32_bf16 {V(c)}, {S(sONES)}, {V(F+i)}")
    k(f"v_mov_b32 {V(u_)}, {V(c)}")
    k(f"v_permlane32_swap_b32 {V(c)}, {V(u_)}")
    k(f"v_add_f32 {V(c)}, {V(c)}, {V(u_)}")
    k(f"v_lshlrev_b32 {V(t)}, 2, {V(vTID)}")
    k(f"v_add_u32 {V(t)}, 0x18000, {V(t)}")
    k(f"ds_write_b32 {V(t)}, {V(c)}")
    k(f"v_xor_b32 {V(t)}, 256, {V(t)}")
    k.wait(lg=0)
    k("s_barrier")
    k(f"ds_read_b32 {V(u_)}, {V(t)}")
    k(f"s_lshl2_add_u32 {S(sT1)}, {S(sWG)}, {S(sW)}")
    k(f"s_mul_i32 {S(sT0)}, {S(sT1)}, 14336")
    k(f"s_add_u32 {S(sT0)}, {S(sT0)}, {hex(W1C)}")
    k(f"s_mul_i32 {S(sT1)}, {S(sT1)}, 7168")
    k(f"s_add_u32 {S(sT1)}, {S(sT1)}, {hex(W2T)}")
    k(f"v_add_f32 {V(c)}, {V(c)}, {V(u_)}")
    k(f"v_mul_f32 {V(c)}, {f2u(-1.0/448)}, {V(c)}")
    stamp(2)
    for i in range(56):
        tt = z + 4 + 2 * (i & 1)
        k(f"v_lshlrev_b32 {V(tt)}, 16, {V(F+i)}")
        k(f"v_and_b32 {V(tt+1)}, {S(sHIM)}, {V(F+i)}")
        pk("add", V(tt, 2), V(tt, 2), V(c, 2), bc=(1,))
        k(f"v_cvt_pk_bf16_f32 {V(F+i)}, {V(tt)}, {V(tt+1)}")
        if i % 4 == 3:
            ks = i // 4
            k(f"buffer_store_dwordx4 {V(F+4*ks,4)}, {V(vL16)}, {S(SRD_WS,4)}, {S(sT0)} offen offset:{1024*(ks%4)} sc1", tag="c")
            if ks % 4 == 3:
                k(f"s_add_u32 {S(sT0)}, {S(sT0)}, 4096")
    poll_load(vGO, vGO + 1, 0, 192, SRD_DBG)
    k.vm[-1] = (k.vm[-1][0], "c")
    k(f"v_mov_b32 {V(z)}, 0")
    def fl(off):
        k("s_mov_b64 exec, 1")
        k(f"buffer_store_dword {V(vONE)}, {V(z)}, {S(SRD_WS,4)}, {S(sT5)} offen offset:{off} sc1")
        k("s_mov_b64 exec, -1")
    k.wait_tag_vm("c")
    poll_check(vGO, vGO + 1, 0, 192, SRD_DBG)
    k("s_barrier")
    wave0(lambda: fl(0))
    stamp(1)
    for i in range(7):
        for u in range(2):
            k(f"ds_read_b64_tr_b16 {V(G+4*i+2*u,2)}, {V(aO if i & 1 else aE)} offset:{(i//2)*2048+u*1024}")
    for i in range(7):
        k(f"buffer_store_dwordx4 {V(G+4*i,4)}, {V(vL16)}, {S(SRD_WS,4)}, {S(sT1)} offen offset:{1024*(i%4)} sc1")
        if i == 3:
            k(f"s_add_u32 {S(sT1)}, {S(sT1)}, 4096")
    k.wait(vm=0)
    k("s_barrier")
    wave0(lambda: fl(64))
    stamp(25)
    label("L_end2")
    if opt("hpf", 0):
        h_prefetch()
    if DIAG:
        k(f"s_lshl_b32 {S(sT0)}, {S(sWG)}, 10")
        k(f"s_add_u32 {S(sT0)}, {S(sT0)}, {hex(STAMP)}")
        k(f"v_lshlrev_b32 {V(WK)}, 2, {V(vTID)}")
        k(f"buffer_store_dword {V(vSTAMP)}, {V(WK)}, {S(SRD_WS,4)}, {S(sT0)} offen")
    k("s_endpgm")

KW = W1R
PRM = KW
TBL = KW + 8
GA = KW + 20
TA = GA + 17
vKW, vKR, vKC, vDSK = KW + 42, KW + 43, KW + 44, KW + 45

def table_words():
    def bf16v(m):
        u = struct.unpack("<I", struct.pack("<f", float(m)))[0]
        u = ((u + 0x7FFF + ((u >> 16) & 1)) >> 16) << 16
        return int(struct.unpack("<f", struct.pack("<I", u))[0])
    rowv = list(range(8)) + [256, 258, 260, 262, 512, 516, 768, 772, 1024, 1280, 1536, 1792, 2048]
    def idx(m):
        if m < 0:
            return (KC0 + 4096 + 64) // 8
        l = bf16v(m)
        r = [r for r, a in enumerate(rowv) if l >= a and (l - a) % 8 == 0 and l - a < 256][-1]
        return (r % 16) * 33 + (l - rowv[r]) // 8 + (SCR_ST // 8 if r >= 16 else 0)
    rows = []
    for lam in range(128):
        e = [idx(2047 - 16 * lam - i) for i in range(17)] + [0] * 7
        rows.append([e[2 * i] | (e[2 * i + 1] << 16) for i in range(12)])
    out = []
    for qd in range(3):
        for lam in range(128):
            out.append(rows[lam][4 * qd:4 * qd + 4])
    return out

def addr_conv():
    t0, t1, t2, t3 = KW + 100, KW + 101, KW + 102, KW + 103
    r16, g4, cc = KW + 104, KW + 105, KW + 106
    o = []
    e = o.append
    e(f"v_and_b32 {V(r16)}, 15, {V(vL)}")
    e(f"v_lshrrev_b32 {V(g4)}, 4, {V(vL)}")
    e(f"v_and_b32 {V(cc)}, 3, {V(vL)}")
    e(f"s_mul_i32 {S(sSCR)}, {S(sW)}, {SCR_ST}")
    e(f"s_add_u32 {S(sSCR)}, {S(sSCR)}, {SCR}")
    e(f"s_mul_i32 {S(sSCH)}, {S(sCH)}, {2*SCR_ST}")
    e(f"s_add_u32 {S(sSCH)}, {S(sSCH)}, {SCR}")
    e(f"v_lshl_add_u32 {V(vKW)}, {V(vL)}, 3, {S(sSCR)}")
    e(f"v_mul_u32_u24 {V(vKR)}, {ROW_ST}, {V(r16)}")
    e(f"v_lshl_add_u32 {V(vKR)}, {V(g4)}, 4, {V(vKR)}")
    e(f"v_add_u32 {V(vKR)}, {S(sSCR)}, {V(vKR)}")
    e(f"v_mul_u32_u24 {V(t0)}, 132, {V(g4)}")
    e(f"v_add_u32 {V(t0)}, {V(t0)}, {V(r16)}")
    e(f"s_lshl2_add_u32 {S(sT2)}, {S(sNH)}, {S(sSCH)}")
    e(f"v_lshl_add_u32 {V(TA)}, {V(t0)}, 3, {S(sT2)}")
    e(f"v_add_u32 {V(TA+1)}, {SCR_ST}, {V(TA)}")
    e(f"v_and_b32 {V(t0)}, 127, {V(vTID)}")
    e(f"s_add_u32 {S(sT2)}, {S(sSCH)}, {KC0}")
    e(f"v_lshl_add_u32 {V(vKC)}, {V(t0)}, 5, {S(sT2)}")
    e(f"v_lshrrev_b32 {V(t0)}, 5, {V(vL)}")
    e(f"v_bfe_u32 {V(t1)}, {V(vL)}, 2, 2")
    e(f"v_lshlrev_b32 {V(t3)}, 9, {V(t0)}")
    e(f"v_lshl_add_u32 {V(t3)}, {V(t1)}, 7, {V(t3)}")
    e(f"v_bfe_u32 {V(t1)}, {V(vL)}, 3, 1")
    e(f"v_lshl_add_u32 {V(t3)}, {V(t1)}, 6, {V(t3)}")
    e(f"v_bfe_u32 {V(t1)}, {V(vL)}, 4, 1")
    e(f"v_lshl_add_u32 {V(t3)}, {V(t1)}, 5, {V(t3)}")
    e(f"v_lshl_add_u32 {V(t3)}, {V(cc)}, 3, {V(t3)}")
    e(f"s_mul_i32 {S(sT2)}, {S(sW)}, {WREG}")
    e(f"v_add_u32 {V(vW2R)}, {S(sT2)}, {V(t3)}")
    e(f"v_xor_b32 {V(vW2R+1)}, 64, {V(vW2R)}")
    e(f"v_lshrrev_b32 {V(t0)}, 3, {V(vTID)}")
    e(f"v_and_b32 {V(t1)}, 0x70, {V(vL16)}")
    e(f"v_lshl_add_u32 {V(vCX)}, {V(t0)}, 8, {V(t1)}")
    e(f"v_lshrrev_b32 {V(t0)}, 4, {V(vTID)}")
    e(f"v_and_b32 {V(t2)}, 8, {V(vL)}")
    e(f"v_lshl_add_u32 {V(t2)}, {V(t0)}, 7, {V(t2)}")
    e(f"v_lshl_add_u32 {V(t2)}, {V(cc)}, 5, {V(t2)}")
    e(f"v_bfe_u32 {V(t1)}, {V(vL)}, 2, 1")
    e(f"v_lshl_add_u32 {V(t2)}, {V(t1)}, 4, {V(t2)}")
    e(f"v_add_u32 {V(vUW)}, {UARR+480}, {V(t2)}")
    e(f"s_mul_i32 {S(sT2)}, {S(sCH)}, {SCR_ST-1024}")
    e(f"s_add_u32 {S(sT2)}, {S(sT2)}, {SCR}")
    e(f"v_add_u32 {V(vXW)}, {S(sT2)}, {V(t2)}")
    e(f"v_and_b32 {V(t0)}, 1, {V(vL)}")
    e(f"v_xor_b32 {V(t0)}, 1, {V(t0)}")
    e(f"v_mul_u32_u24 {V(t1)}, {SCR_ST+64-2}, {V(t0)}")
    e(f"v_lshlrev_b32 {V(t2)}, 1, {V(r16)}")
    e(f"v_sub_u32 {V(t1)}, {V(t1)}, {V(t2)}")
    e(f"v_lshl_add_u32 {V(t1)}, {V(g4)}, 4, {V(t1)}")
    e(f"s_lshl_b32 {S(sT3)}, {S(sNH)}, 8")
    e(f"s_sub_u32 {S(sT2)}, {S(sSCH)}, {S(sT3)}")
    e(f"s_add_u32 {S(sT2)}, {S(sT2)}, {KC0 + 2*2031 - 512 - 192}")
    e(f"v_add_u32 {V(vKF)}, {S(sT2)}, {V(t1)}")
    for a in range(1, 4):
        e(f"v_subrev_u32 {V(vKF+a)}, {1024*a}, {V(vKF)}")
    e(f"v_lshlrev_b32 {V(t1)}, 5, {V(r16)}")
    e(f"v_lshl_add_u32 {V(t1)}, {V(g4)}, 4, {V(t1)}")
    e(f"s_mul_i32 {S(sT2)}, {S(sCH)}, {U_ST}")
    e(f"s_sub_u32 {S(sT2)}, {S(sT2)}, {S(sT3)}")
    e(f"s_add_u32 {S(sT2)}, {S(sT2)}, {UARR + 480 - 32 - 192}")
    e(f"v_add_u32 {V(vUF)}, {S(sT2)}, {V(t1)}")
    e(f"v_mov_b32 {V(vXR)}, {V(vKW)}")
    e(f"v_add_u32 {V(vEXW)}, {S(sSCR)}, {V(vL16)}")
    e(f"s_xor_b32 {S(sT2)}, {S(sW)}, 1")
    e(f"s_mul_i32 {S(sT2)}, {S(sT2)}, {SCR_ST}")
    e(f"s_add_u32 {S(sT2)}, {S(sT2)}, {SCR}")
    e(f"v_add_u32 {V(vEXR)}, {S(sT2)}, {V(vL16)}")
    e(f"v_lshrrev_b32 {V(t0)}, 3, {V(vL)}")
    e(f"v_mul_u32_u24 {V(vCO)}, 114688, {V(t0)}")
    e(f"v_and_b32 {V(t0)}, 7, {V(vL)}")
    e(f"s_and_b32 {S(sT2)}, {S(sCP)}, 1")
    e(f"s_lshl_b32 {S(sT3)}, {S(sT2)}, 2")
    e(f"v_xor_b32 {V(t0)}, {S(sT3)}, {V(t0)}")
    e(f"v_lshl_add_u32 {V(vCO)}, {V(t0)}, 4, {V(vCO)}")
    e(f"s_lshl_b32 {S(sT2)}, {S(sT2)}, 3")
    e(f"s_lshr_b32 {S(sXQi)}, {S(sCP)}, 1")
    e(f"s_lshl_b32 {S(sXQi)}, {S(sXQi)}, 14")
    e(f"s_add_u32 {S(sXQi)}, {S(sXQi)}, {S(sT2)}")
    e(f"s_add_u32 {S(sXQi)}, {S(sXQi)}, {hex(XQ)}")
    e(f"s_lshl_b32 {S(sT2)}, {S(sCP)}, 1")
    e(f"s_add_u32 {S(sT2)}, {S(sT2)}, {S(sCH)}")
    e(f"s_lshl_b32 {S(sT2)}, {S(sT2)}, 7")
    e(f"s_mul_i32 {S(sT3)}, {S(sNH)}, {8*114688}")
    e(f"s_add_u32 {S(sT2)}, {S(sT2)}, {S(sT3)}")
    e(f"v_add_u32 {V(vCO)}, {S(sT2)}, {V(vCO)}")
    e(f"v_lshlrev_b32 {V(vFP)}, 4, {V(vTID)}")
    e(f"v_max_u32 {V(vFP)}, 512, {V(vFP)}")
    e(f"s_mov_b32 {S(sPERM0)}, 0x05040100")
    e(f"s_mov_b32 {S(sPERM1)}, 0x07060302")
    e(f"s_lshl_b32 {S(sT2)}, {S(sJ)}, 2")
    e(f"s_add_u32 {S(sT2)}, {S(sT2)}, {S(sW)}")
    e(f"s_mul_i32 {S(sWL)}, {S(sT2)}, 28672")
    e(f"s_add_u32 {S(sWL)}, {S(sWL)}, {hex(W1C)}")
    e(f"s_lshr_b32 {S(sT2)}, {S(sT2)}, 1")
    e(f"s_lshl_b32 {S(sT2)}, {S(sT2)}, 7")
    e(f"s_add_u32 {S(sT2)}, {S(sT2)}, {hex(FLG_W)}")
    e(f"v_mov_b32 {V(vWF+1)}, {S(sT2)}")
    e(f"s_lshl2_add_u32 {S(sT2)}, {S(sDS)}, {S(sW)}")
    e(f"s_mul_i32 {S(sW2L)}, {S(sT2)}, 28672")
    e(f"s_add_u32 {S(sW2L)}, {S(sW2L)}, {hex(W2T)}")
    e(f"s_lshl_b32 {S(sT2)}, {S(sT2)}, 7")
    e(f"s_add_u32 {S(sT2)}, {S(sT2)}, {hex(FLG_W+64)}")
    e(f"v_mov_b32 {V(vWF+2)}, {S(sT2)}")
    e(f"s_mov_b32 {S(sLDT2)}, {S(sT2)}")
    e(f"s_mul_i32 {S(sXT)}, {S(sGAM)}, 114688")
    e(f"s_add_u32 {S(sXT)}, {S(sXT)}, {hex(X1T)}")
    z = KW + 108
    for i in range(4):
        e(f"v_mov_b32 {V(z+i)}, 0")
    e(f"v_min_u32 {V(t0)}, 29, {V(vL)}")
    e(f"v_lshlrev_b32 {V(t0)}, 4, {V(t0)}")
    e(f"v_add_u32 {V(t0)}, {UARR}, {V(t0)}")
    e(f"ds_write_b128 {V(t0)}, {V(z,4)}")
    e(f"ds_write_b128 {V(t0)}, {V(z,4)} offset:{U_ST}")
    e(f"v_and_b32 {V(t0)}, 0x70, {V(vL16)}")
    e(f"v_add_u32 {V(t0)}, {S(sSCR)}, {V(t0)}")
    e(f"ds_write_b128 {V(t0)}, {V(z,4)} offset:{KC0+4096}")
    return o

def addr_ffn(layer):
    t0, t1, t2, t3 = WK + 84, WK + 85, WK + 86, WK + 87
    g4, rho, cc = WK + 88, WK + 89, WK + 90
    o = []
    e = o.append
    e(f"v_lshrrev_b32 {V(g4)}, 4, {V(vL)}")
    e(f"v_bfe_u32 {V(rho)}, {V(vL)}, 2, 2")
    e(f"v_and_b32 {V(cc)}, 3, {V(vL)}")
    e(f"v_lshrrev_b32 {V(t0)}, 5, {V(vL)}")
    e(f"v_bfe_u32 {V(t1)}, {V(vL)}, 4, 1")
    e(f"v_bfe_u32 {V(t2)}, {V(vL)}, 3, 1")
    e(f"v_lshlrev_b32 {V(t3)}, 7, {V(rho)}")
    e(f"v_lshl_add_u32 {V(t3)}, {V(t2)}, 6, {V(t3)}")
    e(f"v_lshl_add_u32 {V(vXA0)}, {V(t0)}, 10, {V(t3)}")
    e(f"v_lshl_add_u32 {V(vXA0)}, {V(cc)}, 4, {V(vXA0)}")
    e(f"v_lshl_add_u32 {V(vXA0)}, {V(t1)}, 3, {V(vXA0)}")
    e(f"v_xor_b32 {V(vXA1)}, 64, {V(vXA0)}")
    e(f"s_lshl_b32 {S(sT2)}, {S(sHH)}, 6")
    e(f"v_xor_b32 {V(t3)}, {S(sT2)}, {V(t3)}")
    e(f"s_lshl_b32 {S(sT2)}, {S(sNH)}, 5")
    e(f"s_lshl3_add_u32 {S(sT2)}, {S(sCH)}, {S(sT2)}")
    e(f"v_and_b32 {V(t0)}, 16, {V(vL16)}")
    e(f"v_add3_u32 {V(t3)}, {V(t3)}, {V(t0)}, {S(sT2)}")
    e(f"v_bfe_u32 {V(t0)}, {V(vL)}, 1, 1")
    e(f"v_mul_u32_u24 {V(vST)}, {XHALF}, {V(t0)}")
    e(f"v_lshl_add_u32 {V(vST)}, {V(g4)}, 10, {V(vST)}")
    e(f"v_add_u32 {V(vST)}, {V(vST)}, {V(t3)}")
    e(f"v_lshl_add_u32 {V(t0)}, {V(g4)}, 1, {V(t0)}")
    e(f"v_lshl_add_u32 {V(vRES)}, {V(t0)}, 10, {V(t3)}")
    e(f"s_lshl_b32 {S(sT2)}, {S(sDS)}, 13")
    e(f"v_add_u32 {V(vRES)}, {S(sT2)}, {V(vRES)}")
    e(f"s_mul_i32 {S(sT2)}, {S(sW)}, {RED_W}")
    e(f"v_add_u32 {V(vRW)}, {S(sT2)}, {V(vL16)}")
    e(f"v_lshrrev_b32 {V(t0)}, 3, {V(vL)}")
    e(f"v_and_b32 {V(t1)}, 0x70, {V(vL16)}")
    e(f"v_mul_u32_u24 {V(vRR)}, {RED_G}, {V(t0)}")
    e(f"s_lshl_b32 {S(sT2)}, {S(sW)}, 7")
    e(f"v_add3_u32 {V(vRR)}, {V(vRR)}, {V(t1)}, {S(sT2)}")
    e(f"s_and_b32 {S(sT2)}, {S(sGAM)}, 8")
    e(f"s_bfe_u32 {S(sT3)}, {S(sGAM)}, 0x20001")
    e(f"s_add_u32 {S(sT2)}, {S(sT2)}, {S(sT3)}")
    e(f"s_lshl2_add_u32 {S(sT2)}, {S(sCH)}, {S(sT2)}")
    e(f"s_lshl1_add_u32 {S(sT3)}, {S(sHH)}, {S(sNH)}")
    e(f"s_and_b32 {S(sT4)}, {S(sGAM)}, 1")
    e(f"v_lshlrev_b32 {V(t2)}, 4, {V(cc)}")
    e(f"v_bfe_u32 {V(t3)}, {V(vL)}, 2, 1")
    if layer == 0:
        e(f"s_lshl2_add_u32 {S(sT2)}, {S(sT2)}, {S(sT3)}")
        e(f"s_lshl1_add_u32 {S(sT2)}, {S(sT2)}, {S(sT4)}")
        e(f"s_lshl_b32 {S(sT2)}, {S(sT2)}, 6")
        e(f"v_lshl_add_u32 {V(vAT)}, {V(t3)}, 2, {V(t2)}")
        e(f"v_lshrrev_b32 {V(t3)}, 5, {V(vL)}")
        e(f"v_lshl_add_u32 {V(vAT)}, {V(t3)}, 3, {V(vAT)}")
        e(f"v_add_u32 {V(vAT)}, {S(sT2)}, {V(vAT)}")
        e(f"v_lshrrev_b32 {V(t3)}, 2, {V(vL)}")
        e(f"v_lshl_add_u32 {V(vO)}, {V(t3)}, 14, {V(t2)}")
        e(f"s_lshl_b32 {S(sT5)}, {S(sDS)}, 18")
        e(f"s_add_u32 {S(sT2)}, {S(sT2)}, {S(sT5)}")
        e(f"v_add_u32 {V(vO)}, {S(sT2)}, {V(vO)}")
    else:
        e(f"s_lshl3_add_u32 {S(sT2)}, {S(sT2)}, {S(sT4)}")
        e(f"s_lshl2_add_u32 {S(sT2)}, {S(sT2)}, {S(sT3)}")
        e(f"s_lshl_b32 {S(sT2)}, {S(sT2)}, 1")
        e(f"v_add3_u32 {V(t2)}, {V(t2)}, {V(t3)}, {S(sT2)}")
        e(f"v_mul_u32_u24 {V(vO)}, 896, {V(t2)}")
        e(f"v_lshl_add_u32 {V(vO)}, {V(t0)}, 4, {V(vO)}")
        e(f"s_lshl_b32 {S(sT2)}, {S(sDS)}, 7")
        e(f"v_add_u32 {V(vO)}, {S(sT2)}, {V(vO)}")
    e(f"v_min_u32 {V(t0)}, 13, {V(vL)}")
    e(f"s_mul_i32 {S(sT2)}, {S(sW)}, 14")
    e(f"v_add_lshl_u32 {V(vF2P)}, {V(t0)}, {S(sT2)}, {GL or 4}")
    e(f"s_lshl2_add_u32 {S(sT3)}, {S(sJ)}, {S(sW)}")
    e(f"s_lshl_b32 {S(sT2)}, {S(sT3)}, {GL or 4}")
    e(f"v_mov_b32 {V(vFL)}, {S(sT2)}")
    e(f"s_mul_i32 {S(sT2)}, {S(sGAM)}, {4*112*1024}")
    e(f"s_add_u32 {S(sT2)}, {S(sT2)}, {hex(HB + layer*H_SZ)}")
    e(f"s_lshl_b32 {S(sT3)}, {S(sT3)}, 11")
    e(f"s_add_u32 {S(sHS)}, {S(sT2)}, {S(sT3)}")
    e(f"s_lshl2_add_u32 {S(sT3)}, {S(sHH)}, {S(sW)}")
    e(f"s_mul_i32 {S(sT3)}, {S(sT3)}, {28*1024}")
    e(f"s_add_u32 {S(sHL)}, {S(sT2)}, {S(sT3)}")
    e(f"s_lshl_b32 {S(sFG)}, {S(sGAM)}, {GL + 6 if GL else 11}")
    e(f"s_add_u32 {S(sFG)}, {S(sFG)}, {hex(FLG_G + layer*(8 if GL else 0x8000))}")
    e(f"s_add_u32 {S(sFP)}, {S(sFG)}, {PQ if FAST else 0}")
    if FAST and layer == 0:
        e(lambda: poll_load(vPL2, vF2P, S(sFP)))
    if layer:
        e(f"s_mov_b32 {S(SRD_OUT)}, s52")
        e(f"s_and_b32 {S(SRD_OUT+1)}, s53, 0xffff")
        e(f"s_mov_b32 {S(SRD_OUT+2)}, {hex(2048*896)}")
        e(f"s_mov_b32 {S(SRD_OUT+3)}, 0x20000")
    return o

def pk(op, d, a, b, c=None, bc=(), neg=(), emit=True):
    ops = [a, b] + ([c] if c is not None else [])
    n = len(ops)
    txt = f"v_pk_{op}_f32 {d}, " + ", ".join(ops)
    if bc:
        txt += " op_sel_hi:[" + ",".join("0" if i in bc else "1" for i in range(n)) + "]"
    if neg:
        m = "[" + ",".join("1" if i in neg else "0" for i in range(n)) + "]"
        txt += f" neg_lo:{m} neg_hi:{m}"
    if emit:
        k(txt)
    return txt

def cmul(d, a, b, t):
    assert d != a
    pk("mul", V(t, 2), V(a, 2), V(b, 2))
    pk("mul", V(t + 2, 2), V(a, 2), V(b + 2, 2))
    pk("fma", V(d, 2), V(a + 2, 2), V(b + 2, 2), V(t, 2), neg=(0,))
    pk("fma", V(d + 2, 2), V(a + 2, 2), V(b, 2), V(t + 2, 2))

NINIT = opt("ninit", 4)
NPG = opt("npg", 8)
TE = opt("te", 1)
def stub_targets():
    return ["L_ret0" if p <= 3 else "L_ret1" if p <= 5 else f"L_pg{p+2}" if p + 2 <= NPG else "L_ret2" for p in range(1, NPG + 1)]

def touch(n):
    tg = [["L_pg0" if TE else None, "L_pg1", "L_pg2", "L_pg3"], ["L_pg4", "L_pg5", "L_st0", "L_st1"],
          ["L_pg6" if NPG >= 6 else None, "L_pg7" if NPG >= 7 else None, "L_st2", "L_st3"]][n]
    k("s_mov_b64 exec, 0")
    for w in range(4):
        if tg[w]:
            k(f"s_cmp_eq_u32 {S(sW)}, {w}")
            k(f"s_cbranch_scc1 {tg[w]}")
    if n == 0 and not TE:
        k("s_branch L_ret0")
        k.raw(".p2align 12")
    k.label(f"L_ret{n}")
    k("s_mov_b64 exec, -1")

def table_loads():
    t0 = KW + 100
    k(f"v_and_b32 {V(t0)}, 127, {V(vTID)}")
    k(f"v_lshlrev_b32 {V(t0)}, 4, {V(t0)}")
    k(f"v_add_u32 {V(t0)}, L_table-L_pc+2048, {V(t0)}")
    for q in range(3):
        if q < 2:
            k(f"global_load_dwordx4 {V(TBL+4*q,4)}, {V(t0)}, {S(sPC,2)} offset:{2048*(q-1)}")
        else:
            k(f"global_load_dword {V(TBL+8)}, {V(t0)}, {S(sPC,2)} offset:2048")

def dt_setup():
    DT = KW + 46 + 12
    k.wait(lg=0)
    k(f"s_lshl_b32 {S(sT0)}, {S(sCH)}, 4")
    k(f"s_lshr_b32 {S(sLDT)}, {S(sLDT)}, {S(sT0)}")
    k(f"s_lshl_b32 {S(sLDT)}, {S(sLDT)}, 16")
    k(f"s_lshr_b32 {S(sDSK)}, {S(sDSK)}, {S(sT0)}")
    k(f"s_lshl_b32 {S(sDSK)}, {S(sDSK)}, 16")
    k(f"v_mov_b32 {V(DT)}, {f2u(1.4426950408889634)}")
    k(f"v_mul_f32 {V(DT)}, {S(sLDT)}, {V(DT)}")
    k(f"v_exp_f32 {V(DT)}, {V(DT)}")
    k(f"s_cmp_eq_u32 {S(sNH)}, 0")
    k(f"s_cselect_b32 {S(sDSK)}, {S(sDSK)}, 0")
    k(f"v_cvt_pk_bf16_f32 {V(DT)}, {V(DT)}, {V(DT)}")
    k(f"v_mov_b32 {V(vDSK)}, 0")
    k(f"v_lshlrev_b32 {V(DT)}, 16, {V(DT)}")
    k(f"v_writelane_b32 {V(vDSK)}, {S(sDSK)}, 0")

def warm_loads():
    if opt("warm", 1):
        k(f"s_sub_u32 {S(sT0)}, {S(sWG)}, 32")
        k(f"s_lshl2_add_u32 {S(sT0)}, {S(sT0)}, {S(sW)}")
        k(f"s_mul_i32 {S(sT0)}, {S(sT0)}, 1792")
        k(f"v_min_u32 {V(vDUM+1)}, 13, {V(vL)}")
        k(f"v_lshl_add_u32 {V(vDUM+1)}, {V(vDUM+1)}, 7, {S(sT0)}")
        for q in range(opt("warm", 1)):
            k(f"global_load_dword {V(vDUM)}, {V(vDUM+1)}, {S(48+2*q,2)}")
            k.vm[-1] = (set(), None)

def main_start():
    k.c("=== main workgroups")
    p0x_loads()
    if opt("pdelay", 0):
        ac0 = addr_conv()
        run(ac0, opt("pdelay", 0))
    for i in range(6):
        k(f"global_load_dword {V(PRM+i)}, {V(PRM+6)}, {S(30+2*i,2)}")
    k(f"s_lshl_b32 {S(sT0)}, {S(sCP)}, 2")
    k(f"s_load_dword {S(sLDT)}, s[42:43], {S(sT0)}")
    k(f"s_load_dword {S(sDSK)}, s[44:45], {S(sT0)}")
    k.lg = []
    srd(SRD_W2, 50, 1792 * 896)
    if opt("warmat", 2) == 0:
        warm_loads()
    if opt("tblearly", 0):
        table_loads()
    w2_lane_src(vW2S, 896, KW + 100, KW + 101)
    k(f"s_mul_i32 {S(sW2B)}, {S(sW)}, {448*896}")
    k(f"s_lshl_b32 {S(sT2)}, {S(sDS)}, 7")
    k(f"s_add_u32 {S(sW2B)}, {S(sW2B)}, {S(sT2)}")
    FREG[0] = 4
    fine("ld")
    ac = ac0 if opt("pdelay", 0) else addr_conv()
    for i in range(NINIT):
        w2_dma()
        run(ac, len(ac) // (NINIT - i))
    run(ac)
    if TE:
        touch(0)
        dt_setup()
    stamp(24)
    fine("addr")
    if opt("warmat", 2) == 1:
        warm_loads()
    p0x_body()
    if opt("warmat", 2) == 2:
        warm_loads()
    fine("p0x")
    stamp(1)
    if opt("atom0", 11) < 0:
        p0x_atomics()
        stamp(25)
    if TE:
        k("s_branch L_body")
        k.raw(".p2align 12")
        k.label("L_pg0")
        k("s_branch L_ret0")
        k("s_nop 0")
        k.label("L_body")
    else:
        touch(0)

DEF0 = opt("def0", 1)
LATE0 = W1R + 100 if DEF0 else WK + 12
def conv_load_ops(layer, h, D):
    o = [f"s_mov_b32 {S(sT0)}, {hex(STATS[layer] + 8192*h)}",
         f"s_add_u32 {S(sT3)}, {S(sXQi)}, {hex(layer*XQ_SZ + 8192*h)}"]
    for j in range(2):
        o.append(f"buffer_load_dwordx4 {V(D+4*j,4)}, {V(vCX)}, {S(SRD_WS,4)}, {S(sT0)} offen offset:{128*j} sc1")
        o.append(f"buffer_load_dwordx2 {V(D+8+2*j,2)}, {V(vCX)}, {S(SRD_WS,4)}, {S(sT3)} offen offset:{128*j} sc1")
    return o

CW = []
def kgen():
    k.c("=== K generation")
    B0 = KW + 46
    U = B0
    DT = B0 + 12
    W1_, W8_, W256 = B0 + 14, B0 + 18, B0 + 22
    T = B0 + 26
    P = [B0 + 30 + 4 * i for i in range(5)]
    CV = B0 + 50
    ACC = WK + 64
    FX, FY = (112, 144), (176, 208)
    for i in range(6):
        k(f"v_lshlrev_b32 {V(U+2*i)}, 16, {V(PRM+i)}")
        k(f"v_and_b32 {V(U+2*i+1)}, {S(sHIM)}, {V(PRM+i)}")
    if not TE:
        dt_setup()
    fine("prm")
    for i in range(4):
        pk("mul", V(U + 2 * i, 2), V(U + 2 * i, 2), V(DT, 2), bc=(1,))
    k(f"s_mov_b32 {S(sC0)}, {f2u(1.4426950408889634)}")
    pk("mul", V(U, 2), V(U, 2), S(sC0, 2), bc=(1,))
    k(f"s_mov_b32 {S(sC0)}, {f2u(0.15915494309189535)}")
    pk("mul", V(U + 2, 2), V(U + 2, 2), S(sC0, 2), bc=(1,))
    cmul(P[0], U + 8, U + 4, T)
    for (Wd, sc) in ((W1_, 1.0), (W256, 256.0), (W8_, 8.0)):
        ea, an = U + 4, U + 6
        if sc == 1.0:
            sa, sb = U, U + 2
        else:
            k(f"s_mov_b32 {S(sC0)}, {f2u(sc)}")
            pk("mul", V(ea, 2), V(U, 2), S(sC0, 2), bc=(1,))
            pk("mul", V(an, 2), V(U + 2, 2), S(sC0, 2), bc=(1,))
            sa, sb = ea, an
        for h in range(2):
            k(f"v_fract_f32 {V(an+h)}, {V(sb+h)}")
        for h in range(2):
            k(f"v_exp_f32 {V(ea+h)}, {V(sa+h)}")
        for h in range(2):
            k(f"v_cos_f32 {V(Wd+h)}, {V(an+h)}")
        for h in range(2):
            k(f"v_sin_f32 {V(Wd+2+h)}, {V(an+h)}")
        pk("mul", V(Wd, 2), V(Wd, 2), V(ea, 2))
        pk("mul", V(Wd + 2, 2), V(Wd + 2, 2), V(ea, 2))
    if not opt("goearly", 2):
        poll_load(vGO, vGO + 3, 0, 0, SRD_DBG)
    if opt("atom0", 11) == 0:
        p0x_atomics()
        stamp(25)
    fine("setup")
    cvi = [0]
    ent = [0]
    vPL = vPA
    NKD = opt("nkd", 0)
    FL0, PL0 = opt("flag0", 27), opt("poll0", 46)
    cl = conv_load_ops(0, 0, WK) + ([] if DEF0 else conv_load_ops(0, 1, LATE0))
    PCE = opt("pce", 0)
    def put(src, row, negim, extra=None):
        c = CV + 2 * (cvi[0] & 1)
        cvi[0] += 1
        n = "-" if negim else ""
        k(f"v_cvt_pk_bf16_f32 {V(c)}, {V(src)}, {V(src+1)}")
        k(f"v_cvt_pk_bf16_f32 {V(c+1)}, {n}{V(src+2)}, {n}{V(src+3)}")
        k(f"ds_write_b64 {V(vKW)}, {V(c,2)} offset:{row*ROW_ST}")
        if extra:
            k(extra)
        ent[0] += 1
        if ent[0] == opt("atom0", 11):
            p0x_atomics()
            stamp(25)
        if ent[0] == FL0:
            poll_check(vGO, vGO + 2, 0, 128, SRD_DBG)
            k("s_barrier")
            flag_all(0)
            if not opt("tblearly", 0):
                table_loads()
            stamp(2)
        if opt("kdb", 0) and ent[0] == opt("kdb", 0):
            for _ in range(4):
                w2_dma()
        if ND[0] < NINIT + min(NKD, NKD * (ent[0] - opt("kd0", 0)) // (opt("kdspan", 42) - opt("kd0", 0))):
            w2_dma()
        if ent[0] in (opt("atom0", 11) - 1, opt("atom0", 11), FL0 - 1, FL0, 52):
            fine(f"e{ent[0]}")
        if ent[0] == PL0:
            poll_load(vPL, vFP, S(sREP))
        if ent[0] == PCE:
            poll_check(vPL, vFP, S(sREP))
            k("s_barrier")
            run(cl, 6)
    def frags(b):
        for st in range(8):
            k(f"ds_read_b128 {A(b+4*st,4)}, {V(vKR)} offset:{64*st}")
    cur = 0
    for a in range(8):
        put(P[cur], a, True)
        if a % 2 == 0:
            dst = {0: 3, 4: 4}.get(a, 2)
            cmul(P[dst], P[cur], W256, T)
            put(P[dst], 8 + a // 2, True)
        if a < 7:
            cmul(P[1 - cur], P[cur], W1_, T)
            cur = 1 - cur
    cmul(P[0], P[3], W256, T); put(P[0], 12, True)
    cmul(P[1], P[4], W256, T); put(P[1], 13, True)
    cmul(P[3], P[0], W256, T); put(P[3], 14, True)
    cmul(P[4], P[1], W256, T); put(P[4], 15, True)
    frags(FX[0])
    src, dst = 3, 0
    for row in range(5):
        cmul(P[dst], P[src], W256, T)
        put(P[dst], row, True)
        src, dst = dst, (1 - dst if dst in (0, 1) else 0)
    frags(FX[1])
    k(f"v_mov_b32 {V(CV)}, {S(sONES)}")
    k(f"v_mov_b32 {V(CV+1)}, 0")
    k(f"ds_write_b64 {V(vKW)}, {V(CV,2)}")
    cvi[0] = 1
    put(W8_, 1, False)
    cmul(P[0], W8_, W8_, T)
    cur = 0
    def mfma(n):
        yt, x, st = n // 16, (n // 8) & 1, n % 8
        d = V(ACC + 8 * yt + 4 * x, 4)
        return f"v_mfma_f32_16x16x32_bf16 {d}, {A(FX[x]+4*st,4)}, {A(FY[yt]+4*st,4)}, {d if st else 0}"
    M0 = opt("km", 0)
    for j in range(2, 32):
        put(P[cur], j % 16, False, mfma(j - 32 + M0) if j >= 32 - M0 else None)
        if j % 16 == 15:
            frags(FY[j // 16])
        if j == 15:
            stamp(3)
        if j < 31:
            cmul(P[1 - cur], P[cur], W8_, T)
            cur = 1 - cur
    assert ND[0] == NINIT + NKD and opt("pchk", 8) < 13, ND
    def tables(yt, x):
        a = ACC + 8 * yt + 4 * x
        return [f"ds_write2_b32 {V(TA+x)}, {V(a+i)}, {V(a+i+1)} offset0:{66*i+32*yt} offset1:{66*(i+1)+32*yt}" for i in (0, 2)]
    mads = []
    for n in range(17):
        sel = " op_sel:[1,0,0,0]" if n & 1 else ""
        mads.append(f"v_mad_u32_u16 {V(GA+n)}, {V(TBL+n//2)}, 8, {S(sSCH)}{sel}")
    PCK = opt("pchk", 8)
    tb = [(8, [f"v_add_f32 {V(ACC)}, {V(ACC)}, {V(vDSK)}"] + tables(0, 0)), (16, tables(0, 1)), (24, tables(1, 0))]
    for n in range(M0, 32):
        k(mfma(n))
        run(mads, 1)
        if n - M0 == PCK:
            if not PCE:
                poll_check(vPL, vFP, S(sREP))
            k.wait(lg=0)
            k("s_barrier")
            fine("pbar")
            stamp(4)
        if n - M0 >= PCK:
            if (n - M0 - PCK) % 2 == 0:
                run(cl, 3 if cl and cl[0].startswith("s_") else 1)
            if not cl and tb and n >= tb[0][0] + 4:
                run(tb.pop(0)[1])
    if AL:
        mads += [f"v_lshlrev_b32 {V(vFW)}, {AL-4}, {V(vFW)}", f"v_lshlrev_b32 {V(vFP)}, {AL-4}, {V(vFP)}", f"s_lshl_b32 {S(sREP)}, {S(sREP)}, {AL-4}"]
    run(mads)
    for _, o in tb:
        run(o)
    run(cl)
    poll_load(vGO, vGO + 1, 0, 192, SRD_DBG)
    run(tables(1, 1))
    k.wait(lg=0)
    k("s_barrier")
    fine("tbar")
    stamp(6)
    GV = B0
    for e in range(17):
        k(f"ds_read_b64 {V(GV+2*e,2)}, {V(GA+e)}")
    if opt("cpk", 1):
        CW.extend(cprep(WK, WK + 32, 0, True))
        k.wait(lg=0)
    else:
        k.wait(lg=8)
    for e in range(17):
        if e == 9 and k.lg:
            k.wait(lg=0)
        k(f"v_add_f32 {V(GV+2*e)}, {V(GV+2*e)}, {V(GV+2*e+1)}")
    fine("gath")
    k("s_barrier")
    O = B0 + 34
    for c in range(2):
        for kk in range(8):
            e = 2 * kk + c
            k(f"v_cvt_pk_bf16_f32 {V(O+8*c+kk)}, {V(GV+2*e)}, {V(GV+2*e+2)}")
    for c in range(2):
        for h in range(2):
            k(f"ds_write_b128 {V(vKC)}, {V(O+8*c+4*h,4)} offset:{c*(SCR_ST+64)+16*h}")
    stamp(5)

def wave0(fn):
    skip = newlab("w0")
    k(f"s_cmp_lg_u32 {S(sW)}, 0")
    saved = list(k.vm)
    k.skip_begin("s_cbranch_scc1", skip)
    fn()
    k.skip_end(skip)
    k.vm = saved

EARLY = opt("early", 0)
def apoll_load(arr):
    k(f"s_add_u32 {S(sPA)}, {S(sREP)}, {hex(FA(arr))}")
    poll_load(vPA, vFP, S(sPA))

def apoll_check():
    poll_check(vPA, vFP, S(sPA))

def aflag(arr):
    flag_all(FA(arr))

def bar():
    k.wait(lg=0)
    k("s_barrier")

CACC, CKR, CXU, CXR = WK, WK + 32, WK + 96, WK + 104
def cprep(D, T, h, defer=False):
    UU, O, RAW, EPS = T, T + 4, T + 8, CXR
    k(f"s_mov_b32 {S(sC0)}, {f2u(1.0/448)}")
    k(f"s_mov_b32 {S(sC1)}, {f2u(1e-5)}")
    k(f"v_mov_b32 {V(EPS)}, {S(sC1)}")
    for j in range(2):
        M, Q, X = D + 4 * j, D + 4 * j + 2, D + 8 + 2 * j
        pk("mul", V(M, 2), V(M, 2), S(sC0, 2), bc=(1,))
        pk("fma", V(Q, 2), V(Q, 2), S(sC0, 2), V(EPS, 2), bc=(1, 2))
        pk("fma", V(Q, 2), V(M, 2), V(M, 2), V(Q, 2), neg=(0,))
        for b in range(2):
            k(f"v_max_f32 {V(Q+b)}, {S(sC1)}, {V(Q+b)}")
        for b in range(2):
            k(f"v_rsq_f32 {V(Q+b)}, {V(Q+b)}")
        for b in range(2):
            k(f"v_lshlrev_b32 {V(UU+b)}, 16, {V(X+b)}")
            k(f"v_and_b32 {V(UU+2+b)}, {S(sHIM)}, {V(X+b)}")
        pk("mul", V(M, 2), V(M, 2), V(Q, 2))
        for c in range(2):
            pk("fma", V(UU + 2 * c, 2), V(UU + 2 * c, 2), V(Q, 2), V(M, 2), neg=(2,))
            k(f"v_perm_b32 {V(RAW+2*c+j)}, {V(X+1)}, {V(X)}, {S(sPERM0+c)}")
        for c in range(2):
            k(f"v_cvt_pk_bf16_f32 {V(O+2*c+j)}, {V(UU+2*c)}, {V(UU+2*c+1)}")
    w = [f"ds_write_b64 {V(vUW)}, {V(O+2*c,2)} offset:{c*U_ST + 2048*h}" for c in range(2)]
    w += [f"ds_write_b64 {V(vXW)}, {V(RAW+2*c,2)} offset:{c*2*SCR_ST + 1024*h}" for c in range(2)]
    if defer:
        return w
    run(w)

def k_ops(I, s, reg):
    o = (128 if I % 2 == 0 else 0) + 16 * (3 - s)
    r = (V if reg[0] == "v" else A)
    return [f"ds_read2_b32 {r(reg[1]+2*h,2)}, {V(vKF+I//2)} offset0:{o+2*h} offset1:{o+2*h+1}" for h in range(2)]

def k_preload():
    return [t for s in range(4) for I in range(4) for t in k_ops(I, s, ("v", CKR + 16 * s + 4 * I))]

def conv(layer):
    k.c("=== conv")
    ACC, XU, XR = CACC, CXU, CXR
    mf = []
    for s in range(4):
        mf += [(0, s, Jp, I) for Jp in range(3, -1, -1) for I in range(4 - Jp)]
    for s in range(3, -1, -1):
        mf += [(1, s, Jp, I) for I in range(7, 0, -1) for Jp in range(4) if 4 <= Jp + I <= 7]
    for s in range(4):
        mf += [(2, s, Jp, I) for Jp in range(7, 3, -1) for I in range(8 - Jp)]
    assert len(mf) == 144
    ukey = lambda p, s, Jp: ("u", 0 if (p == 1 and s == 3) else p, s, Jp)
    kkey = lambda s, I: ("k", s, I)
    first, last = {}, {}
    for n, (p, s, Jp, I) in enumerate(mf):
        for key in (ukey(p, s, Jp), kkey(s, I)):
            first.setdefault(key, n)
            last[key] = n
    reg = {kkey(s, I): ("v", CKR + 16 * s + 4 * I) for s in range(4) for I in range(4)}
    items = sorted((key for key in first if not (layer and key in reg)), key=lambda x: first[x])
    XB, XS = opt("xb", 42), opt("xs", 46)
    slots = [("a", AX + 4 * i) for i in range(8)] + [("v", WK + 108), ("v", ACC + 12)][:opt("xslot", 2)]
    slot_free = ([-1] * 9 + [XB + 4])[:len(slots)]
    RG = lambda r: (V if r[0] == "v" else A)(r[1], 4)
    queue = []
    issued = {}
    def issue(n, budget):
        c = 0
        while True:
            if not queue:
                if not items:
                    return c
                key = items[0]
                if not (first[key] <= n + 2 or (c < budget and first[key] <= n + 20)):
                    return c
                if (layer or DEF0) and key[0] == "u" and key[1] == 2 and n < 104:
                    return c
                if key not in reg:
                    fr = [i for i in range(len(slots)) if slot_free[i] < n]
                    if not fr:
                        assert first[key] > n, (n, key)
                        return c
                    slot_free[fr[0]] = last[key]
                    reg[key] = slots[fr[0]]
                items.pop(0)
                if key[0] == "u":
                    queue.append((key, f"ds_read_b128 {RG(reg[key])}, {V(vUF)} offset:{512*key[3] + 64*(3-key[2])}"))
                else:
                    queue.extend((key, t) for t in k_ops(key[2], key[1], reg[key]))
            elif not (first[queue[0][0]] <= n + 2 or c < budget):
                return c
            key, t = queue.pop(0)
            k(t, tag=key)
            issued[key] = n
            c += 1
    def xblock(ph, packed, addfirst=False):
        l1, lj = newlab("x1"), newlab("xj")
        k(f"s_cmp_eq_u32 {S(sNH)}, 1")
        h0 = list(k.hist)
        k(f"s_cbranch_scc1 {l1}")
        for hf in range(2):
            if hf:
                k.label(l1)
                k.hist = h0
                k.lg = k.lg[:-2]
            a = ACC + 16 * ph
            def adds():
                for i in range(4 if packed else 8):
                    if packed:
                        pk("add", V(XU + 2 * i, 2), V(XU + 2 * i, 2), V(a + 8 * hf + 2 * i, 2))
                    else:
                        k(f"v_add_f32 {V(XU+i)}, {V(XU+i)}, {V(a+8*hf+i)}")
            if addfirst:
                adds()
            for jl in range(2):
                k(f"ds_write_b128 {V(vEXW)}, {V(a+8*(1-hf)+4*jl,4)} offset:{2048+1024*jl}", tag="ex")
            if not addfirst:
                adds()
            if not hf:
                k(f"s_branch {lj}")
        k.label(lj)
    def wait_lg(tag):
        idx = [i for i, p in enumerate(k.lg) if p[2] == tag]
        if idx:
            k.wait(lg=len(k.lg) - 1 - idx[-1])
    def res_ops(ph):
        o = [f"ds_read_b64_tr_b16 {V(XR+2*jl,2)}, {V(vXR)} offset:{1024*ph + 512*jl}" for jl in range(2)]
        o += [None] * 6
        for i in range(4):
            o += [f"v_lshlrev_b32 {V(XU+2*i)}, 16, {V(XR+i)}", f"v_and_b32 {V(XU+2*i+1)}, {S(sHIM)}, {V(XR+i)}"]
        return o
    def recv_ops():
        return [f"ds_read_b128 {V(ACC+4*jl,4)}, {V(vEXR)} offset:{2048+1024*jl}" for jl in range(2)]
    def out_ops(ph, packed):
        if packed:
            o = [f"v_pk_add_f32 {V(XU+2*i,2)}, {V(XU+2*i,2)}, {V(ACC+2*i,2)}" for i in range(4)]
        else:
            o = [f"v_add_f32 {V(XU+i)}, {V(XU+i)}, {V(ACC+i)}" for i in range(8)]
        o += [f"v_cvt_pk_bf16_f32 {V(ACC+8+i)}, {V(XU+2*i)}, {V(XU+2*i+1)}" for i in range(4)]
        o.append(f"s_mov_b32 {S(sT1)}, {hex(X1T + layer*XQ_SZ + 57344*ph)}")
        o.append((f"buffer_store_dwordx4 {V(ACC+8,4)}, {V(vCO)}, {S(SRD_WS,4)}, {S(sT1)} offen sc1", ("cst", ph)))
        return o
    if layer == 0:
        poll_check(vGO, vGO + 1, 0, 192, SRD_DBG)
        if opt("pw1", 40) < 0:
            poll_load(vWF, vWF + 1, 0)
        if CW:
            run(CW)
        else:
            cprep(WK, WK + 32, 0)
        stamp(7)
        if not DEF0:
            cprep(WK + 12, WK + 44, 1)
    bar()
    if layer and EARLY and opt("fl", 4) < 0:
        aflag(F_CIN1[1])
    fine("cbar")
    FREG[0] = 3
    fine("start")
    stamp(9)
    bg = []
    if layer == 0:
        n1, n2 = opt("w1conv", 18), opt("w2conv", 0)
        bg = [w2_dma] * (28 - ND[0])
        def c1():
            if not opt("abl", 0) & 8:
                poll_check(vWF, vWF + 1, 0)
            w1_load()
        def p2():
            poll_load(vWF, vWF + 2, 0)
            w1_load()
        def c2():
            if not opt("abl", 0) & 16:
                poll_check(vWF, vWF + 2, 0)
            if n2:
                w2_load()
        w = [c1] + [w1_load] * (n1 - 1)
        pos = max(1, n1 - n2 - 7)
        if n2:
            w[pos] = p2
        t = w[:n1 - n2]
        for i in range(n2):
            t += [c2 if i == 0 else w2_load] + w[n1 - n2 + i: n1 - n2 + i + 1]
        if opt("bgord", 0) == 0:
            bg += t
        elif opt("bgord", 0) == 1:
            bg = t + bg
        else:
            m = []
            while bg or t:
                m += t[:1] + bg[:1]
                t, bg = t[1:], bg[1:]
            bg = m
    nbg = len(bg)
    BG0 = opt("bg0", 4)
    step = max(1, (opt("bg1", 138) - BG0) / max(1, nbg))
    side = []
    lastbg = -9
    seen = set()
    CL, FE, PE = opt("cl", XS), opt("fe", 100), opt("pe", 128)
    for n, (p, s, Jp, I) in enumerate(mf):
        if n == 104 and (layer or DEF0):
            assert not side and (layer or NW1[0] <= 25)
            stamp(10)
            cprep(LIN if layer else LATE0, ACC, 1)
            k.wait_tag_vm(("cst", 0))
            bar()
            if FE >= 104:
                aflag(F_X1[layer][0])
            stamp(12)
        cnt = issue(n, (12 if layer == 0 else 5) if n == 0 else 5 if n == 104 and (layer or DEF0) else 1)
        uk, kk = ukey(p, s, Jp), kkey(s, I)
        tags = [q[2] for q in k.lg]
        if uk in tags or kk in tags:
            cand = [i for i, q in enumerate(tags) if q in (uk, kk) or (q in first and first[q] <= n + 3 and issued[q] <= n - 7)]
            k.wait(lg=len(tags) - 1 - max(cand))
        J = Jp + I
        d = V(ACC + 4 * J, 4)
        k(f"v_mfma_f32_16x16x32_bf16 {d}, {RG(reg[uk])}, {RG(reg[kk])}, {d if J in seen else 0}")
        seen.add(J)
        if n == opt("ll0", 8) and layer == 0 and DEF0:
            side += conv_load_ops(0, 1, LATE0)
        if n == 18:
            side += res_ops(0)
        if n == 122:
            side[0:0] = res_ops(1)
        if layer == 0 and n == opt("pw1", 40):
            poll_load(vWF, vWF + 1, 0)
        if layer and EARLY and n == opt("fl", 4):
            k.wait_tag_vm(("st", 1))
            k("s_barrier")
            aflag(F_CIN1[1])
        if layer and n == opt("pcl", 0):
            apoll_load(F_CIN1[1])
        if n == XB:
            assert not side
            xblock(0, bool(opt("xpk", 1)), True)
        if layer and n == CL - 2:
            precmp(vPA)
        if layer and n == CL and CL != XS:
            apoll_check()
            k("s_barrier")
            side += conv_load_ops(1, 1, LIN)
        if n == XS:
            if layer and CL == XS:
                apoll_check()
            wait_lg("ex")
            k("s_barrier")
            run(recv_ops())
            if layer and CL == XS:
                side += conv_load_ops(1, 1, LIN)
        if n == XS + opt("xo", 5):
            run(out_ops(0, bool(opt("xpk", 1))))
        if n == FE and (FE < 104 or not (layer or DEF0)):
            k.wait_tag_vm(("cst", 0))
            k("s_barrier")
            aflag(F_X1[layer][0])
        if n == PE:
            apoll_load(F_X1[layer][0])
        if n in (0, 19, 39, 47, 55, 63, 71, 87, 103, 104, 123, 143):
            fine(f"m{n}")
        if side:
            run(side, 2 if cnt == 0 else 1)
        elif bg and n >= BG0 + step * (nbg - len(bg)) and (cnt == 0 or n >= BG0 + 2 + step * (nbg - len(bg))):
            run(bg, 1)
    assert not items and not queue and not any(x and "v_" in x[:2] for x in side)
    run(side)
    run(bg)
    stamp(13)
    PX = opt("px", 2) if PE > 143 else -1
    if PX == 0:
        apoll_load(F_X1[layer][0])
    xblock(1, True)
    bar()
    run(recv_ops())
    if PX == 1:
        apoll_load(F_X1[layer][0])
    o = out_ops(1, True)
    run(o, len(o) - 1)
    if PX == 2:
        apoll_load(F_X1[layer][0])
    run(o)
    fine("store")
    stamp(11)
    if layer == 0:
        n = min(opt("w1a", 4), 28 - NW1[0])
        k.wait_tag_vm(("w2", 27))
        tr = w2_tr_ops(0, 14)
        for i in range(n):
            w1_load()
            run(tr, len(tr) // (n - i))
        run(tr)
    apoll_check()
    bar()
    fine("pollE")
    stamp(14)

def layer_turn():
    kp = k_preload()
    run(kp, 32 if EARLY else opt("kpre", 32))
    if EARLY:
        touch(2)
        LAY[0] = 1
        w = cprep(WK, WK + 12, 0, True)
        run(w)
        if opt("fl", 4) < 0:
            k.wait_tag_vm(("st", 1))
        return
    apoll_check()
    k("s_barrier")
    stamp(20)
    run(conv_load_ops(1, 0, WK))
    k.wait_tag_vm(("st", 1))
    k("s_barrier")
    aflag(F_CIN1[1])
    run(kp)
    touch(2)
    stamp(21)
    LAY[0] = 1
    if opt("pcl", 0) < 0:
        k.wait(vm=0)
        apoll_load(F_CIN1[1])
    cprep(WK, WK + 12, 0)

G2RES = WK + 100
G2R = WK + 108

GB = 4 if GL else 1024
def gflag_ops(half, local):
    return ["s_mov_b64 exec, 1",
            f"buffer_store_dword {V(vONE)}, {V(vFL)}, {S(SRD_WS,4)}, {S(sFP if local else sFG)} offen offset:{GB*half}" + ("" if local else " sc1"),
            "s_mov_b64 exec, -1"]

def gflag(layer, half):
    run(gflag_ops(half, FAST))

def gcheck(half, pre=()):
    if FAST:
        poll_check(vPL2, vF2P, S(sFP), GB * half, pre=gflag_ops(half, False), alt=(vHL, S(sFG)))
    else:
        poll_check(vPL2, vF2P, S(sFG), GB * half, pre=pre)

def ffn(layer):
    k.c("=== GEMM1")
    FREG[0] = 1
    fine("start")
    ACC = WK
    EP = WK + 64
    vXS = WK + 80
    vB0, vB1 = WK + 81, WK + 82
    if layer:
        k(f"s_add_u32 {S(sXT)}, {S(sXT)}, {hex(XQ_SZ)}")
    k(f"v_add_u32 {V(vXS)}, {S(sXT)}, {V(vL16)}")
    k(f"s_lshl_b32 {S(sT0)}, {S(sW)}, 10")
    k(f"s_mov_b32 m0, {S(sT0)}")
    nx = [0]
    def dma():
        d = nx[0]
        nx[0] += 1
        k(f"buffer_load_dwordx4 {V(vXS)}, {S(SRD_WS,4)}, m0 offen sc1 lds", tag=("x", d))
        if d == 13:
            k(f"v_subrev_u32 {V(vXS)}, 32, {V(vXS)}")
        if d < 27:
            k(f"s_add_u32 m0, m0, {4096 + (32 if d == 13 else 0)}")
    NUP = opt("nup", 9)
    af = addr_ffn(layer)
    FXL = opt("fxl", 5)
    for st in range(NUP):
        dma()
        if st >= 1:
            run(af, opt("afr", 11))
        if st == FXL:
            k.wait_tag_vm(("cst", 1))
            k("s_barrier")
            aflag(F_X1[layer][1])
    af += [f"v_add_u32 {V(vB0)}, {XHALF}, {V(vXA0)}", f"v_add_u32 {V(vB1)}, {XHALF}, {V(vXA1)}"]
    W2CHK = [layer == 0 and NW2[0] == 0]
    if W2CHK[0]:
        k(f"v_mov_b32 {V(WK+97)}, {S(sLDT2)}")
        poll_load(WK + 96, WK + 97, 0)
    if layer == 0:
        touch(1)
    SKA = opt("ska", 10)
    mf = [(0, q, ks) for ks in range(28 - SKA) for q in range(2)]
    mf += [(0, q, ks) for q in range(2) for ks in range(28 - SKA, 28)]
    SK = opt("skb", 22)
    mf += [(1, q, ks) for ks in range(28 - SK) for q in range(2)]
    mf += [(1, q, ks) for q in range(2) for ks in range(28 - SK, 28)]
    NR = 8
    LEAD = opt("g1lead", 7)
    bars = [[2, 5, 9, 14, 16, 19, 23, 28], [1, 3, 6, 9, 14, 17, 21, 28], [2, 5, 9, 14, 18, 23, 28], [2, 6, 14, 20, 28]][opt("bars", 0)]
    ready = [0]
    def rd(n):
        half, q, ks = mf[n]
        st = 14 * half + ks // 2
        if st >= ready[0]:
            nb = [b for b in bars if b > st][0]
            assert nx[0] >= nb, (n, nb, nx[0])
            k.wait_tag_vm(("x", nb - 1))
            k("s_barrier")
            if ready[0] == 0 and FXL >= NUP:
                aflag(F_X1[layer][1])
            ready[0] = nb
        va = ((vXA0, vXA1), (vB0, vB1))[half][q]
        for u in range(2):
            k(f"ds_read_b64_tr_b16 {A(AX+4*(n%NR)+2*u,2)}, {V(va)} offset:{ks*2048+u*512}", tag=("f", n))
        rdat[n] = cur[0]
    rdat, cur, lastw = {}, [-9], [-9]
    def epi(tile):
        ops = []
        e = EP + 8 * (tile & 1)
        for a in range(2):
            for i in range(4):
                ops.append(f"v_cvt_pk_bf16_f32 {V(e+4*a+i)}, {V(ACC+16*tile+8*a+2*i)}, {V(ACC+16*tile+8*a+2*i+1)}")
            for i in range(4):
                ops.append(f"v_pk_max_i16 {V(e+4*a+i)}, {V(e+4*a+i)}, 0")
            if a == 0:
                ops.append(f"s_add_u32 {S(sT1)}, {S(sHS)}, {tile*112*1024}")
            ops.append((f"buffer_store_dwordx4 {V(e+4*a,4)}, {V(vL16)}, {S(SRD_WS,4)}, {S(sT1)} offen offset:{1024*a} sc1", ("h", tile)))
        return ops
    F = WK
    ONE4, DS_, DQ = WK + 84, WK + 88, WK + 92
    srd_ = [f"ds_read_b64_tr_b16 {V(F+4*ks+2*u,2)}, {V(vST)} offset:{ks*4096+u*512}" for ks in range(14) for u in range(2)]
    ring = [("a", AX + 4 * i) for i in range(8)] + [("v", WK + 64 + 4 * i) for i in range(5)]
    NR2 = opt("g2ring", 11)
    ring = ring[:NR2]
    rn = lambda i: (V if ring[i % NR2][0] == "v" else A)(ring[i % NR2][1], 4)
    nl = [0]
    def ld():
        i = nl[0]
        nl[0] += 1
        half, s = divmod(i, 28)
        if s % 4 == 0:
            k(f"s_add_u32 {S(sT4)}, {S(sHL)}, {half*2*112*1024 + s*1024}")
        k(f"buffer_load_dwordx4 {rn(i)}, {V(vL16)}, {S(SRD_WS,4)}, {S(sT4)} offen offset:{1024*(s%4)} sc1" + (" nt" if opt("hnt", 0) else ""))
        if layer == 0 and NW2[0] < 28:
            w2_load()
    CHKA = opt("chkA", 999)
    HOLD = opt("hold", 0)
    held = []
    sentB = False
    pend = af
    nrd = 0
    for n in range(opt("lead0", LEAD)):
        rd(nrd); nrd += 1
    stamp(27)
    cur[0] = 0
    PXL, CXL = opt("pxl", 10), opt("cxl", 28)
    LB = opt("leadb", 4)
    BUD, CVM, CST, CRD = opt("bud", 28), opt("cvm", 12), opt("cst", 24), opt("crd", 4)
    MINL = opt("minl", 5)
    for n, (half, q, ks) in enumerate(mf):
        tile = 2 * half + q
        d = V(ACC + 16 * tile, 16)
        assert NW1[0] > ks, "W1 fragment used before its load"
        k(f"v_mfma_f32_32x32x16_bf16 {d}, {V(W1R+4*ks,4)}, {A(AX+4*(n%NR),4)}, {d if ks else 0}")
        if n == 56 - SKA + opt("ed", 2):
            pend += epi(0)
        if n == 56 + opt("ed", 2):
            pend += epi(1)
        if n == 112 - SK + opt("ed", 2):
            e2 = epi(2)
            if HOLD:
                held = [o for o in e2 if isinstance(o, tuple) or o.startswith("s_")]
                e2 = [o for o in e2 if o not in held]
            pend += e2
        b = BUD
        tags = [p[2] for p in k.lg]
        needw = ("f", n + 1) in tags
        if needw:
            b -= 4
        def newbar(m):
            return 14 * mf[m][0] + mf[m][2] // 2 >= ready[0]
        def may(m):
            return m < len(mf) and m <= n + (LB if m == 56 else LEAD)
        if n == PXL:
            apoll_load(F_X1[layer][1]); b -= CVM + 4
        if n == CXL - 1:
            assert PRECMP[0] is None
            precmp(vPA); b -= 8
        if n == CXL:
            apoll_check()
            if nx[0] == 14 and ready[0] < 14:
                k.wait_tag_vm(("x", 13))
                ready[0] = 14
            k("s_barrier")
            stamp(28); b -= 20
        if n == opt("pollA", 107):
            poll_load(vPL2, vF2P, S(sFP)); b -= CVM
        if n == opt("flagA", 88):
            k.wait_tag_vm(("h", 1))
            gflag(layer, 0); b -= CVM + 12
        if n == CHKA:
            assert opt("flagA", 88) < opt("pollA", 107) < n
            gcheck(0); b -= 12
        if n >= max(CHKA, 104) and nl[0] <= n - 104 and nrd == len(mf) and (n - CHKA) % opt("hstep", 2) == 0:
            ld(); b -= CVM
        while may(nrd) and nrd <= n + MINL - 1:
            b -= 2 * CRD + (12 if newbar(nrd) else 0)
            rd(nrd); nrd += 1
        full = b >= BUD - 4
        if pend and isinstance(pend[0], tuple):
            if full or b >= CST:
                run(pend, 1); b -= CST
        elif full or b >= CVM + 4:
            if nx[0] < 14 and 3 * (nx[0] - NUP) <= n:
                dma(); b -= CVM + 4
            elif n >= CXL and nx[0] < 28 and opt("bstep", 2) * (nx[0] - 14 - opt("bburst", 1)) <= n - CXL:
                dma(); b -= CVM + 4
            elif layer == 0 and n >= lastw[0] + opt("w1step", 3) and NW1[0] < 28:
                w1_load(); b -= CVM; lastw[0] = n
            elif layer == 0 and NW1[0] == 28 and NW2[0] < opt("w2g1", 28) and n >= lastw[0] + opt("w2step", 2) and (n < CXL - opt("w2gap", 8) or nx[0] >= opt("w2x", 28)) and n < opt("w2end", 999):
                if W2CHK[0]:
                    assert PRECMP[0] is None
                    poll_check(WK + 96, WK + 97, 0)
                    W2CHK[0] = False
                w2_load(); b -= CVM; lastw[0] = n
        while True:
            if may(nrd) and b >= 2 * CRD and (nrd <= n + MINL + 1 or not pend or isinstance(pend[0], tuple)):
                b -= 2 * CRD + (12 if newbar(nrd) else 0)
                rd(nrd); nrd += 1
            elif pend and not isinstance(pend[0], tuple) and b >= 4:
                run(pend, 1); b -= 4
            elif nrd == len(mf) and len(srd_) > 12 and b >= CRD and n > 72:
                run(srd_, 1); b -= CRD
            else:
                break
        if needw:
            tags = [p[2] for p in k.lg]
            tgt = ("f", n + 2) if ("f", n + 2) in tags and rdat[n + 2] <= n - opt("wage", 3) else ("f", n + 1)
            idx = [i for i, t_ in enumerate(tags) if t_ == tgt]
            if idx:
                k.wait(lg=len(tags) - 1 - idx[-1])
        cur[0] = n + 1
        assert nrd > n + 1 or nrd == len(mf)
        if n % 8 == 0 or n == 111:
            fine(f"m{n}")
        if opt("g1st", 0) and n in (55, 83):
            stamp({55: 29, 83: 31}[n])
    assert not pend and nx[0] == 28 and NW1[0] == 28 and not W2CHK[0], (pend, nx, NW1)
    FREG[0] = 2
    fine("g1end")
    run(srd_, len(srd_) - 4)
    for i in range(4):
        k(f"v_mov_b32 {V(ONE4+i)}, {S(sONES)}")
    e3 = epi(3)
    if CHKA <= 111:
        held += [o for o in e3 if isinstance(o, tuple) or o.startswith("s_")]
        e3 = [o for o in e3 if o not in held]
        n_pre = opt("hpre", 7) - nl[0]
        for i in range(n_pre):
            ld()
            run(e3, len(e3) // (n_pre - i))
    run(e3)
    run(held)
    if FAST:
        run(gflag_ops(0, False))
    fine("epi3")
    stamp(15)
    run(srd_)
    for h in range(2):
        for u in range(2):
            k(f"ds_read_b64_tr_b16 {V(G2RES+4*h+2*u,2)}, {V(vRES)} offset:{h*XHALF+u*512}")
    if CHKA > 111:
        gcheck(0, ["s_waitcnt vmcnt(0)"] + gflag_ops(1, False))
    fine("pollA")
    stamp(17)
    st = []
    for ks in range(14):
        st.append(f"v_mfma_f32_16x16x32_bf16 {V(DQ,4)}, {V(F+4*ks,4)}, {V(F+4*ks,4)}, {V(DQ,4) if ks else 0}")
        st.append(f"v_mfma_f32_16x16x32_bf16 {V(DS_,4)}, {V(ONE4,4)}, {V(F+4*ks,4)}, {V(DS_,4) if ks else 0}")
    vS, vQ, vT = DS_, ONE4, ONE4 + 1
    post = ["s_mov_b32 vcc_lo, 0x00100001", "s_mov_b32 vcc_hi, 0x10000100",
            f"v_cndmask_b32 {V(vQ)}, 0, {V(DQ)}, vcc"]
    for i in range(1, 4):
        post += ["s_lshl_b64 vcc, vcc, 1", f"v_cndmask_b32 {V(vQ)}, {V(vQ)}, {V(DQ+i)}, vcc"]
    post += [f"v_mov_b32 {V(vT)}, {V(vQ)}", f"v_mul_f32 {V(vS)}, {f2u(1.0/448)}, {V(vS)}", None,
             f"v_permlane32_swap_b32 {V(vQ)}, {V(vT)}", f"v_add_f32 {V(vQ)}, {V(vQ)}, {V(vT)}",
             f"v_mov_b32 {V(vT)}, {V(vQ)}", None, None,
             f"v_permlane16_swap_b32 {V(vQ)}, {V(vT)}", f"v_add_f32 {V(vQ)}, {V(vQ)}, {V(vT)}",
             f"v_mul_f32 {V(vQ)}, {f2u(1.0/448)}, {V(vQ)}",
             f"v_fma_f32 {V(vQ)}, -{V(vS)}, {V(vS)}, {V(vQ)}",
             f"v_max_f32 {V(vQ)}, 0, {V(vQ)}",
             f"v_add_f32 {V(vQ)}, {f2u(1e-5)}, {V(vQ)}",
             f"v_rsq_f32 {V(vQ)}, {V(vQ)}", None,
             f"v_mov_b32 {V(G2R)}, {V(vQ)}",
             f"v_mov_b32 {V(G2R+2)}, {V(vQ)}", None, None,
             f"v_mov_b32_dpp {V(G2R)}, {V(vQ)} row_ror:8 row_mask:0xf bank_mask:0xc",
             f"v_mov_b32_dpp {V(G2R+2)}, {V(vQ)} row_ror:8 row_mask:0xf bank_mask:0x3"]

    k.c("=== GEMM2")
    NR = NR2
    def red_write(half):
        return [f"ds_write_b128 {V(vRW)}, {V(ACC+32*half+4*G,4)} offset:{half*RED_H+G*RED_G}" for G in range(8)]
    def red_read(half):
        return [f"ds_read_b128 {V(ACC+32*half+8*w+4*g,4)}, {V(vRR)} offset:{half*RED_H+w*RED_W+512*g}" for w in range(4) for g in range(2)]
    def unpack(half, u):
        o = []
        for i in range(4):
            o.append(f"v_lshlrev_b32 {V(u+2*i)}, 16, {V(G2RES+4*half+i)}")
            o.append(f"v_and_b32 {V(u+2*i+1)}, {S(sHIM)}, {V(G2RES+4*half+i)}")
        return o
    UR = WK + 84
    def fin(half, pre):
        a = ACC + 32 * half
        u = UR
        ops = []
        def P(d, x, y):
            if pre:
                ops.append(f"v_pk_add_f32 {V(d,2)}, {V(x,2)}, {V(y,2)}")
            else:
                ops.extend(f"v_add_f32 {V(d+h)}, {V(x+h)}, {V(y+h)}" for h in range(2))
        for i in range(4):
            P(a + 2 * i, a + 2 * i, a + 8 + 2 * i)
        for i in range(4):
            P(a + 16 + 2 * i, a + 16 + 2 * i, a + 24 + 2 * i)
        for i in range(4):
            P(a + 2 * i, a + 2 * i, a + 16 + 2 * i)
        for i in range(4):
            if pre:
                ops.append(f"v_pk_fma_f32 {V(a+2*i,2)}, {V(a+2*i,2)}, {V(G2R+2*half,2)}, {V(u+2*i,2)} op_sel_hi:[1,0,1]")
            else:
                ops.extend(f"v_fma_f32 {V(a+2*i+h)}, {V(a+2*i+h)}, {V(G2R+2*half)}, {V(u+2*i+h)}" for h in range(2))
        for i in range(4):
            ops.append(f"v_cvt_pk_bf16_f32 {V(a+24+i)}, {V(a+2*i)}, {V(a+2*i+1)}")
        if layer == 0:
            ops += quad_shuffle([(a + 28, a + 24)])
            ops.append(f"s_mov_b32 {S(sT1)}, {hex(XQ + XQ_SZ + 8192*half)}")
            if half and not EARLY:
                ops.append(lambda: apoll_load(F_CIN1[0]))
            ops.append((f"buffer_store_dwordx4 {V(a+28,4)}, {V(vO)}, {S(SRD_WS,4)}, {S(sT1)} offen sc1", ("st", half)))
            so = stats_ops(a + 24, 4, a, a + 1, a + 2)
            if not pre:
                so = so[10:]
                for i in range(4):
                    ops.append(f"v_lshlrev_b32 {V(a+16+2*i)}, 16, {V(a+24+i)}")
                    ops.append(f"v_and_b32 {V(a+16+2*i+1)}, {S(sHIM)}, {V(a+24+i)}")
                ops.append(f"v_add_f32 {V(a)}, {V(a+16)}, {V(a+17)}")
                ops.append(f"v_mul_f32 {V(a+1)}, {V(a+16)}, {V(a+16)}")
                for i in range(1, 8):
                    if i > 1:
                        ops.append(f"v_add_f32 {V(a)}, {V(a)}, {V(a+16+i)}")
                    ops.append(f"v_fmac_f32 {V(a+1)}, {V(a+16+i)}, {V(a+16+i)}")
            ops += so
            def at():
                k(f"s_mov_b32 {S(sT1)}, {hex(STATS[1] + 8192*half)}")
                k("s_mov_b32 exec_lo, 0xff")
                k("s_mov_b32 exec_hi, 0xff")
                k(f"buffer_atomic_add_f32 {V(a)}, {V(vAT)}, {S(SRD_WS,4)}, {S(sT1)} offen sc1", tag=("st", half))
                k("s_mov_b64 exec, -1")
            ops.append(at)
        else:
            ops.append(f"s_mov_b32 {S(sT1)}, {1024*896*half}")
            ops.append(f"buffer_store_dwordx4 {V(a+24,4)}, {V(vO)}, {S(SRD_OUT,4)}, {S(sT1)} offen" + ("", " sc1", " nt", " sc0 sc1")[opt("osc", 0) if half or opt("osc", 0) < 10 else 0])
        return ops
    NUP2 = opt("nup2", NR)
    for i in range(nl[0], NUP2):
        ld()
        run(st, (len(st) + NUP2 - i - 1) // (NUP2 - i))
        if i == opt("flagB", 9):
            k.wait_tag_vm(("h", 3))
            gflag(layer, 1)
            sentB = True
    assert not st
    fine("up2")
    stamp(16)
    PB = opt("pollB", 7)
    TL = opt("tl", 4)
    order = [(i, dt) for i in range(56 - TL) for dt in range(2)] + [(i, dt) for dt in range(2) for i in range(56 - TL, 56)]
    bar()
    GAP = "gap"
    pend = [GAP] * 2 + [GAP if o is None else o for o in post] + unpack(0, UR)
    okB = False
    flagE = layer == 1
    BUD2 = opt("bud2", 24)
    for n, (i, dt) in enumerate(order):
        half, s = divmod(i, 28)
        d = V(ACC + 32 * half + 16 * dt, 16)
        assert NW2[0] + 28 > s * 2 + dt, "W2 fragment used before its load"
        k(f"v_mfma_f32_32x32x16_bf16 {d}, {A((s*2+dt)*4,4)}, {rn(i)}, {d if s else 0}")
        b = (BUD2 if i < 28 else opt("bud3", BUD2)) - (4 if dt else 0)
        if dt == 0 and i < 56 - TL:
            if i + NUP2 == opt("flagB", 9):
                k.wait_tag_vm(("h", 3))
                gflag(layer, 1)
                sentB = True
                b = 0
            if i == PB:
                poll_load(vPL2, vF2P, S(sFP), GB)
                assert sentB
                b -= 14
            if nl[0] == 28 and not okB and i > PB and (i >= opt("chkB", 99) or not any(f"v{vPL2}" in p[0] for p in k.vm[1:])):
                assert not pend
                precmp(vPL2)
                okB = None
        if dt == 1 and okB is None:
            gcheck(1)
            if FAST:
                pend += [GAP, lambda: run(gflag_ops(1, False))]
            okB = True
            b -= 4
        if dt == 1 and i < 56 - TL:
            if i in (13, 27, 41):
                stamp({13: 8, 27: 23, 41: 26}[i])
            if i == opt("red0", 29):
                for o in red_write(0):
                    pend += [o] + [GAP] * opt("rwg", 1)
                pend += [GAP] * opt("rw2", 1) + [bar] + red_read(0) + [GAP] * opt("rr2", 2) + fin(0, False) + unpack(1, UR)
        assert i < 56 - TL or nl[0] == 56
        if nl[0] < 56 and nl[0] - NR < i + dt and (nl[0] < 28 or okB) and (dt or opt("catch", 1)):
            ld()
            b -= 14
        while pend and not (layer and nl[0] < 56 and "buffer_store" in str(pend[0])):
            o = pend[0]
            if o is GAP:
                pend.pop(0)
                break
            cost = 8 if str(o).startswith("ds_read") else 4
            if b < cost and not str(o).startswith("ds_write"):
                break
            run(pend, 1)
            b -= cost if isinstance(o, str) else 16
        if n == opt("flagE", 109) and layer == 0:
            assert not any("atomic" in str(o) or callable(o) for o in pend)
            k.wait_tag_vm(("st", 0))
            k("s_barrier")
            aflag(F_CIN1[0])
            flagE = True
        if EARLY and layer == 0 and n == opt("pollE", 108):
            assert flagE
            apoll_load(F_CIN1[0])
        if n % 10 == 1:
            fine(f"m{n}")
        if n == 112 - TL - 1:
            assert not pend
            pend += ["s_nop 3", GAP, "s_nop 3", GAP]
            for o in red_write(1)[:4]:
                pend += [o, GAP]
    run([o for o in pend if o is not GAP])
    assert nl[0] == 56 and okB
    stamp(18)
    run(red_write(1)[4:])
    if not flagE:
        k.wait_tag_vm(("st", 0))
    if EARLY == 1 and layer == 0:
        apoll_check()
    bar()
    if not flagE:
        aflag(F_CIN1[0])
    fine("bar")
    run(red_read(1))
    if EARLY == 1 and layer == 0:
        run(conv_load_ops(1, 0, WK))
    o = fin(1, True)
    if EARLY == 2 and layer == 0:
        run(o, [i for i, x in enumerate(o) if isinstance(x, tuple)][0])
        apoll_check()
        k("s_barrier")
        run(conv_load_ops(1, 0, WK))
    run(o)
    fine("out")
    stamp(19)

def finish():
    if ENC >= 0:
        k.wait(vm=0)
        stamp(22)
        k(f"s_cmp_lg_u32 {S(sWG)}, 100")
        k("s_cbranch_scc1 L_end")
        k("s_sub_u32 s47, s47, s46" if ENC else "s_sub_u32 s47, s46, s46")
        k("s_mul_i32 s47, s47, 100")
        k("s_min_u32 s47, s47, 1000000")
        k(f"s_memrealtime {S(sTM,2)}")
        k.wait(lg=0)
        k(f"s_mov_b32 s46, {S(sTM)}")
        k.label("L_spin")
        k(f"s_memrealtime {S(sTM,2)}")
        k.wait(lg=0)
        k(f"s_sub_u32 {S(sT0)}, {S(sTM)}, s46")
        k(f"s_cmp_lt_u32 {S(sT0)}, s47")
        k("s_cbranch_scc1 L_spin")
    if DIAG:
        k.wait(vm=0)
        stamp(22)
        for n, (name, r) in enumerate(FINE):
            k(f"v_writelane_b32 {V(vSTAMP)}, s{r}, {20 + n}")
        k(f"v_writelane_b32 {V(vSTAMP)}, s101, 61")
        k.raw("; SITES " + " ".join(SITES))
        if FINE:
            k.raw("; FINE " + " ".join(n for n, _ in FINE))
        k(f"s_lshl_b32 {S(sT0)}, {S(sWG)}, 10")
        k(f"s_add_u32 {S(sT0)}, {S(sT0)}, {hex(STAMP)}")
        k(f"s_lshl_b32 {S(sT1)}, {S(sW)}, 8")
        k(f"v_lshl_add_u32 {V(WK)}, {V(vL)}, 2, {S(sT1)}")
        k(f"buffer_store_dword {V(vSTAMP)}, {V(WK)}, {S(SRD_WS,4)}, {S(sT0)} offen")
    k.label("L_end")
    k("s_endpgm")

prologue()
main_start()
kgen()
conv(0)
ffn(0)
layer_turn()
conv(1)
ffn(1)
finish()
cut = [i for i, l in enumerate(SLOW) if l.startswith("L_slow")]
NS = opt("ns", 4)
first = len(cut) - 10
for n, i in enumerate(cut):
    if n >= first and (n - first) % 3 == 0 and (n - first) // 3 < 4:
        k.raw(f"L_st{(n - first) // 3}:")
        k.raw(f"    s_branch L_ret{1 + (n - first) // 6}")
    for l in SLOW[i:(cut + [len(SLOW)])[n + 1]]:
        k.raw(l)
SLOW.clear()
LAY[0] = 0
helper()
body = list(k.lines) + SLOW
body += [".p2align 4", ".type L_table,@object", "L_table:"]
body += [".long " + ",".join(hex(w) for w in r) for r in table_words()]
body += ["L_table_end:"]

ref = open("cdna_kernels/%s.s.ref" % NAME).read().splitlines()
hdr = [l for l in ref if l.startswith(";") and "@launch" not in l]
head = f""".amdgcn_target "amdgcn-amd-amdhsa--gfx950"
.text
.globl {NAME}_kernel
.p2align 8
.type {NAME}_kernel,@function
{NAME}_kernel:
"""
if opt("align", 1):
    body = align(body, head, stubs=stub_targets())
out = "\n".join(hdr) + f"\n; @launch grid=(256,1,1) block=(256,1,1) lds={LDS_BYTES}\n"
out += head + "\n".join(body) + "\n"
out += f""".section .rodata,"a"
.p2align 6
.amdhsa_kernel {NAME}_kernel
  .amdhsa_next_free_vgpr 512
  .amdhsa_next_free_sgpr 102
  .amdhsa_accum_offset 256
  .amdhsa_group_segment_fixed_size 0
  .amdhsa_kernarg_size 120
  .amdhsa_user_sgpr_count 2
  .amdhsa_user_sgpr_kernarg_segment_ptr 1
  .amdhsa_system_sgpr_workgroup_id_x 1
.end_amdhsa_kernel
"""
dst = [a for a in sys.argv[1:] if not a.startswith("--")]
dst = dst[0] if dst else "cdna_kernels/%s.s" % NAME
open(dst, "w").write(out)
print("instructions:", k.nins, "->", dst)
```

```python
import sys, struct
from emit import Asm, V, A, S
from align import align

NAME = "interleave_layers__ssm_conv_s4__dense_activation_relu__prompt"
DIAG = "--diag" in sys.argv
OPT = {"pe.0": 142, "pxl.0": 18, "cxl.0": 36, "pxl.1": 12, "cxl.1": 30, "pollB.0": 10, "pollB.1": 9, "bud3.0": 44,
       "cpl.1": 88, "cpb.1": 94, "fe.1": 94, "pe.1": 138}
for a in sys.argv:
    if a.startswith("--") and "=" in a:
        n, v = a[2:].split("=")
        OPT[n] = int(v)
LAY = [0]
def opt(n, d):
    return OPT.get(f"{n}.{LAY[0]}", OPT.get(n, d))

def f2u(x):
    return "0x%08x" % struct.unpack("<I", struct.pack("<f", x))[0]

GL, AL = opt("gl", 5), opt("al", 0)
FA = (lambda n: 0x8000 + 4 * n if n else 0) if AL else (lambda n: n * 0x8000)
F_CIN0, F_X1, F_CIN1 = 0, ((1, 2), (5, 6)), (3, 4)
FLG_G = 0x8000 + (2048 << AL if AL else 0x30000)
FAST = opt("fast", 1)
PQ = 1024 << GL
ZEND = FLG_G + (PQ if FAST else 0) + (1024 << GL if GL else 0x10000) + 0x8000
STATS = (0x1804000, ZEND - 0x8000)
XQ = 0x1820000
XQ_SZ = 0x1C0000
X1T = 0x3E0000
HB = 0x760000
H_SZ = 0x700000
W1C = 0x1560000
FLG_W = ZEND - 0x4000
STAMP = 0x1700000
W2T = 0x1740000
WS_BYTES = 0x1BA0000

XHALF = 57344 + 32
SCR = 114816
SCR_ST = 8960
KC0 = 4608
ROW_ST = 544
UARR = SCR + 4 * SCR_ST
U_ST = 4576
LDS_BYTES = 163840
WREG = 28672
RED_G = 1152
RED_W = 8 * RED_G
RED_H = 4 * RED_W

sWG, sW = 2, 3
SRD_WS, SRD_OUT, SRD_W1, SRD_W2, SRD_X0, SRD_DBG = 4, 8, 12, 16, 20, 24
sCP, sGAM, sJ, sHH, sDS, sROT = 58, 59, 60, 61, 62, 63
sONES, sHIM = 64, 65
sT0, sT1, sT2, sT3, sT4, sT5 = 66, 67, 68, 69, 70, 71
sLDT, sDSK = 72, 73
sREP, sXQi, sW2B, sXT, sHL, sHS, sFG = 74, 75, 76, 77, 78, 79, 80
sSPIN = 81
sC0, sC1 = 82, 83
sPC = 84
sTM = 86
sWL = 88
sW2O = 89
sSCR, sSCH = 90, 95
sPERM0, sPERM1 = 91, 92
sNH, sCH = 93, 94
sXS = 100
sLDT2 = 99
sFP = 98
sKO = 28
sW2L, sPA = 96, 97

vTID, vL, vL16 = 0, 1, 2
vCX, vUW, vXW = 3, 4, 5
vKF = 6
vUF, vXR, vCO, vEXW, vEXR = 10, 11, 12, 13, 14
vFW, vFP, vONE, vSTAMP, vPA = 15, 16, 17, 18, 19
vXA0, vXA1, vST, vRES, vRW, vRR, vO, vAT, vF2P, vFL, vHL, vPL2 = range(20, 32)
vW2S, vW2R, vWF, vDUM = 20, 21, 23, 26
LIN = 20
WK = 32
W1R = 144
AX = 224

k = Asm()
SPIN_MAX = 1 << 16

ENC = opt("enc", -1)
def stamp(idx, cyc=False):
    if ENC >= 0 and not cyc and idx + 32 * LAY[0] in (0, ENC):
        k.wait(lg=0)
        k(f"s_memrealtime {S(sTM,2)}")
        k.wait(lg=0)
        k(f"s_mov_b32 {S(46 if idx + 32*LAY[0] == 0 else 47)}, {S(sTM)}")
    if not DIAG:
        return
    if opt("lite", 0) and idx + 32 * LAY[0] not in (0, 9, 14, 19, 46, 54):
        return
    k.wait(lg=0)
    k(f"{'s_memtime' if cyc != bool(opt('cyc', 0)) else 's_memrealtime'} {S(sTM,2)}")
    k.wait(lg=0)
    k(f"v_writelane_b32 {V(vSTAMP)}, {S(sTM)}, {idx + 32*LAY[0]}")

FINE = []
def fine(name):
    if not DIAG or opt("fine", 0) != FREG[0] or opt("finel", 1) != LAY[0]:
        return
    regs = list(range(28, 46, 2)) + [12, 14, 20, 22, 48, 50, 54, 56] + ([] if FREG[0] == 4 else [24, 26])
    r = regs[len(FINE)]
    FINE.append((name, r))
    k.raw(f"    s_memtime s[{r}:{r+1}]")
FREG = [0]

def srd(base, ptr, nbytes):
    k(f"s_mov_b32 {S(base)}, {S(ptr)}")
    k(f"s_and_b32 {S(base+1)}, {S(ptr+1)}, 0xffff")
    k(f"s_mov_b32 {S(base+2)}, {hex(nbytes)}")
    k(f"s_mov_b32 {S(base+3)}, 0x20000")

_lab = [0]
def newlab(p):
    _lab[0] += 1
    return f"L_{p}_{_lab[0]}"

def branch(op, lab):
    k.fence(1)
    k(f"{op} {lab}")

def label(lab):
    k.fence()
    k.label(lab)

def poll_load(vtmp, vaddr, soff, off=0, srdn=SRD_WS):
    k(f"buffer_load_dword {V(vtmp)}, {V(vaddr)}, {S(srdn,4)}, {soff} offen offset:{off} sc1")

PRECMP = [None]
def precmp(vtmp):
    if opt("pre", 1):
        k(f"v_cmp_eq_u32 vcc, 0, {V(vtmp)}")
        PRECMP[0] = vtmp
SLOW = []
SITES = []
def poll_check(vtmp, vaddr, soff, off=0, srdn=SRD_WS, pre=(), alt=None):
    sl, lp, ok = newlab("slow"), newlab("poll"), newlab("ok")
    if PRECMP[0] != vtmp:
        k(f"v_cmp_eq_u32 vcc, 0, {V(vtmp)}")
    PRECMP[0] = None
    k(f"s_cbranch_vccnz {sl}")
    k.label(ok)
    import inspect
    SITES.append(inspect.stack()[2 if inspect.stack()[1].function == "apoll_check" else 1].function + str(LAY[0]))
    slp = opt("sl_" + SITES[-1], opt("sleep", 0))
    if opt("pipe", 3) and vaddr == vFP:
        ld_ = lambda r: f"    buffer_load_dword {V(r)}, {V(vaddr)}, {S(srdn,4)}, {soff} offen offset:{off} sc1"
        SLOW.extend([f"{sl}:"] + ([f"    s_bitset1_b32 s101, {len(SITES)-1}"] if DIAG else []) +
                    [ld_(vtmp), f"    s_mov_b32 {S(sSPIN)}, 0", f"    s_sleep {opt('pipe', 3)}", f"{lp}:",
                     ld_(vTID), f"    s_add_u32 {S(sSPIN)}, {S(sSPIN)}, 1", "    s_waitcnt vmcnt(1)",
                     f"    v_cmp_eq_u32 vcc, 0, {V(vtmp)}", f"    s_cmp_gt_u32 {S(sSPIN)}, {SPIN_MAX}",
                     f"    s_cbranch_vccz {ok}",
                     ld_(vtmp), "    s_waitcnt vmcnt(1)",
                     f"    v_cmp_eq_u32 vcc, 0, {V(vTID)}",
                     f"    s_cbranch_scc1 {ok}",
                     f"    s_cbranch_vccnz {lp}",
                     f"    s_branch {ok}"])
        return
    SLOW.extend([f"{sl}:"] + ([f"    s_bitset1_b32 s101, {len(SITES)-1}"] if DIAG else []) +
                ([f"    s_mov_b32 {S(sSPIN)}, 0",
                  f"{lp}q:",
                  f"    buffer_load_dword {V(vtmp)}, {V(vaddr)}, {S(srdn,4)}, {soff} offen offset:{off} sc1",
                  f"    s_add_u32 {S(sSPIN)}, {S(sSPIN)}, 1",
                  "    s_waitcnt vmcnt(0)",
                  f"    v_cmp_eq_u32 vcc, 0, {V(vtmp)}",
                  f"    s_cmp_lt_u32 {S(sSPIN)}, 10",
                  f"    s_cbranch_vccz {ok}",
                  f"    s_cbranch_scc1 {lp}q"] if alt else []) +
                ["    " + p for p in pre] +
                [f"    s_mov_b32 {S(sSPIN)}, 0",
                 f"{lp}:"] +
                ([f"    s_sleep {slp}"] if slp else []) +
                [f"    buffer_load_dword {V(vtmp)}, {V(vaddr)}, {S(srdn,4)}, {soff} offen offset:{off} sc1",
                 f"    s_add_u32 {S(sSPIN)}, {S(sSPIN)}, 1"] +
                ([f"    buffer_load_dword {V(alt[0])}, {V(vaddr)}, {S(srdn,4)}, {alt[1]} offen offset:{off} sc1"] if alt else []) +
                ["    s_waitcnt vmcnt(0)"] +
                ([f"    v_or_b32 {V(vtmp)}, {V(vtmp)}, {V(alt[0])}"] if alt else []) +
                [
                 f"    v_cmp_eq_u32 vcc, 0, {V(vtmp)}",
                 f"    s_cmp_gt_u32 {S(sSPIN)}, {SPIN_MAX}",
                 f"    s_cbranch_scc1 {ok}",
                 f"    s_cbranch_vccnz {lp}",
                 f"    s_branch {ok}"])

def run(ops, n=None):
    c = 0
    while ops and (n is None or c < n):
        o = ops.pop(0)
        if callable(o):
            o()
        elif isinstance(o, tuple):
            k(o[0], tag=o[1])
        elif o is not None:
            k(o)
        c += 1

def stats_ops(P, n, vS, vQ, vT):
    o = [f"v_mov_b32 {V(vS)}, 0", f"v_mov_b32 {V(vQ)}, 0"]
    for i in range(n):
        o.append(f"v_dot2c_f32_bf16 {V(vS)}, {S(sONES)}, {V(P+i)}")
        o.append(f"v_dot2c_f32_bf16 {V(vQ)}, {V(P+i)}, {V(P+i)}")
    o += [f"v_permlane32_swap_b32 {V(vS)}, {V(vQ)}",
          f"v_add_f32 {V(vS)}, {V(vS)}, {V(vQ)}",
          f"v_mov_b32 {V(vT)}, {V(vS)}",
          f"v_permlane16_swap_b32 {V(vS)}, {V(vT)}",
          f"v_add_f32 {V(vS)}, {V(vS)}, {V(vT)}",
          f"v_add_f32_dpp {V(vS)}, {V(vS)}, {V(vS)} row_ror:8 row_mask:0xf bank_mask:0xf",
          f"v_lshrrev_b32 {V(vT)}, 1, {V(vS)}",
          f"v_add_u32 {V(vQ)}, {hex(8 << 23)}, {V(vS)}",
          f"v_add_u32 {V(vT)}, {hex(0x1FC00000 + (13 << 23))}, {V(vT)}",
          f"v_permlane32_swap_b32 {V(vT)}, {V(vQ)}",
          f"v_and_b32 {V(vQ)}, 0x7f800000, {V(vQ)}",
          f"v_mul_f32 {V(vQ)}, 0x3fc00000, {V(vQ)}",
          f"v_add_f32 {V(vS)}, {V(vS)}, {V(vQ)}",
          f"v_sub_f32 {V(vS)}, {V(vS)}, {V(vQ)}"]
    return o

def quad_shuffle(pairs):
    D = " row_mask:0xf bank_mask:0xf"
    o = ["s_mov_b32 vcc_lo, 0x0f0f0f0f", "s_mov_b32 vcc_hi, 0x0f0f0f0f"]
    for d, s in pairs:
        o.append(f"v_cndmask_b32_dpp {V(d)}, {V(s+2)}, {V(s)}, vcc row_ror:4" + D)
        o.append(f"v_cndmask_b32_dpp {V(d+2)}, {V(s+3)}, {V(s+1)}, vcc row_ror:4" + D)
    o.append("s_not_b64 vcc, vcc")
    for d, s in pairs:
        o.append(f"v_cndmask_b32_dpp {V(d+1)}, {V(s)}, {V(s+2)}, vcc row_ror:12" + D)
        o.append(f"v_cndmask_b32_dpp {V(d+3)}, {V(s+1)}, {V(s+3)}, vcc row_ror:12" + D)
    return o

X0R = WK
X0O = WK + 8
vP0A = WK + 16
vP0S = WK + 20
vGO = WK + 28

def p0x_addr():
    k.c("row re-layout unit of this wave: W = 4m+w, octet group a = W%7, rows (blk, j2) = W/7, both hh8")
    t = vP0A
    k(f"s_sub_u32 {S(sT0)}, {S(sWG)}, 32")
    k(f"s_lshl2_add_u32 {S(sT0)}, {S(sT0)}, {S(sW)}")
    k(f"s_mul_i32 {S(sT1)}, {S(sT0)}, 9363")
    k(f"s_lshr_b32 {S(sT1)}, {S(sT1)}, 16")
    k(f"s_mul_i32 {S(sT2)}, {S(sT1)}, 7")
    k(f"s_sub_u32 {S(sT0)}, {S(sT0)}, {S(sT2)}")
    k(f"s_lshr_b32 {S(sT2)}, {S(sT1)}, 2")
    k(f"s_lshl_b32 {S(sT2)}, {S(sT2)}, 6")
    k(f"s_and_b32 {S(sT3)}, {S(sT1)}, 3")
    k(f"s_lshl1_add_u32 {S(sT2)}, {S(sT3)}, {S(sT2)}")
    k(f"v_and_b32 {V(t+1)}, 0x30, {V(vL16)}")
    k(f"v_bfe_u32 {V(t)}, {V(vL)}, 2, 1")
    k(f"v_add3_u32 {V(t+3)}, {V(t+1)}, {V(t)}, {S(sT2)}")
    k(f"v_mul_u32_u24 {V(t+3)}, 896, {V(t+3)}")
    k(f"v_lshrrev_b32 {V(t+2)}, 3, {V(vL)}")
    k(f"v_lshl_add_u32 {V(t+3)}, {V(t+2)}, 4, {V(t+3)}")
    k(f"s_lshl_b32 {S(sT2)}, {S(sT0)}, 7")
    k(f"v_add_u32 {V(t+3)}, {S(sT2)}, {V(t+3)}")
    k(f"v_lshl_add_u32 {V(t)}, {V(t)}, 2, {V(t+1)}")
    k(f"v_lshrrev_b32 {V(t+2)}, 5, {V(vL)}")
    k(f"v_lshl_add_u32 {V(t)}, {V(t+2)}, 3, {V(t)}")
    k(f"v_and_b32 {V(t+2)}, 16, {V(vL)}")
    k(f"v_lshl_add_u32 {V(t)}, {V(t+2)}, 2, {V(t)}")
    k(f"s_lshl_b32 {S(sT2)}, {S(sT1)}, 7")
    k(f"v_add_u32 {V(t)}, {S(sT2)}, {V(t)}")
    k(f"v_lshrrev_b32 {V(t+2)}, 2, {V(vL)}")
    k(f"v_lshl_add_u32 {V(t+1)}, {V(t+2)}, 14, {V(t+1)}")
    k(f"s_lshl_b32 {S(sT0)}, {S(sT0)}, 18")
    k(f"s_lshl_b32 {S(sT1)}, {S(sT1)}, 7")
    k(f"s_add_u32 {S(sT0)}, {S(sT0)}, {S(sT1)}")
    k(f"v_add_u32 {V(t+1)}, {S(sT0)}, {V(t+1)}")

def p0x_loads():
    k(f"s_movk_i32 {S(sT0)}, {8*896}")
    k(f"buffer_load_dwordx4 {V(X0R,4)}, {V(vP0A+3)}, {S(SRD_X0,4)}, 0 offen")
    k(f"buffer_load_dwordx4 {V(X0R+4,4)}, {V(vP0A+3)}, {S(SRD_X0,4)}, {S(sT0)} offen")

def p0x_body():
    t = vP0A
    if opt("goearly", 2) == 1:
        k.wait(vm=len(k.vm) - 2)
        poll_load(vGO, vGO + 3, 0, 0, SRD_DBG)
    run(quad_shuffle([(X0O + 4 * a, X0R + 4 * a) for a in range(2)]))
    k(f"s_mov_b32 {S(sT0)}, {hex(XQ)}")
    for a in range(2):
        k(f"buffer_store_dwordx4 {V(X0O+4*a,4)}, {V(t+1)}, {S(SRD_WS,4)}, {S(sT0)} offen offset:{64*a} sc1")
    s0 = stats_ops(X0R, 4, vP0S, vP0S + 1, vP0S + 2)
    s1 = stats_ops(X0R + 4, 4, vP0S + 2, vP0S + 3, vP0S + 4)
    for _ in range(12):
        run(s0, 1)
        run(s1, 1)
    run(s0[1:])
    if opt("goearly", 2) == 2:
        poll_load(vGO, vGO + 3, 0, 0, SRD_DBG)

def p0x_atomics():
    poll_check(vGO, vGO + 3, 0, 0, SRD_DBG)
    k(f"s_mov_b32 {S(sT0)}, {hex(STATS[0])}")
    k("s_mov_b32 exec_lo, 0x00ff00ff")
    k("s_mov_b32 exec_hi, 0x00ff00ff")
    k(f"buffer_atomic_add_f32 {V(vP0S)}, {V(vP0A)}, {S(SRD_WS,4)}, {S(sT0)} offen sc1", tag="st")
    k("s_mov_b64 exec, -1")
    poll_load(vGO, vGO + 2, 0, 128, SRD_DBG)
    if opt("warmat", 2) == 3:
        warm_loads()

def flag_all(off):
    k(f"s_mov_b32 {S(sT0)}, {hex(off)}")
    k(f"s_mov_b64 exec, 3")
    k(f"buffer_store_dword {V(vONE)}, {V(vFW)}, {S(SRD_WS,4)}, {S(sT0)} offen sc1")
    k(f"s_mov_b64 exec, -1")

ND = [0]
def w2_dma():
    d = ND[0]
    ND[0] += 1
    if opt("abl", 0) & 2:
        return
    if opt("rot", 1):
        if d == 0:
            k(f"s_and_b32 {S(sROT)}, {S(sWG)}, 7")
            k(f"s_min_u32 {S(sROT)}, {S(sROT)}, 6")
            k(f"s_mul_i32 {S(sXS)}, {S(sW)}, {WREG}")
        elif d % 4 == 0:
            k(f"s_add_u32 {S(sROT)}, {S(sROT)}, 1")
            k(f"s_cmp_eq_u32 {S(sROT)}, 7")
            k(f"s_cselect_b32 {S(sROT)}, 0, {S(sROT)}")
        if d % 4 == 0:
            k(f"s_lshl_b32 {S(sT4)}, {S(sROT)}, 12")
            k(f"s_add_u32 m0, {S(sT4)}, {S(sXS)}")
            k(f"s_mul_i32 {S(sW2O)}, {S(sT4)}, 7")
            k(f"s_add_u32 {S(sW2O)}, {S(sW2O)}, {S(sW2B)}")
        else:
            k(f"s_add_u32 {S(sW2O)}, {S(sW2O)}, {7168 - 1024}")
        k(f"buffer_load_dwordx4 {V(vW2S)}, {S(SRD_W2,4)}, {S(sW2O)} offen offset:{1024*(d%4)} lds", tag=("w2", d))
        return
    if d == 0:
        k(f"s_mul_i32 {S(sT4)}, {S(sW)}, {WREG}")
        k(f"s_mov_b32 m0, {S(sT4)}")
    elif d % 4 == 0:
        k(f"s_add_u32 m0, m0, 4096")
    if d:
        k(f"s_add_u32 {S(sW2B)}, {S(sW2B)}, {7168 - 1024 + (4096 if d % 4 == 0 else 0)}")
    k(f"buffer_load_dwordx4 {V(vW2S)}, {S(SRD_W2,4)}, {S(sW2B)} offen offset:{1024*(d%4)} lds", tag=("w2", d))

NW2 = [0]
def w2_load():
    n = NW2[0]
    NW2[0] += 1
    if opt("abl", 0) & 4:
        return
    k(f"buffer_load_dwordx4 {A(112+4*n,4)}, {V(vL16)}, {S(SRD_WS,4)}, {S(sW2L)} offen offset:{1024*(n%4)} sc1")
    if n % 4 == 3:
        k(f"s_add_u32 {S(sW2L)}, {S(sW2L)}, 4096")

def w2_tr_ops(lo, hi):
    return [f"ds_read_b64_tr_b16 {A((s*2+dt)*4+2*u,2)}, {V(vW2R+dt)} offset:{(s%14)*2048+u*1024}"
            for s in range(lo, hi) for dt in range(2) for u in range(2)]

NW1 = [0]
def w1_load():
    ks = NW1[0]
    NW1[0] += 1
    if opt("abl", 0) & 1:
        return
    k(f"buffer_load_dwordx4 {V(W1R+4*ks,4)}, {V(vL16)}, {S(SRD_WS,4)}, {S(sWL)} offen offset:{1024*(ks%4)} sc1")
    if ks % 4 == 3:
        k(f"s_add_u32 {S(sWL)}, {S(sWL)}, 4096")

def prologue():
    k(f"s_getpc_b64 {S(sPC,2)}")
    k.label("L_pc")
    k(f"s_cmp_ge_u32 {S(sWG)}, 256")
    k("s_cbranch_scc1 L_end")
    k("s_load_dwordx16 s[28:43], s[0:1], 0")
    k("s_load_dwordx8 s[44:51], s[0:1], 64")
    k("s_load_dwordx4 s[52:55], s[0:1], 96")
    k("s_load_dwordx2 s[56:57], s[0:1], 112")
    k.c("wave 0 of helpers 8..31 pulls a third of the code into L2")
    k(f"s_sub_u32 {S(sT0)}, {S(sWG)}, 8")
    k(f"s_cmp_ge_u32 {S(sT0)}, 24")
    k("s_cbranch_scc1 L_nopf")
    k(f"v_cmp_gt_u32 vcc, 64, {V(vTID)}")
    k(f"s_lshr_b32 {S(sT0)}, {S(sT0)}, 3")
    k(f"s_lshl_b32 {S(sT0)}, {S(sT0)}, 7")
    k(f"v_mul_u32_u24 {V(vL16)}, 384, {V(vTID)}")
    k(f"v_add_u32 {V(vL16)}, {S(sT0)}, {V(vL16)}")
    k("s_cbranch_vccz L_nopf")
    for q in range(2):
        k(f"v_min_u32 {V(vL16)}, L_table_end-L_pc-4, {V(vL16)}")
        k(f"global_load_dword {V(vDUM)}, {V(vL16)}, {S(sPC,2)}")
        k.vm = []
        if q == 0:
            k(f"v_add_u32 {V(vL16)}, {64*384}, {V(vL16)}")
    k.label("L_nopf")
    k(f"v_lshrrev_b32 {V(vONE)}, 6, {V(vTID)}")
    k(f"v_and_b32 {V(vL)}, 63, {V(vTID)}")
    k(f"v_readfirstlane_b32 {S(sW)}, {V(vONE)}")
    k(f"v_lshlrev_b32 {V(vL16)}, 4, {V(vL)}")
    k(f"v_mov_b32 {V(vONE)}, 1")
    if DIAG:
        k(f"v_mov_b32 {V(vSTAMP)}, 0")
        k("s_mov_b32 s101, 0")
    k(f"s_mov_b32 {S(sONES)}, 0x3f803f80")
    k(f"s_mov_b32 {S(sHIM)}, 0xffff0000")
    k(f"s_sub_u32 {S(sT0)}, {S(sWG)}, 32")
    k(f"s_and_b32 {S(sT1)}, {S(sT0)}, 7")
    k(f"s_lshr_b32 {S(sT0)}, {S(sT0)}, 3")
    k(f"s_mul_i32 {S(sCP)}, {S(sT1)}, 28")
    k(f"s_add_u32 {S(sCP)}, {S(sCP)}, {S(sT0)}")
    k(f"s_cmp_ge_u32 {S(sT0)}, 14")
    k(f"s_cselect_b32 {S(sT2)}, 1, 0")
    k(f"s_cselect_b32 {S(sT3)}, 14, 0")
    k(f"s_lshl_b32 {S(sGAM)}, {S(sT1)}, 1")
    k(f"s_add_u32 {S(sGAM)}, {S(sGAM)}, {S(sT2)}")
    k(f"s_sub_u32 {S(sJ)}, {S(sT0)}, {S(sT3)}")
    k(f"s_and_b32 {S(sHH)}, {S(sJ)}, 1")
    k(f"s_lshr_b32 {S(sDS)}, {S(sJ)}, 1")
    k(f"s_and_b32 {S(sNH)}, {S(sW)}, 1")
    k(f"s_lshr_b32 {S(sCH)}, {S(sW)}, 1")
    k(f"s_lshl_b32 {S(sREP)}, {S(sT1)}, 12")
    k(f"s_lshl_b32 {S(sT0)}, {S(sW)}, 13")
    k(f"s_lshl4_add_u32 {S(sT0)}, {S(sWG)}, {S(sT0)}")
    k(f"v_lshl_add_u32 {V(vFW)}, {V(vL)}, 12, {S(sT0)}")
    p0x_addr()
    k(f"v_and_b32 {V(vGO+1)}, 12, {V(vL)}")
    k(f"v_and_b32 {V(vGO+2)}, 4, {V(vL)}")
    k(f"v_mov_b32 {V(vGO+3)}, 0")
    k(f"s_lshl_b32 {S(sT0)}, {S(sCP)}, 10")
    k(f"v_lshl_add_u32 {V(PRM+6)}, {V(vTID)}, 2, {S(sT0)}")
    k.wait(lg=0)
    srd(SRD_X0, 28, 2048 * 896)
    srd(SRD_WS, 56, WS_BYTES)
    srd(SRD_DBG, 54, 256)
    stamp(0)
    if DIAG:
        pass
    k(f"s_cmp_ge_u32 {S(sWG)}, 32")
    branch("s_cbranch_scc1", "L_main")
    z = HZ
    for i in range(4):
        k(f"v_mov_b32 {V(z+i)}, 0")
    k(f"s_lshl_b32 {S(sT5)}, {S(sWG)}, 7")
    k(f"s_add_u32 {S(sT5)}, {S(sT5)}, {hex(FLG_W)}")
    l1, l2 = newlab("h1"), newlab("h2")
    k(f"s_cmp_lt_u32 {S(sWG)}, 28")
    branch("s_cbranch_scc1", l1)
    k(f"s_sub_u32 {S(sT2)}, {S(sWG)}, 28")
    k(f"s_lshl2_add_u32 {S(sT0)}, {S(sT2)}, {S(sW)}")
    k(f"s_mul_i32 {S(sT0)}, {S(sT0)}, {(ZEND - 0x8000) // 16}")
    k(f"s_add_u32 {S(sT0)}, {S(sT0)}, 0x8000")
    k(f"s_add_u32 {S(sT1)}, {S(sT0)}, {(ZEND - 0x8000) // 16}")
    lz = newlab("z")
    label(lz)
    for i in range(2):
        k(f"buffer_store_dwordx4 {V(z,4)}, {V(vL16)}, {S(SRD_WS,4)}, {S(sT0)} offen offset:{1024*i} sc1")
    k(f"s_add_u32 {S(sT0)}, {S(sT0)}, 2048")
    k(f"s_cmp_lt_u32 {S(sT0)}, {S(sT1)}")
    k(f"s_cbranch_scc1 {lz}")
    k(f"s_lshl_b32 {S(sT0)}, {S(sT2)}, 2")
    k.wait(vm=0)
    k("s_barrier")
    k(f"s_cmp_lg_u32 {S(sW)}, 1")
    branch("s_cbranch_scc1", "L_end2")
    k("s_mov_b64 exec, 1")
    k(f"buffer_store_dword {V(vONE)}, {V(z)}, {S(SRD_DBG,4)}, {S(sT0)} offen offset:192 sc1")
    k("s_mov_b64 exec, -1")
    branch("s_branch", "L_end2")
    label(l1)
    k.forget()
    k(f"s_cmp_gt_u32 {S(sWG)}, 2")
    branch("s_cbranch_scc1", "L_helper")
    k(f"s_lshl2_add_u32 {S(sT0)}, {S(sWG)}, {S(sW)}")
    k(f"s_lshl_b32 {S(sT0)}, {S(sT0)}, 12")
    k(f"s_cmp_eq_u32 {S(sWG)}, 0")
    k(f"s_cselect_b32 {S(sT1)}, {hex(STATS[0] + 0x4000)}, 0")
    k(f"s_cselect_b32 {S(sT2)}, 0, 124")
    k(f"s_add_u32 {S(sT0)}, {S(sT0)}, {S(sT1)}")
    k(f"s_sub_u32 {S(sT0)}, {S(sT0)}, 0x4000")
    for i in range(4):
        k(f"buffer_store_dwordx4 {V(z,4)}, {V(vL16)}, {S(SRD_WS,4)}, {S(sT0)} offen offset:{1024*i} sc1")
    k(f"s_lshl2_add_u32 {S(sT0)}, {S(sWG)}, {S(sT2)}")
    stamp(4)
    k.wait(vm=0)
    k("s_barrier")
    stamp(5)
    k(f"s_cmp_lg_u32 {S(sW)}, 2")
    branch("s_cbranch_scc1", "L_helper")
    k("s_mov_b64 exec, 1")
    k(f"buffer_store_dword {V(vONE)}, {V(z)}, {S(SRD_DBG,4)}, {S(sT0)} offen sc1")
    k("s_mov_b64 exec, -1")
    branch("s_branch", "L_helper")
    label("L_main")
    k.forget()

def w2_lane_src(d, pitch, t0, t1):
    k(f"v_lshrrev_b32 {V(t0)}, 3, {V(vL)}")
    k(f"v_mul_u32_u24 {V(d)}, {pitch}, {V(t0)}")
    k(f"v_and_b32 {V(t0)}, 7, {V(vL)}")
    k(f"v_bfe_u32 {V(t1)}, {V(vL)}, 4, 1")
    k(f"v_lshlrev_b32 {V(t1)}, 2, {V(t1)}")
    k(f"v_xor_b32 {V(t0)}, {V(t0)}, {V(t1)}")
    k(f"v_lshl_add_u32 {V(d)}, {V(t0)}, 4, {V(d)}")

def h_prefetch():
    k.forget()
    a, f, d = WK, WK + 1, WK + 2
    poll_load(vGO, vGO + 1, 0, 192, SRD_DBG)
    k(f"s_and_b32 {S(sT0)}, {S(sWG)}, 7")
    k(f"s_lshr_b32 {S(sT1)}, {S(sWG)}, 4")
    k(f"s_lshl1_add_u32 {S(sGAM)}, {S(sT0)}, {S(sT1)}")
    k(f"s_bfe_u32 {S(sHH)}, {S(sWG)}, 0x10003")
    k(f"s_mul_i32 {S(sHL)}, {S(sGAM)}, {4*112*1024}")
    k(f"s_lshl2_add_u32 {S(sT3)}, {S(sHH)}, {S(sW)}")
    k(f"s_mul_i32 {S(sT3)}, {S(sT3)}, {28*1024}")
    k(f"s_add_u32 {S(sHL)}, {S(sHL)}, {S(sT3)}")
    k(f"s_lshl_b32 {S(sFG)}, {S(sGAM)}, {GL + 6}")
    k(f"s_add_u32 {S(sFG)}, {S(sFG)}, {hex(FLG_G + (PQ if FAST and opt('hpf', 0) == 2 else 0))}")
    k(f"v_min_u32 {V(f)}, 13, {V(vL)}")
    k(f"s_mul_i32 {S(sT2)}, {S(sW)}, 14")
    k(f"v_add_lshl_u32 {V(f)}, {V(f)}, {S(sT2)}, {GL}")
    k(f"v_min_u32 {V(a)}, 55, {V(vL)}")
    k(f"v_lshlrev_b32 {V(a)}, 7, {V(a)}")
    poll_check(vGO, vGO + 1, 0, 192, SRD_DBG)
    for ph in range(4):
        lp, go = newlab("hp"), newlab("hg")
        k(f"s_mov_b32 {S(sSPIN)}, 0")
        k(f"s_add_u32 {S(sT0)}, {S(sHL)}, {hex(HB + (ph >> 1)*H_SZ + (ph & 1)*2*112*1024)}")
        label(lp)
        k(f"s_sleep {opt('hsl', 1)}")
        poll_load(d, f, S(sFG), 4 * ph)
        k(f"s_add_u32 {S(sSPIN)}, {S(sSPIN)}, 1")
        k(f"v_cmp_eq_u32 vcc, 0, {V(d)}")
        k(f"s_cmp_gt_u32 {S(sSPIN)}, 150")
        k(f"s_cbranch_scc1 L_end3")
        k(f"s_cbranch_vccnz {lp}")
        for q in range(4):
            k(f"buffer_load_dword {V(d+1+q)}, {V(a)}, {S(SRD_WS,4)}, {S(sT0)} offen sc1")
            k(f"s_add_u32 {S(sT0)}, {S(sT0)}, 7168")
        k.vm = []
    label("L_end3")

HZ = WK + 64
def helper():
    label("L_helper")
    k.forget()
    srd(SRD_W1, 48, 448 * 3584)
    srd(SRD_W2, 50, 1792 * 896)
    z = HZ
    F = WK + 112
    G = WK + 168
    t, a1, a2, aE, aO = z + 8, z + 10, z + 11, z + 12, z + 13
    IMG2 = 57344
    w2_lane_src(a1, 3584, t, t + 1)
    w2_lane_src(a2, 896, t, t + 1)
    if opt("abl", 0) & 32:
        k("s_endpgm")
    if opt("hwait", 3):
        srd(SRD_OUT, 28 if opt("hwait", 3) < 3 else 40, 2048 * 896 if opt("hwait", 3) < 3 else 448 * 512)
        k(f"s_lshl_b32 {S(sT0)}, {S(sWG)}, {16 if opt('hwait', 3) < 3 else 13}")
        k(f"v_lshlrev_b32 {V(t)}, {(8, 8, 5)[opt('hwait', 3) - 1]}, {V(vTID)}")
        if opt("hwait", 3) == 2:
            k(f"v_and_b32 {V(t)}, 0xc000, {V(t)}")
        k(f"buffer_load_dword {V(t+1)}, {V(t)}, {S(SRD_OUT,4)}, {S(sT0)} offen")
        k.wait(vm=0)
    if opt("hdelay", 0):
        k(f"s_sleep {opt('hdelay', 0)}")
    k(f"s_mul_i32 {S(sT0)}, {S(sW)}, {112*3584}")
    k(f"s_lshl_b32 {S(sT1)}, {S(sWG)}, 7")
    k(f"s_add_u32 {S(sT0)}, {S(sT0)}, {S(sT1)}")
    k(f"s_mul_i32 {S(sT3)}, {S(sW)}, 14336")
    k(f"s_mov_b32 m0, {S(sT3)}")
    for c in range(14):
        k(f"buffer_load_dwordx4 {V(a1)}, {S(SRD_W1,4)}, {S(sT0)} offen lds", tag="w1")
        k(f"s_add_u32 m0, m0, 1024")
        k(f"s_add_u32 {S(sT0)}, {S(sT0)}, {8*3584}")
    k(f"v_bfe_u32 {V(t+1)}, {V(vL)}, 2, 2")
    k(f"v_lshlrev_b32 {V(t)}, 7, {V(t+1)}")
    k(f"v_bfe_u32 {V(t+1)}, {V(vL)}, 3, 1")
    k(f"v_lshl_add_u32 {V(t)}, {V(t+1)}, 6, {V(t)}")
    k(f"v_bfe_u32 {V(t+1)}, {V(vL)}, 4, 1")
    k(f"v_lshl_add_u32 {V(t)}, {V(t+1)}, 5, {V(t)}")
    k(f"v_and_b32 {V(t+1)}, 3, {V(vL)}")
    k(f"v_lshl_add_u32 {V(t)}, {V(t+1)}, 3, {V(t)}")
    k(f"v_lshrrev_b32 {V(t+1)}, 5, {V(vL)}")
    k(f"v_lshl_add_u32 {V(a1)}, {V(t+1)}, 10, {V(t)}")
    k(f"v_lshl_add_u32 {V(aE)}, {V(t+1)}, 9, {V(t)}")
    k(f"s_lshl_b32 {S(sT0)}, {S(sCH)}, 6")
    k(f"v_xor_b32 {V(a1)}, {S(sT0)}, {V(a1)}")
    k(f"s_mul_i32 {S(sT0)}, {S(sNH)}, 28672")
    k(f"v_add_u32 {V(a1)}, {S(sT0)}, {V(a1)}")
    k(f"s_lshl_b32 {S(sT0)}, {S(sNH)}, 6")
    k(f"v_xor_b32 {V(aE)}, {S(sT0)}, {V(aE)}")
    k(f"v_xor_b32 {V(aO)}, 64, {V(aE)}")
    k(f"s_mul_i32 {S(sT1)}, {S(sW)}, 7")
    k(f"s_lshr_b32 {S(sT0)}, {S(sT1)}, 1")
    k(f"s_lshl_b32 {S(sT0)}, {S(sT0)}, 11")
    k(f"s_add_u32 {S(sT0)}, {S(sT0)}, {IMG2}")
    k(f"v_add_u32 {V(aE)}, {S(sT0)}, {V(aE)}")
    k(f"s_add_u32 {S(sT0)}, {S(sT1)}, 1")
    k(f"s_lshr_b32 {S(sT0)}, {S(sT0)}, 1")
    k(f"s_lshl_b32 {S(sT0)}, {S(sT0)}, 11")
    k(f"s_add_u32 {S(sT0)}, {S(sT0)}, {IMG2}")
    k(f"v_add_u32 {V(aO)}, {S(sT0)}, {V(aO)}")
    k.wait(vm=0)
    k("s_barrier")
    stamp(3)
    for ks in range(14):
        for u in range(2):
            k(f"ds_read_b64_tr_b16 {V(F+4*ks+2*u,2)}, {V(a1)} offset:{ks*2048+u*512}")
    k(f"s_and_b32 {S(sHL)}, {S(sWG)}, 3")
    k(f"s_lshl3_add_u32 {S(sHL)}, {S(sHL)}, {S(sW)}")
    k(f"s_add_u32 {S(sHL)}, {S(sHL)}, 4")
    k(f"s_mul_i32 {S(sHL)}, {S(sHL)}, {56*896}")
    k(f"s_lshr_b32 {S(sHS)}, {S(sWG)}, 2")
    k(f"s_lshl_b32 {S(sHS)}, {S(sHS)}, 7")
    k(f"s_add_u32 {S(sHL)}, {S(sHL)}, {S(sHS)}")
    k(f"s_mul_i32 {S(sT3)}, {S(sW)}, 7168")
    k(f"s_add_u32 m0, {S(sT3)}, {IMG2}")
    for _ in range(7):
        k(f"buffer_load_dwordx4 {V(a2)}, {S(SRD_W2,4)}, {S(sHL)} offen lds", tag="w2")
        k(f"s_add_u32 m0, m0, 1024")
        k(f"s_add_u32 {S(sHL)}, {S(sHL)}, {8*896}")
    c, u_ = z, z + 2
    for i in range(56):
        k(f"v_dot2c_f32_bf16 {V(c)}, {S(sONES)}, {V(F+i)}")
    k(f"v_mov_b32 {V(u_)}, {V(c)}")
    k(f"v_permlane32_swap_b32 {V(c)}, {V(u_)}")
    k(f"v_add_f32 {V(c)}, {V(c)}, {V(u_)}")
    k(f"v_lshlrev_b32 {V(t)}, 2, {V(vTID)}")
    k(f"v_add_u32 {V(t)}, 0x18000, {V(t)}")
    k(f"ds_write_b32 {V(t)}, {V(c)}")
    k(f"v_xor_b32 {V(t)}, 256, {V(t)}")
    k.wait(lg=0)
    k("s_barrier")
    k(f"ds_read_b32 {V(u_)}, {V(t)}")
    k(f"s_lshl2_add_u32 {S(sT1)}, {S(sWG)}, {S(sW)}")
    k(f"s_mul_i32 {S(sT0)}, {S(sT1)}, 14336")
    k(f"s_add_u32 {S(sT0)}, {S(sT0)}, {hex(W1C)}")
    k(f"s_mul_i32 {S(sT1)}, {S(sT1)}, 7168")
    k(f"s_add_u32 {S(sT1)}, {S(sT1)}, {hex(W2T)}")
    k(f"v_add_f32 {V(c)}, {V(c)}, {V(u_)}")
    k(f"v_mul_f32 {V(c)}, {f2u(-1.0/448)}, {V(c)}")
    stamp(2)
    for i in range(56):
        tt = z + 4 + 2 * (i & 1)
        k(f"v_lshlrev_b32 {V(tt)}, 16, {V(F+i)}")
        k(f"v_and_b32 {V(tt+1)}, {S(sHIM)}, {V(F+i)}")
        pk("add", V(tt, 2), V(tt, 2), V(c, 2), bc=(1,))
        k(f"v_cvt_pk_bf16_f32 {V(F+i)}, {V(tt)}, {V(tt+1)}")
        if i % 4 == 3:
            ks = i // 4
            k(f"buffer_store_dwordx4 {V(F+4*ks,4)}, {V(vL16)}, {S(SRD_WS,4)}, {S(sT0)} offen offset:{1024*(ks%4)} sc1", tag="c")
            if ks % 4 == 3:
                k(f"s_add_u32 {S(sT0)}, {S(sT0)}, 4096")
    poll_load(vGO, vGO + 1, 0, 192, SRD_DBG)
    k.vm[-1] = (k.vm[-1][0], "c")
    k(f"v_mov_b32 {V(z)}, 0")
    def fl(off):
        k("s_mov_b64 exec, 1")
        k(f"buffer_store_dword {V(vONE)}, {V(z)}, {S(SRD_WS,4)}, {S(sT5)} offen offset:{off} sc1")
        k("s_mov_b64 exec, -1")
    k.wait_tag_vm("c")
    poll_check(vGO, vGO + 1, 0, 192, SRD_DBG)
    k("s_barrier")
    wave0(lambda: fl(0))
    stamp(1)
    for i in range(7):
        for u in range(2):
            k(f"ds_read_b64_tr_b16 {V(G+4*i+2*u,2)}, {V(aO if i & 1 else aE)} offset:{(i//2)*2048+u*1024}")
    for i in range(7):
        k(f"buffer_store_dwordx4 {V(G+4*i,4)}, {V(vL16)}, {S(SRD_WS,4)}, {S(sT1)} offen offset:{1024*(i%4)} sc1")
        if i == 3:
            k(f"s_add_u32 {S(sT1)}, {S(sT1)}, 4096")
    k.wait(vm=0)
    k("s_barrier")
    wave0(lambda: fl(64))
    stamp(25)
    label("L_end2")
    if opt("hpf", 0):
        h_prefetch()
    if DIAG:
        k(f"s_lshl_b32 {S(sT0)}, {S(sWG)}, 10")
        k(f"s_add_u32 {S(sT0)}, {S(sT0)}, {hex(STAMP)}")
        k(f"v_lshlrev_b32 {V(WK)}, 2, {V(vTID)}")
        k(f"buffer_store_dword {V(vSTAMP)}, {V(WK)}, {S(SRD_WS,4)}, {S(sT0)} offen")
    k("s_endpgm")

KW = W1R
PRM = KW
TBL = KW + 8
GA = KW + 20
TA = GA + 17
vKW, vKR, vKC, vDSK = KW + 42, KW + 43, KW + 44, KW + 45

def table_words():
    def bf16v(m):
        u = struct.unpack("<I", struct.pack("<f", float(m)))[0]
        u = ((u + 0x7FFF + ((u >> 16) & 1)) >> 16) << 16
        return int(struct.unpack("<f", struct.pack("<I", u))[0])
    rowv = list(range(8)) + [256, 258, 260, 262, 512, 516, 768, 772, 1024, 1280, 1536, 1792, 2048]
    def idx(m):
        if m < 0:
            return (KC0 + 4096 + 64) // 8
        l = bf16v(m)
        r = [r for r, a in enumerate(rowv) if l >= a and (l - a) % 8 == 0 and l - a < 256][-1]
        return (r % 16) * 33 + (l - rowv[r]) // 8 + (SCR_ST // 8 if r >= 16 else 0)
    rows = []
    for lam in range(128):
        e = [idx(2047 - 16 * lam - i) for i in range(17)] + [0] * 7
        rows.append([e[2 * i] | (e[2 * i + 1] << 16) for i in range(12)])
    out = []
    for qd in range(3):
        for lam in range(128):
            out.append(rows[lam][4 * qd:4 * qd + 4])
    return out

def addr_conv():
    t0, t1, t2, t3 = KW + 100, KW + 101, KW + 102, KW + 103
    r16, g4, cc = KW + 104, KW + 105, KW + 106
    o = []
    e = o.append
    e(f"v_and_b32 {V(r16)}, 15, {V(vL)}")
    e(f"v_lshrrev_b32 {V(g4)}, 4, {V(vL)}")
    e(f"v_and_b32 {V(cc)}, 3, {V(vL)}")
    e(f"s_mul_i32 {S(sSCR)}, {S(sW)}, {SCR_ST}")
    e(f"s_add_u32 {S(sSCR)}, {S(sSCR)}, {SCR}")
    e(f"s_mul_i32 {S(sSCH)}, {S(sCH)}, {2*SCR_ST}")
    e(f"s_add_u32 {S(sSCH)}, {S(sSCH)}, {SCR}")
    e(f"v_lshl_add_u32 {V(vKW)}, {V(vL)}, 3, {S(sSCR)}")
    e(f"v_mul_u32_u24 {V(vKR)}, {ROW_ST}, {V(r16)}")
    e(f"v_lshl_add_u32 {V(vKR)}, {V(g4)}, 4, {V(vKR)}")
    e(f"v_add_u32 {V(vKR)}, {S(sSCR)}, {V(vKR)}")
    e(f"v_mul_u32_u24 {V(t0)}, 132, {V(g4)}")
    e(f"v_add_u32 {V(t0)}, {V(t0)}, {V(r16)}")
    e(f"s_lshl2_add_u32 {S(sT2)}, {S(sNH)}, {S(sSCH)}")
    e(f"v_lshl_add_u32 {V(TA)}, {V(t0)}, 3, {S(sT2)}")
    e(f"v_add_u32 {V(TA+1)}, {SCR_ST}, {V(TA)}")
    e(f"v_and_b32 {V(t0)}, 127, {V(vTID)}")
    e(f"s_add_u32 {S(sT2)}, {S(sSCH)}, {KC0}")
    e(f"v_lshl_add_u32 {V(vKC)}, {V(t0)}, 5, {S(sT2)}")
    e(f"v_lshrrev_b32 {V(t0)}, 5, {V(vL)}")
    e(f"v_bfe_u32 {V(t1)}, {V(vL)}, 2, 2")
    e(f"v_lshlrev_b32 {V(t3)}, 9, {V(t0)}")
    e(f"v_lshl_add_u32 {V(t3)}, {V(t1)}, 7, {V(t3)}")
    e(f"v_bfe_u32 {V(t1)}, {V(vL)}, 3, 1")
    e(f"v_lshl_add_u32 {V(t3)}, {V(t1)}, 6, {V(t3)}")
    e(f"v_bfe_u32 {V(t1)}, {V(vL)}, 4, 1")
    e(f"v_lshl_add_u32 {V(t3)}, {V(t1)}, 5, {V(t3)}")
    e(f"v_lshl_add_u32 {V(t3)}, {V(cc)}, 3, {V(t3)}")
    e(f"s_mul_i32 {S(sT2)}, {S(sW)}, {WREG}")
    e(f"v_add_u32 {V(vW2R)}, {S(sT2)}, {V(t3)}")
    e(f"v_xor_b32 {V(vW2R+1)}, 64, {V(vW2R)}")
    e(f"v_lshrrev_b32 {V(t0)}, 3, {V(vTID)}")
    e(f"v_and_b32 {V(t1)}, 0x70, {V(vL16)}")
    e(f"v_lshl_add_u32 {V(vCX)}, {V(t0)}, 8, {V(t1)}")
    e(f"v_lshrrev_b32 {V(t0)}, 4, {V(vTID)}")
    e(f"v_and_b32 {V(t2)}, 8, {V(vL)}")
    e(f"v_lshl_add_u32 {V(t2)}, {V(t0)}, 7, {V(t2)}")
    e(f"v_lshl_add_u32 {V(t2)}, {V(cc)}, 5, {V(t2)}")
    e(f"v_bfe_u32 {V(t1)}, {V(vL)}, 2, 1")
    e(f"v_lshl_add_u32 {V(t2)}, {V(t1)}, 4, {V(t2)}")
    e(f"v_add_u32 {V(vUW)}, {UARR+480}, {V(t2)}")
    e(f"s_mul_i32 {S(sT2)}, {S(sCH)}, {SCR_ST-1024}")
    e(f"s_add_u32 {S(sT2)}, {S(sT2)}, {SCR}")
    e(f"v_add_u32 {V(vXW)}, {S(sT2)}, {V(t2)}")
    e(f"v_and_b32 {V(t0)}, 1, {V(vL)}")
    e(f"v_xor_b32 {V(t0)}, 1, {V(t0)}")
    e(f"v_mul_u32_u24 {V(t1)}, {SCR_ST+64-2}, {V(t0)}")
    e(f"v_lshlrev_b32 {V(t2)}, 1, {V(r16)}")
    e(f"v_sub_u32 {V(t1)}, {V(t1)}, {V(t2)}")
    e(f"v_lshl_add_u32 {V(t1)}, {V(g4)}, 4, {V(t1)}")
    e(f"s_lshl_b32 {S(sT3)}, {S(sNH)}, 8")
    e(f"s_sub_u32 {S(sT2)}, {S(sSCH)}, {S(sT3)}")
    e(f"s_add_u32 {S(sT2)}, {S(sT2)}, {KC0 + 2*2031 - 512 - 192}")
    e(f"v_add_u32 {V(vKF)}, {S(sT2)}, {V(t1)}")
    for a in range(1, 4):
        e(f"v_subrev_u32 {V(vKF+a)}, {1024*a}, {V(vKF)}")
    e(f"v_lshlrev_b32 {V(t1)}, 5, {V(r16)}")
    e(f"v_lshl_add_u32 {V(t1)}, {V(g4)}, 4, {V(t1)}")
    e(f"s_mul_i32 {S(sT2)}, {S(sCH)}, {U_ST}")
    e(f"s_sub_u32 {S(sT2)}, {S(sT2)}, {S(sT3)}")
    e(f"s_add_u32 {S(sT2)}, {S(sT2)}, {UARR + 480 - 32 - 192}")
    e(f"v_add_u32 {V(vUF)}, {S(sT2)}, {V(t1)}")
    e(f"v_mov_b32 {V(vXR)}, {V(vKW)}")
    e(f"v_add_u32 {V(vEXW)}, {S(sSCR)}, {V(vL16)}")
    e(f"s_xor_b32 {S(sT2)}, {S(sW)}, 1")
    e(f"s_mul_i32 {S(sT2)}, {S(sT2)}, {SCR_ST}")
    e(f"s_add_u32 {S(sT2)}, {S(sT2)}, {SCR}")
    e(f"v_add_u32 {V(vEXR)}, {S(sT2)}, {V(vL16)}")
    e(f"v_lshrrev_b32 {V(t0)}, 3, {V(vL)}")
    e(f"v_mul_u32_u24 {V(vCO)}, 114688, {V(t0)}")
    e(f"v_and_b32 {V(t0)}, 7, {V(vL)}")
    e(f"s_and_b32 {S(sT2)}, {S(sCP)}, 1")
    e(f"s_lshl_b32 {S(sT3)}, {S(sT2)}, 2")
    e(f"v_xor_b32 {V(t0)}, {S(sT3)}, {V(t0)}")
    e(f"v_lshl_add_u32 {V(vCO)}, {V(t0)}, 4, {V(vCO)}")
    e(f"s_lshl_b32 {S(sT2)}, {S(sT2)}, 3")
    e(f"s_lshr_b32 {S(sXQi)}, {S(sCP)}, 1")
    e(f"s_lshl_b32 {S(sXQi)}, {S(sXQi)}, 14")
    e(f"s_add_u32 {S(sXQi)}, {S(sXQi)}, {S(sT2)}")
    e(f"s_add_u32 {S(sXQi)}, {S(sXQi)}, {hex(XQ)}")
    e(f"s_lshl_b32 {S(sT2)}, {S(sCP)}, 1")
    e(f"s_add_u32 {S(sT2)}, {S(sT2)}, {S(sCH)}")
    e(f"s_lshl_b32 {S(sT2)}, {S(sT2)}, 7")
    e(f"s_mul_i32 {S(sT3)}, {S(sNH)}, {8*114688}")
    e(f"s_add_u32 {S(sT2)}, {S(sT2)}, {S(sT3)}")
    e(f"v_add_u32 {V(vCO)}, {S(sT2)}, {V(vCO)}")
    e(f"v_lshlrev_b32 {V(vFP)}, 4, {V(vTID)}")
    e(f"v_max_u32 {V(vFP)}, 512, {V(vFP)}")
    e(f"s_mov_b32 {S(sPERM0)}, 0x05040100")
    e(f"s_mov_b32 {S(sPERM1)}, 0x07060302")
    e(f"s_lshl_b32 {S(sT2)}, {S(sJ)}, 2")
    e(f"s_add_u32 {S(sT2)}, {S(sT2)}, {S(sW)}")
    e(f"s_mul_i32 {S(sWL)}, {S(sT2)}, 28672")
    e(f"s_add_u32 {S(sWL)}, {S(sWL)}, {hex(W1C)}")
    e(f"s_lshr_b32 {S(sT2)}, {S(sT2)}, 1")
    e(f"s_lshl_b32 {S(sT2)}, {S(sT2)}, 7")
    e(f"s_add_u32 {S(sT2)}, {S(sT2)}, {hex(FLG_W)}")
    e(f"v_mov_b32 {V(vWF+1)}, {S(sT2)}")
    e(f"s_lshl2_add_u32 {S(sT2)}, {S(sDS)}, {S(sW)}")
    e(f"s_mul_i32 {S(sW2L)}, {S(sT2)}, 28672")
    e(f"s_add_u32 {S(sW2L)}, {S(sW2L)}, {hex(W2T)}")
    e(f"s_lshl_b32 {S(sT2)}, {S(sT2)}, 7")
    e(f"s_add_u32 {S(sT2)}, {S(sT2)}, {hex(FLG_W+64)}")
    e(f"v_mov_b32 {V(vWF+2)}, {S(sT2)}")
    e(f"s_mov_b32 {S(sLDT2)}, {S(sT2)}")
    e(f"s_mul_i32 {S(sXT)}, {S(sGAM)}, 114688")
    e(f"s_add_u32 {S(sXT)}, {S(sXT)}, {hex(X1T)}")
    z = KW + 108
    for i in range(4):
        e(f"v_mov_b32 {V(z+i)}, 0")
    e(f"v_min_u32 {V(t0)}, 29, {V(vL)}")
    e(f"v_lshlrev_b32 {V(t0)}, 4, {V(t0)}")
    e(f"v_add_u32 {V(t0)}, {UARR}, {V(t0)}")
    e(f"ds_write_b128 {V(t0)}, {V(z,4)}")
    e(f"ds_write_b128 {V(t0)}, {V(z,4)} offset:{U_ST}")
    e(f"v_and_b32 {V(t0)}, 0x70, {V(vL16)}")
    e(f"v_add_u32 {V(t0)}, {S(sSCR)}, {V(t0)}")
    e(f"ds_write_b128 {V(t0)}, {V(z,4)} offset:{KC0+4096}")
    return o

ROWST = opt("rowst", 1)
redg = lambda layer: 1088 if layer and ROWST else RED_G
def addr_ffn(layer):
    t0, t1, t2, t3 = WK + 84, WK + 85, WK + 86, WK + 87
    g4, rho, cc = WK + 88, WK + 89, WK + 90
    o = []
    e = o.append
    e(f"v_lshrrev_b32 {V(g4)}, 4, {V(vL)}")
    e(f"v_bfe_u32 {V(rho)}, {V(vL)}, 2, 2")
    e(f"v_and_b32 {V(cc)}, 3, {V(vL)}")
    e(f"v_lshrrev_b32 {V(t0)}, 5, {V(vL)}")
    e(f"v_bfe_u32 {V(t1)}, {V(vL)}, 4, 1")
    e(f"v_bfe_u32 {V(t2)}, {V(vL)}, 3, 1")
    e(f"v_lshlrev_b32 {V(t3)}, 7, {V(rho)}")
    e(f"v_lshl_add_u32 {V(t3)}, {V(t2)}, 6, {V(t3)}")
    e(f"v_lshl_add_u32 {V(vXA0)}, {V(t0)}, 10, {V(t3)}")
    e(f"v_lshl_add_u32 {V(vXA0)}, {V(cc)}, 4, {V(vXA0)}")
    e(f"v_lshl_add_u32 {V(vXA0)}, {V(t1)}, 3, {V(vXA0)}")
    e(f"v_xor_b32 {V(vXA1)}, 64, {V(vXA0)}")
    e(f"s_lshl_b32 {S(sT2)}, {S(sHH)}, 6")
    e(f"v_xor_b32 {V(t3)}, {S(sT2)}, {V(t3)}")
    e(f"s_lshl_b32 {S(sT2)}, {S(sNH)}, 5")
    e(f"s_lshl3_add_u32 {S(sT2)}, {S(sCH)}, {S(sT2)}")
    e(f"v_and_b32 {V(t0)}, 16, {V(vL16)}")
    e(f"v_add3_u32 {V(t3)}, {V(t3)}, {V(t0)}, {S(sT2)}")
    e(f"v_bfe_u32 {V(t0)}, {V(vL)}, 1, 1")
    e(f"v_mul_u32_u24 {V(vST)}, {XHALF}, {V(t0)}")
    e(f"v_lshl_add_u32 {V(vST)}, {V(g4)}, 10, {V(vST)}")
    e(f"v_add_u32 {V(vST)}, {V(vST)}, {V(t3)}")
    e(f"v_lshl_add_u32 {V(t0)}, {V(g4)}, 1, {V(t0)}")
    e(f"v_lshl_add_u32 {V(vRES)}, {V(t0)}, 10, {V(t3)}")
    e(f"s_lshl_b32 {S(sT2)}, {S(sDS)}, 13")
    e(f"v_add_u32 {V(vRES)}, {S(sT2)}, {V(vRES)}")
    e(f"s_mul_i32 {S(sT2)}, {S(sW)}, {RED_W}")
    e(f"v_add_u32 {V(vRW)}, {S(sT2)}, {V(vL16)}")
    if layer and ROWST:
        e(f"v_and_b32 {V(t0)}, 7, {V(vL)}")
        e(f"v_lshrrev_b32 {V(t2)}, 3, {V(vL)}")
        e(f"v_lshlrev_b32 {V(t1)}, 4, {V(t2)}")
        e(f"v_lshl_add_u32 {V(vAT)}, {V(t0)}, 3, {V(t2)}")
        e(f"v_lshlrev_b32 {V(vAT)}, 2, {V(vAT)}")
    else:
        e(f"v_lshrrev_b32 {V(t0)}, 3, {V(vL)}")
        e(f"v_and_b32 {V(t1)}, 0x70, {V(vL16)}")
    e(f"v_mul_u32_u24 {V(vRR)}, {redg(layer)}, {V(t0)}")
    e(f"s_lshl_b32 {S(sT2)}, {S(sW)}, 7")
    e(f"v_add3_u32 {V(vRR)}, {V(vRR)}, {V(t1)}, {S(sT2)}")
    e(f"s_and_b32 {S(sT2)}, {S(sGAM)}, 8")
    e(f"s_bfe_u32 {S(sT3)}, {S(sGAM)}, 0x20001")
    e(f"s_add_u32 {S(sT2)}, {S(sT2)}, {S(sT3)}")
    e(f"s_lshl2_add_u32 {S(sT2)}, {S(sCH)}, {S(sT2)}")
    e(f"s_lshl1_add_u32 {S(sT3)}, {S(sHH)}, {S(sNH)}")
    e(f"s_and_b32 {S(sT4)}, {S(sGAM)}, 1")
    if layer and ROWST:
        e(f"v_and_b32 {V(t2)}, 0x30, {V(t1)}")
        e(f"v_lshrrev_b32 {V(t3)}, 5, {V(vL)}")
    else:
        e(f"v_lshlrev_b32 {V(t2)}, 4, {V(cc)}")
        e(f"v_bfe_u32 {V(t3)}, {V(vL)}, 2, 1")
    if layer == 0:
        e(f"s_lshl2_add_u32 {S(sT2)}, {S(sT2)}, {S(sT3)}")
        e(f"s_lshl1_add_u32 {S(sT2)}, {S(sT2)}, {S(sT4)}")
        e(f"s_lshl_b32 {S(sT2)}, {S(sT2)}, 6")
        e(f"v_lshl_add_u32 {V(vAT)}, {V(t3)}, 2, {V(t2)}")
        e(f"v_lshrrev_b32 {V(t3)}, 5, {V(vL)}")
        e(f"v_lshl_add_u32 {V(vAT)}, {V(t3)}, 3, {V(vAT)}")
        e(f"v_add_u32 {V(vAT)}, {S(sT2)}, {V(vAT)}")
        e(f"v_lshrrev_b32 {V(t3)}, 2, {V(vL)}")
        e(f"v_lshl_add_u32 {V(vO)}, {V(t3)}, 14, {V(t2)}")
        e(f"s_lshl_b32 {S(sT5)}, {S(sDS)}, 18")
        e(f"s_add_u32 {S(sT2)}, {S(sT2)}, {S(sT5)}")
        e(f"v_add_u32 {V(vO)}, {S(sT2)}, {V(vO)}")
    else:
        e(f"s_lshl3_add_u32 {S(sT2)}, {S(sT2)}, {S(sT4)}")
        e(f"s_lshl2_add_u32 {S(sT2)}, {S(sT2)}, {S(sT3)}")
        e(f"s_lshl_b32 {S(sT2)}, {S(sT2)}, 1")
        e(f"v_add3_u32 {V(t2)}, {V(t2)}, {V(t3)}, {S(sT2)}")
        e(f"v_mul_u32_u24 {V(vO)}, 896, {V(t2)}")
        e(f"v_lshl_add_u32 {V(vO)}, {V(t0)}, 4, {V(vO)}")
        e(f"s_lshl_b32 {S(sT2)}, {S(sDS)}, 7")
        e(f"v_add_u32 {V(vO)}, {S(sT2)}, {V(vO)}")
    e(f"v_min_u32 {V(t0)}, 13, {V(vL)}")
    e(f"s_mul_i32 {S(sT2)}, {S(sW)}, 14")
    e(f"v_add_lshl_u32 {V(vF2P)}, {V(t0)}, {S(sT2)}, {GL or 4}")
    e(f"s_lshl2_add_u32 {S(sT3)}, {S(sJ)}, {S(sW)}")
    e(f"s_lshl_b32 {S(sT2)}, {S(sT3)}, {GL or 4}")
    e(f"v_mov_b32 {V(vFL)}, {S(sT2)}")
    e(f"s_mul_i32 {S(sT2)}, {S(sGAM)}, {4*112*1024}")
    e(f"s_add_u32 {S(sT2)}, {S(sT2)}, {hex(HB + layer*H_SZ)}")
    e(f"s_lshl_b32 {S(sT3)}, {S(sT3)}, 11")
    e(f"s_add_u32 {S(sHS)}, {S(sT2)}, {S(sT3)}")
    e(f"s_lshl2_add_u32 {S(sT3)}, {S(sHH)}, {S(sW)}")
    e(f"s_mul_i32 {S(sT3)}, {S(sT3)}, {28*1024}")
    e(f"s_add_u32 {S(sHL)}, {S(sT2)}, {S(sT3)}")
    e(f"s_lshl_b32 {S(sFG)}, {S(sGAM)}, {GL + 6 if GL else 11}")
    e(f"s_add_u32 {S(sFG)}, {S(sFG)}, {hex(FLG_G + layer*(8 if GL else 0x8000))}")
    e(f"s_add_u32 {S(sFP)}, {S(sFG)}, {PQ if FAST else 0}")
    if FAST and layer == 0:
        e(lambda: poll_load(vPL2, vF2P, S(sFP)))
    if layer:
        e(f"s_mov_b32 {S(SRD_OUT)}, s52")
        e(f"s_and_b32 {S(SRD_OUT+1)}, s53, 0xffff")
        e(f"s_mov_b32 {S(SRD_OUT+2)}, {hex(2048*896)}")
        e(f"s_mov_b32 {S(SRD_OUT+3)}, 0x20000")
    return o

def pk(op, d, a, b, c=None, bc=(), neg=(), emit=True):
    ops = [a, b] + ([c] if c is not None else [])
    n = len(ops)
    txt = f"v_pk_{op}_f32 {d}, " + ", ".join(ops)
    if bc:
        txt += " op_sel_hi:[" + ",".join("0" if i in bc else "1" for i in range(n)) + "]"
    if neg:
        m = "[" + ",".join("1" if i in neg else "0" for i in range(n)) + "]"
        txt += f" neg_lo:{m} neg_hi:{m}"
    if emit:
        k(txt)
    return txt

def cmul(d, a, b, t):
    assert d != a
    pk("mul", V(t, 2), V(a, 2), V(b, 2))
    pk("mul", V(t + 2, 2), V(a, 2), V(b + 2, 2))
    pk("fma", V(d, 2), V(a + 2, 2), V(b + 2, 2), V(t, 2), neg=(0,))
    pk("fma", V(d + 2, 2), V(a + 2, 2), V(b, 2), V(t + 2, 2))

NINIT = opt("ninit", 4)
NPG = opt("npg", 8)
TE = opt("te", 1)
def stub_targets():
    return ["L_ret0" if p <= 3 else "L_ret1" if p <= 5 else f"L_pg{p+2}" if p + 2 <= NPG else "L_ret2" for p in range(1, NPG + 1)]

def touch(n):
    tg = [["L_pg0" if TE else None, "L_pg1", "L_pg2", "L_pg3"], ["L_pg4", "L_pg5", "L_st0", "L_st1"],
          ["L_pg6" if NPG >= 6 else None, "L_pg7" if NPG >= 7 else None, "L_st2", "L_st3"]][n]
    k("s_mov_b64 exec, 0")
    for w in range(4):
        if tg[w]:
            k(f"s_cmp_eq_u32 {S(sW)}, {w}")
            k(f"s_cbranch_scc1 {tg[w]}")
    if n == 0 and not TE:
        k("s_branch L_ret0")
        k.raw(".p2align 12")
    k.label(f"L_ret{n}")
    k("s_mov_b64 exec, -1")

def table_loads():
    t0 = KW + 100
    k(f"v_and_b32 {V(t0)}, 127, {V(vTID)}")
    k(f"v_lshlrev_b32 {V(t0)}, 4, {V(t0)}")
    k(f"v_add_u32 {V(t0)}, L_table-L_pc+2048, {V(t0)}")
    for q in range(3):
        if q < 2:
            k(f"global_load_dwordx4 {V(TBL+4*q,4)}, {V(t0)}, {S(sPC,2)} offset:{2048*(q-1)}")
        else:
            k(f"global_load_dword {V(TBL+8)}, {V(t0)}, {S(sPC,2)} offset:2048")

def dt_setup():
    DT = KW + 46 + 12
    k.wait(lg=0)
    k(f"s_lshl_b32 {S(sT0)}, {S(sCH)}, 4")
    k(f"s_lshr_b32 {S(sLDT)}, {S(sLDT)}, {S(sT0)}")
    k(f"s_lshl_b32 {S(sLDT)}, {S(sLDT)}, 16")
    k(f"s_lshr_b32 {S(sDSK)}, {S(sDSK)}, {S(sT0)}")
    k(f"s_lshl_b32 {S(sDSK)}, {S(sDSK)}, 16")
    k(f"v_mov_b32 {V(DT)}, {f2u(1.4426950408889634)}")
    k(f"v_mul_f32 {V(DT)}, {S(sLDT)}, {V(DT)}")
    k(f"v_exp_f32 {V(DT)}, {V(DT)}")
    k(f"s_cmp_eq_u32 {S(sNH)}, 0")
    k(f"s_cselect_b32 {S(sDSK)}, {S(sDSK)}, 0")
    k(f"v_cvt_pk_bf16_f32 {V(DT)}, {V(DT)}, {V(DT)}")
    k(f"v_mov_b32 {V(vDSK)}, 0")
    k(f"v_lshlrev_b32 {V(DT)}, 16, {V(DT)}")
    k(f"v_writelane_b32 {V(vDSK)}, {S(sDSK)}, 0")

def warm_loads():
    if opt("warm", 1):
        k(f"s_sub_u32 {S(sT0)}, {S(sWG)}, 32")
        k(f"s_lshl2_add_u32 {S(sT0)}, {S(sT0)}, {S(sW)}")
        k(f"s_mul_i32 {S(sT0)}, {S(sT0)}, 1792")
        k(f"v_min_u32 {V(vDUM+1)}, 13, {V(vL)}")
        k(f"v_lshl_add_u32 {V(vDUM+1)}, {V(vDUM+1)}, 7, {S(sT0)}")
        for q in range(opt("warm", 1)):
            k(f"global_load_dword {V(vDUM)}, {V(vDUM+1)}, {S(48+2*q,2)}")
            k.vm[-1] = (set(), None)

def main_start():
    k.c("=== main workgroups")
    p0x_loads()
    if opt("pdelay", 0):
        ac0 = addr_conv()
        run(ac0, opt("pdelay", 0))
    for i in range(6):
        k(f"global_load_dword {V(PRM+i)}, {V(PRM+6)}, {S(30+2*i,2)}")
    k(f"s_lshl_b32 {S(sT0)}, {S(sCP)}, 2")
    k(f"s_load_dword {S(sLDT)}, s[42:43], {S(sT0)}")
    k(f"s_load_dword {S(sDSK)}, s[44:45], {S(sT0)}")
    k.lg = []
    srd(SRD_W2, 50, 1792 * 896)
    if opt("warmat", 2) == 0:
        warm_loads()
    if opt("tblearly", 0):
        table_loads()
    w2_lane_src(vW2S, 896, KW + 100, KW + 101)
    k(f"s_mul_i32 {S(sW2B)}, {S(sW)}, {448*896}")
    k(f"s_lshl_b32 {S(sT2)}, {S(sDS)}, 7")
    k(f"s_add_u32 {S(sW2B)}, {S(sW2B)}, {S(sT2)}")
    FREG[0] = 4
    fine("ld")
    ac = ac0 if opt("pdelay", 0) else addr_conv()
    for i in range(NINIT):
        w2_dma()
        run(ac, len(ac) // (NINIT - i))
    run(ac)
    if TE:
        touch(0)
        dt_setup()
    stamp(24)
    fine("addr")
    if opt("warmat", 2) == 1:
        warm_loads()
    p0x_body()
    if opt("warmat", 2) == 2:
        warm_loads()
    fine("p0x")
    stamp(1)
    if opt("atom0", 11) < 0:
        p0x_atomics()
        stamp(25)
    if TE:
        k("s_branch L_body")
        k.raw(".p2align 12")
        k.label("L_pg0")
        k("s_branch L_ret0")
        k("s_nop 0")
        k.label("L_body")
    else:
        touch(0)

DEF0 = opt("def0", 1)
LATE0 = W1R + 100 if DEF0 else WK + 12
def conv_load_ops(layer, h, D):
    o = [f"s_mov_b32 {S(sT0)}, {hex(STATS[layer] + 8192*h)}",
         f"s_add_u32 {S(sT3)}, {S(sXQi)}, {hex(layer*XQ_SZ + 8192*h)}"]
    for j in range(2):
        o.append(f"buffer_load_dwordx4 {V(D+4*j,4)}, {V(vCX)}, {S(SRD_WS,4)}, {S(sT0)} offen offset:{128*j} sc1")
        o.append(f"buffer_load_dwordx2 {V(D+8+2*j,2)}, {V(vCX)}, {S(SRD_WS,4)}, {S(sT3)} offen offset:{128*j} sc1")
    return o

CW = []
def kgen():
    k.c("=== K generation")
    B0 = KW + 46
    U = B0
    DT = B0 + 12
    W1_, W8_, W256 = B0 + 14, B0 + 18, B0 + 22
    T = B0 + 26
    P = [B0 + 30 + 4 * i for i in range(5)]
    CV = B0 + 50
    ACC = WK + 64
    FX, FY = (112, 144), (176, 208)
    for i in range(6):
        k(f"v_lshlrev_b32 {V(U+2*i)}, 16, {V(PRM+i)}")
        k(f"v_and_b32 {V(U+2*i+1)}, {S(sHIM)}, {V(PRM+i)}")
    if not TE:
        dt_setup()
    fine("prm")
    for i in range(4):
        pk("mul", V(U + 2 * i, 2), V(U + 2 * i, 2), V(DT, 2), bc=(1,))
    k(f"s_mov_b32 {S(sC0)}, {f2u(1.4426950408889634)}")
    pk("mul", V(U, 2), V(U, 2), S(sC0, 2), bc=(1,))
    k(f"s_mov_b32 {S(sC0)}, {f2u(0.15915494309189535)}")
    pk("mul", V(U + 2, 2), V(U + 2, 2), S(sC0, 2), bc=(1,))
    cmul(P[0], U + 8, U + 4, T)
    for (Wd, sc) in ((W1_, 1.0), (W256, 256.0), (W8_, 8.0)):
        ea, an = U + 4, U + 6
        if sc == 1.0:
            sa, sb = U, U + 2
        else:
            k(f"s_mov_b32 {S(sC0)}, {f2u(sc)}")
            pk("mul", V(ea, 2), V(U, 2), S(sC0, 2), bc=(1,))
            pk("mul", V(an, 2), V(U + 2, 2), S(sC0, 2), bc=(1,))
            sa, sb = ea, an
        for h in range(2):
            k(f"v_fract_f32 {V(an+h)}, {V(sb+h)}")
        for h in range(2):
            k(f"v_exp_f32 {V(ea+h)}, {V(sa+h)}")
        for h in range(2):
            k(f"v_cos_f32 {V(Wd+h)}, {V(an+h)}")
        for h in range(2):
            k(f"v_sin_f32 {V(Wd+2+h)}, {V(an+h)}")
        pk("mul", V(Wd, 2), V(Wd, 2), V(ea, 2))
        pk("mul", V(Wd + 2, 2), V(Wd + 2, 2), V(ea, 2))
    if not opt("goearly", 2):
        poll_load(vGO, vGO + 3, 0, 0, SRD_DBG)
    if opt("atom0", 11) == 0:
        p0x_atomics()
        stamp(25)
    fine("setup")
    cvi = [0]
    ent = [0]
    vPL = vPA
    NKD = opt("nkd", 0)
    FL0, PL0 = opt("flag0", 27), opt("poll0", 46)
    cl = conv_load_ops(0, 0, WK) + ([] if DEF0 else conv_load_ops(0, 1, LATE0))
    PCE = opt("pce", 0)
    def put(src, row, negim, extra=None):
        c = CV + 2 * (cvi[0] & 1)
        cvi[0] += 1
        n = "-" if negim else ""
        k(f"v_cvt_pk_bf16_f32 {V(c)}, {V(src)}, {V(src+1)}")
        k(f"v_cvt_pk_bf16_f32 {V(c+1)}, {n}{V(src+2)}, {n}{V(src+3)}")
        k(f"ds_write_b64 {V(vKW)}, {V(c,2)} offset:{row*ROW_ST}")
        if extra:
            k(extra)
        ent[0] += 1
        if ent[0] == opt("atom0", 11):
            p0x_atomics()
            stamp(25)
        if ent[0] == FL0:
            poll_check(vGO, vGO + 2, 0, 128, SRD_DBG)
            k("s_barrier")
            flag_all(0)
            if not opt("tblearly", 0):
                table_loads()
            stamp(2)
        if opt("kdb", 0) and ent[0] == opt("kdb", 0):
            for _ in range(4):
                w2_dma()
        if ND[0] < NINIT + min(NKD, NKD * (ent[0] - opt("kd0", 0)) // (opt("kdspan", 42) - opt("kd0", 0))):
            w2_dma()
        if ent[0] in (opt("atom0", 11) - 1, opt("atom0", 11), FL0 - 1, FL0, 52):
            fine(f"e{ent[0]}")
        if ent[0] == PL0:
            poll_load(vPL, vFP, S(sREP))
        if ent[0] == PCE:
            poll_check(vPL, vFP, S(sREP))
            k("s_barrier")
            run(cl, 6)
    def frags(b):
        for st in range(8):
            k(f"ds_read_b128 {A(b+4*st,4)}, {V(vKR)} offset:{64*st}")
    cur = 0
    for a in range(8):
        put(P[cur], a, True)
        if a % 2 == 0:
            dst = {0: 3, 4: 4}.get(a, 2)
            cmul(P[dst], P[cur], W256, T)
            put(P[dst], 8 + a // 2, True)
        if a < 7:
            cmul(P[1 - cur], P[cur], W1_, T)
            cur = 1 - cur
    cmul(P[0], P[3], W256, T); put(P[0], 12, True)
    cmul(P[1], P[4], W256, T); put(P[1], 13, True)
    cmul(P[3], P[0], W256, T); put(P[3], 14, True)
    cmul(P[4], P[1], W256, T); put(P[4], 15, True)
    frags(FX[0])
    src, dst = 3, 0
    for row in range(5):
        cmul(P[dst], P[src], W256, T)
        put(P[dst], row, True)
        src, dst = dst, (1 - dst if dst in (0, 1) else 0)
    frags(FX[1])
    k(f"v_mov_b32 {V(CV)}, {S(sONES)}")
    k(f"v_mov_b32 {V(CV+1)}, 0")
    k(f"ds_write_b64 {V(vKW)}, {V(CV,2)}")
    cvi[0] = 1
    put(W8_, 1, False)
    cmul(P[0], W8_, W8_, T)
    cur = 0
    def mfma(n):
        yt, x, st = n // 16, (n // 8) & 1, n % 8
        d = V(ACC + 8 * yt + 4 * x, 4)
        return f"v_mfma_f32_16x16x32_bf16 {d}, {A(FX[x]+4*st,4)}, {A(FY[yt]+4*st,4)}, {d if st else 0}"
    M0 = opt("km", 0)
    for j in range(2, 32):
        put(P[cur], j % 16, False, mfma(j - 32 + M0) if j >= 32 - M0 else None)
        if j % 16 == 15:
            frags(FY[j // 16])
        if j == 15:
            stamp(3)
        if j < 31:
            cmul(P[1 - cur], P[cur], W8_, T)
            cur = 1 - cur
    assert ND[0] == NINIT + NKD and opt("pchk", 8) < 13, ND
    def tables(yt, x):
        a = ACC + 8 * yt + 4 * x
        return [f"ds_write2_b32 {V(TA+x)}, {V(a+i)}, {V(a+i+1)} offset0:{66*i+32*yt} offset1:{66*(i+1)+32*yt}" for i in (0, 2)]
    mads = []
    for n in range(17):
        sel = " op_sel:[1,0,0,0]" if n & 1 else ""
        mads.append(f"v_mad_u32_u16 {V(GA+n)}, {V(TBL+n//2)}, 8, {S(sSCH)}{sel}")
    PCK = opt("pchk", 8)
    tb = [(8, [f"v_add_f32 {V(ACC)}, {V(ACC)}, {V(vDSK)}"] + tables(0, 0)), (16, tables(0, 1)), (24, tables(1, 0))]
    for n in range(M0, 32):
        k(mfma(n))
        run(mads, 1)
        if n - M0 == PCK:
            if not PCE:
                poll_check(vPL, vFP, S(sREP))
            k.wait(lg=0)
            k("s_barrier")
            fine("pbar")
            stamp(4)
        if n - M0 >= PCK:
            if (n - M0 - PCK) % 2 == 0:
                run(cl, 3 if cl and cl[0].startswith("s_") else 1)
            if not cl and tb and n >= tb[0][0] + 4:
                run(tb.pop(0)[1])
    if AL:
        mads += [f"v_lshlrev_b32 {V(vFW)}, {AL-4}, {V(vFW)}", f"v_lshlrev_b32 {V(vFP)}, {AL-4}, {V(vFP)}", f"s_lshl_b32 {S(sREP)}, {S(sREP)}, {AL-4}"]
    run(mads)
    for _, o in tb:
        run(o)
    run(cl)
    poll_load(vGO, vGO + 1, 0, 192, SRD_DBG)
    run(tables(1, 1))
    k.wait(lg=0)
    k("s_barrier")
    fine("tbar")
    stamp(6)
    GV = B0
    for e in range(17):
        k(f"ds_read_b64 {V(GV+2*e,2)}, {V(GA+e)}")
    if opt("cpk", 1):
        CW.extend(cprep(WK, WK + 32, 0, True))
        k.wait(lg=0)
    else:
        k.wait(lg=8)
    for e in range(17):
        if e == 9 and k.lg:
            k.wait(lg=0)
        k(f"v_add_f32 {V(GV+2*e)}, {V(GV+2*e)}, {V(GV+2*e+1)}")
    fine("gath")
    k("s_barrier")
    O = B0 + 34
    for c in range(2):
        for kk in range(8):
            e = 2 * kk + c
            k(f"v_cvt_pk_bf16_f32 {V(O+8*c+kk)}, {V(GV+2*e)}, {V(GV+2*e+2)}")
    for c in range(2):
        for h in range(2):
            k(f"ds_write_b128 {V(vKC)}, {V(O+8*c+4*h,4)} offset:{c*(SCR_ST+64)+16*h}")
    stamp(5)

def wave0(fn):
    skip = newlab("w0")
    k(f"s_cmp_lg_u32 {S(sW)}, 0")
    saved = list(k.vm)
    k.skip_begin("s_cbranch_scc1", skip)
    fn()
    k.skip_end(skip)
    k.vm = saved

EARLY = opt("early", 0)
def apoll_load(arr):
    k(f"s_add_u32 {S(sPA)}, {S(sREP)}, {hex(FA(arr))}")
    poll_load(vPA, vFP, S(sPA))

def apoll_check():
    poll_check(vPA, vFP, S(sPA))

def aflag(arr):
    flag_all(FA(arr))

def bar():
    k.wait(lg=0)
    k("s_barrier")

CACC, CKR, CXU, CXR = WK, WK + 32, WK + 96, WK + 104
def cprep(D, T, h, defer=False):
    UU, O, RAW, EPS = T, T + 4, T + 8, CXR
    k(f"s_mov_b32 {S(sC0)}, {f2u(1.0/448)}")
    k(f"s_mov_b32 {S(sC1)}, {f2u(1e-5)}")
    k(f"v_mov_b32 {V(EPS)}, {S(sC1)}")
    for j in range(2):
        M, Q, X = D + 4 * j, D + 4 * j + 2, D + 8 + 2 * j
        pk("mul", V(M, 2), V(M, 2), S(sC0, 2), bc=(1,))
        pk("fma", V(Q, 2), V(Q, 2), S(sC0, 2), V(EPS, 2), bc=(1, 2))
        pk("fma", V(Q, 2), V(M, 2), V(M, 2), V(Q, 2), neg=(0,))
        for b in range(2):
            k(f"v_max_f32 {V(Q+b)}, {S(sC1)}, {V(Q+b)}")
        for b in range(2):
            k(f"v_rsq_f32 {V(Q+b)}, {V(Q+b)}")
        for b in range(2):
            k(f"v_lshlrev_b32 {V(UU+b)}, 16, {V(X+b)}")
            k(f"v_and_b32 {V(UU+2+b)}, {S(sHIM)}, {V(X+b)}")
        pk("mul", V(M, 2), V(M, 2), V(Q, 2))
        for c in range(2):
            pk("fma", V(UU + 2 * c, 2), V(UU + 2 * c, 2), V(Q, 2), V(M, 2), neg=(2,))
            k(f"v_perm_b32 {V(RAW+2*c+j)}, {V(X+1)}, {V(X)}, {S(sPERM0+c)}")
        for c in range(2):
            k(f"v_cvt_pk_bf16_f32 {V(O+2*c+j)}, {V(UU+2*c)}, {V(UU+2*c+1)}")
    w = [f"ds_write_b64 {V(vUW)}, {V(O+2*c,2)} offset:{c*U_ST + 2048*h}" for c in range(2)]
    w += [f"ds_write_b64 {V(vXW)}, {V(RAW+2*c,2)} offset:{c*2*SCR_ST + 1024*h}" for c in range(2)]
    if defer:
        return w
    run(w)

def k_ops(I, s, reg):
    o = (128 if I % 2 == 0 else 0) + 16 * (3 - s)
    r = (V if reg[0] == "v" else A)
    return [f"ds_read2_b32 {r(reg[1]+2*h,2)}, {V(vKF+I//2)} offset0:{o+2*h} offset1:{o+2*h+1}" for h in range(2)]

def k_preload():
    return [t for s in range(4) for I in range(4) for t in k_ops(I, s, ("v", CKR + 16 * s + 4 * I))]

def conv(layer):
    k.c("=== conv")
    ACC, XU, XR = CACC, CXU, CXR
    mf = []
    for s in range(4):
        mf += [(0, s, Jp, I) for Jp in range(3, -1, -1) for I in range(4 - Jp)]
    for s in range(3, -1, -1):
        mf += [(1, s, Jp, I) for I in range(7, 0, -1) for Jp in range(4) if 4 <= Jp + I <= 7]
    for s in range(4):
        mf += [(2, s, Jp, I) for Jp in range(7, 3, -1) for I in range(8 - Jp)]
    assert len(mf) == 144
    ukey = lambda p, s, Jp: ("u", 0 if (p == 1 and s == 3) else p, s, Jp)
    kkey = lambda s, I: ("k", s, I)
    first, last = {}, {}
    for n, (p, s, Jp, I) in enumerate(mf):
        for key in (ukey(p, s, Jp), kkey(s, I)):
            first.setdefault(key, n)
            last[key] = n
    reg = {kkey(s, I): ("v", CKR + 16 * s + 4 * I) for s in range(4) for I in range(4)}
    items = sorted((key for key in first if not (layer and key in reg)), key=lambda x: first[x])
    XB, XS = opt("xb", 40), opt("xs", 41)
    CPL, CPB = opt("cpl", 104), opt("cpb", 104)
    assert DEF0
    slots = [("a", AX + 4 * i) for i in range(8)] + [("v", WK + 108), ("v", ACC + 12)][:opt("xslot", 2)]
    slot_free = ([-1] * 9 + [XB + 4])[:len(slots)]
    RG = lambda r: (V if r[0] == "v" else A)(r[1], 4)
    queue = []
    issued = {}
    def issue(n, budget):
        c = 0
        while True:
            if not queue:
                if not items:
                    return c
                key = items[0]
                if not (first[key] <= n + 2 or (c < budget and first[key] <= n + 20)):
                    return c
                if key[0] == "u" and key[1] == 2 and n < CPB:
                    return c
                if key not in reg:
                    fr = [i for i in range(len(slots)) if slot_free[i] < n]
                    if not fr:
                        assert first[key] > n, (n, key)
                        return c
                    slot_free[fr[0]] = last[key]
                    reg[key] = slots[fr[0]]
                items.pop(0)
                if key[0] == "u":
                    queue.append((key, f"ds_read_b128 {RG(reg[key])}, {V(vUF)} offset:{512*key[3] + 64*(3-key[2])}"))
                else:
                    queue.extend((key, t) for t in k_ops(key[2], key[1], reg[key]))
            elif not (first[queue[0][0]] <= n + 2 or c < budget):
                return c
            key, t = queue.pop(0)
            k(t, tag=key)
            issued[key] = n
            c += 1
    def xblock(ph, packed, addfirst=False):
        l1, lj = newlab("x1"), newlab("xj")
        k(f"s_cmp_eq_u32 {S(sNH)}, 1")
        h0 = list(k.hist)
        k(f"s_cbranch_scc1 {l1}")
        for hf in range(2):
            if hf:
                k.label(l1)
                k.hist = h0
                k.lg = k.lg[:-2]
            a = ACC + 16 * ph
            def adds():
                for i in range(4 if packed else 8):
                    if packed:
                        pk("add", V(XU + 2 * i, 2), V(XU + 2 * i, 2), V(a + 8 * hf + 2 * i, 2))
                    else:
                        k(f"v_add_f32 {V(XU+i)}, {V(XU+i)}, {V(a+8*hf+i)}")
            if addfirst:
                adds()
            for jl in range(2):
                k(f"ds_write_b128 {V(vEXW)}, {V(a+8*(1-hf)+4*jl,4)} offset:{2048+1024*jl}", tag="ex")
            if not addfirst:
                adds()
            if not hf:
                k(f"s_branch {lj}")
        k.label(lj)
    def wait_lg(tag):
        idx = [i for i, p in enumerate(k.lg) if p[2] == tag]
        if idx:
            k.wait(lg=len(k.lg) - 1 - idx[-1])
    def res_ops(ph):
        o = [f"ds_read_b64_tr_b16 {V(XR+2*jl,2)}, {V(vXR)} offset:{1024*ph + 512*jl}" for jl in range(2)]
        o += [None] * 6
        for i in range(4):
            o += [f"v_lshlrev_b32 {V(XU+2*i)}, 16, {V(XR+i)}", f"v_and_b32 {V(XU+2*i+1)}, {S(sHIM)}, {V(XR+i)}"]
        return o
    def recv_ops():
        return [f"ds_read_b128 {V(ACC+4*jl,4)}, {V(vEXR)} offset:{2048+1024*jl}" for jl in range(2)]
    def out_ops(ph, packed):
        if packed:
            o = [f"v_pk_add_f32 {V(XU+2*i,2)}, {V(XU+2*i,2)}, {V(ACC+2*i,2)}" for i in range(4)]
        else:
            o = [f"v_add_f32 {V(XU+i)}, {V(XU+i)}, {V(ACC+i)}" for i in range(8)]
        o += [f"v_cvt_pk_bf16_f32 {V(ACC+8+i)}, {V(XU+2*i)}, {V(XU+2*i+1)}" for i in range(4)]
        o.append(f"s_mov_b32 {S(sT1)}, {hex(X1T + layer*XQ_SZ + 57344*ph)}")
        o.append((f"buffer_store_dwordx4 {V(ACC+8,4)}, {V(vCO)}, {S(SRD_WS,4)}, {S(sT1)} offen sc1", ("cst", ph)))
        return o
    if layer == 0:
        poll_check(vGO, vGO + 1, 0, 192, SRD_DBG)
        if opt("pw1", 40) < 0:
            poll_load(vWF, vWF + 1, 0)
        if CW:
            run(CW)
        else:
            cprep(WK, WK + 32, 0)
        stamp(7)
        if not DEF0:
            cprep(WK + 12, WK + 44, 1)
    bar()
    if layer and EARLY and opt("fl", 4) < 0:
        aflag(F_CIN1[1])
    fine("cbar")
    FREG[0] = 3
    fine("start")
    stamp(9)
    bg = []
    if layer == 0:
        n1, n2 = opt("w1conv", 18), opt("w2conv", 0)
        bg = [w2_dma] * (28 - ND[0])
        def c1():
            if not opt("abl", 0) & 8:
                poll_check(vWF, vWF + 1, 0)
            w1_load()
        def p2():
            poll_load(vWF, vWF + 2, 0)
            w1_load()
        def c2():
            if not opt("abl", 0) & 16:
                poll_check(vWF, vWF + 2, 0)
            if n2:
                w2_load()
        w = [c1] + [w1_load] * (n1 - 1)
        pos = max(1, n1 - n2 - 7)
        if n2:
            w[pos] = p2
        t = w[:n1 - n2]
        for i in range(n2):
            t += [c2 if i == 0 else w2_load] + w[n1 - n2 + i: n1 - n2 + i + 1]
        if opt("bgord", 0) == 0:
            bg += t
        elif opt("bgord", 0) == 1:
            bg = t + bg
        else:
            m = []
            while bg or t:
                m += t[:1] + bg[:1]
                t, bg = t[1:], bg[1:]
            bg = m
    nbg = len(bg)
    BG0 = opt("bg0", 4)
    step = max(1, (opt("bg1", 138) - BG0) / max(1, nbg))
    side = []
    lastbg = -9
    seen = set()
    CL, FE, PE = opt("cl", XS), opt("fe", 100), opt("pe", 128)
    for n, (p, s, Jp, I) in enumerate(mf):
        if n == CPL:
            assert not side and (layer or NW1[0] <= 25)
            stamp(10)
            side += [(o, "lw") for o in cprep(LIN if layer else LATE0, ACC, 1, True)]
            if CPB == CPL:
                run(side)
        if n == CPB:
            assert not side
            if FE >= CPB:
                k.wait_tag_vm(("cst", 0))
            wait_lg("lw")
            k("s_barrier")
            if FE >= CPB:
                aflag(F_X1[layer][0])
            stamp(12)
        cnt = issue(n, (12 if layer == 0 else 5) if n == 0 else 5 if n == CPB else 0 if XB < n <= XS and opt("xq", 0) else 1)
        uk, kk = ukey(p, s, Jp), kkey(s, I)
        tags = [q[2] for q in k.lg]
        if uk in tags or kk in tags:
            cand = [i for i, q in enumerate(tags) if q in (uk, kk) or (q in first and first[q] <= n + 3 and issued[q] <= n - 7)]
            k.wait(lg=len(tags) - 1 - max(cand))
        J = Jp + I
        d = V(ACC + 4 * J, 4)
        k(f"v_mfma_f32_16x16x32_bf16 {d}, {RG(reg[uk])}, {RG(reg[kk])}, {d if J in seen else 0}")
        seen.add(J)
        if n == opt("ll0", 8) and layer == 0 and DEF0:
            side += conv_load_ops(0, 1, LATE0)
        if n == 18:
            side += res_ops(0)
        if n == 122:
            side[0:0] = res_ops(1)
        if layer == 0 and n == opt("pw1", 40):
            poll_load(vWF, vWF + 1, 0)
        if layer and EARLY and n == opt("fl", 4):
            k.wait_tag_vm(("st", 1))
            k("s_barrier")
            aflag(F_CIN1[1])
        if layer and n == opt("pcl", 0):
            apoll_load(F_CIN1[1])
        if n == XB:
            assert not side
            xblock(0, bool(opt("xpk", 1)), bool(opt("xaf", 0)))
        if layer and n == CL - 2:
            precmp(vPA)
        if layer and n == CL and CL != XS:
            apoll_check()
            k("s_barrier")
            side += conv_load_ops(1, 1, LIN)
        if n == XS:
            if layer and CL == XS:
                apoll_check()
            wait_lg("ex")
            k("s_barrier")
            run(recv_ops())
            if layer and CL == XS:
                side += conv_load_ops(1, 1, LIN)
        if n == XS + opt("xo", 4):
            run(side)
            run(out_ops(0, bool(opt("xpk", 1))))
        if n == FE and FE < CPB:
            k.wait_tag_vm(("cst", 0))
            k("s_barrier")
            aflag(F_X1[layer][0])
        if n == PE:
            apoll_load(F_X1[layer][0])
        if n in (0, 19, 39, 47, 55, 63, 71, 87, 103, 104, 123, 143):
            fine(f"m{n}")
        if side:
            run(side, 2 if cnt == 0 else 1)
        elif bg and n >= BG0 + step * (nbg - len(bg)) and (cnt == 0 or n >= BG0 + 2 + step * (nbg - len(bg))):
            run(bg, 1)
    assert not items and not queue and not any(x and "v_" in x[:2] for x in side)
    run(side)
    run(bg)
    stamp(13)
    PX = opt("px", 2) if PE > 143 else -1
    if PX == 0:
        apoll_load(F_X1[layer][0])
    xblock(1, True)
    bar()
    run(recv_ops())
    if PX == 1:
        apoll_load(F_X1[layer][0])
    o = out_ops(1, True)
    run(o, len(o) - 1)
    if PX == 2:
        apoll_load(F_X1[layer][0])
    run(o)
    fine("store")
    stamp(11)
    if layer == 0:
        n = min(opt("w1a", 4), 28 - NW1[0])
        k.wait_tag_vm(("w2", 27))
        tr = w2_tr_ops(0, 14)
        for i in range(n):
            w1_load()
            run(tr, len(tr) // (n - i))
        run(tr)
    apoll_check()
    bar()
    fine("pollE")
    stamp(14)

def layer_turn():
    FREG[0] = 5
    fine("T")
    kp = k_preload()
    run(kp, opt("kpre", 32))
    fine("kpre")
    apoll_check()
    k("s_barrier")
    fine("chk")
    stamp(20)
    run(conv_load_ops(1, 0, WK))
    k.wait_tag_vm(("st", 1))
    k("s_barrier")
    aflag(F_CIN1[1])
    fine("flag")
    run(kp)
    touch(2)
    fine("touch")
    stamp(21)
    if opt("pcl.1", 0) < 0:
        k.wait(vm=0)
        apoll_load(F_CIN1[1])
    w = cprep(WK, WK + 12, 0, True)
    fine("prep")
    run(w)
    if FREG[0] == opt("fine", 0):
        k.wait(lg=0)
        fine("wr")
    LAY[0] = 1

G2RES = WK + 100
G2R = WK + 108

GB = 4 if GL else 1024
def gflag_ops(half, local):
    return ["s_mov_b64 exec, 1",
            f"buffer_store_dword {V(vONE)}, {V(vFL)}, {S(SRD_WS,4)}, {S(sFP if local else sFG)} offen offset:{GB*half}" + ("" if local else " sc1"),
            "s_mov_b64 exec, -1"]

def gflag(layer, half):
    run(gflag_ops(half, FAST))

def gcheck(half, pre=()):
    if FAST:
        poll_check(vPL2, vF2P, S(sFP), GB * half, pre=gflag_ops(half, False), alt=(vHL, S(sFG)))
    else:
        poll_check(vPL2, vF2P, S(sFG), GB * half, pre=pre)

def ffn(layer):
    k.c("=== GEMM1")
    FREG[0] = 1
    fine("start")
    ACC = WK
    EP = WK + 64
    vXS = WK + 80
    vB0, vB1 = WK + 81, WK + 82
    if layer:
        k(f"s_add_u32 {S(sXT)}, {S(sXT)}, {hex(XQ_SZ)}")
    k(f"v_add_u32 {V(vXS)}, {S(sXT)}, {V(vL16)}")
    k(f"s_lshl_b32 {S(sT0)}, {S(sW)}, 10")
    k(f"s_mov_b32 m0, {S(sT0)}")
    nx = [0]
    def dma():
        d = nx[0]
        nx[0] += 1
        k(f"buffer_load_dwordx4 {V(vXS)}, {S(SRD_WS,4)}, m0 offen sc1 lds", tag=("x", d))
        if d == 13:
            k(f"v_subrev_u32 {V(vXS)}, 32, {V(vXS)}")
        if d < 27:
            k(f"s_add_u32 m0, m0, {4096 + (32 if d == 13 else 0)}")
    NUP = opt("nup", 9)
    af = addr_ffn(layer)
    FXL = opt("fxl", 6)
    for st in range(NUP):
        dma()
        if st >= 1:
            run(af, opt("afr", 11))
        if st == FXL:
            k.wait_tag_vm(("cst", 1))
            k("s_barrier")
            aflag(F_X1[layer][1])
    af += [f"v_add_u32 {V(vB0)}, {XHALF}, {V(vXA0)}", f"v_add_u32 {V(vB1)}, {XHALF}, {V(vXA1)}"]
    W2CHK = [layer == 0 and NW2[0] == 0]
    if W2CHK[0]:
        k(f"v_mov_b32 {V(WK+97)}, {S(sLDT2)}")
        poll_load(WK + 96, WK + 97, 0)
    if layer == 0:
        touch(1)
    SKA = opt("ska", 10)
    mf = [(0, q, ks) for ks in range(28 - SKA) for q in range(2)]
    mf += [(0, q, ks) for q in range(2) for ks in range(28 - SKA, 28)]
    SK = opt("skb", 18)
    mf += [(1, q, ks) for ks in range(28 - SK) for q in range(2)]
    mf += [(1, q, ks) for q in range(2) for ks in range(28 - SK, 28)]
    NR = 8
    LEAD = opt("g1lead", 7)
    bars = [[2, 5, 9, 14, 16, 19, 23, 28], [1, 3, 6, 9, 14, 17, 21, 28], [2, 5, 9, 14, 18, 23, 28], [2, 6, 14, 20, 28]][opt("bars", 0)]
    ready = [0]
    def rd(n):
        half, q, ks = mf[n]
        st = 14 * half + ks // 2
        if st >= ready[0]:
            nb = [b for b in bars if b > st][0]
            assert nx[0] >= nb, (n, nb, nx[0])
            k.wait_tag_vm(("x", nb - 1))
            k("s_barrier")
            if ready[0] == 0 and FXL >= NUP:
                aflag(F_X1[layer][1])
            ready[0] = nb
        va = ((vXA0, vXA1), (vB0, vB1))[half][q]
        for u in range(2):
            k(f"ds_read_b64_tr_b16 {A(AX+4*(n%NR)+2*u,2)}, {V(va)} offset:{ks*2048+u*512}", tag=("f", n))
        rdat[n] = cur[0]
    rdat, cur, lastw = {}, [-9], [-9]
    def epi(tile):
        ops = []
        e = EP + 8 * (tile & 1)
        for a in range(2):
            for i in range(4):
                ops.append(f"v_cvt_pk_bf16_f32 {V(e+4*a+i)}, {V(ACC+16*tile+8*a+2*i)}, {V(ACC+16*tile+8*a+2*i+1)}")
            for i in range(4):
                ops.append(f"v_pk_max_i16 {V(e+4*a+i)}, {V(e+4*a+i)}, 0")
            if a == 0:
                ops.append(f"s_add_u32 {S(sT1)}, {S(sHS)}, {tile*112*1024}")
            ops.append((f"buffer_store_dwordx4 {V(e+4*a,4)}, {V(vL16)}, {S(SRD_WS,4)}, {S(sT1)} offen offset:{1024*a} sc1", ("h", tile)))
        return ops
    F = WK
    ONE4, DS_, DQ = WK + 84, WK + 88, WK + 92
    srd_ = [f"ds_read_b64_tr_b16 {V(F+4*ks+2*u,2)}, {V(vST)} offset:{ks*4096+u*512}" for ks in range(14) for u in range(2)]
    ring = [("a", AX + 4 * i) for i in range(8)] + [("v", WK + 64 + 4 * i) for i in range(5)]
    NR2 = opt("g2ring", 11)
    ring = ring[:NR2]
    rn = lambda i: (V if ring[i % NR2][0] == "v" else A)(ring[i % NR2][1], 4)
    nl = [0]
    def ld():
        i = nl[0]
        nl[0] += 1
        half, s = divmod(i, 28)
        if s % 4 == 0:
            k(f"s_add_u32 {S(sT4)}, {S(sHL)}, {half*2*112*1024 + s*1024}")
        k(f"buffer_load_dwordx4 {rn(i)}, {V(vL16)}, {S(SRD_WS,4)}, {S(sT4)} offen offset:{1024*(s%4)} sc1" + (" nt" if opt("hnt", 0) else ""))
        if layer == 0 and NW2[0] < 28 and i >= opt("w2l0", 0) and (i - opt("w2l0", 0)) % opt("w2ls", 1) == 0:
            w2_load()
    CHKA = opt("chkA", 999)
    HOLD = opt("hold", 0)
    held = []
    sentB = False
    pend = af
    nrd = 0
    for n in range(opt("lead0", LEAD)):
        rd(nrd); nrd += 1
    stamp(27)
    cur[0] = 0
    PXL, CXL = opt("pxl", 10), opt("cxl", 28)
    LB = opt("leadb", 4)
    BUD, CVM, CST, CRD = opt("bud", 28), opt("cvm", 12), opt("cst", 24), opt("crd", 4)
    MINL = opt("minl", 5)
    for n, (half, q, ks) in enumerate(mf):
        tile = 2 * half + q
        d = V(ACC + 16 * tile, 16)
        assert NW1[0] > ks, "W1 fragment used before its load"
        k(f"v_mfma_f32_32x32x16_bf16 {d}, {V(W1R+4*ks,4)}, {A(AX+4*(n%NR),4)}, {d if ks else 0}")
        if n == 56 - SKA + opt("ed", 2):
            pend += epi(0)
        if n == 56 + opt("ed", 2):
            pend += epi(1)
        if n == 112 - SK + opt("ed", 2):
            e2 = epi(2)
            if HOLD:
                held = [o for o in e2 if isinstance(o, tuple) or o.startswith("s_")]
                e2 = [o for o in e2 if o not in held]
            pend += e2
        b = BUD
        tags = [p[2] for p in k.lg]
        needw = ("f", n + 1) in tags
        if needw:
            b -= 4
        def newbar(m):
            return 14 * mf[m][0] + mf[m][2] // 2 >= ready[0]
        def may(m):
            return m < len(mf) and m <= n + (LB if m == 56 else LEAD)
        if n == PXL:
            apoll_load(F_X1[layer][1]); b -= CVM + 4
        if n == CXL - 1:
            assert PRECMP[0] is None
            precmp(vPA); b -= 8
        if n == CXL:
            apoll_check()
            if nx[0] == 14 and ready[0] < 14:
                k.wait_tag_vm(("x", 13))
                ready[0] = 14
            k("s_barrier")
            stamp(28); b -= 20
        if n == opt("pollA", 109):
            poll_load(vPL2, vF2P, S(sFP)); b -= CVM
        if n == opt("flagA", 88):
            k.wait_tag_vm(("h", 1))
            gflag(layer, 0); b -= CVM + 12
        if n == CHKA:
            assert opt("flagA", 88) < opt("pollA", 109) < n
            gcheck(0); b -= 12
        if n >= max(CHKA, 104) and nl[0] <= n - 104 and nrd == len(mf) and (n - CHKA) % opt("hstep", 2) == 0:
            ld(); b -= CVM
        while may(nrd) and nrd <= n + MINL - 1:
            b -= 2 * CRD + (12 if newbar(nrd) else 0)
            rd(nrd); nrd += 1
        full = b >= BUD - 4
        if pend and isinstance(pend[0], tuple):
            if full or b >= CST:
                run(pend, 1); b -= CST
        elif full or b >= CVM + 4:
            if nx[0] < 14 and 3 * (nx[0] - NUP) <= n:
                dma(); b -= CVM + 4
            elif n >= CXL and nx[0] < 28 and opt("bstep", 2) * (nx[0] - 14 - opt("bburst", 1)) <= n - CXL:
                dma(); b -= CVM + 4
            elif layer == 0 and n >= lastw[0] + opt("w1step", 2) and NW1[0] < 28:
                w1_load(); b -= CVM; lastw[0] = n
            elif layer == 0 and NW1[0] == 28 and NW2[0] < opt("w2g1", 28) and n >= lastw[0] + opt("w2step", 2) and (n < CXL - opt("w2gap", 1) or nx[0] >= opt("w2x", 28)) and n < opt("w2end", 999):
                if W2CHK[0]:
                    assert PRECMP[0] is None
                    poll_check(WK + 96, WK + 97, 0)
                    W2CHK[0] = False
                w2_load(); b -= CVM; lastw[0] = n
        while True:
            if may(nrd) and b >= 2 * CRD and (nrd <= n + MINL + 1 or not pend or isinstance(pend[0], tuple)):
                b -= 2 * CRD + (12 if newbar(nrd) else 0)
                rd(nrd); nrd += 1
            elif pend and not isinstance(pend[0], tuple) and b >= 4:
                run(pend, 1); b -= 4
            elif nrd == len(mf) and len(srd_) > 12 and b >= CRD and n > 72:
                run(srd_, 1); b -= CRD
            else:
                break
        if needw:
            tags = [p[2] for p in k.lg]
            tgt = ("f", n + 2) if ("f", n + 2) in tags and rdat[n + 2] <= n - opt("wage", 3) else ("f", n + 1)
            idx = [i for i, t_ in enumerate(tags) if t_ == tgt]
            if idx:
                k.wait(lg=len(tags) - 1 - idx[-1])
        cur[0] = n + 1
        assert nrd > n + 1 or nrd == len(mf)
        if n % 8 == 0 or n == 111:
            fine(f"m{n}")
        if opt("g1st", 0) and n in (55, 83):
            stamp({55: 29, 83: 31}[n])
    assert not pend and nx[0] == 28 and NW1[0] == 28 and not W2CHK[0], (pend, nx, NW1)
    FREG[0] = 2
    fine("g1end")
    run(srd_, len(srd_) - 4)
    for i in range(4):
        k(f"v_mov_b32 {V(ONE4+i)}, {S(sONES)}")
    e3 = epi(3)
    if CHKA <= 111:
        held += [o for o in e3 if isinstance(o, tuple) or o.startswith("s_")]
        e3 = [o for o in e3 if o not in held]
        n_pre = opt("hpre", 7) - nl[0]
        for i in range(n_pre):
            ld()
            run(e3, len(e3) // (n_pre - i))
    run(e3)
    run(held)
    if FAST:
        run(gflag_ops(0, False))
    fine("epi3")
    stamp(15)
    run(srd_)
    for h in range(2):
        for u in range(2):
            k(f"ds_read_b64_tr_b16 {V(G2RES+4*h+2*u,2)}, {V(vRES)} offset:{h*XHALF+u*512}")
    if CHKA > 111:
        gcheck(0, ["s_waitcnt vmcnt(0)"] + gflag_ops(1, False))
    fine("pollA")
    stamp(17)
    st = []
    for ks in range(14):
        st.append(f"v_mfma_f32_16x16x32_bf16 {V(DQ,4)}, {V(F+4*ks,4)}, {V(F+4*ks,4)}, {V(DQ,4) if ks else 0}")
        st.append(f"v_mfma_f32_16x16x32_bf16 {V(DS_,4)}, {V(ONE4,4)}, {V(F+4*ks,4)}, {V(DS_,4) if ks else 0}")
    vS, vQ, vT = DS_, ONE4, ONE4 + 1
    post = ["s_mov_b32 vcc_lo, 0x00100001", "s_mov_b32 vcc_hi, 0x10000100",
            f"v_cndmask_b32 {V(vQ)}, 0, {V(DQ)}, vcc"]
    for i in range(1, 4):
        post += ["s_lshl_b64 vcc, vcc, 1", f"v_cndmask_b32 {V(vQ)}, {V(vQ)}, {V(DQ+i)}, vcc"]
    post += [f"v_mov_b32 {V(vT)}, {V(vQ)}", f"v_mul_f32 {V(vS)}, {f2u(1.0/448)}, {V(vS)}", None,
             f"v_permlane32_swap_b32 {V(vQ)}, {V(vT)}", f"v_add_f32 {V(vQ)}, {V(vQ)}, {V(vT)}",
             f"v_mov_b32 {V(vT)}, {V(vQ)}", None, None,
             f"v_permlane16_swap_b32 {V(vQ)}, {V(vT)}", f"v_add_f32 {V(vQ)}, {V(vQ)}, {V(vT)}",
             f"v_mul_f32 {V(vQ)}, {f2u(1.0/448)}, {V(vQ)}",
             f"v_fma_f32 {V(vQ)}, -{V(vS)}, {V(vS)}, {V(vQ)}",
             f"v_max_f32 {V(vQ)}, 0, {V(vQ)}",
             f"v_add_f32 {V(vQ)}, {f2u(1e-5)}, {V(vQ)}",
             f"v_rsq_f32 {V(vQ)}, {V(vQ)}", None,
             f"v_mov_b32 {V(G2R)}, {V(vQ)}",
             f"v_mov_b32 {V(G2R+2)}, {V(vQ)}", None, None,
             f"v_mov_b32_dpp {V(G2R)}, {V(vQ)} row_ror:8 row_mask:0xf bank_mask:0xc",
             f"v_mov_b32_dpp {V(G2R+2)}, {V(vQ)} row_ror:8 row_mask:0xf bank_mask:0x3"]

    k.c("=== GEMM2")
    NR = NR2
    def red_write(half):
        return [f"ds_write_b128 {V(vRW)}, {V(ACC+32*half+4*G,4)} offset:{half*RED_H+G*redg(layer)}" for G in range(8)]
    def red_read(half):
        return [f"ds_read_b128 {V(ACC+32*half+8*w+4*g,4)}, {V(vRR)} offset:{half*RED_H+w*RED_W+512*g}" for w in range(4) for g in range(2)]
    def unpack(half, u):
        o = []
        for i in range(4):
            o.append(f"v_lshlrev_b32 {V(u+2*i)}, 16, {V(G2RES+4*half+i)}")
            o.append(f"v_and_b32 {V(u+2*i+1)}, {S(sHIM)}, {V(G2RES+4*half+i)}")
        return o
    UR = WK + 84
    def fin(half, pre):
        a = ACC + 32 * half
        u = UR
        ops = []
        def P(d, x, y):
            if pre:
                ops.append(f"v_pk_add_f32 {V(d,2)}, {V(x,2)}, {V(y,2)}")
            else:
                ops.extend(f"v_add_f32 {V(d+h)}, {V(x+h)}, {V(y+h)}" for h in range(2))
        for i in range(4):
            P(a + 2 * i, a + 2 * i, a + 8 + 2 * i)
        for i in range(4):
            P(a + 16 + 2 * i, a + 16 + 2 * i, a + 24 + 2 * i)
        for i in range(4):
            P(a + 2 * i, a + 2 * i, a + 16 + 2 * i)
        for i in range(4):
            if pre:
                ops.append(f"v_pk_fma_f32 {V(a+2*i,2)}, {V(a+2*i,2)}, {V(G2R+2*half,2)}, {V(u+2*i,2)} op_sel_hi:[1,0,1]")
            else:
                ops.extend(f"v_fma_f32 {V(a+2*i+h)}, {V(a+2*i+h)}, {V(G2R+2*half)}, {V(u+2*i+h)}" for h in range(2))
        for i in range(4):
            ops.append(f"v_cvt_pk_bf16_f32 {V(a+24+i)}, {V(a+2*i)}, {V(a+2*i+1)}")
        if layer == 0:
            ops += quad_shuffle([(a + 28, a + 24)])
            ops.append(f"s_mov_b32 {S(sT1)}, {hex(XQ + XQ_SZ + 8192*half)}")
            if half and opt("pt", 1) == 2:
                ops.append(lambda: apoll_load(F_CIN1[0]))
            ops.append((f"buffer_store_dwordx4 {V(a+28,4)}, {V(vO)}, {S(SRD_WS,4)}, {S(sT1)} offen sc1", ("st", half)))
            so = stats_ops(a + 24, 4, a, a + 1, a + 2)
            if not pre:
                so = so[10:]
                for i in range(4):
                    ops.append(f"v_lshlrev_b32 {V(a+16+2*i)}, 16, {V(a+24+i)}")
                    ops.append(f"v_and_b32 {V(a+16+2*i+1)}, {S(sHIM)}, {V(a+24+i)}")
                ops.append(f"v_add_f32 {V(a)}, {V(a+16)}, {V(a+17)}")
                ops.append(f"v_mul_f32 {V(a+1)}, {V(a+16)}, {V(a+16)}")
                for i in range(1, 8):
                    if i > 1:
                        ops.append(f"v_add_f32 {V(a)}, {V(a)}, {V(a+16+i)}")
                    ops.append(f"v_fmac_f32 {V(a+1)}, {V(a+16+i)}, {V(a+16+i)}")
            ops += so
            def at():
                k(f"s_mov_b32 {S(sT1)}, {hex(STATS[1] + 8192*half)}")
                k("s_mov_b32 exec_lo, 0xff")
                k("s_mov_b32 exec_hi, 0xff")
                k(f"buffer_atomic_add_f32 {V(a)}, {V(vAT)}, {S(SRD_WS,4)}, {S(sT1)} offen sc1", tag=("st", half))
                k("s_mov_b64 exec, -1")
            ops.append(at)
        else:
            ops.append(f"s_mov_b32 {S(sT1)}, {1024*896*half}")
            ops.append(f"buffer_store_dwordx4 {V(a+24,4)}, {V(vO)}, {S(SRD_OUT,4)}, {S(sT1)} offen" + ("", " sc1", " nt", " sc0 sc1")[opt(f"osc{half}", 2)])
        return ops
    NUP2 = opt("nup2", NR)
    for i in range(nl[0], NUP2):
        ld()
        run(st, (len(st) + NUP2 - i - 1) // (NUP2 - i))
        if i == opt("flagB", 9):
            k.wait_tag_vm(("h", 3))
            gflag(layer, 1)
            sentB = True
    assert not st
    fine("up2")
    stamp(16)
    PB = opt("pollB", 7)
    TL = opt("tl", 4)
    order = [(i, dt) for i in range(56 - TL) for dt in range(2)] + [(i, dt) for dt in range(2) for i in range(56 - TL, 56)]
    bar()
    GAP = "gap"
    pend = [GAP] * 2 + [GAP if o is None else o for o in post]
    if layer and ROWST:
        pend += [f"ds_bpermute_b32 {V(r)}, {V(vAT)}, {V(r)}" for r in list(range(G2RES, G2RES + 8)) + [G2R, G2R + 2]] + [GAP] * 3
    pend += unpack(0, UR)
    okB = False
    flagE = layer == 1
    BUD2 = opt("bud2", 24)
    for n, (i, dt) in enumerate(order):
        half, s = divmod(i, 28)
        d = V(ACC + 32 * half + 16 * dt, 16)
        assert NW2[0] + 28 > s * 2 + dt, "W2 fragment used before its load"
        k(f"v_mfma_f32_32x32x16_bf16 {d}, {A((s*2+dt)*4,4)}, {rn(i)}, {d if s else 0}")
        b = (BUD2 if i < 28 else opt("bud3", BUD2)) - (4 if dt else 0)
        if dt == 0 and i < 56 - TL:
            if i + NUP2 == opt("flagB", 9):
                k.wait_tag_vm(("h", 3))
                gflag(layer, 1)
                sentB = True
                b = 0
            if i == PB:
                poll_load(vPL2, vF2P, S(sFP), GB)
                assert sentB
                b -= 14
            if nl[0] == 28 and not okB and i > PB and (i >= opt("chkB", 99) or not any(f"v{vPL2}" in p[0] for p in k.vm[1:])):
                assert not pend
                precmp(vPL2)
                okB = None
        if dt == 1 and okB is None:
            gcheck(1)
            if FAST:
                pend += [GAP, lambda: run(gflag_ops(1, False))]
            okB = True
            b -= 4
        if dt == 1 and i < 56 - TL:
            if i in (13, 27, 41):
                stamp({13: 8, 27: 23, 41: 26}[i])
            if i == opt("red0", 29):
                for o in red_write(0):
                    pend += [o] + [GAP] * opt("rwg", 1)
                pend += [GAP] * opt("rw2", 1) + [bar] + red_read(0) + [GAP] * opt("rr2", 2) + fin(0, False) + unpack(1, UR)
        assert i < 56 - TL or nl[0] == 56
        if nl[0] < 56 and nl[0] - NR < i + dt and (nl[0] < 28 or okB) and (dt or opt("catch", 1)):
            ld()
            b -= 14
        while pend and not (layer and nl[0] < 56 and "buffer_store" in str(pend[0])):
            o = pend[0]
            if o is GAP:
                pend.pop(0)
                break
            cost = 8 if str(o).startswith("ds_read") else 12 if str(o).startswith("ds_bperm") else 4
            if b < cost and not str(o).startswith("ds_write"):
                break
            run(pend, 1)
            b -= cost if isinstance(o, str) else 16
        if n == opt("flagE", 104) and layer == 0:
            assert not any("atomic" in str(o) or callable(o) for o in pend)
            k.wait_tag_vm(("st", 0))
            k("s_barrier")
            aflag(F_CIN1[0])
            flagE = True
        if EARLY and layer == 0 and n == opt("pollE", 108):
            assert flagE
            apoll_load(F_CIN1[0])
        if n % 10 == 1:
            fine(f"m{n}")
        if n == 112 - TL - 1:
            assert not pend
            pend += ["s_nop 3", GAP, "s_nop 3", GAP]
            for o in red_write(1)[:4]:
                pend += [o, GAP]
    run([o for o in pend if o is not GAP])
    assert nl[0] == 56 and okB
    stamp(18)
    run(red_write(1)[4:])
    if not flagE:
        k.wait_tag_vm(("st", 0))
    if layer == 0 and opt("pt", 1) == 0:
        apoll_load(F_CIN1[0])
    bar()
    if not flagE:
        aflag(F_CIN1[0])
    fine("bar")
    run(red_read(1))
    if layer == 0 and opt("pt", 1) == 1:
        apoll_load(F_CIN1[0])
    run(fin(1, True))
    fine("out")
    stamp(19)

def finish():
    if ENC >= 0:
        k.wait(vm=0)
        stamp(22)
        k(f"s_cmp_lg_u32 {S(sWG)}, 100")
        k("s_cbranch_scc1 L_end")
        k("s_sub_u32 s47, s47, s46" if ENC else "s_sub_u32 s47, s46, s46")
        k("s_mul_i32 s47, s47, 100")
        k("s_min_u32 s47, s47, 1000000")
        k(f"s_memrealtime {S(sTM,2)}")
        k.wait(lg=0)
        k(f"s_mov_b32 s46, {S(sTM)}")
        k.label("L_spin")
        k(f"s_memrealtime {S(sTM,2)}")
        k.wait(lg=0)
        k(f"s_sub_u32 {S(sT0)}, {S(sTM)}, s46")
        k(f"s_cmp_lt_u32 {S(sT0)}, s47")
        k("s_cbranch_scc1 L_spin")
    if DIAG:
        if not opt("noend", 0):
            k.wait(vm=0)
        stamp(22)
        for n, (name, r) in enumerate(FINE):
            k(f"v_writelane_b32 {V(vSTAMP)}, s{r}, {20 + n}")
        k(f"v_writelane_b32 {V(vSTAMP)}, s101, 61")
        k.raw("; SITES " + " ".join(SITES))
        if FINE:
            k.raw("; FINE " + " ".join(n for n, _ in FINE))
        k(f"s_lshl_b32 {S(sT0)}, {S(sWG)}, 10")
        k(f"s_add_u32 {S(sT0)}, {S(sT0)}, {hex(STAMP)}")
        k(f"s_lshl_b32 {S(sT1)}, {S(sW)}, 8")
        k(f"v_lshl_add_u32 {V(WK)}, {V(vL)}, 2, {S(sT1)}")
        k(f"buffer_store_dword {V(vSTAMP)}, {V(WK)}, {S(SRD_WS,4)}, {S(sT0)} offen")
    k.label("L_end")
    k("s_endpgm")

prologue()
main_start()
kgen()
conv(0)
ffn(0)
layer_turn()
conv(1)
ffn(1)
finish()
cut = [i for i, l in enumerate(SLOW) if l.startswith("L_slow")]
NS = opt("ns", 4)
first = len(cut) - 10
for n, i in enumerate(cut):
    if n >= first and (n - first) % 3 == 0 and (n - first) // 3 < 4:
        k.raw(f"L_st{(n - first) // 3}:")
        k.raw(f"    s_branch L_ret{1 + (n - first) // 6}")
    for l in SLOW[i:(cut + [len(SLOW)])[n + 1]]:
        k.raw(l)
SLOW.clear()
LAY[0] = 0
helper()
body = list(k.lines) + SLOW
body += [".p2align 4", ".type L_table,@object", "L_table:"]
body += [".long " + ",".join(hex(w) for w in r) for r in table_words()]
body += ["L_table_end:"]

ref = open("cdna_kernels/%s.s.ref" % NAME).read().splitlines()
hdr = [l for l in ref if l.startswith(";") and "@launch" not in l]
head = f""".amdgcn_target "amdgcn-amd-amdhsa--gfx950"
.text
.globl {NAME}_kernel
.p2align 8
.type {NAME}_kernel,@function
{NAME}_kernel:
"""
if opt("align", 1):
    body = align(body, head, stubs=stub_targets())
out = "\n".join(hdr) + f"\n; @launch grid=(256,1,1) block=(256,1,1) lds={LDS_BYTES}\n"
out += head + "\n".join(body) + "\n"
out += f""".section .rodata,"a"
.p2align 6
.amdhsa_kernel {NAME}_kernel
  .amdhsa_next_free_vgpr 512
  .amdhsa_next_free_sgpr 102
  .amdhsa_accum_offset 256
  .amdhsa_group_segment_fixed_size 0
  .amdhsa_kernarg_size 120
  .amdhsa_user_sgpr_count 2
  .amdhsa_user_sgpr_kernarg_segment_ptr 1
  .amdhsa_system_sgpr_workgroup_id_x 1
.end_amdhsa_kernel
"""
dst = [a for a in sys.argv[1:] if not a.startswith("--")]
dst = dst[0] if dst else "cdna_kernels/%s.s" % NAME
open(dst, "w").write(out)
print("instructions:", k.nins, "->", dst)
```

```python
import sys, struct
from emit import Asm, V, A, S
from align import align

NAME = "interleave_layers__ssm_conv_s4__dense_activation_relu__prompt"
DIAG = "--diag" in sys.argv
OPT = {"pe.0": 142, "pxl.0": 18, "cxl.0": 36, "pxl.1": 11, "nup.1": 11, "astep.1": 1, "cxl.1": 30, "pollB.0": 10, "pollB.1": 9, "bud3.0": 44,
       "cpl.1": 88, "cpb.1": 94, "fe.1": 94, "pe.1": 138}
for a in sys.argv:
    if a.startswith("--") and "=" in a:
        n, v = a[2:].split("=")
        OPT[n] = int(v)
LAY = [0]
def opt(n, d):
    return OPT.get(f"{n}.{LAY[0]}", OPT.get(n, d))

def f2u(x):
    return "0x%08x" % struct.unpack("<I", struct.pack("<f", x))[0]

GL, AL = opt("gl", 5), opt("al", 0)
FA = (lambda n: 0x8000 + 4 * n if n else 0) if AL else (lambda n: n * 0x8000)
F_CIN0, F_X1, F_CIN1 = 0, ((1, 2), (5, 6)), (3, 4)
FLG_G = 0x8000 + (2048 << AL if AL else 0x30000)
FAST = opt("fast", 1)
PQ = 1024 << GL
ZEND = FLG_G + (PQ if FAST else 0) + (1024 << GL if GL else 0x10000) + 0x8000
STATS = (0x1804000, ZEND - 0x8000)
XQ = 0x1820000
XQ_SZ = 0x1C0000
X1T = 0x3E0000
HB = 0x760000
H_SZ = 0 if opt("hreuse", 0) else 0x700000
W1C = 0x1560000
FLG_W = ZEND - 0x4000
STAMP = 0x1700000
W2T = 0x1740000
WS_BYTES = 0x1BA0000

XHALF = 57344 + 32
SCR = 114816
SCR_ST = 8960
KC0 = 4608
ROW_ST = 544
UARR = SCR + 4 * SCR_ST
U_ST = 4576
LDS_BYTES = 163840
WREG = 28672
RED_G = 1152
RED_W = 8 * RED_G
RED_H = 4 * RED_W

sWG, sW = 2, 3
SRD_WS, SRD_OUT, SRD_W1, SRD_W2, SRD_X0, SRD_DBG = 4, 8, 12, 16, 20, 24
sCP, sGAM, sJ, sHH, sDS, sROT = 58, 59, 60, 61, 62, 63
sONES, sHIM = 64, 65
sT0, sT1, sT2, sT3, sT4, sT5 = 66, 67, 68, 69, 70, 71
sLDT, sDSK = 72, 73
sREP, sXQi, sW2B, sXT, sHL, sHS, sFG = 74, 75, 76, 77, 78, 79, 80
sSPIN = 81
sC0, sC1 = 82, 83
sPC = 84
sTM = 86
sWL = 88
sW2O = 89
sSCR, sSCH = 90, 95
sPERM0, sPERM1 = 91, 92
sNH, sCH = 93, 94
sXS = 100
sLDT2 = 99
sFP = 98
sKO = 28
sW2L, sPA = 96, 97

vTID, vL, vL16 = 0, 1, 2
vCX, vUW, vXW = 3, 4, 5
vKF = 6
vUF, vXR, vCO, vEXW, vEXR = 10, 11, 12, 13, 14
vFW, vFP, vONE, vSTAMP, vPA = 15, 16, 17, 18, 19
vXA0, vXA1, vST, vRES, vRW, vRR, vO, vAT, vF2P, vFL, vHL, vPL2 = range(20, 32)
vW2S, vW2R, vWF, vDUM = 20, 21, 23, 26
LIN = 20
WK = 32
W1R = 144
AX = 224

k = Asm()
SPIN_MAX = 1 << 16

ENC = opt("enc", -1)
def stamp(idx, cyc=False):
    if ENC >= 0 and not cyc and idx + 32 * LAY[0] in (0, ENC):
        k.wait(lg=0)
        k(f"s_memrealtime {S(sTM,2)}")
        k.wait(lg=0)
        k(f"s_mov_b32 {S(46 if idx + 32*LAY[0] == 0 else 47)}, {S(sTM)}")
    if not DIAG:
        return
    if opt("lite", 0) and idx + 32 * LAY[0] not in (0, 9, 14, 19, 46, 54):
        return
    k.wait(lg=0)
    k(f"{'s_memtime' if cyc != bool(opt('cyc', 0)) else 's_memrealtime'} {S(sTM,2)}")
    k.wait(lg=0)
    k(f"v_writelane_b32 {V(vSTAMP)}, {S(sTM)}, {idx + 32*LAY[0]}")

FINE = []
def fine(name):
    if not DIAG or opt("fine", 0) != FREG[0] or opt("finel", 1) != LAY[0]:
        return
    regs = list(range(28, 46, 2)) + [12, 14, 20, 22, 48, 50, 54, 56] + ([] if FREG[0] == 4 else [24, 26])
    r = regs[len(FINE)]
    FINE.append((name, r))
    k.raw(f"    s_memtime s[{r}:{r+1}]")
FREG = [0]

def srd(base, ptr, nbytes):
    k(f"s_mov_b32 {S(base)}, {S(ptr)}")
    k(f"s_and_b32 {S(base+1)}, {S(ptr+1)}, 0xffff")
    k(f"s_mov_b32 {S(base+2)}, {hex(nbytes)}")
    k(f"s_mov_b32 {S(base+3)}, 0x20000")

_lab = [0]
def newlab(p):
    _lab[0] += 1
    return f"L_{p}_{_lab[0]}"

def branch(op, lab):
    k.fence(1)
    k(f"{op} {lab}")

def label(lab):
    k.fence()
    k.label(lab)

def poll_load(vtmp, vaddr, soff, off=0, srdn=SRD_WS):
    pol = "nt" if FAST and opt("pnt", 0) and soff == S(sFP) else "sc1"
    k(f"buffer_load_dword {V(vtmp)}, {V(vaddr)}, {S(srdn,4)}, {soff} offen offset:{off} {pol}")

PRECMP = [None]
def precmp(vtmp):
    if opt("pre", 1):
        k(f"v_cmp_eq_u32 vcc, 0, {V(vtmp)}")
        PRECMP[0] = vtmp
SLOW = []
SITES = []
def poll_check(vtmp, vaddr, soff, off=0, srdn=SRD_WS, pre=(), alt=None):
    sl, lp, ok = newlab("slow"), newlab("poll"), newlab("ok")
    if PRECMP[0] != vtmp:
        k(f"v_cmp_eq_u32 vcc, 0, {V(vtmp)}")
    PRECMP[0] = None
    k(f"s_cbranch_vccnz {sl}")
    k.label(ok)
    import inspect
    SITES.append(inspect.stack()[2 if inspect.stack()[1].function == "apoll_check" else 1].function + str(LAY[0]))
    slp = opt("sl_" + SITES[-1], opt("sleep", 0))
    if opt("pipe", 3) and vaddr == vFP:
        ld_ = lambda r: f"    buffer_load_dword {V(r)}, {V(vaddr)}, {S(srdn,4)}, {soff} offen offset:{off} sc1"
        SLOW.extend([f"{sl}:"] + ([f"    s_bitset1_b32 s101, {len(SITES)-1}"] if DIAG else []) +
                    [ld_(vtmp), f"    s_mov_b32 {S(sSPIN)}, 0", f"    s_sleep {opt('pipe', 3)}", f"{lp}:",
                     ld_(vTID), f"    s_add_u32 {S(sSPIN)}, {S(sSPIN)}, 1", "    s_waitcnt vmcnt(1)",
                     f"    v_cmp_eq_u32 vcc, 0, {V(vtmp)}", f"    s_cmp_gt_u32 {S(sSPIN)}, {SPIN_MAX}",
                     f"    s_cbranch_vccz {ok}",
                     ld_(vtmp), "    s_waitcnt vmcnt(1)",
                     f"    v_cmp_eq_u32 vcc, 0, {V(vTID)}",
                     f"    s_cbranch_scc1 {ok}",
                     f"    s_cbranch_vccnz {lp}",
                     f"    s_branch {ok}"])
        return
    SLOW.extend([f"{sl}:"] + ([f"    s_bitset1_b32 s101, {len(SITES)-1}"] if DIAG else []) +
                ([f"    s_mov_b32 {S(sSPIN)}, 0",
                  f"{lp}q:",
                  f"    buffer_load_dword {V(vtmp)}, {V(vaddr)}, {S(srdn,4)}, {soff} offen offset:{off} sc1",
                  f"    s_add_u32 {S(sSPIN)}, {S(sSPIN)}, 1",
                  "    s_waitcnt vmcnt(0)",
                  f"    v_cmp_eq_u32 vcc, 0, {V(vtmp)}",
                  f"    s_cmp_lt_u32 {S(sSPIN)}, 10",
                  f"    s_cbranch_vccz {ok}",
                  f"    s_cbranch_scc1 {lp}q"] if alt else []) +
                ["    " + p for p in pre] +
                [f"    s_mov_b32 {S(sSPIN)}, 0",
                 f"{lp}:"] +
                ([f"    s_sleep {slp}"] if slp else []) +
                [f"    buffer_load_dword {V(vtmp)}, {V(vaddr)}, {S(srdn,4)}, {soff} offen offset:{off} sc1",
                 f"    s_add_u32 {S(sSPIN)}, {S(sSPIN)}, 1"] +
                ([f"    buffer_load_dword {V(alt[0])}, {V(vaddr)}, {S(srdn,4)}, {alt[1]} offen offset:{off} sc1"] if alt else []) +
                ["    s_waitcnt vmcnt(0)"] +
                ([f"    v_or_b32 {V(vtmp)}, {V(vtmp)}, {V(alt[0])}"] if alt else []) +
                [
                 f"    v_cmp_eq_u32 vcc, 0, {V(vtmp)}",
                 f"    s_cmp_gt_u32 {S(sSPIN)}, {SPIN_MAX}",
                 f"    s_cbranch_scc1 {ok}",
                 f"    s_cbranch_vccnz {lp}",
                 f"    s_branch {ok}"])

def run(ops, n=None):
    c = 0
    while ops and (n is None or c < n):
        o = ops.pop(0)
        if callable(o):
            o()
        elif isinstance(o, tuple):
            k(o[0], tag=o[1])
        elif o is not None:
            k(o)
        c += 1

def stats_ops(P, n, vS, vQ, vT):
    o = [f"v_mov_b32 {V(vS)}, 0", f"v_mov_b32 {V(vQ)}, 0"]
    for i in range(n):
        o.append(f"v_dot2c_f32_bf16 {V(vS)}, {S(sONES)}, {V(P+i)}")
        o.append(f"v_dot2c_f32_bf16 {V(vQ)}, {V(P+i)}, {V(P+i)}")
    o += [f"v_permlane32_swap_b32 {V(vS)}, {V(vQ)}",
          f"v_add_f32 {V(vS)}, {V(vS)}, {V(vQ)}",
          f"v_mov_b32 {V(vT)}, {V(vS)}",
          f"v_permlane16_swap_b32 {V(vS)}, {V(vT)}",
          f"v_add_f32 {V(vS)}, {V(vS)}, {V(vT)}",
          f"v_add_f32_dpp {V(vS)}, {V(vS)}, {V(vS)} row_ror:8 row_mask:0xf bank_mask:0xf",
          f"v_lshrrev_b32 {V(vT)}, 1, {V(vS)}",
          f"v_add_u32 {V(vQ)}, {hex(8 << 23)}, {V(vS)}",
          f"v_add_u32 {V(vT)}, {hex(0x1FC00000 + (13 << 23))}, {V(vT)}",
          f"v_permlane32_swap_b32 {V(vT)}, {V(vQ)}",
          f"v_and_b32 {V(vQ)}, 0x7f800000, {V(vQ)}",
          f"v_mul_f32 {V(vQ)}, 0x3fc00000, {V(vQ)}",
          f"v_add_f32 {V(vS)}, {V(vS)}, {V(vQ)}",
          f"v_sub_f32 {V(vS)}, {V(vS)}, {V(vQ)}"]
    return o

def quad_shuffle(pairs):
    D = " row_mask:0xf bank_mask:0xf"
    o = ["s_mov_b32 vcc_lo, 0x0f0f0f0f", "s_mov_b32 vcc_hi, 0x0f0f0f0f"]
    for d, s in pairs:
        o.append(f"v_cndmask_b32_dpp {V(d)}, {V(s+2)}, {V(s)}, vcc row_ror:4" + D)
        o.append(f"v_cndmask_b32_dpp {V(d+2)}, {V(s+3)}, {V(s+1)}, vcc row_ror:4" + D)
    o.append("s_not_b64 vcc, vcc")
    for d, s in pairs:
        o.append(f"v_cndmask_b32_dpp {V(d+1)}, {V(s)}, {V(s+2)}, vcc row_ror:12" + D)
        o.append(f"v_cndmask_b32_dpp {V(d+3)}, {V(s+1)}, {V(s+3)}, vcc row_ror:12" + D)
    return o

X0R = WK
X0O = WK + 8
vP0A = WK + 16
vP0S = WK + 20
vGO = WK + 28

def p0x_addr():
    k.c("row re-layout unit of this wave: W = 4m+w, octet group a = W%7, rows (blk, j2) = W/7, both hh8")
    t = vP0A
    k(f"s_sub_u32 {S(sT0)}, {S(sWG)}, 32")
    k(f"s_lshl2_add_u32 {S(sT0)}, {S(sT0)}, {S(sW)}")
    k(f"s_mul_i32 {S(sT1)}, {S(sT0)}, 9363")
    k(f"s_lshr_b32 {S(sT1)}, {S(sT1)}, 16")
    k(f"s_mul_i32 {S(sT2)}, {S(sT1)}, 7")
    k(f"s_sub_u32 {S(sT0)}, {S(sT0)}, {S(sT2)}")
    k(f"s_lshr_b32 {S(sT2)}, {S(sT1)}, 2")
    k(f"s_lshl_b32 {S(sT2)}, {S(sT2)}, 6")
    k(f"s_and_b32 {S(sT3)}, {S(sT1)}, 3")
    k(f"s_lshl1_add_u32 {S(sT2)}, {S(sT3)}, {S(sT2)}")
    k(f"v_and_b32 {V(t+1)}, 0x30, {V(vL16)}")
    k(f"v_bfe_u32 {V(t)}, {V(vL)}, 2, 1")
    k(f"v_add3_u32 {V(t+3)}, {V(t+1)}, {V(t)}, {S(sT2)}")
    k(f"v_mul_u32_u24 {V(t+3)}, 896, {V(t+3)}")
    k(f"v_lshrrev_b32 {V(t+2)}, 3, {V(vL)}")
    k(f"v_lshl_add_u32 {V(t+3)}, {V(t+2)}, 4, {V(t+3)}")
    k(f"s_lshl_b32 {S(sT2)}, {S(sT0)}, 7")
    k(f"v_add_u32 {V(t+3)}, {S(sT2)}, {V(t+3)}")
    k(f"v_lshl_add_u32 {V(t)}, {V(t)}, 2, {V(t+1)}")
    k(f"v_lshrrev_b32 {V(t+2)}, 5, {V(vL)}")
    k(f"v_lshl_add_u32 {V(t)}, {V(t+2)}, 3, {V(t)}")
    k(f"v_and_b32 {V(t+2)}, 16, {V(vL)}")
    k(f"v_lshl_add_u32 {V(t)}, {V(t+2)}, 2, {V(t)}")
    k(f"s_lshl_b32 {S(sT2)}, {S(sT1)}, 7")
    k(f"v_add_u32 {V(t)}, {S(sT2)}, {V(t)}")
    k(f"v_lshrrev_b32 {V(t+2)}, 2, {V(vL)}")
    k(f"v_lshl_add_u32 {V(t+1)}, {V(t+2)}, 14, {V(t+1)}")
    k(f"s_lshl_b32 {S(sT0)}, {S(sT0)}, 18")
    k(f"s_lshl_b32 {S(sT1)}, {S(sT1)}, 7")
    k(f"s_add_u32 {S(sT0)}, {S(sT0)}, {S(sT1)}")
    k(f"v_add_u32 {V(t+1)}, {S(sT0)}, {V(t+1)}")

def p0x_loads():
    k(f"s_movk_i32 {S(sT0)}, {8*896}")
    k(f"buffer_load_dwordx4 {V(X0R,4)}, {V(vP0A+3)}, {S(SRD_X0,4)}, 0 offen")
    k(f"buffer_load_dwordx4 {V(X0R+4,4)}, {V(vP0A+3)}, {S(SRD_X0,4)}, {S(sT0)} offen")

def p0x_body():
    t = vP0A
    if opt("goearly", 2) == 1:
        k.wait(vm=len(k.vm) - 2)
        poll_load(vGO, vGO + 3, 0, 0, SRD_DBG)
    run(quad_shuffle([(X0O + 4 * a, X0R + 4 * a) for a in range(2)]))
    k(f"s_mov_b32 {S(sT0)}, {hex(XQ)}")
    for a in range(2):
        k(f"buffer_store_dwordx4 {V(X0O+4*a,4)}, {V(t+1)}, {S(SRD_WS,4)}, {S(sT0)} offen offset:{64*a} sc1")
    s0 = stats_ops(X0R, 4, vP0S, vP0S + 1, vP0S + 2)
    s1 = stats_ops(X0R + 4, 4, vP0S + 2, vP0S + 3, vP0S + 4)
    for _ in range(12):
        run(s0, 1)
        run(s1, 1)
    run(s0[1:])
    if opt("goearly", 2) == 2:
        poll_load(vGO, vGO + 3, 0, 0, SRD_DBG)

def p0x_atomics():
    poll_check(vGO, vGO + 3, 0, 0, SRD_DBG)
    k(f"s_mov_b32 {S(sT0)}, {hex(STATS[0])}")
    k("s_mov_b32 exec_lo, 0x00ff00ff")
    k("s_mov_b32 exec_hi, 0x00ff00ff")
    k(f"buffer_atomic_add_f32 {V(vP0S)}, {V(vP0A)}, {S(SRD_WS,4)}, {S(sT0)} offen sc1", tag="st")
    k("s_mov_b64 exec, -1")
    poll_load(vGO, vGO + 2, 0, 128, SRD_DBG)
    if opt("warmat", 2) == 3:
        warm_loads()

def flag_all(off):
    k(f"s_mov_b32 {S(sT0)}, {hex(off)}")
    k(f"s_mov_b64 exec, 3")
    k(f"buffer_store_dword {V(vONE)}, {V(vFW)}, {S(SRD_WS,4)}, {S(sT0)} offen sc1")
    k(f"s_mov_b64 exec, -1")

ND = [0]
def w2_dma():
    d = ND[0]
    ND[0] += 1
    if opt("abl", 0) & 2:
        return
    if opt("rot", 1):
        if d == 0:
            k(f"s_and_b32 {S(sROT)}, {S(sWG)}, 7")
            k(f"s_min_u32 {S(sROT)}, {S(sROT)}, 6")
            k(f"s_mul_i32 {S(sXS)}, {S(sW)}, {WREG}")
        elif d % 4 == 0:
            k(f"s_add_u32 {S(sROT)}, {S(sROT)}, 1")
            k(f"s_cmp_eq_u32 {S(sROT)}, 7")
            k(f"s_cselect_b32 {S(sROT)}, 0, {S(sROT)}")
        if d % 4 == 0:
            k(f"s_lshl_b32 {S(sT4)}, {S(sROT)}, 12")
            k(f"s_add_u32 m0, {S(sT4)}, {S(sXS)}")
            k(f"s_mul_i32 {S(sW2O)}, {S(sT4)}, 7")
            k(f"s_add_u32 {S(sW2O)}, {S(sW2O)}, {S(sW2B)}")
        else:
            k(f"s_add_u32 {S(sW2O)}, {S(sW2O)}, {7168 - 1024}")
        k(f"buffer_load_dwordx4 {V(vW2S)}, {S(SRD_W2,4)}, {S(sW2O)} offen offset:{1024*(d%4)} lds", tag=("w2", d))
        return
    if d == 0:
        k(f"s_mul_i32 {S(sT4)}, {S(sW)}, {WREG}")
        k(f"s_mov_b32 m0, {S(sT4)}")
    elif d % 4 == 0:
        k(f"s_add_u32 m0, m0, 4096")
    if d:
        k(f"s_add_u32 {S(sW2B)}, {S(sW2B)}, {7168 - 1024 + (4096 if d % 4 == 0 else 0)}")
    k(f"buffer_load_dwordx4 {V(vW2S)}, {S(SRD_W2,4)}, {S(sW2B)} offen offset:{1024*(d%4)} lds", tag=("w2", d))

NW2 = [0]
def w2_load():
    n = NW2[0]
    NW2[0] += 1
    if opt("abl", 0) & 4:
        return
    k(f"buffer_load_dwordx4 {A(112+4*n,4)}, {V(vL16)}, {S(SRD_WS,4)}, {S(sW2L)} offen offset:{1024*(n%4)} sc1")
    if n % 4 == 3:
        k(f"s_add_u32 {S(sW2L)}, {S(sW2L)}, 4096")

def w2_tr_ops(lo, hi):
    return [f"ds_read_b64_tr_b16 {A((s*2+dt)*4+2*u,2)}, {V(vW2R+dt)} offset:{(s%14)*2048+u*1024}"
            for s in range(lo, hi) for dt in range(2) for u in range(2)]

NW1 = [0]
def w1_load():
    ks = NW1[0]
    NW1[0] += 1
    if opt("abl", 0) & 1:
        return
    k(f"buffer_load_dwordx4 {V(W1R+4*ks,4)}, {V(vL16)}, {S(SRD_WS,4)}, {S(sWL)} offen offset:{1024*(ks%4)} sc1")
    if ks % 4 == 3:
        k(f"s_add_u32 {S(sWL)}, {S(sWL)}, 4096")

def prologue():
    k(f"s_getpc_b64 {S(sPC,2)}")
    k.label("L_pc")
    k(f"s_cmp_ge_u32 {S(sWG)}, 256")
    k("s_cbranch_scc1 L_end")
    k("s_load_dwordx16 s[28:43], s[0:1], 0")
    k("s_load_dwordx8 s[44:51], s[0:1], 64")
    k("s_load_dwordx4 s[52:55], s[0:1], 96")
    k("s_load_dwordx2 s[56:57], s[0:1], 112")
    k.c("wave 0 of helpers 8..31 pulls a third of the code into L2")
    k(f"s_sub_u32 {S(sT0)}, {S(sWG)}, 8")
    k(f"s_cmp_ge_u32 {S(sT0)}, 24")
    k("s_cbranch_scc1 L_nopf")
    k(f"v_cmp_gt_u32 vcc, 64, {V(vTID)}")
    k(f"s_lshr_b32 {S(sT0)}, {S(sT0)}, 3")
    k(f"s_lshl_b32 {S(sT0)}, {S(sT0)}, 7")
    k(f"v_mul_u32_u24 {V(vL16)}, 384, {V(vTID)}")
    k(f"v_add_u32 {V(vL16)}, {S(sT0)}, {V(vL16)}")
    k("s_cbranch_vccz L_nopf")
    for q in range(2):
        k(f"v_min_u32 {V(vL16)}, L_table_end-L_pc-4, {V(vL16)}")
        k(f"global_load_dword {V(vDUM)}, {V(vL16)}, {S(sPC,2)}")
        k.vm = []
        if q == 0:
            k(f"v_add_u32 {V(vL16)}, {64*384}, {V(vL16)}")
    k.label("L_nopf")
    k(f"v_lshrrev_b32 {V(vONE)}, 6, {V(vTID)}")
    k(f"v_and_b32 {V(vL)}, 63, {V(vTID)}")
    k(f"v_readfirstlane_b32 {S(sW)}, {V(vONE)}")
    k(f"v_lshlrev_b32 {V(vL16)}, 4, {V(vL)}")
    k(f"v_mov_b32 {V(vONE)}, 1")
    if DIAG:
        k(f"v_mov_b32 {V(vSTAMP)}, 0")
        k("s_mov_b32 s101, 0")
    k(f"s_mov_b32 {S(sONES)}, 0x3f803f80")
    k(f"s_mov_b32 {S(sHIM)}, 0xffff0000")
    k(f"s_sub_u32 {S(sT0)}, {S(sWG)}, 32")
    k(f"s_and_b32 {S(sT1)}, {S(sT0)}, 7")
    k(f"s_lshr_b32 {S(sT0)}, {S(sT0)}, 3")
    k(f"s_mul_i32 {S(sCP)}, {S(sT1)}, 28")
    k(f"s_add_u32 {S(sCP)}, {S(sCP)}, {S(sT0)}")
    k(f"s_cmp_ge_u32 {S(sT0)}, 14")
    k(f"s_cselect_b32 {S(sT2)}, 1, 0")
    k(f"s_cselect_b32 {S(sT3)}, 14, 0")
    k(f"s_lshl_b32 {S(sGAM)}, {S(sT1)}, 1")
    k(f"s_add_u32 {S(sGAM)}, {S(sGAM)}, {S(sT2)}")
    k(f"s_sub_u32 {S(sJ)}, {S(sT0)}, {S(sT3)}")
    k(f"s_and_b32 {S(sHH)}, {S(sJ)}, 1")
    k(f"s_lshr_b32 {S(sDS)}, {S(sJ)}, 1")
    k(f"s_and_b32 {S(sNH)}, {S(sW)}, 1")
    k(f"s_lshr_b32 {S(sCH)}, {S(sW)}, 1")
    k(f"s_lshl_b32 {S(sREP)}, {S(sT1)}, 12")
    k(f"s_lshl_b32 {S(sT0)}, {S(sW)}, 13")
    k(f"s_lshl4_add_u32 {S(sT0)}, {S(sWG)}, {S(sT0)}")
    k(f"v_lshl_add_u32 {V(vFW)}, {V(vL)}, 12, {S(sT0)}")
    p0x_addr()
    k(f"v_and_b32 {V(vGO+1)}, 12, {V(vL)}")
    k(f"v_and_b32 {V(vGO+2)}, 4, {V(vL)}")
    k(f"v_mov_b32 {V(vGO+3)}, 0")
    k(f"s_lshl_b32 {S(sT0)}, {S(sCP)}, 10")
    k(f"v_lshl_add_u32 {V(PRM+6)}, {V(vTID)}, 2, {S(sT0)}")
    k.wait(lg=0)
    srd(SRD_X0, 28, 2048 * 896)
    srd(SRD_WS, 56, WS_BYTES)
    srd(SRD_DBG, 54, 256)
    stamp(0)
    if DIAG:
        pass
    k(f"s_cmp_ge_u32 {S(sWG)}, 32")
    branch("s_cbranch_scc1", "L_main")
    z = HZ
    for i in range(4):
        k(f"v_mov_b32 {V(z+i)}, 0")
    k(f"s_lshl_b32 {S(sT5)}, {S(sWG)}, 7")
    k(f"s_add_u32 {S(sT5)}, {S(sT5)}, {hex(FLG_W)}")
    l1, l2 = newlab("h1"), newlab("h2")
    k(f"s_cmp_lt_u32 {S(sWG)}, 28")
    branch("s_cbranch_scc1", l1)
    k(f"s_sub_u32 {S(sT2)}, {S(sWG)}, 28")
    k(f"s_lshl2_add_u32 {S(sT0)}, {S(sT2)}, {S(sW)}")
    k(f"s_mul_i32 {S(sT0)}, {S(sT0)}, {(ZEND - 0x8000) // 16}")
    k(f"s_add_u32 {S(sT0)}, {S(sT0)}, 0x8000")
    k(f"s_add_u32 {S(sT1)}, {S(sT0)}, {(ZEND - 0x8000) // 16}")
    for q in range(opt("zwait", 0)):
        k(f"v_lshlrev_b32 {V(z+4)}, 12, {V(vTID)}")
        k(f"buffer_load_dword {V(z+5)}, {V(z+4)}, {S(SRD_X0,4)}, {S(sT0)} offen offset:{1024*q}")
        k.wait(vm=0)
    lz = newlab("z")
    label(lz)
    for i in range(2):
        k(f"buffer_store_dwordx4 {V(z,4)}, {V(vL16)}, {S(SRD_WS,4)}, {S(sT0)} offen offset:{1024*i} sc1")
    k(f"s_add_u32 {S(sT0)}, {S(sT0)}, 2048")
    k(f"s_cmp_lt_u32 {S(sT0)}, {S(sT1)}")
    k(f"s_cbranch_scc1 {lz}")
    k(f"s_lshl_b32 {S(sT0)}, {S(sT2)}, 2")
    k.wait(vm=0)
    k("s_barrier")
    k(f"s_cmp_lg_u32 {S(sW)}, 1")
    branch("s_cbranch_scc1", "L_end2")
    k("s_mov_b64 exec, 1")
    k(f"buffer_store_dword {V(vONE)}, {V(z)}, {S(SRD_DBG,4)}, {S(sT0)} offen offset:192 sc1")
    k("s_mov_b64 exec, -1")
    branch("s_branch", "L_end2")
    label(l1)
    k.forget()
    k(f"s_cmp_gt_u32 {S(sWG)}, 2")
    branch("s_cbranch_scc1", "L_helper")
    k(f"s_lshl2_add_u32 {S(sT0)}, {S(sWG)}, {S(sW)}")
    k(f"s_lshl_b32 {S(sT0)}, {S(sT0)}, 12")
    k(f"s_cmp_eq_u32 {S(sWG)}, 0")
    k(f"s_cselect_b32 {S(sT1)}, {hex(STATS[0] + 0x4000)}, 0")
    k(f"s_cselect_b32 {S(sT2)}, 0, 124")
    k(f"s_add_u32 {S(sT0)}, {S(sT0)}, {S(sT1)}")
    k(f"s_sub_u32 {S(sT0)}, {S(sT0)}, 0x4000")
    for i in range(4):
        k(f"buffer_store_dwordx4 {V(z,4)}, {V(vL16)}, {S(SRD_WS,4)}, {S(sT0)} offen offset:{1024*i} sc1")
    k(f"s_lshl2_add_u32 {S(sT0)}, {S(sWG)}, {S(sT2)}")
    stamp(4)
    k.wait(vm=0)
    k("s_barrier")
    stamp(5)
    k(f"s_cmp_lg_u32 {S(sW)}, 2")
    branch("s_cbranch_scc1", "L_helper")
    k("s_mov_b64 exec, 1")
    k(f"buffer_store_dword {V(vONE)}, {V(z)}, {S(SRD_DBG,4)}, {S(sT0)} offen sc1")
    k("s_mov_b64 exec, -1")
    branch("s_branch", "L_helper")
    label("L_main")
    k.forget()

def w2_lane_src(d, pitch, t0, t1):
    k(f"v_lshrrev_b32 {V(t0)}, 3, {V(vL)}")
    k(f"v_mul_u32_u24 {V(d)}, {pitch}, {V(t0)}")
    k(f"v_and_b32 {V(t0)}, 7, {V(vL)}")
    k(f"v_bfe_u32 {V(t1)}, {V(vL)}, 4, 1")
    k(f"v_lshlrev_b32 {V(t1)}, 2, {V(t1)}")
    k(f"v_xor_b32 {V(t0)}, {V(t0)}, {V(t1)}")
    k(f"v_lshl_add_u32 {V(d)}, {V(t0)}, 4, {V(d)}")

def h_prefetch():
    k.forget()
    a, f, d = WK, WK + 1, WK + 2
    poll_load(vGO, vGO + 1, 0, 192, SRD_DBG)
    k(f"s_and_b32 {S(sT0)}, {S(sWG)}, 7")
    k(f"s_lshr_b32 {S(sT1)}, {S(sWG)}, 4")
    k(f"s_lshl1_add_u32 {S(sGAM)}, {S(sT0)}, {S(sT1)}")
    k(f"s_bfe_u32 {S(sHH)}, {S(sWG)}, 0x10003")
    k(f"s_mul_i32 {S(sHL)}, {S(sGAM)}, {4*112*1024}")
    k(f"s_lshl2_add_u32 {S(sT3)}, {S(sHH)}, {S(sW)}")
    k(f"s_mul_i32 {S(sT3)}, {S(sT3)}, {28*1024}")
    k(f"s_add_u32 {S(sHL)}, {S(sHL)}, {S(sT3)}")
    k(f"s_lshl_b32 {S(sFG)}, {S(sGAM)}, {GL + 6}")
    k(f"s_add_u32 {S(sFG)}, {S(sFG)}, {hex(FLG_G + (PQ if FAST and opt('hpf', 0) == 2 else 0))}")
    k(f"v_min_u32 {V(f)}, 13, {V(vL)}")
    k(f"s_mul_i32 {S(sT2)}, {S(sW)}, 14")
    k(f"v_add_lshl_u32 {V(f)}, {V(f)}, {S(sT2)}, {GL}")
    k(f"v_min_u32 {V(a)}, 55, {V(vL)}")
    k(f"v_lshlrev_b32 {V(a)}, 7, {V(a)}")
    poll_check(vGO, vGO + 1, 0, 192, SRD_DBG)
    for ph in range(4):
        lp, go = newlab("hp"), newlab("hg")
        k(f"s_mov_b32 {S(sSPIN)}, 0")
        k(f"s_add_u32 {S(sT0)}, {S(sHL)}, {hex(HB + (ph >> 1)*H_SZ + (ph & 1)*2*112*1024)}")
        label(lp)
        k(f"s_sleep {opt('hsl', 1)}")
        poll_load(d, f, S(sFG), 4 * ph)
        k(f"s_add_u32 {S(sSPIN)}, {S(sSPIN)}, 1")
        k(f"v_cmp_eq_u32 vcc, 0, {V(d)}")
        k(f"s_cmp_gt_u32 {S(sSPIN)}, 150")
        k(f"s_cbranch_scc1 L_end3")
        k(f"s_cbranch_vccnz {lp}")
        for q in range(4):
            k(f"buffer_load_dword {V(d+1+q)}, {V(a)}, {S(SRD_WS,4)}, {S(sT0)} offen sc1")
            k(f"s_add_u32 {S(sT0)}, {S(sT0)}, 7168")
        k.vm = []
    label("L_end3")

HZ = WK + 64
SPL = opt("spl", 0)
def helper():
    label("L_helper")
    k.forget()
    srd(SRD_W1, 48, 448 * 3584)
    srd(SRD_W2, 50, 1792 * 896)
    z = HZ
    F = WK + 112
    G = WK + 168
    t, a1, a2, aE, aO = z + 8, z + 10, z + 11, z + 12, z + 13
    IMG2 = 57344
    w2_lane_src(a1, 3584, t, t + 1)
    w2_lane_src(a2, 896, t, t + 1)
    if opt("abl", 0) & 32:
        k("s_endpgm")
    if opt("hwait", 3):
        srd(SRD_OUT, 28 if opt("hwait", 3) < 3 else 40, 2048 * 896 if opt("hwait", 3) < 3 else 448 * 512)
        k(f"s_lshl_b32 {S(sT0)}, {S(sWG)}, {16 if opt('hwait', 3) < 3 else 13}")
        k(f"v_lshlrev_b32 {V(t)}, {(8, 8, 5)[opt('hwait', 3) - 1]}, {V(vTID)}")
        if opt("hwait", 3) == 2:
            k(f"v_and_b32 {V(t)}, 0xc000, {V(t)}")
        k(f"buffer_load_dword {V(t+1)}, {V(t)}, {S(SRD_OUT,4)}, {S(sT0)} offen")
        k.wait(vm=0)
    if opt("hdelay", 0):
        k(f"s_sleep {opt('hdelay', 0)}")
    k(f"s_mul_i32 {S(sT0)}, {S(sW)}, {112*3584}")
    k(f"s_lshl_b32 {S(sT1)}, {S(sWG)}, 7")
    k(f"s_add_u32 {S(sT0)}, {S(sT0)}, {S(sT1)}")
    k(f"s_mul_i32 {S(sT3)}, {S(sW)}, 14336")
    k(f"s_mov_b32 m0, {S(sT3)}")
    for c in range(14):
        k(f"buffer_load_dwordx4 {V(a1)}, {S(SRD_W1,4)}, {S(sT0)} offen lds", tag="w1")
        k(f"s_add_u32 m0, m0, 1024")
        k(f"s_add_u32 {S(sT0)}, {S(sT0)}, {8*3584}")
    k(f"v_bfe_u32 {V(t+1)}, {V(vL)}, 2, 2")
    k(f"v_lshlrev_b32 {V(t)}, 7, {V(t+1)}")
    k(f"v_bfe_u32 {V(t+1)}, {V(vL)}, 3, 1")
    k(f"v_lshl_add_u32 {V(t)}, {V(t+1)}, 6, {V(t)}")
    k(f"v_bfe_u32 {V(t+1)}, {V(vL)}, 4, 1")
    k(f"v_lshl_add_u32 {V(t)}, {V(t+1)}, 5, {V(t)}")
    k(f"v_and_b32 {V(t+1)}, 3, {V(vL)}")
    k(f"v_lshl_add_u32 {V(t)}, {V(t+1)}, 3, {V(t)}")
    k(f"v_lshrrev_b32 {V(t+1)}, 5, {V(vL)}")
    k(f"v_lshl_add_u32 {V(a1)}, {V(t+1)}, 10, {V(t)}")
    k(f"v_lshl_add_u32 {V(aE)}, {V(t+1)}, 9, {V(t)}")
    k(f"s_lshl_b32 {S(sT0)}, {S(sCH)}, 6")
    k(f"v_xor_b32 {V(a1)}, {S(sT0)}, {V(a1)}")
    k(f"s_mul_i32 {S(sT0)}, {S(sNH)}, {2048 if SPL else 28672}")
    k(f"v_add_u32 {V(a1)}, {S(sT0)}, {V(a1)}")
    k(f"s_lshl_b32 {S(sT0)}, {S(sNH)}, 6")
    k(f"v_xor_b32 {V(aE)}, {S(sT0)}, {V(aE)}")
    k(f"v_xor_b32 {V(aO)}, 64, {V(aE)}")
    k(f"s_mul_i32 {S(sT1)}, {S(sW)}, 7")
    k(f"s_lshr_b32 {S(sT0)}, {S(sT1)}, 1")
    k(f"s_lshl_b32 {S(sT0)}, {S(sT0)}, 11")
    k(f"s_add_u32 {S(sT0)}, {S(sT0)}, {IMG2}")
    k(f"v_add_u32 {V(aE)}, {S(sT0)}, {V(aE)}")
    k(f"s_add_u32 {S(sT0)}, {S(sT1)}, 1")
    k(f"s_lshr_b32 {S(sT0)}, {S(sT0)}, 1")
    k(f"s_lshl_b32 {S(sT0)}, {S(sT0)}, 11")
    k(f"s_add_u32 {S(sT0)}, {S(sT0)}, {IMG2}")
    k(f"v_add_u32 {V(aO)}, {S(sT0)}, {V(aO)}")
    k.wait(vm=0)
    k("s_barrier")
    stamp(3)
    for ks in range(14):
        for u in range(2):
            k(f"ds_read_b64_tr_b16 {V(F+4*ks+2*u,2)}, {V(a1)} offset:{ks*(4096 if SPL else 2048)+u*512}")
    k(f"s_and_b32 {S(sHL)}, {S(sWG)}, 3")
    k(f"s_lshl3_add_u32 {S(sHL)}, {S(sHL)}, {S(sW)}")
    k(f"s_add_u32 {S(sHL)}, {S(sHL)}, 4")
    k(f"s_mul_i32 {S(sHL)}, {S(sHL)}, {56*896}")
    k(f"s_lshr_b32 {S(sHS)}, {S(sWG)}, 2")
    k(f"s_lshl_b32 {S(sHS)}, {S(sHS)}, 7")
    k(f"s_add_u32 {S(sHL)}, {S(sHL)}, {S(sHS)}")
    k(f"s_mul_i32 {S(sT3)}, {S(sW)}, 7168")
    k(f"s_add_u32 m0, {S(sT3)}, {IMG2}")
    for _ in range(7):
        k(f"buffer_load_dwordx4 {V(a2)}, {S(SRD_W2,4)}, {S(sHL)} offen lds", tag="w2")
        k(f"s_add_u32 m0, m0, 1024")
        k(f"s_add_u32 {S(sHL)}, {S(sHL)}, {8*896}")
    c, u_ = z, z + 2
    for i in range(56):
        k(f"v_dot2c_f32_bf16 {V(c)}, {S(sONES)}, {V(F+i)}")
    k(f"v_mov_b32 {V(u_)}, {V(c)}")
    k(f"v_permlane32_swap_b32 {V(c)}, {V(u_)}")
    k(f"v_add_f32 {V(c)}, {V(c)}, {V(u_)}")
    k(f"v_lshlrev_b32 {V(t)}, 2, {V(vTID)}")
    k(f"v_add_u32 {V(t)}, 0x18000, {V(t)}")
    k(f"ds_write_b32 {V(t)}, {V(c)}")
    k(f"v_xor_b32 {V(t)}, 256, {V(t)}")
    k.wait(lg=0)
    k("s_barrier")
    k(f"ds_read_b32 {V(u_)}, {V(t)}")
    k(f"s_lshl2_add_u32 {S(sT1)}, {S(sWG)}, {S(sW)}")
    k(f"s_mul_i32 {S(sT0)}, {S(sT1)}, 14336")
    k(f"s_add_u32 {S(sT0)}, {S(sT0)}, {hex(W1C)}")
    if SPL:
        k(f"s_mul_i32 {S(sT2)}, {S(sNH)}, {14336 - 1024}")
        k(f"s_sub_u32 {S(sT0)}, {S(sT0)}, {S(sT2)}")
        poll_load(vGO, vGO + 1, 0, 192, SRD_DBG)
    def fl(off):
        k("s_mov_b64 exec, 1")
        k(f"buffer_store_dword {V(vONE)}, {V(z+1)}, {S(SRD_WS,4)}, {S(sT5)} offen offset:{off} sc1")
        k("s_mov_b64 exec, -1")
    k(f"s_mul_i32 {S(sT1)}, {S(sT1)}, 7168")
    k(f"s_add_u32 {S(sT1)}, {S(sT1)}, {hex(W2T)}")
    k(f"v_add_f32 {V(c)}, {V(c)}, {V(u_)}")
    k(f"v_mul_f32 {V(c)}, {f2u(-1.0/448)}, {V(c)}")
    for i in range(56):
        tt = z + 4 + 2 * (i & 1)
        k(f"v_lshlrev_b32 {V(tt)}, 16, {V(F+i)}")
        k(f"v_and_b32 {V(tt+1)}, {S(sHIM)}, {V(F+i)}")
        pk("add", V(tt, 2), V(tt, 2), V(c, 2), bc=(1,))
        k(f"v_cvt_pk_bf16_f32 {V(F+i)}, {V(tt)}, {V(tt+1)}")
        if i % 4 == 3:
            ks = i // 4
            if SPL:
                k(f"buffer_store_dwordx4 {V(F+4*ks,4)}, {V(vL16)}, {S(SRD_WS,4)}, {S(sT0)} offen offset:{2048*(ks%2)} sc1", tag=("c", ks))
                if ks % 2 == 1:
                    k(f"s_add_u32 {S(sT0)}, {S(sT0)}, 4096")
                if ks == SPL:
                    k.wait_tag_vm(("c", 6))
                    poll_check(vGO, vGO + 1, 0, 192, SRD_DBG)
                    k("s_barrier")
                    wave0(lambda: fl(32))
                    stamp(2)
            else:
                k(f"buffer_store_dwordx4 {V(F+4*ks,4)}, {V(vL16)}, {S(SRD_WS,4)}, {S(sT0)} offen offset:{1024*(ks%4)} sc1")
                if ks % 4 == 3:
                    k(f"s_add_u32 {S(sT0)}, {S(sT0)}, 4096")
    if not SPL:
        poll_load(vGO, vGO + 1, 0, 192, SRD_DBG)
        poll_check(vGO, vGO + 1, 0, 192, SRD_DBG)
    k.wait(vm=0)
    k("s_barrier")
    wave0(lambda: fl(0))
    stamp(1)
    for i in range(7):
        for u in range(2):
            k(f"ds_read_b64_tr_b16 {V(G+4*i+2*u,2)}, {V(aO if i & 1 else aE)} offset:{(i//2)*2048+u*1024}")
    for i in range(7):
        k(f"buffer_store_dwordx4 {V(G+4*i,4)}, {V(vL16)}, {S(SRD_WS,4)}, {S(sT1)} offen offset:{1024*(i%4)} sc1")
        if i == 3:
            k(f"s_add_u32 {S(sT1)}, {S(sT1)}, 4096")
    k.wait(vm=0)
    k("s_barrier")
    wave0(lambda: fl(64))
    stamp(25)
    label("L_end2")
    if opt("hpf", 0):
        h_prefetch()
    if DIAG:
        k(f"s_lshl_b32 {S(sT0)}, {S(sWG)}, 10")
        k(f"s_add_u32 {S(sT0)}, {S(sT0)}, {hex(STAMP)}")
        k(f"v_lshlrev_b32 {V(WK)}, 2, {V(vTID)}")
        k(f"buffer_store_dword {V(vSTAMP)}, {V(WK)}, {S(SRD_WS,4)}, {S(sT0)} offen")
    k("s_endpgm")

KW = W1R
PRM = KW
TBL = KW + 8
GA = KW + 20
TA = GA + 17
vKW, vKR, vKC, vDSK = KW + 42, KW + 43, KW + 44, KW + 45

def table_words():
    def bf16v(m):
        u = struct.unpack("<I", struct.pack("<f", float(m)))[0]
        u = ((u + 0x7FFF + ((u >> 16) & 1)) >> 16) << 16
        return int(struct.unpack("<f", struct.pack("<I", u))[0])
    rowv = list(range(8)) + [256, 258, 260, 262, 512, 516, 768, 772, 1024, 1280, 1536, 1792, 2048]
    def idx(m):
        if m < 0:
            return (KC0 + 4096 + 64) // 8
        l = bf16v(m)
        r = [r for r, a in enumerate(rowv) if l >= a and (l - a) % 8 == 0 and l - a < 256][-1]
        return (r % 16) * 33 + (l - rowv[r]) // 8 + (SCR_ST // 8 if r >= 16 else 0)
    rows = []
    for lam in range(128):
        e = [idx(2047 - 16 * lam - i) for i in range(17)] + [0] * 7
        rows.append([e[2 * i] | (e[2 * i + 1] << 16) for i in range(12)])
    out = []
    for qd in range(3):
        for lam in range(128):
            out.append(rows[lam][4 * qd:4 * qd + 4])
    return out

def addr_conv():
    t0, t1, t2, t3 = KW + 100, KW + 101, KW + 102, KW + 103
    r16, g4, cc = KW + 104, KW + 105, KW + 106
    o = []
    e = o.append
    e(f"v_and_b32 {V(r16)}, 15, {V(vL)}")
    e(f"v_lshrrev_b32 {V(g4)}, 4, {V(vL)}")
    e(f"v_and_b32 {V(cc)}, 3, {V(vL)}")
    e(f"s_mul_i32 {S(sSCR)}, {S(sW)}, {SCR_ST}")
    e(f"s_add_u32 {S(sSCR)}, {S(sSCR)}, {SCR}")
    e(f"s_mul_i32 {S(sSCH)}, {S(sCH)}, {2*SCR_ST}")
    e(f"s_add_u32 {S(sSCH)}, {S(sSCH)}, {SCR}")
    e(f"v_lshl_add_u32 {V(vKW)}, {V(vL)}, 3, {S(sSCR)}")
    e(f"v_mul_u32_u24 {V(vKR)}, {ROW_ST}, {V(r16)}")
    e(f"v_lshl_add_u32 {V(vKR)}, {V(g4)}, 4, {V(vKR)}")
    e(f"v_add_u32 {V(vKR)}, {S(sSCR)}, {V(vKR)}")
    e(f"v_mul_u32_u24 {V(t0)}, 132, {V(g4)}")
    e(f"v_add_u32 {V(t0)}, {V(t0)}, {V(r16)}")
    e(f"s_lshl2_add_u32 {S(sT2)}, {S(sNH)}, {S(sSCH)}")
    e(f"v_lshl_add_u32 {V(TA)}, {V(t0)}, 3, {S(sT2)}")
    e(f"v_add_u32 {V(TA+1)}, {SCR_ST}, {V(TA)}")
    e(f"v_and_b32 {V(t0)}, 127, {V(vTID)}")
    e(f"s_add_u32 {S(sT2)}, {S(sSCH)}, {KC0}")
    e(f"v_lshl_add_u32 {V(vKC)}, {V(t0)}, 5, {S(sT2)}")
    e(f"v_lshrrev_b32 {V(t0)}, 5, {V(vL)}")
    e(f"v_bfe_u32 {V(t1)}, {V(vL)}, 2, 2")
    e(f"v_lshlrev_b32 {V(t3)}, 9, {V(t0)}")
    e(f"v_lshl_add_u32 {V(t3)}, {V(t1)}, 7, {V(t3)}")
    e(f"v_bfe_u32 {V(t1)}, {V(vL)}, 3, 1")
    e(f"v_lshl_add_u32 {V(t3)}, {V(t1)}, 6, {V(t3)}")
    e(f"v_bfe_u32 {V(t1)}, {V(vL)}, 4, 1")
    e(f"v_lshl_add_u32 {V(t3)}, {V(t1)}, 5, {V(t3)}")
    e(f"v_lshl_add_u32 {V(t3)}, {V(cc)}, 3, {V(t3)}")
    e(f"s_mul_i32 {S(sT2)}, {S(sW)}, {WREG}")
    e(f"v_add_u32 {V(vW2R)}, {S(sT2)}, {V(t3)}")
    e(f"v_xor_b32 {V(vW2R+1)}, 64, {V(vW2R)}")
    e(f"v_lshrrev_b32 {V(t0)}, 3, {V(vTID)}")
    e(f"v_and_b32 {V(t1)}, 0x70, {V(vL16)}")
    e(f"v_lshl_add_u32 {V(vCX)}, {V(t0)}, 8, {V(t1)}")
    e(f"v_lshrrev_b32 {V(t0)}, 4, {V(vTID)}")
    e(f"v_and_b32 {V(t2)}, 8, {V(vL)}")
    e(f"v_lshl_add_u32 {V(t2)}, {V(t0)}, 7, {V(t2)}")
    e(f"v_lshl_add_u32 {V(t2)}, {V(cc)}, 5, {V(t2)}")
    e(f"v_bfe_u32 {V(t1)}, {V(vL)}, 2, 1")
    e(f"v_lshl_add_u32 {V(t2)}, {V(t1)}, 4, {V(t2)}")
    e(f"v_add_u32 {V(vUW)}, {UARR+480}, {V(t2)}")
    e(f"s_mul_i32 {S(sT2)}, {S(sCH)}, {SCR_ST-1024}")
    e(f"s_add_u32 {S(sT2)}, {S(sT2)}, {SCR}")
    e(f"v_add_u32 {V(vXW)}, {S(sT2)}, {V(t2)}")
    e(f"v_and_b32 {V(t0)}, 1, {V(vL)}")
    e(f"v_xor_b32 {V(t0)}, 1, {V(t0)}")
    e(f"v_mul_u32_u24 {V(t1)}, {SCR_ST+64-2}, {V(t0)}")
    e(f"v_lshlrev_b32 {V(t2)}, 1, {V(r16)}")
    e(f"v_sub_u32 {V(t1)}, {V(t1)}, {V(t2)}")
    e(f"v_lshl_add_u32 {V(t1)}, {V(g4)}, 4, {V(t1)}")
    e(f"s_lshl_b32 {S(sT3)}, {S(sNH)}, 8")
    e(f"s_sub_u32 {S(sT2)}, {S(sSCH)}, {S(sT3)}")
    e(f"s_add_u32 {S(sT2)}, {S(sT2)}, {KC0 + 2*2031 - 512 - 192}")
    e(f"v_add_u32 {V(vKF)}, {S(sT2)}, {V(t1)}")
    for a in range(1, 4):
        e(f"v_subrev_u32 {V(vKF+a)}, {1024*a}, {V(vKF)}")
    e(f"v_lshlrev_b32 {V(t1)}, 5, {V(r16)}")
    e(f"v_lshl_add_u32 {V(t1)}, {V(g4)}, 4, {V(t1)}")
    e(f"s_mul_i32 {S(sT2)}, {S(sCH)}, {U_ST}")
    e(f"s_sub_u32 {S(sT2)}, {S(sT2)}, {S(sT3)}")
    e(f"s_add_u32 {S(sT2)}, {S(sT2)}, {UARR + 480 - 32 - 192}")
    e(f"v_add_u32 {V(vUF)}, {S(sT2)}, {V(t1)}")
    e(f"v_mov_b32 {V(vXR)}, {V(vKW)}")
    e(f"v_add_u32 {V(vEXW)}, {S(sSCR)}, {V(vL16)}")
    e(f"s_xor_b32 {S(sT2)}, {S(sW)}, 1")
    e(f"s_mul_i32 {S(sT2)}, {S(sT2)}, {SCR_ST}")
    e(f"s_add_u32 {S(sT2)}, {S(sT2)}, {SCR}")
    e(f"v_add_u32 {V(vEXR)}, {S(sT2)}, {V(vL16)}")
    e(f"v_lshrrev_b32 {V(t0)}, 3, {V(vL)}")
    e(f"v_mul_u32_u24 {V(vCO)}, 114688, {V(t0)}")
    e(f"v_and_b32 {V(t0)}, 7, {V(vL)}")
    e(f"s_and_b32 {S(sT2)}, {S(sCP)}, 1")
    e(f"s_lshl_b32 {S(sT3)}, {S(sT2)}, 2")
    e(f"v_xor_b32 {V(t0)}, {S(sT3)}, {V(t0)}")
    e(f"v_lshl_add_u32 {V(vCO)}, {V(t0)}, 4, {V(vCO)}")
    e(f"s_lshl_b32 {S(sT2)}, {S(sT2)}, 3")
    e(f"s_lshr_b32 {S(sXQi)}, {S(sCP)}, 1")
    e(f"s_lshl_b32 {S(sXQi)}, {S(sXQi)}, 14")
    e(f"s_add_u32 {S(sXQi)}, {S(sXQi)}, {S(sT2)}")
    e(f"s_add_u32 {S(sXQi)}, {S(sXQi)}, {hex(XQ)}")
    e(f"s_lshl_b32 {S(sT2)}, {S(sCP)}, 1")
    e(f"s_add_u32 {S(sT2)}, {S(sT2)}, {S(sCH)}")
    e(f"s_lshl_b32 {S(sT2)}, {S(sT2)}, 7")
    e(f"s_mul_i32 {S(sT3)}, {S(sNH)}, {8*114688}")
    e(f"s_add_u32 {S(sT2)}, {S(sT2)}, {S(sT3)}")
    e(f"v_add_u32 {V(vCO)}, {S(sT2)}, {V(vCO)}")
    e(f"v_lshlrev_b32 {V(vFP)}, 4, {V(vTID)}")
    e(f"v_max_u32 {V(vFP)}, 512, {V(vFP)}")
    e(f"s_mov_b32 {S(sPERM0)}, 0x05040100")
    e(f"s_mov_b32 {S(sPERM1)}, 0x07060302")
    e(f"s_lshl_b32 {S(sT2)}, {S(sJ)}, 2")
    e(f"s_add_u32 {S(sT2)}, {S(sT2)}, {S(sW)}")
    e(f"s_mul_i32 {S(sWL)}, {S(sT2)}, 28672")
    e(f"s_add_u32 {S(sWL)}, {S(sWL)}, {hex(W1C)}")
    e(f"s_lshr_b32 {S(sT2)}, {S(sT2)}, 1")
    e(f"s_lshl_b32 {S(sT2)}, {S(sT2)}, 7")
    e(f"s_add_u32 {S(sT2)}, {S(sT2)}, {hex(FLG_W)}")
    e(f"v_mov_b32 {V(vWF+1)}, {S(sT2)}")
    e(f"s_lshl2_add_u32 {S(sT2)}, {S(sDS)}, {S(sW)}")
    e(f"s_mul_i32 {S(sW2L)}, {S(sT2)}, 28672")
    e(f"s_add_u32 {S(sW2L)}, {S(sW2L)}, {hex(W2T)}")
    e(f"s_lshl_b32 {S(sT2)}, {S(sT2)}, 7")
    e(f"s_add_u32 {S(sT2)}, {S(sT2)}, {hex(FLG_W+64)}")
    e(f"v_mov_b32 {V(vWF+2)}, {S(sT2)}")
    e(f"s_mov_b32 {S(sLDT2)}, {S(sT2)}")
    e(f"s_mul_i32 {S(sXT)}, {S(sGAM)}, 114688")
    e(f"s_add_u32 {S(sXT)}, {S(sXT)}, {hex(X1T)}")
    z = KW + 108
    for i in range(4):
        e(f"v_mov_b32 {V(z+i)}, 0")
    e(f"v_min_u32 {V(t0)}, 29, {V(vL)}")
    e(f"v_lshlrev_b32 {V(t0)}, 4, {V(t0)}")
    e(f"v_add_u32 {V(t0)}, {UARR}, {V(t0)}")
    e(f"ds_write_b128 {V(t0)}, {V(z,4)}")
    e(f"ds_write_b128 {V(t0)}, {V(z,4)} offset:{U_ST}")
    e(f"v_and_b32 {V(t0)}, 0x70, {V(vL16)}")
    e(f"v_add_u32 {V(t0)}, {S(sSCR)}, {V(t0)}")
    e(f"ds_write_b128 {V(t0)}, {V(z,4)} offset:{KC0+4096}")
    return o

ROWST = opt("rowst", 1)
redg = lambda layer: 1088 if layer and ROWST else RED_G
def addr_ffn(layer):
    t0, t1, t2, t3 = WK + 84, WK + 85, WK + 86, WK + 87
    g4, rho, cc = WK + 88, WK + 89, WK + 90
    o = []
    e = o.append
    e(f"v_lshrrev_b32 {V(g4)}, 4, {V(vL)}")
    e(f"v_bfe_u32 {V(rho)}, {V(vL)}, 2, 2")
    e(f"v_and_b32 {V(cc)}, 3, {V(vL)}")
    e(f"v_lshrrev_b32 {V(t0)}, 5, {V(vL)}")
    e(f"v_bfe_u32 {V(t1)}, {V(vL)}, 4, 1")
    e(f"v_bfe_u32 {V(t2)}, {V(vL)}, 3, 1")
    e(f"v_lshlrev_b32 {V(t3)}, 7, {V(rho)}")
    e(f"v_lshl_add_u32 {V(t3)}, {V(t2)}, 6, {V(t3)}")
    e(f"v_lshl_add_u32 {V(vXA0)}, {V(t0)}, 10, {V(t3)}")
    e(f"v_lshl_add_u32 {V(vXA0)}, {V(cc)}, 4, {V(vXA0)}")
    e(f"v_lshl_add_u32 {V(vXA0)}, {V(t1)}, 3, {V(vXA0)}")
    e(f"v_xor_b32 {V(vXA1)}, 64, {V(vXA0)}")
    e(f"s_lshl_b32 {S(sT2)}, {S(sHH)}, 6")
    e(f"v_xor_b32 {V(t3)}, {S(sT2)}, {V(t3)}")
    e(f"s_lshl_b32 {S(sT2)}, {S(sNH)}, 5")
    e(f"s_lshl3_add_u32 {S(sT2)}, {S(sCH)}, {S(sT2)}")
    e(f"v_and_b32 {V(t0)}, 16, {V(vL16)}")
    e(f"v_add3_u32 {V(t3)}, {V(t3)}, {V(t0)}, {S(sT2)}")
    e(f"v_bfe_u32 {V(t0)}, {V(vL)}, 1, 1")
    e(f"v_mul_u32_u24 {V(vST)}, {XHALF}, {V(t0)}")
    e(f"v_lshl_add_u32 {V(vST)}, {V(g4)}, 10, {V(vST)}")
    e(f"v_add_u32 {V(vST)}, {V(vST)}, {V(t3)}")
    e(f"v_lshl_add_u32 {V(t0)}, {V(g4)}, 1, {V(t0)}")
    e(f"v_lshl_add_u32 {V(vRES)}, {V(t0)}, 10, {V(t3)}")
    e(f"s_lshl_b32 {S(sT2)}, {S(sDS)}, 13")
    e(f"v_add_u32 {V(vRES)}, {S(sT2)}, {V(vRES)}")
    e(f"s_mul_i32 {S(sT2)}, {S(sW)}, {RED_W}")
    e(f"v_add_u32 {V(vRW)}, {S(sT2)}, {V(vL16)}")
    if layer and ROWST:
        e(f"v_and_b32 {V(t0)}, 7, {V(vL)}")
        e(f"v_lshrrev_b32 {V(t2)}, 3, {V(vL)}")
        e(f"v_lshlrev_b32 {V(t1)}, 4, {V(t2)}")
        e(f"v_lshl_add_u32 {V(vAT)}, {V(t0)}, 3, {V(t2)}")
        e(f"v_lshlrev_b32 {V(vAT)}, 2, {V(vAT)}")
    else:
        e(f"v_lshrrev_b32 {V(t0)}, 3, {V(vL)}")
        e(f"v_and_b32 {V(t1)}, 0x70, {V(vL16)}")
    e(f"v_mul_u32_u24 {V(vRR)}, {redg(layer)}, {V(t0)}")
    e(f"s_lshl_b32 {S(sT2)}, {S(sW)}, 7")
    e(f"v_add3_u32 {V(vRR)}, {V(vRR)}, {V(t1)}, {S(sT2)}")
    e(f"s_and_b32 {S(sT2)}, {S(sGAM)}, 8")
    e(f"s_bfe_u32 {S(sT3)}, {S(sGAM)}, 0x20001")
    e(f"s_add_u32 {S(sT2)}, {S(sT2)}, {S(sT3)}")
    e(f"s_lshl2_add_u32 {S(sT2)}, {S(sCH)}, {S(sT2)}")
    e(f"s_lshl1_add_u32 {S(sT3)}, {S(sHH)}, {S(sNH)}")
    e(f"s_and_b32 {S(sT4)}, {S(sGAM)}, 1")
    if layer and ROWST:
        e(f"v_and_b32 {V(t2)}, 0x30, {V(t1)}")
        e(f"v_lshrrev_b32 {V(t3)}, 5, {V(vL)}")
    else:
        e(f"v_lshlrev_b32 {V(t2)}, 4, {V(cc)}")
        e(f"v_bfe_u32 {V(t3)}, {V(vL)}, 2, 1")
    if layer == 0:
        e(f"s_lshl2_add_u32 {S(sT2)}, {S(sT2)}, {S(sT3)}")
        e(f"s_lshl1_add_u32 {S(sT2)}, {S(sT2)}, {S(sT4)}")
        e(f"s_lshl_b32 {S(sT2)}, {S(sT2)}, 6")
        e(f"v_lshl_add_u32 {V(vAT)}, {V(t3)}, 2, {V(t2)}")
        e(f"v_lshrrev_b32 {V(t3)}, 5, {V(vL)}")
        e(f"v_lshl_add_u32 {V(vAT)}, {V(t3)}, 3, {V(vAT)}")
        e(f"v_add_u32 {V(vAT)}, {S(sT2)}, {V(vAT)}")
        e(f"v_lshrrev_b32 {V(t3)}, 2, {V(vL)}")
        e(f"v_lshl_add_u32 {V(vO)}, {V(t3)}, 14, {V(t2)}")
        e(f"s_lshl_b32 {S(sT5)}, {S(sDS)}, 18")
        e(f"s_add_u32 {S(sT2)}, {S(sT2)}, {S(sT5)}")
        e(f"v_add_u32 {V(vO)}, {S(sT2)}, {V(vO)}")
    else:
        e(f"s_lshl3_add_u32 {S(sT2)}, {S(sT2)}, {S(sT4)}")
        e(f"s_lshl2_add_u32 {S(sT2)}, {S(sT2)}, {S(sT3)}")
        e(f"s_lshl_b32 {S(sT2)}, {S(sT2)}, 1")
        e(f"v_add3_u32 {V(t2)}, {V(t2)}, {V(t3)}, {S(sT2)}")
        e(f"v_mul_u32_u24 {V(vO)}, 896, {V(t2)}")
        e(f"v_lshl_add_u32 {V(vO)}, {V(t0)}, 4, {V(vO)}")
        e(f"s_lshl_b32 {S(sT2)}, {S(sDS)}, 7")
        e(f"v_add_u32 {V(vO)}, {S(sT2)}, {V(vO)}")
    e(f"v_min_u32 {V(t0)}, 13, {V(vL)}")
    e(f"s_mul_i32 {S(sT2)}, {S(sW)}, 14")
    e(f"v_add_lshl_u32 {V(vF2P)}, {V(t0)}, {S(sT2)}, {GL or 4}")
    e(f"s_lshl2_add_u32 {S(sT3)}, {S(sJ)}, {S(sW)}")
    e(f"s_lshl_b32 {S(sT2)}, {S(sT3)}, {GL or 4}")
    e(f"v_mov_b32 {V(vFL)}, {S(sT2)}")
    e(f"s_mul_i32 {S(sT2)}, {S(sGAM)}, {4*112*1024}")
    e(f"s_add_u32 {S(sT2)}, {S(sT2)}, {hex(HB + layer*H_SZ)}")
    e(f"s_lshl_b32 {S(sT3)}, {S(sT3)}, 11")
    e(f"s_add_u32 {S(sHS)}, {S(sT2)}, {S(sT3)}")
    e(f"s_lshl2_add_u32 {S(sT3)}, {S(sHH)}, {S(sW)}")
    e(f"s_mul_i32 {S(sT3)}, {S(sT3)}, {28*1024}")
    e(f"s_add_u32 {S(sHL)}, {S(sT2)}, {S(sT3)}")
    e(f"s_lshl_b32 {S(sFG)}, {S(sGAM)}, {GL + 6 if GL else 11}")
    e(f"s_add_u32 {S(sFG)}, {S(sFG)}, {hex(FLG_G + layer*(8 if GL else 0x8000))}")
    e(f"s_add_u32 {S(sFP)}, {S(sFG)}, {PQ if FAST else 0}")
    if FAST and layer == 0:
        e(lambda: poll_load(vPL2, vF2P, S(sFP)))
    if layer:
        e(f"s_mov_b32 {S(SRD_OUT)}, s52")
        e(f"s_and_b32 {S(SRD_OUT+1)}, s53, 0xffff")
        e(f"s_mov_b32 {S(SRD_OUT+2)}, {hex(2048*896)}")
        e(f"s_mov_b32 {S(SRD_OUT+3)}, 0x20000")
    return o

def pk(op, d, a, b, c=None, bc=(), neg=(), emit=True):
    ops = [a, b] + ([c] if c is not None else [])
    n = len(ops)
    txt = f"v_pk_{op}_f32 {d}, " + ", ".join(ops)
    if bc:
        txt += " op_sel_hi:[" + ",".join("0" if i in bc else "1" for i in range(n)) + "]"
    if neg:
        m = "[" + ",".join("1" if i in neg else "0" for i in range(n)) + "]"
        txt += f" neg_lo:{m} neg_hi:{m}"
    if emit:
        k(txt)
    return txt

def cmul(d, a, b, t):
    assert d != a
    pk("mul", V(t, 2), V(a, 2), V(b, 2))
    pk("mul", V(t + 2, 2), V(a, 2), V(b + 2, 2))
    pk("fma", V(d, 2), V(a + 2, 2), V(b + 2, 2), V(t, 2), neg=(0,))
    pk("fma", V(d + 2, 2), V(a + 2, 2), V(b, 2), V(t + 2, 2))

NINIT = opt("ninit", 4)
NPG = opt("npg", 8)
TE = opt("te", 1)
def stub_targets():
    return ["L_ret0" if p <= 3 else "L_ret1" if p <= 5 else f"L_pg{p+2}" if p + 2 <= NPG else "L_ret2" for p in range(1, NPG + 1)]

def touch(n):
    tg = [["L_pg0" if TE else None, "L_pg1", "L_pg2", "L_pg3"], ["L_pg4", "L_pg5", "L_st0", "L_st1"],
          ["L_pg6" if NPG >= 6 else None, "L_pg7" if NPG >= 7 else None, "L_st2", "L_st3"]][n]
    k("s_mov_b64 exec, 0")
    for w in range(4):
        if tg[w]:
            k(f"s_cmp_eq_u32 {S(sW)}, {w}")
            k(f"s_cbranch_scc1 {tg[w]}")
    if n == 0 and not TE:
        k("s_branch L_ret0")
        k.raw(".p2align 12")
    k.label(f"L_ret{n}")
    k("s_mov_b64 exec, -1")

def table_loads():
    t0 = KW + 100
    k(f"v_and_b32 {V(t0)}, 127, {V(vTID)}")
    k(f"v_lshlrev_b32 {V(t0)}, 4, {V(t0)}")
    k(f"v_add_u32 {V(t0)}, L_table-L_pc+2048, {V(t0)}")
    for q in range(3):
        if q < 2:
            k(f"global_load_dwordx4 {V(TBL+4*q,4)}, {V(t0)}, {S(sPC,2)} offset:{2048*(q-1)}")
        else:
            k(f"global_load_dword {V(TBL+8)}, {V(t0)}, {S(sPC,2)} offset:2048")

def dt_setup():
    DT = KW + 46 + 12
    k.wait(lg=0)
    k(f"s_lshl_b32 {S(sT0)}, {S(sCH)}, 4")
    k(f"s_lshr_b32 {S(sLDT)}, {S(sLDT)}, {S(sT0)}")
    k(f"s_lshl_b32 {S(sLDT)}, {S(sLDT)}, 16")
    k(f"s_lshr_b32 {S(sDSK)}, {S(sDSK)}, {S(sT0)}")
    k(f"s_lshl_b32 {S(sDSK)}, {S(sDSK)}, 16")
    k(f"v_mov_b32 {V(DT)}, {f2u(1.4426950408889634)}")
    k(f"v_mul_f32 {V(DT)}, {S(sLDT)}, {V(DT)}")
    k(f"v_exp_f32 {V(DT)}, {V(DT)}")
    k(f"s_cmp_eq_u32 {S(sNH)}, 0")
    k(f"s_cselect_b32 {S(sDSK)}, {S(sDSK)}, 0")
    k(f"v_cvt_pk_bf16_f32 {V(DT)}, {V(DT)}, {V(DT)}")
    k(f"v_mov_b32 {V(vDSK)}, 0")
    k(f"v_lshlrev_b32 {V(DT)}, 16, {V(DT)}")
    k(f"v_writelane_b32 {V(vDSK)}, {S(sDSK)}, 0")

def warm_loads():
    if opt("warm", 1):
        k(f"s_sub_u32 {S(sT0)}, {S(sWG)}, 32")
        k(f"s_lshl2_add_u32 {S(sT0)}, {S(sT0)}, {S(sW)}")
        k(f"s_mul_i32 {S(sT0)}, {S(sT0)}, 1792")
        k(f"v_min_u32 {V(vDUM+1)}, 13, {V(vL)}")
        k(f"v_lshl_add_u32 {V(vDUM+1)}, {V(vDUM+1)}, 7, {S(sT0)}")
        for q in range(opt("warm", 1)):
            k(f"global_load_dword {V(vDUM)}, {V(vDUM+1)}, {S(48+2*q,2)}")
            k.vm[-1] = (set(), None)

def main_start():
    k.c("=== main workgroups")
    p0x_loads()
    if opt("pdelay", 0):
        ac0 = addr_conv()
        run(ac0, opt("pdelay", 0))
    for i in range(6):
        k(f"global_load_dword {V(PRM+i)}, {V(PRM+6)}, {S(30+2*i,2)}")
    k(f"s_lshl_b32 {S(sT0)}, {S(sCP)}, 2")
    k(f"s_load_dword {S(sLDT)}, s[42:43], {S(sT0)}")
    k(f"s_load_dword {S(sDSK)}, s[44:45], {S(sT0)}")
    k.lg = []
    srd(SRD_W2, 50, 1792 * 896)
    if opt("warmat", 2) == 0:
        warm_loads()
    if opt("tblearly", 0):
        table_loads()
    w2_lane_src(vW2S, 896, KW + 100, KW + 101)
    k(f"s_mul_i32 {S(sW2B)}, {S(sW)}, {448*896}")
    k(f"s_lshl_b32 {S(sT2)}, {S(sDS)}, 7")
    k(f"s_add_u32 {S(sW2B)}, {S(sW2B)}, {S(sT2)}")
    FREG[0] = 4
    fine("ld")
    ac = ac0 if opt("pdelay", 0) else addr_conv()
    for i in range(NINIT):
        w2_dma()
        run(ac, len(ac) // (NINIT - i))
    run(ac)
    if TE:
        touch(0)
        dt_setup()
    stamp(24)
    fine("addr")
    if opt("warmat", 2) == 1:
        warm_loads()
    p0x_body()
    if opt("warmat", 2) == 2:
        warm_loads()
    fine("p0x")
    stamp(1)
    if opt("atom0", 16) < 0:
        p0x_atomics()
        stamp(25)
    if TE:
        k("s_branch L_body")
        k.raw(".p2align 12")
        k.label("L_pg0")
        k("s_branch L_ret0")
        k("s_nop 0")
        k.label("L_body")
    else:
        touch(0)

DEF0 = opt("def0", 1)
LATE0 = W1R + 100 if DEF0 else WK + 12
def conv_load_ops(layer, h, D):
    o = [f"s_mov_b32 {S(sT0)}, {hex(STATS[layer] + 8192*h)}",
         f"s_add_u32 {S(sT3)}, {S(sXQi)}, {hex(layer*XQ_SZ + 8192*h)}"]
    for j in range(2):
        o.append(f"buffer_load_dwordx4 {V(D+4*j,4)}, {V(vCX)}, {S(SRD_WS,4)}, {S(sT0)} offen offset:{128*j} sc1")
        o.append(f"buffer_load_dwordx2 {V(D+8+2*j,2)}, {V(vCX)}, {S(SRD_WS,4)}, {S(sT3)} offen offset:{128*j} sc1")
    return o

CW = []
def kgen():
    k.c("=== K generation")
    B0 = KW + 46
    U = B0
    DT = B0 + 12
    W1_, W8_, W256 = B0 + 14, B0 + 18, B0 + 22
    T = B0 + 26
    P = [B0 + 30 + 4 * i for i in range(5)]
    CV = B0 + 50
    ACC = WK + 64
    FX, FY = (112, 144), (176, 208)
    for i in range(6):
        k(f"v_lshlrev_b32 {V(U+2*i)}, 16, {V(PRM+i)}")
        k(f"v_and_b32 {V(U+2*i+1)}, {S(sHIM)}, {V(PRM+i)}")
    if not TE:
        dt_setup()
    fine("prm")
    for i in range(4):
        pk("mul", V(U + 2 * i, 2), V(U + 2 * i, 2), V(DT, 2), bc=(1,))
    k(f"s_mov_b32 {S(sC0)}, {f2u(1.4426950408889634)}")
    pk("mul", V(U, 2), V(U, 2), S(sC0, 2), bc=(1,))
    k(f"s_mov_b32 {S(sC0)}, {f2u(0.15915494309189535)}")
    pk("mul", V(U + 2, 2), V(U + 2, 2), S(sC0, 2), bc=(1,))
    cmul(P[0], U + 8, U + 4, T)
    for (Wd, sc) in ((W1_, 1.0), (W256, 256.0), (W8_, 8.0)):
        ea, an = U + 4, U + 6
        if sc == 1.0:
            sa, sb = U, U + 2
        else:
            k(f"s_mov_b32 {S(sC0)}, {f2u(sc)}")
            pk("mul", V(ea, 2), V(U, 2), S(sC0, 2), bc=(1,))
            pk("mul", V(an, 2), V(U + 2, 2), S(sC0, 2), bc=(1,))
            sa, sb = ea, an
        for h in range(2):
            k(f"v_fract_f32 {V(an+h)}, {V(sb+h)}")
        for h in range(2):
            k(f"v_exp_f32 {V(ea+h)}, {V(sa+h)}")
        for h in range(2):
            k(f"v_cos_f32 {V(Wd+h)}, {V(an+h)}")
        for h in range(2):
            k(f"v_sin_f32 {V(Wd+2+h)}, {V(an+h)}")
        pk("mul", V(Wd, 2), V(Wd, 2), V(ea, 2))
        pk("mul", V(Wd + 2, 2), V(Wd + 2, 2), V(ea, 2))
    if not opt("goearly", 2):
        poll_load(vGO, vGO + 3, 0, 0, SRD_DBG)
    if opt("atom0", 16) == 0:
        p0x_atomics()
        stamp(25)
    fine("setup")
    cvi = [0]
    ent = [0]
    vPL = vPA
    NKD = opt("nkd", 0)
    FL0, PL0 = opt("flag0", 38), opt("poll0", 53)
    cl = conv_load_ops(0, 0, WK) + ([] if DEF0 else conv_load_ops(0, 1, LATE0))
    PCE = opt("pce", 0)
    PCT = opt("pct", 1)
    cl2 = []
    if PCT:
        cl, cl2 = [], cl
    def put(src, row, negim, extra=None):
        c = CV + 2 * (cvi[0] & 1)
        cvi[0] += 1
        n = "-" if negim else ""
        k(f"v_cvt_pk_bf16_f32 {V(c)}, {V(src)}, {V(src+1)}")
        k(f"v_cvt_pk_bf16_f32 {V(c+1)}, {n}{V(src+2)}, {n}{V(src+3)}")
        k(f"ds_write_b64 {V(vKW)}, {V(c,2)} offset:{row*ROW_ST}")
        if extra:
            k(extra)
        ent[0] += 1
        if ent[0] == opt("atom0", 16):
            p0x_atomics()
            stamp(25)
        if ent[0] == FL0:
            poll_check(vGO, vGO + 2, 0, 128, SRD_DBG)
            k("s_barrier")
            flag_all(0)
            stamp(2)
        if not opt("tblearly", 0) and ent[0] == opt("tblat", 22):
            table_loads()
        if opt("kdb", 0) and ent[0] == opt("kdb", 0):
            for _ in range(4):
                w2_dma()
        if ND[0] < NINIT + min(NKD, NKD * (ent[0] - opt("kd0", 0)) // (opt("kdspan", 42) - opt("kd0", 0))):
            w2_dma()
        if ent[0] in (opt("atom0", 16) - 1, opt("atom0", 16), FL0 - 1, FL0, 52):
            fine(f"e{ent[0]}")
        if ent[0] == PL0:
            poll_load(vPL, vFP, S(sREP))
        if ent[0] == PCE:
            poll_check(vPL, vFP, S(sREP))
            k("s_barrier")
            run(cl, 6)
    def frags(b):
        for st in range(8):
            k(f"ds_read_b128 {A(b+4*st,4)}, {V(vKR)} offset:{64*st}")
    cur = 0
    for a in range(8):
        put(P[cur], a, True)
        if a % 2 == 0:
            dst = {0: 3, 4: 4}.get(a, 2)
            cmul(P[dst], P[cur], W256, T)
            put(P[dst], 8 + a // 2, True)
        if a < 7:
            cmul(P[1 - cur], P[cur], W1_, T)
            cur = 1 - cur
    cmul(P[0], P[3], W256, T); put(P[0], 12, True)
    cmul(P[1], P[4], W256, T); put(P[1], 13, True)
    cmul(P[3], P[0], W256, T); put(P[3], 14, True)
    cmul(P[4], P[1], W256, T); put(P[4], 15, True)
    frags(FX[0])
    src, dst = 3, 0
    for row in range(5):
        cmul(P[dst], P[src], W256, T)
        put(P[dst], row, True)
        src, dst = dst, (1 - dst if dst in (0, 1) else 0)
    frags(FX[1])
    k(f"v_mov_b32 {V(CV)}, {S(sONES)}")
    k(f"v_mov_b32 {V(CV+1)}, 0")
    k(f"ds_write_b64 {V(vKW)}, {V(CV,2)}")
    cvi[0] = 1
    put(W8_, 1, False)
    cmul(P[0], W8_, W8_, T)
    cur = 0
    def mfma(n):
        yt, x, st = n // 16, (n // 8) & 1, n % 8
        d = V(ACC + 8 * yt + 4 * x, 4)
        return f"v_mfma_f32_16x16x32_bf16 {d}, {A(FX[x]+4*st,4)}, {A(FY[yt]+4*st,4)}, {d if st else 0}"
    M0 = opt("km", 0)
    for j in range(2, 32):
        put(P[cur], j % 16, False, mfma(j - 32 + M0) if j >= 32 - M0 else None)
        if j % 16 == 15:
            frags(FY[j // 16])
        if j == 15:
            stamp(3)
        if j < 31:
            cmul(P[1 - cur], P[cur], W8_, T)
            cur = 1 - cur
    assert ND[0] == NINIT + NKD and opt("pchk", 5) < 13, ND
    def tables(yt, x):
        a = ACC + 8 * yt + 4 * x
        return [f"ds_write2_b32 {V(TA+x)}, {V(a+i)}, {V(a+i+1)} offset0:{66*i+32*yt} offset1:{66*(i+1)+32*yt}" for i in (0, 2)]
    mads = []
    for n in range(17):
        sel = " op_sel:[1,0,0,0]" if n & 1 else ""
        mads.append(f"v_mad_u32_u16 {V(GA+n)}, {V(TBL+n//2)}, 8, {S(sSCH)}{sel}")
    PCK = opt("pchk", 5)
    tb = [(8, [f"v_add_f32 {V(ACC)}, {V(ACC)}, {V(vDSK)}"] + tables(0, 0)), (16, tables(0, 1)), (24, tables(1, 0))]
    for n in range(M0, 32):
        k(mfma(n))
        if n + 53 == PL0:
            poll_load(vPL, vFP, S(sREP))
        run(mads, 1)
        if n - M0 == PCK:
            if not PCE and not PCT:
                poll_check(vPL, vFP, S(sREP))
            k.wait(lg=0)
            k("s_barrier")
            fine("pbar")
            stamp(4)
        if n - M0 >= PCK:
            if (n - M0 - PCK) % opt("cls", 3) == 0 and cl:
                run(cl, 3 if cl[0].startswith("s_") else 1)
            elif (not cl or opt("cls", 3) > 2) and tb and n >= tb[0][0] + 4:
                run(tb.pop(0)[1])
    if AL:
        mads += [f"v_lshlrev_b32 {V(vFW)}, {AL-4}, {V(vFW)}", f"v_lshlrev_b32 {V(vFP)}, {AL-4}, {V(vFP)}", f"s_lshl_b32 {S(sREP)}, {S(sREP)}, {AL-4}"]
    run(mads)
    for _, o in tb:
        run(o)
    run(cl)
    if PCT:
        precmp(vPL)
    else:
        poll_load(vGO, vGO + 1, 0, 192, SRD_DBG)
    run(tables(1, 1))
    if PCT:
        poll_check(vPL, vFP, S(sREP))
    k.wait(lg=0)
    k("s_barrier")
    fine("tbar")
    stamp(6)
    GV = B0
    for e in range(17):
        if e % 4 == 0 and cl2:
            run(cl2, 3 if e == 0 else 1)
        k(f"ds_read_b64 {V(GV+2*e,2)}, {V(GA+e)}")
    if PCT:
        poll_load(vGO, vGO + 1, 0, 192, SRD_DBG)
    if opt("cpk", 0):
        CW.extend(cprep(WK, WK + 32, 0, True))
        k.wait(lg=0)
    else:
        k.wait(lg=8)
    for e in range(17):
        if e == 9 and k.lg:
            k.wait(lg=0)
        k(f"v_add_f32 {V(GV+2*e)}, {V(GV+2*e)}, {V(GV+2*e+1)}")
    fine("gath")
    if not opt("kp0", 0):
        k("s_barrier")
    O = B0 + 34
    for c in range(2):
        for kk in range(8):
            e = 2 * kk + c
            k(f"v_cvt_pk_bf16_f32 {V(O+8*c+kk)}, {V(GV+2*e)}, {V(GV+2*e+2)}")
    for c in range(2):
        for h in range(2):
            k(f"ds_write_b128 {V(vKC)}, {V(O+8*c+4*h,4)} offset:{c*(SCR_ST+64)+16*h}")
    stamp(5)

def wave0(fn):
    skip = newlab("w0")
    k(f"s_cmp_lg_u32 {S(sW)}, 0")
    saved = list(k.vm)
    k.skip_begin("s_cbranch_scc1", skip)
    fn()
    k.skip_end(skip)
    k.vm = saved

EARLY = opt("early", 0)
def apoll_load(arr):
    k(f"s_add_u32 {S(sPA)}, {S(sREP)}, {hex(FA(arr))}")
    poll_load(vPA, vFP, S(sPA))

def apoll_check():
    poll_check(vPA, vFP, S(sPA))

def aflag(arr):
    flag_all(FA(arr))

def bar():
    k.wait(lg=0)
    k("s_barrier")

CACC, CKR, CXU, CXR = WK, WK + 32, WK + 96, WK + 104
def cprep(D, T, h, defer=False):
    UU, O, RAW, EPS = T, T + 4, T + 8, CXR
    k(f"s_mov_b32 {S(sC0)}, {f2u(1.0/448)}")
    k(f"s_mov_b32 {S(sC1)}, {f2u(1e-5)}")
    k(f"v_mov_b32 {V(EPS)}, {S(sC1)}")
    for j in range(2):
        M, Q, X = D + 4 * j, D + 4 * j + 2, D + 8 + 2 * j
        pk("mul", V(M, 2), V(M, 2), S(sC0, 2), bc=(1,))
        pk("fma", V(Q, 2), V(Q, 2), S(sC0, 2), V(EPS, 2), bc=(1, 2))
        pk("fma", V(Q, 2), V(M, 2), V(M, 2), V(Q, 2), neg=(0,))
        for b in range(2):
            k(f"v_max_f32 {V(Q+b)}, {S(sC1)}, {V(Q+b)}")
        for b in range(2):
            k(f"v_rsq_f32 {V(Q+b)}, {V(Q+b)}")
        for b in range(2):
            k(f"v_lshlrev_b32 {V(UU+b)}, 16, {V(X+b)}")
            k(f"v_and_b32 {V(UU+2+b)}, {S(sHIM)}, {V(X+b)}")
        pk("mul", V(M, 2), V(M, 2), V(Q, 2))
        for c in range(2):
            pk("fma", V(UU + 2 * c, 2), V(UU + 2 * c, 2), V(Q, 2), V(M, 2), neg=(2,))
            k(f"v_perm_b32 {V(RAW+2*c+j)}, {V(X+1)}, {V(X)}, {S(sPERM0+c)}")
        for c in range(2):
            k(f"v_cvt_pk_bf16_f32 {V(O+2*c+j)}, {V(UU+2*c)}, {V(UU+2*c+1)}")
    w = [f"ds_write_b64 {V(vUW)}, {V(O+2*c,2)} offset:{c*U_ST + 2048*h}" for c in range(2)]
    w += [f"ds_write_b64 {V(vXW)}, {V(RAW+2*c,2)} offset:{c*2*SCR_ST + 1024*h}" for c in range(2)]
    if defer:
        return w
    run(w)

def k_ops(I, s, reg):
    o = (128 if I % 2 == 0 else 0) + 16 * (3 - s)
    r = (V if reg[0] == "v" else A)
    return [f"ds_read2_b32 {r(reg[1]+2*h,2)}, {V(vKF+I//2)} offset0:{o+2*h} offset1:{o+2*h+1}" for h in range(2)]

def k_preload():
    return [t for s in range(4) for I in range(4) for t in k_ops(I, s, ("v", CKR + 16 * s + 4 * I))]

def conv(layer):
    k.c("=== conv")
    ACC, XU, XR = CACC, CXU, CXR
    mf = []
    for s in range(4):
        mf += [(0, s, Jp, I) for Jp in range(3, -1, -1) for I in range(4 - Jp)]
    for s in range(3, -1, -1):
        mf += [(1, s, Jp, I) for I in range(7, 0, -1) for Jp in range(4) if 4 <= Jp + I <= 7]
    for s in range(4):
        mf += [(2, s, Jp, I) for Jp in range(7, 3, -1) for I in range(8 - Jp)]
    assert len(mf) == 144
    ukey = lambda p, s, Jp: ("u", 0 if (p == 1 and s == 3) else p, s, Jp)
    kkey = lambda s, I: ("k", s, I)
    first, last = {}, {}
    for n, (p, s, Jp, I) in enumerate(mf):
        for key in (ukey(p, s, Jp), kkey(s, I)):
            first.setdefault(key, n)
            last[key] = n
    reg = {kkey(s, I): ("v", CKR + 16 * s + 4 * I) for s in range(4) for I in range(4)}
    KP0 = opt("kp0", 0)
    items = sorted((key for key in first if not (key in reg and (layer or key[1] < KP0))), key=lambda x: first[x])
    XB, XS = opt("xb", 40), opt("xs", 41)
    CPL, CPB = opt("cpl", 104), opt("cpb", 104)
    assert DEF0
    slots = [("a", AX + 4 * i) for i in range(8)] + [("v", WK + 108), ("v", ACC + 12)][:opt("xslot", 2)]
    slot_free = ([-1] * 9 + [XB + 4])[:len(slots)]
    RG = lambda r: (V if r[0] == "v" else A)(r[1], 4)
    queue = []
    issued = {}
    def issue(n, budget):
        c = 0
        while True:
            if not queue:
                if not items:
                    return c
                key = items[0]
                if not (first[key] <= n + 2 or (c < budget and first[key] <= n + 20)):
                    return c
                if key[0] == "u" and key[1] == 2 and n < CPB:
                    return c
                if key not in reg:
                    fr = [i for i in range(len(slots)) if slot_free[i] < n]
                    if not fr:
                        assert first[key] > n, (n, key)
                        return c
                    slot_free[fr[0]] = last[key]
                    reg[key] = slots[fr[0]]
                items.pop(0)
                if key[0] == "u":
                    queue.append((key, f"ds_read_b128 {RG(reg[key])}, {V(vUF)} offset:{512*key[3] + 64*(3-key[2])}"))
                else:
                    queue.extend((key, t) for t in k_ops(key[2], key[1], reg[key]))
            elif not (first[queue[0][0]] <= n + 2 or c < budget):
                return c
            key, t = queue.pop(0)
            k(t, tag=key)
            issued[key] = n
            c += 1
    def xblock(ph, packed, addfirst=False):
        l1, lj = newlab("x1"), newlab("xj")
        k(f"s_cmp_eq_u32 {S(sNH)}, 1")
        h0 = list(k.hist)
        k(f"s_cbranch_scc1 {l1}")
        for hf in range(2):
            if hf:
                k.label(l1)
                k.hist = h0
                k.lg = k.lg[:-2]
            a = ACC + 16 * ph
            def adds():
                for i in range(4 if packed else 8):
                    if packed:
                        pk("add", V(XU + 2 * i, 2), V(XU + 2 * i, 2), V(a + 8 * hf + 2 * i, 2))
                    else:
                        k(f"v_add_f32 {V(XU+i)}, {V(XU+i)}, {V(a+8*hf+i)}")
            if addfirst:
                adds()
            for jl in range(2):
                k(f"ds_write_b128 {V(vEXW)}, {V(a+8*(1-hf)+4*jl,4)} offset:{2048+1024*jl}", tag="ex")
            if not addfirst:
                adds()
            if not hf:
                k(f"s_branch {lj}")
        k.label(lj)
    def wait_lg(tag):
        idx = [i for i, p in enumerate(k.lg) if p[2] == tag]
        if idx:
            k.wait(lg=len(k.lg) - 1 - idx[-1])
    def res_ops(ph):
        o = [f"ds_read_b64_tr_b16 {V(XR+2*jl,2)}, {V(vXR)} offset:{1024*ph + 512*jl}" for jl in range(2)]
        o += [None] * 6
        for i in range(4):
            o += [f"v_lshlrev_b32 {V(XU+2*i)}, 16, {V(XR+i)}", f"v_and_b32 {V(XU+2*i+1)}, {S(sHIM)}, {V(XR+i)}"]
        return o
    def recv_ops():
        return [f"ds_read_b128 {V(ACC+4*jl,4)}, {V(vEXR)} offset:{2048+1024*jl}" for jl in range(2)]
    def out_ops(ph, packed):
        if packed:
            o = [f"v_pk_add_f32 {V(XU+2*i,2)}, {V(XU+2*i,2)}, {V(ACC+2*i,2)}" for i in range(4)]
        else:
            o = [f"v_add_f32 {V(XU+i)}, {V(XU+i)}, {V(ACC+i)}" for i in range(8)]
        o += [f"v_cvt_pk_bf16_f32 {V(ACC+8+i)}, {V(XU+2*i)}, {V(XU+2*i+1)}" for i in range(4)]
        o.append(f"s_mov_b32 {S(sT1)}, {hex(X1T + layer*XQ_SZ + 57344*ph)}")
        o.append((f"buffer_store_dwordx4 {V(ACC+8,4)}, {V(vCO)}, {S(SRD_WS,4)}, {S(sT1)} offen sc1", ("cst", ph)))
        return o
    if layer == 0:
        if not opt("pct", 1):
            poll_check(vGO, vGO + 1, 0, 192, SRD_DBG)
        if opt("pw1", 50) < 0:
            poll_load(vWF, vWF + 1, 0)
        if CW:
            run(CW)
        elif KP0:
            bar()
            run(k_preload()[:8 * KP0])
            cprep(WK, WK + 12, 0)
        else:
            cprep(WK, WK + 32, 0)
        if opt("pct", 1):
            poll_check(vGO, vGO + 1, 0, 192, SRD_DBG)
        stamp(7)
        if not DEF0:
            cprep(WK + 12, WK + 44, 1)
    bar()
    if layer and EARLY and opt("fl", 4) < 0:
        aflag(F_CIN1[1])
    fine("cbar")
    FREG[0] = 3
    fine("start")
    stamp(9)
    bg = []
    if layer == 0:
        n1, n2 = opt("w1conv", 18), opt("w2conv", 0)
        bg = [w2_dma] * (28 - ND[0])
        def c1():
            if not opt("abl", 0) & 8:
                poll_check(vWF, vWF + 1, 0, 32 if SPL else 0)
            w1_load()
        def p1b():
            poll_load(vWF, vWF + 1, 0)
            w1_load()
        def c1b():
            assert NW1[0] == 14
            poll_check(vWF, vWF + 1, 0)
            w1_load()
        def p2():
            poll_load(vWF, vWF + 2, 0)
            w1_load()
        def c2():
            if not opt("abl", 0) & 16:
                poll_check(vWF, vWF + 2, 0)
            if n2:
                w2_load()
        w = [c1] + [w1_load] * (n1 - 1)
        if SPL:
            assert n1 > 14 and not n2 and opt("pw1", 50) >= 0
            w[opt("p1b", 6)], w[14] = p1b, c1b
        pos = max(1, n1 - n2 - 7)
        if n2:
            w[pos] = p2
        t = w[:n1 - n2]
        for i in range(n2):
            t += [c2 if i == 0 else w2_load] + w[n1 - n2 + i: n1 - n2 + i + 1]
        if opt("bgord", 0) == 0:
            bg += t
        elif opt("bgord", 0) == 1:
            bg = t + bg
        else:
            m = []
            while bg or t:
                m += t[:1] + bg[:1]
                t, bg = t[1:], bg[1:]
            bg = m
    nbg = len(bg)
    BG0 = opt("bg0", 4)
    step = max(1, (opt("bg1", 138) - BG0) / max(1, nbg))
    side = []
    lastbg = -9
    seen = set()
    CL, FE, PE = opt("cl", XS), opt("fe", 100), opt("pe", 128)
    for n, (p, s, Jp, I) in enumerate(mf):
        if n == CPL:
            assert not side and (layer or NW1[0] <= 25)
            stamp(10)
            side += [(o, "lw") for o in cprep(LIN if layer else LATE0, ACC, 1, True)]
            if CPB == CPL:
                run(side)
        if n == CPB:
            assert not side
            if FE >= CPB:
                k.wait_tag_vm(("cst", 0))
            wait_lg("lw")
            k("s_barrier")
            if FE >= CPB:
                aflag(F_X1[layer][0])
            stamp(12)
        cnt = issue(n, (12 if layer == 0 and not KP0 else 5) if n == 0 else 5 if n == CPB else 0 if XB < n <= XS and opt("xq", 0) else 1)
        uk, kk = ukey(p, s, Jp), kkey(s, I)
        tags = [q[2] for q in k.lg]
        if uk in tags or kk in tags:
            cand = [i for i, q in enumerate(tags) if q in (uk, kk) or (q in first and first[q] <= n + 3 and issued[q] <= n - 7)]
            k.wait(lg=len(tags) - 1 - max(cand))
        J = Jp + I
        d = V(ACC + 4 * J, 4)
        k(f"v_mfma_f32_16x16x32_bf16 {d}, {RG(reg[uk])}, {RG(reg[kk])}, {d if J in seen else 0}")
        seen.add(J)
        if n == opt("ll0", 8) and layer == 0 and DEF0:
            side += conv_load_ops(0, 1, LATE0)
        if n == 18:
            side += res_ops(0)
        if n == 122:
            side[0:0] = res_ops(1)
        if layer == 0 and n == opt("pw1", 50):
            poll_load(vWF, vWF + 1, 0, 32 if SPL else 0)
        if layer and EARLY and n == opt("fl", 4):
            k.wait_tag_vm(("st", 1))
            k("s_barrier")
            aflag(F_CIN1[1])
        if layer and n == opt("pcl", 0):
            apoll_load(F_CIN1[1])
        if n == XB:
            assert not side
            xblock(0, bool(opt("xpk", 1)), bool(opt("xaf", 0)))
        if layer and n == CL - 2:
            precmp(vPA)
        if layer and n == CL and CL != XS:
            apoll_check()
            k("s_barrier")
            side += conv_load_ops(1, 1, LIN)
        if n == XS:
            if layer and CL == XS:
                apoll_check()
            wait_lg("ex")
            k("s_barrier")
            run(recv_ops())
            if layer and CL == XS:
                side += conv_load_ops(1, 1, LIN)
        if n == XS + opt("xo", 4):
            run(side)
            run(out_ops(0, bool(opt("xpk", 1))))
        if n == FE and FE < CPB:
            k.wait_tag_vm(("cst", 0))
            k("s_barrier")
            aflag(F_X1[layer][0])
        if n == PE:
            apoll_load(F_X1[layer][0])
        if n in (0, 19, 39, 47, 55, 63, 71, 87, 103, 104, 123, 143):
            fine(f"m{n}")
        if side:
            run(side, 2 if cnt == 0 else 1)
        elif bg and n >= BG0 + step * (nbg - len(bg)) and (cnt == 0 or n >= BG0 + 2 + step * (nbg - len(bg))):
            run(bg, 1)
    assert not items and not queue and not any(x and "v_" in x[:2] for x in side)
    run(side)
    run(bg)
    stamp(13)
    PX = opt("px", 2) if PE > 143 else -1
    if PX == 0:
        apoll_load(F_X1[layer][0])
    xblock(1, True)
    bar()
    run(recv_ops())
    if PX == 1:
        apoll_load(F_X1[layer][0])
    o = out_ops(1, True)
    run(o, len(o) - 1)
    if PX == 2:
        apoll_load(F_X1[layer][0])
    run(o)
    fine("store")
    stamp(11)
    if layer == 0:
        n = min(opt("w1a", 4), 28 - NW1[0])
        k.wait_tag_vm(("w2", 27))
        tr = w2_tr_ops(0, 14)
        for i in range(n):
            w1_load()
            run(tr, len(tr) // (n - i))
        run(tr)
    apoll_check()
    bar()
    fine("pollE")
    stamp(14)

def layer_turn():
    FREG[0] = 5
    fine("T")
    kp = k_preload()
    run(kp, opt("kpre", 32))
    fine("kpre")
    apoll_check()
    k("s_barrier")
    fine("chk")
    stamp(20)
    run(conv_load_ops(1, 0, WK))
    k.wait_tag_vm(("st", 1))
    k("s_barrier")
    aflag(F_CIN1[1])
    fine("flag")
    run(kp)
    touch(2)
    fine("touch")
    stamp(21)
    if opt("pcl.1", 0) < 0:
        k.wait(vm=0)
        apoll_load(F_CIN1[1])
    w = cprep(WK, WK + 12, 0, True)
    fine("prep")
    run(w)
    if FREG[0] == opt("fine", 0):
        k.wait(lg=0)
        fine("wr")
    LAY[0] = 1

G2RES = WK + 100
G2R = WK + 108

GB = 4 if GL else 1024
def gflag_ops(half, local):
    return ["s_mov_b64 exec, 1",
            f"buffer_store_dword {V(vONE)}, {V(vFL)}, {S(SRD_WS,4)}, {S(sFP if local else sFG)} offen offset:{GB*half}" + ("" if local else " sc1"),
            "s_mov_b64 exec, -1"]

def gflag(layer, half):
    run(gflag_ops(half, FAST))

def gcheck(half, pre=()):
    if FAST:
        poll_check(vPL2, vF2P, S(sFP), GB * half, pre=gflag_ops(half, False), alt=(vHL, S(sFG)))
    else:
        poll_check(vPL2, vF2P, S(sFG), GB * half, pre=pre)

def ffn(layer):
    k.c("=== GEMM1")
    FREG[0] = 1
    fine("start")
    ACC = WK
    EP = WK + 64
    vXS = WK + 80
    vB0, vB1 = WK + 81, WK + 82
    if layer:
        k(f"s_add_u32 {S(sXT)}, {S(sXT)}, {hex(XQ_SZ)}")
    k(f"v_add_u32 {V(vXS)}, {S(sXT)}, {V(vL16)}")
    k(f"s_lshl_b32 {S(sT0)}, {S(sW)}, 10")
    k(f"s_mov_b32 m0, {S(sT0)}")
    nx = [0]
    def dma():
        d = nx[0]
        nx[0] += 1
        k(f"buffer_load_dwordx4 {V(vXS)}, {S(SRD_WS,4)}, m0 offen sc1 lds", tag=("x", d))
        if d == 13:
            k(f"v_subrev_u32 {V(vXS)}, 32, {V(vXS)}")
        if d < 27:
            k(f"s_add_u32 m0, m0, {4096 + (32 if d == 13 else 0)}")
    NUP = opt("nup", 9)
    af = addr_ffn(layer)
    FXL = opt("fxl", 6)
    for st in range(NUP):
        dma()
        if st >= 1:
            run(af, opt("afr", 11))
        if st == FXL:
            k.wait_tag_vm(("cst", 1))
            k("s_barrier")
            aflag(F_X1[layer][1])
    af += [f"v_add_u32 {V(vB0)}, {XHALF}, {V(vXA0)}", f"v_add_u32 {V(vB1)}, {XHALF}, {V(vXA1)}"]
    W2CHK = [layer == 0 and NW2[0] == 0]
    if W2CHK[0]:
        k(f"v_mov_b32 {V(WK+97)}, {S(sLDT2)}")
        poll_load(WK + 96, WK + 97, 0)
    if layer == 0:
        touch(1)
    SKA = opt("ska", 10)
    mf = [(0, q, ks) for ks in range(28 - SKA) for q in range(2)]
    mf += [(0, q, ks) for q in range(2) for ks in range(28 - SKA, 28)]
    SK = opt("skb", 18)
    mf += [(1, q, ks) for ks in range(28 - SK) for q in range(2)]
    mf += [(1, q, ks) for q in range(2) for ks in range(28 - SK, 28)]
    NR = 8
    LEAD = opt("g1lead", 7)
    bars = [[2, 5, 9, 14, 16, 19, 23, 28], [1, 3, 6, 9, 14, 17, 21, 28], [2, 5, 9, 14, 18, 23, 28], [2, 6, 14, 20, 28]][opt("bars", 0)]
    ready = [0]
    def rd(n):
        half, q, ks = mf[n]
        st = 14 * half + ks // 2
        if st >= ready[0]:
            nb = [b for b in bars if b > st][0]
            assert nx[0] >= nb, (n, nb, nx[0])
            k.wait_tag_vm(("x", nb - 1))
            k("s_barrier")
            if ready[0] == 0 and FXL >= NUP:
                aflag(F_X1[layer][1])
            ready[0] = nb
        va = ((vXA0, vXA1), (vB0, vB1))[half][q]
        for u in range(2):
            k(f"ds_read_b64_tr_b16 {A(AX+4*(n%NR)+2*u,2)}, {V(va)} offset:{ks*2048+u*512}", tag=("f", n))
        rdat[n] = cur[0]
    rdat, cur, lastw = {}, [-9], [-9]
    def epi(tile):
        ops = []
        e = EP + 8 * (tile & 1)
        for a in range(2):
            for i in range(4):
                ops.append(f"v_cvt_pk_bf16_f32 {V(e+4*a+i)}, {V(ACC+16*tile+8*a+2*i)}, {V(ACC+16*tile+8*a+2*i+1)}")
            for i in range(4):
                ops.append(f"v_pk_max_i16 {V(e+4*a+i)}, {V(e+4*a+i)}, 0")
            if a == 0:
                ops.append(f"s_add_u32 {S(sT1)}, {S(sHS)}, {tile*112*1024}")
            ops.append((f"buffer_store_dwordx4 {V(e+4*a,4)}, {V(vL16)}, {S(SRD_WS,4)}, {S(sT1)} offen offset:{1024*a} sc1", ("h", tile)))
        return ops
    F = WK
    ONE4, DS_, DQ = WK + 84, WK + 88, WK + 92
    srd_ = [f"ds_read_b64_tr_b16 {V(F+4*ks+2*u,2)}, {V(vST)} offset:{ks*4096+u*512}" for ks in range(14) for u in range(2)]
    ring = [("a", AX + 4 * i) for i in range(8)] + [("v", WK + 64 + 4 * i) for i in range(5)]
    NR2 = opt("g2ring", 11)
    ring = ring[:NR2]
    rn = lambda i: (V if ring[i % NR2][0] == "v" else A)(ring[i % NR2][1], 4)
    nl = [0]
    def ld():
        i = nl[0]
        nl[0] += 1
        half, s = divmod(i, 28)
        if s % 4 == 0:
            k(f"s_add_u32 {S(sT4)}, {S(sHL)}, {half*2*112*1024 + s*1024}")
        k(f"buffer_load_dwordx4 {rn(i)}, {V(vL16)}, {S(SRD_WS,4)}, {S(sT4)} offen offset:{1024*(s%4)} sc1" + (" nt" if opt("hnt", 0) else ""))
        if layer == 0 and NW2[0] < 28 and i >= opt("w2l0", 0) and (i - opt("w2l0", 0)) % opt("w2ls", 1) == 0:
            w2_load()
    CHKA = opt("chkA", 999)
    HOLD = opt("hold", 0)
    held = []
    sentB = False
    pend = af
    nrd = 0
    for n in range(opt("lead0", LEAD)):
        rd(nrd); nrd += 1
    stamp(27)
    cur[0] = 0
    PXL, CXL = opt("pxl", 10), opt("cxl", 28)
    LB = opt("leadb", 4)
    BUD, CVM, CST, CRD = opt("bud", 28), opt("cvm", 12), opt("cst", 24), opt("crd", 4)
    MINL = opt("minl", 5)
    for n, (half, q, ks) in enumerate(mf):
        tile = 2 * half + q
        d = V(ACC + 16 * tile, 16)
        assert NW1[0] > ks, "W1 fragment used before its load"
        k(f"v_mfma_f32_32x32x16_bf16 {d}, {V(W1R+4*ks,4)}, {A(AX+4*(n%NR),4)}, {d if ks else 0}")
        if n == 56 - SKA + opt("ed", 2):
            pend += epi(0)
        if n == 56 + opt("ed", 2):
            pend += epi(1)
        if n == 112 - SK + opt("ed", 2):
            e2 = epi(2)
            if HOLD:
                held = [o for o in e2 if isinstance(o, tuple) or o.startswith("s_")]
                e2 = [o for o in e2 if o not in held]
            pend += e2
        b = BUD
        tags = [p[2] for p in k.lg]
        needw = ("f", n + 1) in tags
        if needw:
            b -= 4
        def newbar(m):
            return 14 * mf[m][0] + mf[m][2] // 2 >= ready[0]
        def may(m):
            if m < len(mf) and opt("mrg", 1) and ready[0] == 9 and newbar(m) and n < CXL <= m - 4:
                return False
            return m < len(mf) and m <= n + (LB if m == 56 else LEAD)
        if n == PXL:
            apoll_load(F_X1[layer][1]); b -= CVM + 4
        if n == CXL - 1:
            assert PRECMP[0] is None
            precmp(vPA); b -= 8
        if n == CXL:
            apoll_check()
            if nx[0] == 14 and ready[0] < 14:
                k.wait_tag_vm(("x", 13))
                ready[0] = 14
            k("s_barrier")
            stamp(28); b -= 20
        if n == opt("pollA", 109):
            poll_load(vPL2, vF2P, S(sFP)); b -= CVM
        if n == opt("flagA", 91):
            k.wait_tag_vm(("h", 1))
            gflag(layer, 0); b -= CVM + 12
        if n == CHKA:
            assert opt("flagA", 91) < opt("pollA", 109) < n
            gcheck(0); b -= 12
        if n >= max(CHKA, 104) and nl[0] <= n - 104 and nrd == len(mf) and (n - CHKA) % opt("hstep", 2) == 0:
            ld(); b -= CVM
        while may(nrd) and nrd <= n + MINL - 1:
            b -= 2 * CRD + (12 if newbar(nrd) else 0)
            rd(nrd); nrd += 1
        full = b >= BUD - 4
        if pend and isinstance(pend[0], tuple):
            if full or b >= CST:
                run(pend, 1); b -= CST
        elif full or b >= CVM + 4:
            if nx[0] < 14 and opt("astep", 3) * (nx[0] - NUP) <= n:
                dma(); b -= CVM + 4
            elif n >= CXL and nx[0] < 28 and opt("bstep", 2) * (nx[0] - 14 - opt("bburst", 1)) <= n - CXL:
                dma(); b -= CVM + 4
            elif layer == 0 and n >= lastw[0] + opt("w1step", 2) and NW1[0] < 28:
                w1_load(); b -= CVM; lastw[0] = n
            elif layer == 0 and NW1[0] == 28 and NW2[0] < opt("w2g1", 28) and n >= lastw[0] + opt("w2step", 2) and (n < CXL - opt("w2gap", 1) or nx[0] >= opt("w2x", 28)) and n < opt("w2end", 999):
                if W2CHK[0]:
                    assert PRECMP[0] is None
                    poll_check(WK + 96, WK + 97, 0)
                    W2CHK[0] = False
                w2_load(); b -= CVM; lastw[0] = n
        while True:
            if may(nrd) and b >= 2 * CRD and (nrd <= n + MINL + 1 or not pend or isinstance(pend[0], tuple)):
                b -= 2 * CRD + (12 if newbar(nrd) else 0)
                rd(nrd); nrd += 1
            elif pend and not isinstance(pend[0], tuple) and b >= 4:
                run(pend, 1); b -= 4
            elif nrd == len(mf) and len(srd_) > 12 and b >= CRD and n > 72:
                run(srd_, 1); b -= CRD
            else:
                break
        if needw:
            tags = [p[2] for p in k.lg]
            tgt = ("f", n + 2) if ("f", n + 2) in tags and rdat[n + 2] <= n - opt("wage", 3) else ("f", n + 1)
            idx = [i for i, t_ in enumerate(tags) if t_ == tgt]
            if idx:
                k.wait(lg=len(tags) - 1 - idx[-1])
        cur[0] = n + 1
        assert nrd > n + 1 or nrd == len(mf)
        if n % 8 == 0 or n == 111:
            fine(f"m{n}")
        if opt("g1st", 0) and n in (55, 83):
            stamp({55: 29, 83: 31}[n])
    assert not pend and nx[0] == 28 and NW1[0] == 28 and not W2CHK[0], (pend, nx, NW1)
    FREG[0] = 2
    fine("g1end")
    run(srd_, len(srd_) - 4)
    for i in range(4):
        k(f"v_mov_b32 {V(ONE4+i)}, {S(sONES)}")
    e3 = epi(3)
    if CHKA <= 111:
        held += [o for o in e3 if isinstance(o, tuple) or o.startswith("s_")]
        e3 = [o for o in e3 if o not in held]
        n_pre = opt("hpre", 7) - nl[0]
        for i in range(n_pre):
            ld()
            run(e3, len(e3) // (n_pre - i))
    run(e3)
    run(held)
    if FAST:
        run(gflag_ops(0, False))
    fine("epi3")
    stamp(15)
    run(srd_)
    for h in range(2):
        for u in range(2):
            k(f"ds_read_b64_tr_b16 {V(G2RES+4*h+2*u,2)}, {V(vRES)} offset:{h*XHALF+u*512}")
    if CHKA > 111:
        gcheck(0, ["s_waitcnt vmcnt(0)"] + gflag_ops(1, False))
    fine("pollA")
    stamp(17)
    st = []
    for ks in range(14):
        st.append(f"v_mfma_f32_16x16x32_bf16 {V(DQ,4)}, {V(F+4*ks,4)}, {V(F+4*ks,4)}, {V(DQ,4) if ks else 0}")
        st.append(f"v_mfma_f32_16x16x32_bf16 {V(DS_,4)}, {V(ONE4,4)}, {V(F+4*ks,4)}, {V(DS_,4) if ks else 0}")
    vS, vQ, vT = DS_, ONE4, ONE4 + 1
    post = ["s_mov_b32 vcc_lo, 0x00100001", "s_mov_b32 vcc_hi, 0x10000100",
            f"v_cndmask_b32 {V(vQ)}, 0, {V(DQ)}, vcc"]
    for i in range(1, 4):
        post += ["s_lshl_b64 vcc, vcc, 1", f"v_cndmask_b32 {V(vQ)}, {V(vQ)}, {V(DQ+i)}, vcc"]
    post += [f"v_mov_b32 {V(vT)}, {V(vQ)}", f"v_mul_f32 {V(vS)}, {f2u(1.0/448)}, {V(vS)}", None,
             f"v_permlane32_swap_b32 {V(vQ)}, {V(vT)}", f"v_add_f32 {V(vQ)}, {V(vQ)}, {V(vT)}",
             f"v_mov_b32 {V(vT)}, {V(vQ)}", None, None,
             f"v_permlane16_swap_b32 {V(vQ)}, {V(vT)}", f"v_add_f32 {V(vQ)}, {V(vQ)}, {V(vT)}",
             f"v_mul_f32 {V(vQ)}, {f2u(1.0/448)}, {V(vQ)}",
             f"v_fma_f32 {V(vQ)}, -{V(vS)}, {V(vS)}, {V(vQ)}",
             f"v_max_f32 {V(vQ)}, 0, {V(vQ)}",
             f"v_add_f32 {V(vQ)}, {f2u(1e-5)}, {V(vQ)}",
             f"v_rsq_f32 {V(vQ)}, {V(vQ)}", None,
             f"v_mov_b32 {V(G2R)}, {V(vQ)}",
             f"v_mov_b32 {V(G2R+2)}, {V(vQ)}", None, None,
             f"v_mov_b32_dpp {V(G2R)}, {V(vQ)} row_ror:8 row_mask:0xf bank_mask:0xc",
             f"v_mov_b32_dpp {V(G2R+2)}, {V(vQ)} row_ror:8 row_mask:0xf bank_mask:0x3"]

    k.c("=== GEMM2")
    NR = NR2
    def red_write(half):
        return [f"ds_write_b128 {V(vRW)}, {V(ACC+32*half+4*G,4)} offset:{half*RED_H+G*redg(layer)}" for G in range(8)]
    def red_read(half):
        return [f"ds_read_b128 {V(ACC+32*half+8*w+4*g,4)}, {V(vRR)} offset:{half*RED_H+w*RED_W+512*g}" for w in range(4) for g in range(2)]
    def unpack(half, u):
        o = []
        for i in range(4):
            o.append(f"v_lshlrev_b32 {V(u+2*i)}, 16, {V(G2RES+4*half+i)}")
            o.append(f"v_and_b32 {V(u+2*i+1)}, {S(sHIM)}, {V(G2RES+4*half+i)}")
        return o
    UR = WK + 84
    def fin(half, pre):
        a = ACC + 32 * half
        u = UR
        ops = []
        def P(d, x, y):
            if pre:
                ops.append(f"v_pk_add_f32 {V(d,2)}, {V(x,2)}, {V(y,2)}")
            else:
                ops.extend(f"v_add_f32 {V(d+h)}, {V(x+h)}, {V(y+h)}" for h in range(2))
        for i in range(4):
            P(a + 2 * i, a + 2 * i, a + 8 + 2 * i)
        for i in range(4):
            P(a + 16 + 2 * i, a + 16 + 2 * i, a + 24 + 2 * i)
        for i in range(4):
            P(a + 2 * i, a + 2 * i, a + 16 + 2 * i)
        for i in range(4):
            if pre:
                ops.append(f"v_pk_fma_f32 {V(a+2*i,2)}, {V(a+2*i,2)}, {V(G2R+2*half,2)}, {V(u+2*i,2)} op_sel_hi:[1,0,1]")
            else:
                ops.extend(f"v_fma_f32 {V(a+2*i+h)}, {V(a+2*i+h)}, {V(G2R+2*half)}, {V(u+2*i+h)}" for h in range(2))
        for i in range(4):
            ops.append(f"v_cvt_pk_bf16_f32 {V(a+24+i)}, {V(a+2*i)}, {V(a+2*i+1)}")
        if layer == 0:
            ops += quad_shuffle([(a + 28, a + 24)])
            ops.append(f"s_mov_b32 {S(sT1)}, {hex(XQ + XQ_SZ + 8192*half)}")
            if half and opt("pt", 1) == 2:
                ops.append(lambda: apoll_load(F_CIN1[0]))
            ops.append((f"buffer_store_dwordx4 {V(a+28,4)}, {V(vO)}, {S(SRD_WS,4)}, {S(sT1)} offen sc1", ("st", half)))
            so = stats_ops(a + 24, 4, a, a + 1, a + 2)
            if not pre:
                so = so[10:]
                for i in range(4):
                    ops.append(f"v_lshlrev_b32 {V(a+16+2*i)}, 16, {V(a+24+i)}")
                    ops.append(f"v_and_b32 {V(a+16+2*i+1)}, {S(sHIM)}, {V(a+24+i)}")
                ops.append(f"v_add_f32 {V(a)}, {V(a+16)}, {V(a+17)}")
                ops.append(f"v_mul_f32 {V(a+1)}, {V(a+16)}, {V(a+16)}")
                for i in range(1, 8):
                    if i > 1:
                        ops.append(f"v_add_f32 {V(a)}, {V(a)}, {V(a+16+i)}")
                    ops.append(f"v_fmac_f32 {V(a+1)}, {V(a+16+i)}, {V(a+16+i)}")
            ops += so
            def at():
                k(f"s_mov_b32 {S(sT1)}, {hex(STATS[1] + 8192*half)}")
                k("s_mov_b32 exec_lo, 0xff")
                k("s_mov_b32 exec_hi, 0xff")
                k(f"buffer_atomic_add_f32 {V(a)}, {V(vAT)}, {S(SRD_WS,4)}, {S(sT1)} offen sc1", tag=("st", half))
                k("s_mov_b64 exec, -1")
            ops.append(at)
        else:
            ops.append(f"s_mov_b32 {S(sT1)}, {1024*896*half}")
            ops.append(f"buffer_store_dwordx4 {V(a+24,4)}, {V(vO)}, {S(SRD_OUT,4)}, {S(sT1)} offen" + ("", " sc1", " nt", " sc0 sc1")[opt(f"osc{half}", 2)])
        return ops
    NUP2 = opt("nup2", NR)
    for i in range(nl[0], NUP2):
        ld()
        run(st, (len(st) + NUP2 - i - 1) // (NUP2 - i))
        if i == opt("flagB", 7):
            k.wait_tag_vm(("h", 3))
            gflag(layer, 1)
            sentB = True
    assert not st
    fine("up2")
    stamp(16)
    PB = opt("pollB", 7)
    TL = opt("tl", 4)
    order = [(i, dt) for i in range(56 - TL) for dt in range(2)] + [(i, dt) for dt in range(2) for i in range(56 - TL, 56)]
    bar()
    GAP = "gap"
    pend = [GAP] * 2 + [GAP if o is None else o for o in post]
    if layer and ROWST:
        pend += [f"ds_bpermute_b32 {V(r)}, {V(vAT)}, {V(r)}" for r in list(range(G2RES, G2RES + 8)) + [G2R, G2R + 2]] + [GAP] * 3
    pend += unpack(0, UR)
    okB = False
    flagE = layer == 1
    BUD2 = opt("bud2", 24)
    for n, (i, dt) in enumerate(order):
        half, s = divmod(i, 28)
        d = V(ACC + 32 * half + 16 * dt, 16)
        assert NW2[0] + 28 > s * 2 + dt, "W2 fragment used before its load"
        k(f"v_mfma_f32_32x32x16_bf16 {d}, {A((s*2+dt)*4,4)}, {rn(i)}, {d if s else 0}")
        b = (BUD2 if i < 28 else opt("bud3", BUD2)) - (4 if dt else 0)
        if dt == 0 and i < 56 - TL:
            if i + NUP2 == opt("flagB", 7):
                k.wait_tag_vm(("h", 3))
                gflag(layer, 1)
                sentB = True
                b = 0
            if FAST and i and i == opt("qb", 29):
                assert sentB and i <= opt("red0", 29) + 2
                run(gflag_ops(1, False))
                b = 0
            if i == PB:
                poll_load(vPL2, vF2P, S(sFP), GB)
                assert sentB
                b -= 14
            if nl[0] == 28 and not okB and i > PB and (i >= opt("chkB", 99) or not any(f"v{vPL2}" in p[0] for p in k.vm[1:])):
                assert not pend
                precmp(vPL2)
                okB = None
        if dt == 1 and okB is None:
            gcheck(1)
            if FAST and not opt("qb", 29):
                pend += [GAP, lambda: run(gflag_ops(1, False))]
            okB = True
            b -= 4
        if dt == 1 and i < 56 - TL:
            if i in (13, 27, 41):
                stamp({13: 8, 27: 23, 41: 26}[i])
            if i == opt("red0", 29):
                for o in red_write(0):
                    pend += [o] + [GAP] * opt("rwg", 1)
                pend += [GAP] * opt("rw2", 1) + [bar] + red_read(0) + [GAP] * opt("rr2", 2) + fin(0, False) + unpack(1, UR)
        assert i < 56 - TL or nl[0] == 56
        if nl[0] < 56 and nl[0] - NR < i + dt and (nl[0] < 28 or okB) and (dt or opt("catch", 1)):
            ld()
            b -= 14
        while pend and not (layer and nl[0] < 56 and "buffer_store" in str(pend[0])):
            o = pend[0]
            if o is GAP:
                pend.pop(0)
                break
            cost = 8 if str(o).startswith("ds_read") else 12 if str(o).startswith("ds_bperm") else 4
            if b < cost and not str(o).startswith("ds_write"):
                break
            run(pend, 1)
            b -= cost if isinstance(o, str) else 16
        if n == opt("flagE", 104) and layer == 0:
            assert not any("atomic" in str(o) or callable(o) for o in pend)
            k.wait_tag_vm(("st", 0))
            k("s_barrier")
            aflag(F_CIN1[0])
            flagE = True
        if EARLY and layer == 0 and n == opt("pollE", 108):
            assert flagE
            apoll_load(F_CIN1[0])
        if n % 10 == 1:
            fine(f"m{n}")
        if n == 112 - TL - 1:
            assert not pend
            pend += ["s_nop 3", GAP, "s_nop 3", GAP]
            for o in red_write(1)[:4]:
                pend += [o, GAP]
    run([o for o in pend if o is not GAP])
    assert nl[0] == 56 and okB
    stamp(18)
    run(red_write(1)[4:])
    if not flagE:
        k.wait_tag_vm(("st", 0))
    if layer == 0 and opt("pt", 1) == 0:
        apoll_load(F_CIN1[0])
    bar()
    if not flagE:
        aflag(F_CIN1[0])
    fine("bar")
    run(red_read(1))
    if layer == 0 and opt("pt", 1) == 1:
        apoll_load(F_CIN1[0])
    run(fin(1, True))
    fine("out")
    stamp(19)

def finish():
    if ENC >= 0:
        k.wait(vm=0)
        stamp(22)
        k(f"s_cmp_lg_u32 {S(sWG)}, 100")
        k("s_cbranch_scc1 L_end")
        k("s_sub_u32 s47, s47, s46" if ENC else "s_sub_u32 s47, s46, s46")
        k("s_mul_i32 s47, s47, 100")
        k("s_min_u32 s47, s47, 1000000")
        k(f"s_memrealtime {S(sTM,2)}")
        k.wait(lg=0)
        k(f"s_mov_b32 s46, {S(sTM)}")
        k.label("L_spin")
        k(f"s_memrealtime {S(sTM,2)}")
        k.wait(lg=0)
        k(f"s_sub_u32 {S(sT0)}, {S(sTM)}, s46")
        k(f"s_cmp_lt_u32 {S(sT0)}, s47")
        k("s_cbranch_scc1 L_spin")
    if DIAG:
        if not opt("noend", 0):
            k.wait(vm=0)
        stamp(22)
        for n, (name, r) in enumerate(FINE):
            k(f"v_writelane_b32 {V(vSTAMP)}, s{r}, {20 + n}")
        k(f"v_writelane_b32 {V(vSTAMP)}, s101, 61")
        k.raw("; SITES " + " ".join(SITES))
        if FINE:
            k.raw("; FINE " + " ".join(n for n, _ in FINE))
        k(f"s_lshl_b32 {S(sT0)}, {S(sWG)}, 10")
        k(f"s_add_u32 {S(sT0)}, {S(sT0)}, {hex(STAMP)}")
        k(f"s_lshl_b32 {S(sT1)}, {S(sW)}, 8")
        k(f"v_lshl_add_u32 {V(WK)}, {V(vL)}, 2, {S(sT1)}")
        k(f"buffer_store_dword {V(vSTAMP)}, {V(WK)}, {S(SRD_WS,4)}, {S(sT0)} offen")
    k.label("L_end")
    k("s_endpgm")

prologue()
main_start()
kgen()
conv(0)
ffn(0)
layer_turn()
conv(1)
ffn(1)
finish()
cut = [i for i, l in enumerate(SLOW) if l.startswith("L_slow")]
NS = opt("ns", 4)
first = len(cut) - 10
for n, i in enumerate(cut):
    if n >= first and (n - first) % 3 == 0 and (n - first) // 3 < 4:
        k.raw(f"L_st{(n - first) // 3}:")
        k.raw(f"    s_branch L_ret{1 + (n - first) // 6}")
    for l in SLOW[i:(cut + [len(SLOW)])[n + 1]]:
        k.raw(l)
SLOW.clear()
LAY[0] = 0
helper()
body = list(k.lines) + SLOW
body += [".p2align 4", ".type L_table,@object", "L_table:"]
body += [".long " + ",".join(hex(w) for w in r) for r in table_words()]
body += ["L_table_end:"]

DOC = """;
; One persistent launch, one workgroup per CU (generated by the author's own script).
;   rows of x -> channel-major copy + row sums (atomics)        [hand-off to every workgroup]
;   K[l] = Re sum_n C dB exp(dt A bf16(l)): the 641 distinct exponents as a 21 x 32 outer sum, summed over
;          the modes with MFMA, expanded to two shifted Toeplitz copies in LDS (Dskip folded into lag 0)
;   2 x { LayerNorm -> causal Toeplitz MFMA conv + residual     [hand-off to every workgroup]
;         GEMM1 (mean folded into centred W1) -> ReLU           [hand-off inside a 14-workgroup row group]
;         GEMM2 * rstd + residual, row sums for the next norm } [hand-off to every workgroup]
; Hand-offs: sc1 stores -> vmcnt -> (barrier) -> sc1 flag; consumers poll with sc1 loads (bounded retry
; loops after the main code).  All flag words are cleared inside the launch (d_debug carries the 'cleared'
; words).  Row-group flags have a plain-store twin that is seen sooner on the same die; a consumer that
; does not see the twin falls back to the device-wide word, so placement only affects speed.
"""
ref = open("cdna_kernels/%s.s.ref" % NAME).read().splitlines()
hdr = [l for l in ref if l.startswith(";") and "@launch" not in l]
head = f""".amdgcn_target "amdgcn-amd-amdhsa--gfx950"
.text
.globl {NAME}_kernel
.p2align 8
.type {NAME}_kernel,@function
{NAME}_kernel:
"""
if opt("align", 1):
    body = align(body, head, stubs=stub_targets())
out = "\n".join(hdr) + f"\n; @launch grid=(256,1,1) block=(256,1,1) lds={LDS_BYTES}\n"
out += DOC + head + "\n".join(body) + "\n"
out += f""".section .rodata,"a"
.p2align 6
.amdhsa_kernel {NAME}_kernel
  .amdhsa_next_free_vgpr 512
  .amdhsa_next_free_sgpr 102
  .amdhsa_accum_offset 256
  .amdhsa_group_segment_fixed_size 0
  .amdhsa_kernarg_size 120
  .amdhsa_user_sgpr_count 2
  .amdhsa_user_sgpr_kernarg_segment_ptr 1
  .amdhsa_system_sgpr_workgroup_id_x 1
.end_amdhsa_kernel
"""
dst = [a for a in sys.argv[1:] if not a.startswith("--")]
dst = dst[0] if dst else "cdna_kernels/%s.s" % NAME
open(dst, "w").write(out)
print("instructions:", k.nins, "->", dst)
```

```python
import sys, struct
from emit import Asm, V, A, S
from align import align

NAME = "interleave_layers__ssm_conv_s4__dense_activation_relu__prompt"
DIAG = "--diag" in sys.argv
OPT = {"pe.0": 142, "pxl.0": 18, "cxl.0": 36, "pxl.1": 11, "nup.1": 11, "astep.1": 1, "cxl.1": 30, "pollB.0": 10, "pollB.1": 9, "bud3.0": 44,
       "cpl.1": 88, "cpb.1": 94, "fe.1": 94, "pe.1": 138}
for a in sys.argv:
    if a.startswith("--") and "=" in a:
        n, v = a[2:].split("=")
        OPT[n] = int(v)
LAY = [0]
def opt(n, d):
    return OPT.get(f"{n}.{LAY[0]}", OPT.get(n, d))

def f2u(x):
    return "0x%08x" % struct.unpack("<I", struct.pack("<f", x))[0]

GL, AL = opt("gl", 5), opt("al", 0)
FA = (lambda n: 0x8000 + 4 * n if n else 0) if AL else (lambda n: n * 0x8000)
F_CIN0, F_X1, F_CIN1 = 0, ((1, 2), (5, 6)), (3, 4)
FLG_G = 0x8000 + (2048 << AL if AL else 0x30000)
FAST = opt("fast", 1)
PQ = 1024 << GL
ZEND = FLG_G + (PQ if FAST else 0) + (1024 << GL if GL else 0x10000) + 0x8000
STATS = (0x1804000, ZEND - 0x8000)
XQ = 0x1820000
XQ_SZ = 0x1C0000
X1T = 0x3E0000
HB = 0x760000
H_SZ = 0 if opt("hreuse", 0) else 0x700000
W1C = 0x1560000
FLG_W = ZEND - 0x4000
STAMP = 0x1700000
W2T = 0x1740000
WS_BYTES = 0x1BA0000

XHALF = 57344 + 32
SCR = 114816
SCR_ST = 8960
KC0 = 4608
ROW_ST = 544
UARR = SCR + 4 * SCR_ST
U_ST = 4576
LDS_BYTES = 163840
WREG = 28672
RED_G = 1152
RED_W = 8 * RED_G
RED_H = 4 * RED_W

sWG, sW = 2, 3
SRD_WS, SRD_OUT, SRD_W1, SRD_W2, SRD_X0, SRD_DBG = 4, 8, 12, 16, 20, 24
sCP, sGAM, sJ, sHH, sDS, sROT = 58, 59, 60, 61, 62, 63
sONES, sHIM = 64, 65
sT0, sT1, sT2, sT3, sT4, sT5 = 66, 67, 68, 69, 70, 71
sLDT, sDSK = 72, 73
sREP, sXQi, sW2B, sXT, sHL, sHS, sFG = 74, 75, 76, 77, 78, 79, 80
sSPIN = 81
sC0, sC1 = 82, 83
sPC = 84
sTM = 86
sWL = 88
sW2O = 89
sSCR, sSCH = 90, 95
sPERM0, sPERM1 = 91, 92
sNH, sCH = 93, 94
sXS = 100
sLDT2 = 99
sFP = 98
sKO = 28
sW2L, sPA = 96, 97

vTID, vL, vL16 = 0, 1, 2
vCX, vUW, vXW = 3, 4, 5
vKF = 6
vUF, vXR, vCO, vEXW, vEXR = 10, 11, 12, 13, 14
vFW, vFP, vONE, vSTAMP, vPA = 15, 16, 17, 18, 19
vXA0, vXA1, vST, vRES, vRW, vRR, vO, vAT, vF2P, vFL, vHL, vPL2 = range(20, 32)
vW2S, vW2R, vWF, vDUM = 20, 21, 23, 26
LIN = 20
WK = 32
W1R = 144
AX = 224

k = Asm()
SPIN_MAX = 1 << 16

ENC = opt("enc", -1)
def stamp(idx, cyc=False):
    if ENC >= 0 and not cyc and idx + 32 * LAY[0] in (0, ENC):
        k.wait(lg=0)
        k(f"s_memrealtime {S(sTM,2)}")
        k.wait(lg=0)
        k(f"s_mov_b32 {S(46 if idx + 32*LAY[0] == 0 else 47)}, {S(sTM)}")
    if not DIAG:
        return
    if opt("lite", 0) and idx + 32 * LAY[0] not in (0, 9, 14, 19, 46, 54):
        return
    k.wait(lg=0)
    k(f"{'s_memtime' if cyc != bool(opt('cyc', 0)) else 's_memrealtime'} {S(sTM,2)}")
    k.wait(lg=0)
    k(f"v_writelane_b32 {V(vSTAMP)}, {S(sTM)}, {idx + 32*LAY[0]}")

FINE = []
def fine(name):
    if not DIAG or opt("fine", 0) != FREG[0] or opt("finel", 1) != LAY[0]:
        return
    regs = list(range(28, 46, 2)) + [12, 14, 20, 22, 48, 50, 54, 56] + ([] if FREG[0] == 4 else [24, 26])
    r = regs[len(FINE)]
    FINE.append((name, r))
    k.raw(f"    s_memtime s[{r}:{r+1}]")
FREG = [0]

def srd_base(base, ptr):
    k(f"s_mov_b32 {S(base)}, {S(ptr)}")
    k(f"s_and_b32 {S(base+1)}, {S(ptr+1)}, 0xffff")

def srd(base, ptr, nbytes):
    k(f"s_mov_b32 {S(base)}, {S(ptr)}")
    k(f"s_and_b32 {S(base+1)}, {S(ptr+1)}, 0xffff")
    k(f"s_mov_b32 {S(base+2)}, {hex(nbytes)}")
    k(f"s_mov_b32 {S(base+3)}, 0x20000")

_lab = [0]
def newlab(p):
    _lab[0] += 1
    return f"L_{p}_{_lab[0]}"

def branch(op, lab):
    k.fence(1)
    k(f"{op} {lab}")

def label(lab):
    k.fence()
    k.label(lab)

def poll_load(vtmp, vaddr, soff, off=0, srdn=SRD_WS):
    pol = "nt" if FAST and opt("pnt", 0) and soff == S(sFP) else "sc1"
    k(f"buffer_load_dword {V(vtmp)}, {V(vaddr)}, {S(srdn,4)}, {soff} offen offset:{off} {pol}")

PRECMP = [None]
def precmp(vtmp):
    if opt("pre", 1):
        k(f"v_cmp_eq_u32 vcc, 0, {V(vtmp)}")
        PRECMP[0] = vtmp
SLOW = []
SITES = []
def poll_check(vtmp, vaddr, soff, off=0, srdn=SRD_WS, pre=(), alt=None):
    sl, lp, ok = newlab("slow"), newlab("poll"), newlab("ok")
    if PRECMP[0] != vtmp:
        k(f"v_cmp_eq_u32 vcc, 0, {V(vtmp)}")
    PRECMP[0] = None
    k(f"s_cbranch_vccnz {sl}")
    k.label(ok)
    import inspect
    SITES.append(inspect.stack()[2 if inspect.stack()[1].function == "apoll_check" else 1].function + str(LAY[0]))
    slp = opt("sl_" + SITES[-1], opt("sleep", 0))
    if opt("pipe", 3) and vaddr == vFP:
        ld_ = lambda r: f"    buffer_load_dword {V(r)}, {V(vaddr)}, {S(srdn,4)}, {soff} offen offset:{off} sc1"
        SLOW.extend([f"{sl}:"] + ([f"    s_bitset1_b32 s101, {len(SITES)-1}"] if DIAG else []) +
                    [ld_(vtmp), f"    s_mov_b32 {S(sSPIN)}, 0", f"    s_sleep {opt('pipe', 3)}", f"{lp}:",
                     ld_(vTID), f"    s_add_u32 {S(sSPIN)}, {S(sSPIN)}, 1", "    s_waitcnt vmcnt(1)",
                     f"    v_cmp_eq_u32 vcc, 0, {V(vtmp)}", f"    s_cmp_gt_u32 {S(sSPIN)}, {SPIN_MAX}",
                     f"    s_cbranch_vccz {ok}",
                     ld_(vtmp), "    s_waitcnt vmcnt(1)",
                     f"    v_cmp_eq_u32 vcc, 0, {V(vTID)}",
                     f"    s_cbranch_scc1 {ok}",
                     f"    s_cbranch_vccnz {lp}",
                     f"    s_branch {ok}"])
        return
    SLOW.extend([f"{sl}:"] + ([f"    s_bitset1_b32 s101, {len(SITES)-1}"] if DIAG else []) +
                ([f"    s_mov_b32 {S(sSPIN)}, 0",
                  f"{lp}q:",
                  f"    buffer_load_dword {V(vtmp)}, {V(vaddr)}, {S(srdn,4)}, {soff} offen offset:{off} sc1",
                  f"    s_add_u32 {S(sSPIN)}, {S(sSPIN)}, 1",
                  "    s_waitcnt vmcnt(0)",
                  f"    v_cmp_eq_u32 vcc, 0, {V(vtmp)}",
                  f"    s_cmp_lt_u32 {S(sSPIN)}, 10",
                  f"    s_cbranch_vccz {ok}",
                  f"    s_cbranch_scc1 {lp}q"] if alt else []) +
                ["    " + p for p in pre] +
                [f"    s_mov_b32 {S(sSPIN)}, 0",
                 f"{lp}:"] +
                ([f"    s_sleep {slp}"] if slp else []) +
                [f"    buffer_load_dword {V(vtmp)}, {V(vaddr)}, {S(srdn,4)}, {soff} offen offset:{off} sc1",
                 f"    s_add_u32 {S(sSPIN)}, {S(sSPIN)}, 1"] +
                ([f"    buffer_load_dword {V(alt[0])}, {V(vaddr)}, {S(srdn,4)}, {alt[1]} offen offset:{off} sc1"] if alt else []) +
                ["    s_waitcnt vmcnt(0)"] +
                ([f"    v_or_b32 {V(vtmp)}, {V(vtmp)}, {V(alt[0])}"] if alt else []) +
                [
                 f"    v_cmp_eq_u32 vcc, 0, {V(vtmp)}",
                 f"    s_cmp_gt_u32 {S(sSPIN)}, {SPIN_MAX}",
                 f"    s_cbranch_scc1 {ok}",
                 f"    s_cbranch_vccnz {lp}",
                 f"    s_branch {ok}"])

def run(ops, n=None):
    c = 0
    while ops and (n is None or c < n):
        o = ops.pop(0)
        if callable(o):
            o()
        elif isinstance(o, tuple):
            k(o[0], tag=o[1])
        elif o is not None:
            k(o)
        c += 1

def stats_ops(P, n, vS, vQ, vT):
    o = [f"v_mov_b32 {V(vS)}, 0", f"v_mov_b32 {V(vQ)}, 0"]
    for i in range(n):
        o.append(f"v_dot2c_f32_bf16 {V(vS)}, {S(sONES)}, {V(P+i)}")
        o.append(f"v_dot2c_f32_bf16 {V(vQ)}, {V(P+i)}, {V(P+i)}")
    o += [f"v_permlane32_swap_b32 {V(vS)}, {V(vQ)}",
          f"v_add_f32 {V(vS)}, {V(vS)}, {V(vQ)}",
          f"v_mov_b32 {V(vT)}, {V(vS)}",
          f"v_permlane16_swap_b32 {V(vS)}, {V(vT)}",
          f"v_add_f32 {V(vS)}, {V(vS)}, {V(vT)}",
          f"v_add_f32_dpp {V(vS)}, {V(vS)}, {V(vS)} row_ror:8 row_mask:0xf bank_mask:0xf",
          f"v_lshrrev_b32 {V(vT)}, 1, {V(vS)}",
          f"v_add_u32 {V(vQ)}, {hex(8 << 23)}, {V(vS)}",
          f"v_add_u32 {V(vT)}, {hex(0x1FC00000 + (13 << 23))}, {V(vT)}",
          f"v_permlane32_swap_b32 {V(vT)}, {V(vQ)}",
          f"v_and_b32 {V(vQ)}, 0x7f800000, {V(vQ)}",
          f"v_mul_f32 {V(vQ)}, 0x3fc00000, {V(vQ)}",
          f"v_add_f32 {V(vS)}, {V(vS)}, {V(vQ)}",
          f"v_sub_f32 {V(vS)}, {V(vS)}, {V(vQ)}"]
    return o

def quad_shuffle(pairs):
    D = " row_mask:0xf bank_mask:0xf"
    o = ["s_mov_b32 vcc_lo, 0x0f0f0f0f", "s_mov_b32 vcc_hi, 0x0f0f0f0f"]
    for d, s in pairs:
        o.append(f"v_cndmask_b32_dpp {V(d)}, {V(s+2)}, {V(s)}, vcc row_ror:4" + D)
        o.append(f"v_cndmask_b32_dpp {V(d+2)}, {V(s+3)}, {V(s+1)}, vcc row_ror:4" + D)
    o.append("s_not_b64 vcc, vcc")
    for d, s in pairs:
        o.append(f"v_cndmask_b32_dpp {V(d+1)}, {V(s)}, {V(s+2)}, vcc row_ror:12" + D)
        o.append(f"v_cndmask_b32_dpp {V(d+3)}, {V(s+1)}, {V(s+3)}, vcc row_ror:12" + D)
    return o

X0R = WK
X0O = WK + 8
vP0A = WK + 16
vP0S = WK + 20
vGO = WK + 28

def p0x_addr(part):
    t = vP0A
    if part:
        return p0x_addr2()
    k.c("row re-layout unit of this wave: W = 4m+w, octet group a = W%7, rows (blk, j2) = W/7, both hh8")
    k(f"s_lshl2_add_u32 {S(sT0)}, {S(sT0)}, {S(sW)}")
    k(f"s_mul_i32 {S(sT1)}, {S(sT0)}, 9363")
    k(f"s_lshr_b32 {S(sT1)}, {S(sT1)}, 16")
    k(f"s_mul_i32 {S(sT2)}, {S(sT1)}, 7")
    k(f"s_sub_u32 {S(sT0)}, {S(sT0)}, {S(sT2)}")
    k(f"s_lshr_b32 {S(sT2)}, {S(sT1)}, 2")
    k(f"s_lshl_b32 {S(sT2)}, {S(sT2)}, 6")
    k(f"s_and_b32 {S(sT3)}, {S(sT1)}, 3")
    k(f"s_lshl1_add_u32 {S(sT2)}, {S(sT3)}, {S(sT2)}")
    k(f"v_and_b32 {V(t+1)}, 0x30, {V(vL16)}")
    k(f"v_bfe_u32 {V(t)}, {V(vL)}, 2, 1")
    k(f"v_add3_u32 {V(t+3)}, {V(t+1)}, {V(t)}, {S(sT2)}")
    k(f"v_mul_u32_u24 {V(t+3)}, 896, {V(t+3)}")
    k(f"v_lshrrev_b32 {V(t+2)}, 3, {V(vL)}")
    k(f"v_lshl_add_u32 {V(t+3)}, {V(t+2)}, 4, {V(t+3)}")
    k(f"s_lshl_b32 {S(sT2)}, {S(sT0)}, 7")
    k(f"v_add_u32 {V(t+3)}, {S(sT2)}, {V(t+3)}")

def p0x_addr2():
    t = vP0A
    k(f"v_lshl_add_u32 {V(t)}, {V(t)}, 2, {V(t+1)}")
    k(f"v_lshrrev_b32 {V(t+2)}, 5, {V(vL)}")
    k(f"v_lshl_add_u32 {V(t)}, {V(t+2)}, 3, {V(t)}")
    k(f"v_and_b32 {V(t+2)}, 16, {V(vL)}")
    k(f"v_lshl_add_u32 {V(t)}, {V(t+2)}, 2, {V(t)}")
    k(f"s_lshl_b32 {S(sT2)}, {S(sT1)}, 7")
    k(f"v_add_u32 {V(t)}, {S(sT2)}, {V(t)}")
    k(f"v_lshrrev_b32 {V(t+2)}, 2, {V(vL)}")
    k(f"v_lshl_add_u32 {V(t+1)}, {V(t+2)}, 14, {V(t+1)}")
    k(f"s_lshl_b32 {S(sT0)}, {S(sT0)}, 18")
    k(f"s_lshl_b32 {S(sT1)}, {S(sT1)}, 7")
    k(f"s_add_u32 {S(sT0)}, {S(sT0)}, {S(sT1)}")
    k(f"v_add_u32 {V(t+1)}, {S(sT0)}, {V(t+1)}")

def p0x_loads():
    k(f"buffer_load_dwordx4 {V(X0R,4)}, {V(vP0A+3)}, {S(SRD_X0,4)}, 0 offen")
    k(f"buffer_load_dwordx4 {V(X0R+4,4)}, {V(vP0A+3)}, {S(SRD_X0,4)}, {S(sT4)} offen")

def p0x_body():
    t = vP0A
    if opt("goearly", 2) == 1:
        k.wait(vm=len(k.vm) - 2)
        poll_load(vGO, vGO + 3, 0, 0, SRD_DBG)
    run(quad_shuffle([(X0O + 4 * a, X0R + 4 * a) for a in range(2)]))
    k(f"s_mov_b32 {S(sT0)}, {hex(XQ)}")
    for a in range(2):
        k(f"buffer_store_dwordx4 {V(X0O+4*a,4)}, {V(t+1)}, {S(SRD_WS,4)}, {S(sT0)} offen offset:{64*a} sc1")
    s0 = stats_ops(X0R, 4, vP0S, vP0S + 1, vP0S + 2)
    s1 = stats_ops(X0R + 4, 4, vP0S + 2, vP0S + 3, vP0S + 4)
    for _ in range(12):
        run(s0, 1)
        run(s1, 1)
    run(s0[1:])
    if opt("goearly", 2) == 2:
        poll_load(vGO, vGO + 3, 0, 0, SRD_DBG)

def p0x_atomics():
    poll_check(vGO, vGO + 3, 0, 0, SRD_DBG)
    k(f"s_mov_b32 {S(sT0)}, {hex(STATS[0])}")
    k("s_mov_b32 exec_lo, 0x00ff00ff")
    k("s_mov_b32 exec_hi, 0x00ff00ff")
    k(f"buffer_atomic_add_f32 {V(vP0S)}, {V(vP0A)}, {S(SRD_WS,4)}, {S(sT0)} offen sc1", tag="st")
    k("s_mov_b64 exec, -1")
    poll_load(vGO, vGO + 2, 0, 128, SRD_DBG)
    if opt("warmat", 2) == 3:
        warm_loads()

def flag_all(off):
    k(f"s_mov_b32 {S(sT0)}, {hex(off)}")
    k(f"s_mov_b64 exec, 3")
    k(f"buffer_store_dword {V(vONE)}, {V(vFW)}, {S(SRD_WS,4)}, {S(sT0)} offen sc1")
    k(f"s_mov_b64 exec, -1")

ND = [0]
def w2_dma():
    d = ND[0]
    ND[0] += 1
    if opt("abl", 0) & 2:
        return
    if opt("rot", 1):
        if d == 0:
            k(f"s_and_b32 {S(sROT)}, {S(sWG)}, 7")
            k(f"s_min_u32 {S(sROT)}, {S(sROT)}, 6")
            k(f"s_mul_i32 {S(sXS)}, {S(sW)}, {WREG}")
        elif d % 4 == 0:
            k(f"s_add_u32 {S(sROT)}, {S(sROT)}, 1")
            k(f"s_cmp_eq_u32 {S(sROT)}, 7")
            k(f"s_cselect_b32 {S(sROT)}, 0, {S(sROT)}")
        if d % 4 == 0:
            k(f"s_lshl_b32 {S(sT4)}, {S(sROT)}, 12")
            k(f"s_add_u32 m0, {S(sT4)}, {S(sXS)}")
            k(f"s_mul_i32 {S(sW2O)}, {S(sT4)}, 7")
            k(f"s_add_u32 {S(sW2O)}, {S(sW2O)}, {S(sW2B)}")
        else:
            k(f"s_add_u32 {S(sW2O)}, {S(sW2O)}, {7168 - 1024}")
        k(f"buffer_load_dwordx4 {V(vW2S)}, {S(SRD_W2,4)}, {S(sW2O)} offen offset:{1024*(d%4)} lds", tag=("w2", d))
        return
    if d == 0:
        k(f"s_mul_i32 {S(sT4)}, {S(sW)}, {WREG}")
        k(f"s_mov_b32 m0, {S(sT4)}")
    elif d % 4 == 0:
        k(f"s_add_u32 m0, m0, 4096")
    if d:
        k(f"s_add_u32 {S(sW2B)}, {S(sW2B)}, {7168 - 1024 + (4096 if d % 4 == 0 else 0)}")
    k(f"buffer_load_dwordx4 {V(vW2S)}, {S(SRD_W2,4)}, {S(sW2B)} offen offset:{1024*(d%4)} lds", tag=("w2", d))

NW2 = [0]
def w2_load():
    n = NW2[0]
    NW2[0] += 1
    if opt("abl", 0) & 4:
        return
    k(f"buffer_load_dwordx4 {A(112+4*n,4)}, {V(vL16)}, {S(SRD_WS,4)}, {S(sW2L)} offen offset:{1024*(n%4)} sc1")
    if n % 4 == 3:
        k(f"s_add_u32 {S(sW2L)}, {S(sW2L)}, 4096")

def w2_tr_ops(lo, hi):
    return [f"ds_read_b64_tr_b16 {A((s*2+dt)*4+2*u,2)}, {V(vW2R+dt)} offset:{(s%14)*2048+u*1024}"
            for s in range(lo, hi) for dt in range(2) for u in range(2)]

NW1 = [0]
def w1_load():
    ks = NW1[0]
    NW1[0] += 1
    if opt("abl", 0) & 1:
        return
    k(f"buffer_load_dwordx4 {V(W1R+4*ks,4)}, {V(vL16)}, {S(SRD_WS,4)}, {S(sWL)} offen offset:{1024*(ks%4)} sc1")
    if ks % 4 == 3:
        k(f"s_add_u32 {S(sWL)}, {S(sWL)}, 4096")

def common():
    k(f"v_mov_b32 {V(vONE)}, 1")
    k(f"s_mov_b32 {S(sONES)}, 0x3f803f80")
    k(f"s_mov_b32 {S(sHIM)}, 0xffff0000")
    k(f"s_and_b32 {S(sNH)}, {S(sW)}, 1")
    k(f"s_lshr_b32 {S(sCH)}, {S(sW)}, 1")
    k(f"v_and_b32 {V(vGO+1)}, 12, {V(vL)}")

def roles():
    k(f"s_cmp_ge_u32 {S(sJ)}, 14")
    k(f"s_cselect_b32 {S(sT2)}, 1, 0")
    k(f"s_cselect_b32 {S(sT3)}, 14, 0")
    k(f"s_lshl1_add_u32 {S(sGAM)}, {S(sREP)}, {S(sT2)}")
    k(f"s_sub_u32 {S(sJ)}, {S(sJ)}, {S(sT3)}")
    k(f"s_and_b32 {S(sHH)}, {S(sJ)}, 1")
    k(f"s_lshr_b32 {S(sDS)}, {S(sJ)}, 1")
    k(f"s_lshl_b32 {S(sREP)}, {S(sREP)}, 12")
    k(f"s_lshl_b32 {S(sT0)}, {S(sW)}, 13")
    k(f"s_lshl4_add_u32 {S(sT0)}, {S(sWG)}, {S(sT0)}")
    k(f"v_lshl_add_u32 {V(vFW)}, {V(vL)}, 12, {S(sT0)}")
    k(f"v_and_b32 {V(vGO+2)}, 4, {V(vL)}")
    k(f"v_mov_b32 {V(vGO+3)}, 0")

FIRST = []
def prologue():
    k(f"s_getpc_b64 {S(sPC,2)}")
    k.label("L_pc")
    if DIAG:
        k("s_memrealtime s[12:13]")
    k(f"s_cmp_ge_u32 {S(sWG)}, 256")
    k("s_cbranch_scc1 L_end")
    k("s_load_dwordx16 s[28:43], s[0:1], 0")
    k("s_load_dwordx8 s[44:51], s[0:1], 64")
    k("s_load_dwordx4 s[52:55], s[0:1], 96")
    k("s_load_dwordx2 s[56:57], s[0:1], 112")
    k.c("wave 0 of helpers 8..31 pulls a third of the code into L2")
    k(f"s_sub_u32 {S(sT0)}, {S(sWG)}, 8")
    k(f"s_cmp_ge_u32 {S(sT0)}, 24")
    k("s_cbranch_scc1 L_nopf")
    k(f"v_cmp_gt_u32 vcc, 64, {V(vTID)}")
    k(f"s_lshr_b32 {S(sT0)}, {S(sT0)}, 3")
    k(f"s_lshl_b32 {S(sT0)}, {S(sT0)}, 7")
    k(f"v_mul_u32_u24 {V(vL16)}, 384, {V(vTID)}")
    k(f"v_add_u32 {V(vL16)}, {S(sT0)}, {V(vL16)}")
    k("s_cbranch_vccz L_nopf")
    for q in range(2):
        k(f"v_min_u32 {V(vL16)}, L_table_end-L_pc-4, {V(vL16)}")
        k(f"global_load_dword {V(vDUM)}, {V(vL16)}, {S(sPC,2)}")
        k.vm = []
        if q == 0:
            k(f"v_add_u32 {V(vL16)}, {64*384}, {V(vL16)}")
    k.label("L_nopf")
    k(f"v_lshrrev_b32 {V(vONE)}, 6, {V(vTID)}")
    k(f"v_and_b32 {V(vL)}, 63, {V(vTID)}")
    k(f"v_readfirstlane_b32 {S(sW)}, {V(vONE)}")
    k(f"v_lshlrev_b32 {V(vL16)}, 4, {V(vL)}")
    if DIAG:
        k(f"v_mov_b32 {V(vSTAMP)}, 0")
        k("s_mov_b32 s101, 0")
    k(f"s_sub_u32 {S(sT0)}, {S(sWG)}, 32")
    k(f"s_and_b32 {S(sREP)}, {S(sT0)}, 7")
    k(f"s_lshr_b32 {S(sJ)}, {S(sT0)}, 3")
    k(f"s_mul_i32 {S(sCP)}, {S(sREP)}, 28")
    k(f"s_add_u32 {S(sCP)}, {S(sCP)}, {S(sJ)}")
    k(f"s_lshl_b32 {S(sT1)}, {S(sCP)}, 10")
    k(f"v_lshl_add_u32 {V(PRM+6)}, {V(vTID)}, 2, {S(sT1)}")
    p0x_addr(0)
    if not opt("lean", 1):
        p0x_addr(1)
        common()
        roles()
    for b, n in ((SRD_X0, 2048 * 896), (SRD_WS, WS_BYTES), (SRD_DBG, 256)):
        k(f"s_mov_b32 {S(b+2)}, {hex(n)}")
        k(f"s_mov_b32 {S(b+3)}, 0x20000")
    k(f"s_movk_i32 {S(sT4)}, {8*896}")
    k.wait(lg=0)
    srd_base(SRD_X0, 28)
    if DIAG:
        k(f"v_writelane_b32 {V(vSTAMP)}, s12, 0")
    elif ENC >= 0:
        stamp(0)
    k(f"s_cmp_lt_u32 {S(sWG)}, 32")
    branch("s_cbranch_scc1", "L_clear")
    p0x_loads()
    for i in range(6):
        k(f"global_load_dword {V(PRM+i)}, {V(PRM+6)}, {S(30+2*i,2)}")
    FIRST.extend(k.vm)
    branch("s_branch", "L_main")
    label("L_clear")
    k.forget()
    srd_base(SRD_WS, 56)
    srd_base(SRD_DBG, 54)
    if opt("lean", 1):
        common()
    z = HZ
    for i in range(4):
        k(f"v_mov_b32 {V(z+i)}, 0")
    k(f"s_lshl_b32 {S(sT5)}, {S(sWG)}, 7")
    k(f"s_add_u32 {S(sT5)}, {S(sT5)}, {hex(FLG_W)}")
    l1, l2 = newlab("h1"), newlab("h2")
    k(f"s_cmp_lt_u32 {S(sWG)}, 28")
    branch("s_cbranch_scc1", l1)
    k(f"s_sub_u32 {S(sT2)}, {S(sWG)}, 28")
    k(f"s_lshl2_add_u32 {S(sT0)}, {S(sT2)}, {S(sW)}")
    k(f"s_mul_i32 {S(sT0)}, {S(sT0)}, {(ZEND - 0x8000) // 16}")
    k(f"s_add_u32 {S(sT0)}, {S(sT0)}, 0x8000")
    k(f"s_add_u32 {S(sT1)}, {S(sT0)}, {(ZEND - 0x8000) // 16}")
    for q in range(opt("zwait", 0)):
        k(f"v_lshlrev_b32 {V(z+4)}, 12, {V(vTID)}")
        k(f"buffer_load_dword {V(z+5)}, {V(z+4)}, {S(SRD_X0,4)}, {S(sT0)} offen offset:{1024*q}")
        k.wait(vm=0)
    lz = newlab("z")
    label(lz)
    for i in range(2):
        k(f"buffer_store_dwordx4 {V(z,4)}, {V(vL16)}, {S(SRD_WS,4)}, {S(sT0)} offen offset:{1024*i} sc1")
    k(f"s_add_u32 {S(sT0)}, {S(sT0)}, 2048")
    k(f"s_cmp_lt_u32 {S(sT0)}, {S(sT1)}")
    k(f"s_cbranch_scc1 {lz}")
    k(f"s_lshl_b32 {S(sT0)}, {S(sT2)}, 2")
    k.wait(vm=0)
    k("s_barrier")
    k(f"s_cmp_lg_u32 {S(sW)}, 1")
    branch("s_cbranch_scc1", "L_end2")
    k("s_mov_b64 exec, 1")
    k(f"buffer_store_dword {V(vONE)}, {V(z)}, {S(SRD_DBG,4)}, {S(sT0)} offen offset:192 sc1")
    k("s_mov_b64 exec, -1")
    branch("s_branch", "L_end2")
    label(l1)
    k.forget()
    k(f"s_cmp_gt_u32 {S(sWG)}, 2")
    branch("s_cbranch_scc1", "L_helper")
    k(f"s_lshl2_add_u32 {S(sT0)}, {S(sWG)}, {S(sW)}")
    k(f"s_lshl_b32 {S(sT0)}, {S(sT0)}, 12")
    k(f"s_cmp_eq_u32 {S(sWG)}, 0")
    k(f"s_cselect_b32 {S(sT1)}, {hex(STATS[0] + 0x4000)}, 0")
    k(f"s_cselect_b32 {S(sT2)}, 0, 124")
    k(f"s_add_u32 {S(sT0)}, {S(sT0)}, {S(sT1)}")
    k(f"s_sub_u32 {S(sT0)}, {S(sT0)}, 0x4000")
    for i in range(4):
        k(f"buffer_store_dwordx4 {V(z,4)}, {V(vL16)}, {S(SRD_WS,4)}, {S(sT0)} offen offset:{1024*i} sc1")
    k(f"s_lshl2_add_u32 {S(sT0)}, {S(sWG)}, {S(sT2)}")
    stamp(4)
    k.wait(vm=0)
    k("s_barrier")
    stamp(5)
    k(f"s_cmp_lg_u32 {S(sW)}, 2")
    branch("s_cbranch_scc1", "L_helper")
    k("s_mov_b64 exec, 1")
    k(f"buffer_store_dword {V(vONE)}, {V(z)}, {S(SRD_DBG,4)}, {S(sT0)} offen sc1")
    k("s_mov_b64 exec, -1")
    branch("s_branch", "L_helper")
    label("L_main")
    k.forget()

def w2_lane_src(d, pitch, t0, t1):
    k(f"v_lshrrev_b32 {V(t0)}, 3, {V(vL)}")
    k(f"v_mul_u32_u24 {V(d)}, {pitch}, {V(t0)}")
    k(f"v_and_b32 {V(t0)}, 7, {V(vL)}")
    k(f"v_bfe_u32 {V(t1)}, {V(vL)}, 4, 1")
    k(f"v_lshlrev_b32 {V(t1)}, 2, {V(t1)}")
    k(f"v_xor_b32 {V(t0)}, {V(t0)}, {V(t1)}")
    k(f"v_lshl_add_u32 {V(d)}, {V(t0)}, 4, {V(d)}")

def h_prefetch():
    k.forget()
    a, f, d = WK, WK + 1, WK + 2
    poll_load(vGO, vGO + 1, 0, 192, SRD_DBG)
    k(f"s_and_b32 {S(sT0)}, {S(sWG)}, 7")
    k(f"s_lshr_b32 {S(sT1)}, {S(sWG)}, 4")
    k(f"s_lshl1_add_u32 {S(sGAM)}, {S(sT0)}, {S(sT1)}")
    k(f"s_bfe_u32 {S(sHH)}, {S(sWG)}, 0x10003")
    k(f"s_mul_i32 {S(sHL)}, {S(sGAM)}, {4*112*1024}")
    k(f"s_lshl2_add_u32 {S(sT3)}, {S(sHH)}, {S(sW)}")
    k(f"s_mul_i32 {S(sT3)}, {S(sT3)}, {28*1024}")
    k(f"s_add_u32 {S(sHL)}, {S(sHL)}, {S(sT3)}")
    k(f"s_lshl_b32 {S(sFG)}, {S(sGAM)}, {GL + 6}")
    k(f"s_add_u32 {S(sFG)}, {S(sFG)}, {hex(FLG_G + (PQ if FAST and opt('hpf', 0) == 2 else 0))}")
    k(f"v_min_u32 {V(f)}, 13, {V(vL)}")
    k(f"s_mul_i32 {S(sT2)}, {S(sW)}, 14")
    k(f"v_add_lshl_u32 {V(f)}, {V(f)}, {S(sT2)}, {GL}")
    k(f"v_min_u32 {V(a)}, 55, {V(vL)}")
    k(f"v_lshlrev_b32 {V(a)}, 7, {V(a)}")
    poll_check(vGO, vGO + 1, 0, 192, SRD_DBG)
    for ph in range(4):
        lp, go = newlab("hp"), newlab("hg")
        k(f"s_mov_b32 {S(sSPIN)}, 0")
        k(f"s_add_u32 {S(sT0)}, {S(sHL)}, {hex(HB + (ph >> 1)*H_SZ + (ph & 1)*2*112*1024)}")
        label(lp)
        k(f"s_sleep {opt('hsl', 1)}")
        poll_load(d, f, S(sFG), 4 * ph)
        k(f"s_add_u32 {S(sSPIN)}, {S(sSPIN)}, 1")
        k(f"v_cmp_eq_u32 vcc, 0, {V(d)}")
        k(f"s_cmp_gt_u32 {S(sSPIN)}, 150")
        k(f"s_cbranch_scc1 L_end3")
        k(f"s_cbranch_vccnz {lp}")
        for q in range(4):
            k(f"buffer_load_dword {V(d+1+q)}, {V(a)}, {S(SRD_WS,4)}, {S(sT0)} offen sc1")
            k(f"s_add_u32 {S(sT0)}, {S(sT0)}, 7168")
        k.vm = []
    label("L_end3")

HZ = WK + 64
SPL = opt("spl", 0)
def helper():
    label("L_helper")
    k.forget()
    srd(SRD_W1, 48, 448 * 3584)
    srd(SRD_W2, 50, 1792 * 896)
    z = HZ
    F = WK + 112
    G = WK + 168
    t, a1, a2, aE, aO = z + 8, z + 10, z + 11, z + 12, z + 13
    IMG2 = 57344
    w2_lane_src(a1, 3584, t, t + 1)
    w2_lane_src(a2, 896, t, t + 1)
    if opt("abl", 0) & 32:
        k("s_endpgm")
    if opt("hwait", 3):
        srd(SRD_OUT, 28 if opt("hwait", 3) < 3 else 40, 2048 * 896 if opt("hwait", 3) < 3 else 448 * 512)
        k(f"s_lshl_b32 {S(sT0)}, {S(sWG)}, {16 if opt('hwait', 3) < 3 else 13}")
        k(f"v_lshlrev_b32 {V(t)}, {(8, 8, 5)[opt('hwait', 3) - 1]}, {V(vTID)}")
        if opt("hwait", 3) == 2:
            k(f"v_and_b32 {V(t)}, 0xc000, {V(t)}")
        k(f"buffer_load_dword {V(t+1)}, {V(t)}, {S(SRD_OUT,4)}, {S(sT0)} offen")
        k.wait(vm=0)
    if opt("hdelay", 0):
        k(f"s_sleep {opt('hdelay', 0)}")
    k(f"s_mul_i32 {S(sT0)}, {S(sW)}, {112*3584}")
    k(f"s_lshl_b32 {S(sT1)}, {S(sWG)}, 7")
    k(f"s_add_u32 {S(sT0)}, {S(sT0)}, {S(sT1)}")
    k(f"s_mul_i32 {S(sT3)}, {S(sW)}, 14336")
    k(f"s_mov_b32 m0, {S(sT3)}")
    for c in range(14):
        k(f"buffer_load_dwordx4 {V(a1)}, {S(SRD_W1,4)}, {S(sT0)} offen lds", tag="w1")
        k(f"s_add_u32 m0, m0, 1024")
        k(f"s_add_u32 {S(sT0)}, {S(sT0)}, {8*3584}")
    k(f"v_bfe_u32 {V(t+1)}, {V(vL)}, 2, 2")
    k(f"v_lshlrev_b32 {V(t)}, 7, {V(t+1)}")
    k(f"v_bfe_u32 {V(t+1)}, {V(vL)}, 3, 1")
    k(f"v_lshl_add_u32 {V(t)}, {V(t+1)}, 6, {V(t)}")
    k(f"v_bfe_u32 {V(t+1)}, {V(vL)}, 4, 1")
    k(f"v_lshl_add_u32 {V(t)}, {V(t+1)}, 5, {V(t)}")
    k(f"v_and_b32 {V(t+1)}, 3, {V(vL)}")
    k(f"v_lshl_add_u32 {V(t)}, {V(t+1)}, 3, {V(t)}")
    k(f"v_lshrrev_b32 {V(t+1)}, 5, {V(vL)}")
    k(f"v_lshl_add_u32 {V(a1)}, {V(t+1)}, 10, {V(t)}")
    k(f"v_lshl_add_u32 {V(aE)}, {V(t+1)}, 9, {V(t)}")
    k(f"s_lshl_b32 {S(sT0)}, {S(sCH)}, 6")
    k(f"v_xor_b32 {V(a1)}, {S(sT0)}, {V(a1)}")
    k(f"s_mul_i32 {S(sT0)}, {S(sNH)}, {2048 if SPL else 28672}")
    k(f"v_add_u32 {V(a1)}, {S(sT0)}, {V(a1)}")
    k(f"s_lshl_b32 {S(sT0)}, {S(sNH)}, 6")
    k(f"v_xor_b32 {V(aE)}, {S(sT0)}, {V(aE)}")
    k(f"v_xor_b32 {V(aO)}, 64, {V(aE)}")
    k(f"s_mul_i32 {S(sT1)}, {S(sW)}, 7")
    k(f"s_lshr_b32 {S(sT0)}, {S(sT1)}, 1")
    k(f"s_lshl_b32 {S(sT0)}, {S(sT0)}, 11")
    k(f"s_add_u32 {S(sT0)}, {S(sT0)}, {IMG2}")
    k(f"v_add_u32 {V(aE)}, {S(sT0)}, {V(aE)}")
    k(f"s_add_u32 {S(sT0)}, {S(sT1)}, 1")
    k(f"s_lshr_b32 {S(sT0)}, {S(sT0)}, 1")
    k(f"s_lshl_b32 {S(sT0)}, {S(sT0)}, 11")
    k(f"s_add_u32 {S(sT0)}, {S(sT0)}, {IMG2}")
    k(f"v_add_u32 {V(aO)}, {S(sT0)}, {V(aO)}")
    k.wait(vm=0)
    k("s_barrier")
    stamp(3)
    for ks in range(14):
        for u in range(2):
            k(f"ds_read_b64_tr_b16 {V(F+4*ks+2*u,2)}, {V(a1)} offset:{ks*(4096 if SPL else 2048)+u*512}")
    k(f"s_and_b32 {S(sHL)}, {S(sWG)}, 3")
    k(f"s_lshl3_add_u32 {S(sHL)}, {S(sHL)}, {S(sW)}")
    k(f"s_add_u32 {S(sHL)}, {S(sHL)}, 4")
    k(f"s_mul_i32 {S(sHL)}, {S(sHL)}, {56*896}")
    k(f"s_lshr_b32 {S(sHS)}, {S(sWG)}, 2")
    k(f"s_lshl_b32 {S(sHS)}, {S(sHS)}, 7")
    k(f"s_add_u32 {S(sHL)}, {S(sHL)}, {S(sHS)}")
    k(f"s_mul_i32 {S(sT3)}, {S(sW)}, 7168")
    k(f"s_add_u32 m0, {S(sT3)}, {IMG2}")
    for _ in range(7):
        k(f"buffer_load_dwordx4 {V(a2)}, {S(SRD_W2,4)}, {S(sHL)} offen lds", tag="w2")
        k(f"s_add_u32 m0, m0, 1024")
        k(f"s_add_u32 {S(sHL)}, {S(sHL)}, {8*896}")
    c, u_ = z, z + 2
    for i in range(56):
        k(f"v_dot2c_f32_bf16 {V(c)}, {S(sONES)}, {V(F+i)}")
    k(f"v_mov_b32 {V(u_)}, {V(c)}")
    k(f"v_permlane32_swap_b32 {V(c)}, {V(u_)}")
    k(f"v_add_f32 {V(c)}, {V(c)}, {V(u_)}")
    k(f"v_lshlrev_b32 {V(t)}, 2, {V(vTID)}")
    k(f"v_add_u32 {V(t)}, 0x18000, {V(t)}")
    k(f"ds_write_b32 {V(t)}, {V(c)}")
    k(f"v_xor_b32 {V(t)}, 256, {V(t)}")
    k.wait(lg=0)
    k("s_barrier")
    k(f"ds_read_b32 {V(u_)}, {V(t)}")
    k(f"s_lshl2_add_u32 {S(sT1)}, {S(sWG)}, {S(sW)}")
    k(f"s_mul_i32 {S(sT0)}, {S(sT1)}, 14336")
    k(f"s_add_u32 {S(sT0)}, {S(sT0)}, {hex(W1C)}")
    if SPL:
        k(f"s_mul_i32 {S(sT2)}, {S(sNH)}, {14336 - 1024}")
        k(f"s_sub_u32 {S(sT0)}, {S(sT0)}, {S(sT2)}")
        poll_load(vGO, vGO + 1, 0, 192, SRD_DBG)
    def fl(off):
        k("s_mov_b64 exec, 1")
        k(f"buffer_store_dword {V(vONE)}, {V(z+1)}, {S(SRD_WS,4)}, {S(sT5)} offen offset:{off} sc1")
        k("s_mov_b64 exec, -1")
    k(f"s_mul_i32 {S(sT1)}, {S(sT1)}, 7168")
    k(f"s_add_u32 {S(sT1)}, {S(sT1)}, {hex(W2T)}")
    k(f"v_add_f32 {V(c)}, {V(c)}, {V(u_)}")
    k(f"v_mul_f32 {V(c)}, {f2u(-1.0/448)}, {V(c)}")
    for i in range(56):
        tt = z + 4 + 2 * (i & 1)
        k(f"v_lshlrev_b32 {V(tt)}, 16, {V(F+i)}")
        k(f"v_and_b32 {V(tt+1)}, {S(sHIM)}, {V(F+i)}")
        pk("add", V(tt, 2), V(tt, 2), V(c, 2), bc=(1,))
        k(f"v_cvt_pk_bf16_f32 {V(F+i)}, {V(tt)}, {V(tt+1)}")
        if i % 4 == 3:
            ks = i // 4
            if SPL:
                k(f"buffer_store_dwordx4 {V(F+4*ks,4)}, {V(vL16)}, {S(SRD_WS,4)}, {S(sT0)} offen offset:{2048*(ks%2)} sc1", tag=("c", ks))
                if ks % 2 == 1:
                    k(f"s_add_u32 {S(sT0)}, {S(sT0)}, 4096")
                if ks == SPL:
                    k.wait_tag_vm(("c", 6))
                    poll_check(vGO, vGO + 1, 0, 192, SRD_DBG)
                    k("s_barrier")
                    wave0(lambda: fl(32))
                    stamp(2)
            else:
                k(f"buffer_store_dwordx4 {V(F+4*ks,4)}, {V(vL16)}, {S(SRD_WS,4)}, {S(sT0)} offen offset:{1024*(ks%4)} sc1")
                if ks % 4 == 3:
                    k(f"s_add_u32 {S(sT0)}, {S(sT0)}, 4096")
    if not SPL:
        poll_load(vGO, vGO + 1, 0, 192, SRD_DBG)
        poll_check(vGO, vGO + 1, 0, 192, SRD_DBG)
    k.wait(vm=0)
    k("s_barrier")
    wave0(lambda: fl(0))
    stamp(1)
    for i in range(7):
        for u in range(2):
            k(f"ds_read_b64_tr_b16 {V(G+4*i+2*u,2)}, {V(aO if i & 1 else aE)} offset:{(i//2)*2048+u*1024}")
    for i in range(7):
        k(f"buffer_store_dwordx4 {V(G+4*i,4)}, {V(vL16)}, {S(SRD_WS,4)}, {S(sT1)} offen offset:{1024*(i%4)} sc1")
        if i == 3:
            k(f"s_add_u32 {S(sT1)}, {S(sT1)}, 4096")
    k.wait(vm=0)
    k("s_barrier")
    wave0(lambda: fl(64))
    stamp(25)
    label("L_end2")
    if opt("hpf", 0):
        h_prefetch()
    if DIAG:
        k(f"s_lshl_b32 {S(sT0)}, {S(sWG)}, 10")
        k(f"s_add_u32 {S(sT0)}, {S(sT0)}, {hex(STAMP)}")
        k(f"v_lshlrev_b32 {V(WK)}, 2, {V(vTID)}")
        k(f"buffer_store_dword {V(vSTAMP)}, {V(WK)}, {S(SRD_WS,4)}, {S(sT0)} offen")
    k("s_endpgm")

KW = W1R
PRM = KW
TBL = KW + 8
GA = KW + 20
TA = GA + 17
vKW, vKR, vKC, vDSK = KW + 42, KW + 43, KW + 44, KW + 45

def table_words():
    def bf16v(m):
        u = struct.unpack("<I", struct.pack("<f", float(m)))[0]
        u = ((u + 0x7FFF + ((u >> 16) & 1)) >> 16) << 16
        return int(struct.unpack("<f", struct.pack("<I", u))[0])
    rowv = list(range(8)) + [256, 258, 260, 262, 512, 516, 768, 772, 1024, 1280, 1536, 1792, 2048]
    def idx(m):
        if m < 0:
            return (KC0 + 4096 + 64) // 8
        l = bf16v(m)
        r = [r for r, a in enumerate(rowv) if l >= a and (l - a) % 8 == 0 and l - a < 256][-1]
        return (r % 16) * 33 + (l - rowv[r]) // 8 + (SCR_ST // 8 if r >= 16 else 0)
    rows = []
    for lam in range(128):
        e = [idx(2047 - 16 * lam - i) for i in range(17)] + [0] * 7
        rows.append([e[2 * i] | (e[2 * i + 1] << 16) for i in range(12)])
    out = []
    for qd in range(3):
        for lam in range(128):
            out.append(rows[lam][4 * qd:4 * qd + 4])
    return out

def addr_conv():
    t0, t1, t2, t3 = KW + 100, KW + 101, KW + 102, KW + 103
    r16, g4, cc = KW + 104, KW + 105, KW + 106
    o = []
    e = o.append
    e(f"v_and_b32 {V(r16)}, 15, {V(vL)}")
    e(f"v_lshrrev_b32 {V(g4)}, 4, {V(vL)}")
    e(f"v_and_b32 {V(cc)}, 3, {V(vL)}")
    e(f"s_mul_i32 {S(sSCR)}, {S(sW)}, {SCR_ST}")
    e(f"s_add_u32 {S(sSCR)}, {S(sSCR)}, {SCR}")
    e(f"s_mul_i32 {S(sSCH)}, {S(sCH)}, {2*SCR_ST}")
    e(f"s_add_u32 {S(sSCH)}, {S(sSCH)}, {SCR}")
    e(f"v_lshl_add_u32 {V(vKW)}, {V(vL)}, 3, {S(sSCR)}")
    e(f"v_mul_u32_u24 {V(vKR)}, {ROW_ST}, {V(r16)}")
    e(f"v_lshl_add_u32 {V(vKR)}, {V(g4)}, 4, {V(vKR)}")
    e(f"v_add_u32 {V(vKR)}, {S(sSCR)}, {V(vKR)}")
    e(f"v_mul_u32_u24 {V(t0)}, 132, {V(g4)}")
    e(f"v_add_u32 {V(t0)}, {V(t0)}, {V(r16)}")
    e(f"s_lshl2_add_u32 {S(sT2)}, {S(sNH)}, {S(sSCH)}")
    e(f"v_lshl_add_u32 {V(TA)}, {V(t0)}, 3, {S(sT2)}")
    e(f"v_add_u32 {V(TA+1)}, {SCR_ST}, {V(TA)}")
    e(f"v_and_b32 {V(t0)}, 127, {V(vTID)}")
    e(f"s_add_u32 {S(sT2)}, {S(sSCH)}, {KC0}")
    e(f"v_lshl_add_u32 {V(vKC)}, {V(t0)}, 5, {S(sT2)}")
    e(f"v_lshrrev_b32 {V(t0)}, 5, {V(vL)}")
    e(f"v_bfe_u32 {V(t1)}, {V(vL)}, 2, 2")
    e(f"v_lshlrev_b32 {V(t3)}, 9, {V(t0)}")
    e(f"v_lshl_add_u32 {V(t3)}, {V(t1)}, 7, {V(t3)}")
    e(f"v_bfe_u32 {V(t1)}, {V(vL)}, 3, 1")
    e(f"v_lshl_add_u32 {V(t3)}, {V(t1)}, 6, {V(t3)}")
    e(f"v_bfe_u32 {V(t1)}, {V(vL)}, 4, 1")
    e(f"v_lshl_add_u32 {V(t3)}, {V(t1)}, 5, {V(t3)}")
    e(f"v_lshl_add_u32 {V(t3)}, {V(cc)}, 3, {V(t3)}")
    e(f"s_mul_i32 {S(sT2)}, {S(sW)}, {WREG}")
    e(f"v_add_u32 {V(vW2R)}, {S(sT2)}, {V(t3)}")
    e(f"v_xor_b32 {V(vW2R+1)}, 64, {V(vW2R)}")
    e(f"v_lshrrev_b32 {V(t0)}, 3, {V(vTID)}")
    e(f"v_and_b32 {V(t1)}, 0x70, {V(vL16)}")
    e(f"v_lshl_add_u32 {V(vCX)}, {V(t0)}, 8, {V(t1)}")
    e(f"v_lshrrev_b32 {V(t0)}, 4, {V(vTID)}")
    e(f"v_and_b32 {V(t2)}, 8, {V(vL)}")
    e(f"v_lshl_add_u32 {V(t2)}, {V(t0)}, 7, {V(t2)}")
    e(f"v_lshl_add_u32 {V(t2)}, {V(cc)}, 5, {V(t2)}")
    e(f"v_bfe_u32 {V(t1)}, {V(vL)}, 2, 1")
    e(f"v_lshl_add_u32 {V(t2)}, {V(t1)}, 4, {V(t2)}")
    e(f"v_add_u32 {V(vUW)}, {UARR+480}, {V(t2)}")
    e(f"s_mul_i32 {S(sT2)}, {S(sCH)}, {SCR_ST-1024}")
    e(f"s_add_u32 {S(sT2)}, {S(sT2)}, {SCR}")
    e(f"v_add_u32 {V(vXW)}, {S(sT2)}, {V(t2)}")
    e(f"v_and_b32 {V(t0)}, 1, {V(vL)}")
    e(f"v_xor_b32 {V(t0)}, 1, {V(t0)}")
    e(f"v_mul_u32_u24 {V(t1)}, {SCR_ST+64-2}, {V(t0)}")
    e(f"v_lshlrev_b32 {V(t2)}, 1, {V(r16)}")
    e(f"v_sub_u32 {V(t1)}, {V(t1)}, {V(t2)}")
    e(f"v_lshl_add_u32 {V(t1)}, {V(g4)}, 4, {V(t1)}")
    e(f"s_lshl_b32 {S(sT3)}, {S(sNH)}, 8")
    e(f"s_sub_u32 {S(sT2)}, {S(sSCH)}, {S(sT3)}")
    e(f"s_add_u32 {S(sT2)}, {S(sT2)}, {KC0 + 2*2031 - 512 - 192}")
    e(f"v_add_u32 {V(vKF)}, {S(sT2)}, {V(t1)}")
    for a in range(1, 4):
        e(f"v_subrev_u32 {V(vKF+a)}, {1024*a}, {V(vKF)}")
    e(f"v_lshlrev_b32 {V(t1)}, 5, {V(r16)}")
    e(f"v_lshl_add_u32 {V(t1)}, {V(g4)}, 4, {V(t1)}")
    e(f"s_mul_i32 {S(sT2)}, {S(sCH)}, {U_ST}")
    e(f"s_sub_u32 {S(sT2)}, {S(sT2)}, {S(sT3)}")
    e(f"s_add_u32 {S(sT2)}, {S(sT2)}, {UARR + 480 - 32 - 192}")
    e(f"v_add_u32 {V(vUF)}, {S(sT2)}, {V(t1)}")
    e(f"v_mov_b32 {V(vXR)}, {V(vKW)}")
    e(f"v_add_u32 {V(vEXW)}, {S(sSCR)}, {V(vL16)}")
    e(f"s_xor_b32 {S(sT2)}, {S(sW)}, 1")
    e(f"s_mul_i32 {S(sT2)}, {S(sT2)}, {SCR_ST}")
    e(f"s_add_u32 {S(sT2)}, {S(sT2)}, {SCR}")
    e(f"v_add_u32 {V(vEXR)}, {S(sT2)}, {V(vL16)}")
    e(f"v_lshrrev_b32 {V(t0)}, 3, {V(vL)}")
    e(f"v_mul_u32_u24 {V(vCO)}, 114688, {V(t0)}")
    e(f"v_and_b32 {V(t0)}, 7, {V(vL)}")
    e(f"s_and_b32 {S(sT2)}, {S(sCP)}, 1")
    e(f"s_lshl_b32 {S(sT3)}, {S(sT2)}, 2")
    e(f"v_xor_b32 {V(t0)}, {S(sT3)}, {V(t0)}")
    e(f"v_lshl_add_u32 {V(vCO)}, {V(t0)}, 4, {V(vCO)}")
    e(f"s_lshl_b32 {S(sT2)}, {S(sT2)}, 3")
    e(f"s_lshr_b32 {S(sXQi)}, {S(sCP)}, 1")
    e(f"s_lshl_b32 {S(sXQi)}, {S(sXQi)}, 14")
    e(f"s_add_u32 {S(sXQi)}, {S(sXQi)}, {S(sT2)}")
    e(f"s_add_u32 {S(sXQi)}, {S(sXQi)}, {hex(XQ)}")
    e(f"s_lshl_b32 {S(sT2)}, {S(sCP)}, 1")
    e(f"s_add_u32 {S(sT2)}, {S(sT2)}, {S(sCH)}")
    e(f"s_lshl_b32 {S(sT2)}, {S(sT2)}, 7")
    e(f"s_mul_i32 {S(sT3)}, {S(sNH)}, {8*114688}")
    e(f"s_add_u32 {S(sT2)}, {S(sT2)}, {S(sT3)}")
    e(f"v_add_u32 {V(vCO)}, {S(sT2)}, {V(vCO)}")
    e(f"v_lshlrev_b32 {V(vFP)}, 4, {V(vTID)}")
    e(f"v_max_u32 {V(vFP)}, 512, {V(vFP)}")
    e(f"s_mov_b32 {S(sPERM0)}, 0x05040100")
    e(f"s_mov_b32 {S(sPERM1)}, 0x07060302")
    e(f"s_lshl_b32 {S(sT2)}, {S(sJ)}, 2")
    e(f"s_add_u32 {S(sT2)}, {S(sT2)}, {S(sW)}")
    e(f"s_mul_i32 {S(sWL)}, {S(sT2)}, 28672")
    e(f"s_add_u32 {S(sWL)}, {S(sWL)}, {hex(W1C)}")
    e(f"s_lshr_b32 {S(sT2)}, {S(sT2)}, 1")
    e(f"s_lshl_b32 {S(sT2)}, {S(sT2)}, 7")
    e(f"s_add_u32 {S(sT2)}, {S(sT2)}, {hex(FLG_W)}")
    e(f"v_mov_b32 {V(vWF+1)}, {S(sT2)}")
    e(f"s_lshl2_add_u32 {S(sT2)}, {S(sDS)}, {S(sW)}")
    e(f"s_mul_i32 {S(sW2L)}, {S(sT2)}, 28672")
    e(f"s_add_u32 {S(sW2L)}, {S(sW2L)}, {hex(W2T)}")
    e(f"s_lshl_b32 {S(sT2)}, {S(sT2)}, 7")
    e(f"s_add_u32 {S(sT2)}, {S(sT2)}, {hex(FLG_W+64)}")
    e(f"v_mov_b32 {V(vWF+2)}, {S(sT2)}")
    e(f"s_mov_b32 {S(sLDT2)}, {S(sT2)}")
    e(f"s_mul_i32 {S(sXT)}, {S(sGAM)}, 114688")
    e(f"s_add_u32 {S(sXT)}, {S(sXT)}, {hex(X1T)}")
    z = KW + 108
    for i in range(4):
        e(f"v_mov_b32 {V(z+i)}, 0")
    e(f"v_min_u32 {V(t0)}, 29, {V(vL)}")
    e(f"v_lshlrev_b32 {V(t0)}, 4, {V(t0)}")
    e(f"v_add_u32 {V(t0)}, {UARR}, {V(t0)}")
    e(f"ds_write_b128 {V(t0)}, {V(z,4)}")
    e(f"ds_write_b128 {V(t0)}, {V(z,4)} offset:{U_ST}")
    e(f"v_and_b32 {V(t0)}, 0x70, {V(vL16)}")
    e(f"v_add_u32 {V(t0)}, {S(sSCR)}, {V(t0)}")
    e(f"ds_write_b128 {V(t0)}, {V(z,4)} offset:{KC0+4096}")
    return o

ROWST = opt("rowst", 1)
redg = lambda layer: 1088 if layer and ROWST else RED_G
def addr_ffn(layer):
    t0, t1, t2, t3 = WK + 84, WK + 85, WK + 86, WK + 87
    g4, rho, cc = WK + 88, WK + 89, WK + 90
    o = []
    e = o.append
    e(f"v_lshrrev_b32 {V(g4)}, 4, {V(vL)}")
    e(f"v_bfe_u32 {V(rho)}, {V(vL)}, 2, 2")
    e(f"v_and_b32 {V(cc)}, 3, {V(vL)}")
    e(f"v_lshrrev_b32 {V(t0)}, 5, {V(vL)}")
    e(f"v_bfe_u32 {V(t1)}, {V(vL)}, 4, 1")
    e(f"v_bfe_u32 {V(t2)}, {V(vL)}, 3, 1")
    e(f"v_lshlrev_b32 {V(t3)}, 7, {V(rho)}")
    e(f"v_lshl_add_u32 {V(t3)}, {V(t2)}, 6, {V(t3)}")
    e(f"v_lshl_add_u32 {V(vXA0)}, {V(t0)}, 10, {V(t3)}")
    e(f"v_lshl_add_u32 {V(vXA0)}, {V(cc)}, 4, {V(vXA0)}")
    e(f"v_lshl_add_u32 {V(vXA0)}, {V(t1)}, 3, {V(vXA0)}")
    e(f"v_xor_b32 {V(vXA1)}, 64, {V(vXA0)}")
    e(f"s_lshl_b32 {S(sT2)}, {S(sHH)}, 6")
    e(f"v_xor_b32 {V(t3)}, {S(sT2)}, {V(t3)}")
    e(f"s_lshl_b32 {S(sT2)}, {S(sNH)}, 5")
    e(f"s_lshl3_add_u32 {S(sT2)}, {S(sCH)}, {S(sT2)}")
    e(f"v_and_b32 {V(t0)}, 16, {V(vL16)}")
    e(f"v_add3_u32 {V(t3)}, {V(t3)}, {V(t0)}, {S(sT2)}")
    e(f"v_bfe_u32 {V(t0)}, {V(vL)}, 1, 1")
    e(f"v_mul_u32_u24 {V(vST)}, {XHALF}, {V(t0)}")
    e(f"v_lshl_add_u32 {V(vST)}, {V(g4)}, 10, {V(vST)}")
    e(f"v_add_u32 {V(vST)}, {V(vST)}, {V(t3)}")
    e(f"v_lshl_add_u32 {V(t0)}, {V(g4)}, 1, {V(t0)}")
    e(f"v_lshl_add_u32 {V(vRES)}, {V(t0)}, 10, {V(t3)}")
    e(f"s_lshl_b32 {S(sT2)}, {S(sDS)}, 13")
    e(f"v_add_u32 {V(vRES)}, {S(sT2)}, {V(vRES)}")
    e(f"s_mul_i32 {S(sT2)}, {S(sW)}, {RED_W}")
    e(f"v_add_u32 {V(vRW)}, {S(sT2)}, {V(vL16)}")
    if layer and ROWST:
        e(f"v_and_b32 {V(t0)}, 7, {V(vL)}")
        e(f"v_lshrrev_b32 {V(t2)}, 3, {V(vL)}")
        e(f"v_lshlrev_b32 {V(t1)}, 4, {V(t2)}")
        e(f"v_lshl_add_u32 {V(vAT)}, {V(t0)}, 3, {V(t2)}")
        e(f"v_lshlrev_b32 {V(vAT)}, 2, {V(vAT)}")
    else:
        e(f"v_lshrrev_b32 {V(t0)}, 3, {V(vL)}")
        e(f"v_and_b32 {V(t1)}, 0x70, {V(vL16)}")
    e(f"v_mul_u32_u24 {V(vRR)}, {redg(layer)}, {V(t0)}")
    e(f"s_lshl_b32 {S(sT2)}, {S(sW)}, 7")
    e(f"v_add3_u32 {V(vRR)}, {V(vRR)}, {V(t1)}, {S(sT2)}")
    e(f"s_and_b32 {S(sT2)}, {S(sGAM)}, 8")
    e(f"s_bfe_u32 {S(sT3)}, {S(sGAM)}, 0x20001")
    e(f"s_add_u32 {S(sT2)}, {S(sT2)}, {S(sT3)}")
    e(f"s_lshl2_add_u32 {S(sT2)}, {S(sCH)}, {S(sT2)}")
    e(f"s_lshl1_add_u32 {S(sT3)}, {S(sHH)}, {S(sNH)}")
    e(f"s_and_b32 {S(sT4)}, {S(sGAM)}, 1")
    if layer and ROWST:
        e(f"v_and_b32 {V(t2)}, 0x30, {V(t1)}")
        e(f"v_lshrrev_b32 {V(t3)}, 5, {V(vL)}")
    else:
        e(f"v_lshlrev_b32 {V(t2)}, 4, {V(cc)}")
        e(f"v_bfe_u32 {V(t3)}, {V(vL)}, 2, 1")
    if layer == 0:
        e(f"s_lshl2_add_u32 {S(sT2)}, {S(sT2)}, {S(sT3)}")
        e(f"s_lshl1_add_u32 {S(sT2)}, {S(sT2)}, {S(sT4)}")
        e(f"s_lshl_b32 {S(sT2)}, {S(sT2)}, 6")
        e(f"v_lshl_add_u32 {V(vAT)}, {V(t3)}, 2, {V(t2)}")
        e(f"v_lshrrev_b32 {V(t3)}, 5, {V(vL)}")
        e(f"v_lshl_add_u32 {V(vAT)}, {V(t3)}, 3, {V(vAT)}")
        e(f"v_add_u32 {V(vAT)}, {S(sT2)}, {V(vAT)}")
        e(f"v_lshrrev_b32 {V(t3)}, 2, {V(vL)}")
        e(f"v_lshl_add_u32 {V(vO)}, {V(t3)}, 14, {V(t2)}")
        e(f"s_lshl_b32 {S(sT5)}, {S(sDS)}, 18")
        e(f"s_add_u32 {S(sT2)}, {S(sT2)}, {S(sT5)}")
        e(f"v_add_u32 {V(vO)}, {S(sT2)}, {V(vO)}")
    else:
        e(f"s_lshl3_add_u32 {S(sT2)}, {S(sT2)}, {S(sT4)}")
        e(f"s_lshl2_add_u32 {S(sT2)}, {S(sT2)}, {S(sT3)}")
        e(f"s_lshl_b32 {S(sT2)}, {S(sT2)}, 1")
        e(f"v_add3_u32 {V(t2)}, {V(t2)}, {V(t3)}, {S(sT2)}")
        e(f"v_mul_u32_u24 {V(vO)}, 896, {V(t2)}")
        e(f"v_lshl_add_u32 {V(vO)}, {V(t0)}, 4, {V(vO)}")
        e(f"s_lshl_b32 {S(sT2)}, {S(sDS)}, 7")
        e(f"v_add_u32 {V(vO)}, {S(sT2)}, {V(vO)}")
    e(f"v_min_u32 {V(t0)}, 13, {V(vL)}")
    e(f"s_mul_i32 {S(sT2)}, {S(sW)}, 14")
    e(f"v_add_lshl_u32 {V(vF2P)}, {V(t0)}, {S(sT2)}, {GL or 4}")
    e(f"s_lshl2_add_u32 {S(sT3)}, {S(sJ)}, {S(sW)}")
    e(f"s_lshl_b32 {S(sT2)}, {S(sT3)}, {GL or 4}")
    e(f"v_mov_b32 {V(vFL)}, {S(sT2)}")
    e(f"s_mul_i32 {S(sT2)}, {S(sGAM)}, {4*112*1024}")
    e(f"s_add_u32 {S(sT2)}, {S(sT2)}, {hex(HB + layer*H_SZ)}")
    e(f"s_lshl_b32 {S(sT3)}, {S(sT3)}, 11")
    e(f"s_add_u32 {S(sHS)}, {S(sT2)}, {S(sT3)}")
    e(f"s_lshl2_add_u32 {S(sT3)}, {S(sHH)}, {S(sW)}")
    e(f"s_mul_i32 {S(sT3)}, {S(sT3)}, {28*1024}")
    e(f"s_add_u32 {S(sHL)}, {S(sT2)}, {S(sT3)}")
    e(f"s_lshl_b32 {S(sFG)}, {S(sGAM)}, {GL + 6 if GL else 11}")
    e(f"s_add_u32 {S(sFG)}, {S(sFG)}, {hex(FLG_G + layer*(8 if GL else 0x8000))}")
    e(f"s_add_u32 {S(sFP)}, {S(sFG)}, {PQ if FAST else 0}")
    if FAST and layer == 0:
        e(lambda: poll_load(vPL2, vF2P, S(sFP)))
    if layer:
        e(f"s_mov_b32 {S(SRD_OUT)}, s52")
        e(f"s_and_b32 {S(SRD_OUT+1)}, s53, 0xffff")
        e(f"s_mov_b32 {S(SRD_OUT+2)}, {hex(2048*896)}")
        e(f"s_mov_b32 {S(SRD_OUT+3)}, 0x20000")
    return o

def pk(op, d, a, b, c=None, bc=(), neg=(), emit=True):
    ops = [a, b] + ([c] if c is not None else [])
    n = len(ops)
    txt = f"v_pk_{op}_f32 {d}, " + ", ".join(ops)
    if bc:
        txt += " op_sel_hi:[" + ",".join("0" if i in bc else "1" for i in range(n)) + "]"
    if neg:
        m = "[" + ",".join("1" if i in neg else "0" for i in range(n)) + "]"
        txt += f" neg_lo:{m} neg_hi:{m}"
    if emit:
        k(txt)
    return txt

def cmul(d, a, b, t):
    assert d != a
    pk("mul", V(t, 2), V(a, 2), V(b, 2))
    pk("mul", V(t + 2, 2), V(a, 2), V(b + 2, 2))
    pk("fma", V(d, 2), V(a + 2, 2), V(b + 2, 2), V(t, 2), neg=(0,))
    pk("fma", V(d + 2, 2), V(a + 2, 2), V(b, 2), V(t + 2, 2))

NINIT = opt("ninit", 4)
NPG = opt("npg", 8)
TE = opt("te", 1)
def stub_targets():
    return ["L_ret0" if p <= 3 else "L_ret1" if p <= 5 else f"L_pg{p+2}" if p + 2 <= NPG else "L_ret2" for p in range(1, NPG + 1)]

def touch(n):
    tg = [["L_pg0" if TE else None, "L_pg1", "L_pg2", "L_pg3"], ["L_pg4", "L_pg5", "L_st0", "L_st1"],
          ["L_pg6" if NPG >= 6 else None, "L_pg7" if NPG >= 7 else None, "L_st2", "L_st3"]][n]
    k("s_mov_b64 exec, 0")
    for w in range(4):
        if tg[w]:
            k(f"s_cmp_eq_u32 {S(sW)}, {w}")
            k(f"s_cbranch_scc1 {tg[w]}")
    if n == 0 and not TE:
        k("s_branch L_ret0")
        k.raw(".p2align 12")
    k.label(f"L_ret{n}")
    k("s_mov_b64 exec, -1")

def table_loads():
    t0 = KW + 100
    k(f"v_and_b32 {V(t0)}, 127, {V(vTID)}")
    k(f"v_lshlrev_b32 {V(t0)}, 4, {V(t0)}")
    k(f"v_add_u32 {V(t0)}, L_table-L_pc+2048, {V(t0)}")
    for q in range(3):
        if q < 2:
            k(f"global_load_dwordx4 {V(TBL+4*q,4)}, {V(t0)}, {S(sPC,2)} offset:{2048*(q-1)}")
        else:
            k(f"global_load_dword {V(TBL+8)}, {V(t0)}, {S(sPC,2)} offset:2048")

def dt_setup():
    DT = KW + 46 + 12
    k.wait(lg=0)
    k(f"s_lshl_b32 {S(sT0)}, {S(sCH)}, 4")
    k(f"s_lshr_b32 {S(sLDT)}, {S(sLDT)}, {S(sT0)}")
    k(f"s_lshl_b32 {S(sLDT)}, {S(sLDT)}, 16")
    k(f"s_lshr_b32 {S(sDSK)}, {S(sDSK)}, {S(sT0)}")
    k(f"s_lshl_b32 {S(sDSK)}, {S(sDSK)}, 16")
    k(f"v_mov_b32 {V(DT)}, {f2u(1.4426950408889634)}")
    k(f"v_mul_f32 {V(DT)}, {S(sLDT)}, {V(DT)}")
    k(f"v_exp_f32 {V(DT)}, {V(DT)}")
    k(f"s_cmp_eq_u32 {S(sNH)}, 0")
    k(f"s_cselect_b32 {S(sDSK)}, {S(sDSK)}, 0")
    k(f"v_cvt_pk_bf16_f32 {V(DT)}, {V(DT)}, {V(DT)}")
    k(f"v_mov_b32 {V(vDSK)}, 0")
    k(f"v_lshlrev_b32 {V(DT)}, 16, {V(DT)}")
    k(f"v_writelane_b32 {V(vDSK)}, {S(sDSK)}, 0")

def warm_loads():
    if opt("warm", 1):
        k(f"s_sub_u32 {S(sT0)}, {S(sWG)}, 32")
        k(f"s_lshl2_add_u32 {S(sT0)}, {S(sT0)}, {S(sW)}")
        k(f"s_mul_i32 {S(sT0)}, {S(sT0)}, 1792")
        k(f"v_min_u32 {V(vDUM+1)}, 13, {V(vL)}")
        k(f"v_lshl_add_u32 {V(vDUM+1)}, {V(vDUM+1)}, 7, {S(sT0)}")
        for q in range(opt("warm", 1)):
            k(f"global_load_dword {V(vDUM)}, {V(vDUM+1)}, {S(48+2*q,2)}")
            k.vm[-1] = (set(), None)

def main_start():
    k.c("=== main workgroups")
    k.vm = list(FIRST)
    k(f"s_lshl_b32 {S(sT5)}, {S(sCP)}, 2")
    k(f"s_load_dword {S(sLDT)}, s[42:43], {S(sT5)}")
    k(f"s_load_dword {S(sDSK)}, s[44:45], {S(sT5)}")
    k.lg = []
    if opt("lean", 1):
        p0x_addr(1)
        common()
        roles()
    srd_base(SRD_WS, 56)
    srd_base(SRD_DBG, 54)
    srd(SRD_W2, 50, 1792 * 896)
    if opt("warmat", 2) == 0:
        warm_loads()
    if opt("tblearly", 0):
        table_loads()
    w2_lane_src(vW2S, 896, KW + 100, KW + 101)
    k(f"s_mul_i32 {S(sW2B)}, {S(sW)}, {448*896}")
    k(f"s_lshl_b32 {S(sT2)}, {S(sDS)}, 7")
    k(f"s_add_u32 {S(sW2B)}, {S(sW2B)}, {S(sT2)}")
    FREG[0] = 4
    fine("ld")
    ac = addr_conv()
    for i in range(NINIT):
        w2_dma()
        run(ac, len(ac) // (NINIT - i))
    run(ac)
    if TE:
        touch(0)
        dt_setup()
    stamp(24)
    fine("addr")
    if opt("warmat", 2) == 1:
        warm_loads()
    p0x_body()
    if opt("warmat", 2) == 2:
        warm_loads()
    fine("p0x")
    stamp(1)
    if opt("atom0", 16) < 0:
        p0x_atomics()
        stamp(25)
    if TE:
        k("s_branch L_body")
        k.raw(".p2align 12")
        k.label("L_pg0")
        k("s_branch L_ret0")
        k("s_nop 0")
        k.label("L_body")
    else:
        touch(0)

DEF0 = opt("def0", 1)
LATE0 = W1R + 100 if DEF0 else WK + 12
def conv_load_ops(layer, h, D):
    o = [f"s_mov_b32 {S(sT0)}, {hex(STATS[layer] + 8192*h)}",
         f"s_add_u32 {S(sT3)}, {S(sXQi)}, {hex(layer*XQ_SZ + 8192*h)}"]
    for j in range(2):
        o.append(f"buffer_load_dwordx4 {V(D+4*j,4)}, {V(vCX)}, {S(SRD_WS,4)}, {S(sT0)} offen offset:{128*j} sc1")
        o.append(f"buffer_load_dwordx2 {V(D+8+2*j,2)}, {V(vCX)}, {S(SRD_WS,4)}, {S(sT3)} offen offset:{128*j} sc1")
    return o

CW = []
def kgen():
    k.c("=== K generation")
    B0 = KW + 46
    U = B0
    DT = B0 + 12
    W1_, W8_, W256 = B0 + 14, B0 + 18, B0 + 22
    T = B0 + 26
    P = [B0 + 30 + 4 * i for i in range(5)]
    CV = B0 + 50
    ACC = WK + 64
    FX, FY = (112, 144), (176, 208)
    for i in range(6):
        k(f"v_lshlrev_b32 {V(U+2*i)}, 16, {V(PRM+i)}")
        k(f"v_and_b32 {V(U+2*i+1)}, {S(sHIM)}, {V(PRM+i)}")
    if not TE:
        dt_setup()
    fine("prm")
    for i in range(4):
        pk("mul", V(U + 2 * i, 2), V(U + 2 * i, 2), V(DT, 2), bc=(1,))
    k(f"s_mov_b32 {S(sC0)}, {f2u(1.4426950408889634)}")
    pk("mul", V(U, 2), V(U, 2), S(sC0, 2), bc=(1,))
    k(f"s_mov_b32 {S(sC0)}, {f2u(0.15915494309189535)}")
    pk("mul", V(U + 2, 2), V(U + 2, 2), S(sC0, 2), bc=(1,))
    cmul(P[0], U + 8, U + 4, T)
    for (Wd, sc) in ((W1_, 1.0), (W256, 256.0), (W8_, 8.0)):
        ea, an = U + 4, U + 6
        if sc == 1.0:
            sa, sb = U, U + 2
        else:
            k(f"s_mov_b32 {S(sC0)}, {f2u(sc)}")
            pk("mul", V(ea, 2), V(U, 2), S(sC0, 2), bc=(1,))
            pk("mul", V(an, 2), V(U + 2, 2), S(sC0, 2), bc=(1,))
            sa, sb = ea, an
        for h in range(2):
            k(f"v_fract_f32 {V(an+h)}, {V(sb+h)}")
        for h in range(2):
            k(f"v_exp_f32 {V(ea+h)}, {V(sa+h)}")
        for h in range(2):
            k(f"v_cos_f32 {V(Wd+h)}, {V(an+h)}")
        for h in range(2):
            k(f"v_sin_f32 {V(Wd+2+h)}, {V(an+h)}")
        pk("mul", V(Wd, 2), V(Wd, 2), V(ea, 2))
        pk("mul", V(Wd + 2, 2), V(Wd + 2, 2), V(ea, 2))
    if not opt("goearly", 2):
        poll_load(vGO, vGO + 3, 0, 0, SRD_DBG)
    if opt("atom0", 16) == 0:
        p0x_atomics()
        stamp(25)
    fine("setup")
    cvi = [0]
    ent = [0]
    vPL = vPA
    NKD = opt("nkd", 0)
    FL0, PL0 = opt("flag0", 38), opt("poll0", 53)
    cl = conv_load_ops(0, 0, WK) + ([] if DEF0 else conv_load_ops(0, 1, LATE0))
    PCE = opt("pce", 0)
    PCT = opt("pct", 1)
    cl2 = []
    if PCT:
        cl, cl2 = [], cl
    def put(src, row, negim, extra=None):
        c = CV + 2 * (cvi[0] & 1)
        cvi[0] += 1
        n = "-" if negim else ""
        k(f"v_cvt_pk_bf16_f32 {V(c)}, {V(src)}, {V(src+1)}")
        k(f"v_cvt_pk_bf16_f32 {V(c+1)}, {n}{V(src+2)}, {n}{V(src+3)}")
        k(f"ds_write_b64 {V(vKW)}, {V(c,2)} offset:{row*ROW_ST}")
        if extra:
            k(extra)
        ent[0] += 1
        if ent[0] == opt("atom0", 16):
            p0x_atomics()
            stamp(25)
        if ent[0] == FL0:
            poll_check(vGO, vGO + 2, 0, 128, SRD_DBG)
            k("s_barrier")
            flag_all(0)
            stamp(2)
        if not opt("tblearly", 0) and ent[0] == opt("tblat", 22):
            table_loads()
        if opt("kdb", 0) and ent[0] == opt("kdb", 0):
            for _ in range(4):
                w2_dma()
        if ND[0] < NINIT + min(NKD, NKD * (ent[0] - opt("kd0", 0)) // (opt("kdspan", 42) - opt("kd0", 0))):
            w2_dma()
        if ent[0] in (opt("atom0", 16) - 1, opt("atom0", 16), FL0 - 1, FL0, 52):
            fine(f"e{ent[0]}")
        if ent[0] == PL0:
            poll_load(vPL, vFP, S(sREP))
        if ent[0] == PCE:
            poll_check(vPL, vFP, S(sREP))
            k("s_barrier")
            run(cl, 6)
    def frags(b):
        for st in range(8):
            k(f"ds_read_b128 {A(b+4*st,4)}, {V(vKR)} offset:{64*st}")
    cur = 0
    for a in range(8):
        put(P[cur], a, True)
        if a % 2 == 0:
            dst = {0: 3, 4: 4}.get(a, 2)
            cmul(P[dst], P[cur], W256, T)
            put(P[dst], 8 + a // 2, True)
        if a < 7:
            cmul(P[1 - cur], P[cur], W1_, T)
            cur = 1 - cur
    cmul(P[0], P[3], W256, T); put(P[0], 12, True)
    cmul(P[1], P[4], W256, T); put(P[1], 13, True)
    cmul(P[3], P[0], W256, T); put(P[3], 14, True)
    cmul(P[4], P[1], W256, T); put(P[4], 15, True)
    frags(FX[0])
    src, dst = 3, 0
    for row in range(5):
        cmul(P[dst], P[src], W256, T)
        put(P[dst], row, True)
        src, dst = dst, (1 - dst if dst in (0, 1) else 0)
    frags(FX[1])
    k(f"v_mov_b32 {V(CV)}, {S(sONES)}")
    k(f"v_mov_b32 {V(CV+1)}, 0")
    k(f"ds_write_b64 {V(vKW)}, {V(CV,2)}")
    cvi[0] = 1
    put(W8_, 1, False)
    cmul(P[0], W8_, W8_, T)
    cur = 0
    def mfma(n):
        yt, x, st = n // 16, (n // 8) & 1, n % 8
        d = V(ACC + 8 * yt + 4 * x, 4)
        return f"v_mfma_f32_16x16x32_bf16 {d}, {A(FX[x]+4*st,4)}, {A(FY[yt]+4*st,4)}, {d if st else 0}"
    M0 = opt("km", 0)
    for j in range(2, 32):
        put(P[cur], j % 16, False, mfma(j - 32 + M0) if j >= 32 - M0 else None)
        if j % 16 == 15:
            frags(FY[j // 16])
        if j == 15:
            stamp(3)
        if j < 31:
            cmul(P[1 - cur], P[cur], W8_, T)
            cur = 1 - cur
    assert ND[0] == NINIT + NKD and opt("pchk", 5) < 13, ND
    def tables(yt, x):
        a = ACC + 8 * yt + 4 * x
        return [f"ds_write2_b32 {V(TA+x)}, {V(a+i)}, {V(a+i+1)} offset0:{66*i+32*yt} offset1:{66*(i+1)+32*yt}" for i in (0, 2)]
    mads = []
    for n in range(17):
        sel = " op_sel:[1,0,0,0]" if n & 1 else ""
        mads.append(f"v_mad_u32_u16 {V(GA+n)}, {V(TBL+n//2)}, 8, {S(sSCH)}{sel}")
    PCK = opt("pchk", 5)
    tb = [(8, [f"v_add_f32 {V(ACC)}, {V(ACC)}, {V(vDSK)}"] + tables(0, 0)), (16, tables(0, 1)), (24, tables(1, 0))]
    for n in range(M0, 32):
        k(mfma(n))
        if n + 53 == PL0:
            poll_load(vPL, vFP, S(sREP))
        run(mads, 1)
        if n - M0 == PCK:
            if not PCE and not PCT:
                poll_check(vPL, vFP, S(sREP))
            k.wait(lg=0)
            k("s_barrier")
            fine("pbar")
            stamp(4)
        if n - M0 >= PCK:
            if (n - M0 - PCK) % opt("cls", 3) == 0 and cl:
                run(cl, 3 if cl[0].startswith("s_") else 1)
            elif (not cl or opt("cls", 3) > 2) and tb and n >= tb[0][0] + 4:
                run(tb.pop(0)[1])
    if AL:
        mads += [f"v_lshlrev_b32 {V(vFW)}, {AL-4}, {V(vFW)}", f"v_lshlrev_b32 {V(vFP)}, {AL-4}, {V(vFP)}", f"s_lshl_b32 {S(sREP)}, {S(sREP)}, {AL-4}"]
    run(mads)
    for _, o in tb:
        run(o)
    run(cl)
    if PCT:
        precmp(vPL)
    else:
        poll_load(vGO, vGO + 1, 0, 192, SRD_DBG)
    run(tables(1, 1))
    if PCT:
        poll_check(vPL, vFP, S(sREP))
    k.wait(lg=0)
    k("s_barrier")
    fine("tbar")
    stamp(6)
    GV = B0
    for e in range(17):
        if e % 4 == 0 and cl2:
            run(cl2, 3 if e == 0 else 1)
        k(f"ds_read_b64 {V(GV+2*e,2)}, {V(GA+e)}")
    if PCT:
        poll_load(vGO, vGO + 1, 0, 192, SRD_DBG)
    if opt("cpk", 0):
        CW.extend(cprep(WK, WK + 32, 0, True))
        k.wait(lg=0)
    else:
        k.wait(lg=8)
    for e in range(17):
        if e == 9 and k.lg:
            k.wait(lg=0)
        k(f"v_add_f32 {V(GV+2*e)}, {V(GV+2*e)}, {V(GV+2*e+1)}")
    fine("gath")
    if not opt("kp0", 0):
        k("s_barrier")
    O = B0 + 34
    for c in range(2):
        for kk in range(8):
            e = 2 * kk + c
            k(f"v_cvt_pk_bf16_f32 {V(O+8*c+kk)}, {V(GV+2*e)}, {V(GV+2*e+2)}")
    for c in range(2):
        for h in range(2):
            k(f"ds_write_b128 {V(vKC)}, {V(O+8*c+4*h,4)} offset:{c*(SCR_ST+64)+16*h}")
    stamp(5)

def wave0(fn):
    skip = newlab("w0")
    k(f"s_cmp_lg_u32 {S(sW)}, 0")
    saved = list(k.vm)
    k.skip_begin("s_cbranch_scc1", skip)
    fn()
    k.skip_end(skip)
    k.vm = saved

EARLY = opt("early", 0)
def apoll_load(arr):
    k(f"s_add_u32 {S(sPA)}, {S(sREP)}, {hex(FA(arr))}")
    poll_load(vPA, vFP, S(sPA))

def apoll_check():
    poll_check(vPA, vFP, S(sPA))

def aflag(arr):
    flag_all(FA(arr))

def bar():
    k.wait(lg=0)
    k("s_barrier")

CACC, CKR, CXU, CXR = WK, WK + 32, WK + 96, WK + 104
def cprep(D, T, h, defer=False):
    UU, O, RAW, EPS = T, T + 4, T + 8, CXR
    k(f"s_mov_b32 {S(sC0)}, {f2u(1.0/448)}")
    k(f"s_mov_b32 {S(sC1)}, {f2u(1e-5)}")
    k(f"v_mov_b32 {V(EPS)}, {S(sC1)}")
    for j in range(2):
        M, Q, X = D + 4 * j, D + 4 * j + 2, D + 8 + 2 * j
        pk("mul", V(M, 2), V(M, 2), S(sC0, 2), bc=(1,))
        pk("fma", V(Q, 2), V(Q, 2), S(sC0, 2), V(EPS, 2), bc=(1, 2))
        pk("fma", V(Q, 2), V(M, 2), V(M, 2), V(Q, 2), neg=(0,))
        for b in range(2):
            k(f"v_max_f32 {V(Q+b)}, {S(sC1)}, {V(Q+b)}")
        for b in range(2):
            k(f"v_rsq_f32 {V(Q+b)}, {V(Q+b)}")
        for b in range(2):
            k(f"v_lshlrev_b32 {V(UU+b)}, 16, {V(X+b)}")
            k(f"v_and_b32 {V(UU+2+b)}, {S(sHIM)}, {V(X+b)}")
        pk("mul", V(M, 2), V(M, 2), V(Q, 2))
        for c in range(2):
            pk("fma", V(UU + 2 * c, 2), V(UU + 2 * c, 2), V(Q, 2), V(M, 2), neg=(2,))
            k(f"v_perm_b32 {V(RAW+2*c+j)}, {V(X+1)}, {V(X)}, {S(sPERM0+c)}")
        for c in range(2):
            k(f"v_cvt_pk_bf16_f32 {V(O+2*c+j)}, {V(UU+2*c)}, {V(UU+2*c+1)}")
    w = [f"ds_write_b64 {V(vUW)}, {V(O+2*c,2)} offset:{c*U_ST + 2048*h}" for c in range(2)]
    w += [f"ds_write_b64 {V(vXW)}, {V(RAW+2*c,2)} offset:{c*2*SCR_ST + 1024*h}" for c in range(2)]
    if defer:
        return w
    run(w)

def k_ops(I, s, reg):
    o = (128 if I % 2 == 0 else 0) + 16 * (3 - s)
    r = (V if reg[0] == "v" else A)
    return [f"ds_read2_b32 {r(reg[1]+2*h,2)}, {V(vKF+I//2)} offset0:{o+2*h} offset1:{o+2*h+1}" for h in range(2)]

def k_preload():
    return [t for s in range(4) for I in range(4) for t in k_ops(I, s, ("v", CKR + 16 * s + 4 * I))]

def conv(layer):
    k.c("=== conv")
    ACC, XU, XR = CACC, CXU, CXR
    mf = []
    for s in range(4):
        mf += [(0, s, Jp, I) for Jp in range(3, -1, -1) for I in range(4 - Jp)]
    for s in range(3, -1, -1):
        mf += [(1, s, Jp, I) for I in range(7, 0, -1) for Jp in range(4) if 4 <= Jp + I <= 7]
    for s in range(4):
        mf += [(2, s, Jp, I) for Jp in range(7, 3, -1) for I in range(8 - Jp)]
    assert len(mf) == 144
    ukey = lambda p, s, Jp: ("u", 0 if (p == 1 and s == 3) else p, s, Jp)
    kkey = lambda s, I: ("k", s, I)
    first, last = {}, {}
    for n, (p, s, Jp, I) in enumerate(mf):
        for key in (ukey(p, s, Jp), kkey(s, I)):
            first.setdefault(key, n)
            last[key] = n
    reg = {kkey(s, I): ("v", CKR + 16 * s + 4 * I) for s in range(4) for I in range(4)}
    KP0 = opt("kp0", 0)
    items = sorted((key for key in first if not (key in reg and (layer or key[1] < KP0))), key=lambda x: first[x])
    XB, XS = opt("xb", 40), opt("xs", 41)
    CPL, CPB = opt("cpl", 104), opt("cpb", 104)
    assert DEF0
    slots = [("a", AX + 4 * i) for i in range(8)] + [("v", WK + 108), ("v", ACC + 12)][:opt("xslot", 2)]
    slot_free = ([-1] * 9 + [XB + 4])[:len(slots)]
    RG = lambda r: (V if r[0] == "v" else A)(r[1], 4)
    queue = []
    issued = {}
    def issue(n, budget):
        c = 0
        while True:
            if not queue:
                if not items:
                    return c
                key = items[0]
                if not (first[key] <= n + 2 or (c < budget and first[key] <= n + 20)):
                    return c
                if key[0] == "u" and key[1] == 2 and n < CPB:
                    return c
                if key not in reg:
                    fr = [i for i in range(len(slots)) if slot_free[i] < n]
                    if not fr:
                        assert first[key] > n, (n, key)
                        return c
                    slot_free[fr[0]] = last[key]
                    reg[key] = slots[fr[0]]
                items.pop(0)
                if key[0] == "u":
                    queue.append((key, f"ds_read_b128 {RG(reg[key])}, {V(vUF)} offset:{512*key[3] + 64*(3-key[2])}"))
                else:
                    queue.extend((key, t) for t in k_ops(key[2], key[1], reg[key]))
            elif not (first[queue[0][0]] <= n + 2 or c < budget):
                return c
            key, t = queue.pop(0)
            k(t, tag=key)
            issued[key] = n
            c += 1
    def xblock(ph, packed, addfirst=False):
        l1, lj = newlab("x1"), newlab("xj")
        k(f"s_cmp_eq_u32 {S(sNH)}, 1")
        h0 = list(k.hist)
        k(f"s_cbranch_scc1 {l1}")
        for hf in range(2):
            if hf:
                k.label(l1)
                k.hist = h0
                k.lg = k.lg[:-2]
            a = ACC + 16 * ph
            def adds():
                for i in range(4 if packed else 8):
                    if packed:
                        pk("add", V(XU + 2 * i, 2), V(XU + 2 * i, 2), V(a + 8 * hf + 2 * i, 2))
                    else:
                        k(f"v_add_f32 {V(XU+i)}, {V(XU+i)}, {V(a+8*hf+i)}")
            if addfirst:
                adds()
            for jl in range(2):
                k(f"ds_write_b128 {V(vEXW)}, {V(a+8*(1-hf)+4*jl,4)} offset:{2048+1024*jl}", tag="ex")
            if not addfirst:
                adds()
            if not hf:
                k(f"s_branch {lj}")
        k.label(lj)
    def wait_lg(tag):
        idx = [i for i, p in enumerate(k.lg) if p[2] == tag]
        if idx:
            k.wait(lg=len(k.lg) - 1 - idx[-1])
    def res_ops(ph):
        o = [f"ds_read_b64_tr_b16 {V(XR+2*jl,2)}, {V(vXR)} offset:{1024*ph + 512*jl}" for jl in range(2)]
        o += [None] * 6
        for i in range(4):
            o += [f"v_lshlrev_b32 {V(XU+2*i)}, 16, {V(XR+i)}", f"v_and_b32 {V(XU+2*i+1)}, {S(sHIM)}, {V(XR+i)}"]
        return o
    def recv_ops():
        return [f"ds_read_b128 {V(ACC+4*jl,4)}, {V(vEXR)} offset:{2048+1024*jl}" for jl in range(2)]
    def out_ops(ph, packed):
        if packed:
            o = [f"v_pk_add_f32 {V(XU+2*i,2)}, {V(XU+2*i,2)}, {V(ACC+2*i,2)}" for i in range(4)]
        else:
            o = [f"v_add_f32 {V(XU+i)}, {V(XU+i)}, {V(ACC+i)}" for i in range(8)]
        o += [f"v_cvt_pk_bf16_f32 {V(ACC+8+i)}, {V(XU+2*i)}, {V(XU+2*i+1)}" for i in range(4)]
        o.append(f"s_mov_b32 {S(sT1)}, {hex(X1T + layer*XQ_SZ + 57344*ph)}")
        o.append((f"buffer_store_dwordx4 {V(ACC+8,4)}, {V(vCO)}, {S(SRD_WS,4)}, {S(sT1)} offen sc1", ("cst", ph)))
        return o
    if layer == 0:
        if not opt("pct", 1):
            poll_check(vGO, vGO + 1, 0, 192, SRD_DBG)
        if opt("pw1", 50) < 0:
            poll_load(vWF, vWF + 1, 0)
        if CW:
            run(CW)
        elif KP0:
            bar()
            run(k_preload()[:8 * KP0])
            cprep(WK, WK + 12, 0)
        else:
            cprep(WK, WK + 32, 0)
        if opt("pct", 1):
            poll_check(vGO, vGO + 1, 0, 192, SRD_DBG)
        stamp(7)
        if not DEF0:
            cprep(WK + 12, WK + 44, 1)
    bar()
    if layer and EARLY and opt("fl", 4) < 0:
        aflag(F_CIN1[1])
    fine("cbar")
    FREG[0] = 3
    fine("start")
    stamp(9)
    bg = []
    if layer == 0:
        n1, n2 = opt("w1conv", 18), opt("w2conv", 0)
        bg = [w2_dma] * (28 - ND[0])
        def c1():
            if not opt("abl", 0) & 8:
                poll_check(vWF, vWF + 1, 0, 32 if SPL else 0)
            w1_load()
        def p1b():
            poll_load(vWF, vWF + 1, 0)
            w1_load()
        def c1b():
            assert NW1[0] == 14
            poll_check(vWF, vWF + 1, 0)
            w1_load()
        def p2():
            poll_load(vWF, vWF + 2, 0)
            w1_load()
        def c2():
            if not opt("abl", 0) & 16:
                poll_check(vWF, vWF + 2, 0)
            if n2:
                w2_load()
        w = [c1] + [w1_load] * (n1 - 1)
        if SPL:
            assert n1 > 14 and not n2 and opt("pw1", 50) >= 0
            w[opt("p1b", 6)], w[14] = p1b, c1b
        pos = max(1, n1 - n2 - 7)
        if n2:
            w[pos] = p2
        t = w[:n1 - n2]
        for i in range(n2):
            t += [c2 if i == 0 else w2_load] + w[n1 - n2 + i: n1 - n2 + i + 1]
        if opt("bgord", 0) == 0:
            bg += t
        elif opt("bgord", 0) == 1:
            bg = t + bg
        else:
            m = []
            while bg or t:
                m += t[:1] + bg[:1]
                t, bg = t[1:], bg[1:]
            bg = m
    nbg = len(bg)
    BG0 = opt("bg0", 4)
    step = max(1, (opt("bg1", 138) - BG0) / max(1, nbg))
    side = []
    lastbg = -9
    seen = set()
    CL, FE, PE = opt("cl", XS), opt("fe", 100), opt("pe", 128)
    for n, (p, s, Jp, I) in enumerate(mf):
        if n == CPL:
            assert not side and (layer or NW1[0] <= 25)
            stamp(10)
            side += [(o, "lw") for o in cprep(LIN if layer else LATE0, ACC, 1, True)]
            if CPB == CPL:
                run(side)
        if n == CPB:
            assert not side
            if FE >= CPB:
                k.wait_tag_vm(("cst", 0))
            wait_lg("lw")
            k("s_barrier")
            if FE >= CPB:
                aflag(F_X1[layer][0])
            stamp(12)
        cnt = issue(n, (12 if layer == 0 and not KP0 else 5) if n == 0 else 5 if n == CPB else 0 if XB < n <= XS and opt("xq", 0) else 1)
        uk, kk = ukey(p, s, Jp), kkey(s, I)
        tags = [q[2] for q in k.lg]
        if uk in tags or kk in tags:
            cand = [i for i, q in enumerate(tags) if q in (uk, kk) or (q in first and first[q] <= n + 3 and issued[q] <= n - 7)]
            k.wait(lg=len(tags) - 1 - max(cand))
        J = Jp + I
        d = V(ACC + 4 * J, 4)
        k(f"v_mfma_f32_16x16x32_bf16 {d}, {RG(reg[uk])}, {RG(reg[kk])}, {d if J in seen else 0}")
        seen.add(J)
        if n == opt("ll0", 8) and layer == 0 and DEF0:
            side += conv_load_ops(0, 1, LATE0)
        if n == 18:
            side += res_ops(0)
        if n == 122:
            side[0:0] = res_ops(1)
        if layer == 0 and n == opt("pw1", 50):
            poll_load(vWF, vWF + 1, 0, 32 if SPL else 0)
        if layer and EARLY and n == opt("fl", 4):
            k.wait_tag_vm(("st", 1))
            k("s_barrier")
            aflag(F_CIN1[1])
        if layer and n == opt("pcl", 0):
            apoll_load(F_CIN1[1])
        if n == XB:
            assert not side
            xblock(0, bool(opt("xpk", 1)), bool(opt("xaf", 0)))
        if layer and n == CL - 2:
            precmp(vPA)
        if layer and n == CL and CL != XS:
            apoll_check()
            k("s_barrier")
            side += conv_load_ops(1, 1, LIN)
        if n == XS:
            if layer and CL == XS:
                apoll_check()
            wait_lg("ex")
            k("s_barrier")
            run(recv_ops())
            if layer and CL == XS:
                side += conv_load_ops(1, 1, LIN)
        if n == XS + opt("xo", 4):
            run(side)
            run(out_ops(0, bool(opt("xpk", 1))))
        if n == FE and FE < CPB:
            k.wait_tag_vm(("cst", 0))
            k("s_barrier")
            aflag(F_X1[layer][0])
        if n == PE:
            apoll_load(F_X1[layer][0])
        if n in (0, 19, 39, 47, 55, 63, 71, 87, 103, 104, 123, 143):
            fine(f"m{n}")
        if side:
            run(side, 2 if cnt == 0 else 1)
        elif bg and n >= BG0 + step * (nbg - len(bg)) and (cnt == 0 or n >= BG0 + 2 + step * (nbg - len(bg))):
            run(bg, 1)
    assert not items and not queue and not any(x and "v_" in x[:2] for x in side)
    run(side)
    run(bg)
    stamp(13)
    PX = opt("px", 2) if PE > 143 else -1
    if PX == 0:
        apoll_load(F_X1[layer][0])
    xblock(1, True)
    bar()
    run(recv_ops())
    if PX == 1:
        apoll_load(F_X1[layer][0])
    o = out_ops(1, True)
    run(o, len(o) - 1)
    if PX == 2:
        apoll_load(F_X1[layer][0])
    run(o)
    fine("store")
    stamp(11)
    if layer == 0:
        n = min(opt("w1a", 4), 28 - NW1[0])
        k.wait_tag_vm(("w2", 27))
        tr = w2_tr_ops(0, 14)
        for i in range(n):
            w1_load()
            run(tr, len(tr) // (n - i))
        run(tr)
    apoll_check()
    bar()
    fine("pollE")
    stamp(14)

def layer_turn():
    FREG[0] = 5
    fine("T")
    kp = k_preload()
    run(kp, opt("kpre", 32))
    fine("kpre")
    apoll_check()
    k("s_barrier")
    fine("chk")
    stamp(20)
    run(conv_load_ops(1, 0, WK))
    k.wait_tag_vm(("st", 1))
    k("s_barrier")
    aflag(F_CIN1[1])
    fine("flag")
    run(kp)
    touch(2)
    fine("touch")
    stamp(21)
    if opt("pcl.1", 0) < 0:
        k.wait(vm=0)
        apoll_load(F_CIN1[1])
    w = cprep(WK, WK + 12, 0, True)
    fine("prep")
    run(w)
    if FREG[0] == opt("fine", 0):
        k.wait(lg=0)
        fine("wr")
    LAY[0] = 1

G2RES = WK + 100
G2R = WK + 108

GB = 4 if GL else 1024
def gflag_ops(half, local):
    return ["s_mov_b64 exec, 1",
            f"buffer_store_dword {V(vONE)}, {V(vFL)}, {S(SRD_WS,4)}, {S(sFP if local else sFG)} offen offset:{GB*half}" + ("" if local else " sc1"),
            "s_mov_b64 exec, -1"]

def gflag(layer, half):
    run(gflag_ops(half, FAST))

def gcheck(half, pre=()):
    if FAST:
        poll_check(vPL2, vF2P, S(sFP), GB * half, pre=gflag_ops(half, False), alt=(vHL, S(sFG)))
    else:
        poll_check(vPL2, vF2P, S(sFG), GB * half, pre=pre)

def ffn(layer):
    k.c("=== GEMM1")
    FREG[0] = 1
    fine("start")
    ACC = WK
    EP = WK + 64
    vXS = WK + 80
    vB0, vB1 = WK + 81, WK + 82
    if layer:
        k(f"s_add_u32 {S(sXT)}, {S(sXT)}, {hex(XQ_SZ)}")
    k(f"v_add_u32 {V(vXS)}, {S(sXT)}, {V(vL16)}")
    k(f"s_lshl_b32 {S(sT0)}, {S(sW)}, 10")
    k(f"s_mov_b32 m0, {S(sT0)}")
    nx = [0]
    def dma():
        d = nx[0]
        nx[0] += 1
        k(f"buffer_load_dwordx4 {V(vXS)}, {S(SRD_WS,4)}, m0 offen sc1 lds", tag=("x", d))
        if d == 13:
            k(f"v_subrev_u32 {V(vXS)}, 32, {V(vXS)}")
        if d < 27:
            k(f"s_add_u32 m0, m0, {4096 + (32 if d == 13 else 0)}")
    NUP = opt("nup", 9)
    af = addr_ffn(layer)
    FXL = opt("fxl", 6)
    for st in range(NUP):
        dma()
        if st >= 1:
            run(af, opt("afr", 11))
        if st == FXL:
            k.wait_tag_vm(("cst", 1))
            k("s_barrier")
            aflag(F_X1[layer][1])
    af += [f"v_add_u32 {V(vB0)}, {XHALF}, {V(vXA0)}", f"v_add_u32 {V(vB1)}, {XHALF}, {V(vXA1)}"]
    W2CHK = [layer == 0 and NW2[0] == 0]
    if W2CHK[0]:
        k(f"v_mov_b32 {V(WK+97)}, {S(sLDT2)}")
        poll_load(WK + 96, WK + 97, 0)
    if layer == 0:
        touch(1)
    SKA = opt("ska", 10)
    mf = [(0, q, ks) for ks in range(28 - SKA) for q in range(2)]
    mf += [(0, q, ks) for q in range(2) for ks in range(28 - SKA, 28)]
    SK = opt("skb", 18)
    mf += [(1, q, ks) for ks in range(28 - SK) for q in range(2)]
    mf += [(1, q, ks) for q in range(2) for ks in range(28 - SK, 28)]
    NR = 8
    LEAD = opt("g1lead", 7)
    bars = [[2, 5, 9, 14, 16, 19, 23, 28], [1, 3, 6, 9, 14, 17, 21, 28], [2, 5, 9, 14, 18, 23, 28], [2, 6, 14, 20, 28]][opt("bars", 0)]
    ready = [0]
    def rd(n):
        half, q, ks = mf[n]
        st = 14 * half + ks // 2
        if st >= ready[0]:
            nb = [b for b in bars if b > st][0]
            assert nx[0] >= nb, (n, nb, nx[0])
            k.wait_tag_vm(("x", nb - 1))
            k("s_barrier")
            if ready[0] == 0 and FXL >= NUP:
                aflag(F_X1[layer][1])
            ready[0] = nb
        va = ((vXA0, vXA1), (vB0, vB1))[half][q]
        for u in range(2):
            k(f"ds_read_b64_tr_b16 {A(AX+4*(n%NR)+2*u,2)}, {V(va)} offset:{ks*2048+u*512}", tag=("f", n))
        rdat[n] = cur[0]
    rdat, cur, lastw = {}, [-9], [-9]
    def epi(tile):
        ops = []
        e = EP + 8 * (tile & 1)
        for a in range(2):
            for i in range(4):
                ops.append(f"v_cvt_pk_bf16_f32 {V(e+4*a+i)}, {V(ACC+16*tile+8*a+2*i)}, {V(ACC+16*tile+8*a+2*i+1)}")
            for i in range(4):
                ops.append(f"v_pk_max_i16 {V(e+4*a+i)}, {V(e+4*a+i)}, 0")
            if a == 0:
                ops.append(f"s_add_u32 {S(sT1)}, {S(sHS)}, {tile*112*1024}")
            ops.append((f"buffer_store_dwordx4 {V(e+4*a,4)}, {V(vL16)}, {S(SRD_WS,4)}, {S(sT1)} offen offset:{1024*a} sc1", ("h", tile)))
        return ops
    F = WK
    ONE4, DS_, DQ = WK + 84, WK + 88, WK + 92
    srd_ = [f"ds_read_b64_tr_b16 {V(F+4*ks+2*u,2)}, {V(vST)} offset:{ks*4096+u*512}" for ks in range(14) for u in range(2)]
    ring = [("a", AX + 4 * i) for i in range(8)] + [("v", WK + 64 + 4 * i) for i in range(5)]
    NR2 = opt("g2ring", 11)
    ring = ring[:NR2]
    rn = lambda i: (V if ring[i % NR2][0] == "v" else A)(ring[i % NR2][1], 4)
    nl = [0]
    def ld():
        i = nl[0]
        nl[0] += 1
        half, s = divmod(i, 28)
        if s % 4 == 0:
            k(f"s_add_u32 {S(sT4)}, {S(sHL)}, {half*2*112*1024 + s*1024}")
        k(f"buffer_load_dwordx4 {rn(i)}, {V(vL16)}, {S(SRD_WS,4)}, {S(sT4)} offen offset:{1024*(s%4)} sc1" + (" nt" if opt("hnt", 0) else ""))
        if layer == 0 and NW2[0] < 28 and i >= opt("w2l0", 0) and (i - opt("w2l0", 0)) % opt("w2ls", 1) == 0:
            w2_load()
    CHKA = opt("chkA", 999)
    HOLD = opt("hold", 0)
    held = []
    sentB = False
    pend = af
    nrd = 0
    for n in range(opt("lead0", LEAD)):
        rd(nrd); nrd += 1
    stamp(27)
    cur[0] = 0
    PXL, CXL = opt("pxl", 10), opt("cxl", 28)
    LB = opt("leadb", 4)
    BUD, CVM, CST, CRD = opt("bud", 28), opt("cvm", 12), opt("cst", 24), opt("crd", 4)
    MINL = opt("minl", 5)
    for n, (half, q, ks) in enumerate(mf):
        tile = 2 * half + q
        d = V(ACC + 16 * tile, 16)
        assert NW1[0] > ks, "W1 fragment used before its load"
        k(f"v_mfma_f32_32x32x16_bf16 {d}, {V(W1R+4*ks,4)}, {A(AX+4*(n%NR),4)}, {d if ks else 0}")
        if n == 56 - SKA + opt("ed", 2):
            pend += epi(0)
        if n == 56 + opt("ed", 2):
            pend += epi(1)
        if n == 112 - SK + opt("ed", 2):
            e2 = epi(2)
            if HOLD:
                held = [o for o in e2 if isinstance(o, tuple) or o.startswith("s_")]
                e2 = [o for o in e2 if o not in held]
            pend += e2
        b = BUD
        tags = [p[2] for p in k.lg]
        needw = ("f", n + 1) in tags
        if needw:
            b -= 4
        def newbar(m):
            return 14 * mf[m][0] + mf[m][2] // 2 >= ready[0]
        def may(m):
            if m < len(mf) and opt("mrg", 1) and ready[0] == 9 and newbar(m) and n < CXL <= m - 4:
                return False
            return m < len(mf) and m <= n + (LB if m == 56 else LEAD)
        if n == PXL:
            apoll_load(F_X1[layer][1]); b -= CVM + 4
        if n == CXL - 1:
            assert PRECMP[0] is None
            precmp(vPA); b -= 8
        if n == CXL:
            apoll_check()
            if nx[0] == 14 and ready[0] < 14:
                k.wait_tag_vm(("x", 13))
                ready[0] = 14
            k("s_barrier")
            stamp(28); b -= 20
        if n == opt("pollA", 109):
            poll_load(vPL2, vF2P, S(sFP)); b -= CVM
        if n == opt("flagA", 91):
            k.wait_tag_vm(("h", 1))
            gflag(layer, 0); b -= CVM + 12
        if n == CHKA:
            assert opt("flagA", 91) < opt("pollA", 109) < n
            gcheck(0); b -= 12
        if n >= max(CHKA, 104) and nl[0] <= n - 104 and nrd == len(mf) and (n - CHKA) % opt("hstep", 2) == 0:
            ld(); b -= CVM
        while may(nrd) and nrd <= n + MINL - 1:
            b -= 2 * CRD + (12 if newbar(nrd) else 0)
            rd(nrd); nrd += 1
        full = b >= BUD - 4
        if pend and isinstance(pend[0], tuple):
            if full or b >= CST:
                run(pend, 1); b -= CST
        elif full or b >= CVM + 4:
            if nx[0] < 14 and opt("astep", 3) * (nx[0] - NUP) <= n:
                dma(); b -= CVM + 4
            elif n >= CXL and nx[0] < 28 and opt("bstep", 2) * (nx[0] - 14 - opt("bburst", 1)) <= n - CXL:
                dma(); b -= CVM + 4
            elif layer == 0 and n >= lastw[0] + opt("w1step", 2) and NW1[0] < 28:
                w1_load(); b -= CVM; lastw[0] = n
            elif layer == 0 and NW1[0] == 28 and NW2[0] < opt("w2g1", 28) and n >= lastw[0] + opt("w2step", 2) and (n < CXL - opt("w2gap", 1) or nx[0] >= opt("w2x", 28)) and n < opt("w2end", 999):
                if W2CHK[0]:
                    assert PRECMP[0] is None
                    poll_check(WK + 96, WK + 97, 0)
                    W2CHK[0] = False
                w2_load(); b -= CVM; lastw[0] = n
        while True:
            if may(nrd) and b >= 2 * CRD and (nrd <= n + MINL + 1 or not pend or isinstance(pend[0], tuple)):
                b -= 2 * CRD + (12 if newbar(nrd) else 0)
                rd(nrd); nrd += 1
            elif pend and not isinstance(pend[0], tuple) and b >= 4:
                run(pend, 1); b -= 4
            elif nrd == len(mf) and len(srd_) > 12 and b >= CRD and n > 72:
                run(srd_, 1); b -= CRD
            else:
                break
        if needw:
            tags = [p[2] for p in k.lg]
            tgt = ("f", n + 2) if ("f", n + 2) in tags and rdat[n + 2] <= n - opt("wage", 3) else ("f", n + 1)
            idx = [i for i, t_ in enumerate(tags) if t_ == tgt]
            if idx:
                k.wait(lg=len(tags) - 1 - idx[-1])
        cur[0] = n + 1
        assert nrd > n + 1 or nrd == len(mf)
        if n % 8 == 0 or n == 111:
            fine(f"m{n}")
        if opt("g1st", 0) and n in (55, 83):
            stamp({55: 29, 83: 31}[n])
    assert not pend and nx[0] == 28 and NW1[0] == 28 and not W2CHK[0], (pend, nx, NW1)
    FREG[0] = 2
    fine("g1end")
    run(srd_, len(srd_) - 4)
    for i in range(4):
        k(f"v_mov_b32 {V(ONE4+i)}, {S(sONES)}")
    e3 = epi(3)
    if CHKA <= 111:
        held += [o for o in e3 if isinstance(o, tuple) or o.startswith("s_")]
        e3 = [o for o in e3 if o not in held]
        n_pre = opt("hpre", 7) - nl[0]
        for i in range(n_pre):
            ld()
            run(e3, len(e3) // (n_pre - i))
    run(e3)
    run(held)
    if FAST:
        run(gflag_ops(0, False))
    fine("epi3")
    stamp(15)
    run(srd_)
    for h in range(2):
        for u in range(2):
            k(f"ds_read_b64_tr_b16 {V(G2RES+4*h+2*u,2)}, {V(vRES)} offset:{h*XHALF+u*512}")
    if CHKA > 111:
        gcheck(0, ["s_waitcnt vmcnt(0)"] + gflag_ops(1, False))
    fine("pollA")
    stamp(17)
    st = []
    for ks in range(14):
        st.append(f"v_mfma_f32_16x16x32_bf16 {V(DQ,4)}, {V(F+4*ks,4)}, {V(F+4*ks,4)}, {V(DQ,4) if ks else 0}")
        st.append(f"v_mfma_f32_16x16x32_bf16 {V(DS_,4)}, {V(ONE4,4)}, {V(F+4*ks,4)}, {V(DS_,4) if ks else 0}")
    vS, vQ, vT = DS_, ONE4, ONE4 + 1
    post = ["s_mov_b32 vcc_lo, 0x00100001", "s_mov_b32 vcc_hi, 0x10000100",
            f"v_cndmask_b32 {V(vQ)}, 0, {V(DQ)}, vcc"]
    for i in range(1, 4):
        post += ["s_lshl_b64 vcc, vcc, 1", f"v_cndmask_b32 {V(vQ)}, {V(vQ)}, {V(DQ+i)}, vcc"]
    post += [f"v_mov_b32 {V(vT)}, {V(vQ)}", f"v_mul_f32 {V(vS)}, {f2u(1.0/448)}, {V(vS)}", None,
             f"v_permlane32_swap_b32 {V(vQ)}, {V(vT)}", f"v_add_f32 {V(vQ)}, {V(vQ)}, {V(vT)}",
             f"v_mov_b32 {V(vT)}, {V(vQ)}", None, None,
             f"v_permlane16_swap_b32 {V(vQ)}, {V(vT)}", f"v_add_f32 {V(vQ)}, {V(vQ)}, {V(vT)}",
             f"v_mul_f32 {V(vQ)}, {f2u(1.0/448)}, {V(vQ)}",
             f"v_fma_f32 {V(vQ)}, -{V(vS)}, {V(vS)}, {V(vQ)}",
             f"v_max_f32 {V(vQ)}, 0, {V(vQ)}",
             f"v_add_f32 {V(vQ)}, {f2u(1e-5)}, {V(vQ)}",
             f"v_rsq_f32 {V(vQ)}, {V(vQ)}", None,
             f"v_mov_b32 {V(G2R)}, {V(vQ)}",
             f"v_mov_b32 {V(G2R+2)}, {V(vQ)}", None, None,
             f"v_mov_b32_dpp {V(G2R)}, {V(vQ)} row_ror:8 row_mask:0xf bank_mask:0xc",
             f"v_mov_b32_dpp {V(G2R+2)}, {V(vQ)} row_ror:8 row_mask:0xf bank_mask:0x3"]

    k.c("=== GEMM2")
    NR = NR2
    def red_write(half):
        return [f"ds_write_b128 {V(vRW)}, {V(ACC+32*half+4*G,4)} offset:{half*RED_H+G*redg(layer)}" for G in range(8)]
    def red_read(half):
        return [f"ds_read_b128 {V(ACC+32*half+8*w+4*g,4)}, {V(vRR)} offset:{half*RED_H+w*RED_W+512*g}" for w in range(4) for g in range(2)]
    def unpack(half, u):
        o = []
        for i in range(4):
            o.append(f"v_lshlrev_b32 {V(u+2*i)}, 16, {V(G2RES+4*half+i)}")
            o.append(f"v_and_b32 {V(u+2*i+1)}, {S(sHIM)}, {V(G2RES+4*half+i)}")
        return o
    UR = WK + 84
    def fin(half, pre):
        a = ACC + 32 * half
        u = UR
        ops = []
        def P(d, x, y):
            if pre:
                ops.append(f"v_pk_add_f32 {V(d,2)}, {V(x,2)}, {V(y,2)}")
            else:
                ops.extend(f"v_add_f32 {V(d+h)}, {V(x+h)}, {V(y+h)}" for h in range(2))
        for i in range(4):
            P(a + 2 * i, a + 2 * i, a + 8 + 2 * i)
        for i in range(4):
            P(a + 16 + 2 * i, a + 16 + 2 * i, a + 24 + 2 * i)
        for i in range(4):
            P(a + 2 * i, a + 2 * i, a + 16 + 2 * i)
        for i in range(4):
            if pre:
                ops.append(f"v_pk_fma_f32 {V(a+2*i,2)}, {V(a+2*i,2)}, {V(G2R+2*half,2)}, {V(u+2*i,2)} op_sel_hi:[1,0,1]")
            else:
                ops.extend(f"v_fma_f32 {V(a+2*i+h)}, {V(a+2*i+h)}, {V(G2R+2*half)}, {V(u+2*i+h)}" for h in range(2))
        for i in range(4):
            ops.append(f"v_cvt_pk_bf16_f32 {V(a+24+i)}, {V(a+2*i)}, {V(a+2*i+1)}")
        if layer == 0:
            ops += quad_shuffle([(a + 28, a + 24)])
            ops.append(f"s_mov_b32 {S(sT1)}, {hex(XQ + XQ_SZ + 8192*half)}")
            if half and opt("pt", 1) == 2:
                ops.append(lambda: apoll_load(F_CIN1[0]))
            ops.append((f"buffer_store_dwordx4 {V(a+28,4)}, {V(vO)}, {S(SRD_WS,4)}, {S(sT1)} offen sc1", ("st", half)))
            so = stats_ops(a + 24, 4, a, a + 1, a + 2)
            if not pre:
                so = so[10:]
                for i in range(4):
                    ops.append(f"v_lshlrev_b32 {V(a+16+2*i)}, 16, {V(a+24+i)}")
                    ops.append(f"v_and_b32 {V(a+16+2*i+1)}, {S(sHIM)}, {V(a+24+i)}")
                ops.append(f"v_add_f32 {V(a)}, {V(a+16)}, {V(a+17)}")
                ops.append(f"v_mul_f32 {V(a+1)}, {V(a+16)}, {V(a+16)}")
                for i in range(1, 8):
                    if i > 1:
                        ops.append(f"v_add_f32 {V(a)}, {V(a)}, {V(a+16+i)}")
                    ops.append(f"v_fmac_f32 {V(a+1)}, {V(a+16+i)}, {V(a+16+i)}")
            ops += so
            def at():
                k(f"s_mov_b32 {S(sT1)}, {hex(STATS[1] + 8192*half)}")
                k("s_mov_b32 exec_lo, 0xff")
                k("s_mov_b32 exec_hi, 0xff")
                k(f"buffer_atomic_add_f32 {V(a)}, {V(vAT)}, {S(SRD_WS,4)}, {S(sT1)} offen sc1", tag=("st", half))
                k("s_mov_b64 exec, -1")
            ops.append(at)
        else:
            ops.append(f"s_mov_b32 {S(sT1)}, {1024*896*half}")
            ops.append(f"buffer_store_dwordx4 {V(a+24,4)}, {V(vO)}, {S(SRD_OUT,4)}, {S(sT1)} offen" + ("", " sc1", " nt", " sc0 sc1")[opt(f"osc{half}", 2)])
        return ops
    NUP2 = opt("nup2", NR)
    for i in range(nl[0], NUP2):
        ld()
        run(st, (len(st) + NUP2 - i - 1) // (NUP2 - i))
        if i == opt("flagB", 7):
            k.wait_tag_vm(("h", 3))
            gflag(layer, 1)
            sentB = True
    assert not st
    fine("up2")
    stamp(16)
    PB = opt("pollB", 7)
    TL = opt("tl", 4)
    order = [(i, dt) for i in range(56 - TL) for dt in range(2)] + [(i, dt) for dt in range(2) for i in range(56 - TL, 56)]
    bar()
    GAP = "gap"
    pend = [GAP] * 2 + [GAP if o is None else o for o in post]
    if layer and ROWST:
        pend += [f"ds_bpermute_b32 {V(r)}, {V(vAT)}, {V(r)}" for r in list(range(G2RES, G2RES + 8)) + [G2R, G2R + 2]] + [GAP] * 3
    pend += unpack(0, UR)
    okB = False
    flagE = layer == 1
    BUD2 = opt("bud2", 24)
    for n, (i, dt) in enumerate(order):
        half, s = divmod(i, 28)
        d = V(ACC + 32 * half + 16 * dt, 16)
        assert NW2[0] + 28 > s * 2 + dt, "W2 fragment used before its load"
        k(f"v_mfma_f32_32x32x16_bf16 {d}, {A((s*2+dt)*4,4)}, {rn(i)}, {d if s else 0}")
        b = (BUD2 if i < 28 else opt("bud3", BUD2)) - (4 if dt else 0)
        if dt == 0 and i < 56 - TL:
            if i + NUP2 == opt("flagB", 7):
                k.wait_tag_vm(("h", 3))
                gflag(layer, 1)
                sentB = True
                b = 0
            if FAST and i and i == opt("qb", 29):
                assert sentB and i <= opt("red0", 29) + 2
                run(gflag_ops(1, False))
                b = 0
            if i == PB:
                poll_load(vPL2, vF2P, S(sFP), GB)
                assert sentB
                b -= 14
            if nl[0] == 28 and not okB and i > PB and (i >= opt("chkB", 99) or not any(f"v{vPL2}" in p[0] for p in k.vm[1:])):
                assert not pend
                precmp(vPL2)
                okB = None
        if dt == 1 and okB is None:
            gcheck(1)
            if FAST and not opt("qb", 29):
                pend += [GAP, lambda: run(gflag_ops(1, False))]
            okB = True
            b -= 4
        if dt == 1 and i < 56 - TL:
            if i in (13, 27, 41):
                stamp({13: 8, 27: 23, 41: 26}[i])
            if i == opt("red0", 29):
                for o in red_write(0):
                    pend += [o] + [GAP] * opt("rwg", 1)
                pend += [GAP] * opt("rw2", 1) + [bar] + red_read(0) + [GAP] * opt("rr2", 2) + fin(0, False) + unpack(1, UR)
        assert i < 56 - TL or nl[0] == 56
        if nl[0] < 56 and nl[0] - NR < i + dt and (nl[0] < 28 or okB) and (dt or opt("catch", 1)):
            ld()
            b -= 14
        while pend and not (layer and nl[0] < 56 and "buffer_store" in str(pend[0])):
            o = pend[0]
            if o is GAP:
                pend.pop(0)
                break
            cost = 8 if str(o).startswith("ds_read") else 12 if str(o).startswith("ds_bperm") else 4
            if b < cost and not str(o).startswith("ds_write"):
                break
            run(pend, 1)
            b -= cost if isinstance(o, str) else 16
        if n == opt("flagE", 104) and layer == 0:
            assert not any("atomic" in str(o) or callable(o) for o in pend)
            k.wait_tag_vm(("st", 0))
            k("s_barrier")
            aflag(F_CIN1[0])
            flagE = True
        if EARLY and layer == 0 and n == opt("pollE", 108):
            assert flagE
            apoll_load(F_CIN1[0])
        if n % 10 == 1:
            fine(f"m{n}")
        if n == 112 - TL - 1:
            assert not pend
            pend += ["s_nop 3", GAP, "s_nop 3", GAP]
            for o in red_write(1)[:4]:
                pend += [o, GAP]
    run([o for o in pend if o is not GAP])
    assert nl[0] == 56 and okB
    stamp(18)
    run(red_write(1)[4:])
    if not flagE:
        k.wait_tag_vm(("st", 0))
    if layer == 0 and opt("pt", 1) == 0:
        apoll_load(F_CIN1[0])
    bar()
    if not flagE:
        aflag(F_CIN1[0])
    fine("bar")
    run(red_read(1))
    if layer == 0 and opt("pt", 1) == 1:
        apoll_load(F_CIN1[0])
    run(fin(1, True))
    fine("out")
    stamp(19)

def finish():
    if ENC >= 0:
        k.wait(vm=0)
        stamp(22)
        k(f"s_cmp_lg_u32 {S(sWG)}, 100")
        k("s_cbranch_scc1 L_end")
        k("s_sub_u32 s47, s47, s46" if ENC else "s_sub_u32 s47, s46, s46")
        k("s_mul_i32 s47, s47, 100")
        k("s_min_u32 s47, s47, 1000000")
        k(f"s_memrealtime {S(sTM,2)}")
        k.wait(lg=0)
        k(f"s_mov_b32 s46, {S(sTM)}")
        k.label("L_spin")
        k(f"s_memrealtime {S(sTM,2)}")
        k.wait(lg=0)
        k(f"s_sub_u32 {S(sT0)}, {S(sTM)}, s46")
        k(f"s_cmp_lt_u32 {S(sT0)}, s47")
        k("s_cbranch_scc1 L_spin")
    if DIAG:
        if not opt("noend", 0):
            k.wait(vm=0)
        stamp(22)
        for n, (name, r) in enumerate(FINE):
            k(f"v_writelane_b32 {V(vSTAMP)}, s{r}, {20 + n}")
        k(f"v_writelane_b32 {V(vSTAMP)}, s101, 61")
        k.raw("; SITES " + " ".join(SITES))
        if FINE:
            k.raw("; FINE " + " ".join(n for n, _ in FINE))
        k(f"s_lshl_b32 {S(sT0)}, {S(sWG)}, 10")
        k(f"s_add_u32 {S(sT0)}, {S(sT0)}, {hex(STAMP)}")
        k(f"s_lshl_b32 {S(sT1)}, {S(sW)}, 8")
        k(f"v_lshl_add_u32 {V(WK)}, {V(vL)}, 2, {S(sT1)}")
        k(f"buffer_store_dword {V(vSTAMP)}, {V(WK)}, {S(SRD_WS,4)}, {S(sT0)} offen")
    k.label("L_end")
    k("s_endpgm")

prologue()
main_start()
kgen()
conv(0)
ffn(0)
layer_turn()
conv(1)
ffn(1)
finish()
cut = [i for i, l in enumerate(SLOW) if l.startswith("L_slow")]
NS = opt("ns", 4)
first = len(cut) - 10
for n, i in enumerate(cut):
    if n >= first and (n - first) % 3 == 0 and (n - first) // 3 < 4:
        k.raw(f"L_st{(n - first) // 3}:")
        k.raw(f"    s_branch L_ret{1 + (n - first) // 6}")
    for l in SLOW[i:(cut + [len(SLOW)])[n + 1]]:
        k.raw(l)
SLOW.clear()
LAY[0] = 0
helper()
body = list(k.lines) + SLOW
body += [".p2align 4", ".type L_table,@object", "L_table:"]
body += [".long " + ",".join(hex(w) for w in r) for r in table_words()]
body += ["L_table_end:"]

DOC = """;
; One persistent launch, one workgroup per CU (generated by the author's own script).
;   rows of x -> channel-major copy + row sums (atomics)        [hand-off to every workgroup]
;   K[l] = Re sum_n C dB exp(dt A bf16(l)): the 641 distinct exponents as a 21 x 32 outer sum, summed over
;          the modes with MFMA, expanded to two shifted Toeplitz copies in LDS (Dskip folded into lag 0)
;   2 x { LayerNorm -> causal Toeplitz MFMA conv + residual     [hand-off to every workgroup]
;         GEMM1 (mean folded into centred W1) -> ReLU           [hand-off inside a 14-workgroup row group]
;         GEMM2 * rstd + residual, row sums for the next norm } [hand-off to every workgroup]
; Hand-offs: sc1 stores -> vmcnt -> (barrier) -> sc1 flag; consumers poll with sc1 loads (bounded retry
; loops after the main code).  All flag words are cleared inside the launch (d_debug carries the 'cleared'
; words).  Row-group flags have a plain-store twin that is seen sooner on the same die; a consumer that
; does not see the twin falls back to the device-wide word, so placement only affects speed.
"""
ref = open("cdna_kernels/%s.s.ref" % NAME).read().splitlines()
hdr = [l for l in ref if l.startswith(";") and "@launch" not in l]
head = f""".amdgcn_target "amdgcn-amd-amdhsa--gfx950"
.text
.globl {NAME}_kernel
.p2align 8
.type {NAME}_kernel,@function
{NAME}_kernel:
"""
if opt("align", 1):
    body = align(body, head, stubs=stub_targets())
out = "\n".join(hdr) + f"\n; @launch grid=(256,1,1) block=(256,1,1) lds={LDS_BYTES}\n"
out += DOC + head + "\n".join(body) + "\n"
out += f""".section .rodata,"a"
.p2align 6
.amdhsa_kernel {NAME}_kernel
  .amdhsa_next_free_vgpr 512
  .amdhsa_next_free_sgpr 102
  .amdhsa_accum_offset 256
  .amdhsa_group_segment_fixed_size 0
  .amdhsa_kernarg_size 120
  .amdhsa_user_sgpr_count 2
  .amdhsa_user_sgpr_kernarg_segment_ptr 1
  .amdhsa_system_sgpr_workgroup_id_x 1
.end_amdhsa_kernel
"""
dst = [a for a in sys.argv[1:] if not a.startswith("--")]
dst = dst[0] if dst else "cdna_kernels/%s.s" % NAME
open(dst, "w").write(out)
print("instructions:", k.nins, "->", dst)
```

```python
import sys, struct
from emit import Asm, V, A, S
from align import align

NAME = "interleave_layers__ssm_conv_s4__dense_activation_relu__prompt"
DIAG = "--diag" in sys.argv
OPT = {"pe.0": 142, "pxl.0": 18, "cxl.0": 36, "pxl.1": 11, "nup.1": 11, "astep.1": 1, "cxl.1": 30, "pollB.0": 10, "pollB.1": 9, "bud3.0": 44,
       "cpl.1": 88, "cpb.1": 94, "fe.1": 94, "pe.1": 138}
for a in sys.argv:
    if a.startswith("--") and "=" in a:
        n, v = a[2:].split("=")
        OPT[n] = int(v)
LAY = [0]
def opt(n, d):
    return OPT.get(f"{n}.{LAY[0]}", OPT.get(n, d))

def f2u(x):
    return "0x%08x" % struct.unpack("<I", struct.pack("<f", x))[0]

GL, AL = opt("gl", 5), opt("al", 0)
FA = (lambda n: 0x8000 + 4 * n if n else 0) if AL else (lambda n: n * 0x8000)
F_CIN0, F_X1, F_CIN1 = 0, ((1, 2), (5, 6)), (3, 4)
FLG_G = 0x8000 + (2048 << AL if AL else 0x30000)
FAST = opt("fast", 1)
PQ = 1024 << GL
ZEND = FLG_G + (PQ if FAST else 0) + (1024 << GL if GL else 0x10000) + 0x8000
STATS = (0x1804000, ZEND - 0x8000)
XQ = 0x1820000
XQ_SZ = 0x1C0000
X1T = 0x3E0000
HB = 0x760000
H_SZ = 0 if opt("hreuse", 0) else 0x700000
W1C = 0x1560000
FLG_W = ZEND - 0x4000
STAMP = 0x1700000
W2T = 0x1740000
WS_BYTES = 0x1BA0000

XHALF = 57344 + 32
SCR = 114816
SCR_ST = 8960
KC0 = 4608
ROW_ST = 544
UARR = SCR + 4 * SCR_ST
U_ST = 4576
LDS_BYTES = 163840
WREG = 28672
RED_G = 1152
RED_W = 8 * RED_G
RED_H = 4 * RED_W

sWG, sW = 2, 3
SRD_WS, SRD_OUT, SRD_W1, SRD_W2, SRD_X0, SRD_DBG = 4, 8, 12, 16, 20, 24
sCP, sGAM, sJ, sHH, sDS, sROT = 58, 59, 60, 61, 62, 63
sONES, sHIM = 64, 65
sT0, sT1, sT2, sT3, sT4, sT5 = 66, 67, 68, 69, 70, 71
sLDT, sDSK = 72, 73
sREP, sXQi, sW2B, sXT, sHL, sHS, sFG = 74, 75, 76, 77, 78, 79, 80
sSPIN = 81
sC0, sC1 = 82, 83
sPC = 84
sTM = 86
sWL = 88
sW2O = 89
sSCR, sSCH = 90, 95
sPERM0, sPERM1 = 91, 92
sNH, sCH = 93, 94
sXS = 100
sLDT2 = 99
sFP = 98
sKO = 28
sW2L, sPA = 96, 97

vTID, vL, vL16 = 0, 1, 2
vCX, vUW, vXW = 3, 4, 5
vKF = 6
vUF, vXR, vCO, vEXW, vEXR = 10, 11, 12, 13, 14
vFW, vFP, vONE, vSTAMP, vPA = 15, 16, 17, 18, 19
vXA0, vXA1, vST, vRES, vRW, vRR, vO, vAT, vF2P, vFL, vHL, vPL2 = range(20, 32)
vW2S, vW2R, vWF, vDUM = 20, 21, 23, 26
LIN = 20
WK = 32
W1R = 144
AX = 224

class JAsm(Asm):
    nj = 0
    on = False
    def __call__(self, text, tag=None):
        super().__call__(text, tag)
        if opt("jitter", 0) and self.on and (text == "s_barrier" or (text.startswith("buffer_store_dwordx4") and "s66" not in text)):
            self.nj += 1
            for t in ("s_mul_i32 s46, s46, 1103515245", "s_add_u32 s46, s46, 12345", "s_lshr_b32 s47, s46, 29", "s_cmp_lg_u32 s47, 0",
                      f"s_cbranch_scc1 L_jit{self.nj}", f"s_sleep {opt('jitter', 0)}"):
                self.raw("    " + t)
            self.raw(f"L_jit{self.nj}:")
k = JAsm()
SPIN_MAX = 1 << 16

ENC = opt("enc", -1)
def stamp(idx, cyc=False):
    if ENC >= 0 and not cyc and idx + 32 * LAY[0] in (0, ENC):
        k.wait(lg=0)
        k(f"s_memrealtime {S(sTM,2)}")
        k.wait(lg=0)
        k(f"s_mov_b32 {S(46 if idx + 32*LAY[0] == 0 else 47)}, {S(sTM)}")
    if not DIAG:
        return
    if opt("lite", 0) and idx + 32 * LAY[0] not in (0, 9, 14, 19, 46, 54):
        return
    k.wait(lg=0)
    k(f"{'s_memtime' if cyc != bool(opt('cyc', 0)) else 's_memrealtime'} {S(sTM,2)}")
    k.wait(lg=0)
    k(f"v_writelane_b32 {V(vSTAMP)}, {S(sTM)}, {idx + 32*LAY[0]}")

FINE = []
def fine(name):
    if not DIAG or opt("fine", 0) != FREG[0] or opt("finel", 1) != LAY[0]:
        return
    regs = list(range(28, 46, 2)) + [12, 14, 20, 22, 48, 50, 54, 56] + ([] if FREG[0] == 4 else [24, 26])
    r = regs[len(FINE)]
    FINE.append((name, r))
    k.raw(f"    s_memtime s[{r}:{r+1}]")
FREG = [0]

def srd_base(base, ptr):
    k(f"s_mov_b32 {S(base)}, {S(ptr)}")
    k(f"s_and_b32 {S(base+1)}, {S(ptr+1)}, 0xffff")

def srd(base, ptr, nbytes):
    k(f"s_mov_b32 {S(base)}, {S(ptr)}")
    k(f"s_and_b32 {S(base+1)}, {S(ptr+1)}, 0xffff")
    k(f"s_mov_b32 {S(base+2)}, {hex(nbytes)}")
    k(f"s_mov_b32 {S(base+3)}, 0x20000")

_lab = [0]
def newlab(p):
    _lab[0] += 1
    return f"L_{p}_{_lab[0]}"

def branch(op, lab):
    k.fence(1)
    k(f"{op} {lab}")

def label(lab):
    k.fence()
    k.label(lab)

def poll_load(vtmp, vaddr, soff, off=0, srdn=SRD_WS):
    pol = "nt" if FAST and opt("pnt", 0) and soff == S(sFP) else "sc1"
    k(f"buffer_load_dword {V(vtmp)}, {V(vaddr)}, {S(srdn,4)}, {soff} offen offset:{off} {pol}")

PRECMP = [None]
def precmp(vtmp):
    if opt("pre", 1):
        k(f"v_cmp_eq_u32 vcc, 0, {V(vtmp)}")
        PRECMP[0] = vtmp
SLOW = []
SITES = []
def poll_check(vtmp, vaddr, soff, off=0, srdn=SRD_WS, pre=(), alt=None):
    sl, lp, ok = newlab("slow"), newlab("poll"), newlab("ok")
    if PRECMP[0] != vtmp:
        k(f"v_cmp_eq_u32 vcc, 0, {V(vtmp)}")
    PRECMP[0] = None
    k(f"s_cbranch_vccnz {sl}")
    k.label(ok)
    import inspect
    SITES.append(inspect.stack()[2 if inspect.stack()[1].function == "apoll_check" else 1].function + str(LAY[0]))
    slp = opt("sl_" + SITES[-1], opt("sleep", 0))
    if opt("pipe", 3) and vaddr == vFP:
        ld_ = lambda r: f"    buffer_load_dword {V(r)}, {V(vaddr)}, {S(srdn,4)}, {soff} offen offset:{off} sc1"
        SLOW.extend([f"{sl}:"] + ([f"    s_bitset1_b32 s101, {len(SITES)-1}"] if DIAG else []) +
                    [ld_(vtmp), f"    s_mov_b32 {S(sSPIN)}, 0", f"    s_sleep {opt('pipe', 3)}", f"{lp}:",
                     ld_(vTID), f"    s_add_u32 {S(sSPIN)}, {S(sSPIN)}, 1", "    s_waitcnt vmcnt(1)",
                     f"    v_cmp_eq_u32 vcc, 0, {V(vtmp)}", f"    s_cmp_gt_u32 {S(sSPIN)}, {SPIN_MAX}",
                     f"    s_cbranch_vccz {ok}",
                     ld_(vtmp), "    s_waitcnt vmcnt(1)",
                     f"    v_cmp_eq_u32 vcc, 0, {V(vTID)}",
                     f"    s_cbranch_scc1 {ok}",
                     f"    s_cbranch_vccnz {lp}",
                     f"    s_branch {ok}"])
        return
    SLOW.extend([f"{sl}:"] + ([f"    s_bitset1_b32 s101, {len(SITES)-1}"] if DIAG else []) +
                ([f"    s_mov_b32 {S(sSPIN)}, 0",
                  f"{lp}q:",
                  f"    buffer_load_dword {V(vtmp)}, {V(vaddr)}, {S(srdn,4)}, {soff} offen offset:{off} sc1",
                  f"    s_add_u32 {S(sSPIN)}, {S(sSPIN)}, 1",
                  "    s_waitcnt vmcnt(0)",
                  f"    v_cmp_eq_u32 vcc, 0, {V(vtmp)}",
                  f"    s_cmp_lt_u32 {S(sSPIN)}, 10",
                  f"    s_cbranch_vccz {ok}",
                  f"    s_cbranch_scc1 {lp}q"] if alt else []) +
                ["    " + p for p in pre] +
                [f"    s_mov_b32 {S(sSPIN)}, 0",
                 f"{lp}:"] +
                ([f"    s_sleep {slp}"] if slp else []) +
                [f"    buffer_load_dword {V(vtmp)}, {V(vaddr)}, {S(srdn,4)}, {soff} offen offset:{off} sc1",
                 f"    s_add_u32 {S(sSPIN)}, {S(sSPIN)}, 1"] +
                ([f"    buffer_load_dword {V(alt[0])}, {V(vaddr)}, {S(srdn,4)}, {alt[1]} offen offset:{off} sc1"] if alt else []) +
                ["    s_waitcnt vmcnt(0)"] +
                ([f"    v_or_b32 {V(vtmp)}, {V(vtmp)}, {V(alt[0])}"] if alt else []) +
                [
                 f"    v_cmp_eq_u32 vcc, 0, {V(vtmp)}",
                 f"    s_cmp_gt_u32 {S(sSPIN)}, {SPIN_MAX}",
                 f"    s_cbranch_scc1 {ok}",
                 f"    s_cbranch_vccnz {lp}",
                 f"    s_branch {ok}"])

def run(ops, n=None):
    c = 0
    while ops and (n is None or c < n):
        o = ops.pop(0)
        if callable(o):
            o()
        elif isinstance(o, tuple):
            k(o[0], tag=o[1])
        elif o is not None:
            k(o)
        c += 1

def stats_ops(P, n, vS, vQ, vT):
    o = [f"v_mov_b32 {V(vS)}, 0", f"v_mov_b32 {V(vQ)}, 0"]
    for i in range(n):
        o.append(f"v_dot2c_f32_bf16 {V(vS)}, {S(sONES)}, {V(P+i)}")
        o.append(f"v_dot2c_f32_bf16 {V(vQ)}, {V(P+i)}, {V(P+i)}")
    o += [f"v_permlane32_swap_b32 {V(vS)}, {V(vQ)}",
          f"v_add_f32 {V(vS)}, {V(vS)}, {V(vQ)}",
          f"v_mov_b32 {V(vT)}, {V(vS)}",
          f"v_permlane16_swap_b32 {V(vS)}, {V(vT)}",
          f"v_add_f32 {V(vS)}, {V(vS)}, {V(vT)}",
          f"v_add_f32_dpp {V(vS)}, {V(vS)}, {V(vS)} row_ror:8 row_mask:0xf bank_mask:0xf",
          f"v_lshrrev_b32 {V(vT)}, 1, {V(vS)}",
          f"v_add_u32 {V(vQ)}, {hex(8 << 23)}, {V(vS)}",
          f"v_add_u32 {V(vT)}, {hex(0x1FC00000 + (13 << 23))}, {V(vT)}",
          f"v_permlane32_swap_b32 {V(vT)}, {V(vQ)}",
          f"v_and_b32 {V(vQ)}, 0x7f800000, {V(vQ)}",
          f"v_mul_f32 {V(vQ)}, 0x3fc00000, {V(vQ)}",
          f"v_add_f32 {V(vS)}, {V(vS)}, {V(vQ)}",
          f"v_sub_f32 {V(vS)}, {V(vS)}, {V(vQ)}"]
    return o

def quad_shuffle(pairs):
    D = " row_mask:0xf bank_mask:0xf"
    o = ["s_mov_b32 vcc_lo, 0x0f0f0f0f", "s_mov_b32 vcc_hi, 0x0f0f0f0f"]
    for d, s in pairs:
        o.append(f"v_cndmask_b32_dpp {V(d)}, {V(s+2)}, {V(s)}, vcc row_ror:4" + D)
        o.append(f"v_cndmask_b32_dpp {V(d+2)}, {V(s+3)}, {V(s+1)}, vcc row_ror:4" + D)
    o.append("s_not_b64 vcc, vcc")
    for d, s in pairs:
        o.append(f"v_cndmask_b32_dpp {V(d+1)}, {V(s)}, {V(s+2)}, vcc row_ror:12" + D)
        o.append(f"v_cndmask_b32_dpp {V(d+3)}, {V(s+1)}, {V(s+3)}, vcc row_ror:12" + D)
    return o

X0R = WK
X0O = WK + 8
vP0A = WK + 16
vP0S = WK + 20
vGO = WK + 28

def p0x_addr(part):
    t = vP0A
    if part:
        return p0x_addr2()
    k.c("row re-layout unit of this wave: W = 4m+w, octet group a = W%7, rows (blk, j2) = W/7, both hh8")
    k(f"s_lshl2_add_u32 {S(sT0)}, {S(sT0)}, {S(sW)}")
    k(f"s_mul_i32 {S(sT1)}, {S(sT0)}, 9363")
    k(f"s_lshr_b32 {S(sT1)}, {S(sT1)}, 16")
    k(f"s_mul_i32 {S(sT2)}, {S(sT1)}, 7")
    k(f"s_sub_u32 {S(sT0)}, {S(sT0)}, {S(sT2)}")
    k(f"s_lshr_b32 {S(sT2)}, {S(sT1)}, 2")
    k(f"s_lshl_b32 {S(sT2)}, {S(sT2)}, 6")
    k(f"s_and_b32 {S(sT3)}, {S(sT1)}, 3")
    k(f"s_lshl1_add_u32 {S(sT2)}, {S(sT3)}, {S(sT2)}")
    k(f"v_and_b32 {V(t+1)}, 0x30, {V(vL16)}")
    k(f"v_bfe_u32 {V(t)}, {V(vL)}, 2, 1")
    k(f"v_add3_u32 {V(t+3)}, {V(t+1)}, {V(t)}, {S(sT2)}")
    k(f"v_mul_u32_u24 {V(t+3)}, 896, {V(t+3)}")
    k(f"v_lshrrev_b32 {V(t+2)}, 3, {V(vL)}")
    k(f"v_lshl_add_u32 {V(t+3)}, {V(t+2)}, 4, {V(t+3)}")
    k(f"s_lshl_b32 {S(sT2)}, {S(sT0)}, 7")
    k(f"v_add_u32 {V(t+3)}, {S(sT2)}, {V(t+3)}")

def p0x_addr2():
    t = vP0A
    k(f"v_lshl_add_u32 {V(t)}, {V(t)}, 2, {V(t+1)}")
    k(f"v_lshrrev_b32 {V(t+2)}, 5, {V(vL)}")
    k(f"v_lshl_add_u32 {V(t)}, {V(t+2)}, 3, {V(t)}")
    k(f"v_and_b32 {V(t+2)}, 16, {V(vL)}")
    k(f"v_lshl_add_u32 {V(t)}, {V(t+2)}, 2, {V(t)}")
    k(f"s_lshl_b32 {S(sT2)}, {S(sT1)}, 7")
    k(f"v_add_u32 {V(t)}, {S(sT2)}, {V(t)}")
    k(f"v_lshrrev_b32 {V(t+2)}, 2, {V(vL)}")
    k(f"v_lshl_add_u32 {V(t+1)}, {V(t+2)}, 14, {V(t+1)}")
    k(f"s_lshl_b32 {S(sT0)}, {S(sT0)}, 18")
    k(f"s_lshl_b32 {S(sT1)}, {S(sT1)}, 7")
    k(f"s_add_u32 {S(sT0)}, {S(sT0)}, {S(sT1)}")
    k(f"v_add_u32 {V(t+1)}, {S(sT0)}, {V(t+1)}")

def p0x_loads():
    k(f"buffer_load_dwordx4 {V(X0R,4)}, {V(vP0A+3)}, {S(SRD_X0,4)}, 0 offen")
    k(f"buffer_load_dwordx4 {V(X0R+4,4)}, {V(vP0A+3)}, {S(SRD_X0,4)}, {S(sT4)} offen")

def p0x_body():
    t = vP0A
    if opt("goearly", 2) == 1:
        k.wait(vm=len(k.vm) - 2)
        poll_load(vGO, vGO + 3, 0, 0, SRD_DBG)
    run(quad_shuffle([(X0O + 4 * a, X0R + 4 * a) for a in range(2)]))
    k(f"s_mov_b32 {S(sT0)}, {hex(XQ)}")
    for a in range(2):
        k(f"buffer_store_dwordx4 {V(X0O+4*a,4)}, {V(t+1)}, {S(SRD_WS,4)}, {S(sT0)} offen offset:{64*a} sc1")
    s0 = stats_ops(X0R, 4, vP0S, vP0S + 1, vP0S + 2)
    s1 = stats_ops(X0R + 4, 4, vP0S + 2, vP0S + 3, vP0S + 4)
    for _ in range(12):
        run(s0, 1)
        run(s1, 1)
    run(s0[1:])
    if opt("goearly", 2) == 2:
        poll_load(vGO, vGO + 3, 0, 0, SRD_DBG)

def p0x_atomics():
    poll_check(vGO, vGO + 3, 0, 0, SRD_DBG)
    k(f"s_mov_b32 {S(sT0)}, {hex(STATS[0])}")
    k("s_mov_b32 exec_lo, 0x00ff00ff")
    k("s_mov_b32 exec_hi, 0x00ff00ff")
    k(f"buffer_atomic_add_f32 {V(vP0S)}, {V(vP0A)}, {S(SRD_WS,4)}, {S(sT0)} offen sc1", tag="st")
    k("s_mov_b64 exec, -1")
    poll_load(vGO, vGO + 2, 0, 128, SRD_DBG)
    if opt("warmat", 2) == 3:
        warm_loads()

def flag_all(off):
    k(f"s_mov_b32 {S(sT0)}, {hex(off)}")
    k(f"s_mov_b64 exec, 3")
    k(f"buffer_store_dword {V(vONE)}, {V(vFW)}, {S(SRD_WS,4)}, {S(sT0)} offen sc1")
    k(f"s_mov_b64 exec, -1")

ND = [0]
def w2_dma():
    d = ND[0]
    ND[0] += 1
    if opt("abl", 0) & 2:
        return
    if opt("rot", 1):
        if d == 0:
            k(f"s_and_b32 {S(sROT)}, {S(sWG)}, 7")
            k(f"s_min_u32 {S(sROT)}, {S(sROT)}, 6")
            k(f"s_mul_i32 {S(sXS)}, {S(sW)}, {WREG}")
        elif d % 4 == 0:
            k(f"s_add_u32 {S(sROT)}, {S(sROT)}, 1")
            k(f"s_cmp_eq_u32 {S(sROT)}, 7")
            k(f"s_cselect_b32 {S(sROT)}, 0, {S(sROT)}")
        if d % 4 == 0:
            k(f"s_lshl_b32 {S(sT4)}, {S(sROT)}, 12")
            k(f"s_add_u32 m0, {S(sT4)}, {S(sXS)}")
            k(f"s_mul_i32 {S(sW2O)}, {S(sT4)}, 7")
            k(f"s_add_u32 {S(sW2O)}, {S(sW2O)}, {S(sW2B)}")
        else:
            k(f"s_add_u32 {S(sW2O)}, {S(sW2O)}, {7168 - 1024}")
        k(f"buffer_load_dwordx4 {V(vW2S)}, {S(SRD_W2,4)}, {S(sW2O)} offen offset:{1024*(d%4)} lds", tag=("w2", d))
        return
    if d == 0:
        k(f"s_mul_i32 {S(sT4)}, {S(sW)}, {WREG}")
        k(f"s_mov_b32 m0, {S(sT4)}")
    elif d % 4 == 0:
        k(f"s_add_u32 m0, m0, 4096")
    if d:
        k(f"s_add_u32 {S(sW2B)}, {S(sW2B)}, {7168 - 1024 + (4096 if d % 4 == 0 else 0)}")
    k(f"buffer_load_dwordx4 {V(vW2S)}, {S(SRD_W2,4)}, {S(sW2B)} offen offset:{1024*(d%4)} lds", tag=("w2", d))

NW2 = [0]
def w2_load():
    n = NW2[0]
    NW2[0] += 1
    if opt("abl", 0) & 4:
        return
    k(f"buffer_load_dwordx4 {A(112+4*n,4)}, {V(vL16)}, {S(SRD_WS,4)}, {S(sW2L)} offen offset:{1024*(n%4)} sc1")
    if n % 4 == 3:
        k(f"s_add_u32 {S(sW2L)}, {S(sW2L)}, 4096")

def w2_tr_ops(lo, hi):
    return [f"ds_read_b64_tr_b16 {A((s*2+dt)*4+2*u,2)}, {V(vW2R+dt)} offset:{(s%14)*2048+u*1024}"
            for s in range(lo, hi) for dt in range(2) for u in range(2)]

NW1 = [0]
def w1_load():
    ks = NW1[0]
    NW1[0] += 1
    if opt("abl", 0) & 1:
        return
    k(f"buffer_load_dwordx4 {V(W1R+4*ks,4)}, {V(vL16)}, {S(SRD_WS,4)}, {S(sWL)} offen offset:{1024*(ks%4)} sc1")
    if ks % 4 == 3:
        k(f"s_add_u32 {S(sWL)}, {S(sWL)}, 4096")

def common():
    k(f"v_mov_b32 {V(vONE)}, 1")
    k(f"s_mov_b32 {S(sONES)}, 0x3f803f80")
    k(f"s_mov_b32 {S(sHIM)}, 0xffff0000")
    k(f"s_and_b32 {S(sNH)}, {S(sW)}, 1")
    k(f"s_lshr_b32 {S(sCH)}, {S(sW)}, 1")
    k(f"v_and_b32 {V(vGO+1)}, 12, {V(vL)}")

def roles():
    k(f"s_cmp_ge_u32 {S(sJ)}, 14")
    k(f"s_cselect_b32 {S(sT2)}, 1, 0")
    k(f"s_cselect_b32 {S(sT3)}, 14, 0")
    k(f"s_lshl1_add_u32 {S(sGAM)}, {S(sREP)}, {S(sT2)}")
    k(f"s_sub_u32 {S(sJ)}, {S(sJ)}, {S(sT3)}")
    k(f"s_and_b32 {S(sHH)}, {S(sJ)}, 1")
    k(f"s_lshr_b32 {S(sDS)}, {S(sJ)}, 1")
    k(f"s_lshl_b32 {S(sREP)}, {S(sREP)}, 12")
    k(f"s_lshl_b32 {S(sT0)}, {S(sW)}, 13")
    k(f"s_lshl4_add_u32 {S(sT0)}, {S(sWG)}, {S(sT0)}")
    k(f"v_lshl_add_u32 {V(vFW)}, {V(vL)}, 12, {S(sT0)}")
    k(f"v_and_b32 {V(vGO+2)}, 4, {V(vL)}")
    k(f"v_mov_b32 {V(vGO+3)}, 0")

FIRST = []
def prologue():
    k(f"s_getpc_b64 {S(sPC,2)}")
    k.label("L_pc")
    if DIAG:
        k("s_memrealtime s[12:13]")
    k(f"s_cmp_ge_u32 {S(sWG)}, 256")
    k("s_cbranch_scc1 L_end")
    k("s_load_dwordx16 s[28:43], s[0:1], 0")
    k("s_load_dwordx8 s[44:51], s[0:1], 64")
    k("s_load_dwordx4 s[52:55], s[0:1], 96")
    k("s_load_dwordx2 s[56:57], s[0:1], 112")
    k.c("wave 0 of helpers 8..31 pulls a third of the code into L2")
    k(f"s_sub_u32 {S(sT0)}, {S(sWG)}, 8")
    k(f"s_cmp_ge_u32 {S(sT0)}, 24")
    k("s_cbranch_scc1 L_nopf")
    k(f"v_cmp_gt_u32 vcc, 64, {V(vTID)}")
    k(f"s_lshr_b32 {S(sT0)}, {S(sT0)}, 3")
    k(f"s_lshl_b32 {S(sT0)}, {S(sT0)}, 7")
    k(f"v_mul_u32_u24 {V(vL16)}, 384, {V(vTID)}")
    k(f"v_add_u32 {V(vL16)}, {S(sT0)}, {V(vL16)}")
    k("s_cbranch_vccz L_nopf")
    for q in range(2):
        k(f"v_min_u32 {V(vL16)}, L_table_end-L_pc-4, {V(vL16)}")
        k(f"global_load_dword {V(vDUM)}, {V(vL16)}, {S(sPC,2)}")
        k.vm = []
        if q == 0:
            k(f"v_add_u32 {V(vL16)}, {64*384}, {V(vL16)}")
    k.label("L_nopf")
    k(f"v_lshrrev_b32 {V(vONE)}, 6, {V(vTID)}")
    k(f"v_and_b32 {V(vL)}, 63, {V(vTID)}")
    k(f"v_readfirstlane_b32 {S(sW)}, {V(vONE)}")
    k(f"v_lshlrev_b32 {V(vL16)}, 4, {V(vL)}")
    if DIAG:
        k(f"v_mov_b32 {V(vSTAMP)}, 0")
        k("s_mov_b32 s101, 0")
    k(f"s_sub_u32 {S(sT0)}, {S(sWG)}, 32")
    k(f"s_and_b32 {S(sREP)}, {S(sT0)}, 7")
    k(f"s_lshr_b32 {S(sJ)}, {S(sT0)}, 3")
    k(f"s_mul_i32 {S(sCP)}, {S(sREP)}, 28")
    k(f"s_add_u32 {S(sCP)}, {S(sCP)}, {S(sJ)}")
    k(f"s_lshl_b32 {S(sT1)}, {S(sCP)}, 10")
    k(f"v_lshl_add_u32 {V(PRM+6)}, {V(vTID)}, 2, {S(sT1)}")
    p0x_addr(0)
    if not opt("lean", 1):
        p0x_addr(1)
        common()
        roles()
    for b, n in ((SRD_X0, 2048 * 896), (SRD_WS, WS_BYTES), (SRD_DBG, 256)):
        k(f"s_mov_b32 {S(b+2)}, {hex(n)}")
        k(f"s_mov_b32 {S(b+3)}, 0x20000")
    k(f"s_movk_i32 {S(sT4)}, {8*896}")
    k.wait(lg=0)
    srd_base(SRD_X0, 28)
    if opt("jitter", 0):
        k("s_memtime s[46:47]")
        k.wait(lg=0)
        k(f"s_mul_i32 s47, {S(sW)}, 0x3779b1")
        k("s_add_u32 s46, s46, s47")
        k.on = True
    if DIAG:
        k(f"v_writelane_b32 {V(vSTAMP)}, s12, 0")
    elif ENC >= 0:
        stamp(0)
    k(f"s_cmp_lt_u32 {S(sWG)}, 32")
    branch("s_cbranch_scc1", "L_clear")
    p0x_loads()
    for i in range(6):
        k(f"global_load_dword {V(PRM+i)}, {V(PRM+6)}, {S(30+2*i,2)}")
    FIRST.extend(k.vm)
    branch("s_branch", "L_main")
    label("L_clear")
    k.forget()
    srd_base(SRD_WS, 56)
    srd_base(SRD_DBG, 54)
    if opt("lean", 1):
        common()
    z = HZ
    for i in range(4):
        k(f"v_mov_b32 {V(z+i)}, 0")
    k(f"s_lshl_b32 {S(sT5)}, {S(sWG)}, 7")
    k(f"s_add_u32 {S(sT5)}, {S(sT5)}, {hex(FLG_W)}")
    l1, l2 = newlab("h1"), newlab("h2")
    k(f"s_cmp_lt_u32 {S(sWG)}, 28")
    branch("s_cbranch_scc1", l1)
    k(f"s_sub_u32 {S(sT2)}, {S(sWG)}, 28")
    k(f"s_lshl2_add_u32 {S(sT0)}, {S(sT2)}, {S(sW)}")
    k(f"s_mul_i32 {S(sT0)}, {S(sT0)}, {(ZEND - 0x8000) // 16}")
    k(f"s_add_u32 {S(sT0)}, {S(sT0)}, 0x8000")
    k(f"s_add_u32 {S(sT1)}, {S(sT0)}, {(ZEND - 0x8000) // 16}")
    for q in range(opt("zwait", 0)):
        k(f"v_lshlrev_b32 {V(z+4)}, 12, {V(vTID)}")
        k(f"buffer_load_dword {V(z+5)}, {V(z+4)}, {S(SRD_X0,4)}, {S(sT0)} offen offset:{1024*q}")
        k.wait(vm=0)
    lz = newlab("z")
    label(lz)
    for i in range(2):
        k(f"buffer_store_dwordx4 {V(z,4)}, {V(vL16)}, {S(SRD_WS,4)}, {S(sT0)} offen offset:{1024*i} sc1")
    k(f"s_add_u32 {S(sT0)}, {S(sT0)}, 2048")
    k(f"s_cmp_lt_u32 {S(sT0)}, {S(sT1)}")
    k(f"s_cbranch_scc1 {lz}")
    k(f"s_lshl_b32 {S(sT0)}, {S(sT2)}, 2")
    k.wait(vm=0)
    k("s_barrier")
    k(f"s_cmp_lg_u32 {S(sW)}, 1")
    branch("s_cbranch_scc1", "L_end2")
    k("s_mov_b64 exec, 1")
    k(f"buffer_store_dword {V(vONE)}, {V(z)}, {S(SRD_DBG,4)}, {S(sT0)} offen offset:192 sc1")
    k("s_mov_b64 exec, -1")
    branch("s_branch", "L_end2")
    label(l1)
    k.forget()
    k(f"s_cmp_gt_u32 {S(sWG)}, 2")
    branch("s_cbranch_scc1", "L_helper")
    k(f"s_lshl2_add_u32 {S(sT0)}, {S(sWG)}, {S(sW)}")
    k(f"s_lshl_b32 {S(sT0)}, {S(sT0)}, 12")
    k(f"s_cmp_eq_u32 {S(sWG)}, 0")
    k(f"s_cselect_b32 {S(sT1)}, {hex(STATS[0] + 0x4000)}, 0")
    k(f"s_cselect_b32 {S(sT2)}, 0, 124")
    k(f"s_add_u32 {S(sT0)}, {S(sT0)}, {S(sT1)}")
    k(f"s_sub_u32 {S(sT0)}, {S(sT0)}, 0x4000")
    for i in range(4):
        k(f"buffer_store_dwordx4 {V(z,4)}, {V(vL16)}, {S(SRD_WS,4)}, {S(sT0)} offen offset:{1024*i} sc1")
    k(f"s_lshl2_add_u32 {S(sT0)}, {S(sWG)}, {S(sT2)}")
    stamp(4)
    k.wait(vm=0)
    k("s_barrier")
    stamp(5)
    k(f"s_cmp_lg_u32 {S(sW)}, 2")
    branch("s_cbranch_scc1", "L_helper")
    k("s_mov_b64 exec, 1")
    k(f"buffer_store_dword {V(vONE)}, {V(z)}, {S(SRD_DBG,4)}, {S(sT0)} offen sc1")
    k("s_mov_b64 exec, -1")
    branch("s_branch", "L_helper")
    label("L_main")
    k.forget()

def w2_lane_src(d, pitch, t0, t1):
    k(f"v_lshrrev_b32 {V(t0)}, 3, {V(vL)}")
    k(f"v_mul_u32_u24 {V(d)}, {pitch}, {V(t0)}")
    k(f"v_and_b32 {V(t0)}, 7, {V(vL)}")
    k(f"v_bfe_u32 {V(t1)}, {V(vL)}, 4, 1")
    k(f"v_lshlrev_b32 {V(t1)}, 2, {V(t1)}")
    k(f"v_xor_b32 {V(t0)}, {V(t0)}, {V(t1)}")
    k(f"v_lshl_add_u32 {V(d)}, {V(t0)}, 4, {V(d)}")

def h_prefetch():
    k.forget()
    a, f, d = WK, WK + 1, WK + 2
    poll_load(vGO, vGO + 1, 0, 192, SRD_DBG)
    k(f"s_and_b32 {S(sT0)}, {S(sWG)}, 7")
    k(f"s_lshr_b32 {S(sT1)}, {S(sWG)}, 4")
    k(f"s_lshl1_add_u32 {S(sGAM)}, {S(sT0)}, {S(sT1)}")
    k(f"s_bfe_u32 {S(sHH)}, {S(sWG)}, 0x10003")
    k(f"s_mul_i32 {S(sHL)}, {S(sGAM)}, {4*112*1024}")
    k(f"s_lshl2_add_u32 {S(sT3)}, {S(sHH)}, {S(sW)}")
    k(f"s_mul_i32 {S(sT3)}, {S(sT3)}, {28*1024}")
    k(f"s_add_u32 {S(sHL)}, {S(sHL)}, {S(sT3)}")
    k(f"s_lshl_b32 {S(sFG)}, {S(sGAM)}, {GL + 6}")
    k(f"s_add_u32 {S(sFG)}, {S(sFG)}, {hex(FLG_G + (PQ if FAST and opt('hpf', 0) == 2 else 0))}")
    k(f"v_min_u32 {V(f)}, 13, {V(vL)}")
    k(f"s_mul_i32 {S(sT2)}, {S(sW)}, 14")
    k(f"v_add_lshl_u32 {V(f)}, {V(f)}, {S(sT2)}, {GL}")
    k(f"v_min_u32 {V(a)}, 55, {V(vL)}")
    k(f"v_lshlrev_b32 {V(a)}, 7, {V(a)}")
    poll_check(vGO, vGO + 1, 0, 192, SRD_DBG)
    for ph in range(4):
        lp, go = newlab("hp"), newlab("hg")
        k(f"s_mov_b32 {S(sSPIN)}, 0")
        k(f"s_add_u32 {S(sT0)}, {S(sHL)}, {hex(HB + (ph >> 1)*H_SZ + (ph & 1)*2*112*1024)}")
        label(lp)
        k(f"s_sleep {opt('hsl', 1)}")
        poll_load(d, f, S(sFG), 4 * ph)
        k(f"s_add_u32 {S(sSPIN)}, {S(sSPIN)}, 1")
        k(f"v_cmp_eq_u32 vcc, 0, {V(d)}")
        k(f"s_cmp_gt_u32 {S(sSPIN)}, 150")
        k(f"s_cbranch_scc1 L_end3")
        k(f"s_cbranch_vccnz {lp}")
        for q in range(4):
            k(f"buffer_load_dword {V(d+1+q)}, {V(a)}, {S(SRD_WS,4)}, {S(sT0)} offen sc1")
            k(f"s_add_u32 {S(sT0)}, {S(sT0)}, 7168")
        k.vm = []
    label("L_end3")

HZ = WK + 64
SPL = opt("spl", 0)
def helper():
    label("L_helper")
    k.forget()
    srd(SRD_W1, 48, 448 * 3584)
    srd(SRD_W2, 50, 1792 * 896)
    z = HZ
    F = WK + 112
    G = WK + 168
    t, a1, a2, aE, aO = z + 8, z + 10, z + 11, z + 12, z + 13
    IMG2 = 57344
    w2_lane_src(a1, 3584, t, t + 1)
    w2_lane_src(a2, 896, t, t + 1)
    if opt("abl", 0) & 32:
        k("s_endpgm")
    if opt("hwait", 3):
        srd(SRD_OUT, 28 if opt("hwait", 3) < 3 else 40, 2048 * 896 if opt("hwait", 3) < 3 else 448 * 512)
        k(f"s_lshl_b32 {S(sT0)}, {S(sWG)}, {16 if opt('hwait', 3) < 3 else 13}")
        k(f"v_lshlrev_b32 {V(t)}, {(8, 8, 5)[opt('hwait', 3) - 1]}, {V(vTID)}")
        if opt("hwait", 3) == 2:
            k(f"v_and_b32 {V(t)}, 0xc000, {V(t)}")
        k(f"buffer_load_dword {V(t+1)}, {V(t)}, {S(SRD_OUT,4)}, {S(sT0)} offen")
        k.wait(vm=0)
    if opt("hdelay", 0):
        k(f"s_sleep {opt('hdelay', 0)}")
    k(f"s_mul_i32 {S(sT0)}, {S(sW)}, {112*3584}")
    k(f"s_lshl_b32 {S(sT1)}, {S(sWG)}, 7")
    k(f"s_add_u32 {S(sT0)}, {S(sT0)}, {S(sT1)}")
    k(f"s_mul_i32 {S(sT3)}, {S(sW)}, 14336")
    k(f"s_mov_b32 m0, {S(sT3)}")
    for c in range(14):
        k(f"buffer_load_dwordx4 {V(a1)}, {S(SRD_W1,4)}, {S(sT0)} offen lds", tag="w1")
        k(f"s_add_u32 m0, m0, 1024")
        k(f"s_add_u32 {S(sT0)}, {S(sT0)}, {8*3584}")
    k(f"v_bfe_u32 {V(t+1)}, {V(vL)}, 2, 2")
    k(f"v_lshlrev_b32 {V(t)}, 7, {V(t+1)}")
    k(f"v_bfe_u32 {V(t+1)}, {V(vL)}, 3, 1")
    k(f"v_lshl_add_u32 {V(t)}, {V(t+1)}, 6, {V(t)}")
    k(f"v_bfe_u32 {V(t+1)}, {V(vL)}, 4, 1")
    k(f"v_lshl_add_u32 {V(t)}, {V(t+1)}, 5, {V(t)}")
    k(f"v_and_b32 {V(t+1)}, 3, {V(vL)}")
    k(f"v_lshl_add_u32 {V(t)}, {V(t+1)}, 3, {V(t)}")
    k(f"v_lshrrev_b32 {V(t+1)}, 5, {V(vL)}")
    k(f"v_lshl_add_u32 {V(a1)}, {V(t+1)}, 10, {V(t)}")
    k(f"v_lshl_add_u32 {V(aE)}, {V(t+1)}, 9, {V(t)}")
    k(f"s_lshl_b32 {S(sT0)}, {S(sCH)}, 6")
    k(f"v_xor_b32 {V(a1)}, {S(sT0)}, {V(a1)}")
    k(f"s_mul_i32 {S(sT0)}, {S(sNH)}, {2048 if SPL else 28672}")
    k(f"v_add_u32 {V(a1)}, {S(sT0)}, {V(a1)}")
    k(f"s_lshl_b32 {S(sT0)}, {S(sNH)}, 6")
    k(f"v_xor_b32 {V(aE)}, {S(sT0)}, {V(aE)}")
    k(f"v_xor_b32 {V(aO)}, 64, {V(aE)}")
    k(f"s_mul_i32 {S(sT1)}, {S(sW)}, 7")
    k(f"s_lshr_b32 {S(sT0)}, {S(sT1)}, 1")
    k(f"s_lshl_b32 {S(sT0)}, {S(sT0)}, 11")
    k(f"s_add_u32 {S(sT0)}, {S(sT0)}, {IMG2}")
    k(f"v_add_u32 {V(aE)}, {S(sT0)}, {V(aE)}")
    k(f"s_add_u32 {S(sT0)}, {S(sT1)}, 1")
    k(f"s_lshr_b32 {S(sT0)}, {S(sT0)}, 1")
    k(f"s_lshl_b32 {S(sT0)}, {S(sT0)}, 11")
    k(f"s_add_u32 {S(sT0)}, {S(sT0)}, {IMG2}")
    k(f"v_add_u32 {V(aO)}, {S(sT0)}, {V(aO)}")
    k.wait(vm=0)
    k("s_barrier")
    stamp(3)
    for ks in range(14):
        for u in range(2):
            k(f"ds_read_b64_tr_b16 {V(F+4*ks+2*u,2)}, {V(a1)} offset:{ks*(4096 if SPL else 2048)+u*512}")
    k(f"s_and_b32 {S(sHL)}, {S(sWG)}, 3")
    k(f"s_lshl3_add_u32 {S(sHL)}, {S(sHL)}, {S(sW)}")
    k(f"s_add_u32 {S(sHL)}, {S(sHL)}, 4")
    k(f"s_mul_i32 {S(sHL)}, {S(sHL)}, {56*896}")
    k(f"s_lshr_b32 {S(sHS)}, {S(sWG)}, 2")
    k(f"s_lshl_b32 {S(sHS)}, {S(sHS)}, 7")
    k(f"s_add_u32 {S(sHL)}, {S(sHL)}, {S(sHS)}")
    k(f"s_mul_i32 {S(sT3)}, {S(sW)}, 7168")
    k(f"s_add_u32 m0, {S(sT3)}, {IMG2}")
    for _ in range(7):
        k(f"buffer_load_dwordx4 {V(a2)}, {S(SRD_W2,4)}, {S(sHL)} offen lds", tag="w2")
        k(f"s_add_u32 m0, m0, 1024")
        k(f"s_add_u32 {S(sHL)}, {S(sHL)}, {8*896}")
    c, u_ = z, z + 2
    for i in range(56):
        k(f"v_dot2c_f32_bf16 {V(c)}, {S(sONES)}, {V(F+i)}")
    k(f"v_mov_b32 {V(u_)}, {V(c)}")
    k(f"v_permlane32_swap_b32 {V(c)}, {V(u_)}")
    k(f"v_add_f32 {V(c)}, {V(c)}, {V(u_)}")
    k(f"v_lshlrev_b32 {V(t)}, 2, {V(vTID)}")
    k(f"v_add_u32 {V(t)}, 0x18000, {V(t)}")
    k(f"ds_write_b32 {V(t)}, {V(c)}")
    k(f"v_xor_b32 {V(t)}, 256, {V(t)}")
    k.wait(lg=0)
    k("s_barrier")
    k(f"ds_read_b32 {V(u_)}, {V(t)}")
    k(f"s_lshl2_add_u32 {S(sT1)}, {S(sWG)}, {S(sW)}")
    k(f"s_mul_i32 {S(sT0)}, {S(sT1)}, 14336")
    k(f"s_add_u32 {S(sT0)}, {S(sT0)}, {hex(W1C)}")
    if SPL:
        k(f"s_mul_i32 {S(sT2)}, {S(sNH)}, {14336 - 1024}")
        k(f"s_sub_u32 {S(sT0)}, {S(sT0)}, {S(sT2)}")
        poll_load(vGO, vGO + 1, 0, 192, SRD_DBG)
    def fl(off):
        k("s_mov_b64 exec, 1")
        k(f"buffer_store_dword {V(vONE)}, {V(z+1)}, {S(SRD_WS,4)}, {S(sT5)} offen offset:{off} sc1")
        k("s_mov_b64 exec, -1")
    k(f"s_mul_i32 {S(sT1)}, {S(sT1)}, 7168")
    k(f"s_add_u32 {S(sT1)}, {S(sT1)}, {hex(W2T)}")
    k(f"v_add_f32 {V(c)}, {V(c)}, {V(u_)}")
    k(f"v_mul_f32 {V(c)}, {f2u(-1.0/448)}, {V(c)}")
    for i in range(56):
        tt = z + 4 + 2 * (i & 1)
        k(f"v_lshlrev_b32 {V(tt)}, 16, {V(F+i)}")
        k(f"v_and_b32 {V(tt+1)}, {S(sHIM)}, {V(F+i)}")
        pk("add", V(tt, 2), V(tt, 2), V(c, 2), bc=(1,))
        k(f"v_cvt_pk_bf16_f32 {V(F+i)}, {V(tt)}, {V(tt+1)}")
        if i % 4 == 3:
            ks = i // 4
            if SPL:
                k(f"buffer_store_dwordx4 {V(F+4*ks,4)}, {V(vL16)}, {S(SRD_WS,4)}, {S(sT0)} offen offset:{2048*(ks%2)} sc1", tag=("c", ks))
                if ks % 2 == 1:
                    k(f"s_add_u32 {S(sT0)}, {S(sT0)}, 4096")
                if ks == SPL:
                    k.wait_tag_vm(("c", 6))
                    poll_check(vGO, vGO + 1, 0, 192, SRD_DBG)
                    k("s_barrier")
                    wave0(lambda: fl(32))
                    stamp(2)
            else:
                k(f"buffer_store_dwordx4 {V(F+4*ks,4)}, {V(vL16)}, {S(SRD_WS,4)}, {S(sT0)} offen offset:{1024*(ks%4)} sc1")
                if ks % 4 == 3:
                    k(f"s_add_u32 {S(sT0)}, {S(sT0)}, 4096")
    if not SPL:
        poll_load(vGO, vGO + 1, 0, 192, SRD_DBG)
        poll_check(vGO, vGO + 1, 0, 192, SRD_DBG)
    k.wait(vm=0)
    k("s_barrier")
    wave0(lambda: fl(0))
    stamp(1)
    for i in range(7):
        for u in range(2):
            k(f"ds_read_b64_tr_b16 {V(G+4*i+2*u,2)}, {V(aO if i & 1 else aE)} offset:{(i//2)*2048+u*1024}")
    for i in range(7):
        k(f"buffer_store_dwordx4 {V(G+4*i,4)}, {V(vL16)}, {S(SRD_WS,4)}, {S(sT1)} offen offset:{1024*(i%4)} sc1")
        if i == 3:
            k(f"s_add_u32 {S(sT1)}, {S(sT1)}, 4096")
    k.wait(vm=0)
    k("s_barrier")
    wave0(lambda: fl(64))
    stamp(25)
    label("L_end2")
    if opt("hpf", 0):
        h_prefetch()
    if DIAG:
        k(f"s_lshl_b32 {S(sT0)}, {S(sWG)}, 10")
        k(f"s_add_u32 {S(sT0)}, {S(sT0)}, {hex(STAMP)}")
        k(f"v_lshlrev_b32 {V(WK)}, 2, {V(vTID)}")
        k(f"buffer_store_dword {V(vSTAMP)}, {V(WK)}, {S(SRD_WS,4)}, {S(sT0)} offen")
    k("s_endpgm")

KW = W1R
PRM = KW
TBL = KW + 8
GA = KW + 20
TA = GA + 17
vKW, vKR, vKC, vDSK = KW + 42, KW + 43, KW + 44, KW + 45

def table_words():
    def bf16v(m):
        u = struct.unpack("<I", struct.pack("<f", float(m)))[0]
        u = ((u + 0x7FFF + ((u >> 16) & 1)) >> 16) << 16
        return int(struct.unpack("<f", struct.pack("<I", u))[0])
    rowv = list(range(8)) + [256, 258, 260, 262, 512, 516, 768, 772, 1024, 1280, 1536, 1792, 2048]
    def idx(m):
        if m < 0:
            return (KC0 + 4096 + 64) // 8
        l = bf16v(m)
        r = [r for r, a in enumerate(rowv) if l >= a and (l - a) % 8 == 0 and l - a < 256][-1]
        return (r % 16) * 33 + (l - rowv[r]) // 8 + (SCR_ST // 8 if r >= 16 else 0)
    rows = []
    for lam in range(128):
        e = [idx(2047 - 16 * lam - i) for i in range(17)] + [0] * 7
        rows.append([e[2 * i] | (e[2 * i + 1] << 16) for i in range(12)])
    out = []
    for qd in range(3):
        for lam in range(128):
            out.append(rows[lam][4 * qd:4 * qd + 4])
    return out

def addr_conv():
    t0, t1, t2, t3 = KW + 100, KW + 101, KW + 102, KW + 103
    r16, g4, cc = KW + 104, KW + 105, KW + 106
    o = []
    e = o.append
    e(f"v_and_b32 {V(r16)}, 15, {V(vL)}")
    e(f"v_lshrrev_b32 {V(g4)}, 4, {V(vL)}")
    e(f"v_and_b32 {V(cc)}, 3, {V(vL)}")
    e(f"s_mul_i32 {S(sSCR)}, {S(sW)}, {SCR_ST}")
    e(f"s_add_u32 {S(sSCR)}, {S(sSCR)}, {SCR}")
    e(f"s_mul_i32 {S(sSCH)}, {S(sCH)}, {2*SCR_ST}")
    e(f"s_add_u32 {S(sSCH)}, {S(sSCH)}, {SCR}")
    e(f"v_lshl_add_u32 {V(vKW)}, {V(vL)}, 3, {S(sSCR)}")
    e(f"v_mul_u32_u24 {V(vKR)}, {ROW_ST}, {V(r16)}")
    e(f"v_lshl_add_u32 {V(vKR)}, {V(g4)}, 4, {V(vKR)}")
    e(f"v_add_u32 {V(vKR)}, {S(sSCR)}, {V(vKR)}")
    e(f"v_mul_u32_u24 {V(t0)}, 132, {V(g4)}")
    e(f"v_add_u32 {V(t0)}, {V(t0)}, {V(r16)}")
    e(f"s_lshl2_add_u32 {S(sT2)}, {S(sNH)}, {S(sSCH)}")
    e(f"v_lshl_add_u32 {V(TA)}, {V(t0)}, 3, {S(sT2)}")
    e(f"v_add_u32 {V(TA+1)}, {SCR_ST}, {V(TA)}")
    e(f"v_and_b32 {V(t0)}, 127, {V(vTID)}")
    e(f"s_add_u32 {S(sT2)}, {S(sSCH)}, {KC0}")
    e(f"v_lshl_add_u32 {V(vKC)}, {V(t0)}, 5, {S(sT2)}")
    e(f"v_lshrrev_b32 {V(t0)}, 5, {V(vL)}")
    e(f"v_bfe_u32 {V(t1)}, {V(vL)}, 2, 2")
    e(f"v_lshlrev_b32 {V(t3)}, 9, {V(t0)}")
    e(f"v_lshl_add_u32 {V(t3)}, {V(t1)}, 7, {V(t3)}")
    e(f"v_bfe_u32 {V(t1)}, {V(vL)}, 3, 1")
    e(f"v_lshl_add_u32 {V(t3)}, {V(t1)}, 6, {V(t3)}")
    e(f"v_bfe_u32 {V(t1)}, {V(vL)}, 4, 1")
    e(f"v_lshl_add_u32 {V(t3)}, {V(t1)}, 5, {V(t3)}")
    e(f"v_lshl_add_u32 {V(t3)}, {V(cc)}, 3, {V(t3)}")
    e(f"s_mul_i32 {S(sT2)}, {S(sW)}, {WREG}")
    e(f"v_add_u32 {V(vW2R)}, {S(sT2)}, {V(t3)}")
    e(f"v_xor_b32 {V(vW2R+1)}, 64, {V(vW2R)}")
    e(f"v_lshrrev_b32 {V(t0)}, 3, {V(vTID)}")
    e(f"v_and_b32 {V(t1)}, 0x70, {V(vL16)}")
    e(f"v_lshl_add_u32 {V(vCX)}, {V(t0)}, 8, {V(t1)}")
    e(f"v_lshrrev_b32 {V(t0)}, 4, {V(vTID)}")
    e(f"v_and_b32 {V(t2)}, 8, {V(vL)}")
    e(f"v_lshl_add_u32 {V(t2)}, {V(t0)}, 7, {V(t2)}")
    e(f"v_lshl_add_u32 {V(t2)}, {V(cc)}, 5, {V(t2)}")
    e(f"v_bfe_u32 {V(t1)}, {V(vL)}, 2, 1")
    e(f"v_lshl_add_u32 {V(t2)}, {V(t1)}, 4, {V(t2)}")
    e(f"v_add_u32 {V(vUW)}, {UARR+480}, {V(t2)}")
    e(f"s_mul_i32 {S(sT2)}, {S(sCH)}, {SCR_ST-1024}")
    e(f"s_add_u32 {S(sT2)}, {S(sT2)}, {SCR}")
    e(f"v_add_u32 {V(vXW)}, {S(sT2)}, {V(t2)}")
    e(f"v_and_b32 {V(t0)}, 1, {V(vL)}")
    e(f"v_xor_b32 {V(t0)}, 1, {V(t0)}")
    e(f"v_mul_u32_u24 {V(t1)}, {SCR_ST+64-2}, {V(t0)}")
    e(f"v_lshlrev_b32 {V(t2)}, 1, {V(r16)}")
    e(f"v_sub_u32 {V(t1)}, {V(t1)}, {V(t2)}")
    e(f"v_lshl_add_u32 {V(t1)}, {V(g4)}, 4, {V(t1)}")
    e(f"s_lshl_b32 {S(sT3)}, {S(sNH)}, 8")
    e(f"s_sub_u32 {S(sT2)}, {S(sSCH)}, {S(sT3)}")
    e(f"s_add_u32 {S(sT2)}, {S(sT2)}, {KC0 + 2*2031 - 512 - 192}")
    e(f"v_add_u32 {V(vKF)}, {S(sT2)}, {V(t1)}")
    for a in range(1, 4):
        e(f"v_subrev_u32 {V(vKF+a)}, {1024*a}, {V(vKF)}")
    e(f"v_lshlrev_b32 {V(t1)}, 5, {V(r16)}")
    e(f"v_lshl_add_u32 {V(t1)}, {V(g4)}, 4, {V(t1)}")
    e(f"s_mul_i32 {S(sT2)}, {S(sCH)}, {U_ST}")
    e(f"s_sub_u32 {S(sT2)}, {S(sT2)}, {S(sT3)}")
    e(f"s_add_u32 {S(sT2)}, {S(sT2)}, {UARR + 480 - 32 - 192}")
    e(f"v_add_u32 {V(vUF)}, {S(sT2)}, {V(t1)}")
    e(f"v_mov_b32 {V(vXR)}, {V(vKW)}")
    e(f"v_add_u32 {V(vEXW)}, {S(sSCR)}, {V(vL16)}")
    e(f"s_xor_b32 {S(sT2)}, {S(sW)}, 1")
    e(f"s_mul_i32 {S(sT2)}, {S(sT2)}, {SCR_ST}")
    e(f"s_add_u32 {S(sT2)}, {S(sT2)}, {SCR}")
    e(f"v_add_u32 {V(vEXR)}, {S(sT2)}, {V(vL16)}")
    e(f"v_lshrrev_b32 {V(t0)}, 3, {V(vL)}")
    e(f"v_mul_u32_u24 {V(vCO)}, 114688, {V(t0)}")
    e(f"v_and_b32 {V(t0)}, 7, {V(vL)}")
    e(f"s_and_b32 {S(sT2)}, {S(sCP)}, 1")
    e(f"s_lshl_b32 {S(sT3)}, {S(sT2)}, 2")
    e(f"v_xor_b32 {V(t0)}, {S(sT3)}, {V(t0)}")
    e(f"v_lshl_add_u32 {V(vCO)}, {V(t0)}, 4, {V(vCO)}")
    e(f"s_lshl_b32 {S(sT2)}, {S(sT2)}, 3")
    e(f"s_lshr_b32 {S(sXQi)}, {S(sCP)}, 1")
    e(f"s_lshl_b32 {S(sXQi)}, {S(sXQi)}, 14")
    e(f"s_add_u32 {S(sXQi)}, {S(sXQi)}, {S(sT2)}")
    e(f"s_add_u32 {S(sXQi)}, {S(sXQi)}, {hex(XQ)}")
    e(f"s_lshl_b32 {S(sT2)}, {S(sCP)}, 1")
    e(f"s_add_u32 {S(sT2)}, {S(sT2)}, {S(sCH)}")
    e(f"s_lshl_b32 {S(sT2)}, {S(sT2)}, 7")
    e(f"s_mul_i32 {S(sT3)}, {S(sNH)}, {8*114688}")
    e(f"s_add_u32 {S(sT2)}, {S(sT2)}, {S(sT3)}")
    e(f"v_add_u32 {V(vCO)}, {S(sT2)}, {V(vCO)}")
    e(f"v_lshlrev_b32 {V(vFP)}, 4, {V(vTID)}")
    e(f"v_max_u32 {V(vFP)}, 512, {V(vFP)}")
    e(f"s_mov_b32 {S(sPERM0)}, 0x05040100")
    e(f"s_mov_b32 {S(sPERM1)}, 0x07060302")
    e(f"s_lshl_b32 {S(sT2)}, {S(sJ)}, 2")
    e(f"s_add_u32 {S(sT2)}, {S(sT2)}, {S(sW)}")
    e(f"s_mul_i32 {S(sWL)}, {S(sT2)}, 28672")
    e(f"s_add_u32 {S(sWL)}, {S(sWL)}, {hex(W1C)}")
    e(f"s_lshr_b32 {S(sT2)}, {S(sT2)}, 1")
    e(f"s_lshl_b32 {S(sT2)}, {S(sT2)}, 7")
    e(f"s_add_u32 {S(sT2)}, {S(sT2)}, {hex(FLG_W)}")
    e(f"v_mov_b32 {V(vWF+1)}, {S(sT2)}")
    e(f"s_lshl2_add_u32 {S(sT2)}, {S(sDS)}, {S(sW)}")
    e(f"s_mul_i32 {S(sW2L)}, {S(sT2)}, 28672")
    e(f"s_add_u32 {S(sW2L)}, {S(sW2L)}, {hex(W2T)}")
    e(f"s_lshl_b32 {S(sT2)}, {S(sT2)}, 7")
    e(f"s_add_u32 {S(sT2)}, {S(sT2)}, {hex(FLG_W+64)}")
    e(f"v_mov_b32 {V(vWF+2)}, {S(sT2)}")
    e(f"s_mov_b32 {S(sLDT2)}, {S(sT2)}")
    e(f"s_mul_i32 {S(sXT)}, {S(sGAM)}, 114688")
    e(f"s_add_u32 {S(sXT)}, {S(sXT)}, {hex(X1T)}")
    z = KW + 108
    for i in range(4):
        e(f"v_mov_b32 {V(z+i)}, 0")
    e(f"v_min_u32 {V(t0)}, 29, {V(vL)}")
    e(f"v_lshlrev_b32 {V(t0)}, 4, {V(t0)}")
    e(f"v_add_u32 {V(t0)}, {UARR}, {V(t0)}")
    e(f"ds_write_b128 {V(t0)}, {V(z,4)}")
    e(f"ds_write_b128 {V(t0)}, {V(z,4)} offset:{U_ST}")
    e(f"v_and_b32 {V(t0)}, 0x70, {V(vL16)}")
    e(f"v_add_u32 {V(t0)}, {S(sSCR)}, {V(t0)}")
    e(f"ds_write_b128 {V(t0)}, {V(z,4)} offset:{KC0+4096}")
    return o

ROWST = opt("rowst", 1)
redg = lambda layer: 1088 if layer and ROWST else RED_G
def addr_ffn(layer):
    t0, t1, t2, t3 = WK + 84, WK + 85, WK + 86, WK + 87
    g4, rho, cc = WK + 88, WK + 89, WK + 90
    o = []
    e = o.append
    e(f"v_lshrrev_b32 {V(g4)}, 4, {V(vL)}")
    e(f"v_bfe_u32 {V(rho)}, {V(vL)}, 2, 2")
    e(f"v_and_b32 {V(cc)}, 3, {V(vL)}")
    e(f"v_lshrrev_b32 {V(t0)}, 5, {V(vL)}")
    e(f"v_bfe_u32 {V(t1)}, {V(vL)}, 4, 1")
    e(f"v_bfe_u32 {V(t2)}, {V(vL)}, 3, 1")
    e(f"v_lshlrev_b32 {V(t3)}, 7, {V(rho)}")
    e(f"v_lshl_add_u32 {V(t3)}, {V(t2)}, 6, {V(t3)}")
    e(f"v_lshl_add_u32 {V(vXA0)}, {V(t0)}, 10, {V(t3)}")
    e(f"v_lshl_add_u32 {V(vXA0)}, {V(cc)}, 4, {V(vXA0)}")
    e(f"v_lshl_add_u32 {V(vXA0)}, {V(t1)}, 3, {V(vXA0)}")
    e(f"v_xor_b32 {V(vXA1)}, 64, {V(vXA0)}")
    e(f"s_lshl_b32 {S(sT2)}, {S(sHH)}, 6")
    e(f"v_xor_b32 {V(t3)}, {S(sT2)}, {V(t3)}")
    e(f"s_lshl_b32 {S(sT2)}, {S(sNH)}, 5")
    e(f"s_lshl3_add_u32 {S(sT2)}, {S(sCH)}, {S(sT2)}")
    e(f"v_and_b32 {V(t0)}, 16, {V(vL16)}")
    e(f"v_add3_u32 {V(t3)}, {V(t3)}, {V(t0)}, {S(sT2)}")
    e(f"v_bfe_u32 {V(t0)}, {V(vL)}, 1, 1")
    e(f"v_mul_u32_u24 {V(vST)}, {XHALF}, {V(t0)}")
    e(f"v_lshl_add_u32 {V(vST)}, {V(g4)}, 10, {V(vST)}")
    e(f"v_add_u32 {V(vST)}, {V(vST)}, {V(t3)}")
    e(f"v_lshl_add_u32 {V(t0)}, {V(g4)}, 1, {V(t0)}")
    e(f"v_lshl_add_u32 {V(vRES)}, {V(t0)}, 10, {V(t3)}")
    e(f"s_lshl_b32 {S(sT2)}, {S(sDS)}, 13")
    e(f"v_add_u32 {V(vRES)}, {S(sT2)}, {V(vRES)}")
    e(f"s_mul_i32 {S(sT2)}, {S(sW)}, {RED_W}")
    e(f"v_add_u32 {V(vRW)}, {S(sT2)}, {V(vL16)}")
    if layer and ROWST:
        e(f"v_and_b32 {V(t0)}, 7, {V(vL)}")
        e(f"v_lshrrev_b32 {V(t2)}, 3, {V(vL)}")
        e(f"v_lshlrev_b32 {V(t1)}, 4, {V(t2)}")
        e(f"v_lshl_add_u32 {V(vAT)}, {V(t0)}, 3, {V(t2)}")
        e(f"v_lshlrev_b32 {V(vAT)}, 2, {V(vAT)}")
    else:
        e(f"v_lshrrev_b32 {V(t0)}, 3, {V(vL)}")
        e(f"v_and_b32 {V(t1)}, 0x70, {V(vL16)}")
    e(f"v_mul_u32_u24 {V(vRR)}, {redg(layer)}, {V(t0)}")
    e(f"s_lshl_b32 {S(sT2)}, {S(sW)}, 7")
    e(f"v_add3_u32 {V(vRR)}, {V(vRR)}, {V(t1)}, {S(sT2)}")
    e(f"s_and_b32 {S(sT2)}, {S(sGAM)}, 8")
    e(f"s_bfe_u32 {S(sT3)}, {S(sGAM)}, 0x20001")
    e(f"s_add_u32 {S(sT2)}, {S(sT2)}, {S(sT3)}")
    e(f"s_lshl2_add_u32 {S(sT2)}, {S(sCH)}, {S(sT2)}")
    e(f"s_lshl1_add_u32 {S(sT3)}, {S(sHH)}, {S(sNH)}")
    e(f"s_and_b32 {S(sT4)}, {S(sGAM)}, 1")
    if layer and ROWST:
        e(f"v_and_b32 {V(t2)}, 0x30, {V(t1)}")
        e(f"v_lshrrev_b32 {V(t3)}, 5, {V(vL)}")
    else:
        e(f"v_lshlrev_b32 {V(t2)}, 4, {V(cc)}")
        e(f"v_bfe_u32 {V(t3)}, {V(vL)}, 2, 1")
    if layer == 0:
        e(f"s_lshl2_add_u32 {S(sT2)}, {S(sT2)}, {S(sT3)}")
        e(f"s_lshl1_add_u32 {S(sT2)}, {S(sT2)}, {S(sT4)}")
        e(f"s_lshl_b32 {S(sT2)}, {S(sT2)}, 6")
        e(f"v_lshl_add_u32 {V(vAT)}, {V(t3)}, 2, {V(t2)}")
        e(f"v_lshrrev_b32 {V(t3)}, 5, {V(vL)}")
        e(f"v_lshl_add_u32 {V(vAT)}, {V(t3)}, 3, {V(vAT)}")
        e(f"v_add_u32 {V(vAT)}, {S(sT2)}, {V(vAT)}")
        e(f"v_lshrrev_b32 {V(t3)}, 2, {V(vL)}")
        e(f"v_lshl_add_u32 {V(vO)}, {V(t3)}, 14, {V(t2)}")
        e(f"s_lshl_b32 {S(sT5)}, {S(sDS)}, 18")
        e(f"s_add_u32 {S(sT2)}, {S(sT2)}, {S(sT5)}")
        e(f"v_add_u32 {V(vO)}, {S(sT2)}, {V(vO)}")
    else:
        e(f"s_lshl3_add_u32 {S(sT2)}, {S(sT2)}, {S(sT4)}")
        e(f"s_lshl2_add_u32 {S(sT2)}, {S(sT2)}, {S(sT3)}")
        e(f"s_lshl_b32 {S(sT2)}, {S(sT2)}, 1")
        e(f"v_add3_u32 {V(t2)}, {V(t2)}, {V(t3)}, {S(sT2)}")
        e(f"v_mul_u32_u24 {V(vO)}, 896, {V(t2)}")
        e(f"v_lshl_add_u32 {V(vO)}, {V(t0)}, 4, {V(vO)}")
        e(f"s_lshl_b32 {S(sT2)}, {S(sDS)}, 7")
        e(f"v_add_u32 {V(vO)}, {S(sT2)}, {V(vO)}")
    e(f"v_min_u32 {V(t0)}, 13, {V(vL)}")
    e(f"s_mul_i32 {S(sT2)}, {S(sW)}, 14")
    e(f"v_add_lshl_u32 {V(vF2P)}, {V(t0)}, {S(sT2)}, {GL or 4}")
    e(f"s_lshl2_add_u32 {S(sT3)}, {S(sJ)}, {S(sW)}")
    e(f"s_lshl_b32 {S(sT2)}, {S(sT3)}, {GL or 4}")
    e(f"v_mov_b32 {V(vFL)}, {S(sT2)}")
    e(f"s_mul_i32 {S(sT2)}, {S(sGAM)}, {4*112*1024}")
    e(f"s_add_u32 {S(sT2)}, {S(sT2)}, {hex(HB + layer*H_SZ)}")
    e(f"s_lshl_b32 {S(sT3)}, {S(sT3)}, 11")
    e(f"s_add_u32 {S(sHS)}, {S(sT2)}, {S(sT3)}")
    e(f"s_lshl2_add_u32 {S(sT3)}, {S(sHH)}, {S(sW)}")
    e(f"s_mul_i32 {S(sT3)}, {S(sT3)}, {28*1024}")
    e(f"s_add_u32 {S(sHL)}, {S(sT2)}, {S(sT3)}")
    e(f"s_lshl_b32 {S(sFG)}, {S(sGAM)}, {GL + 6 if GL else 11}")
    e(f"s_add_u32 {S(sFG)}, {S(sFG)}, {hex(FLG_G + layer*(8 if GL else 0x8000))}")
    e(f"s_add_u32 {S(sFP)}, {S(sFG)}, {PQ if FAST else 0}")
    if FAST and layer == 0:
        e(lambda: poll_load(vPL2, vF2P, S(sFP)))
    if layer:
        e(f"s_mov_b32 {S(SRD_OUT)}, s52")
        e(f"s_and_b32 {S(SRD_OUT+1)}, s53, 0xffff")
        e(f"s_mov_b32 {S(SRD_OUT+2)}, {hex(2048*896)}")
        e(f"s_mov_b32 {S(SRD_OUT+3)}, 0x20000")
    return o

def pk(op, d, a, b, c=None, bc=(), neg=(), emit=True):
    ops = [a, b] + ([c] if c is not None else [])
    n = len(ops)
    txt = f"v_pk_{op}_f32 {d}, " + ", ".join(ops)
    if bc:
        txt += " op_sel_hi:[" + ",".join("0" if i in bc else "1" for i in range(n)) + "]"
    if neg:
        m = "[" + ",".join("1" if i in neg else "0" for i in range(n)) + "]"
        txt += f" neg_lo:{m} neg_hi:{m}"
    if emit:
        k(txt)
    return txt

def cmul(d, a, b, t):
    assert d != a
    pk("mul", V(t, 2), V(a, 2), V(b, 2))
    pk("mul", V(t + 2, 2), V(a, 2), V(b + 2, 2))
    pk("fma", V(d, 2), V(a + 2, 2), V(b + 2, 2), V(t, 2), neg=(0,))
    pk("fma", V(d + 2, 2), V(a + 2, 2), V(b, 2), V(t + 2, 2))

NINIT = opt("ninit", 4)
NPG = opt("npg", 8)
TE = opt("te", 1)
def stub_targets():
    return ["L_ret0" if p <= 3 else "L_ret1" if p <= 5 else f"L_pg{p+2}" if p + 2 <= NPG else "L_ret2" for p in range(1, NPG + 1)]

def touch(n):
    tg = [["L_pg0" if TE else None, "L_pg1", "L_pg2", "L_pg3"], ["L_pg4", "L_pg5", "L_st0", "L_st1"],
          ["L_pg6" if NPG >= 6 else None, "L_pg7" if NPG >= 7 else None, "L_st2", "L_st3"]][n]
    k("s_mov_b64 exec, 0")
    for w in range(4):
        if tg[w]:
            k(f"s_cmp_eq_u32 {S(sW)}, {w}")
            k(f"s_cbranch_scc1 {tg[w]}")
    if n == 0 and not TE:
        k("s_branch L_ret0")
        k.raw(".p2align 12")
    k.label(f"L_ret{n}")
    k("s_mov_b64 exec, -1")

def table_loads():
    t0 = KW + 100
    k(f"v_and_b32 {V(t0)}, 127, {V(vTID)}")
    k(f"v_lshlrev_b32 {V(t0)}, 4, {V(t0)}")
    k(f"v_add_u32 {V(t0)}, L_table-L_pc+2048, {V(t0)}")
    for q in range(3):
        if q < 2:
            k(f"global_load_dwordx4 {V(TBL+4*q,4)}, {V(t0)}, {S(sPC,2)} offset:{2048*(q-1)}")
        else:
            k(f"global_load_dword {V(TBL+8)}, {V(t0)}, {S(sPC,2)} offset:2048")

def dt_setup():
    DT = KW + 46 + 12
    k.wait(lg=0)
    k(f"s_lshl_b32 {S(sT0)}, {S(sCH)}, 4")
    k(f"s_lshr_b32 {S(sLDT)}, {S(sLDT)}, {S(sT0)}")
    k(f"s_lshl_b32 {S(sLDT)}, {S(sLDT)}, 16")
    k(f"s_lshr_b32 {S(sDSK)}, {S(sDSK)}, {S(sT0)}")
    k(f"s_lshl_b32 {S(sDSK)}, {S(sDSK)}, 16")
    k(f"v_mov_b32 {V(DT)}, {f2u(1.4426950408889634)}")
    k(f"v_mul_f32 {V(DT)}, {S(sLDT)}, {V(DT)}")
    k(f"v_exp_f32 {V(DT)}, {V(DT)}")
    k(f"s_cmp_eq_u32 {S(sNH)}, 0")
    k(f"s_cselect_b32 {S(sDSK)}, {S(sDSK)}, 0")
    k(f"v_cvt_pk_bf16_f32 {V(DT)}, {V(DT)}, {V(DT)}")
    k(f"v_mov_b32 {V(vDSK)}, 0")
    k(f"v_lshlrev_b32 {V(DT)}, 16, {V(DT)}")
    k(f"v_writelane_b32 {V(vDSK)}, {S(sDSK)}, 0")

def warm_loads():
    if opt("warm", 1):
        k(f"s_sub_u32 {S(sT0)}, {S(sWG)}, 32")
        k(f"s_lshl2_add_u32 {S(sT0)}, {S(sT0)}, {S(sW)}")
        k(f"s_mul_i32 {S(sT0)}, {S(sT0)}, 1792")
        k(f"v_min_u32 {V(vDUM+1)}, 13, {V(vL)}")
        k(f"v_lshl_add_u32 {V(vDUM+1)}, {V(vDUM+1)}, 7, {S(sT0)}")
        for q in range(opt("warm", 1)):
            k(f"global_load_dword {V(vDUM)}, {V(vDUM+1)}, {S(48+2*q,2)}")
            k.vm[-1] = (set(), None)

def main_start():
    k.c("=== main workgroups")
    k.vm = list(FIRST)
    k(f"s_lshl_b32 {S(sT5)}, {S(sCP)}, 2")
    k(f"s_load_dword {S(sLDT)}, s[42:43], {S(sT5)}")
    k(f"s_load_dword {S(sDSK)}, s[44:45], {S(sT5)}")
    k.lg = []
    if opt("lean", 1):
        p0x_addr(1)
        common()
        roles()
    srd_base(SRD_WS, 56)
    srd_base(SRD_DBG, 54)
    srd(SRD_W2, 50, 1792 * 896)
    if opt("warmat", 2) == 0:
        warm_loads()
    if opt("tblearly", 0):
        table_loads()
    w2_lane_src(vW2S, 896, KW + 100, KW + 101)
    k(f"s_mul_i32 {S(sW2B)}, {S(sW)}, {448*896}")
    k(f"s_lshl_b32 {S(sT2)}, {S(sDS)}, 7")
    k(f"s_add_u32 {S(sW2B)}, {S(sW2B)}, {S(sT2)}")
    FREG[0] = 4
    fine("ld")
    ac = addr_conv()
    for i in range(NINIT):
        w2_dma()
        run(ac, len(ac) // (NINIT - i))
    run(ac)
    if TE:
        touch(0)
        dt_setup()
    stamp(24)
    fine("addr")
    if opt("warmat", 2) == 1:
        warm_loads()
    p0x_body()
    if opt("warmat", 2) == 2:
        warm_loads()
    fine("p0x")
    stamp(1)
    if opt("atom0", 16) < 0:
        p0x_atomics()
        stamp(25)
    if TE:
        k("s_branch L_body")
        k.raw(".p2align 12")
        k.label("L_pg0")
        k("s_branch L_ret0")
        k("s_nop 0")
        k.label("L_body")
    else:
        touch(0)

DEF0 = opt("def0", 1)
LATE0 = W1R + 100 if DEF0 else WK + 12
def conv_load_ops(layer, h, D):
    o = [f"s_mov_b32 {S(sT0)}, {hex(STATS[layer] + 8192*h)}",
         f"s_add_u32 {S(sT3)}, {S(sXQi)}, {hex(layer*XQ_SZ + 8192*h)}"]
    for j in range(2):
        o.append(f"buffer_load_dwordx4 {V(D+4*j,4)}, {V(vCX)}, {S(SRD_WS,4)}, {S(sT0)} offen offset:{128*j} sc1")
        o.append(f"buffer_load_dwordx2 {V(D+8+2*j,2)}, {V(vCX)}, {S(SRD_WS,4)}, {S(sT3)} offen offset:{128*j} sc1")
    return o

CW = []
def kgen():
    k.c("=== K generation")
    B0 = KW + 46
    U = B0
    DT = B0 + 12
    W1_, W8_, W256 = B0 + 14, B0 + 18, B0 + 22
    T = B0 + 26
    P = [B0 + 30 + 4 * i for i in range(5)]
    CV = B0 + 50
    ACC = WK + 64
    FX, FY = (112, 144), (176, 208)
    for i in range(6):
        k(f"v_lshlrev_b32 {V(U+2*i)}, 16, {V(PRM+i)}")
        k(f"v_and_b32 {V(U+2*i+1)}, {S(sHIM)}, {V(PRM+i)}")
    if not TE:
        dt_setup()
    fine("prm")
    for i in range(4):
        pk("mul", V(U + 2 * i, 2), V(U + 2 * i, 2), V(DT, 2), bc=(1,))
    k(f"s_mov_b32 {S(sC0)}, {f2u(1.4426950408889634)}")
    pk("mul", V(U, 2), V(U, 2), S(sC0, 2), bc=(1,))
    k(f"s_mov_b32 {S(sC0)}, {f2u(0.15915494309189535)}")
    pk("mul", V(U + 2, 2), V(U + 2, 2), S(sC0, 2), bc=(1,))
    cmul(P[0], U + 8, U + 4, T)
    for (Wd, sc) in ((W1_, 1.0), (W256, 256.0), (W8_, 8.0)):
        ea, an = U + 4, U + 6
        if sc == 1.0:
            sa, sb = U, U + 2
        else:
            k(f"s_mov_b32 {S(sC0)}, {f2u(sc)}")
            pk("mul", V(ea, 2), V(U, 2), S(sC0, 2), bc=(1,))
            pk("mul", V(an, 2), V(U + 2, 2), S(sC0, 2), bc=(1,))
            sa, sb = ea, an
        for h in range(2):
            k(f"v_fract_f32 {V(an+h)}, {V(sb+h)}")
        for h in range(2):
            k(f"v_exp_f32 {V(ea+h)}, {V(sa+h)}")
        for h in range(2):
            k(f"v_cos_f32 {V(Wd+h)}, {V(an+h)}")
        for h in range(2):
            k(f"v_sin_f32 {V(Wd+2+h)}, {V(an+h)}")
        pk("mul", V(Wd, 2), V(Wd, 2), V(ea, 2))
        pk("mul", V(Wd + 2, 2), V(Wd + 2, 2), V(ea, 2))
    if not opt("goearly", 2):
        poll_load(vGO, vGO + 3, 0, 0, SRD_DBG)
    if opt("atom0", 16) == 0:
        p0x_atomics()
        stamp(25)
    fine("setup")
    cvi = [0]
    ent = [0]
    vPL = vPA
    NKD = opt("nkd", 0)
    FL0, PL0 = opt("flag0", 38), opt("poll0", 53)
    cl = conv_load_ops(0, 0, WK) + ([] if DEF0 else conv_load_ops(0, 1, LATE0))
    PCE = opt("pce", 0)
    PCT = opt("pct", 1)
    cl2 = []
    if PCT:
        cl, cl2 = [], cl
    def put(src, row, negim, extra=None):
        c = CV + 2 * (cvi[0] & 1)
        cvi[0] += 1
        n = "-" if negim else ""
        k(f"v_cvt_pk_bf16_f32 {V(c)}, {V(src)}, {V(src+1)}")
        k(f"v_cvt_pk_bf16_f32 {V(c+1)}, {n}{V(src+2)}, {n}{V(src+3)}")
        k(f"ds_write_b64 {V(vKW)}, {V(c,2)} offset:{row*ROW_ST}")
        if extra:
            k(extra)
        ent[0] += 1
        if ent[0] == opt("atom0", 16):
            p0x_atomics()
            stamp(25)
        if ent[0] == FL0:
            poll_check(vGO, vGO + 2, 0, 128, SRD_DBG)
            k("s_barrier")
            flag_all(0)
            stamp(2)
        if not opt("tblearly", 0) and ent[0] == opt("tblat", 22):
            table_loads()
        if opt("kdb", 0) and ent[0] == opt("kdb", 0):
            for _ in range(4):
                w2_dma()
        if ND[0] < NINIT + min(NKD, NKD * (ent[0] - opt("kd0", 0)) // (opt("kdspan", 42) - opt("kd0", 0))):
            w2_dma()
        if ent[0] in (opt("atom0", 16) - 1, opt("atom0", 16), FL0 - 1, FL0, 52):
            fine(f"e{ent[0]}")
        if ent[0] == PL0:
            poll_load(vPL, vFP, S(sREP))
        if ent[0] == PCE:
            poll_check(vPL, vFP, S(sREP))
            k("s_barrier")
            run(cl, 6)
    def frags(b):
        for st in range(8):
            k(f"ds_read_b128 {A(b+4*st,4)}, {V(vKR)} offset:{64*st}")
    cur = 0
    for a in range(8):
        put(P[cur], a, True)
        if a % 2 == 0:
            dst = {0: 3, 4: 4}.get(a, 2)
            cmul(P[dst], P[cur], W256, T)
            put(P[dst], 8 + a // 2, True)
        if a < 7:
            cmul(P[1 - cur], P[cur], W1_, T)
            cur = 1 - cur
    cmul(P[0], P[3], W256, T); put(P[0], 12, True)
    cmul(P[1], P[4], W256, T); put(P[1], 13, True)
    cmul(P[3], P[0], W256, T); put(P[3], 14, True)
    cmul(P[4], P[1], W256, T); put(P[4], 15, True)
    frags(FX[0])
    src, dst = 3, 0
    for row in range(5):
        cmul(P[dst], P[src], W256, T)
        put(P[dst], row, True)
        src, dst = dst, (1 - dst if dst in (0, 1) else 0)
    frags(FX[1])
    k(f"v_mov_b32 {V(CV)}, {S(sONES)}")
    k(f"v_mov_b32 {V(CV+1)}, 0")
    k(f"ds_write_b64 {V(vKW)}, {V(CV,2)}")
    cvi[0] = 1
    put(W8_, 1, False)
    cmul(P[0], W8_, W8_, T)
    cur = 0
    def mfma(n):
        yt, x, st = n // 16, (n // 8) & 1, n % 8
        d = V(ACC + 8 * yt + 4 * x, 4)
        return f"v_mfma_f32_16x16x32_bf16 {d}, {A(FX[x]+4*st,4)}, {A(FY[yt]+4*st,4)}, {d if st else 0}"
    M0 = opt("km", 0)
    for j in range(2, 32):
        put(P[cur], j % 16, False, mfma(j - 32 + M0) if j >= 32 - M0 else None)
        if j % 16 == 15:
            frags(FY[j // 16])
        if j == 15:
            stamp(3)
        if j < 31:
            cmul(P[1 - cur], P[cur], W8_, T)
            cur = 1 - cur
    assert ND[0] == NINIT + NKD and opt("pchk", 5) < 13, ND
    def tables(yt, x):
        a = ACC + 8 * yt + 4 * x
        return [f"ds_write2_b32 {V(TA+x)}, {V(a+i)}, {V(a+i+1)} offset0:{66*i+32*yt} offset1:{66*(i+1)+32*yt}" for i in (0, 2)]
    mads = []
    for n in range(17):
        sel = " op_sel:[1,0,0,0]" if n & 1 else ""
        mads.append(f"v_mad_u32_u16 {V(GA+n)}, {V(TBL+n//2)}, 8, {S(sSCH)}{sel}")
    PCK = opt("pchk", 5)
    tb = [(8, [f"v_add_f32 {V(ACC)}, {V(ACC)}, {V(vDSK)}"] + tables(0, 0)), (16, tables(0, 1)), (24, tables(1, 0))]
    for n in range(M0, 32):
        k(mfma(n))
        if n + 53 == PL0:
            poll_load(vPL, vFP, S(sREP))
        if n % opt("kms", 4) == 2 and ND[0] < NINIT + NKD + opt("kmd", 0):
            w2_dma()
        else:
            run(mads, 1)
        if n - M0 == PCK:
            if not PCE and not PCT:
                poll_check(vPL, vFP, S(sREP))
            k.wait(lg=0)
            k("s_barrier")
            fine("pbar")
            stamp(4)
        if n - M0 >= PCK:
            if (n - M0 - PCK) % opt("cls", 3) == 0 and cl:
                run(cl, 3 if cl[0].startswith("s_") else 1)
            elif (not cl or opt("cls", 3) > 2) and tb and n >= tb[0][0] + 4:
                run(tb.pop(0)[1])
    if AL:
        mads += [f"v_lshlrev_b32 {V(vFW)}, {AL-4}, {V(vFW)}", f"v_lshlrev_b32 {V(vFP)}, {AL-4}, {V(vFP)}", f"s_lshl_b32 {S(sREP)}, {S(sREP)}, {AL-4}"]
    run(mads)
    for _, o in tb:
        run(o)
    run(cl)
    if PCT:
        precmp(vPL)
    else:
        poll_load(vGO, vGO + 1, 0, 192, SRD_DBG)
    run(tables(1, 1))
    if PCT:
        poll_check(vPL, vFP, S(sREP))
    k.wait(lg=0)
    k("s_barrier")
    fine("tbar")
    stamp(6)
    GV = B0
    for e in range(17):
        if e % 4 == 0 and cl2:
            run(cl2, 3 if e == 0 else 1)
        k(f"ds_read_b64 {V(GV+2*e,2)}, {V(GA+e)}")
    if PCT:
        poll_load(vGO, vGO + 1, 0, 192, SRD_DBG)
    for _ in range(opt("kgd", 0)):
        w2_dma()
    if opt("cpk", 0):
        CW.extend(cprep(WK, WK + 32, 0, True))
        k.wait(lg=0)
    else:
        k.wait(lg=8)
    for e in range(17):
        if e == 9 and k.lg:
            k.wait(lg=0)
        k(f"v_add_f32 {V(GV+2*e)}, {V(GV+2*e)}, {V(GV+2*e+1)}")
    fine("gath")
    if not opt("kp0", 0):
        k("s_barrier")
    O = B0 + 34
    for c in range(2):
        for kk in range(8):
            e = 2 * kk + c
            k(f"v_cvt_pk_bf16_f32 {V(O+8*c+kk)}, {V(GV+2*e)}, {V(GV+2*e+2)}")
    for c in range(2):
        for h in range(2):
            k(f"ds_write_b128 {V(vKC)}, {V(O+8*c+4*h,4)} offset:{c*(SCR_ST+64)+16*h}")
    stamp(5)

def wave0(fn):
    skip = newlab("w0")
    k(f"s_cmp_lg_u32 {S(sW)}, 0")
    saved = list(k.vm)
    k.skip_begin("s_cbranch_scc1", skip)
    fn()
    k.skip_end(skip)
    k.vm = saved

EARLY = opt("early", 0)
def apoll_load(arr):
    k(f"s_add_u32 {S(sPA)}, {S(sREP)}, {hex(FA(arr))}")
    poll_load(vPA, vFP, S(sPA))

def apoll_check():
    poll_check(vPA, vFP, S(sPA))

def aflag(arr):
    flag_all(FA(arr))

def bar():
    k.wait(lg=0)
    k("s_barrier")

CACC, CKR, CXU, CXR = WK, WK + 32, WK + 96, WK + 104
def cprep(D, T, h, defer=False):
    UU, O, RAW, EPS = T, T + 4, T + 8, CXR
    k(f"s_mov_b32 {S(sC0)}, {f2u(1.0/448)}")
    k(f"s_mov_b32 {S(sC1)}, {f2u(1e-5)}")
    k(f"v_mov_b32 {V(EPS)}, {S(sC1)}")
    for j in range(2):
        M, Q, X = D + 4 * j, D + 4 * j + 2, D + 8 + 2 * j
        pk("mul", V(M, 2), V(M, 2), S(sC0, 2), bc=(1,))
        pk("fma", V(Q, 2), V(Q, 2), S(sC0, 2), V(EPS, 2), bc=(1, 2))
        pk("fma", V(Q, 2), V(M, 2), V(M, 2), V(Q, 2), neg=(0,))
        for b in range(2):
            k(f"v_max_f32 {V(Q+b)}, {S(sC1)}, {V(Q+b)}")
        for b in range(2):
            k(f"v_rsq_f32 {V(Q+b)}, {V(Q+b)}")
        for b in range(2):
            k(f"v_lshlrev_b32 {V(UU+b)}, 16, {V(X+b)}")
            k(f"v_and_b32 {V(UU+2+b)}, {S(sHIM)}, {V(X+b)}")
        pk("mul", V(M, 2), V(M, 2), V(Q, 2))
        for c in range(2):
            pk("fma", V(UU + 2 * c, 2), V(UU + 2 * c, 2), V(Q, 2), V(M, 2), neg=(2,))
            k(f"v_perm_b32 {V(RAW+2*c+j)}, {V(X+1)}, {V(X)}, {S(sPERM0+c)}")
        for c in range(2):
            k(f"v_cvt_pk_bf16_f32 {V(O+2*c+j)}, {V(UU+2*c)}, {V(UU+2*c+1)}")
    w = [f"ds_write_b64 {V(vUW)}, {V(O+2*c,2)} offset:{c*U_ST + 2048*h}" for c in range(2)]
    w += [f"ds_write_b64 {V(vXW)}, {V(RAW+2*c,2)} offset:{c*2*SCR_ST + 1024*h}" for c in range(2)]
    if defer:
        return w
    run(w)

def k_ops(I, s, reg):
    o = (128 if I % 2 == 0 else 0) + 16 * (3 - s)
    r = (V if reg[0] == "v" else A)
    return [f"ds_read2_b32 {r(reg[1]+2*h,2)}, {V(vKF+I//2)} offset0:{o+2*h} offset1:{o+2*h+1}" for h in range(2)]

def k_preload():
    return [t for s in range(4) for I in range(4) for t in k_ops(I, s, ("v", CKR + 16 * s + 4 * I))]

def conv(layer):
    k.c("=== conv")
    ACC, XU, XR = CACC, CXU, CXR
    mf = []
    for s in range(4):
        mf += [(0, s, Jp, I) for Jp in range(3, -1, -1) for I in range(4 - Jp)]
    for s in range(3, -1, -1):
        mf += [(1, s, Jp, I) for I in range(7, 0, -1) for Jp in range(4) if 4 <= Jp + I <= 7]
    for s in range(4):
        mf += [(2, s, Jp, I) for Jp in range(7, 3, -1) for I in range(8 - Jp)]
    assert len(mf) == 144
    ukey = lambda p, s, Jp: ("u", 0 if (p == 1 and s == 3) else p, s, Jp)
    kkey = lambda s, I: ("k", s, I)
    first, last = {}, {}
    for n, (p, s, Jp, I) in enumerate(mf):
        for key in (ukey(p, s, Jp), kkey(s, I)):
            first.setdefault(key, n)
            last[key] = n
    reg = {kkey(s, I): ("v", CKR + 16 * s + 4 * I) for s in range(4) for I in range(4)}
    KP0 = opt("kp0", 0)
    items = sorted((key for key in first if not (key in reg and (layer or key[1] < KP0))), key=lambda x: first[x])
    XB, XS = opt("xb", 40), opt("xs", 41)
    CPL, CPB = opt("cpl", 104), opt("cpb", 104)
    assert DEF0
    slots = [("a", AX + 4 * i) for i in range(8)] + [("v", WK + 108), ("v", ACC + 12)][:opt("xslot", 2)]
    slot_free = ([-1] * 9 + [XB + 4])[:len(slots)]
    RG = lambda r: (V if r[0] == "v" else A)(r[1], 4)
    queue = []
    issued = {}
    def issue(n, budget):
        c = 0
        while True:
            if not queue:
                if not items:
                    return c
                key = items[0]
                if not (first[key] <= n + 2 or (c < budget and first[key] <= n + 20)):
                    return c
                if key[0] == "u" and key[1] == 2 and n < CPB:
                    return c
                if key not in reg:
                    fr = [i for i in range(len(slots)) if slot_free[i] < n]
                    if not fr:
                        assert first[key] > n, (n, key)
                        return c
                    slot_free[fr[0]] = last[key]
                    reg[key] = slots[fr[0]]
                items.pop(0)
                if key[0] == "u":
                    queue.append((key, f"ds_read_b128 {RG(reg[key])}, {V(vUF)} offset:{512*key[3] + 64*(3-key[2])}"))
                else:
                    queue.extend((key, t) for t in k_ops(key[2], key[1], reg[key]))
            elif not (first[queue[0][0]] <= n + 2 or c < budget):
                return c
            key, t = queue.pop(0)
            k(t, tag=key)
            issued[key] = n
            c += 1
    def xblock(ph, packed, addfirst=False):
        l1, lj = newlab("x1"), newlab("xj")
        k(f"s_cmp_eq_u32 {S(sNH)}, 1")
        h0 = list(k.hist)
        k(f"s_cbranch_scc1 {l1}")
        for hf in range(2):
            if hf:
                k.label(l1)
                k.hist = h0
                k.lg = k.lg[:-2]
            a = ACC + 16 * ph
            def adds():
                for i in range(4 if packed else 8):
                    if packed:
                        pk("add", V(XU + 2 * i, 2), V(XU + 2 * i, 2), V(a + 8 * hf + 2 * i, 2))
                    else:
                        k(f"v_add_f32 {V(XU+i)}, {V(XU+i)}, {V(a+8*hf+i)}")
            if addfirst:
                adds()
            for jl in range(2):
                k(f"ds_write_b128 {V(vEXW)}, {V(a+8*(1-hf)+4*jl,4)} offset:{2048+1024*jl}", tag="ex")
            if not addfirst:
                adds()
            if not hf:
                k(f"s_branch {lj}")
        k.label(lj)
    def wait_lg(tag):
        idx = [i for i, p in enumerate(k.lg) if p[2] == tag]
        if idx:
            k.wait(lg=len(k.lg) - 1 - idx[-1])
    def res_ops(ph):
        o = [f"ds_read_b64_tr_b16 {V(XR+2*jl,2)}, {V(vXR)} offset:{1024*ph + 512*jl}" for jl in range(2)]
        o += [None] * 6
        for i in range(4):
            o += [f"v_lshlrev_b32 {V(XU+2*i)}, 16, {V(XR+i)}", f"v_and_b32 {V(XU+2*i+1)}, {S(sHIM)}, {V(XR+i)}"]
        return o
    def recv_ops():
        return [f"ds_read_b128 {V(ACC+4*jl,4)}, {V(vEXR)} offset:{2048+1024*jl}" for jl in range(2)]
    def out_ops(ph, packed):
        if packed:
            o = [f"v_pk_add_f32 {V(XU+2*i,2)}, {V(XU+2*i,2)}, {V(ACC+2*i,2)}" for i in range(4)]
        else:
            o = [f"v_add_f32 {V(XU+i)}, {V(XU+i)}, {V(ACC+i)}" for i in range(8)]
        o += [f"v_cvt_pk_bf16_f32 {V(ACC+8+i)}, {V(XU+2*i)}, {V(XU+2*i+1)}" for i in range(4)]
        o.append(f"s_mov_b32 {S(sT1)}, {hex(X1T + layer*XQ_SZ + 57344*ph)}")
        o.append((f"buffer_store_dwordx4 {V(ACC+8,4)}, {V(vCO)}, {S(SRD_WS,4)}, {S(sT1)} offen sc1", ("cst", ph)))
        return o
    if layer == 0:
        if not opt("pct", 1):
            poll_check(vGO, vGO + 1, 0, 192, SRD_DBG)
        if opt("pw1", 50) < 0:
            poll_load(vWF, vWF + 1, 0)
        if CW:
            run(CW)
        elif KP0:
            bar()
            run(k_preload()[:8 * KP0])
            cprep(WK, WK + 12, 0)
        else:
            cprep(WK, WK + 32, 0)
        if opt("pct", 1):
            poll_check(vGO, vGO + 1, 0, 192, SRD_DBG)
        stamp(7)
        if not DEF0:
            cprep(WK + 12, WK + 44, 1)
    bar()
    if layer and EARLY and opt("fl", 4) < 0:
        aflag(F_CIN1[1])
    fine("cbar")
    FREG[0] = 3
    fine("start")
    stamp(9)
    bg = []
    if layer == 0:
        n1, n2 = opt("w1conv", 18), opt("w2conv", 0)
        bg = [w2_dma] * (28 - ND[0])
        def c1():
            if not opt("abl", 0) & 8:
                poll_check(vWF, vWF + 1, 0, 32 if SPL else 0)
            w1_load()
        def p1b():
            poll_load(vWF, vWF + 1, 0)
            w1_load()
        def c1b():
            assert NW1[0] == 14
            poll_check(vWF, vWF + 1, 0)
            w1_load()
        def p2():
            poll_load(vWF, vWF + 2, 0)
            w1_load()
        def c2():
            if not opt("abl", 0) & 16:
                poll_check(vWF, vWF + 2, 0)
            if n2:
                w2_load()
        w = [c1] + [w1_load] * (n1 - 1)
        if SPL:
            assert n1 > 14 and not n2 and opt("pw1", 50) >= 0
            w[opt("p1b", 6)], w[14] = p1b, c1b
        pos = max(1, n1 - n2 - 7)
        if n2:
            w[pos] = p2
        t = w[:n1 - n2]
        for i in range(n2):
            t += [c2 if i == 0 else w2_load] + w[n1 - n2 + i: n1 - n2 + i + 1]
        if opt("bgord", 0) == 0:
            bg += t
        elif opt("bgord", 0) == 1:
            bg = t + bg
        else:
            m = []
            while bg or t:
                m += t[:1] + bg[:1]
                t, bg = t[1:], bg[1:]
            bg = m
    nbg = len(bg)
    BG0 = opt("bg0", 4)
    step = max(1, (opt("bg1", 138) - BG0) / max(1, nbg))
    side = []
    lastbg = -9
    seen = set()
    CL, FE, PE = opt("cl", XS), opt("fe", 100), opt("pe", 128)
    for n, (p, s, Jp, I) in enumerate(mf):
        if n == CPL:
            assert not side and (layer or NW1[0] <= 25)
            stamp(10)
            side += [(o, "lw") for o in cprep(LIN if layer else LATE0, ACC, 1, True)]
            if CPB == CPL:
                run(side)
        if n == CPB:
            assert not side
            if FE >= CPB:
                k.wait_tag_vm(("cst", 0))
            wait_lg("lw")
            k("s_barrier")
            if FE >= CPB:
                aflag(F_X1[layer][0])
            stamp(12)
        cnt = issue(n, (12 if layer == 0 and not KP0 else 5) if n == 0 else 5 if n == CPB else 0 if XB < n <= XS and opt("xq", 0) else 1)
        uk, kk = ukey(p, s, Jp), kkey(s, I)
        tags = [q[2] for q in k.lg]
        if uk in tags or kk in tags:
            cand = [i for i, q in enumerate(tags) if q in (uk, kk) or (q in first and first[q] <= n + 3 and issued[q] <= n - 7)]
            k.wait(lg=len(tags) - 1 - max(cand))
        J = Jp + I
        d = V(ACC + 4 * J, 4)
        k(f"v_mfma_f32_16x16x32_bf16 {d}, {RG(reg[uk])}, {RG(reg[kk])}, {d if J in seen else 0}")
        seen.add(J)
        if n == opt("ll0", 8) and layer == 0 and DEF0:
            side += conv_load_ops(0, 1, LATE0)
        if n == 18:
            side += res_ops(0)
        if n == 122:
            side[0:0] = res_ops(1)
        if layer == 0 and n == opt("pw1", 50):
            poll_load(vWF, vWF + 1, 0, 32 if SPL else 0)
        if layer and EARLY and n == opt("fl", 4):
            k.wait_tag_vm(("st", 1))
            k("s_barrier")
            aflag(F_CIN1[1])
        if layer and n == opt("pcl", 0):
            apoll_load(F_CIN1[1])
        if n == XB:
            assert not side
            xblock(0, bool(opt("xpk", 1)), bool(opt("xaf", 0)))
        if layer and n == CL - 2:
            precmp(vPA)
        if layer and n == CL and CL != XS:
            apoll_check()
            k("s_barrier")
            side += conv_load_ops(1, 1, LIN)
        if n == XS:
            if layer and CL == XS:
                apoll_check()
            wait_lg("ex")
            k("s_barrier")
            run(recv_ops())
            if layer and CL == XS:
                side += conv_load_ops(1, 1, LIN)
        if n == XS + opt("xo", 4):
            run(side)
            run(out_ops(0, bool(opt("xpk", 1))))
        if n == FE and FE < CPB:
            k.wait_tag_vm(("cst", 0))
            k("s_barrier")
            aflag(F_X1[layer][0])
        if n == PE:
            apoll_load(F_X1[layer][0])
        if n in (0, 19, 39, 47, 55, 63, 71, 87, 103, 104, 123, 143):
            fine(f"m{n}")
        if side:
            run(side, 2 if cnt == 0 else 1)
        elif bg and n >= BG0 + step * (nbg - len(bg)) and (cnt == 0 or n >= BG0 + 2 + step * (nbg - len(bg))):
            run(bg, 1)
    assert not items and not queue and not any(x and "v_" in x[:2] for x in side)
    run(side)
    run(bg)
    stamp(13)
    PX = opt("px", 2) if PE > 143 else -1
    if PX == 0:
        apoll_load(F_X1[layer][0])
    xblock(1, True)
    bar()
    run(recv_ops())
    if PX == 1:
        apoll_load(F_X1[layer][0])
    o = out_ops(1, True)
    run(o, len(o) - 1)
    if PX == 2:
        apoll_load(F_X1[layer][0])
    run(o)
    fine("store")
    stamp(11)
    if layer == 0:
        n = min(opt("w1a", 4), 28 - NW1[0])
        k.wait_tag_vm(("w2", 27))
        tr = w2_tr_ops(0, 14)
        for i in range(n):
            w1_load()
            run(tr, len(tr) // (n - i))
        run(tr)
    apoll_check()
    bar()
    fine("pollE")
    stamp(14)

def layer_turn():
    FREG[0] = 5
    fine("T")
    kp = k_preload()
    run(kp, opt("kpre", 32))
    fine("kpre")
    apoll_check()
    k("s_barrier")
    fine("chk")
    stamp(20)
    run(conv_load_ops(1, 0, WK))
    k.wait_tag_vm(("st", 1))
    k("s_barrier")
    aflag(F_CIN1[1])
    fine("flag")
    run(kp)
    touch(2)
    fine("touch")
    stamp(21)
    if opt("pcl.1", 0) < 0:
        k.wait(vm=0)
        apoll_load(F_CIN1[1])
    w = cprep(WK, WK + 12, 0, True)
    fine("prep")
    run(w)
    if FREG[0] == opt("fine", 0):
        k.wait(lg=0)
        fine("wr")
    LAY[0] = 1

G2RES = WK + 100
G2R = WK + 108

GB = 4 if GL else 1024
def gflag_ops(half, local):
    return ["s_mov_b64 exec, 1",
            f"buffer_store_dword {V(vONE)}, {V(vFL)}, {S(SRD_WS,4)}, {S(sFP if local else sFG)} offen offset:{GB*half}" + ("" if local else " sc1"),
            "s_mov_b64 exec, -1"]

def gflag(layer, half):
    run(gflag_ops(half, FAST))

def gcheck(half, pre=()):
    if FAST:
        poll_check(vPL2, vF2P, S(sFP), GB * half, pre=gflag_ops(half, False), alt=(vHL, S(sFG)))
    else:
        poll_check(vPL2, vF2P, S(sFG), GB * half, pre=pre)

def ffn(layer):
    k.c("=== GEMM1")
    FREG[0] = 1
    fine("start")
    ACC = WK
    EP = WK + 64
    vXS = WK + 80
    vB0, vB1 = WK + 81, WK + 82
    if layer:
        k(f"s_add_u32 {S(sXT)}, {S(sXT)}, {hex(XQ_SZ)}")
    k(f"v_add_u32 {V(vXS)}, {S(sXT)}, {V(vL16)}")
    k(f"s_lshl_b32 {S(sT0)}, {S(sW)}, 10")
    k(f"s_mov_b32 m0, {S(sT0)}")
    nx = [0]
    def dma():
        d = nx[0]
        nx[0] += 1
        k(f"buffer_load_dwordx4 {V(vXS)}, {S(SRD_WS,4)}, m0 offen sc1 lds", tag=("x", d))
        if d == 13:
            k(f"v_subrev_u32 {V(vXS)}, 32, {V(vXS)}")
        if d < 27:
            k(f"s_add_u32 m0, m0, {4096 + (32 if d == 13 else 0)}")
    NUP = opt("nup", 9)
    af = addr_ffn(layer)
    FXL = opt("fxl", 6)
    for st in range(NUP):
        dma()
        if st >= 1:
            run(af, opt("afr", 11))
        if st == FXL:
            k.wait_tag_vm(("cst", 1))
            k("s_barrier")
            aflag(F_X1[layer][1])
    af += [f"v_add_u32 {V(vB0)}, {XHALF}, {V(vXA0)}", f"v_add_u32 {V(vB1)}, {XHALF}, {V(vXA1)}"]
    W2CHK = [layer == 0 and NW2[0] == 0]
    if W2CHK[0]:
        k(f"v_mov_b32 {V(WK+97)}, {S(sLDT2)}")
        poll_load(WK + 96, WK + 97, 0)
    if layer == 0:
        touch(1)
    SKA = opt("ska", 10)
    mf = [(0, q, ks) for ks in range(28 - SKA) for q in range(2)]
    mf += [(0, q, ks) for q in range(2) for ks in range(28 - SKA, 28)]
    SK = opt("skb", 18)
    mf += [(1, q, ks) for ks in range(28 - SK) for q in range(2)]
    mf += [(1, q, ks) for q in range(2) for ks in range(28 - SK, 28)]
    NR = 8
    LEAD = opt("g1lead", 7)
    bars = [[2, 5, 9, 14, 16, 19, 23, 28], [1, 3, 6, 9, 14, 17, 21, 28], [2, 5, 9, 14, 18, 23, 28], [2, 6, 14, 20, 28]][opt("bars", 0)]
    ready = [0]
    def rd(n):
        half, q, ks = mf[n]
        st = 14 * half + ks // 2
        if st >= ready[0]:
            nb = [b for b in bars if b > st][0]
            assert nx[0] >= nb, (n, nb, nx[0])
            k.wait_tag_vm(("x", nb - 1))
            k("s_barrier")
            if ready[0] == 0 and FXL >= NUP:
                aflag(F_X1[layer][1])
            ready[0] = nb
        va = ((vXA0, vXA1), (vB0, vB1))[half][q]
        for u in range(2):
            k(f"ds_read_b64_tr_b16 {A(AX+4*(n%NR)+2*u,2)}, {V(va)} offset:{ks*2048+u*512}", tag=("f", n))
        rdat[n] = cur[0]
    rdat, cur, lastw = {}, [-9], [-9]
    def epi(tile):
        ops = []
        e = EP + 8 * (tile & 1)
        for a in range(2):
            for i in range(4):
                ops.append(f"v_cvt_pk_bf16_f32 {V(e+4*a+i)}, {V(ACC+16*tile+8*a+2*i)}, {V(ACC+16*tile+8*a+2*i+1)}")
            for i in range(4):
                ops.append(f"v_pk_max_i16 {V(e+4*a+i)}, {V(e+4*a+i)}, 0")
            if a == 0:
                ops.append(f"s_add_u32 {S(sT1)}, {S(sHS)}, {tile*112*1024}")
            ops.append((f"buffer_store_dwordx4 {V(e+4*a,4)}, {V(vL16)}, {S(SRD_WS,4)}, {S(sT1)} offen offset:{1024*a} sc1", ("h", tile)))
        return ops
    F = WK
    ONE4, DS_, DQ = WK + 84, WK + 88, WK + 92
    srd_ = [f"ds_read_b64_tr_b16 {V(F+4*ks+2*u,2)}, {V(vST)} offset:{ks*4096+u*512}" for ks in range(14) for u in range(2)]
    ring = [("a", AX + 4 * i) for i in range(8)] + [("v", WK + 64 + 4 * i) for i in range(5)]
    NR2 = opt("g2ring", 11)
    ring = ring[:NR2]
    rn = lambda i: (V if ring[i % NR2][0] == "v" else A)(ring[i % NR2][1], 4)
    nl = [0]
    def ld():
        i = nl[0]
        nl[0] += 1
        half, s = divmod(i, 28)
        if s % 4 == 0:
            k(f"s_add_u32 {S(sT4)}, {S(sHL)}, {half*2*112*1024 + s*1024}")
        k(f"buffer_load_dwordx4 {rn(i)}, {V(vL16)}, {S(SRD_WS,4)}, {S(sT4)} offen offset:{1024*(s%4)} sc1" + (" nt" if opt("hnt", 0) else ""))
        if layer == 0 and NW2[0] < 28 and i >= opt("w2l0", 0) and (i - opt("w2l0", 0)) % opt("w2ls", 1) == 0:
            w2_load()
    CHKA = opt("chkA", 999)
    HOLD = opt("hold", 0)
    held = []
    sentB = False
    pend = af
    nrd = 0
    for n in range(opt("lead0", LEAD)):
        rd(nrd); nrd += 1
    stamp(27)
    cur[0] = 0
    PXL, CXL = opt("pxl", 10), opt("cxl", 28)
    LB = opt("leadb", 4)
    BUD, CVM, CST, CRD = opt("bud", 28), opt("cvm", 12), opt("cst", 24), opt("crd", 4)
    MINL = opt("minl", 5)
    for n, (half, q, ks) in enumerate(mf):
        tile = 2 * half + q
        d = V(ACC + 16 * tile, 16)
        assert NW1[0] > ks, "W1 fragment used before its load"
        k(f"v_mfma_f32_32x32x16_bf16 {d}, {V(W1R+4*ks,4)}, {A(AX+4*(n%NR),4)}, {d if ks else 0}")
        if n == 56 - SKA + opt("ed", 2):
            pend += epi(0)
        if n == 56 + opt("ed", 2):
            pend += epi(1)
        if n == 112 - SK + opt("ed", 2):
            e2 = epi(2)
            if HOLD:
                held = [o for o in e2 if isinstance(o, tuple) or o.startswith("s_")]
                e2 = [o for o in e2 if o not in held]
            pend += e2
        b = BUD
        tags = [p[2] for p in k.lg]
        needw = ("f", n + 1) in tags
        if needw:
            b -= 4
        def newbar(m):
            return 14 * mf[m][0] + mf[m][2] // 2 >= ready[0]
        def may(m):
            if m < len(mf) and opt("mrg", 1) and ready[0] == 9 and newbar(m) and n < CXL <= m - 4:
                return False
            return m < len(mf) and m <= n + (LB if m == 56 else LEAD)
        if n == PXL:
            apoll_load(F_X1[layer][1]); b -= CVM + 4
        if n == CXL - 1:
            assert PRECMP[0] is None
            precmp(vPA); b -= 8
        if n == CXL:
            apoll_check()
            if nx[0] == 14 and ready[0] < 14:
                k.wait_tag_vm(("x", 13))
                ready[0] = 14
            k("s_barrier")
            stamp(28); b -= 20
        if n == opt("pollA", 109):
            poll_load(vPL2, vF2P, S(sFP)); b -= CVM
        if n == opt("flagA", 91):
            k.wait_tag_vm(("h", 1))
            gflag(layer, 0); b -= CVM + 12
        if n == CHKA:
            assert opt("flagA", 91) < opt("pollA", 109) < n
            gcheck(0); b -= 12
        if n >= max(CHKA, 104) and nl[0] <= n - 104 and nrd == len(mf) and (n - CHKA) % opt("hstep", 2) == 0:
            ld(); b -= CVM
        while may(nrd) and nrd <= n + MINL - 1:
            b -= 2 * CRD + (12 if newbar(nrd) else 0)
            rd(nrd); nrd += 1
        full = b >= BUD - 4
        if pend and isinstance(pend[0], tuple):
            if full or b >= CST:
                run(pend, 1); b -= CST
        elif full or b >= CVM + 4:
            if nx[0] < 14 and opt("astep", 3) * (nx[0] - NUP) <= n:
                dma(); b -= CVM + 4
            elif n >= CXL and nx[0] < 28 and opt("bstep", 2) * (nx[0] - 14 - opt("bburst", 1)) <= n - CXL:
                dma(); b -= CVM + 4
            elif layer == 0 and n >= lastw[0] + opt("w1step", 2) and NW1[0] < 28:
                w1_load(); b -= CVM; lastw[0] = n
            elif layer == 0 and NW1[0] == 28 and NW2[0] < opt("w2g1", 28) and n >= lastw[0] + opt("w2step", 2) and (n < CXL - opt("w2gap", 1) or nx[0] >= opt("w2x", 28)) and n < opt("w2end", 999):
                if W2CHK[0]:
                    assert PRECMP[0] is None
                    poll_check(WK + 96, WK + 97, 0)
                    W2CHK[0] = False
                w2_load(); b -= CVM; lastw[0] = n
        while True:
            if may(nrd) and b >= 2 * CRD and (nrd <= n + MINL + 1 or not pend or isinstance(pend[0], tuple)):
                b -= 2 * CRD + (12 if newbar(nrd) else 0)
                rd(nrd); nrd += 1
            elif pend and not isinstance(pend[0], tuple) and b >= 4:
                run(pend, 1); b -= 4
            elif nrd == len(mf) and len(srd_) > 12 and b >= CRD and n > 72:
                run(srd_, 1); b -= CRD
            else:
                break
        if needw:
            tags = [p[2] for p in k.lg]
            tgt = ("f", n + 2) if ("f", n + 2) in tags and rdat[n + 2] <= n - opt("wage", 3) else ("f", n + 1)
            idx = [i for i, t_ in enumerate(tags) if t_ == tgt]
            if idx:
                k.wait(lg=len(tags) - 1 - idx[-1])
        cur[0] = n + 1
        assert nrd > n + 1 or nrd == len(mf)
        if n % 8 == 0 or n == 111:
            fine(f"m{n}")
        if opt("g1st", 0) and n in (55, 83):
            stamp({55: 29, 83: 31}[n])
    assert not pend and nx[0] == 28 and NW1[0] == 28 and not W2CHK[0], (pend, nx, NW1)
    FREG[0] = 2
    fine("g1end")
    run(srd_, len(srd_) - 4)
    for i in range(4):
        k(f"v_mov_b32 {V(ONE4+i)}, {S(sONES)}")
    e3 = epi(3)
    if CHKA <= 111:
        held += [o for o in e3 if isinstance(o, tuple) or o.startswith("s_")]
        e3 = [o for o in e3 if o not in held]
        n_pre = opt("hpre", 7) - nl[0]
        for i in range(n_pre):
            ld()
            run(e3, len(e3) // (n_pre - i))
    run(e3)
    run(held)
    if FAST:
        run(gflag_ops(0, False))
    fine("epi3")
    stamp(15)
    run(srd_)
    for h in range(2):
        for u in range(2):
            k(f"ds_read_b64_tr_b16 {V(G2RES+4*h+2*u,2)}, {V(vRES)} offset:{h*XHALF+u*512}")
    if CHKA > 111:
        gcheck(0, ["s_waitcnt vmcnt(0)"] + gflag_ops(1, False))
    fine("pollA")
    stamp(17)
    st = []
    for ks in range(14):
        st.append(f"v_mfma_f32_16x16x32_bf16 {V(DQ,4)}, {V(F+4*ks,4)}, {V(F+4*ks,4)}, {V(DQ,4) if ks else 0}")
        st.append(f"v_mfma_f32_16x16x32_bf16 {V(DS_,4)}, {V(ONE4,4)}, {V(F+4*ks,4)}, {V(DS_,4) if ks else 0}")
    vS, vQ, vT = DS_, ONE4, ONE4 + 1
    post = ["s_mov_b32 vcc_lo, 0x00100001", "s_mov_b32 vcc_hi, 0x10000100",
            f"v_cndmask_b32 {V(vQ)}, 0, {V(DQ)}, vcc"]
    for i in range(1, 4):
        post += ["s_lshl_b64 vcc, vcc, 1", f"v_cndmask_b32 {V(vQ)}, {V(vQ)}, {V(DQ+i)}, vcc"]
    post += [f"v_mov_b32 {V(vT)}, {V(vQ)}", f"v_mul_f32 {V(vS)}, {f2u(1.0/448)}, {V(vS)}", None,
             f"v_permlane32_swap_b32 {V(vQ)}, {V(vT)}", f"v_add_f32 {V(vQ)}, {V(vQ)}, {V(vT)}",
             f"v_mov_b32 {V(vT)}, {V(vQ)}", None, None,
             f"v_permlane16_swap_b32 {V(vQ)}, {V(vT)}", f"v_add_f32 {V(vQ)}, {V(vQ)}, {V(vT)}",
             f"v_mul_f32 {V(vQ)}, {f2u(1.0/448)}, {V(vQ)}",
             f"v_fma_f32 {V(vQ)}, -{V(vS)}, {V(vS)}, {V(vQ)}",
             f"v_max_f32 {V(vQ)}, 0, {V(vQ)}",
             f"v_add_f32 {V(vQ)}, {f2u(1e-5)}, {V(vQ)}",
             f"v_rsq_f32 {V(vQ)}, {V(vQ)}", None,
             f"v_mov_b32 {V(G2R)}, {V(vQ)}",
             f"v_mov_b32 {V(G2R+2)}, {V(vQ)}", None, None,
             f"v_mov_b32_dpp {V(G2R)}, {V(vQ)} row_ror:8 row_mask:0xf bank_mask:0xc",
             f"v_mov_b32_dpp {V(G2R+2)}, {V(vQ)} row_ror:8 row_mask:0xf bank_mask:0x3"]

    k.c("=== GEMM2")
    NR = NR2
    def red_write(half):
        return [f"ds_write_b128 {V(vRW)}, {V(ACC+32*half+4*G,4)} offset:{half*RED_H+G*redg(layer)}" for G in range(8)]
    def red_read(half):
        return [f"ds_read_b128 {V(ACC+32*half+8*w+4*g,4)}, {V(vRR)} offset:{half*RED_H+w*RED_W+512*g}" for w in range(4) for g in range(2)]
    def unpack(half, u):
        o = []
        for i in range(4):
            o.append(f"v_lshlrev_b32 {V(u+2*i)}, 16, {V(G2RES+4*half+i)}")
            o.append(f"v_and_b32 {V(u+2*i+1)}, {S(sHIM)}, {V(G2RES+4*half+i)}")
        return o
    UR = WK + 84
    def fin(half, pre):
        a = ACC + 32 * half
        u = UR
        ops = []
        def P(d, x, y):
            if pre:
                ops.append(f"v_pk_add_f32 {V(d,2)}, {V(x,2)}, {V(y,2)}")
            else:
                ops.extend(f"v_add_f32 {V(d+h)}, {V(x+h)}, {V(y+h)}" for h in range(2))
        for i in range(4):
            P(a + 2 * i, a + 2 * i, a + 8 + 2 * i)
        for i in range(4):
            P(a + 16 + 2 * i, a + 16 + 2 * i, a + 24 + 2 * i)
        for i in range(4):
            P(a + 2 * i, a + 2 * i, a + 16 + 2 * i)
        for i in range(4):
            if pre:
                ops.append(f"v_pk_fma_f32 {V(a+2*i,2)}, {V(a+2*i,2)}, {V(G2R+2*half,2)}, {V(u+2*i,2)} op_sel_hi:[1,0,1]")
            else:
                ops.extend(f"v_fma_f32 {V(a+2*i+h)}, {V(a+2*i+h)}, {V(G2R+2*half)}, {V(u+2*i+h)}" for h in range(2))
        for i in range(4):
            ops.append(f"v_cvt_pk_bf16_f32 {V(a+24+i)}, {V(a+2*i)}, {V(a+2*i+1)}")
        if layer == 0:
            ops += quad_shuffle([(a + 28, a + 24)])
            ops.append(f"s_mov_b32 {S(sT1)}, {hex(XQ + XQ_SZ + 8192*half)}")
            if half and opt("pt", 1) == 2:
                ops.append(lambda: apoll_load(F_CIN1[0]))
            ops.append((f"buffer_store_dwordx4 {V(a+28,4)}, {V(vO)}, {S(SRD_WS,4)}, {S(sT1)} offen sc1", ("st", half)))
            so = stats_ops(a + 24, 4, a, a + 1, a + 2)
            if not pre:
                so = so[10:]
                for i in range(4):
                    ops.append(f"v_lshlrev_b32 {V(a+16+2*i)}, 16, {V(a+24+i)}")
                    ops.append(f"v_and_b32 {V(a+16+2*i+1)}, {S(sHIM)}, {V(a+24+i)}")
                ops.append(f"v_add_f32 {V(a)}, {V(a+16)}, {V(a+17)}")
                ops.append(f"v_mul_f32 {V(a+1)}, {V(a+16)}, {V(a+16)}")
                for i in range(1, 8):
                    if i > 1:
                        ops.append(f"v_add_f32 {V(a)}, {V(a)}, {V(a+16+i)}")
                    ops.append(f"v_fmac_f32 {V(a+1)}, {V(a+16+i)}, {V(a+16+i)}")
            ops += so
            def at():
                k(f"s_mov_b32 {S(sT1)}, {hex(STATS[1] + 8192*half)}")
                k("s_mov_b32 exec_lo, 0xff")
                k("s_mov_b32 exec_hi, 0xff")
                k(f"buffer_atomic_add_f32 {V(a)}, {V(vAT)}, {S(SRD_WS,4)}, {S(sT1)} offen sc1", tag=("st", half))
                k("s_mov_b64 exec, -1")
            ops.append(at)
        else:
            ops.append(f"s_mov_b32 {S(sT1)}, {1024*896*half}")
            ops.append(f"buffer_store_dwordx4 {V(a+24,4)}, {V(vO)}, {S(SRD_OUT,4)}, {S(sT1)} offen" + ("", " sc1", " nt", " sc0 sc1")[opt(f"osc{half}", 2)])
        return ops
    NUP2 = opt("nup2", NR)
    for i in range(nl[0], NUP2):
        ld()
        run(st, (len(st) + NUP2 - i - 1) // (NUP2 - i))
        if i == opt("flagB", 7):
            k.wait_tag_vm(("h", 3))
            gflag(layer, 1)
            sentB = True
    assert not st
    fine("up2")
    stamp(16)
    PB = opt("pollB", 7)
    TL = opt("tl", 4)
    order = [(i, dt) for i in range(56 - TL) for dt in range(2)] + [(i, dt) for dt in range(2) for i in range(56 - TL, 56)]
    bar()
    GAP = "gap"
    pend = [GAP] * 2 + [GAP if o is None else o for o in post]
    if layer and ROWST:
        pend += [f"ds_bpermute_b32 {V(r)}, {V(vAT)}, {V(r)}" for r in list(range(G2RES, G2RES + 8)) + [G2R, G2R + 2]] + [GAP] * 3
    pend += unpack(0, UR)
    okB = False
    flagE = layer == 1
    BUD2 = opt("bud2", 24)
    for n, (i, dt) in enumerate(order):
        half, s = divmod(i, 28)
        d = V(ACC + 32 * half + 16 * dt, 16)
        assert NW2[0] + 28 > s * 2 + dt, "W2 fragment used before its load"
        k(f"v_mfma_f32_32x32x16_bf16 {d}, {A((s*2+dt)*4,4)}, {rn(i)}, {d if s else 0}")
        b = (BUD2 if i < 28 else opt("bud3", BUD2)) - (4 if dt else 0)
        if dt == 0 and i < 56 - TL:
            if i + NUP2 == opt("flagB", 7):
                k.wait_tag_vm(("h", 3))
                gflag(layer, 1)
                sentB = True
                b = 0
            if FAST and i and i == opt("qb", 29):
                assert sentB and i <= opt("red0", 29) + 2
                run(gflag_ops(1, False))
                b = 0
            if i == PB:
                poll_load(vPL2, vF2P, S(sFP), GB)
                assert sentB
                b -= 14
            if nl[0] == 28 and not okB and i > PB and (i >= opt("chkB", 99) or not any(f"v{vPL2}" in p[0] for p in k.vm[1:])):
                assert not pend
                precmp(vPL2)
                okB = None
        if dt == 1 and okB is None:
            gcheck(1)
            if FAST and not opt("qb", 29):
                pend += [GAP, lambda: run(gflag_ops(1, False))]
            okB = True
            b -= 4
        if dt == 1 and i < 56 - TL:
            if i in (13, 27, 41):
                stamp({13: 8, 27: 23, 41: 26}[i])
            if i == opt("red0", 29):
                for o in red_write(0):
                    pend += [o] + [GAP] * opt("rwg", 1)
                pend += [GAP] * opt("rw2", 1) + [bar] + red_read(0) + [GAP] * opt("rr2", 2) + fin(0, False) + unpack(1, UR)
        assert i < 56 - TL or nl[0] == 56
        if nl[0] < 56 and nl[0] - NR < i + dt and (nl[0] < 28 or okB) and (dt or opt("catch", 1)):
            ld()
            b -= 14
        while pend and not (layer and nl[0] < 56 and "buffer_store" in str(pend[0])):
            o = pend[0]
            if o is GAP:
                pend.pop(0)
                break
            cost = 8 if str(o).startswith("ds_read") else 12 if str(o).startswith("ds_bperm") else 4
            if b < cost and not str(o).startswith("ds_write"):
                break
            run(pend, 1)
            b -= cost if isinstance(o, str) else 16
        if n == opt("flagE", 104) and layer == 0:
            assert not any("atomic" in str(o) or callable(o) for o in pend)
            k.wait_tag_vm(("st", 0))
            k("s_barrier")
            aflag(F_CIN1[0])
            flagE = True
        if EARLY and layer == 0 and n == opt("pollE", 108):
            assert flagE
            apoll_load(F_CIN1[0])
        if n % 10 == 1:
            fine(f"m{n}")
        if n == 112 - TL - 1:
            assert not pend
            pend += ["s_nop 3", GAP, "s_nop 3", GAP]
            for o in red_write(1)[:4]:
                pend += [o, GAP]
    run([o for o in pend if o is not GAP])
    assert nl[0] == 56 and okB
    stamp(18)
    run(red_write(1)[4:])
    if not flagE:
        k.wait_tag_vm(("st", 0))
    if layer == 0 and opt("pt", 1) == 0:
        apoll_load(F_CIN1[0])
    bar()
    if not flagE:
        aflag(F_CIN1[0])
    fine("bar")
    run(red_read(1))
    if layer == 0 and opt("pt", 1) == 1:
        apoll_load(F_CIN1[0])
    run(fin(1, True))
    fine("out")
    stamp(19)

def finish():
    if ENC >= 0:
        k.wait(vm=0)
        stamp(22)
        k(f"s_cmp_lg_u32 {S(sWG)}, 100")
        k("s_cbranch_scc1 L_end")
        k("s_sub_u32 s47, s47, s46" if ENC else "s_sub_u32 s47, s46, s46")
        k("s_mul_i32 s47, s47, 100")
        k("s_min_u32 s47, s47, 1000000")
        k(f"s_memrealtime {S(sTM,2)}")
        k.wait(lg=0)
        k(f"s_mov_b32 s46, {S(sTM)}")
        k.label("L_spin")
        k(f"s_memrealtime {S(sTM,2)}")
        k.wait(lg=0)
        k(f"s_sub_u32 {S(sT0)}, {S(sTM)}, s46")
        k(f"s_cmp_lt_u32 {S(sT0)}, s47")
        k("s_cbranch_scc1 L_spin")
    if DIAG:
        if not opt("noend", 0):
            k.wait(vm=0)
        stamp(22)
        for n, (name, r) in enumerate(FINE):
            k(f"v_writelane_b32 {V(vSTAMP)}, s{r}, {20 + n}")
        k(f"v_writelane_b32 {V(vSTAMP)}, s101, 61")
        k.raw("; SITES " + " ".join(SITES))
        if FINE:
            k.raw("; FINE " + " ".join(n for n, _ in FINE))
        k(f"s_lshl_b32 {S(sT0)}, {S(sWG)}, 10")
        k(f"s_add_u32 {S(sT0)}, {S(sT0)}, {hex(STAMP)}")
        k(f"s_lshl_b32 {S(sT1)}, {S(sW)}, 8")
        k(f"v_lshl_add_u32 {V(WK)}, {V(vL)}, 2, {S(sT1)}")
        k(f"buffer_store_dword {V(vSTAMP)}, {V(WK)}, {S(SRD_WS,4)}, {S(sT0)} offen")
    k.label("L_end")
    k("s_endpgm")

prologue()
main_start()
kgen()
conv(0)
ffn(0)
layer_turn()
conv(1)
ffn(1)
finish()
cut = [i for i, l in enumerate(SLOW) if l.startswith("L_slow")]
NS = opt("ns", 4)
first = len(cut) - 10
for n, i in enumerate(cut):
    if n >= first and (n - first) % 3 == 0 and (n - first) // 3 < 4:
        k.raw(f"L_st{(n - first) // 3}:")
        k.raw(f"    s_branch L_ret{1 + (n - first) // 6}")
    for l in SLOW[i:(cut + [len(SLOW)])[n + 1]]:
        k.raw(l)
SLOW.clear()
LAY[0] = 0
helper()
body = list(k.lines) + SLOW
body += [".p2align 4", ".type L_table,@object", "L_table:"]
body += [".long " + ",".join(hex(w) for w in r) for r in table_words()]
body += ["L_table_end:"]

DOC = """;
; One persistent launch, one workgroup per CU (generated by the author's own script).
;   rows of x -> channel-major copy + row sums (atomics)        [hand-off to every workgroup]
;   K[l] = Re sum_n C dB exp(dt A bf16(l)): the 641 distinct exponents as a 21 x 32 outer sum, summed over
;          the modes with MFMA, expanded to two shifted Toeplitz copies in LDS (Dskip folded into lag 0)
;   2 x { LayerNorm -> causal Toeplitz MFMA conv + residual     [hand-off to every workgroup]
;         GEMM1 (mean folded into centred W1) -> ReLU           [hand-off inside a 14-workgroup row group]
;         GEMM2 * rstd + residual, row sums for the next norm } [hand-off to every workgroup]
; Hand-offs: sc1 stores -> vmcnt -> (barrier) -> sc1 flag; consumers poll with sc1 loads (bounded retry
; loops after the main code).  All flag words are cleared inside the launch (d_debug carries the 'cleared'
; words).  Row-group flags have a plain-store twin that is seen sooner on the same die; a consumer that
; does not see the twin falls back to the device-wide word, so placement only affects speed.
"""
ref = open("cdna_kernels/%s.s.ref" % NAME).read().splitlines()
hdr = [l for l in ref if l.startswith(";") and "@launch" not in l]
head = f""".amdgcn_target "amdgcn-amd-amdhsa--gfx950"
.text
.globl {NAME}_kernel
.p2align 8
.type {NAME}_kernel,@function
{NAME}_kernel:
"""
if opt("align", 1):
    body = align(body, head, stubs=stub_targets())
out = "\n".join(hdr) + f"\n; @launch grid=(256,1,1) block=(256,1,1) lds={LDS_BYTES}\n"
out += DOC + head + "\n".join(body) + "\n"
out += f""".section .rodata,"a"
.p2align 6
.amdhsa_kernel {NAME}_kernel
  .amdhsa_next_free_vgpr 512
  .amdhsa_next_free_sgpr 102
  .amdhsa_accum_offset 256
  .amdhsa_group_segment_fixed_size 0
  .amdhsa_kernarg_size 120
  .amdhsa_user_sgpr_count 2
  .amdhsa_user_sgpr_kernarg_segment_ptr 1
  .amdhsa_system_sgpr_workgroup_id_x 1
.end_amdhsa_kernel
"""
dst = [a for a in sys.argv[1:] if not a.startswith("--")]
dst = dst[0] if dst else "cdna_kernels/%s.s" % NAME
open(dst, "w").write(out)
print("instructions:", k.nins, "->", dst)
```

```python
import sys, struct
from emit import Asm, V, A, S
from align import align

NAME = "interleave_layers__ssm_conv_s4__dense_activation_relu__prompt"
DIAG = "--diag" in sys.argv
OPT = {"pe.0": 999, "pxl.0": 18, "cxl.0": 36, "pxl.1": 11, "nup.1": 11, "astep.1": 1, "cxl.1": 30, "pollB.0": 10, "pollB.1": 9, "bud3.0": 44,
       "cpl": 88, "cpb": 94, "fe": 94, "pe.1": 138}
for a in sys.argv:
    if a.startswith("--") and "=" in a:
        n, v = a[2:].split("=")
        OPT[n] = int(v)
LAY = [0]
def opt(n, d):
    return OPT.get(f"{n}.{LAY[0]}", OPT.get(n, d))

def f2u(x):
    return "0x%08x" % struct.unpack("<I", struct.pack("<f", x))[0]

GL, AL = opt("gl", 5), opt("al", 0)
FA = (lambda n: 0x8000 + 4 * n if n else 0) if AL else (lambda n: n * 0x8000)
F_CIN0, F_X1, F_CIN1 = 0, ((1, 2), (5, 6)), (3, 4)
FLG_G = 0x8000 + (2048 << AL if AL else 0x30000)
FAST = opt("fast", 1)
PQ = 1024 << GL
ZEND = FLG_G + (PQ if FAST else 0) + (1024 << GL if GL else 0x10000) + 0x8000
STATS = (0x1804000, ZEND - 0x8000)
XQ = 0x1820000
XQ_SZ = 0x1C0000
X1T = 0x3E0000
HB = 0x760000
H_SZ = 0 if opt("hreuse", 0) else 0x700000
W1C = 0x1560000
FLG_W = ZEND - 0x4000
STAMP = 0x1700000
W2T = 0x1740000
WS_BYTES = 0x1BA0000

XHALF = 57344 + 32
SCR = 114816
SCR_ST = 8960
KC0 = 4608
ROW_ST = 544
UARR = SCR + 4 * SCR_ST
U_ST = 4576
LDS_BYTES = 163840
WREG = 28672
RED_G = 1152
RED_W = 8 * RED_G
RED_H = 4 * RED_W

sWG, sW = 2, 3
SRD_WS, SRD_OUT, SRD_W1, SRD_W2, SRD_X0, SRD_DBG = 4, 8, 12, 16, 20, 24
sCP, sGAM, sJ, sHH, sDS, sROT = 58, 59, 60, 61, 62, 63
sONES, sHIM = 64, 65
sT0, sT1, sT2, sT3, sT4, sT5 = 66, 67, 68, 69, 70, 71
sLDT, sDSK = 72, 73
sREP, sXQi, sW2B, sXT, sHL, sHS, sFG = 74, 75, 76, 77, 78, 79, 80
sSPIN = 81
sC0, sC1 = 82, 83
sPC = 84
sTM = 86
sWL = 88
sW2O = 89
sSCR, sSCH = 90, 95
sPERM0, sPERM1 = 91, 92
sNH, sCH = 93, 94
sXS = 100
sLDT2 = 99
sFP = 98
sKO = 28
sW2L, sPA = 96, 97

vTID, vL, vL16 = 0, 1, 2
vCX, vUW, vXW = 3, 4, 5
vKF = 6
vUF, vXR, vCO, vEXW, vEXR = 10, 11, 12, 13, 14
vFW, vFP, vONE, vSTAMP, vPA = 15, 16, 17, 18, 19
vXA0, vXA1, vST, vRES, vRW, vRR, vO, vAT, vF2P, vFL, vHL, vPL2 = range(20, 32)
vW2S, vW2R, vWF, vDUM = 20, 21, 23, 26
LIN = 20
WK = 32
W1R = 144
AX = 224

class JAsm(Asm):
    nj = 0
    on = False
    def __call__(self, text, tag=None):
        super().__call__(text, tag)
        if opt("jitter", 0) and self.on and (text == "s_barrier" or (text.startswith("buffer_store_dwordx4") and "s66" not in text)):
            self.nj += 1
            for t in ("s_mul_i32 s46, s46, 1103515245", "s_add_u32 s46, s46, 12345", "s_lshr_b32 s47, s46, 29", "s_cmp_lg_u32 s47, 0",
                      f"s_cbranch_scc1 L_jit{self.nj}", f"s_sleep {opt('jitter', 0)}"):
                self.raw("    " + t)
            self.raw(f"L_jit{self.nj}:")
k = JAsm()
SPIN_MAX = 1 << 16

ENC = opt("enc", -1)
def stamp(idx, cyc=False):
    if ENC >= 0 and not cyc and idx + 32 * LAY[0] in (0, ENC):
        k.wait(lg=0)
        k(f"s_memrealtime {S(sTM,2)}")
        k.wait(lg=0)
        k(f"s_mov_b32 {S(46 if idx + 32*LAY[0] == 0 else 47)}, {S(sTM)}")
    if not DIAG:
        return
    if opt("lite", 0) and idx + 32 * LAY[0] not in (0, 9, 14, 19, 46, 54):
        return
    k.wait(lg=0)
    k(f"{'s_memtime' if cyc != bool(opt('cyc', 0)) else 's_memrealtime'} {S(sTM,2)}")
    k.wait(lg=0)
    k(f"v_writelane_b32 {V(vSTAMP)}, {S(sTM)}, {idx + 32*LAY[0]}")

FINE = []
def fine(name):
    if not DIAG or opt("fine", 0) != FREG[0] or opt("finel", 1) != LAY[0]:
        return
    regs = list(range(28, 46, 2)) + [12, 14, 20, 22, 48, 50, 54, 56] + ([] if FREG[0] == 4 else [24, 26])
    r = regs[len(FINE)]
    FINE.append((name, r))
    k.raw(f"    s_memtime s[{r}:{r+1}]")
FREG = [0]

def srd_base(base, ptr):
    k(f"s_mov_b32 {S(base)}, {S(ptr)}")
    k(f"s_and_b32 {S(base+1)}, {S(ptr+1)}, 0xffff")

def srd(base, ptr, nbytes):
    k(f"s_mov_b32 {S(base)}, {S(ptr)}")
    k(f"s_and_b32 {S(base+1)}, {S(ptr+1)}, 0xffff")
    k(f"s_mov_b32 {S(base+2)}, {hex(nbytes)}")
    k(f"s_mov_b32 {S(base+3)}, 0x20000")

_lab = [0]
def newlab(p):
    _lab[0] += 1
    return f"L_{p}_{_lab[0]}"

def branch(op, lab):
    k.fence(1)
    k(f"{op} {lab}")

def label(lab):
    k.fence()
    k.label(lab)

def poll_load(vtmp, vaddr, soff, off=0, srdn=SRD_WS):
    pol = "nt" if FAST and opt("pnt", 0) and soff == S(sFP) else "sc1"
    k(f"buffer_load_dword {V(vtmp)}, {V(vaddr)}, {S(srdn,4)}, {soff} offen offset:{off} {pol}")

PRECMP = [None]
def precmp(vtmp):
    if opt("pre", 1):
        k(f"v_cmp_eq_u32 vcc, 0, {V(vtmp)}")
        PRECMP[0] = vtmp
SLOW = []
SITES = []
def poll_check(vtmp, vaddr, soff, off=0, srdn=SRD_WS, pre=(), alt=None):
    sl, lp, ok = newlab("slow"), newlab("poll"), newlab("ok")
    if PRECMP[0] != vtmp:
        k(f"v_cmp_eq_u32 vcc, 0, {V(vtmp)}")
    PRECMP[0] = None
    k(f"s_cbranch_vccnz {sl}")
    k.label(ok)
    import inspect
    SITES.append(inspect.stack()[2 if inspect.stack()[1].function == "apoll_check" else 1].function + str(LAY[0]))
    slp = opt("sl_" + SITES[-1], opt("sleep", 0))
    if opt("pipe", 3) and vaddr == vFP:
        ld_ = lambda r: f"    buffer_load_dword {V(r)}, {V(vaddr)}, {S(srdn,4)}, {soff} offen offset:{off} sc1"
        SLOW.extend([f"{sl}:"] + ([f"    s_bitset1_b32 s101, {len(SITES)-1}"] if DIAG else []) +
                    [ld_(vtmp), f"    s_mov_b32 {S(sSPIN)}, 0", f"    s_sleep {opt('pipe', 3)}", f"{lp}:",
                     ld_(vTID), f"    s_add_u32 {S(sSPIN)}, {S(sSPIN)}, 1", "    s_waitcnt vmcnt(1)",
                     f"    v_cmp_eq_u32 vcc, 0, {V(vtmp)}", f"    s_cmp_gt_u32 {S(sSPIN)}, {SPIN_MAX}",
                     f"    s_cbranch_vccz {ok}",
                     ld_(vtmp), "    s_waitcnt vmcnt(1)",
                     f"    v_cmp_eq_u32 vcc, 0, {V(vTID)}",
                     f"    s_cbranch_scc1 {ok}",
                     f"    s_cbranch_vccnz {lp}",
                     f"    s_branch {ok}"])
        return
    SLOW.extend([f"{sl}:"] + ([f"    s_bitset1_b32 s101, {len(SITES)-1}"] if DIAG else []) +
                ([f"    s_mov_b32 {S(sSPIN)}, 0",
                  f"{lp}q:",
                  f"    buffer_load_dword {V(vtmp)}, {V(vaddr)}, {S(srdn,4)}, {soff} offen offset:{off} sc1",
                  f"    s_add_u32 {S(sSPIN)}, {S(sSPIN)}, 1",
                  "    s_waitcnt vmcnt(0)",
                  f"    v_cmp_eq_u32 vcc, 0, {V(vtmp)}",
                  f"    s_cmp_lt_u32 {S(sSPIN)}, 10",
                  f"    s_cbranch_vccz {ok}",
                  f"    s_cbranch_scc1 {lp}q"] if alt else []) +
                ["    " + p for p in pre] +
                [f"    s_mov_b32 {S(sSPIN)}, 0",
                 f"{lp}:"] +
                ([f"    s_sleep {slp}"] if slp else []) +
                [f"    buffer_load_dword {V(vtmp)}, {V(vaddr)}, {S(srdn,4)}, {soff} offen offset:{off} sc1",
                 f"    s_add_u32 {S(sSPIN)}, {S(sSPIN)}, 1"] +
                ([f"    buffer_load_dword {V(alt[0])}, {V(vaddr)}, {S(srdn,4)}, {alt[1]} offen offset:{off} sc1"] if alt else []) +
                ["    s_waitcnt vmcnt(0)"] +
                ([f"    v_or_b32 {V(vtmp)}, {V(vtmp)}, {V(alt[0])}"] if alt else []) +
                [
                 f"    v_cmp_eq_u32 vcc, 0, {V(vtmp)}",
                 f"    s_cmp_gt_u32 {S(sSPIN)}, {SPIN_MAX}",
                 f"    s_cbranch_scc1 {ok}",
                 f"    s_cbranch_vccnz {lp}",
                 f"    s_branch {ok}"])

def run(ops, n=None):
    c = 0
    while ops and (n is None or c < n):
        o = ops.pop(0)
        if callable(o):
            o()
        elif isinstance(o, tuple):
            k(o[0], tag=o[1])
        elif o is not None:
            k(o)
        c += 1

def stats_ops(P, n, vS, vQ, vT):
    o = [f"v_mov_b32 {V(vS)}, 0", f"v_mov_b32 {V(vQ)}, 0"]
    for i in range(n):
        o.append(f"v_dot2c_f32_bf16 {V(vS)}, {S(sONES)}, {V(P+i)}")
        o.append(f"v_dot2c_f32_bf16 {V(vQ)}, {V(P+i)}, {V(P+i)}")
    o += [f"v_permlane32_swap_b32 {V(vS)}, {V(vQ)}",
          f"v_add_f32 {V(vS)}, {V(vS)}, {V(vQ)}",
          f"v_mov_b32 {V(vT)}, {V(vS)}",
          f"v_permlane16_swap_b32 {V(vS)}, {V(vT)}",
          f"v_add_f32 {V(vS)}, {V(vS)}, {V(vT)}",
          f"v_add_f32_dpp {V(vS)}, {V(vS)}, {V(vS)} row_ror:8 row_mask:0xf bank_mask:0xf",
          f"v_lshrrev_b32 {V(vT)}, 1, {V(vS)}",
          f"v_add_u32 {V(vQ)}, {hex(8 << 23)}, {V(vS)}",
          f"v_add_u32 {V(vT)}, {hex(0x1FC00000 + (13 << 23))}, {V(vT)}",
          f"v_permlane32_swap_b32 {V(vT)}, {V(vQ)}",
          f"v_and_b32 {V(vQ)}, 0x7f800000, {V(vQ)}",
          f"v_mul_f32 {V(vQ)}, 0x3fc00000, {V(vQ)}",
          f"v_add_f32 {V(vS)}, {V(vS)}, {V(vQ)}",
          f"v_sub_f32 {V(vS)}, {V(vS)}, {V(vQ)}"]
    return o

def quad_shuffle(pairs):
    D = " row_mask:0xf bank_mask:0xf"
    o = ["s_mov_b32 vcc_lo, 0x0f0f0f0f", "s_mov_b32 vcc_hi, 0x0f0f0f0f"]
    for d, s in pairs:
        o.append(f"v_cndmask_b32_dpp {V(d)}, {V(s+2)}, {V(s)}, vcc row_ror:4" + D)
        o.append(f"v_cndmask_b32_dpp {V(d+2)}, {V(s+3)}, {V(s+1)}, vcc row_ror:4" + D)
    o.append("s_not_b64 vcc, vcc")
    for d, s in pairs:
        o.append(f"v_cndmask_b32_dpp {V(d+1)}, {V(s)}, {V(s+2)}, vcc row_ror:12" + D)
        o.append(f"v_cndmask_b32_dpp {V(d+3)}, {V(s+1)}, {V(s+3)}, vcc row_ror:12" + D)
    return o

X0R = WK
X0O = WK + 8
vP0A = WK + 16
vP0S = WK + 20
vGO = WK + 28

def p0x_addr(part):
    t = vP0A
    if part:
        return p0x_addr2()
    k.c("row re-layout unit of this wave: W = 4m+w, octet group a = W%7, rows (blk, j2) = W/7, both hh8")
    k(f"s_lshl2_add_u32 {S(sT0)}, {S(sT0)}, {S(sW)}")
    k(f"s_mul_i32 {S(sT1)}, {S(sT0)}, 9363")
    k(f"s_lshr_b32 {S(sT1)}, {S(sT1)}, 16")
    k(f"s_mul_i32 {S(sT2)}, {S(sT1)}, 7")
    k(f"s_sub_u32 {S(sT0)}, {S(sT0)}, {S(sT2)}")
    k(f"s_lshr_b32 {S(sT2)}, {S(sT1)}, 2")
    k(f"s_lshl_b32 {S(sT2)}, {S(sT2)}, 6")
    k(f"s_and_b32 {S(sT3)}, {S(sT1)}, 3")
    k(f"s_lshl1_add_u32 {S(sT2)}, {S(sT3)}, {S(sT2)}")
    k(f"v_and_b32 {V(t+1)}, 0x30, {V(vL16)}")
    k(f"v_bfe_u32 {V(t)}, {V(vL)}, 2, 1")
    k(f"v_add3_u32 {V(t+3)}, {V(t+1)}, {V(t)}, {S(sT2)}")
    k(f"v_mul_u32_u24 {V(t+3)}, 896, {V(t+3)}")
    k(f"v_lshrrev_b32 {V(t+2)}, 3, {V(vL)}")
    k(f"v_lshl_add_u32 {V(t+3)}, {V(t+2)}, 4, {V(t+3)}")
    k(f"s_lshl_b32 {S(sT2)}, {S(sT0)}, 7")
    k(f"v_add_u32 {V(t+3)}, {S(sT2)}, {V(t+3)}")

def p0x_addr2():
    t = vP0A
    k(f"v_lshl_add_u32 {V(t)}, {V(t)}, 2, {V(t+1)}")
    k(f"v_lshrrev_b32 {V(t+2)}, 5, {V(vL)}")
    k(f"v_lshl_add_u32 {V(t)}, {V(t+2)}, 3, {V(t)}")
    k(f"v_and_b32 {V(t+2)}, 16, {V(vL)}")
    k(f"v_lshl_add_u32 {V(t)}, {V(t+2)}, 2, {V(t)}")
    k(f"s_lshl_b32 {S(sT2)}, {S(sT1)}, 7")
    k(f"v_add_u32 {V(t)}, {S(sT2)}, {V(t)}")
    k(f"v_lshrrev_b32 {V(t+2)}, 2, {V(vL)}")
    k(f"v_lshl_add_u32 {V(t+1)}, {V(t+2)}, 14, {V(t+1)}")
    k(f"s_lshl_b32 {S(sT0)}, {S(sT0)}, 18")
    k(f"s_lshl_b32 {S(sT1)}, {S(sT1)}, 7")
    k(f"s_add_u32 {S(sT0)}, {S(sT0)}, {S(sT1)}")
    k(f"v_add_u32 {V(t+1)}, {S(sT0)}, {V(t+1)}")

def p0x_loads():
    k(f"buffer_load_dwordx4 {V(X0R,4)}, {V(vP0A+3)}, {S(SRD_X0,4)}, 0 offen")
    k(f"buffer_load_dwordx4 {V(X0R+4,4)}, {V(vP0A+3)}, {S(SRD_X0,4)}, {S(sT4)} offen")

def p0x_body():
    t = vP0A
    if opt("goearly", 2) == 1:
        k.wait(vm=len(k.vm) - 2)
        poll_load(vGO, vGO + 3, 0, 0, SRD_DBG)
    run(quad_shuffle([(X0O + 4 * a, X0R + 4 * a) for a in range(2)]))
    k(f"s_mov_b32 {S(sT0)}, {hex(XQ)}")
    for a in range(2):
        k(f"buffer_store_dwordx4 {V(X0O+4*a,4)}, {V(t+1)}, {S(SRD_WS,4)}, {S(sT0)} offen offset:{64*a} sc1")
    s0 = stats_ops(X0R, 4, vP0S, vP0S + 1, vP0S + 2)
    s1 = stats_ops(X0R + 4, 4, vP0S + 2, vP0S + 3, vP0S + 4)
    for _ in range(12):
        run(s0, 1)
        run(s1, 1)
    run(s0[1:])
    if opt("goearly", 2) == 2:
        poll_load(vGO, vGO + 3, 0, 0, SRD_DBG)

def p0x_atomics():
    poll_check(vGO, vGO + 3, 0, 0, SRD_DBG)
    k(f"s_mov_b32 {S(sT0)}, {hex(STATS[0])}")
    k("s_mov_b32 exec_lo, 0x00ff00ff")
    k("s_mov_b32 exec_hi, 0x00ff00ff")
    k(f"buffer_atomic_add_f32 {V(vP0S)}, {V(vP0A)}, {S(SRD_WS,4)}, {S(sT0)} offen sc1", tag="st")
    k("s_mov_b64 exec, -1")
    poll_load(vGO, vGO + 2, 0, 128, SRD_DBG)
    if opt("warmat", 2) == 3:
        warm_loads()

def flag_all(off):
    k(f"s_mov_b32 {S(sT0)}, {hex(off)}")
    k(f"s_mov_b64 exec, 3")
    k(f"buffer_store_dword {V(vONE)}, {V(vFW)}, {S(SRD_WS,4)}, {S(sT0)} offen sc1")
    k(f"s_mov_b64 exec, -1")

ND = [0]
def w2_dma():
    d = ND[0]
    ND[0] += 1
    if opt("abl", 0) & 2:
        return
    if opt("rot", 1):
        if d == 0:
            k(f"s_and_b32 {S(sROT)}, {S(sWG)}, 7")
            k(f"s_min_u32 {S(sROT)}, {S(sROT)}, 6")
            k(f"s_mul_i32 {S(sXS)}, {S(sW)}, {WREG}")
        elif d % 4 == 0:
            k(f"s_add_u32 {S(sROT)}, {S(sROT)}, 1")
            k(f"s_cmp_eq_u32 {S(sROT)}, 7")
            k(f"s_cselect_b32 {S(sROT)}, 0, {S(sROT)}")
        if d % 4 == 0:
            k(f"s_lshl_b32 {S(sT4)}, {S(sROT)}, 12")
            k(f"s_add_u32 m0, {S(sT4)}, {S(sXS)}")
            k(f"s_mul_i32 {S(sW2O)}, {S(sT4)}, 7")
            k(f"s_add_u32 {S(sW2O)}, {S(sW2O)}, {S(sW2B)}")
        else:
            k(f"s_add_u32 {S(sW2O)}, {S(sW2O)}, {7168 - 1024}")
        k(f"buffer_load_dwordx4 {V(vW2S)}, {S(SRD_W2,4)}, {S(sW2O)} offen offset:{1024*(d%4)} lds", tag=("w2", d))
        return
    if d == 0:
        k(f"s_mul_i32 {S(sT4)}, {S(sW)}, {WREG}")
        k(f"s_mov_b32 m0, {S(sT4)}")
    elif d % 4 == 0:
        k(f"s_add_u32 m0, m0, 4096")
    if d:
        k(f"s_add_u32 {S(sW2B)}, {S(sW2B)}, {7168 - 1024 + (4096 if d % 4 == 0 else 0)}")
    k(f"buffer_load_dwordx4 {V(vW2S)}, {S(SRD_W2,4)}, {S(sW2B)} offen offset:{1024*(d%4)} lds", tag=("w2", d))

NW2 = [0]
def w2_load():
    n = NW2[0]
    NW2[0] += 1
    if opt("abl", 0) & 4:
        return
    k(f"buffer_load_dwordx4 {A(112+4*n,4)}, {V(vL16)}, {S(SRD_WS,4)}, {S(sW2L)} offen offset:{1024*(n%4)} sc1")
    if n % 4 == 3:
        k(f"s_add_u32 {S(sW2L)}, {S(sW2L)}, 4096")

def w2_tr_ops(lo, hi):
    return [f"ds_read_b64_tr_b16 {A((s*2+dt)*4+2*u,2)}, {V(vW2R+dt)} offset:{(s%14)*2048+u*1024}"
            for s in range(lo, hi) for dt in range(2) for u in range(2)]

NW1 = [0]
def w1_load():
    ks = NW1[0]
    NW1[0] += 1
    if opt("abl", 0) & 1:
        return
    k(f"buffer_load_dwordx4 {V(W1R+4*ks,4)}, {V(vL16)}, {S(SRD_WS,4)}, {S(sWL)} offen offset:{1024*(ks%4)} sc1")
    if ks % 4 == 3:
        k(f"s_add_u32 {S(sWL)}, {S(sWL)}, 4096")

def common():
    k(f"v_mov_b32 {V(vONE)}, 1")
    k(f"s_mov_b32 {S(sONES)}, 0x3f803f80")
    k(f"s_mov_b32 {S(sHIM)}, 0xffff0000")
    k(f"s_and_b32 {S(sNH)}, {S(sW)}, 1")
    k(f"s_lshr_b32 {S(sCH)}, {S(sW)}, 1")
    k(f"v_and_b32 {V(vGO+1)}, 12, {V(vL)}")

def roles():
    k(f"s_cmp_ge_u32 {S(sJ)}, 14")
    k(f"s_cselect_b32 {S(sT2)}, 1, 0")
    k(f"s_cselect_b32 {S(sT3)}, 14, 0")
    k(f"s_lshl1_add_u32 {S(sGAM)}, {S(sREP)}, {S(sT2)}")
    k(f"s_sub_u32 {S(sJ)}, {S(sJ)}, {S(sT3)}")
    k(f"s_and_b32 {S(sHH)}, {S(sJ)}, 1")
    k(f"s_lshr_b32 {S(sDS)}, {S(sJ)}, 1")
    k(f"s_lshl_b32 {S(sREP)}, {S(sREP)}, 12")
    k(f"s_lshl_b32 {S(sT0)}, {S(sW)}, 13")
    k(f"s_lshl4_add_u32 {S(sT0)}, {S(sWG)}, {S(sT0)}")
    k(f"v_lshl_add_u32 {V(vFW)}, {V(vL)}, 12, {S(sT0)}")
    k(f"v_and_b32 {V(vGO+2)}, 4, {V(vL)}")
    k(f"v_mov_b32 {V(vGO+3)}, 0")

FIRST = []
def prologue():
    k(f"s_getpc_b64 {S(sPC,2)}")
    k.label("L_pc")
    if DIAG:
        k("s_memrealtime s[12:13]")
    k(f"s_cmp_ge_u32 {S(sWG)}, 256")
    k("s_cbranch_scc1 L_end")
    k("s_load_dwordx16 s[28:43], s[0:1], 0")
    k("s_load_dwordx8 s[44:51], s[0:1], 64")
    k("s_load_dwordx4 s[52:55], s[0:1], 96")
    k("s_load_dwordx2 s[56:57], s[0:1], 112")
    k.c("wave 0 of helpers 8..31 pulls a third of the code into L2")
    k(f"s_sub_u32 {S(sT0)}, {S(sWG)}, 8")
    k(f"s_cmp_ge_u32 {S(sT0)}, 24")
    k("s_cbranch_scc1 L_nopf")
    k(f"v_cmp_gt_u32 vcc, 64, {V(vTID)}")
    k(f"s_lshr_b32 {S(sT0)}, {S(sT0)}, 3")
    k(f"s_lshl_b32 {S(sT0)}, {S(sT0)}, 7")
    k(f"v_mul_u32_u24 {V(vL16)}, 384, {V(vTID)}")
    k(f"v_add_u32 {V(vL16)}, {S(sT0)}, {V(vL16)}")
    k("s_cbranch_vccz L_nopf")
    for q in range(2):
        k(f"v_min_u32 {V(vL16)}, L_table_end-L_pc-4, {V(vL16)}")
        k(f"global_load_dword {V(vDUM)}, {V(vL16)}, {S(sPC,2)}")
        k.vm = []
        if q == 0:
            k(f"v_add_u32 {V(vL16)}, {64*384}, {V(vL16)}")
    k.label("L_nopf")
    k(f"v_lshrrev_b32 {V(vONE)}, 6, {V(vTID)}")
    k(f"v_and_b32 {V(vL)}, 63, {V(vTID)}")
    k(f"v_readfirstlane_b32 {S(sW)}, {V(vONE)}")
    k(f"v_lshlrev_b32 {V(vL16)}, 4, {V(vL)}")
    if DIAG:
        k(f"v_mov_b32 {V(vSTAMP)}, 0")
        k("s_mov_b32 s101, 0")
    k(f"s_sub_u32 {S(sT0)}, {S(sWG)}, 32")
    k(f"s_and_b32 {S(sREP)}, {S(sT0)}, 7")
    k(f"s_lshr_b32 {S(sJ)}, {S(sT0)}, 3")
    k(f"s_mul_i32 {S(sCP)}, {S(sREP)}, 28")
    k(f"s_add_u32 {S(sCP)}, {S(sCP)}, {S(sJ)}")
    k(f"s_lshl_b32 {S(sT1)}, {S(sCP)}, 10")
    k(f"v_lshl_add_u32 {V(PRM+6)}, {V(vTID)}, 2, {S(sT1)}")
    p0x_addr(0)
    if not opt("lean", 1):
        p0x_addr(1)
        common()
        roles()
    for b, n in ((SRD_X0, 2048 * 896), (SRD_WS, WS_BYTES), (SRD_DBG, 256)):
        k(f"s_mov_b32 {S(b+2)}, {hex(n)}")
        k(f"s_mov_b32 {S(b+3)}, 0x20000")
    k(f"s_movk_i32 {S(sT4)}, {8*896}")
    k.wait(lg=0)
    srd_base(SRD_X0, 28)
    if opt("jitter", 0):
        k("s_memtime s[46:47]")
        k.wait(lg=0)
        k(f"s_mul_i32 s47, {S(sW)}, 0x3779b1")
        k("s_add_u32 s46, s46, s47")
        k.on = True
    if DIAG:
        k(f"v_writelane_b32 {V(vSTAMP)}, s12, 0")
    elif ENC >= 0:
        stamp(0)
    k(f"s_cmp_lt_u32 {S(sWG)}, 32")
    branch("s_cbranch_scc1", "L_clear")
    p0x_loads()
    for i in range(6):
        k(f"global_load_dword {V(PRM+i)}, {V(PRM+6)}, {S(30+2*i,2)}")
    FIRST.extend(k.vm)
    branch("s_branch", "L_main")
    label("L_clear")
    k.forget()
    srd_base(SRD_WS, 56)
    srd_base(SRD_DBG, 54)
    if opt("lean", 1):
        common()
    z = HZ
    for i in range(4):
        k(f"v_mov_b32 {V(z+i)}, 0")
    k(f"s_lshl_b32 {S(sT5)}, {S(sWG)}, 7")
    k(f"s_add_u32 {S(sT5)}, {S(sT5)}, {hex(FLG_W)}")
    l1, l2 = newlab("h1"), newlab("h2")
    k(f"s_cmp_lt_u32 {S(sWG)}, 28")
    branch("s_cbranch_scc1", l1)
    k(f"s_sub_u32 {S(sT2)}, {S(sWG)}, 28")
    k(f"s_lshl2_add_u32 {S(sT0)}, {S(sT2)}, {S(sW)}")
    k(f"s_mul_i32 {S(sT0)}, {S(sT0)}, {(ZEND - 0x8000) // 16}")
    k(f"s_add_u32 {S(sT0)}, {S(sT0)}, 0x8000")
    k(f"s_add_u32 {S(sT1)}, {S(sT0)}, {(ZEND - 0x8000) // 16}")
    for q in range(opt("zwait", 0)):
        k(f"v_lshlrev_b32 {V(z+4)}, 12, {V(vTID)}")
        k(f"buffer_load_dword {V(z+5)}, {V(z+4)}, {S(SRD_X0,4)}, {S(sT0)} offen offset:{1024*q}")
        k.wait(vm=0)
    lz = newlab("z")
    label(lz)
    for i in range(2):
        k(f"buffer_store_dwordx4 {V(z,4)}, {V(vL16)}, {S(SRD_WS,4)}, {S(sT0)} offen offset:{1024*i} sc1")
    k(f"s_add_u32 {S(sT0)}, {S(sT0)}, 2048")
    k(f"s_cmp_lt_u32 {S(sT0)}, {S(sT1)}")
    k(f"s_cbranch_scc1 {lz}")
    k(f"s_lshl_b32 {S(sT0)}, {S(sT2)}, 2")
    k.wait(vm=0)
    k("s_barrier")
    k(f"s_cmp_lg_u32 {S(sW)}, 1")
    branch("s_cbranch_scc1", "L_end2")
    k("s_mov_b64 exec, 1")
    k(f"buffer_store_dword {V(vONE)}, {V(z)}, {S(SRD_DBG,4)}, {S(sT0)} offen offset:192 sc1")
    k("s_mov_b64 exec, -1")
    branch("s_branch", "L_end2")
    label(l1)
    k.forget()
    k(f"s_cmp_gt_u32 {S(sWG)}, 2")
    branch("s_cbranch_scc1", "L_helper")
    k(f"s_lshl2_add_u32 {S(sT0)}, {S(sWG)}, {S(sW)}")
    k(f"s_lshl_b32 {S(sT0)}, {S(sT0)}, 12")
    k(f"s_cmp_eq_u32 {S(sWG)}, 0")
    k(f"s_cselect_b32 {S(sT1)}, {hex(STATS[0] + 0x4000)}, 0")
    k(f"s_cselect_b32 {S(sT2)}, 0, 124")
    k(f"s_add_u32 {S(sT0)}, {S(sT0)}, {S(sT1)}")
    k(f"s_sub_u32 {S(sT0)}, {S(sT0)}, 0x4000")
    for i in range(4):
        k(f"buffer_store_dwordx4 {V(z,4)}, {V(vL16)}, {S(SRD_WS,4)}, {S(sT0)} offen offset:{1024*i} sc1")
    k(f"s_lshl2_add_u32 {S(sT0)}, {S(sWG)}, {S(sT2)}")
    stamp(4)
    k.wait(vm=0)
    k("s_barrier")
    stamp(5)
    k(f"s_cmp_lg_u32 {S(sW)}, 2")
    branch("s_cbranch_scc1", "L_helper")
    k("s_mov_b64 exec, 1")
    k(f"buffer_store_dword {V(vONE)}, {V(z)}, {S(SRD_DBG,4)}, {S(sT0)} offen sc1")
    k("s_mov_b64 exec, -1")
    branch("s_branch", "L_helper")
    label("L_main")
    k.forget()

def w2_lane_src(d, pitch, t0, t1):
    k(f"v_lshrrev_b32 {V(t0)}, 3, {V(vL)}")
    k(f"v_mul_u32_u24 {V(d)}, {pitch}, {V(t0)}")
    k(f"v_and_b32 {V(t0)}, 7, {V(vL)}")
    k(f"v_bfe_u32 {V(t1)}, {V(vL)}, 4, 1")
    k(f"v_lshlrev_b32 {V(t1)}, 2, {V(t1)}")
    k(f"v_xor_b32 {V(t0)}, {V(t0)}, {V(t1)}")
    k(f"v_lshl_add_u32 {V(d)}, {V(t0)}, 4, {V(d)}")

def h_prefetch():
    k.forget()
    a, f, d = WK, WK + 1, WK + 2
    poll_load(vGO, vGO + 1, 0, 192, SRD_DBG)
    k(f"s_and_b32 {S(sT0)}, {S(sWG)}, 7")
    k(f"s_lshr_b32 {S(sT1)}, {S(sWG)}, 4")
    k(f"s_lshl1_add_u32 {S(sGAM)}, {S(sT0)}, {S(sT1)}")
    k(f"s_bfe_u32 {S(sHH)}, {S(sWG)}, 0x10003")
    k(f"s_mul_i32 {S(sHL)}, {S(sGAM)}, {4*112*1024}")
    k(f"s_lshl2_add_u32 {S(sT3)}, {S(sHH)}, {S(sW)}")
    k(f"s_mul_i32 {S(sT3)}, {S(sT3)}, {28*1024}")
    k(f"s_add_u32 {S(sHL)}, {S(sHL)}, {S(sT3)}")
    k(f"s_lshl_b32 {S(sFG)}, {S(sGAM)}, {GL + 6}")
    k(f"s_add_u32 {S(sFG)}, {S(sFG)}, {hex(FLG_G + (PQ if FAST and opt('hpf', 0) == 2 else 0))}")
    k(f"v_min_u32 {V(f)}, 13, {V(vL)}")
    k(f"s_mul_i32 {S(sT2)}, {S(sW)}, 14")
    k(f"v_add_lshl_u32 {V(f)}, {V(f)}, {S(sT2)}, {GL}")
    k(f"v_min_u32 {V(a)}, 55, {V(vL)}")
    k(f"v_lshlrev_b32 {V(a)}, 7, {V(a)}")
    poll_check(vGO, vGO + 1, 0, 192, SRD_DBG)
    for ph in range(4):
        lp, go = newlab("hp"), newlab("hg")
        k(f"s_mov_b32 {S(sSPIN)}, 0")
        k(f"s_add_u32 {S(sT0)}, {S(sHL)}, {hex(HB + (ph >> 1)*H_SZ + (ph & 1)*2*112*1024)}")
        label(lp)
        k(f"s_sleep {opt('hsl', 1)}")
        poll_load(d, f, S(sFG), 4 * ph)
        k(f"s_add_u32 {S(sSPIN)}, {S(sSPIN)}, 1")
        k(f"v_cmp_eq_u32 vcc, 0, {V(d)}")
        k(f"s_cmp_gt_u32 {S(sSPIN)}, 150")
        k(f"s_cbranch_scc1 L_end3")
        k(f"s_cbranch_vccnz {lp}")
        for q in range(4):
            k(f"buffer_load_dword {V(d+1+q)}, {V(a)}, {S(SRD_WS,4)}, {S(sT0)} offen sc1")
            k(f"s_add_u32 {S(sT0)}, {S(sT0)}, 7168")
        k.vm = []
    label("L_end3")

HZ = WK + 64
SPL = opt("spl", 13)
def helper():
    label("L_helper")
    k.forget()
    srd(SRD_W1, 48, 448 * 3584)
    srd(SRD_W2, 50, 1792 * 896)
    z = HZ
    F = WK + 112
    G = WK + 168
    t, a1, a2, aE, aO = z + 8, z + 10, z + 11, z + 12, z + 13
    IMG2 = 57344
    w2_lane_src(a1, 3584, t, t + 1)
    w2_lane_src(a2, 896, t, t + 1)
    if opt("abl", 0) & 32:
        k("s_endpgm")
    if opt("hwait", 3):
        srd(SRD_OUT, 28 if opt("hwait", 3) < 3 else 40, 2048 * 896 if opt("hwait", 3) < 3 else 448 * 512)
        k(f"s_lshl_b32 {S(sT0)}, {S(sWG)}, {16 if opt('hwait', 3) < 3 else 13}")
        k(f"v_lshlrev_b32 {V(t)}, {(8, 8, 5)[opt('hwait', 3) - 1]}, {V(vTID)}")
        if opt("hwait", 3) == 2:
            k(f"v_and_b32 {V(t)}, 0xc000, {V(t)}")
        k(f"buffer_load_dword {V(t+1)}, {V(t)}, {S(SRD_OUT,4)}, {S(sT0)} offen")
        k.wait(vm=0)
    if opt("hdelay", 0):
        k(f"s_sleep {opt('hdelay', 0)}")
    k(f"s_mul_i32 {S(sT0)}, {S(sW)}, {112*3584}")
    k(f"s_lshl_b32 {S(sT1)}, {S(sWG)}, 7")
    k(f"s_add_u32 {S(sT0)}, {S(sT0)}, {S(sT1)}")
    k(f"s_mul_i32 {S(sT3)}, {S(sW)}, 14336")
    k(f"s_mov_b32 m0, {S(sT3)}")
    for c in range(14):
        k(f"buffer_load_dwordx4 {V(a1)}, {S(SRD_W1,4)}, {S(sT0)} offen lds", tag="w1")
        k(f"s_add_u32 m0, m0, 1024")
        k(f"s_add_u32 {S(sT0)}, {S(sT0)}, {8*3584}")
    k(f"v_bfe_u32 {V(t+1)}, {V(vL)}, 2, 2")
    k(f"v_lshlrev_b32 {V(t)}, 7, {V(t+1)}")
    k(f"v_bfe_u32 {V(t+1)}, {V(vL)}, 3, 1")
    k(f"v_lshl_add_u32 {V(t)}, {V(t+1)}, 6, {V(t)}")
    k(f"v_bfe_u32 {V(t+1)}, {V(vL)}, 4, 1")
    k(f"v_lshl_add_u32 {V(t)}, {V(t+1)}, 5, {V(t)}")
    k(f"v_and_b32 {V(t+1)}, 3, {V(vL)}")
    k(f"v_lshl_add_u32 {V(t)}, {V(t+1)}, 3, {V(t)}")
    k(f"v_lshrrev_b32 {V(t+1)}, 5, {V(vL)}")
    k(f"v_lshl_add_u32 {V(a1)}, {V(t+1)}, 10, {V(t)}")
    k(f"v_lshl_add_u32 {V(aE)}, {V(t+1)}, 9, {V(t)}")
    k(f"s_lshl_b32 {S(sT0)}, {S(sCH)}, 6")
    k(f"v_xor_b32 {V(a1)}, {S(sT0)}, {V(a1)}")
    k(f"s_mul_i32 {S(sT0)}, {S(sNH)}, {2048 if SPL else 28672}")
    k(f"v_add_u32 {V(a1)}, {S(sT0)}, {V(a1)}")
    k(f"s_lshl_b32 {S(sT0)}, {S(sNH)}, 6")
    k(f"v_xor_b32 {V(aE)}, {S(sT0)}, {V(aE)}")
    k(f"v_xor_b32 {V(aO)}, 64, {V(aE)}")
    k(f"s_mul_i32 {S(sT1)}, {S(sW)}, 7")
    k(f"s_lshr_b32 {S(sT0)}, {S(sT1)}, 1")
    k(f"s_lshl_b32 {S(sT0)}, {S(sT0)}, 11")
    k(f"s_add_u32 {S(sT0)}, {S(sT0)}, {IMG2}")
    k(f"v_add_u32 {V(aE)}, {S(sT0)}, {V(aE)}")
    k(f"s_add_u32 {S(sT0)}, {S(sT1)}, 1")
    k(f"s_lshr_b32 {S(sT0)}, {S(sT0)}, 1")
    k(f"s_lshl_b32 {S(sT0)}, {S(sT0)}, 11")
    k(f"s_add_u32 {S(sT0)}, {S(sT0)}, {IMG2}")
    k(f"v_add_u32 {V(aO)}, {S(sT0)}, {V(aO)}")
    k.wait(vm=0)
    k("s_barrier")
    stamp(3)
    for ks in range(14):
        for u in range(2):
            k(f"ds_read_b64_tr_b16 {V(F+4*ks+2*u,2)}, {V(a1)} offset:{ks*(4096 if SPL else 2048)+u*512}")
    k(f"s_and_b32 {S(sHL)}, {S(sWG)}, 3")
    k(f"s_lshl3_add_u32 {S(sHL)}, {S(sHL)}, {S(sW)}")
    k(f"s_add_u32 {S(sHL)}, {S(sHL)}, 4")
    k(f"s_mul_i32 {S(sHL)}, {S(sHL)}, {56*896}")
    k(f"s_lshr_b32 {S(sHS)}, {S(sWG)}, 2")
    k(f"s_lshl_b32 {S(sHS)}, {S(sHS)}, 7")
    k(f"s_add_u32 {S(sHL)}, {S(sHL)}, {S(sHS)}")
    k(f"s_mul_i32 {S(sT3)}, {S(sW)}, 7168")
    k(f"s_add_u32 m0, {S(sT3)}, {IMG2}")
    for _ in range(7):
        k(f"buffer_load_dwordx4 {V(a2)}, {S(SRD_W2,4)}, {S(sHL)} offen lds", tag="w2")
        k(f"s_add_u32 m0, m0, 1024")
        k(f"s_add_u32 {S(sHL)}, {S(sHL)}, {8*896}")
    c, u_ = z, z + 2
    for i in range(56):
        k(f"v_dot2c_f32_bf16 {V(c)}, {S(sONES)}, {V(F+i)}")
    k(f"v_mov_b32 {V(u_)}, {V(c)}")
    k(f"v_permlane32_swap_b32 {V(c)}, {V(u_)}")
    k(f"v_add_f32 {V(c)}, {V(c)}, {V(u_)}")
    k(f"v_lshlrev_b32 {V(t)}, 2, {V(vTID)}")
    k(f"v_add_u32 {V(t)}, 0x18000, {V(t)}")
    k(f"ds_write_b32 {V(t)}, {V(c)}")
    k(f"v_xor_b32 {V(t)}, 256, {V(t)}")
    k.wait(lg=0)
    k("s_barrier")
    k(f"ds_read_b32 {V(u_)}, {V(t)}")
    k(f"s_lshl2_add_u32 {S(sT1)}, {S(sWG)}, {S(sW)}")
    k(f"s_mul_i32 {S(sT0)}, {S(sT1)}, 14336")
    k(f"s_add_u32 {S(sT0)}, {S(sT0)}, {hex(W1C)}")
    if SPL:
        k(f"s_mul_i32 {S(sT2)}, {S(sNH)}, {14336 - 1024}")
        k(f"s_sub_u32 {S(sT0)}, {S(sT0)}, {S(sT2)}")
        poll_load(vGO, vGO + 1, 0, 192, SRD_DBG)
    def fl(off):
        k("s_mov_b64 exec, 1")
        k(f"buffer_store_dword {V(vONE)}, {V(z+1)}, {S(SRD_WS,4)}, {S(sT5)} offen offset:{off} sc1")
        k("s_mov_b64 exec, -1")
    k(f"s_mul_i32 {S(sT1)}, {S(sT1)}, 7168")
    k(f"s_add_u32 {S(sT1)}, {S(sT1)}, {hex(W2T)}")
    k(f"v_add_f32 {V(c)}, {V(c)}, {V(u_)}")
    k(f"v_mul_f32 {V(c)}, {f2u(-1.0/448)}, {V(c)}")
    for i in range(56):
        tt = z + 4 + 2 * (i & 1)
        k(f"v_lshlrev_b32 {V(tt)}, 16, {V(F+i)}")
        k(f"v_and_b32 {V(tt+1)}, {S(sHIM)}, {V(F+i)}")
        pk("add", V(tt, 2), V(tt, 2), V(c, 2), bc=(1,))
        k(f"v_cvt_pk_bf16_f32 {V(F+i)}, {V(tt)}, {V(tt+1)}")
        if i % 4 == 3:
            ks = i // 4
            if SPL:
                k(f"buffer_store_dwordx4 {V(F+4*ks,4)}, {V(vL16)}, {S(SRD_WS,4)}, {S(sT0)} offen offset:{2048*(ks%2)} sc1", tag=("c", ks))
                if ks % 2 == 1:
                    k(f"s_add_u32 {S(sT0)}, {S(sT0)}, 4096")
                if ks == SPL:
                    k.wait_tag_vm(("c", 6))
                    poll_check(vGO, vGO + 1, 0, 192, SRD_DBG)
                    k("s_barrier")
                    wave0(lambda: fl(32))
                    stamp(2)
            else:
                k(f"buffer_store_dwordx4 {V(F+4*ks,4)}, {V(vL16)}, {S(SRD_WS,4)}, {S(sT0)} offen offset:{1024*(ks%4)} sc1")
                if ks % 4 == 3:
                    k(f"s_add_u32 {S(sT0)}, {S(sT0)}, 4096")
    if not SPL:
        poll_load(vGO, vGO + 1, 0, 192, SRD_DBG)
        poll_check(vGO, vGO + 1, 0, 192, SRD_DBG)
    k.wait(vm=0)
    k("s_barrier")
    wave0(lambda: fl(0))
    stamp(1)
    for i in range(7):
        for u in range(2):
            k(f"ds_read_b64_tr_b16 {V(G+4*i+2*u,2)}, {V(aO if i & 1 else aE)} offset:{(i//2)*2048+u*1024}")
    for i in range(7):
        k(f"buffer_store_dwordx4 {V(G+4*i,4)}, {V(vL16)}, {S(SRD_WS,4)}, {S(sT1)} offen offset:{1024*(i%4)} sc1")
        if i == 3:
            k(f"s_add_u32 {S(sT1)}, {S(sT1)}, 4096")
    k.wait(vm=0)
    k("s_barrier")
    wave0(lambda: fl(64))
    stamp(25)
    label("L_end2")
    if opt("hpf", 0):
        h_prefetch()
    if DIAG:
        k(f"s_lshl_b32 {S(sT0)}, {S(sWG)}, 10")
        k(f"s_add_u32 {S(sT0)}, {S(sT0)}, {hex(STAMP)}")
        k(f"v_lshlrev_b32 {V(WK)}, 2, {V(vTID)}")
        k(f"buffer_store_dword {V(vSTAMP)}, {V(WK)}, {S(SRD_WS,4)}, {S(sT0)} offen")
    k("s_endpgm")

KW = W1R
PRM = KW
TBL = KW + 8
GA = KW + 20
TA = GA + 17
vKW, vKR, vKC, vDSK = KW + 42, KW + 43, KW + 44, KW + 45

def table_words():
    def bf16v(m):
        u = struct.unpack("<I", struct.pack("<f", float(m)))[0]
        u = ((u + 0x7FFF + ((u >> 16) & 1)) >> 16) << 16
        return int(struct.unpack("<f", struct.pack("<I", u))[0])
    rowv = list(range(8)) + [256, 258, 260, 262, 512, 516, 768, 772, 1024, 1280, 1536, 1792, 2048]
    def idx(m):
        if m < 0:
            return (KC0 + 4096 + 64) // 8
        l = bf16v(m)
        r = [r for r, a in enumerate(rowv) if l >= a and (l - a) % 8 == 0 and l - a < 256][-1]
        return (r % 16) * 33 + (l - rowv[r]) // 8 + (SCR_ST // 8 if r >= 16 else 0)
    rows = []
    for lam in range(128):
        e = [idx(2047 - 16 * lam - i) for i in range(17)] + [0] * 7
        rows.append([e[2 * i] | (e[2 * i + 1] << 16) for i in range(12)])
    out = []
    for qd in range(3):
        for lam in range(128):
            out.append(rows[lam][4 * qd:4 * qd + 4])
    return out

def addr_conv():
    t0, t1, t2, t3 = KW + 100, KW + 101, KW + 102, KW + 103
    r16, g4, cc = KW + 104, KW + 105, KW + 106
    o = []
    e = o.append
    e(f"v_and_b32 {V(r16)}, 15, {V(vL)}")
    e(f"v_lshrrev_b32 {V(g4)}, 4, {V(vL)}")
    e(f"v_and_b32 {V(cc)}, 3, {V(vL)}")
    e(f"s_mul_i32 {S(sSCR)}, {S(sW)}, {SCR_ST}")
    e(f"s_add_u32 {S(sSCR)}, {S(sSCR)}, {SCR}")
    e(f"s_mul_i32 {S(sSCH)}, {S(sCH)}, {2*SCR_ST}")
    e(f"s_add_u32 {S(sSCH)}, {S(sSCH)}, {SCR}")
    e(f"v_lshl_add_u32 {V(vKW)}, {V(vL)}, 3, {S(sSCR)}")
    e(f"v_mul_u32_u24 {V(vKR)}, {ROW_ST}, {V(r16)}")
    e(f"v_lshl_add_u32 {V(vKR)}, {V(g4)}, 4, {V(vKR)}")
    e(f"v_add_u32 {V(vKR)}, {S(sSCR)}, {V(vKR)}")
    e(f"v_mul_u32_u24 {V(t0)}, 132, {V(g4)}")
    e(f"v_add_u32 {V(t0)}, {V(t0)}, {V(r16)}")
    e(f"s_lshl2_add_u32 {S(sT2)}, {S(sNH)}, {S(sSCH)}")
    e(f"v_lshl_add_u32 {V(TA)}, {V(t0)}, 3, {S(sT2)}")
    e(f"v_add_u32 {V(TA+1)}, {SCR_ST}, {V(TA)}")
    e(f"v_and_b32 {V(t0)}, 127, {V(vTID)}")
    e(f"s_add_u32 {S(sT2)}, {S(sSCH)}, {KC0}")
    e(f"v_lshl_add_u32 {V(vKC)}, {V(t0)}, 5, {S(sT2)}")
    e(f"v_lshrrev_b32 {V(t0)}, 5, {V(vL)}")
    e(f"v_bfe_u32 {V(t1)}, {V(vL)}, 2, 2")
    e(f"v_lshlrev_b32 {V(t3)}, 9, {V(t0)}")
    e(f"v_lshl_add_u32 {V(t3)}, {V(t1)}, 7, {V(t3)}")
    e(f"v_bfe_u32 {V(t1)}, {V(vL)}, 3, 1")
    e(f"v_lshl_add_u32 {V(t3)}, {V(t1)}, 6, {V(t3)}")
    e(f"v_bfe_u32 {V(t1)}, {V(vL)}, 4, 1")
    e(f"v_lshl_add_u32 {V(t3)}, {V(t1)}, 5, {V(t3)}")
    e(f"v_lshl_add_u32 {V(t3)}, {V(cc)}, 3, {V(t3)}")
    e(f"s_mul_i32 {S(sT2)}, {S(sW)}, {WREG}")
    e(f"v_add_u32 {V(vW2R)}, {S(sT2)}, {V(t3)}")
    e(f"v_xor_b32 {V(vW2R+1)}, 64, {V(vW2R)}")
    e(f"v_lshrrev_b32 {V(t0)}, 3, {V(vTID)}")
    e(f"v_and_b32 {V(t1)}, 0x70, {V(vL16)}")
    e(f"v_lshl_add_u32 {V(vCX)}, {V(t0)}, 8, {V(t1)}")
    e(f"v_lshrrev_b32 {V(t0)}, 4, {V(vTID)}")
    e(f"v_and_b32 {V(t2)}, 8, {V(vL)}")
    e(f"v_lshl_add_u32 {V(t2)}, {V(t0)}, 7, {V(t2)}")
    e(f"v_lshl_add_u32 {V(t2)}, {V(cc)}, 5, {V(t2)}")
    e(f"v_bfe_u32 {V(t1)}, {V(vL)}, 2, 1")
    e(f"v_lshl_add_u32 {V(t2)}, {V(t1)}, 4, {V(t2)}")
    e(f"v_add_u32 {V(vUW)}, {UARR+480}, {V(t2)}")
    e(f"s_mul_i32 {S(sT2)}, {S(sCH)}, {SCR_ST-1024}")
    e(f"s_add_u32 {S(sT2)}, {S(sT2)}, {SCR}")
    e(f"v_add_u32 {V(vXW)}, {S(sT2)}, {V(t2)}")
    e(f"v_and_b32 {V(t0)}, 1, {V(vL)}")
    e(f"v_xor_b32 {V(t0)}, 1, {V(t0)}")
    e(f"v_mul_u32_u24 {V(t1)}, {SCR_ST+64-2}, {V(t0)}")
    e(f"v_lshlrev_b32 {V(t2)}, 1, {V(r16)}")
    e(f"v_sub_u32 {V(t1)}, {V(t1)}, {V(t2)}")
    e(f"v_lshl_add_u32 {V(t1)}, {V(g4)}, 4, {V(t1)}")
    e(f"s_lshl_b32 {S(sT3)}, {S(sNH)}, 8")
    e(f"s_sub_u32 {S(sT2)}, {S(sSCH)}, {S(sT3)}")
    e(f"s_add_u32 {S(sT2)}, {S(sT2)}, {KC0 + 2*2031 - 512 - 192}")
    e(f"v_add_u32 {V(vKF)}, {S(sT2)}, {V(t1)}")
    for a in range(1, 4):
        e(f"v_subrev_u32 {V(vKF+a)}, {1024*a}, {V(vKF)}")
    e(f"v_lshlrev_b32 {V(t1)}, 5, {V(r16)}")
    e(f"v_lshl_add_u32 {V(t1)}, {V(g4)}, 4, {V(t1)}")
    e(f"s_mul_i32 {S(sT2)}, {S(sCH)}, {U_ST}")
    e(f"s_sub_u32 {S(sT2)}, {S(sT2)}, {S(sT3)}")
    e(f"s_add_u32 {S(sT2)}, {S(sT2)}, {UARR + 480 - 32 - 192}")
    e(f"v_add_u32 {V(vUF)}, {S(sT2)}, {V(t1)}")
    e(f"v_mov_b32 {V(vXR)}, {V(vKW)}")
    e(f"v_add_u32 {V(vEXW)}, {S(sSCR)}, {V(vL16)}")
    e(f"s_xor_b32 {S(sT2)}, {S(sW)}, 1")
    e(f"s_mul_i32 {S(sT2)}, {S(sT2)}, {SCR_ST}")
    e(f"s_add_u32 {S(sT2)}, {S(sT2)}, {SCR}")
    e(f"v_add_u32 {V(vEXR)}, {S(sT2)}, {V(vL16)}")
    e(f"v_lshrrev_b32 {V(t0)}, 3, {V(vL)}")
    e(f"v_mul_u32_u24 {V(vCO)}, 114688, {V(t0)}")
    e(f"v_and_b32 {V(t0)}, 7, {V(vL)}")
    e(f"s_and_b32 {S(sT2)}, {S(sCP)}, 1")
    e(f"s_lshl_b32 {S(sT3)}, {S(sT2)}, 2")
    e(f"v_xor_b32 {V(t0)}, {S(sT3)}, {V(t0)}")
    e(f"v_lshl_add_u32 {V(vCO)}, {V(t0)}, 4, {V(vCO)}")
    e(f"s_lshl_b32 {S(sT2)}, {S(sT2)}, 3")
    e(f"s_lshr_b32 {S(sXQi)}, {S(sCP)}, 1")
    e(f"s_lshl_b32 {S(sXQi)}, {S(sXQi)}, 14")
    e(f"s_add_u32 {S(sXQi)}, {S(sXQi)}, {S(sT2)}")
    e(f"s_add_u32 {S(sXQi)}, {S(sXQi)}, {hex(XQ)}")
    e(f"s_lshl_b32 {S(sT2)}, {S(sCP)}, 1")
    e(f"s_add_u32 {S(sT2)}, {S(sT2)}, {S(sCH)}")
    e(f"s_lshl_b32 {S(sT2)}, {S(sT2)}, 7")
    e(f"s_mul_i32 {S(sT3)}, {S(sNH)}, {8*114688}")
    e(f"s_add_u32 {S(sT2)}, {S(sT2)}, {S(sT3)}")
    e(f"v_add_u32 {V(vCO)}, {S(sT2)}, {V(vCO)}")
    e(f"v_lshlrev_b32 {V(vFP)}, 4, {V(vTID)}")
    e(f"v_max_u32 {V(vFP)}, 512, {V(vFP)}")
    e(f"s_mov_b32 {S(sPERM0)}, 0x05040100")
    e(f"s_mov_b32 {S(sPERM1)}, 0x07060302")
    e(f"s_lshl_b32 {S(sT2)}, {S(sJ)}, 2")
    e(f"s_add_u32 {S(sT2)}, {S(sT2)}, {S(sW)}")
    e(f"s_mul_i32 {S(sWL)}, {S(sT2)}, 28672")
    e(f"s_add_u32 {S(sWL)}, {S(sWL)}, {hex(W1C)}")
    e(f"s_lshr_b32 {S(sT2)}, {S(sT2)}, 1")
    e(f"s_lshl_b32 {S(sT2)}, {S(sT2)}, 7")
    e(f"s_add_u32 {S(sT2)}, {S(sT2)}, {hex(FLG_W)}")
    e(f"v_mov_b32 {V(vWF+1)}, {S(sT2)}")
    e(f"s_lshl2_add_u32 {S(sT2)}, {S(sDS)}, {S(sW)}")
    e(f"s_mul_i32 {S(sW2L)}, {S(sT2)}, 28672")
    e(f"s_add_u32 {S(sW2L)}, {S(sW2L)}, {hex(W2T)}")
    e(f"s_lshl_b32 {S(sT2)}, {S(sT2)}, 7")
    e(f"s_add_u32 {S(sT2)}, {S(sT2)}, {hex(FLG_W+64)}")
    e(f"v_mov_b32 {V(vWF+2)}, {S(sT2)}")
    e(f"s_mov_b32 {S(sLDT2)}, {S(sT2)}")
    e(f"s_mul_i32 {S(sXT)}, {S(sGAM)}, 114688")
    e(f"s_add_u32 {S(sXT)}, {S(sXT)}, {hex(X1T)}")
    z = KW + 108
    for i in range(4):
        e(f"v_mov_b32 {V(z+i)}, 0")
    e(f"v_min_u32 {V(t0)}, 29, {V(vL)}")
    e(f"v_lshlrev_b32 {V(t0)}, 4, {V(t0)}")
    e(f"v_add_u32 {V(t0)}, {UARR}, {V(t0)}")
    e(f"ds_write_b128 {V(t0)}, {V(z,4)}")
    e(f"ds_write_b128 {V(t0)}, {V(z,4)} offset:{U_ST}")
    e(f"v_and_b32 {V(t0)}, 0x70, {V(vL16)}")
    e(f"v_add_u32 {V(t0)}, {S(sSCR)}, {V(t0)}")
    e(f"ds_write_b128 {V(t0)}, {V(z,4)} offset:{KC0+4096}")
    return o

ROWST = opt("rowst", 1)
redg = lambda layer: 1088 if layer and ROWST else RED_G
def addr_ffn(layer):
    t0, t1, t2, t3 = WK + 84, WK + 85, WK + 86, WK + 87
    g4, rho, cc = WK + 88, WK + 89, WK + 90
    o = []
    e = o.append
    e(f"v_lshrrev_b32 {V(g4)}, 4, {V(vL)}")
    e(f"v_bfe_u32 {V(rho)}, {V(vL)}, 2, 2")
    e(f"v_and_b32 {V(cc)}, 3, {V(vL)}")
    e(f"v_lshrrev_b32 {V(t0)}, 5, {V(vL)}")
    e(f"v_bfe_u32 {V(t1)}, {V(vL)}, 4, 1")
    e(f"v_bfe_u32 {V(t2)}, {V(vL)}, 3, 1")
    e(f"v_lshlrev_b32 {V(t3)}, 7, {V(rho)}")
    e(f"v_lshl_add_u32 {V(t3)}, {V(t2)}, 6, {V(t3)}")
    e(f"v_lshl_add_u32 {V(vXA0)}, {V(t0)}, 10, {V(t3)}")
    e(f"v_lshl_add_u32 {V(vXA0)}, {V(cc)}, 4, {V(vXA0)}")
    e(f"v_lshl_add_u32 {V(vXA0)}, {V(t1)}, 3, {V(vXA0)}")
    e(f"v_xor_b32 {V(vXA1)}, 64, {V(vXA0)}")
    e(f"s_lshl_b32 {S(sT2)}, {S(sHH)}, 6")
    e(f"v_xor_b32 {V(t3)}, {S(sT2)}, {V(t3)}")
    e(f"s_lshl_b32 {S(sT2)}, {S(sNH)}, 5")
    e(f"s_lshl3_add_u32 {S(sT2)}, {S(sCH)}, {S(sT2)}")
    e(f"v_and_b32 {V(t0)}, 16, {V(vL16)}")
    e(f"v_add3_u32 {V(t3)}, {V(t3)}, {V(t0)}, {S(sT2)}")
    e(f"v_bfe_u32 {V(t0)}, {V(vL)}, 1, 1")
    e(f"v_mul_u32_u24 {V(vST)}, {XHALF}, {V(t0)}")
    e(f"v_lshl_add_u32 {V(vST)}, {V(g4)}, 10, {V(vST)}")
    e(f"v_add_u32 {V(vST)}, {V(vST)}, {V(t3)}")
    e(f"v_lshl_add_u32 {V(t0)}, {V(g4)}, 1, {V(t0)}")
    e(f"v_lshl_add_u32 {V(vRES)}, {V(t0)}, 10, {V(t3)}")
    e(f"s_lshl_b32 {S(sT2)}, {S(sDS)}, 13")
    e(f"v_add_u32 {V(vRES)}, {S(sT2)}, {V(vRES)}")
    e(f"s_mul_i32 {S(sT2)}, {S(sW)}, {RED_W}")
    e(f"v_add_u32 {V(vRW)}, {S(sT2)}, {V(vL16)}")
    if layer and ROWST:
        e(f"v_and_b32 {V(t0)}, 7, {V(vL)}")
        e(f"v_lshrrev_b32 {V(t2)}, 3, {V(vL)}")
        e(f"v_lshlrev_b32 {V(t1)}, 4, {V(t2)}")
        e(f"v_lshl_add_u32 {V(vAT)}, {V(t0)}, 3, {V(t2)}")
        e(f"v_lshlrev_b32 {V(vAT)}, 2, {V(vAT)}")
    else:
        e(f"v_lshrrev_b32 {V(t0)}, 3, {V(vL)}")
        e(f"v_and_b32 {V(t1)}, 0x70, {V(vL16)}")
    e(f"v_mul_u32_u24 {V(vRR)}, {redg(layer)}, {V(t0)}")
    e(f"s_lshl_b32 {S(sT2)}, {S(sW)}, 7")
    e(f"v_add3_u32 {V(vRR)}, {V(vRR)}, {V(t1)}, {S(sT2)}")
    e(f"s_and_b32 {S(sT2)}, {S(sGAM)}, 8")
    e(f"s_bfe_u32 {S(sT3)}, {S(sGAM)}, 0x20001")
    e(f"s_add_u32 {S(sT2)}, {S(sT2)}, {S(sT3)}")
    e(f"s_lshl2_add_u32 {S(sT2)}, {S(sCH)}, {S(sT2)}")
    e(f"s_lshl1_add_u32 {S(sT3)}, {S(sHH)}, {S(sNH)}")
    e(f"s_and_b32 {S(sT4)}, {S(sGAM)}, 1")
    if layer and ROWST:
        e(f"v_and_b32 {V(t2)}, 0x30, {V(t1)}")
        e(f"v_lshrrev_b32 {V(t3)}, 5, {V(vL)}")
    else:
        e(f"v_lshlrev_b32 {V(t2)}, 4, {V(cc)}")
        e(f"v_bfe_u32 {V(t3)}, {V(vL)}, 2, 1")
    if layer == 0:
        e(f"s_lshl2_add_u32 {S(sT2)}, {S(sT2)}, {S(sT3)}")
        e(f"s_lshl1_add_u32 {S(sT2)}, {S(sT2)}, {S(sT4)}")
        e(f"s_lshl_b32 {S(sT2)}, {S(sT2)}, 6")
        e(f"v_lshl_add_u32 {V(vAT)}, {V(t3)}, 2, {V(t2)}")
        e(f"v_lshrrev_b32 {V(t3)}, 5, {V(vL)}")
        e(f"v_lshl_add_u32 {V(vAT)}, {V(t3)}, 3, {V(vAT)}")
        e(f"v_add_u32 {V(vAT)}, {S(sT2)}, {V(vAT)}")
        e(f"v_lshrrev_b32 {V(t3)}, 2, {V(vL)}")
        e(f"v_lshl_add_u32 {V(vO)}, {V(t3)}, 14, {V(t2)}")
        e(f"s_lshl_b32 {S(sT5)}, {S(sDS)}, 18")
        e(f"s_add_u32 {S(sT2)}, {S(sT2)}, {S(sT5)}")
        e(f"v_add_u32 {V(vO)}, {S(sT2)}, {V(vO)}")
    else:
        e(f"s_lshl3_add_u32 {S(sT2)}, {S(sT2)}, {S(sT4)}")
        e(f"s_lshl2_add_u32 {S(sT2)}, {S(sT2)}, {S(sT3)}")
        e(f"s_lshl_b32 {S(sT2)}, {S(sT2)}, 1")
        e(f"v_add3_u32 {V(t2)}, {V(t2)}, {V(t3)}, {S(sT2)}")
        e(f"v_mul_u32_u24 {V(vO)}, 896, {V(t2)}")
        e(f"v_lshl_add_u32 {V(vO)}, {V(t0)}, 4, {V(vO)}")
        e(f"s_lshl_b32 {S(sT2)}, {S(sDS)}, 7")
        e(f"v_add_u32 {V(vO)}, {S(sT2)}, {V(vO)}")
    e(f"v_min_u32 {V(t0)}, 13, {V(vL)}")
    e(f"s_mul_i32 {S(sT2)}, {S(sW)}, 14")
    e(f"v_add_lshl_u32 {V(vF2P)}, {V(t0)}, {S(sT2)}, {GL or 4}")
    e(f"s_lshl2_add_u32 {S(sT3)}, {S(sJ)}, {S(sW)}")
    e(f"s_lshl_b32 {S(sT2)}, {S(sT3)}, {GL or 4}")
    e(f"v_mov_b32 {V(vFL)}, {S(sT2)}")
    e(f"s_mul_i32 {S(sT2)}, {S(sGAM)}, {4*112*1024}")
    e(f"s_add_u32 {S(sT2)}, {S(sT2)}, {hex(HB + layer*H_SZ)}")
    e(f"s_lshl_b32 {S(sT3)}, {S(sT3)}, 11")
    e(f"s_add_u32 {S(sHS)}, {S(sT2)}, {S(sT3)}")
    e(f"s_lshl2_add_u32 {S(sT3)}, {S(sHH)}, {S(sW)}")
    e(f"s_mul_i32 {S(sT3)}, {S(sT3)}, {28*1024}")
    e(f"s_add_u32 {S(sHL)}, {S(sT2)}, {S(sT3)}")
    e(f"s_lshl_b32 {S(sFG)}, {S(sGAM)}, {GL + 6 if GL else 11}")
    e(f"s_add_u32 {S(sFG)}, {S(sFG)}, {hex(FLG_G + layer*(8 if GL else 0x8000))}")
    e(f"s_add_u32 {S(sFP)}, {S(sFG)}, {PQ if FAST else 0}")
    if FAST and layer == 0:
        e(lambda: poll_load(vPL2, vF2P, S(sFP)))
    if layer:
        e(f"s_mov_b32 {S(SRD_OUT)}, s52")
        e(f"s_and_b32 {S(SRD_OUT+1)}, s53, 0xffff")
        e(f"s_mov_b32 {S(SRD_OUT+2)}, {hex(2048*896)}")
        e(f"s_mov_b32 {S(SRD_OUT+3)}, 0x20000")
    return o

def pk(op, d, a, b, c=None, bc=(), neg=(), emit=True):
    ops = [a, b] + ([c] if c is not None else [])
    n = len(ops)
    txt = f"v_pk_{op}_f32 {d}, " + ", ".join(ops)
    if bc:
        txt += " op_sel_hi:[" + ",".join("0" if i in bc else "1" for i in range(n)) + "]"
    if neg:
        m = "[" + ",".join("1" if i in neg else "0" for i in range(n)) + "]"
        txt += f" neg_lo:{m} neg_hi:{m}"
    if emit:
        k(txt)
    return txt

def cmul(d, a, b, t):
    assert d != a
    pk("mul", V(t, 2), V(a, 2), V(b, 2))
    pk("mul", V(t + 2, 2), V(a, 2), V(b + 2, 2))
    pk("fma", V(d, 2), V(a + 2, 2), V(b + 2, 2), V(t, 2), neg=(0,))
    pk("fma", V(d + 2, 2), V(a + 2, 2), V(b, 2), V(t + 2, 2))

NINIT = opt("ninit", 4)
NPG = opt("npg", 8)
TE = opt("te", 1)
def stub_targets():
    return ["L_ret0" if p <= 3 else "L_ret1" if p <= 5 else f"L_pg{p+2}" if p + 2 <= NPG else "L_ret2" for p in range(1, NPG + 1)]

def touch(n):
    tg = [["L_pg0" if TE else None, "L_pg1", "L_pg2", "L_pg3"], ["L_pg4", "L_pg5", "L_st0", "L_st1"],
          ["L_pg6" if NPG >= 6 else None, "L_pg7" if NPG >= 7 else None, "L_st2", "L_st3"]][n]
    k("s_mov_b64 exec, 0")
    for w in range(4):
        if tg[w]:
            k(f"s_cmp_eq_u32 {S(sW)}, {w}")
            k(f"s_cbranch_scc1 {tg[w]}")
    if n == 0 and not TE:
        k("s_branch L_ret0")
        k.raw(".p2align 12")
    k.label(f"L_ret{n}")
    k("s_mov_b64 exec, -1")

def table_loads():
    t0 = KW + 100
    k(f"v_and_b32 {V(t0)}, 127, {V(vTID)}")
    k(f"v_lshlrev_b32 {V(t0)}, 4, {V(t0)}")
    k(f"v_add_u32 {V(t0)}, L_table-L_pc+2048, {V(t0)}")
    for q in range(3):
        if q < 2:
            k(f"global_load_dwordx4 {V(TBL+4*q,4)}, {V(t0)}, {S(sPC,2)} offset:{2048*(q-1)}")
        else:
            k(f"global_load_dword {V(TBL+8)}, {V(t0)}, {S(sPC,2)} offset:2048")

def dt_setup():
    DT = KW + 46 + 12
    k.wait(lg=0)
    k(f"s_lshl_b32 {S(sT0)}, {S(sCH)}, 4")
    k(f"s_lshr_b32 {S(sLDT)}, {S(sLDT)}, {S(sT0)}")
    k(f"s_lshl_b32 {S(sLDT)}, {S(sLDT)}, 16")
    k(f"s_lshr_b32 {S(sDSK)}, {S(sDSK)}, {S(sT0)}")
    k(f"s_lshl_b32 {S(sDSK)}, {S(sDSK)}, 16")
    k(f"v_mov_b32 {V(DT)}, {f2u(1.4426950408889634)}")
    k(f"v_mul_f32 {V(DT)}, {S(sLDT)}, {V(DT)}")
    k(f"v_exp_f32 {V(DT)}, {V(DT)}")
    k(f"s_cmp_eq_u32 {S(sNH)}, 0")
    k(f"s_cselect_b32 {S(sDSK)}, {S(sDSK)}, 0")
    k(f"v_cvt_pk_bf16_f32 {V(DT)}, {V(DT)}, {V(DT)}")
    k(f"v_mov_b32 {V(vDSK)}, 0")
    k(f"v_lshlrev_b32 {V(DT)}, 16, {V(DT)}")
    k(f"v_writelane_b32 {V(vDSK)}, {S(sDSK)}, 0")

def warm_loads():
    if opt("warm", 1):
        k(f"s_sub_u32 {S(sT0)}, {S(sWG)}, 32")
        k(f"s_lshl2_add_u32 {S(sT0)}, {S(sT0)}, {S(sW)}")
        k(f"s_mul_i32 {S(sT0)}, {S(sT0)}, 1792")
        k(f"v_min_u32 {V(vDUM+1)}, 13, {V(vL)}")
        k(f"v_lshl_add_u32 {V(vDUM+1)}, {V(vDUM+1)}, 7, {S(sT0)}")
        for q in range(opt("warm", 1)):
            k(f"global_load_dword {V(vDUM)}, {V(vDUM+1)}, {S(48+2*q,2)}")
            k.vm[-1] = (set(), None)

def main_start():
    k.c("=== main workgroups")
    k.vm = list(FIRST)
    k(f"s_lshl_b32 {S(sT5)}, {S(sCP)}, 2")
    k(f"s_load_dword {S(sLDT)}, s[42:43], {S(sT5)}")
    k(f"s_load_dword {S(sDSK)}, s[44:45], {S(sT5)}")
    k.lg = []
    if opt("lean", 1):
        p0x_addr(1)
        common()
        roles()
    srd_base(SRD_WS, 56)
    srd_base(SRD_DBG, 54)
    srd(SRD_W2, 50, 1792 * 896)
    if opt("warmat", 2) == 0:
        warm_loads()
    if opt("tblearly", 0):
        table_loads()
    w2_lane_src(vW2S, 896, KW + 100, KW + 101)
    k(f"s_mul_i32 {S(sW2B)}, {S(sW)}, {448*896}")
    k(f"s_lshl_b32 {S(sT2)}, {S(sDS)}, 7")
    k(f"s_add_u32 {S(sW2B)}, {S(sW2B)}, {S(sT2)}")
    FREG[0] = 4
    fine("ld")
    ac = addr_conv()
    for i in range(NINIT):
        w2_dma()
        run(ac, len(ac) // (NINIT - i))
    run(ac)
    if TE:
        touch(0)
        dt_setup()
    stamp(24)
    fine("addr")
    if opt("warmat", 2) == 1:
        warm_loads()
    p0x_body()
    if opt("warmat", 2) == 2:
        warm_loads()
    fine("p0x")
    stamp(1)
    if opt("atom0", 16) < 0:
        p0x_atomics()
        stamp(25)
    if TE:
        k("s_branch L_body")
        k.raw(".p2align 12")
        k.label("L_pg0")
        k("s_branch L_ret0")
        k("s_nop 0")
        k.label("L_body")
    else:
        touch(0)

DEF0 = opt("def0", 1)
LATE0 = W1R + 100 if DEF0 else WK + 12
def conv_load_ops(layer, h, D):
    o = [f"s_mov_b32 {S(sT0)}, {hex(STATS[layer] + 8192*h)}",
         f"s_add_u32 {S(sT3)}, {S(sXQi)}, {hex(layer*XQ_SZ + 8192*h)}"]
    for j in range(2):
        o.append(f"buffer_load_dwordx4 {V(D+4*j,4)}, {V(vCX)}, {S(SRD_WS,4)}, {S(sT0)} offen offset:{128*j} sc1")
        o.append(f"buffer_load_dwordx2 {V(D+8+2*j,2)}, {V(vCX)}, {S(SRD_WS,4)}, {S(sT3)} offen offset:{128*j} sc1")
    return o

CW = []
def kgen():
    k.c("=== K generation")
    B0 = KW + 46
    U = B0
    DT = B0 + 12
    W1_, W8_, W256 = B0 + 14, B0 + 18, B0 + 22
    T = B0 + 26
    P = [B0 + 30 + 4 * i for i in range(5)]
    CV = B0 + 50
    ACC = WK + 64
    FX, FY = (112, 144), (176, 208)
    for i in range(6):
        k(f"v_lshlrev_b32 {V(U+2*i)}, 16, {V(PRM+i)}")
        k(f"v_and_b32 {V(U+2*i+1)}, {S(sHIM)}, {V(PRM+i)}")
    if not TE:
        dt_setup()
    fine("prm")
    for i in range(4):
        pk("mul", V(U + 2 * i, 2), V(U + 2 * i, 2), V(DT, 2), bc=(1,))
    k(f"s_mov_b32 {S(sC0)}, {f2u(1.4426950408889634)}")
    pk("mul", V(U, 2), V(U, 2), S(sC0, 2), bc=(1,))
    k(f"s_mov_b32 {S(sC0)}, {f2u(0.15915494309189535)}")
    pk("mul", V(U + 2, 2), V(U + 2, 2), S(sC0, 2), bc=(1,))
    cmul(P[0], U + 8, U + 4, T)
    for (Wd, sc) in ((W1_, 1.0), (W256, 256.0), (W8_, 8.0)):
        ea, an = U + 4, U + 6
        if sc == 1.0:
            sa, sb = U, U + 2
        else:
            k(f"s_mov_b32 {S(sC0)}, {f2u(sc)}")
            pk("mul", V(ea, 2), V(U, 2), S(sC0, 2), bc=(1,))
            pk("mul", V(an, 2), V(U + 2, 2), S(sC0, 2), bc=(1,))
            sa, sb = ea, an
        for h in range(2):
            k(f"v_fract_f32 {V(an+h)}, {V(sb+h)}")
        for h in range(2):
            k(f"v_exp_f32 {V(ea+h)}, {V(sa+h)}")
        for h in range(2):
            k(f"v_cos_f32 {V(Wd+h)}, {V(an+h)}")
        for h in range(2):
            k(f"v_sin_f32 {V(Wd+2+h)}, {V(an+h)}")
        pk("mul", V(Wd, 2), V(Wd, 2), V(ea, 2))
        pk("mul", V(Wd + 2, 2), V(Wd + 2, 2), V(ea, 2))
    if not opt("goearly", 2):
        poll_load(vGO, vGO + 3, 0, 0, SRD_DBG)
    if opt("atom0", 16) == 0:
        p0x_atomics()
        stamp(25)
    fine("setup")
    cvi = [0]
    ent = [0]
    vPL = vPA
    NKD = opt("nkd", 0)
    FL0, PL0 = opt("flag0", 38), opt("poll0", 53)
    cl = conv_load_ops(0, 0, WK) + ([] if DEF0 else conv_load_ops(0, 1, LATE0))
    PCE = opt("pce", 0)
    PCT = opt("pct", 1)
    cl2 = []
    if PCT:
        cl, cl2 = [], cl
    def put(src, row, negim, extra=None):
        c = CV + 2 * (cvi[0] & 1)
        cvi[0] += 1
        n = "-" if negim else ""
        k(f"v_cvt_pk_bf16_f32 {V(c)}, {V(src)}, {V(src+1)}")
        k(f"v_cvt_pk_bf16_f32 {V(c+1)}, {n}{V(src+2)}, {n}{V(src+3)}")
        k(f"ds_write_b64 {V(vKW)}, {V(c,2)} offset:{row*ROW_ST}")
        if extra:
            k(extra)
        ent[0] += 1
        if ent[0] == opt("atom0", 16):
            p0x_atomics()
            stamp(25)
        if ent[0] == FL0:
            poll_check(vGO, vGO + 2, 0, 128, SRD_DBG)
            k("s_barrier")
            flag_all(0)
            stamp(2)
        if not opt("tblearly", 0) and ent[0] == opt("tblat", 22):
            table_loads()
        if opt("kdb", 0) and ent[0] == opt("kdb", 0):
            for _ in range(4):
                w2_dma()
        if ND[0] < NINIT + min(NKD, NKD * (ent[0] - opt("kd0", 0)) // (opt("kdspan", 42) - opt("kd0", 0))):
            w2_dma()
        if ent[0] in (opt("atom0", 16) - 1, opt("atom0", 16), FL0 - 1, FL0, 52):
            fine(f"e{ent[0]}")
        if ent[0] == PL0:
            poll_load(vPL, vFP, S(sREP))
        if ent[0] == PCE:
            poll_check(vPL, vFP, S(sREP))
            k("s_barrier")
            run(cl, 6)
    def frags(b):
        for st in range(8):
            k(f"ds_read_b128 {A(b+4*st,4)}, {V(vKR)} offset:{64*st}")
    cur = 0
    for a in range(8):
        put(P[cur], a, True)
        if a % 2 == 0:
            dst = {0: 3, 4: 4}.get(a, 2)
            cmul(P[dst], P[cur], W256, T)
            put(P[dst], 8 + a // 2, True)
        if a < 7:
            cmul(P[1 - cur], P[cur], W1_, T)
            cur = 1 - cur
    cmul(P[0], P[3], W256, T); put(P[0], 12, True)
    cmul(P[1], P[4], W256, T); put(P[1], 13, True)
    cmul(P[3], P[0], W256, T); put(P[3], 14, True)
    cmul(P[4], P[1], W256, T); put(P[4], 15, True)
    frags(FX[0])
    src, dst = 3, 0
    for row in range(5):
        cmul(P[dst], P[src], W256, T)
        put(P[dst], row, True)
        src, dst = dst, (1 - dst if dst in (0, 1) else 0)
    frags(FX[1])
    k(f"v_mov_b32 {V(CV)}, {S(sONES)}")
    k(f"v_mov_b32 {V(CV+1)}, 0")
    k(f"ds_write_b64 {V(vKW)}, {V(CV,2)}")
    cvi[0] = 1
    put(W8_, 1, False)
    cmul(P[0], W8_, W8_, T)
    cur = 0
    def mfma(n):
        yt, x, st = n // 16, (n // 8) & 1, n % 8
        d = V(ACC + 8 * yt + 4 * x, 4)
        return f"v_mfma_f32_16x16x32_bf16 {d}, {A(FX[x]+4*st,4)}, {A(FY[yt]+4*st,4)}, {d if st else 0}"
    M0 = opt("km", 0)
    for j in range(2, 32):
        put(P[cur], j % 16, False, mfma(j - 32 + M0) if j >= 32 - M0 else None)
        if j % 16 == 15:
            frags(FY[j // 16])
        if j == 15:
            stamp(3)
        if j < 31:
            cmul(P[1 - cur], P[cur], W8_, T)
            cur = 1 - cur
    assert ND[0] == NINIT + NKD and opt("pchk", 5) < 13, ND
    def tables(yt, x):
        a = ACC + 8 * yt + 4 * x
        return [f"ds_write2_b32 {V(TA+x)}, {V(a+i)}, {V(a+i+1)} offset0:{66*i+32*yt} offset1:{66*(i+1)+32*yt}" for i in (0, 2)]
    mads = []
    for n in range(17):
        sel = " op_sel:[1,0,0,0]" if n & 1 else ""
        mads.append(f"v_mad_u32_u16 {V(GA+n)}, {V(TBL+n//2)}, 8, {S(sSCH)}{sel}")
    PCK = opt("pchk", 5)
    tb = [(8, [f"v_add_f32 {V(ACC)}, {V(ACC)}, {V(vDSK)}"] + tables(0, 0)), (16, tables(0, 1)), (24, tables(1, 0))]
    for n in range(M0, 32):
        k(mfma(n))
        if n + 53 == PL0:
            poll_load(vPL, vFP, S(sREP))
        if n % opt("kms", 3) == 2 and ND[0] < NINIT + NKD + opt("kmd", 10):
            w2_dma()
        else:
            run(mads, 1)
        if n - M0 == PCK:
            if not PCE and not PCT:
                poll_check(vPL, vFP, S(sREP))
            k.wait(lg=0)
            k("s_barrier")
            fine("pbar")
            stamp(4)
        if n - M0 >= PCK:
            if (n - M0 - PCK) % opt("cls", 3) == 0 and cl:
                run(cl, 3 if cl[0].startswith("s_") else 1)
            elif (not cl or opt("cls", 3) > 2) and tb and n >= tb[0][0] + 4:
                run(tb.pop(0)[1])
    if AL:
        mads += [f"v_lshlrev_b32 {V(vFW)}, {AL-4}, {V(vFW)}", f"v_lshlrev_b32 {V(vFP)}, {AL-4}, {V(vFP)}", f"s_lshl_b32 {S(sREP)}, {S(sREP)}, {AL-4}"]
    run(mads)
    for _, o in tb:
        run(o)
    run(cl)
    if PCT:
        precmp(vPL)
    else:
        poll_load(vGO, vGO + 1, 0, 192, SRD_DBG)
    run(tables(1, 1))
    if PCT:
        poll_check(vPL, vFP, S(sREP))
    k.wait(lg=0)
    k("s_barrier")
    fine("tbar")
    stamp(6)
    GV = B0
    for e in range(17):
        if e % 4 == 0 and cl2:
            run(cl2, 3 if e == 0 else 1)
        k(f"ds_read_b64 {V(GV+2*e,2)}, {V(GA+e)}")
    if PCT:
        poll_load(vGO, vGO + 1, 0, 192, SRD_DBG)
    if opt("ll0", 8) < 0:
        run(conv_load_ops(0, 1, LATE0))
    for _ in range(opt("kgd", 0)):
        w2_dma()
    if opt("cpk", 0):
        CW.extend(cprep(WK, WK + 32, 0, True))
        k.wait(lg=0)
    else:
        k.wait(lg=8)
    for e in range(17):
        if e == 9 and k.lg:
            k.wait(lg=0)
        k(f"v_add_f32 {V(GV+2*e)}, {V(GV+2*e)}, {V(GV+2*e+1)}")
    fine("gath")
    if not opt("kp0", 0):
        k("s_barrier")
    O = B0 + 34
    for c in range(2):
        for kk in range(8):
            e = 2 * kk + c
            k(f"v_cvt_pk_bf16_f32 {V(O+8*c+kk)}, {V(GV+2*e)}, {V(GV+2*e+2)}")
    for c in range(2):
        for h in range(2):
            k(f"ds_write_b128 {V(vKC)}, {V(O+8*c+4*h,4)} offset:{c*(SCR_ST+64)+16*h}")
    stamp(5)

def wave0(fn):
    skip = newlab("w0")
    k(f"s_cmp_lg_u32 {S(sW)}, 0")
    saved = list(k.vm)
    k.skip_begin("s_cbranch_scc1", skip)
    fn()
    k.skip_end(skip)
    k.vm = saved

EARLY = opt("early", 0)
def apoll_load(arr):
    k(f"s_add_u32 {S(sPA)}, {S(sREP)}, {hex(FA(arr))}")
    poll_load(vPA, vFP, S(sPA))

def apoll_check():
    poll_check(vPA, vFP, S(sPA))

def aflag(arr):
    flag_all(FA(arr))

def bar():
    k.wait(lg=0)
    k("s_barrier")

CACC, CKR, CXU, CXR = WK, WK + 32, WK + 96, WK + 104
def cprep(D, T, h, defer=False):
    UU, O, RAW, EPS = T, T + 4, T + 8, CXR
    k(f"s_mov_b32 {S(sC0)}, {f2u(1.0/448)}")
    k(f"s_mov_b32 {S(sC1)}, {f2u(1e-5)}")
    k(f"v_mov_b32 {V(EPS)}, {S(sC1)}")
    for j in range(2):
        M, Q, X = D + 4 * j, D + 4 * j + 2, D + 8 + 2 * j
        pk("mul", V(M, 2), V(M, 2), S(sC0, 2), bc=(1,))
        pk("fma", V(Q, 2), V(Q, 2), S(sC0, 2), V(EPS, 2), bc=(1, 2))
        pk("fma", V(Q, 2), V(M, 2), V(M, 2), V(Q, 2), neg=(0,))
        for b in range(2):
            k(f"v_max_f32 {V(Q+b)}, {S(sC1)}, {V(Q+b)}")
        for b in range(2):
            k(f"v_rsq_f32 {V(Q+b)}, {V(Q+b)}")
        for b in range(2):
            k(f"v_lshlrev_b32 {V(UU+b)}, 16, {V(X+b)}")
            k(f"v_and_b32 {V(UU+2+b)}, {S(sHIM)}, {V(X+b)}")
        pk("mul", V(M, 2), V(M, 2), V(Q, 2))
        for c in range(2):
            pk("fma", V(UU + 2 * c, 2), V(UU + 2 * c, 2), V(Q, 2), V(M, 2), neg=(2,))
            k(f"v_perm_b32 {V(RAW+2*c+j)}, {V(X+1)}, {V(X)}, {S(sPERM0+c)}")
        for c in range(2):
            k(f"v_cvt_pk_bf16_f32 {V(O+2*c+j)}, {V(UU+2*c)}, {V(UU+2*c+1)}")
    w = [f"ds_write_b64 {V(vUW)}, {V(O+2*c,2)} offset:{c*U_ST + 2048*h}" for c in range(2)]
    w += [f"ds_write_b64 {V(vXW)}, {V(RAW+2*c,2)} offset:{c*2*SCR_ST + 1024*h}" for c in range(2)]
    if defer:
        return w
    run(w)

def k_ops(I, s, reg):
    o = (128 if I % 2 == 0 else 0) + 16 * (3 - s)
    r = (V if reg[0] == "v" else A)
    return [f"ds_read2_b32 {r(reg[1]+2*h,2)}, {V(vKF+I//2)} offset0:{o+2*h} offset1:{o+2*h+1}" for h in range(2)]

def k_preload():
    return [t for s in range(4) for I in range(4) for t in k_ops(I, s, ("v", CKR + 16 * s + 4 * I))]

def conv(layer):
    k.c("=== conv")
    ACC, XU, XR = CACC, CXU, CXR
    mf = []
    for s in range(4):
        mf += [(0, s, Jp, I) for Jp in range(3, -1, -1) for I in range(4 - Jp)]
    for s in range(3, -1, -1):
        mf += [(1, s, Jp, I) for I in range(7, 0, -1) for Jp in range(4) if 4 <= Jp + I <= 7]
    for s in range(4):
        mf += [(2, s, Jp, I) for Jp in range(7, 3, -1) for I in range(8 - Jp)]
    assert len(mf) == 144
    ukey = lambda p, s, Jp: ("u", 0 if (p == 1 and s == 3) else p, s, Jp)
    kkey = lambda s, I: ("k", s, I)
    first, last = {}, {}
    for n, (p, s, Jp, I) in enumerate(mf):
        for key in (ukey(p, s, Jp), kkey(s, I)):
            first.setdefault(key, n)
            last[key] = n
    reg = {kkey(s, I): ("v", CKR + 16 * s + 4 * I) for s in range(4) for I in range(4)}
    KP0 = opt("kp0", 0)
    items = sorted((key for key in first if not (key in reg and (layer or key[1] < KP0))), key=lambda x: first[x])
    XB, XS = opt("xb", 40), opt("xs", 41)
    CPL, CPB = opt("cpl", 104), opt("cpb", 104)
    assert DEF0
    slots = [("a", AX + 4 * i) for i in range(8)] + [("v", WK + 108), ("v", ACC + 12)][:opt("xslot", 2)]
    slot_free = ([-1] * 9 + [XB + 4])[:len(slots)]
    RG = lambda r: (V if r[0] == "v" else A)(r[1], 4)
    queue = []
    issued = {}
    def issue(n, budget):
        c = 0
        while True:
            if not queue:
                if not items:
                    return c
                key = items[0]
                if not (first[key] <= n + 2 or (c < budget and first[key] <= n + 20)):
                    return c
                if key[0] == "u" and key[1] == 2 and n < CPB:
                    return c
                if key not in reg:
                    fr = [i for i in range(len(slots)) if slot_free[i] < n]
                    if not fr:
                        assert first[key] > n, (n, key)
                        return c
                    slot_free[fr[0]] = last[key]
                    reg[key] = slots[fr[0]]
                items.pop(0)
                if key[0] == "u":
                    queue.append((key, f"ds_read_b128 {RG(reg[key])}, {V(vUF)} offset:{512*key[3] + 64*(3-key[2])}"))
                else:
                    queue.extend((key, t) for t in k_ops(key[2], key[1], reg[key]))
            elif not (first[queue[0][0]] <= n + 2 or c < budget):
                return c
            key, t = queue.pop(0)
            k(t, tag=key)
            issued[key] = n
            c += 1
    def xblock(ph, packed, addfirst=False):
        l1, lj = newlab("x1"), newlab("xj")
        k(f"s_cmp_eq_u32 {S(sNH)}, 1")
        h0 = list(k.hist)
        k(f"s_cbranch_scc1 {l1}")
        for hf in range(2):
            if hf:
                k.label(l1)
                k.hist = h0
                k.lg = k.lg[:-2]
            a = ACC + 16 * ph
            def adds():
                for i in range(4 if packed else 8):
                    if packed:
                        pk("add", V(XU + 2 * i, 2), V(XU + 2 * i, 2), V(a + 8 * hf + 2 * i, 2))
                    else:
                        k(f"v_add_f32 {V(XU+i)}, {V(XU+i)}, {V(a+8*hf+i)}")
            if addfirst:
                adds()
            for jl in range(2):
                k(f"ds_write_b128 {V(vEXW)}, {V(a+8*(1-hf)+4*jl,4)} offset:{2048+1024*jl}", tag="ex")
            if not addfirst:
                adds()
            if not hf:
                k(f"s_branch {lj}")
        k.label(lj)
    def wait_lg(tag):
        idx = [i for i, p in enumerate(k.lg) if p[2] == tag]
        if idx:
            k.wait(lg=len(k.lg) - 1 - idx[-1])
    def res_ops(ph):
        o = [f"ds_read_b64_tr_b16 {V(XR+2*jl,2)}, {V(vXR)} offset:{1024*ph + 512*jl}" for jl in range(2)]
        o += [None] * 6
        for i in range(4):
            o += [f"v_lshlrev_b32 {V(XU+2*i)}, 16, {V(XR+i)}", f"v_and_b32 {V(XU+2*i+1)}, {S(sHIM)}, {V(XR+i)}"]
        return o
    def recv_ops():
        return [f"ds_read_b128 {V(ACC+4*jl,4)}, {V(vEXR)} offset:{2048+1024*jl}" for jl in range(2)]
    def out_ops(ph, packed):
        if packed:
            o = [f"v_pk_add_f32 {V(XU+2*i,2)}, {V(XU+2*i,2)}, {V(ACC+2*i,2)}" for i in range(4)]
        else:
            o = [f"v_add_f32 {V(XU+i)}, {V(XU+i)}, {V(ACC+i)}" for i in range(8)]
        o += [f"v_cvt_pk_bf16_f32 {V(ACC+8+i)}, {V(XU+2*i)}, {V(XU+2*i+1)}" for i in range(4)]
        o.append(f"s_mov_b32 {S(sT1)}, {hex(X1T + layer*XQ_SZ + 57344*ph)}")
        o.append((f"buffer_store_dwordx4 {V(ACC+8,4)}, {V(vCO)}, {S(SRD_WS,4)}, {S(sT1)} offen sc1", ("cst", ph)))
        return o
    if layer == 0:
        if not opt("pct", 1):
            poll_check(vGO, vGO + 1, 0, 192, SRD_DBG)
        if opt("pw1", 34) < 0:
            poll_load(vWF, vWF + 1, 0)
        if CW:
            run(CW)
        elif KP0:
            bar()
            run(k_preload()[:8 * KP0])
            cprep(WK, WK + 12, 0)
        else:
            cprep(WK, WK + 32, 0)
        if opt("pct", 1):
            poll_check(vGO, vGO + 1, 0, 192, SRD_DBG)
        stamp(7)
        if not DEF0:
            cprep(WK + 12, WK + 44, 1)
    bar()
    if layer and EARLY and opt("fl", 4) < 0:
        aflag(F_CIN1[1])
    fine("cbar")
    FREG[0] = 3
    fine("start")
    stamp(9)
    bg = []
    if layer == 0:
        n1, n2 = opt("w1conv", 18), opt("w2conv", 0)
        bg = [w2_dma] * (28 - ND[0])
        def c1():
            if not opt("abl", 0) & 8:
                poll_check(vWF, vWF + 1, 0, 32 if SPL else 0)
            w1_load()
        def p1b():
            poll_load(vWF, vWF + 1, 0)
            w1_load()
        def c1b():
            assert NW1[0] == 14
            poll_check(vWF, vWF + 1, 0)
            w1_load()
        def p2():
            poll_load(vWF, vWF + 2, 0)
            w1_load()
        def c2():
            if not opt("abl", 0) & 16:
                poll_check(vWF, vWF + 2, 0)
            if n2:
                w2_load()
        w = [c1] + [w1_load] * (n1 - 1)
        if SPL:
            assert n1 > 14 and not n2 and opt("pw1", 34) >= 0
            w[opt("p1b", 6)], w[14] = p1b, c1b
        pos = max(1, n1 - n2 - 7)
        if n2:
            w[pos] = p2
        t = w[:n1 - n2]
        for i in range(n2):
            t += [c2 if i == 0 else w2_load] + w[n1 - n2 + i: n1 - n2 + i + 1]
        if opt("bgord", 0) == 0:
            bg += t
        elif opt("bgord", 0) == 1:
            bg = t + bg
        else:
            m = []
            while bg or t:
                m += t[:1] + bg[:1]
                t, bg = t[1:], bg[1:]
            bg = m
    nbg = len(bg)
    BG0 = opt("bg0", 4)
    step = max(1, (opt("bg1", 138) - BG0) / max(1, nbg))
    side = []
    TR = w2_tr_ops(0, 14)
    lastbg = -9
    seen = set()
    CL, FE, PE = opt("cl", XS), opt("fe", 100), opt("pe", 128)
    for n, (p, s, Jp, I) in enumerate(mf):
        if n == CPL:
            assert not side and (layer or NW1[0] <= 25)
            stamp(10)
            side += [(o, "lw") for o in cprep(LIN if layer else LATE0, ACC, 1, True)]
            if CPB == CPL:
                run(side)
        if n == CPB:
            assert not side
            if FE >= CPB:
                k.wait_tag_vm(("cst", 0))
            wait_lg("lw")
            k("s_barrier")
            if FE >= CPB:
                aflag(F_X1[layer][0])
            stamp(12)
        cnt = issue(n, (12 if layer == 0 and not KP0 else 5) if n == 0 else 5 if n == CPB else 0 if XB < n <= XS and opt("xq", 0) else 1)
        uk, kk = ukey(p, s, Jp), kkey(s, I)
        tags = [q[2] for q in k.lg]
        if uk in tags or kk in tags:
            cand = [i for i, q in enumerate(tags) if q in (uk, kk) or (q in first and first[q] <= n + 3 and issued[q] <= n - 7)]
            k.wait(lg=len(tags) - 1 - max(cand))
        J = Jp + I
        d = V(ACC + 4 * J, 4)
        k(f"v_mfma_f32_16x16x32_bf16 {d}, {RG(reg[uk])}, {RG(reg[kk])}, {d if J in seen else 0}")
        seen.add(J)
        if n == opt("ll0", 8) and layer == 0 and DEF0:
            side += conv_load_ops(0, 1, LATE0)
        if n == 18:
            side += res_ops(0)
        if n == 122:
            side[0:0] = res_ops(1)
        if layer == 0 and n == opt("pw1", 34):
            poll_load(vWF, vWF + 1, 0, 32 if SPL else 0)
        if layer and EARLY and n == opt("fl", 4):
            k.wait_tag_vm(("st", 1))
            k("s_barrier")
            aflag(F_CIN1[1])
        if layer and n == opt("pcl", 0):
            apoll_load(F_CIN1[1])
        if n == XB:
            assert not side
            xblock(0, bool(opt("xpk", 1)), bool(opt("xaf", 0)))
        if layer and n == CL - 2:
            precmp(vPA)
        if layer and n == CL and CL != XS:
            apoll_check()
            k("s_barrier")
            side += conv_load_ops(1, 1, LIN)
        if n == XS:
            if layer and CL == XS:
                apoll_check()
            wait_lg("ex")
            k("s_barrier")
            run(recv_ops())
            if layer and CL == XS:
                side += conv_load_ops(1, 1, LIN)
        if n == XS + opt("xo", 4):
            run(side)
            run(out_ops(0, bool(opt("xpk", 1))))
        if n == FE and FE < CPB:
            k.wait_tag_vm(("cst", 0))
            k("s_barrier")
            aflag(F_X1[layer][0])
        if n == PE:
            apoll_load(F_X1[layer][0])
        if n in (0, 19, 39, 47, 55, 63, 71, 87, 103, 104, 123, 143):
            fine(f"m{n}")
        if side:
            run(side, 2 if cnt == 0 else 1)
        elif bg and n >= BG0 + step * (nbg - len(bg)) and (cnt == 0 or n >= BG0 + 2 + step * (nbg - len(bg))):
            run(bg, 1)
        elif layer == 0 and n >= opt("tr0", 999) and TR:
            if len(TR) == 56:
                assert ND[0] == 28
                k.wait_tag_vm(("w2", 27))
            run(TR, opt("trr", 2) if cnt == 0 else opt("trr", 2) - 1)
    assert not items and not queue and not any(x and "v_" in x[:2] for x in side)
    run(side)
    run(bg)
    stamp(13)
    PX = opt("px", 1) if PE > 143 else -1
    if PX == 0:
        apoll_load(F_X1[layer][0])
    xblock(1, True)
    bar()
    run(recv_ops())
    if PX == 1:
        apoll_load(F_X1[layer][0])
    o = out_ops(1, True)
    run(o, len(o) - 1)
    if PX == 2:
        apoll_load(F_X1[layer][0])
    run(o)
    fine("store")
    stamp(11)
    if layer == 0:
        n = min(opt("w1a", 4), 28 - NW1[0])
        k.wait_tag_vm(("w2", 27))
        tr = TR
        for i in range(n):
            w1_load()
            run(tr, len(tr) // (n - i))
        run(tr)
    apoll_check()
    bar()
    fine("pollE")
    stamp(14)

def layer_turn():
    FREG[0] = 5
    fine("T")
    kp = k_preload()
    run(kp, opt("kpre", 32))
    fine("kpre")
    apoll_check()
    k("s_barrier")
    fine("chk")
    stamp(20)
    run(conv_load_ops(1, 0, WK))
    k.wait_tag_vm(("st", 1))
    k("s_barrier")
    aflag(F_CIN1[1])
    fine("flag")
    run(kp)
    touch(2)
    fine("touch")
    stamp(21)
    if opt("pcl.1", 0) < 0:
        k.wait(vm=0)
        apoll_load(F_CIN1[1])
    w = cprep(WK, WK + 12, 0, True)
    fine("prep")
    run(w)
    if FREG[0] == opt("fine", 0):
        k.wait(lg=0)
        fine("wr")
    LAY[0] = 1

G2RES = WK + 100
G2R = WK + 108

GB = 4 if GL else 1024
def gflag_ops(half, local):
    return ["s_mov_b64 exec, 1",
            f"buffer_store_dword {V(vONE)}, {V(vFL)}, {S(SRD_WS,4)}, {S(sFP if local else sFG)} offen offset:{GB*half}" + ("" if local else " sc1"),
            "s_mov_b64 exec, -1"]

def gflag(layer, half):
    run(gflag_ops(half, FAST))

def gcheck(half, pre=()):
    if FAST:
        poll_check(vPL2, vF2P, S(sFP), GB * half, pre=gflag_ops(half, False), alt=(vHL, S(sFG)))
    else:
        poll_check(vPL2, vF2P, S(sFG), GB * half, pre=pre)

def ffn(layer):
    k.c("=== GEMM1")
    FREG[0] = 1
    fine("start")
    ACC = WK
    EP = WK + 64
    vXS = WK + 80
    vB0, vB1 = WK + 81, WK + 82
    if layer:
        k(f"s_add_u32 {S(sXT)}, {S(sXT)}, {hex(XQ_SZ)}")
    k(f"v_add_u32 {V(vXS)}, {S(sXT)}, {V(vL16)}")
    k(f"s_lshl_b32 {S(sT0)}, {S(sW)}, 10")
    k(f"s_mov_b32 m0, {S(sT0)}")
    nx = [0]
    def dma():
        d = nx[0]
        nx[0] += 1
        k(f"buffer_load_dwordx4 {V(vXS)}, {S(SRD_WS,4)}, m0 offen sc1 lds", tag=("x", d))
        if d == 13:
            k(f"v_subrev_u32 {V(vXS)}, 32, {V(vXS)}")
        if d < 27:
            k(f"s_add_u32 m0, m0, {4096 + (32 if d == 13 else 0)}")
    NUP = opt("nup", 9)
    af = addr_ffn(layer)
    FXL = opt("fxl", 6)
    for st in range(NUP):
        dma()
        if st >= 1:
            run(af, opt("afr", 11))
        if st == FXL:
            k.wait_tag_vm(("cst", 1))
            k("s_barrier")
            aflag(F_X1[layer][1])
    af += [f"v_add_u32 {V(vB0)}, {XHALF}, {V(vXA0)}", f"v_add_u32 {V(vB1)}, {XHALF}, {V(vXA1)}"]
    W2CHK = [layer == 0 and NW2[0] == 0]
    if W2CHK[0]:
        k(f"v_mov_b32 {V(WK+97)}, {S(sLDT2)}")
        poll_load(WK + 96, WK + 97, 0)
    if layer == 0:
        touch(1)
    SKA = opt("ska", 10)
    mf = [(0, q, ks) for ks in range(28 - SKA) for q in range(2)]
    mf += [(0, q, ks) for q in range(2) for ks in range(28 - SKA, 28)]
    SK = opt("skb", 18)
    mf += [(1, q, ks) for ks in range(28 - SK) for q in range(2)]
    mf += [(1, q, ks) for q in range(2) for ks in range(28 - SK, 28)]
    NR = 8
    LEAD = opt("g1lead", 7)
    bars = [[2, 5, 9, 14, 16, 19, 23, 28], [1, 3, 6, 9, 14, 17, 21, 28], [2, 5, 9, 14, 18, 23, 28], [2, 6, 14, 20, 28]][opt("bars", 0)]
    ready = [0]
    def rd(n):
        half, q, ks = mf[n]
        st = 14 * half + ks // 2
        if st >= ready[0]:
            nb = [b for b in bars if b > st][0]
            assert nx[0] >= nb, (n, nb, nx[0])
            k.wait_tag_vm(("x", nb - 1))
            k("s_barrier")
            if ready[0] == 0 and FXL >= NUP:
                aflag(F_X1[layer][1])
            ready[0] = nb
        va = ((vXA0, vXA1), (vB0, vB1))[half][q]
        for u in range(2):
            k(f"ds_read_b64_tr_b16 {A(AX+4*(n%NR)+2*u,2)}, {V(va)} offset:{ks*2048+u*512}", tag=("f", n))
        rdat[n] = cur[0]
    rdat, cur, lastw = {}, [-9], [-9]
    def epi(tile):
        ops = []
        e = EP + 8 * (tile & 1)
        for a in range(2):
            for i in range(4):
                ops.append(f"v_cvt_pk_bf16_f32 {V(e+4*a+i)}, {V(ACC+16*tile+8*a+2*i)}, {V(ACC+16*tile+8*a+2*i+1)}")
            for i in range(4):
                ops.append(f"v_pk_max_i16 {V(e+4*a+i)}, {V(e+4*a+i)}, 0")
            if a == 0:
                ops.append(f"s_add_u32 {S(sT1)}, {S(sHS)}, {tile*112*1024}")
            ops.append((f"buffer_store_dwordx4 {V(e+4*a,4)}, {V(vL16)}, {S(SRD_WS,4)}, {S(sT1)} offen offset:{1024*a} sc1", ("h", tile)))
        return ops
    F = WK
    ONE4, DS_, DQ = WK + 84, WK + 88, WK + 92
    srd_ = [f"ds_read_b64_tr_b16 {V(F+4*ks+2*u,2)}, {V(vST)} offset:{ks*4096+u*512}" for ks in range(14) for u in range(2)]
    ring = [("a", AX + 4 * i) for i in range(8)] + [("v", WK + 64 + 4 * i) for i in range(5)]
    NR2 = opt("g2ring", 11)
    ring = ring[:NR2]
    rn = lambda i: (V if ring[i % NR2][0] == "v" else A)(ring[i % NR2][1], 4)
    nl = [0]
    def ld():
        i = nl[0]
        nl[0] += 1
        half, s = divmod(i, 28)
        if s % 4 == 0:
            k(f"s_add_u32 {S(sT4)}, {S(sHL)}, {half*2*112*1024 + s*1024}")
        k(f"buffer_load_dwordx4 {rn(i)}, {V(vL16)}, {S(SRD_WS,4)}, {S(sT4)} offen offset:{1024*(s%4)} sc1" + (" nt" if opt("hnt", 0) else ""))
        if layer == 0 and NW2[0] < 28 and i >= opt("w2l0", 0) and (i - opt("w2l0", 0)) % opt("w2ls", 1) == 0:
            w2_load()
    CHKA = opt("chkA", 999)
    HOLD = opt("hold", 0)
    held = []
    sentB = False
    pend = af
    nrd = 0
    for n in range(opt("lead0", LEAD)):
        rd(nrd); nrd += 1
    stamp(27)
    cur[0] = 0
    PXL, CXL = opt("pxl", 10), opt("cxl", 28)
    LB = opt("leadb", 4)
    BUD, CVM, CST, CRD = opt("bud", 28), opt("cvm", 12), opt("cst", 24), opt("crd", 4)
    MINL = opt("minl", 5)
    for n, (half, q, ks) in enumerate(mf):
        tile = 2 * half + q
        d = V(ACC + 16 * tile, 16)
        assert NW1[0] > ks, "W1 fragment used before its load"
        k(f"v_mfma_f32_32x32x16_bf16 {d}, {V(W1R+4*ks,4)}, {A(AX+4*(n%NR),4)}, {d if ks else 0}")
        if n == 56 - SKA + opt("ed", 2):
            pend += epi(0)
        if n == 56 + opt("ed", 2):
            pend += epi(1)
        if n == 112 - SK + opt("ed", 2):
            e2 = epi(2)
            if HOLD:
                held = [o for o in e2 if isinstance(o, tuple) or o.startswith("s_")]
                e2 = [o for o in e2 if o not in held]
            pend += e2
        b = BUD
        tags = [p[2] for p in k.lg]
        needw = ("f", n + 1) in tags
        if needw:
            b -= 4
        def newbar(m):
            return 14 * mf[m][0] + mf[m][2] // 2 >= ready[0]
        def may(m):
            if m < len(mf) and opt("mrg", 1) and ready[0] == 9 and newbar(m) and n < CXL <= m - 4:
                return False
            return m < len(mf) and m <= n + (LB if m == 56 else LEAD)
        if n == PXL:
            apoll_load(F_X1[layer][1]); b -= CVM + 4
        if n == CXL - 1:
            assert PRECMP[0] is None
            precmp(vPA); b -= 8
        if n == CXL:
            apoll_check()
            if nx[0] == 14 and ready[0] < 14:
                k.wait_tag_vm(("x", 13))
                ready[0] = 14
            k("s_barrier")
            stamp(28); b -= 20
        if n == opt("pollA", 109):
            poll_load(vPL2, vF2P, S(sFP)); b -= CVM
        if n == opt("flagA", 91):
            k.wait_tag_vm(("h", 1))
            gflag(layer, 0); b -= CVM + 12
        if n == CHKA:
            assert opt("flagA", 91) < opt("pollA", 109) < n
            gcheck(0); b -= 12
        if n >= max(CHKA, 104) and nl[0] <= n - 104 and nrd == len(mf) and (n - CHKA) % opt("hstep", 2) == 0:
            ld(); b -= CVM
        while may(nrd) and nrd <= n + MINL - 1:
            b -= 2 * CRD + (12 if newbar(nrd) else 0)
            rd(nrd); nrd += 1
        full = b >= BUD - 4
        if pend and isinstance(pend[0], tuple):
            if full or b >= CST:
                run(pend, 1); b -= CST
        elif full or b >= CVM + 4:
            if nx[0] < 14 and opt("astep", 3) * (nx[0] - NUP) <= n:
                dma(); b -= CVM + 4
            elif n >= CXL and nx[0] < 28 and opt("bstep", 2) * (nx[0] - 14 - opt("bburst", 1)) <= n - CXL:
                dma(); b -= CVM + 4
            elif layer == 0 and n >= lastw[0] + opt("w1step", 2) and NW1[0] < 28:
                w1_load(); b -= CVM; lastw[0] = n
            elif layer == 0 and NW1[0] == 28 and NW2[0] < opt("w2g1", 28) and n >= lastw[0] + opt("w2step", 2) and (n < CXL - opt("w2gap", 1) or nx[0] >= opt("w2x", 28)) and n < opt("w2end", 999):
                if W2CHK[0]:
                    assert PRECMP[0] is None
                    poll_check(WK + 96, WK + 97, 0)
                    W2CHK[0] = False
                w2_load(); b -= CVM; lastw[0] = n
        while True:
            if may(nrd) and b >= 2 * CRD and (nrd <= n + MINL + 1 or not pend or isinstance(pend[0], tuple)):
                b -= 2 * CRD + (12 if newbar(nrd) else 0)
                rd(nrd); nrd += 1
            elif pend and not isinstance(pend[0], tuple) and b >= 4:
                run(pend, 1); b -= 4
            elif nrd == len(mf) and len(srd_) > 12 and b >= CRD and n > 72:
                run(srd_, 1); b -= CRD
            else:
                break
        if needw:
            tags = [p[2] for p in k.lg]
            tgt = ("f", n + 2) if ("f", n + 2) in tags and rdat[n + 2] <= n - opt("wage", 3) else ("f", n + 1)
            idx = [i for i, t_ in enumerate(tags) if t_ == tgt]
            if idx:
                k.wait(lg=len(tags) - 1 - idx[-1])
        cur[0] = n + 1
        assert nrd > n + 1 or nrd == len(mf)
        if n % 8 == 0 or n == 111:
            fine(f"m{n}")
        if opt("g1st", 0) and n in (55, 83):
            stamp({55: 29, 83: 31}[n])
    assert not pend and nx[0] == 28 and NW1[0] == 28 and not W2CHK[0], (pend, nx, NW1)
    FREG[0] = 2
    fine("g1end")
    run(srd_, len(srd_) - 4)
    for i in range(4):
        k(f"v_mov_b32 {V(ONE4+i)}, {S(sONES)}")
    e3 = epi(3)
    if CHKA <= 111:
        held += [o for o in e3 if isinstance(o, tuple) or o.startswith("s_")]
        e3 = [o for o in e3 if o not in held]
        n_pre = opt("hpre", 7) - nl[0]
        for i in range(n_pre):
            ld()
            run(e3, len(e3) // (n_pre - i))
    run(e3)
    run(held)
    if FAST:
        run(gflag_ops(0, False))
    fine("epi3")
    stamp(15)
    run(srd_)
    for h in range(2):
        for u in range(2):
            k(f"ds_read_b64_tr_b16 {V(G2RES+4*h+2*u,2)}, {V(vRES)} offset:{h*XHALF+u*512}")
    if CHKA > 111:
        gcheck(0, ["s_waitcnt vmcnt(0)"] + gflag_ops(1, False))
    fine("pollA")
    stamp(17)
    st = []
    for ks in range(14):
        st.append(f"v_mfma_f32_16x16x32_bf16 {V(DQ,4)}, {V(F+4*ks,4)}, {V(F+4*ks,4)}, {V(DQ,4) if ks else 0}")
        st.append(f"v_mfma_f32_16x16x32_bf16 {V(DS_,4)}, {V(ONE4,4)}, {V(F+4*ks,4)}, {V(DS_,4) if ks else 0}")
    vS, vQ, vT = DS_, ONE4, ONE4 + 1
    post = ["s_mov_b32 vcc_lo, 0x00100001", "s_mov_b32 vcc_hi, 0x10000100",
            f"v_cndmask_b32 {V(vQ)}, 0, {V(DQ)}, vcc"]
    for i in range(1, 4):
        post += ["s_lshl_b64 vcc, vcc, 1", f"v_cndmask_b32 {V(vQ)}, {V(vQ)}, {V(DQ+i)}, vcc"]
    post += [f"v_mov_b32 {V(vT)}, {V(vQ)}", f"v_mul_f32 {V(vS)}, {f2u(1.0/448)}, {V(vS)}", None,
             f"v_permlane32_swap_b32 {V(vQ)}, {V(vT)}", f"v_add_f32 {V(vQ)}, {V(vQ)}, {V(vT)}",
             f"v_mov_b32 {V(vT)}, {V(vQ)}", None, None,
             f"v_permlane16_swap_b32 {V(vQ)}, {V(vT)}", f"v_add_f32 {V(vQ)}, {V(vQ)}, {V(vT)}",
             f"v_mul_f32 {V(vQ)}, {f2u(1.0/448)}, {V(vQ)}",
             f"v_fma_f32 {V(vQ)}, -{V(vS)}, {V(vS)}, {V(vQ)}",
             f"v_max_f32 {V(vQ)}, 0, {V(vQ)}",
             f"v_add_f32 {V(vQ)}, {f2u(1e-5)}, {V(vQ)}",
             f"v_rsq_f32 {V(vQ)}, {V(vQ)}", None,
             f"v_mov_b32 {V(G2R)}, {V(vQ)}",
             f"v_mov_b32 {V(G2R+2)}, {V(vQ)}", None, None,
             f"v_mov_b32_dpp {V(G2R)}, {V(vQ)} row_ror:8 row_mask:0xf bank_mask:0xc",
             f"v_mov_b32_dpp {V(G2R+2)}, {V(vQ)} row_ror:8 row_mask:0xf bank_mask:0x3"]

    k.c("=== GEMM2")
    NR = NR2
    def red_write(half):
        return [f"ds_write_b128 {V(vRW)}, {V(ACC+32*half+4*G,4)} offset:{half*RED_H+G*redg(layer)}" for G in range(8)]
    def red_read(half):
        return [f"ds_read_b128 {V(ACC+32*half+8*w+4*g,4)}, {V(vRR)} offset:{half*RED_H+w*RED_W+512*g}" for w in range(4) for g in range(2)]
    def unpack(half, u):
        o = []
        for i in range(4):
            o.append(f"v_lshlrev_b32 {V(u+2*i)}, 16, {V(G2RES+4*half+i)}")
            o.append(f"v_and_b32 {V(u+2*i+1)}, {S(sHIM)}, {V(G2RES+4*half+i)}")
        return o
    UR = WK + 84
    def fin(half, pre):
        a = ACC + 32 * half
        u = UR
        ops = []
        def P(d, x, y):
            if pre:
                ops.append(f"v_pk_add_f32 {V(d,2)}, {V(x,2)}, {V(y,2)}")
            else:
                ops.extend(f"v_add_f32 {V(d+h)}, {V(x+h)}, {V(y+h)}" for h in range(2))
        for i in range(4):
            P(a + 2 * i, a + 2 * i, a + 8 + 2 * i)
        for i in range(4):
            P(a + 16 + 2 * i, a + 16 + 2 * i, a + 24 + 2 * i)
        for i in range(4):
            P(a + 2 * i, a + 2 * i, a + 16 + 2 * i)
        for i in range(4):
            if pre:
                ops.append(f"v_pk_fma_f32 {V(a+2*i,2)}, {V(a+2*i,2)}, {V(G2R+2*half,2)}, {V(u+2*i,2)} op_sel_hi:[1,0,1]")
            else:
                ops.extend(f"v_fma_f32 {V(a+2*i+h)}, {V(a+2*i+h)}, {V(G2R+2*half)}, {V(u+2*i+h)}" for h in range(2))
        for i in range(4):
            ops.append(f"v_cvt_pk_bf16_f32 {V(a+24+i)}, {V(a+2*i)}, {V(a+2*i+1)}")
        if layer == 0:
            ops += quad_shuffle([(a + 28, a + 24)])
            ops.append(f"s_mov_b32 {S(sT1)}, {hex(XQ + XQ_SZ + 8192*half)}")
            if half and opt("pt", 1) == 2:
                ops.append(lambda: apoll_load(F_CIN1[0]))
            ops.append((f"buffer_store_dwordx4 {V(a+28,4)}, {V(vO)}, {S(SRD_WS,4)}, {S(sT1)} offen sc1", ("st", half)))
            so = stats_ops(a + 24, 4, a, a + 1, a + 2)
            if not pre:
                so = so[10:]
                for i in range(4):
                    ops.append(f"v_lshlrev_b32 {V(a+16+2*i)}, 16, {V(a+24+i)}")
                    ops.append(f"v_and_b32 {V(a+16+2*i+1)}, {S(sHIM)}, {V(a+24+i)}")
                ops.append(f"v_add_f32 {V(a)}, {V(a+16)}, {V(a+17)}")
                ops.append(f"v_mul_f32 {V(a+1)}, {V(a+16)}, {V(a+16)}")
                for i in range(1, 8):
                    if i > 1:
                        ops.append(f"v_add_f32 {V(a)}, {V(a)}, {V(a+16+i)}")
                    ops.append(f"v_fmac_f32 {V(a+1)}, {V(a+16+i)}, {V(a+16+i)}")
            ops += so
            def at():
                k(f"s_mov_b32 {S(sT1)}, {hex(STATS[1] + 8192*half)}")
                k("s_mov_b32 exec_lo, 0xff")
                k("s_mov_b32 exec_hi, 0xff")
                k(f"buffer_atomic_add_f32 {V(a)}, {V(vAT)}, {S(SRD_WS,4)}, {S(sT1)} offen sc1", tag=("st", half))
                k("s_mov_b64 exec, -1")
            ops.append(at)
        else:
            ops.append(f"s_mov_b32 {S(sT1)}, {1024*896*half}")
            ops.append(f"buffer_store_dwordx4 {V(a+24,4)}, {V(vO)}, {S(SRD_OUT,4)}, {S(sT1)} offen" + ("", " sc1", " nt", " sc0 sc1")[opt(f"osc{half}", 2)])
        return ops
    NUP2 = opt("nup2", NR)
    for i in range(nl[0], NUP2):
        ld()
        run(st, (len(st) + NUP2 - i - 1) // (NUP2 - i))
        if i == opt("flagB", 7):
            k.wait_tag_vm(("h", 3))
            gflag(layer, 1)
            sentB = True
    assert not st
    fine("up2")
    stamp(16)
    PB = opt("pollB", 7)
    TL = opt("tl", 4)
    order = [(i, dt) for i in range(56 - TL) for dt in range(2)] + [(i, dt) for dt in range(2) for i in range(56 - TL, 56)]
    bar()
    GAP = "gap"
    pend = [GAP] * 2 + [GAP if o is None else o for o in post]
    if layer and ROWST:
        pend += [f"ds_bpermute_b32 {V(r)}, {V(vAT)}, {V(r)}" for r in list(range(G2RES, G2RES + 8)) + [G2R, G2R + 2]] + [GAP] * 3
    pend += unpack(0, UR)
    okB = False
    flagE = layer == 1
    BUD2 = opt("bud2", 24)
    for n, (i, dt) in enumerate(order):
        half, s = divmod(i, 28)
        d = V(ACC + 32 * half + 16 * dt, 16)
        assert NW2[0] + 28 > s * 2 + dt, "W2 fragment used before its load"
        k(f"v_mfma_f32_32x32x16_bf16 {d}, {A((s*2+dt)*4,4)}, {rn(i)}, {d if s else 0}")
        b = (BUD2 if i < 28 else opt("bud3", BUD2)) - (4 if dt else 0)
        if dt == 0 and i < 56 - TL:
            if i + NUP2 == opt("flagB", 7):
                k.wait_tag_vm(("h", 3))
                gflag(layer, 1)
                sentB = True
                b = 0
            if FAST and i and i == opt("qb", 29):
                assert sentB and i <= opt("red0", 29) + 2
                run(gflag_ops(1, False))
                b = 0
            if i == PB:
                poll_load(vPL2, vF2P, S(sFP), GB)
                assert sentB
                b -= 14
            if nl[0] == 28 and not okB and i > PB and (i >= opt("chkB", 99) or not any(f"v{vPL2}" in p[0] for p in k.vm[1:])):
                assert not pend
                precmp(vPL2)
                okB = None
        if dt == 1 and okB is None:
            gcheck(1)
            if FAST and not opt("qb", 29):
                pend += [GAP, lambda: run(gflag_ops(1, False))]
            okB = True
            b -= 4
        if dt == 1 and i < 56 - TL:
            if i in (13, 27, 41):
                stamp({13: 8, 27: 23, 41: 26}[i])
            if i == opt("red0", 29):
                for o in red_write(0):
                    pend += [o] + [GAP] * opt("rwg", 1)
                pend += [GAP] * opt("rw2", 1) + [bar] + red_read(0) + [GAP] * opt("rr2", 2) + fin(0, False) + unpack(1, UR)
        assert i < 56 - TL or nl[0] == 56
        if nl[0] < 56 and nl[0] - NR < i + dt and (nl[0] < 28 or okB) and (dt or opt("catch", 1)):
            ld()
            b -= 14
        while pend and not (layer and nl[0] < 56 and "buffer_store" in str(pend[0])):
            o = pend[0]
            if o is GAP:
                pend.pop(0)
                break
            cost = 8 if str(o).startswith("ds_read") else 12 if str(o).startswith("ds_bperm") else 4
            if b < cost and not str(o).startswith("ds_write"):
                break
            run(pend, 1)
            b -= cost if isinstance(o, str) else 16
        if n == opt("flagE", 104) and layer == 0:
            assert not any("atomic" in str(o) or callable(o) for o in pend)
            k.wait_tag_vm(("st", 0))
            k("s_barrier")
            aflag(F_CIN1[0])
            flagE = True
        if EARLY and layer == 0 and n == opt("pollE", 108):
            assert flagE
            apoll_load(F_CIN1[0])
        if n % 10 == 1:
            fine(f"m{n}")
        if n == 112 - TL - 1:
            assert not pend
            pend += ["s_nop 3", GAP, "s_nop 3", GAP]
            for o in red_write(1)[:4]:
                pend += [o, GAP]
    run([o for o in pend if o is not GAP])
    assert nl[0] == 56 and okB
    stamp(18)
    run(red_write(1)[4:])
    if not flagE:
        k.wait_tag_vm(("st", 0))
    if layer == 0 and opt("pt", 1) == 0:
        apoll_load(F_CIN1[0])
    bar()
    if not flagE:
        aflag(F_CIN1[0])
    fine("bar")
    run(red_read(1))
    if layer == 0 and opt("pt", 1) == 1:
        apoll_load(F_CIN1[0])
    run(fin(1, True))
    fine("out")
    stamp(19)

def finish():
    if ENC >= 0:
        k.wait(vm=0)
        stamp(22)
        k(f"s_cmp_lg_u32 {S(sWG)}, 100")
        k("s_cbranch_scc1 L_end")
        k("s_sub_u32 s47, s47, s46" if ENC else "s_sub_u32 s47, s46, s46")
        k("s_mul_i32 s47, s47, 100")
        k("s_min_u32 s47, s47, 1000000")
        k(f"s_memrealtime {S(sTM,2)}")
        k.wait(lg=0)
        k(f"s_mov_b32 s46, {S(sTM)}")
        k.label("L_spin")
        k(f"s_memrealtime {S(sTM,2)}")
        k.wait(lg=0)
        k(f"s_sub_u32 {S(sT0)}, {S(sTM)}, s46")
        k(f"s_cmp_lt_u32 {S(sT0)}, s47")
        k("s_cbranch_scc1 L_spin")
    if DIAG:
        if not opt("noend", 0):
            k.wait(vm=0)
        stamp(22)
        for n, (name, r) in enumerate(FINE):
            k(f"v_writelane_b32 {V(vSTAMP)}, s{r}, {20 + n}")
        k(f"v_writelane_b32 {V(vSTAMP)}, s101, 61")
        k.raw("; SITES " + " ".join(SITES))
        if FINE:
            k.raw("; FINE " + " ".join(n for n, _ in FINE))
        k(f"s_lshl_b32 {S(sT0)}, {S(sWG)}, 10")
        k(f"s_add_u32 {S(sT0)}, {S(sT0)}, {hex(STAMP)}")
        k(f"s_lshl_b32 {S(sT1)}, {S(sW)}, 8")
        k(f"v_lshl_add_u32 {V(WK)}, {V(vL)}, 2, {S(sT1)}")
        k(f"buffer_store_dword {V(vSTAMP)}, {V(WK)}, {S(SRD_WS,4)}, {S(sT0)} offen")
    k.label("L_end")
    k("s_endpgm")

prologue()
main_start()
kgen()
conv(0)
ffn(0)
layer_turn()
conv(1)
ffn(1)
finish()
cut = [i for i, l in enumerate(SLOW) if l.startswith("L_slow")]
NS = opt("ns", 4)
first = len(cut) - 10
for n, i in enumerate(cut):
    if n >= first and (n - first) % 3 == 0 and (n - first) // 3 < 4:
        k.raw(f"L_st{(n - first) // 3}:")
        k.raw(f"    s_branch L_ret{1 + (n - first) // 6}")
    for l in SLOW[i:(cut + [len(SLOW)])[n + 1]]:
        k.raw(l)
SLOW.clear()
LAY[0] = 0
helper()
body = list(k.lines) + SLOW
body += [".p2align 4", ".type L_table,@object", "L_table:"]
body += [".long " + ",".join(hex(w) for w in r) for r in table_words()]
body += ["L_table_end:"]

DOC = """;
; One persistent launch, one workgroup per CU (generated by the author's own script).
;   rows of x -> channel-major copy + row sums (atomics)        [hand-off to every workgroup]
;   K[l] = Re sum_n C dB exp(dt A bf16(l)): the 641 distinct exponents as a 21 x 32 outer sum, summed over
;          the modes with MFMA, expanded to two shifted Toeplitz copies in LDS (Dskip folded into lag 0)
;   2 x { LayerNorm -> causal Toeplitz MFMA conv + residual     [hand-off to every workgroup]
;         GEMM1 (mean folded into centred W1) -> ReLU           [hand-off inside a 14-workgroup row group]
;         GEMM2 * rstd + residual, row sums for the next norm } [hand-off to every workgroup]
; Hand-offs: sc1 stores -> vmcnt -> (barrier) -> sc1 flag; consumers poll with sc1 loads (bounded retry
; loops after the main code).  All flag words are cleared inside the launch (d_debug carries the 'cleared'
; words).  Row-group flags have a plain-store twin that is seen sooner on the same die; a consumer that
; does not see the twin falls back to the device-wide word, so placement only affects speed.
"""
ref = open("cdna_kernels/%s.s.ref" % NAME).read().splitlines()
hdr = [l for l in ref if l.startswith(";") and "@launch" not in l]
head = f""".amdgcn_target "amdgcn-amd-amdhsa--gfx950"
.text
.globl {NAME}_kernel
.p2align 8
.type {NAME}_kernel,@function
{NAME}_kernel:
"""
if opt("align", 1):
    body = align(body, head, stubs=stub_targets())
out = "\n".join(hdr) + f"\n; @launch grid=(256,1,1) block=(256,1,1) lds={LDS_BYTES}\n"
out += DOC + head + "\n".join(body) + "\n"
out += f""".section .rodata,"a"
.p2align 6
.amdhsa_kernel {NAME}_kernel
  .amdhsa_next_free_vgpr 512
  .amdhsa_next_free_sgpr 102
  .amdhsa_accum_offset 256
  .amdhsa_group_segment_fixed_size 0
  .amdhsa_kernarg_size 120
  .amdhsa_user_sgpr_count 2
  .amdhsa_user_sgpr_kernarg_segment_ptr 1
  .amdhsa_system_sgpr_workgroup_id_x 1
.end_amdhsa_kernel
"""
dst = [a for a in sys.argv[1:] if not a.startswith("--")]
dst = dst[0] if dst else "cdna_kernels/%s.s" % NAME
open(dst, "w").write(out)
print("instructions:", k.nins, "->", dst)
```

```python
import sys, struct
from emit import Asm, V, A, S
from align import align

NAME = "interleave_layers__ssm_conv_s4__dense_activation_relu__prompt"
DIAG = "--diag" in sys.argv
OPT = {"pe.0": 999, "pxl.0": 18, "cxl.0": 36, "pxl.1": 11, "nup.1": 11, "astep.1": 1, "cxl.1": 30, "pollB.0": 10, "pollB.1": 9, "bud3.0": 44,
       "cpl": 88, "cpb": 94, "fe": 94, "pe.1": 138}
for a in sys.argv:
    if a.startswith("--") and "=" in a:
        n, v = a[2:].split("=")
        OPT[n] = int(v)
LAY = [0]
def opt(n, d):
    return OPT.get(f"{n}.{LAY[0]}", OPT.get(n, d))

def f2u(x):
    return "0x%08x" % struct.unpack("<I", struct.pack("<f", x))[0]

GL, AL = opt("gl", 5), opt("al", 0)
FA = (lambda n: 0x8000 + 4 * n if n else 0) if AL else (lambda n: n * 0x8000)
F_CIN0, F_X1, F_CIN1 = 0, ((1, 2), (5, 6)), (3, 4)
FLG_G = 0x8000 + (2048 << AL if AL else 0x30000)
FAST = opt("fast", 1)
PQ = 1024 << GL
ZEND = FLG_G + (PQ if FAST else 0) + (1024 << GL if GL else 0x10000) + 0x8000
STATS = (0x1804000, ZEND - 0x8000)
XQ = 0x1820000
XQ_SZ = 0x1C0000
X1T = 0x3E0000
HB = 0x760000
H_SZ = 0 if opt("hreuse", 0) else 0x700000
W1C = 0x1560000
FLG_W = ZEND - 0x4000
STAMP = 0x1700000
W2T = 0x1740000
WS_BYTES = 0x1BA0000

XHALF = 57344 + 32
SCR = 114816
SCR_ST = 8960
KC0 = 4608
ROW_ST = 544
UARR = SCR + 4 * SCR_ST
U_ST = 4576
LDS_BYTES = 163840
WREG = 28672
RED_G = 1152
RED_W = 8 * RED_G
RED_H = 4 * RED_W

sWG, sW = 2, 3
SRD_WS, SRD_OUT, SRD_W1, SRD_W2, SRD_X0, SRD_DBG = 4, 8, 12, 16, 20, 24
sCP, sGAM, sJ, sHH, sDS, sROT = 58, 59, 60, 61, 62, 63
sONES, sHIM = 64, 65
sT0, sT1, sT2, sT3, sT4, sT5 = 66, 67, 68, 69, 70, 71
sLDT, sDSK = 72, 73
sREP, sXQi, sW2B, sXT, sHL, sHS, sFG = 74, 75, 76, 77, 78, 79, 80
sSPIN = 81
sC0, sC1 = 82, 83
sPC = 84
sTM = 86
sWL = 88
sW2O = 89
sSCR, sSCH = 90, 95
sPERM0, sPERM1 = 91, 92
sNH, sCH = 93, 94
sXS = 100
sLDT2 = 99
sFP = 98
sKO = 28
sW2L, sPA = 96, 97

vTID, vL, vL16 = 0, 1, 2
vCX, vUW, vXW = 3, 4, 5
vKF = 6
vUF, vXR, vCO, vEXW, vEXR = 10, 11, 12, 13, 14
vFW, vFP, vONE, vSTAMP, vPA = 15, 16, 17, 18, 19
vXA0, vXA1, vST, vRES, vRW, vRR, vO, vAT, vF2P, vFL, vHL, vPL2 = range(20, 32)
vW2S, vW2R, vWF, vDUM = 20, 21, 23, 26
LIN = 20
WK = 32
W1R = 144
AX = 224

class JAsm(Asm):
    def wait_tag_vm(self, tag):
        if isinstance(tag, tuple) and opt("noack", 0) & {"cst": 1, "h": 2, "st": 4}.get(tag[0], 0):
            return
        super().wait_tag_vm(tag)
    nj = 0
    on = False
    def __call__(self, text, tag=None):
        super().__call__(text, tag)
        if opt("jitter", 0) and self.on and (text == "s_barrier" or (text.startswith("buffer_store_dwordx4") and "s66" not in text)):
            self.nj += 1
            for t in ("s_mul_i32 s46, s46, 1103515245", "s_add_u32 s46, s46, 12345", "s_lshr_b32 s47, s46, 29", "s_cmp_lg_u32 s47, 0",
                      f"s_cbranch_scc1 L_jit{self.nj}", f"s_sleep {opt('jitter', 0)}"):
                self.raw("    " + t)
            self.raw(f"L_jit{self.nj}:")
k = JAsm()
SPIN_MAX = 1 << 16

ENC = opt("enc", -1)
def stamp(idx, cyc=False):
    if ENC >= 0 and not cyc and idx + 32 * LAY[0] in (0, ENC):
        k.wait(lg=0)
        k(f"s_memrealtime {S(sTM,2)}")
        k.wait(lg=0)
        k(f"s_mov_b32 {S(46 if idx + 32*LAY[0] == 0 else 47)}, {S(sTM)}")
    if not DIAG:
        return
    if opt("lite", 0) and idx + 32 * LAY[0] not in (0, 9, 14, 19, 46, 54):
        return
    k.wait(lg=0)
    k(f"{'s_memtime' if cyc != bool(opt('cyc', 0)) else 's_memrealtime'} {S(sTM,2)}")
    k.wait(lg=0)
    k(f"v_writelane_b32 {V(vSTAMP)}, {S(sTM)}, {idx + 32*LAY[0]}")

FINE = []
def fine(name):
    if not DIAG or opt("fine", 0) != FREG[0] or opt("finel", 1) != LAY[0]:
        return
    regs = list(range(28, 46, 2)) + [12, 14, 20, 22, 48, 50, 54, 56] + ([] if FREG[0] == 4 else [24, 26])
    r = regs[len(FINE)]
    FINE.append((name, r))
    k.raw(f"    s_memtime s[{r}:{r+1}]")
FREG = [0]

def srd_base(base, ptr):
    k(f"s_mov_b32 {S(base)}, {S(ptr)}")
    k(f"s_and_b32 {S(base+1)}, {S(ptr+1)}, 0xffff")

def srd(base, ptr, nbytes):
    k(f"s_mov_b32 {S(base)}, {S(ptr)}")
    k(f"s_and_b32 {S(base+1)}, {S(ptr+1)}, 0xffff")
    k(f"s_mov_b32 {S(base+2)}, {hex(nbytes)}")
    k(f"s_mov_b32 {S(base+3)}, 0x20000")

_lab = [0]
def newlab(p):
    _lab[0] += 1
    return f"L_{p}_{_lab[0]}"

def branch(op, lab):
    k.fence(1)
    k(f"{op} {lab}")

def label(lab):
    k.fence()
    k.label(lab)

def poll_load(vtmp, vaddr, soff, off=0, srdn=SRD_WS):
    pol = "nt" if FAST and opt("pnt", 0) and soff == S(sFP) else "sc1"
    k(f"buffer_load_dword {V(vtmp)}, {V(vaddr)}, {S(srdn,4)}, {soff} offen offset:{off} {pol}")

PRECMP = [None]
def precmp(vtmp):
    if opt("pre", 1):
        k(f"v_cmp_eq_u32 vcc, 0, {V(vtmp)}")
        PRECMP[0] = vtmp
SLOW = []
SITES = []
def poll_check(vtmp, vaddr, soff, off=0, srdn=SRD_WS, pre=(), alt=None):
    sl, lp, ok = newlab("slow"), newlab("poll"), newlab("ok")
    if PRECMP[0] != vtmp:
        k(f"v_cmp_eq_u32 vcc, 0, {V(vtmp)}")
    PRECMP[0] = None
    k(f"s_cbranch_vccnz {sl}")
    k.label(ok)
    import inspect
    SITES.append(inspect.stack()[2 if inspect.stack()[1].function == "apoll_check" else 1].function + str(LAY[0]))
    slp = opt("sl_" + SITES[-1], opt("sleep", 0))
    if opt("pipe", 3) and vaddr == vFP:
        ld_ = lambda r: f"    buffer_load_dword {V(r)}, {V(vaddr)}, {S(srdn,4)}, {soff} offen offset:{off} sc1"
        SLOW.extend([f"{sl}:"] + ([f"    s_bitset1_b32 s101, {len(SITES)-1}"] if DIAG else []) +
                    [ld_(vtmp), f"    s_mov_b32 {S(sSPIN)}, 0", f"    s_sleep {opt('pipe', 3)}", f"{lp}:",
                     ld_(vTID), f"    s_add_u32 {S(sSPIN)}, {S(sSPIN)}, 1", "    s_waitcnt vmcnt(1)",
                     f"    v_cmp_eq_u32 vcc, 0, {V(vtmp)}", f"    s_cmp_gt_u32 {S(sSPIN)}, {SPIN_MAX}",
                     f"    s_cbranch_vccz {ok}",
                     ld_(vtmp), "    s_waitcnt vmcnt(1)",
                     f"    v_cmp_eq_u32 vcc, 0, {V(vTID)}",
                     f"    s_cbranch_scc1 {ok}",
                     f"    s_cbranch_vccnz {lp}",
                     f"    s_branch {ok}"])
        return
    SLOW.extend([f"{sl}:"] + ([f"    s_bitset1_b32 s101, {len(SITES)-1}"] if DIAG else []) +
                ([f"    s_mov_b32 {S(sSPIN)}, 0",
                  f"{lp}q:",
                  f"    buffer_load_dword {V(vtmp)}, {V(vaddr)}, {S(srdn,4)}, {soff} offen offset:{off} sc1",
                  f"    s_add_u32 {S(sSPIN)}, {S(sSPIN)}, 1",
                  "    s_waitcnt vmcnt(0)",
                  f"    v_cmp_eq_u32 vcc, 0, {V(vtmp)}",
                  f"    s_cmp_lt_u32 {S(sSPIN)}, 10",
                  f"    s_cbranch_vccz {ok}",
                  f"    s_cbranch_scc1 {lp}q"] if alt else []) +
                ["    " + p for p in pre] +
                [f"    s_mov_b32 {S(sSPIN)}, 0",
                 f"{lp}:"] +
                ([f"    s_sleep {slp}"] if slp else []) +
                [f"    buffer_load_dword {V(vtmp)}, {V(vaddr)}, {S(srdn,4)}, {soff} offen offset:{off} sc1",
                 f"    s_add_u32 {S(sSPIN)}, {S(sSPIN)}, 1"] +
                ([f"    buffer_load_dword {V(alt[0])}, {V(vaddr)}, {S(srdn,4)}, {alt[1]} offen offset:{off} sc1"] if alt else []) +
                ["    s_waitcnt vmcnt(0)"] +
                ([f"    v_or_b32 {V(vtmp)}, {V(vtmp)}, {V(alt[0])}"] if alt else []) +
                [
                 f"    v_cmp_eq_u32 vcc, 0, {V(vtmp)}",
                 f"    s_cmp_gt_u32 {S(sSPIN)}, {SPIN_MAX}",
                 f"    s_cbranch_scc1 {ok}",
                 f"    s_cbranch_vccnz {lp}",
                 f"    s_branch {ok}"])

def run(ops, n=None):
    c = 0
    while ops and (n is None or c < n):
        o = ops.pop(0)
        if callable(o):
            o()
        elif isinstance(o, tuple):
            k(o[0], tag=o[1])
        elif o is not None:
            k(o)
        c += 1

def stats_ops(P, n, vS, vQ, vT):
    o = [f"v_mov_b32 {V(vS)}, 0", f"v_mov_b32 {V(vQ)}, 0"]
    for i in range(n):
        o.append(f"v_dot2c_f32_bf16 {V(vS)}, {S(sONES)}, {V(P+i)}")
        o.append(f"v_dot2c_f32_bf16 {V(vQ)}, {V(P+i)}, {V(P+i)}")
    o += [f"v_permlane32_swap_b32 {V(vS)}, {V(vQ)}",
          f"v_add_f32 {V(vS)}, {V(vS)}, {V(vQ)}",
          f"v_mov_b32 {V(vT)}, {V(vS)}",
          f"v_permlane16_swap_b32 {V(vS)}, {V(vT)}",
          f"v_add_f32 {V(vS)}, {V(vS)}, {V(vT)}",
          f"v_add_f32_dpp {V(vS)}, {V(vS)}, {V(vS)} row_ror:8 row_mask:0xf bank_mask:0xf",
          f"v_lshrrev_b32 {V(vT)}, 1, {V(vS)}",
          f"v_add_u32 {V(vQ)}, {hex(8 << 23)}, {V(vS)}",
          f"v_add_u32 {V(vT)}, {hex(0x1FC00000 + (9 << 23))}, {V(vT)}",
          f"v_permlane32_swap_b32 {V(vT)}, {V(vQ)}",
          f"v_and_b32 {V(vQ)}, 0x7f800000, {V(vQ)}",
          f"v_mul_f32 {V(vQ)}, 0x3fc00000, {V(vQ)}",
          f"v_add_f32 {V(vS)}, {V(vS)}, {V(vQ)}",
          f"v_sub_f32 {V(vS)}, {V(vS)}, {V(vQ)}"]
    return o

def quad_shuffle(pairs):
    D = " row_mask:0xf bank_mask:0xf"
    o = ["s_mov_b32 vcc_lo, 0x0f0f0f0f", "s_mov_b32 vcc_hi, 0x0f0f0f0f"]
    for d, s in pairs:
        o.append(f"v_cndmask_b32_dpp {V(d)}, {V(s+2)}, {V(s)}, vcc row_ror:4" + D)
        o.append(f"v_cndmask_b32_dpp {V(d+2)}, {V(s+3)}, {V(s+1)}, vcc row_ror:4" + D)
    o.append("s_not_b64 vcc, vcc")
    for d, s in pairs:
        o.append(f"v_cndmask_b32_dpp {V(d+1)}, {V(s)}, {V(s+2)}, vcc row_ror:12" + D)
        o.append(f"v_cndmask_b32_dpp {V(d+3)}, {V(s+1)}, {V(s+3)}, vcc row_ror:12" + D)
    return o

X0R = WK
X0O = WK + 8
vP0A = WK + 16
vP0S = WK + 20
vGO = WK + 28

def p0x_addr(part):
    t = vP0A
    if part:
        return p0x_addr2()
    k.c("row re-layout unit of this wave: W = 4m+w, octet group a = W%7, rows (blk, j2) = W/7, both hh8")
    k(f"s_lshl2_add_u32 {S(sT0)}, {S(sT0)}, {S(sW)}")
    k(f"s_mul_i32 {S(sT1)}, {S(sT0)}, 9363")
    k(f"s_lshr_b32 {S(sT1)}, {S(sT1)}, 16")
    k(f"s_mul_i32 {S(sT2)}, {S(sT1)}, 7")
    k(f"s_sub_u32 {S(sT0)}, {S(sT0)}, {S(sT2)}")
    k(f"s_lshr_b32 {S(sT2)}, {S(sT1)}, 2")
    k(f"s_lshl_b32 {S(sT2)}, {S(sT2)}, 6")
    k(f"s_and_b32 {S(sT3)}, {S(sT1)}, 3")
    k(f"s_lshl1_add_u32 {S(sT2)}, {S(sT3)}, {S(sT2)}")
    k(f"v_and_b32 {V(t+1)}, 0x30, {V(vL16)}")
    k(f"v_bfe_u32 {V(t)}, {V(vL)}, 2, 1")
    k(f"v_add3_u32 {V(t+3)}, {V(t+1)}, {V(t)}, {S(sT2)}")
    k(f"v_mul_u32_u24 {V(t+3)}, 896, {V(t+3)}")
    k(f"v_lshrrev_b32 {V(t+2)}, 3, {V(vL)}")
    k(f"v_lshl_add_u32 {V(t+3)}, {V(t+2)}, 4, {V(t+3)}")
    k(f"s_lshl_b32 {S(sT2)}, {S(sT0)}, 7")
    k(f"v_add_u32 {V(t+3)}, {S(sT2)}, {V(t+3)}")

def p0x_addr2():
    t = vP0A
    k(f"v_lshl_add_u32 {V(t)}, {V(t)}, 2, {V(t+1)}")
    k(f"v_lshrrev_b32 {V(t+2)}, 5, {V(vL)}")
    k(f"v_lshl_add_u32 {V(t)}, {V(t+2)}, 3, {V(t)}")
    k(f"v_and_b32 {V(t+2)}, 16, {V(vL)}")
    k(f"v_lshl_add_u32 {V(t)}, {V(t+2)}, 2, {V(t)}")
    k(f"s_lshl_b32 {S(sT2)}, {S(sT1)}, 7")
    k(f"v_add_u32 {V(t)}, {S(sT2)}, {V(t)}")
    k(f"v_lshrrev_b32 {V(t+2)}, 2, {V(vL)}")
    k(f"v_lshl_add_u32 {V(t+1)}, {V(t+2)}, 14, {V(t+1)}")
    k(f"s_lshl_b32 {S(sT0)}, {S(sT0)}, 18")
    k(f"s_lshl_b32 {S(sT1)}, {S(sT1)}, 7")
    k(f"s_add_u32 {S(sT0)}, {S(sT0)}, {S(sT1)}")
    k(f"v_add_u32 {V(t+1)}, {S(sT0)}, {V(t+1)}")

def p0x_loads():
    k(f"buffer_load_dwordx4 {V(X0R,4)}, {V(vP0A+3)}, {S(SRD_X0,4)}, 0 offen")
    k(f"buffer_load_dwordx4 {V(X0R+4,4)}, {V(vP0A+3)}, {S(SRD_X0,4)}, {S(sT4)} offen")

def p0x_body():
    t = vP0A
    if opt("goearly", 2) == 1:
        k.wait(vm=len(k.vm) - 2)
        poll_load(vGO, vGO + 3, 0, 0, SRD_DBG)
    run(quad_shuffle([(X0O + 4 * a, X0R + 4 * a) for a in range(2)]))
    k(f"s_mov_b32 {S(sT0)}, {hex(XQ)}")
    for a in range(2):
        k(f"buffer_store_dwordx4 {V(X0O+4*a,4)}, {V(t+1)}, {S(SRD_WS,4)}, {S(sT0)} offen offset:{64*a} sc1")
    s0 = stats_ops(X0R, 4, vP0S, vP0S + 1, vP0S + 2)
    s1 = stats_ops(X0R + 4, 4, vP0S + 2, vP0S + 3, vP0S + 4)
    for _ in range(12):
        run(s0, 1)
        run(s1, 1)
    run(s0[1:])
    if opt("goearly", 2) == 2:
        poll_load(vGO, vGO + 3, 0, 0, SRD_DBG)

def p0x_atomics():
    poll_check(vGO, vGO + 3, 0, 0, SRD_DBG)
    k(f"s_mov_b32 {S(sT0)}, {hex(STATS[0])}")
    k("s_mov_b32 exec_lo, 0x00ff00ff")
    k("s_mov_b32 exec_hi, 0x00ff00ff")
    k(f"buffer_atomic_add_f32 {V(vP0S)}, {V(vP0A)}, {S(SRD_WS,4)}, {S(sT0)} offen sc1", tag="st")
    k("s_mov_b64 exec, -1")
    poll_load(vGO, vGO + 2, 0, 128, SRD_DBG)
    if opt("warmat", 2) == 3:
        warm_loads()

def flag_all(off):
    k(f"s_mov_b32 {S(sT0)}, {hex(off)}")
    k(f"s_mov_b64 exec, 3")
    k(f"buffer_store_dword {V(vONE)}, {V(vFW)}, {S(SRD_WS,4)}, {S(sT0)} offen sc1")
    k(f"s_mov_b64 exec, -1")

ND = [0]
def w2_dma():
    d = ND[0]
    ND[0] += 1
    if opt("abl", 0) & 2:
        return
    if opt("rot", 1):
        if d == 0:
            k(f"s_and_b32 {S(sROT)}, {S(sWG)}, 7")
            k(f"s_min_u32 {S(sROT)}, {S(sROT)}, 6")
            k(f"s_mul_i32 {S(sXS)}, {S(sW)}, {WREG}")
        elif d % 4 == 0:
            k(f"s_add_u32 {S(sROT)}, {S(sROT)}, 1")
            k(f"s_cmp_eq_u32 {S(sROT)}, 7")
            k(f"s_cselect_b32 {S(sROT)}, 0, {S(sROT)}")
        if d % 4 == 0:
            k(f"s_lshl_b32 {S(sT4)}, {S(sROT)}, 12")
            k(f"s_add_u32 m0, {S(sT4)}, {S(sXS)}")
            k(f"s_mul_i32 {S(sW2O)}, {S(sT4)}, 7")
            k(f"s_add_u32 {S(sW2O)}, {S(sW2O)}, {S(sW2B)}")
        else:
            k(f"s_add_u32 {S(sW2O)}, {S(sW2O)}, {7168 - 1024}")
        k(f"buffer_load_dwordx4 {V(vW2S)}, {S(SRD_W2,4)}, {S(sW2O)} offen offset:{1024*(d%4)} lds", tag=("w2", d))
        return
    if d == 0:
        k(f"s_mul_i32 {S(sT4)}, {S(sW)}, {WREG}")
        k(f"s_mov_b32 m0, {S(sT4)}")
    elif d % 4 == 0:
        k(f"s_add_u32 m0, m0, 4096")
    if d:
        k(f"s_add_u32 {S(sW2B)}, {S(sW2B)}, {7168 - 1024 + (4096 if d % 4 == 0 else 0)}")
    k(f"buffer_load_dwordx4 {V(vW2S)}, {S(SRD_W2,4)}, {S(sW2B)} offen offset:{1024*(d%4)} lds", tag=("w2", d))

NW2 = [0]
def w2_load():
    n = NW2[0]
    NW2[0] += 1
    if opt("abl", 0) & 4:
        return
    k(f"buffer_load_dwordx4 {A(112+4*n,4)}, {V(vL16)}, {S(SRD_WS,4)}, {S(sW2L)} offen offset:{1024*(n%4)} sc1")
    if n % 4 == 3:
        k(f"s_add_u32 {S(sW2L)}, {S(sW2L)}, 4096")

def w2_tr_ops(lo, hi):
    return [f"ds_read_b64_tr_b16 {A((s*2+dt)*4+2*u,2)}, {V(vW2R+dt)} offset:{(s%14)*2048+u*1024}"
            for s in range(lo, hi) for dt in range(2) for u in range(2)]

NW1 = [0]
def w1_load():
    ks = NW1[0]
    NW1[0] += 1
    if opt("abl", 0) & 1:
        return
    k(f"buffer_load_dwordx4 {V(W1R+4*ks,4)}, {V(vL16)}, {S(SRD_WS,4)}, {S(sWL)} offen offset:{1024*(ks%4)} sc1")
    if ks % 4 == 3:
        k(f"s_add_u32 {S(sWL)}, {S(sWL)}, 4096")

def common():
    k(f"v_mov_b32 {V(vONE)}, 1")
    k(f"s_mov_b32 {S(sONES)}, 0x3f803f80")
    k(f"s_mov_b32 {S(sHIM)}, 0xffff0000")
    k(f"s_and_b32 {S(sNH)}, {S(sW)}, 1")
    k(f"s_lshr_b32 {S(sCH)}, {S(sW)}, 1")
    k(f"v_and_b32 {V(vGO+1)}, 12, {V(vL)}")

def roles():
    k(f"s_cmp_ge_u32 {S(sJ)}, 14")
    k(f"s_cselect_b32 {S(sT2)}, 1, 0")
    k(f"s_cselect_b32 {S(sT3)}, 14, 0")
    k(f"s_lshl1_add_u32 {S(sGAM)}, {S(sREP)}, {S(sT2)}")
    k(f"s_sub_u32 {S(sJ)}, {S(sJ)}, {S(sT3)}")
    k(f"s_and_b32 {S(sHH)}, {S(sJ)}, 1")
    k(f"s_lshr_b32 {S(sDS)}, {S(sJ)}, 1")
    k(f"s_lshl_b32 {S(sREP)}, {S(sREP)}, 12")
    k(f"s_lshl_b32 {S(sT0)}, {S(sW)}, 13")
    k(f"s_lshl4_add_u32 {S(sT0)}, {S(sWG)}, {S(sT0)}")
    k(f"v_lshl_add_u32 {V(vFW)}, {V(vL)}, 12, {S(sT0)}")
    k(f"v_and_b32 {V(vGO+2)}, 4, {V(vL)}")
    k(f"v_mov_b32 {V(vGO+3)}, 0")

FIRST = []
def prologue():
    k(f"s_getpc_b64 {S(sPC,2)}")
    k.label("L_pc")
    if DIAG:
        k("s_memrealtime s[12:13]")
    k(f"s_cmp_ge_u32 {S(sWG)}, 256")
    k("s_cbranch_scc1 L_end")
    k("s_load_dwordx16 s[28:43], s[0:1], 0")
    k("s_load_dwordx8 s[44:51], s[0:1], 64")
    k("s_load_dwordx4 s[52:55], s[0:1], 96")
    k("s_load_dwordx2 s[56:57], s[0:1], 112")
    k.c("wave 0 of helpers 8..31 pulls a third of the code into L2")
    k(f"s_sub_u32 {S(sT0)}, {S(sWG)}, 8")
    k(f"s_cmp_ge_u32 {S(sT0)}, 24")
    k("s_cbranch_scc1 L_nopf")
    k(f"v_cmp_gt_u32 vcc, 64, {V(vTID)}")
    k(f"s_lshr_b32 {S(sT0)}, {S(sT0)}, 3")
    k(f"s_lshl_b32 {S(sT0)}, {S(sT0)}, 7")
    k(f"v_mul_u32_u24 {V(vL16)}, 384, {V(vTID)}")
    k(f"v_add_u32 {V(vL16)}, {S(sT0)}, {V(vL16)}")
    k("s_cbranch_vccz L_nopf")
    for q in range(2):
        k(f"v_min_u32 {V(vL16)}, L_table_end-L_pc-4, {V(vL16)}")
        k(f"global_load_dword {V(vDUM)}, {V(vL16)}, {S(sPC,2)}")
        k.vm = []
        if q == 0:
            k(f"v_add_u32 {V(vL16)}, {64*384}, {V(vL16)}")
    k.label("L_nopf")
    k(f"v_lshrrev_b32 {V(vONE)}, 6, {V(vTID)}")
    k(f"v_and_b32 {V(vL)}, 63, {V(vTID)}")
    k(f"v_readfirstlane_b32 {S(sW)}, {V(vONE)}")
    k(f"v_lshlrev_b32 {V(vL16)}, 4, {V(vL)}")
    if DIAG:
        k(f"v_mov_b32 {V(vSTAMP)}, 0")
        k("s_mov_b32 s101, 0")
    k(f"s_sub_u32 {S(sT0)}, {S(sWG)}, 32")
    k(f"s_and_b32 {S(sREP)}, {S(sT0)}, 7")
    k(f"s_lshr_b32 {S(sJ)}, {S(sT0)}, 3")
    k(f"s_mul_i32 {S(sCP)}, {S(sREP)}, 28")
    k(f"s_add_u32 {S(sCP)}, {S(sCP)}, {S(sJ)}")
    k(f"s_lshl_b32 {S(sT1)}, {S(sCP)}, 10")
    k(f"v_lshl_add_u32 {V(PRM+6)}, {V(vTID)}, 2, {S(sT1)}")
    p0x_addr(0)
    if not opt("lean", 1):
        p0x_addr(1)
        common()
        roles()
    for b, n in ((SRD_X0, 2048 * 896), (SRD_WS, WS_BYTES), (SRD_DBG, 256)):
        k(f"s_mov_b32 {S(b+2)}, {hex(n)}")
        k(f"s_mov_b32 {S(b+3)}, 0x20000")
    k(f"s_movk_i32 {S(sT4)}, {8*896}")
    k.wait(lg=0)
    srd_base(SRD_X0, 28)
    if opt("jitter", 0):
        k("s_memtime s[46:47]")
        k.wait(lg=0)
        k(f"s_mul_i32 s47, {S(sW)}, 0x3779b1")
        k("s_add_u32 s46, s46, s47")
        k.on = True
    if DIAG:
        k(f"v_writelane_b32 {V(vSTAMP)}, s12, 0")
    elif ENC >= 0:
        stamp(0)
    k(f"s_cmp_lt_u32 {S(sWG)}, 32")
    branch("s_cbranch_scc1", "L_clear")
    p0x_loads()
    for i in range(6):
        k(f"global_load_dword {V(PRM+i)}, {V(PRM+6)}, {S(30+2*i,2)}")
    FIRST.extend(k.vm)
    branch("s_branch", "L_main")
    label("L_clear")
    k.forget()
    srd_base(SRD_WS, 56)
    srd_base(SRD_DBG, 54)
    if opt("lean", 1):
        common()
    z = HZ
    for i in range(4):
        k(f"v_mov_b32 {V(z+i)}, 0")
    k(f"s_lshl_b32 {S(sT5)}, {S(sWG)}, 7")
    k(f"s_add_u32 {S(sT5)}, {S(sT5)}, {hex(FLG_W)}")
    l1, l2 = newlab("h1"), newlab("h2")
    k(f"s_cmp_lt_u32 {S(sWG)}, 28")
    branch("s_cbranch_scc1", l1)
    k(f"s_sub_u32 {S(sT2)}, {S(sWG)}, 28")
    k(f"s_lshl2_add_u32 {S(sT0)}, {S(sT2)}, {S(sW)}")
    k(f"s_mul_i32 {S(sT0)}, {S(sT0)}, {(ZEND - 0x8000) // 16}")
    k(f"s_add_u32 {S(sT0)}, {S(sT0)}, 0x8000")
    k(f"s_add_u32 {S(sT1)}, {S(sT0)}, {(ZEND - 0x8000) // 16}")
    for q in range(opt("zwait", 0)):
        k(f"v_lshlrev_b32 {V(z+4)}, 12, {V(vTID)}")
        k(f"buffer_load_dword {V(z+5)}, {V(z+4)}, {S(SRD_X0,4)}, {S(sT0)} offen offset:{1024*q}")
        k.wait(vm=0)
    lz = newlab("z")
    label(lz)
    for i in range(2):
        k(f"buffer_store_dwordx4 {V(z,4)}, {V(vL16)}, {S(SRD_WS,4)}, {S(sT0)} offen offset:{1024*i} sc1")
    k(f"s_add_u32 {S(sT0)}, {S(sT0)}, 2048")
    k(f"s_cmp_lt_u32 {S(sT0)}, {S(sT1)}")
    k(f"s_cbranch_scc1 {lz}")
    k(f"s_lshl_b32 {S(sT0)}, {S(sT2)}, 2")
    k.wait(vm=0)
    k("s_barrier")
    k(f"s_cmp_lg_u32 {S(sW)}, 1")
    branch("s_cbranch_scc1", "L_end2")
    k("s_mov_b64 exec, 1")
    k(f"buffer_store_dword {V(vONE)}, {V(z)}, {S(SRD_DBG,4)}, {S(sT0)} offen offset:192 sc1")
    k("s_mov_b64 exec, -1")
    branch("s_branch", "L_end2")
    label(l1)
    k.forget()
    k(f"s_cmp_gt_u32 {S(sWG)}, 2")
    branch("s_cbranch_scc1", "L_helper")
    k(f"s_lshl2_add_u32 {S(sT0)}, {S(sWG)}, {S(sW)}")
    k(f"s_lshl_b32 {S(sT0)}, {S(sT0)}, 12")
    k(f"s_cmp_eq_u32 {S(sWG)}, 0")
    k(f"s_cselect_b32 {S(sT1)}, {hex(STATS[0] + 0x4000)}, 0")
    k(f"s_cselect_b32 {S(sT2)}, 0, 124")
    k(f"s_add_u32 {S(sT0)}, {S(sT0)}, {S(sT1)}")
    k(f"s_sub_u32 {S(sT0)}, {S(sT0)}, 0x4000")
    for i in range(4):
        k(f"buffer_store_dwordx4 {V(z,4)}, {V(vL16)}, {S(SRD_WS,4)}, {S(sT0)} offen offset:{1024*i} sc1")
    k(f"s_lshl2_add_u32 {S(sT0)}, {S(sWG)}, {S(sT2)}")
    stamp(4)
    k.wait(vm=0)
    k("s_barrier")
    stamp(5)
    k(f"s_cmp_lg_u32 {S(sW)}, 2")
    branch("s_cbranch_scc1", "L_helper")
    k("s_mov_b64 exec, 1")
    k(f"buffer_store_dword {V(vONE)}, {V(z)}, {S(SRD_DBG,4)}, {S(sT0)} offen sc1")
    k("s_mov_b64 exec, -1")
    branch("s_branch", "L_helper")
    label("L_main")
    k.forget()

def w2_lane_src(d, pitch, t0, t1):
    k(f"v_lshrrev_b32 {V(t0)}, 3, {V(vL)}")
    k(f"v_mul_u32_u24 {V(d)}, {pitch}, {V(t0)}")
    k(f"v_and_b32 {V(t0)}, 7, {V(vL)}")
    k(f"v_bfe_u32 {V(t1)}, {V(vL)}, 4, 1")
    k(f"v_lshlrev_b32 {V(t1)}, 2, {V(t1)}")
    k(f"v_xor_b32 {V(t0)}, {V(t0)}, {V(t1)}")
    k(f"v_lshl_add_u32 {V(d)}, {V(t0)}, 4, {V(d)}")

def h_prefetch():
    k.forget()
    a, f, d = WK, WK + 1, WK + 2
    poll_load(vGO, vGO + 1, 0, 192, SRD_DBG)
    k(f"s_and_b32 {S(sT0)}, {S(sWG)}, 7")
    k(f"s_lshr_b32 {S(sT1)}, {S(sWG)}, 4")
    k(f"s_lshl1_add_u32 {S(sGAM)}, {S(sT0)}, {S(sT1)}")
    k(f"s_bfe_u32 {S(sHH)}, {S(sWG)}, 0x10003")
    k(f"s_mul_i32 {S(sHL)}, {S(sGAM)}, {4*112*1024}")
    k(f"s_lshl2_add_u32 {S(sT3)}, {S(sHH)}, {S(sW)}")
    k(f"s_mul_i32 {S(sT3)}, {S(sT3)}, {28*1024}")
    k(f"s_add_u32 {S(sHL)}, {S(sHL)}, {S(sT3)}")
    k(f"s_lshl_b32 {S(sFG)}, {S(sGAM)}, {GL + 6}")
    k(f"s_add_u32 {S(sFG)}, {S(sFG)}, {hex(FLG_G + (PQ if FAST and opt('hpf', 0) == 2 else 0))}")
    k(f"v_min_u32 {V(f)}, 13, {V(vL)}")
    k(f"s_mul_i32 {S(sT2)}, {S(sW)}, 14")
    k(f"v_add_lshl_u32 {V(f)}, {V(f)}, {S(sT2)}, {GL}")
    k(f"v_min_u32 {V(a)}, 55, {V(vL)}")
    k(f"v_lshlrev_b32 {V(a)}, 7, {V(a)}")
    poll_check(vGO, vGO + 1, 0, 192, SRD_DBG)
    for ph in range(4):
        lp, go = newlab("hp"), newlab("hg")
        k(f"s_mov_b32 {S(sSPIN)}, 0")
        k(f"s_add_u32 {S(sT0)}, {S(sHL)}, {hex(HB + (ph >> 1)*H_SZ + (ph & 1)*2*112*1024)}")
        label(lp)
        k(f"s_sleep {opt('hsl', 1)}")
        poll_load(d, f, S(sFG), 4 * ph)
        k(f"s_add_u32 {S(sSPIN)}, {S(sSPIN)}, 1")
        k(f"v_cmp_eq_u32 vcc, 0, {V(d)}")
        k(f"s_cmp_gt_u32 {S(sSPIN)}, 150")
        k(f"s_cbranch_scc1 L_end3")
        k(f"s_cbranch_vccnz {lp}")
        for q in range(4):
            k(f"buffer_load_dword {V(d+1+q)}, {V(a)}, {S(SRD_WS,4)}, {S(sT0)} offen sc1")
            k(f"s_add_u32 {S(sT0)}, {S(sT0)}, 7168")
        k.vm = []
    label("L_end3")

HZ = WK + 64
SPL = opt("spl", 11)
def helper():
    label("L_helper")
    k.c("=== helper workgroups: W1 -> centred fragments, second half of W2 -> fragments")
    k.forget()
    srd(SRD_W1, 48, 448 * 3584)
    srd(SRD_W2, 50, 1792 * 896)
    z = HZ
    F = WK + 112
    G = WK + 168
    t, a1, a2, aE, aO = z + 8, z + 10, z + 11, z + 12, z + 13
    IMG2 = 57344
    w2_lane_src(a1, 3584, t, t + 1)
    w2_lane_src(a2, 896, t, t + 1)
    if opt("abl", 0) & 32:
        k("s_endpgm")
    if opt("hwait", 3):
        k.c("prefetch a share of C_im; the bulk weight reads start once memory has served these first-needed lines")
        srd(SRD_OUT, 28 if opt("hwait", 3) < 3 else 40, 2048 * 896 if opt("hwait", 3) < 3 else 448 * 512)
        k(f"s_lshl_b32 {S(sT0)}, {S(sWG)}, {16 if opt('hwait', 3) < 3 else 13}")
        k(f"v_lshlrev_b32 {V(t)}, {(8, 8, 5)[opt('hwait', 3) - 1]}, {V(vTID)}")
        if opt("hwait", 3) == 2:
            k(f"v_and_b32 {V(t)}, 0xc000, {V(t)}")
        k(f"buffer_load_dword {V(t+1)}, {V(t)}, {S(SRD_OUT,4)}, {S(sT0)} offen")
        k.wait(vm=0)
    if opt("hdelay", 0):
        k(f"s_sleep {opt('hdelay', 0)}")
    k(f"s_mul_i32 {S(sT0)}, {S(sW)}, {112*3584}")
    k(f"s_lshl_b32 {S(sT1)}, {S(sWG)}, 7")
    k(f"s_add_u32 {S(sT0)}, {S(sT0)}, {S(sT1)}")
    k(f"s_mul_i32 {S(sT3)}, {S(sW)}, 14336")
    k(f"s_mov_b32 m0, {S(sT3)}")
    for c in range(14):
        k(f"buffer_load_dwordx4 {V(a1)}, {S(SRD_W1,4)}, {S(sT0)} offen lds", tag="w1")
        k(f"s_add_u32 m0, m0, 1024")
        k(f"s_add_u32 {S(sT0)}, {S(sT0)}, {8*3584}")
    k(f"v_bfe_u32 {V(t+1)}, {V(vL)}, 2, 2")
    k(f"v_lshlrev_b32 {V(t)}, 7, {V(t+1)}")
    k(f"v_bfe_u32 {V(t+1)}, {V(vL)}, 3, 1")
    k(f"v_lshl_add_u32 {V(t)}, {V(t+1)}, 6, {V(t)}")
    k(f"v_bfe_u32 {V(t+1)}, {V(vL)}, 4, 1")
    k(f"v_lshl_add_u32 {V(t)}, {V(t+1)}, 5, {V(t)}")
    k(f"v_and_b32 {V(t+1)}, 3, {V(vL)}")
    k(f"v_lshl_add_u32 {V(t)}, {V(t+1)}, 3, {V(t)}")
    k(f"v_lshrrev_b32 {V(t+1)}, 5, {V(vL)}")
    k(f"v_lshl_add_u32 {V(a1)}, {V(t+1)}, 10, {V(t)}")
    k(f"v_lshl_add_u32 {V(aE)}, {V(t+1)}, 9, {V(t)}")
    k(f"s_lshl_b32 {S(sT0)}, {S(sCH)}, 6")
    k(f"v_xor_b32 {V(a1)}, {S(sT0)}, {V(a1)}")
    k(f"s_mul_i32 {S(sT0)}, {S(sNH)}, {2048 if SPL else 28672}")
    k(f"v_add_u32 {V(a1)}, {S(sT0)}, {V(a1)}")
    k(f"s_lshl_b32 {S(sT0)}, {S(sNH)}, 6")
    k(f"v_xor_b32 {V(aE)}, {S(sT0)}, {V(aE)}")
    k(f"v_xor_b32 {V(aO)}, 64, {V(aE)}")
    k(f"s_mul_i32 {S(sT1)}, {S(sW)}, 7")
    k(f"s_lshr_b32 {S(sT0)}, {S(sT1)}, 1")
    k(f"s_lshl_b32 {S(sT0)}, {S(sT0)}, 11")
    k(f"s_add_u32 {S(sT0)}, {S(sT0)}, {IMG2}")
    k(f"v_add_u32 {V(aE)}, {S(sT0)}, {V(aE)}")
    k(f"s_add_u32 {S(sT0)}, {S(sT1)}, 1")
    k(f"s_lshr_b32 {S(sT0)}, {S(sT0)}, 1")
    k(f"s_lshl_b32 {S(sT0)}, {S(sT0)}, 11")
    k(f"s_add_u32 {S(sT0)}, {S(sT0)}, {IMG2}")
    k(f"v_add_u32 {V(aO)}, {S(sT0)}, {V(aO)}")
    k.wait(vm=0)
    k("s_barrier")
    stamp(3)
    for ks in range(14):
        for u in range(2):
            k(f"ds_read_b64_tr_b16 {V(F+4*ks+2*u,2)}, {V(a1)} offset:{ks*(4096 if SPL else 2048)+u*512}")
    k(f"s_and_b32 {S(sHL)}, {S(sWG)}, 3")
    k(f"s_lshl3_add_u32 {S(sHL)}, {S(sHL)}, {S(sW)}")
    k(f"s_add_u32 {S(sHL)}, {S(sHL)}, 4")
    k(f"s_mul_i32 {S(sHL)}, {S(sHL)}, {56*896}")
    k(f"s_lshr_b32 {S(sHS)}, {S(sWG)}, 2")
    k(f"s_lshl_b32 {S(sHS)}, {S(sHS)}, 7")
    k(f"s_add_u32 {S(sHL)}, {S(sHL)}, {S(sHS)}")
    k(f"s_mul_i32 {S(sT3)}, {S(sW)}, 7168")
    k(f"s_add_u32 m0, {S(sT3)}, {IMG2}")
    for _ in range(7):
        k(f"buffer_load_dwordx4 {V(a2)}, {S(SRD_W2,4)}, {S(sHL)} offen lds", tag="w2")
        k(f"s_add_u32 m0, m0, 1024")
        k(f"s_add_u32 {S(sHL)}, {S(sHL)}, {8*896}")
    c, u_ = z, z + 2
    for i in range(56):
        k(f"v_dot2c_f32_bf16 {V(c)}, {S(sONES)}, {V(F+i)}")
    k(f"v_mov_b32 {V(u_)}, {V(c)}")
    k(f"v_permlane32_swap_b32 {V(c)}, {V(u_)}")
    k(f"v_add_f32 {V(c)}, {V(c)}, {V(u_)}")
    k(f"v_lshlrev_b32 {V(t)}, 2, {V(vTID)}")
    k(f"v_add_u32 {V(t)}, 0x18000, {V(t)}")
    k(f"ds_write_b32 {V(t)}, {V(c)}")
    k(f"v_xor_b32 {V(t)}, 256, {V(t)}")
    k.wait(lg=0)
    k("s_barrier")
    k(f"ds_read_b32 {V(u_)}, {V(t)}")
    k(f"s_lshl2_add_u32 {S(sT1)}, {S(sWG)}, {S(sW)}")
    k(f"s_mul_i32 {S(sT0)}, {S(sT1)}, 14336")
    k(f"s_add_u32 {S(sT0)}, {S(sT0)}, {hex(W1C)}")
    if SPL:
        k(f"s_mul_i32 {S(sT2)}, {S(sNH)}, {14336 - 1024}")
        k(f"s_sub_u32 {S(sT0)}, {S(sT0)}, {S(sT2)}")
        poll_load(vGO, vGO + 1, 0, 192, SRD_DBG)
    def fl(off):
        k("s_mov_b64 exec, 1")
        k(f"buffer_store_dword {V(vONE)}, {V(z+1)}, {S(SRD_WS,4)}, {S(sT5)} offen offset:{off} sc1")
        k("s_mov_b64 exec, -1")
    k(f"s_mul_i32 {S(sT1)}, {S(sT1)}, 7168")
    k(f"s_add_u32 {S(sT1)}, {S(sT1)}, {hex(W2T)}")
    k(f"v_add_f32 {V(c)}, {V(c)}, {V(u_)}")
    k(f"v_mul_f32 {V(c)}, {f2u(-1.0/448)}, {V(c)}")
    E, tt, tq = z + 16, z + 4, z + 6
    k(f"v_mov_b32 {V(E)}, {V(c)}")
    k(f"v_mov_b32 {V(E+1)}, {V(c)}")
    for i in range(56):
        k(f"v_lshlrev_b32 {V(tt)}, 16, {V(F+i)}")
        k(f"v_and_b32 {V(tt+1)}, {S(sHIM)}, {V(F+i)}")
        pk("add", V(tt, 2), V(tt, 2), V(E, 2))
        k(f"v_cvt_pk_bf16_f32 {V(F+i)}, {V(tt)}, {V(tt+1)}")
        if opt("efb", 1) and i < 55:
            pk("add", V(E, 2), V(tt, 2), V(c, 2), bc=(1,))
            k(f"v_lshlrev_b32 {V(tq)}, 16, {V(F+i)}")
            k(f"v_and_b32 {V(tq+1)}, {S(sHIM)}, {V(F+i)}")
            pk("add", V(E, 2), V(E, 2), V(tq, 2), neg=(1,))
        if i % 4 == 3:
            ks = i // 4
            if SPL:
                k(f"buffer_store_dwordx4 {V(F+4*ks,4)}, {V(vL16)}, {S(SRD_WS,4)}, {S(sT0)} offen offset:{2048*(ks%2)} sc1", tag=("c", ks))
                if ks % 2 == 1:
                    k(f"s_add_u32 {S(sT0)}, {S(sT0)}, 4096")
                if ks == SPL:
                    k.wait_tag_vm(("c", 6))
                    poll_check(vGO, vGO + 1, 0, 192, SRD_DBG)
                    k("s_barrier")
                    wave0(lambda: fl(32))
                    stamp(2)
            else:
                k(f"buffer_store_dwordx4 {V(F+4*ks,4)}, {V(vL16)}, {S(SRD_WS,4)}, {S(sT0)} offen offset:{1024*(ks%4)} sc1")
                if ks % 4 == 3:
                    k(f"s_add_u32 {S(sT0)}, {S(sT0)}, 4096")
    if not SPL:
        poll_load(vGO, vGO + 1, 0, 192, SRD_DBG)
        poll_check(vGO, vGO + 1, 0, 192, SRD_DBG)
    k.wait(vm=0)
    k("s_barrier")
    wave0(lambda: fl(0))
    stamp(1)
    for i in range(7):
        for u in range(2):
            k(f"ds_read_b64_tr_b16 {V(G+4*i+2*u,2)}, {V(aO if i & 1 else aE)} offset:{(i//2)*2048+u*1024}")
    for i in range(7):
        k(f"buffer_store_dwordx4 {V(G+4*i,4)}, {V(vL16)}, {S(SRD_WS,4)}, {S(sT1)} offen offset:{1024*(i%4)} sc1")
        if i == 3:
            k(f"s_add_u32 {S(sT1)}, {S(sT1)}, 4096")
    k.wait(vm=0)
    k("s_barrier")
    wave0(lambda: fl(64))
    stamp(25)
    label("L_end2")
    if opt("hpf", 0):
        h_prefetch()
    if DIAG:
        k(f"s_lshl_b32 {S(sT0)}, {S(sWG)}, 10")
        k(f"s_add_u32 {S(sT0)}, {S(sT0)}, {hex(STAMP)}")
        k(f"v_lshlrev_b32 {V(WK)}, 2, {V(vTID)}")
        k(f"buffer_store_dword {V(vSTAMP)}, {V(WK)}, {S(SRD_WS,4)}, {S(sT0)} offen")
    k("s_endpgm")

KW = W1R
PRM = KW
TBL = KW + 8
GA = KW + 20
TA = GA + 17
vKW, vKR, vKC, vDSK = KW + 42, KW + 43, KW + 44, KW + 45

def table_words():
    def bf16v(m):
        u = struct.unpack("<I", struct.pack("<f", float(m)))[0]
        u = ((u + 0x7FFF + ((u >> 16) & 1)) >> 16) << 16
        return int(struct.unpack("<f", struct.pack("<I", u))[0])
    rowv = list(range(8)) + [256, 258, 260, 262, 512, 516, 768, 772, 1024, 1280, 1536, 1792, 2048]
    def idx(m):
        if m < 0:
            return (KC0 + 4096 + 64) // 8
        l = bf16v(m)
        r = [r for r, a in enumerate(rowv) if l >= a and (l - a) % 8 == 0 and l - a < 256][-1]
        return (r % 16) * 33 + (l - rowv[r]) // 8 + (SCR_ST // 8 if r >= 16 else 0)
    rows = []
    for lam in range(128):
        e = [idx(2047 - 16 * lam - i) for i in range(17)] + [0] * 7
        rows.append([e[2 * i] | (e[2 * i + 1] << 16) for i in range(12)])
    out = []
    for qd in range(3):
        for lam in range(128):
            out.append(rows[lam][4 * qd:4 * qd + 4])
    return out

def addr_conv():
    t0, t1, t2, t3 = KW + 100, KW + 101, KW + 102, KW + 103
    r16, g4, cc = KW + 104, KW + 105, KW + 106
    o = []
    e = o.append
    e(f"v_and_b32 {V(r16)}, 15, {V(vL)}")
    e(f"v_lshrrev_b32 {V(g4)}, 4, {V(vL)}")
    e(f"v_and_b32 {V(cc)}, 3, {V(vL)}")
    e(f"s_mul_i32 {S(sSCR)}, {S(sW)}, {SCR_ST}")
    e(f"s_add_u32 {S(sSCR)}, {S(sSCR)}, {SCR}")
    e(f"s_mul_i32 {S(sSCH)}, {S(sCH)}, {2*SCR_ST}")
    e(f"s_add_u32 {S(sSCH)}, {S(sSCH)}, {SCR}")
    e(f"v_lshl_add_u32 {V(vKW)}, {V(vL)}, 3, {S(sSCR)}")
    e(f"v_mul_u32_u24 {V(vKR)}, {ROW_ST}, {V(r16)}")
    e(f"v_lshl_add_u32 {V(vKR)}, {V(g4)}, 4, {V(vKR)}")
    e(f"v_add_u32 {V(vKR)}, {S(sSCR)}, {V(vKR)}")
    e(f"v_mul_u32_u24 {V(t0)}, 132, {V(g4)}")
    e(f"v_add_u32 {V(t0)}, {V(t0)}, {V(r16)}")
    e(f"s_lshl2_add_u32 {S(sT2)}, {S(sNH)}, {S(sSCH)}")
    e(f"v_lshl_add_u32 {V(TA)}, {V(t0)}, 3, {S(sT2)}")
    e(f"v_add_u32 {V(TA+1)}, {SCR_ST}, {V(TA)}")
    e(f"v_and_b32 {V(t0)}, 127, {V(vTID)}")
    e(f"s_add_u32 {S(sT2)}, {S(sSCH)}, {KC0}")
    e(f"v_lshl_add_u32 {V(vKC)}, {V(t0)}, 5, {S(sT2)}")
    e(f"v_lshrrev_b32 {V(t0)}, 5, {V(vL)}")
    e(f"v_bfe_u32 {V(t1)}, {V(vL)}, 2, 2")
    e(f"v_lshlrev_b32 {V(t3)}, 9, {V(t0)}")
    e(f"v_lshl_add_u32 {V(t3)}, {V(t1)}, 7, {V(t3)}")
    e(f"v_bfe_u32 {V(t1)}, {V(vL)}, 3, 1")
    e(f"v_lshl_add_u32 {V(t3)}, {V(t1)}, 6, {V(t3)}")
    e(f"v_bfe_u32 {V(t1)}, {V(vL)}, 4, 1")
    e(f"v_lshl_add_u32 {V(t3)}, {V(t1)}, 5, {V(t3)}")
    e(f"v_lshl_add_u32 {V(t3)}, {V(cc)}, 3, {V(t3)}")
    e(f"s_mul_i32 {S(sT2)}, {S(sW)}, {WREG}")
    e(f"v_add_u32 {V(vW2R)}, {S(sT2)}, {V(t3)}")
    e(f"v_xor_b32 {V(vW2R+1)}, 64, {V(vW2R)}")
    e(f"v_lshrrev_b32 {V(t0)}, 3, {V(vTID)}")
    e(f"v_and_b32 {V(t1)}, 0x70, {V(vL16)}")
    e(f"v_lshl_add_u32 {V(vCX)}, {V(t0)}, 8, {V(t1)}")
    e(f"v_lshrrev_b32 {V(t0)}, 4, {V(vTID)}")
    e(f"v_and_b32 {V(t2)}, 8, {V(vL)}")
    e(f"v_lshl_add_u32 {V(t2)}, {V(t0)}, 7, {V(t2)}")
    e(f"v_lshl_add_u32 {V(t2)}, {V(cc)}, 5, {V(t2)}")
    e(f"v_bfe_u32 {V(t1)}, {V(vL)}, 2, 1")
    e(f"v_lshl_add_u32 {V(t2)}, {V(t1)}, 4, {V(t2)}")
    e(f"v_add_u32 {V(vUW)}, {UARR+480}, {V(t2)}")
    e(f"s_mul_i32 {S(sT2)}, {S(sCH)}, {SCR_ST-1024}")
    e(f"s_add_u32 {S(sT2)}, {S(sT2)}, {SCR}")
    e(f"v_add_u32 {V(vXW)}, {S(sT2)}, {V(t2)}")
    e(f"v_and_b32 {V(t0)}, 1, {V(vL)}")
    e(f"v_xor_b32 {V(t0)}, 1, {V(t0)}")
    e(f"v_mul_u32_u24 {V(t1)}, {SCR_ST+64-2}, {V(t0)}")
    e(f"v_lshlrev_b32 {V(t2)}, 1, {V(r16)}")
    e(f"v_sub_u32 {V(t1)}, {V(t1)}, {V(t2)}")
    e(f"v_lshl_add_u32 {V(t1)}, {V(g4)}, 4, {V(t1)}")
    e(f"s_lshl_b32 {S(sT3)}, {S(sNH)}, 8")
    e(f"s_sub_u32 {S(sT2)}, {S(sSCH)}, {S(sT3)}")
    e(f"s_add_u32 {S(sT2)}, {S(sT2)}, {KC0 + 2*2031 - 512 - 192}")
    e(f"v_add_u32 {V(vKF)}, {S(sT2)}, {V(t1)}")
    for a in range(1, 4):
        e(f"v_subrev_u32 {V(vKF+a)}, {1024*a}, {V(vKF)}")
    e(f"v_lshlrev_b32 {V(t1)}, 5, {V(r16)}")
    e(f"v_lshl_add_u32 {V(t1)}, {V(g4)}, 4, {V(t1)}")
    e(f"s_mul_i32 {S(sT2)}, {S(sCH)}, {U_ST}")
    e(f"s_sub_u32 {S(sT2)}, {S(sT2)}, {S(sT3)}")
    e(f"s_add_u32 {S(sT2)}, {S(sT2)}, {UARR + 480 - 32 - 192}")
    e(f"v_add_u32 {V(vUF)}, {S(sT2)}, {V(t1)}")
    e(f"v_mov_b32 {V(vXR)}, {V(vKW)}")
    e(f"v_add_u32 {V(vEXW)}, {S(sSCR)}, {V(vL16)}")
    e(f"s_xor_b32 {S(sT2)}, {S(sW)}, 1")
    e(f"s_mul_i32 {S(sT2)}, {S(sT2)}, {SCR_ST}")
    e(f"s_add_u32 {S(sT2)}, {S(sT2)}, {SCR}")
    e(f"v_add_u32 {V(vEXR)}, {S(sT2)}, {V(vL16)}")
    e(f"v_lshrrev_b32 {V(t0)}, 3, {V(vL)}")
    e(f"v_mul_u32_u24 {V(vCO)}, 114688, {V(t0)}")
    e(f"v_and_b32 {V(t0)}, 7, {V(vL)}")
    e(f"s_and_b32 {S(sT2)}, {S(sCP)}, 1")
    e(f"s_lshl_b32 {S(sT3)}, {S(sT2)}, 2")
    e(f"v_xor_b32 {V(t0)}, {S(sT3)}, {V(t0)}")
    e(f"v_lshl_add_u32 {V(vCO)}, {V(t0)}, 4, {V(vCO)}")
    e(f"s_lshl_b32 {S(sT2)}, {S(sT2)}, 3")
    e(f"s_lshr_b32 {S(sXQi)}, {S(sCP)}, 1")
    e(f"s_lshl_b32 {S(sXQi)}, {S(sXQi)}, 14")
    e(f"s_add_u32 {S(sXQi)}, {S(sXQi)}, {S(sT2)}")
    e(f"s_add_u32 {S(sXQi)}, {S(sXQi)}, {hex(XQ)}")
    e(f"s_lshl_b32 {S(sT2)}, {S(sCP)}, 1")
    e(f"s_add_u32 {S(sT2)}, {S(sT2)}, {S(sCH)}")
    e(f"s_lshl_b32 {S(sT2)}, {S(sT2)}, 7")
    e(f"s_mul_i32 {S(sT3)}, {S(sNH)}, {8*114688}")
    e(f"s_add_u32 {S(sT2)}, {S(sT2)}, {S(sT3)}")
    e(f"v_add_u32 {V(vCO)}, {S(sT2)}, {V(vCO)}")
    e(f"v_lshlrev_b32 {V(vFP)}, 4, {V(vTID)}")
    e(f"v_max_u32 {V(vFP)}, 512, {V(vFP)}")
    e(f"s_mov_b32 {S(sPERM0)}, 0x05040100")
    e(f"s_mov_b32 {S(sPERM1)}, 0x07060302")
    e(f"s_lshl_b32 {S(sT2)}, {S(sJ)}, 2")
    e(f"s_add_u32 {S(sT2)}, {S(sT2)}, {S(sW)}")
    e(f"s_mul_i32 {S(sWL)}, {S(sT2)}, 28672")
    e(f"s_add_u32 {S(sWL)}, {S(sWL)}, {hex(W1C)}")
    e(f"s_lshr_b32 {S(sT2)}, {S(sT2)}, 1")
    e(f"s_lshl_b32 {S(sT2)}, {S(sT2)}, 7")
    e(f"s_add_u32 {S(sT2)}, {S(sT2)}, {hex(FLG_W)}")
    e(f"v_mov_b32 {V(vWF+1)}, {S(sT2)}")
    e(f"s_lshl2_add_u32 {S(sT2)}, {S(sDS)}, {S(sW)}")
    e(f"s_mul_i32 {S(sW2L)}, {S(sT2)}, 28672")
    e(f"s_add_u32 {S(sW2L)}, {S(sW2L)}, {hex(W2T)}")
    e(f"s_lshl_b32 {S(sT2)}, {S(sT2)}, 7")
    e(f"s_add_u32 {S(sT2)}, {S(sT2)}, {hex(FLG_W+64)}")
    e(f"v_mov_b32 {V(vWF+2)}, {S(sT2)}")
    e(f"s_mov_b32 {S(sLDT2)}, {S(sT2)}")
    e(f"s_mul_i32 {S(sXT)}, {S(sGAM)}, 114688")
    e(f"s_add_u32 {S(sXT)}, {S(sXT)}, {hex(X1T)}")
    z = KW + 108
    for i in range(4):
        e(f"v_mov_b32 {V(z+i)}, 0")
    e(f"v_min_u32 {V(t0)}, 29, {V(vL)}")
    e(f"v_lshlrev_b32 {V(t0)}, 4, {V(t0)}")
    e(f"v_add_u32 {V(t0)}, {UARR}, {V(t0)}")
    e(f"ds_write_b128 {V(t0)}, {V(z,4)}")
    e(f"ds_write_b128 {V(t0)}, {V(z,4)} offset:{U_ST}")
    e(f"v_and_b32 {V(t0)}, 0x70, {V(vL16)}")
    e(f"v_add_u32 {V(t0)}, {S(sSCR)}, {V(t0)}")
    e(f"ds_write_b128 {V(t0)}, {V(z,4)} offset:{KC0+4096}")
    return o

ROWST = opt("rowst", 1)
redg = lambda layer: 1088 if layer and ROWST else RED_G
def addr_ffn(layer):
    t0, t1, t2, t3 = WK + 84, WK + 85, WK + 86, WK + 87
    g4, rho, cc = WK + 88, WK + 89, WK + 90
    o = []
    e = o.append
    e(f"v_lshrrev_b32 {V(g4)}, 4, {V(vL)}")
    e(f"v_bfe_u32 {V(rho)}, {V(vL)}, 2, 2")
    e(f"v_and_b32 {V(cc)}, 3, {V(vL)}")
    e(f"v_lshrrev_b32 {V(t0)}, 5, {V(vL)}")
    e(f"v_bfe_u32 {V(t1)}, {V(vL)}, 4, 1")
    e(f"v_bfe_u32 {V(t2)}, {V(vL)}, 3, 1")
    e(f"v_lshlrev_b32 {V(t3)}, 7, {V(rho)}")
    e(f"v_lshl_add_u32 {V(t3)}, {V(t2)}, 6, {V(t3)}")
    e(f"v_lshl_add_u32 {V(vXA0)}, {V(t0)}, 10, {V(t3)}")
    e(f"v_lshl_add_u32 {V(vXA0)}, {V(cc)}, 4, {V(vXA0)}")
    e(f"v_lshl_add_u32 {V(vXA0)}, {V(t1)}, 3, {V(vXA0)}")
    e(f"v_xor_b32 {V(vXA1)}, 64, {V(vXA0)}")
    e(f"s_lshl_b32 {S(sT2)}, {S(sHH)}, 6")
    e(f"v_xor_b32 {V(t3)}, {S(sT2)}, {V(t3)}")
    e(f"s_lshl_b32 {S(sT2)}, {S(sNH)}, 5")
    e(f"s_lshl3_add_u32 {S(sT2)}, {S(sCH)}, {S(sT2)}")
    e(f"v_and_b32 {V(t0)}, 16, {V(vL16)}")
    e(f"v_add3_u32 {V(t3)}, {V(t3)}, {V(t0)}, {S(sT2)}")
    e(f"v_bfe_u32 {V(t0)}, {V(vL)}, 1, 1")
    e(f"v_mul_u32_u24 {V(vST)}, {XHALF}, {V(t0)}")
    e(f"v_lshl_add_u32 {V(vST)}, {V(g4)}, 10, {V(vST)}")
    e(f"v_add_u32 {V(vST)}, {V(vST)}, {V(t3)}")
    e(f"v_lshl_add_u32 {V(t0)}, {V(g4)}, 1, {V(t0)}")
    e(f"v_lshl_add_u32 {V(vRES)}, {V(t0)}, 10, {V(t3)}")
    e(f"s_lshl_b32 {S(sT2)}, {S(sDS)}, 13")
    e(f"v_add_u32 {V(vRES)}, {S(sT2)}, {V(vRES)}")
    e(f"s_mul_i32 {S(sT2)}, {S(sW)}, {RED_W}")
    e(f"v_add_u32 {V(vRW)}, {S(sT2)}, {V(vL16)}")
    if layer and ROWST:
        e(f"v_and_b32 {V(t0)}, 7, {V(vL)}")
        e(f"v_lshrrev_b32 {V(t2)}, 3, {V(vL)}")
        e(f"v_lshlrev_b32 {V(t1)}, 4, {V(t2)}")
        e(f"v_lshl_add_u32 {V(vAT)}, {V(t0)}, 3, {V(t2)}")
        e(f"v_lshlrev_b32 {V(vAT)}, 2, {V(vAT)}")
    else:
        e(f"v_lshrrev_b32 {V(t0)}, 3, {V(vL)}")
        e(f"v_and_b32 {V(t1)}, 0x70, {V(vL16)}")
    e(f"v_mul_u32_u24 {V(vRR)}, {redg(layer)}, {V(t0)}")
    e(f"s_lshl_b32 {S(sT2)}, {S(sW)}, 7")
    e(f"v_add3_u32 {V(vRR)}, {V(vRR)}, {V(t1)}, {S(sT2)}")
    e(f"s_and_b32 {S(sT2)}, {S(sGAM)}, 8")
    e(f"s_bfe_u32 {S(sT3)}, {S(sGAM)}, 0x20001")
    e(f"s_add_u32 {S(sT2)}, {S(sT2)}, {S(sT3)}")
    e(f"s_lshl2_add_u32 {S(sT2)}, {S(sCH)}, {S(sT2)}")
    e(f"s_lshl1_add_u32 {S(sT3)}, {S(sHH)}, {S(sNH)}")
    e(f"s_and_b32 {S(sT4)}, {S(sGAM)}, 1")
    if layer and ROWST:
        e(f"v_and_b32 {V(t2)}, 0x30, {V(t1)}")
        e(f"v_lshrrev_b32 {V(t3)}, 5, {V(vL)}")
    else:
        e(f"v_lshlrev_b32 {V(t2)}, 4, {V(cc)}")
        e(f"v_bfe_u32 {V(t3)}, {V(vL)}, 2, 1")
    if layer == 0:
        e(f"s_lshl2_add_u32 {S(sT2)}, {S(sT2)}, {S(sT3)}")
        e(f"s_lshl1_add_u32 {S(sT2)}, {S(sT2)}, {S(sT4)}")
        e(f"s_lshl_b32 {S(sT2)}, {S(sT2)}, 6")
        e(f"v_lshl_add_u32 {V(vAT)}, {V(t3)}, 2, {V(t2)}")
        e(f"v_lshrrev_b32 {V(t3)}, 5, {V(vL)}")
        e(f"v_lshl_add_u32 {V(vAT)}, {V(t3)}, 3, {V(vAT)}")
        e(f"v_add_u32 {V(vAT)}, {S(sT2)}, {V(vAT)}")
        e(f"v_lshrrev_b32 {V(t3)}, 2, {V(vL)}")
        e(f"v_lshl_add_u32 {V(vO)}, {V(t3)}, 14, {V(t2)}")
        e(f"s_lshl_b32 {S(sT5)}, {S(sDS)}, 18")
        e(f"s_add_u32 {S(sT2)}, {S(sT2)}, {S(sT5)}")
        e(f"v_add_u32 {V(vO)}, {S(sT2)}, {V(vO)}")
    else:
        e(f"s_lshl3_add_u32 {S(sT2)}, {S(sT2)}, {S(sT4)}")
        e(f"s_lshl2_add_u32 {S(sT2)}, {S(sT2)}, {S(sT3)}")
        e(f"s_lshl_b32 {S(sT2)}, {S(sT2)}, 1")
        e(f"v_add3_u32 {V(t2)}, {V(t2)}, {V(t3)}, {S(sT2)}")
        e(f"v_mul_u32_u24 {V(vO)}, 896, {V(t2)}")
        e(f"v_lshl_add_u32 {V(vO)}, {V(t0)}, 4, {V(vO)}")
        e(f"s_lshl_b32 {S(sT2)}, {S(sDS)}, 7")
        e(f"v_add_u32 {V(vO)}, {S(sT2)}, {V(vO)}")
    e(f"v_min_u32 {V(t0)}, 13, {V(vL)}")
    e(f"s_mul_i32 {S(sT2)}, {S(sW)}, 14")
    e(f"v_add_lshl_u32 {V(vF2P)}, {V(t0)}, {S(sT2)}, {GL or 4}")
    e(f"s_lshl2_add_u32 {S(sT3)}, {S(sJ)}, {S(sW)}")
    e(f"s_lshl_b32 {S(sT2)}, {S(sT3)}, {GL or 4}")
    e(f"v_mov_b32 {V(vFL)}, {S(sT2)}")
    e(f"s_mul_i32 {S(sT2)}, {S(sGAM)}, {4*112*1024}")
    e(f"s_add_u32 {S(sT2)}, {S(sT2)}, {hex(HB + layer*H_SZ)}")
    e(f"s_lshl_b32 {S(sT3)}, {S(sT3)}, 11")
    e(f"s_add_u32 {S(sHS)}, {S(sT2)}, {S(sT3)}")
    e(f"s_lshl2_add_u32 {S(sT3)}, {S(sHH)}, {S(sW)}")
    e(f"s_mul_i32 {S(sT3)}, {S(sT3)}, {28*1024}")
    e(f"s_add_u32 {S(sHL)}, {S(sT2)}, {S(sT3)}")
    e(f"s_lshl_b32 {S(sFG)}, {S(sGAM)}, {GL + 6 if GL else 11}")
    e(f"s_add_u32 {S(sFG)}, {S(sFG)}, {hex(FLG_G + layer*(8 if GL else 0x8000))}")
    e(f"s_add_u32 {S(sFP)}, {S(sFG)}, {PQ if FAST else 0}")
    if FAST and layer == 0:
        e(lambda: poll_load(vPL2, vF2P, S(sFP)))
    if layer:
        e(f"s_mov_b32 {S(SRD_OUT)}, s52")
        e(f"s_and_b32 {S(SRD_OUT+1)}, s53, 0xffff")
        e(f"s_mov_b32 {S(SRD_OUT+2)}, {hex(2048*896)}")
        e(f"s_mov_b32 {S(SRD_OUT+3)}, 0x20000")
    return o

def pk(op, d, a, b, c=None, bc=(), neg=(), emit=True):
    ops = [a, b] + ([c] if c is not None else [])
    n = len(ops)
    txt = f"v_pk_{op}_f32 {d}, " + ", ".join(ops)
    if bc:
        txt += " op_sel_hi:[" + ",".join("0" if i in bc else "1" for i in range(n)) + "]"
    if neg:
        m = "[" + ",".join("1" if i in neg else "0" for i in range(n)) + "]"
        txt += f" neg_lo:{m} neg_hi:{m}"
    if emit:
        k(txt)
    return txt

def cmul(d, a, b, t):
    assert d != a
    pk("mul", V(t, 2), V(a, 2), V(b, 2))
    pk("mul", V(t + 2, 2), V(a, 2), V(b + 2, 2))
    pk("fma", V(d, 2), V(a + 2, 2), V(b + 2, 2), V(t, 2), neg=(0,))
    pk("fma", V(d + 2, 2), V(a + 2, 2), V(b, 2), V(t + 2, 2))

NINIT = opt("ninit", 4)
NPG = opt("npg", 8)
TE = opt("te", 1)
def stub_targets():
    return ["L_ret0" if p <= 3 else "L_ret1" if p <= 5 else f"L_pg{p+2}" if p + 2 <= NPG else "L_ret2" for p in range(1, NPG + 1)]

def touch(n):
    tg = [["L_pg0" if TE else None, "L_pg1", "L_pg2", "L_pg3"], ["L_pg4", "L_pg5", "L_st0", "L_st1"],
          ["L_pg6" if NPG >= 6 else None, "L_pg7" if NPG >= 7 else None, "L_st2", "L_st3"]][n]
    k.c("instruction-cache warm-up: each wave runs one branch at the start of a later code page")
    k("s_mov_b64 exec, 0")
    for w in range(4):
        if tg[w]:
            k(f"s_cmp_eq_u32 {S(sW)}, {w}")
            k(f"s_cbranch_scc1 {tg[w]}")
    if n == 0 and not TE:
        k("s_branch L_ret0")
        k.raw(".p2align 12")
    k.label(f"L_ret{n}")
    k("s_mov_b64 exec, -1")

def table_loads():
    t0 = KW + 100
    k(f"v_and_b32 {V(t0)}, 127, {V(vTID)}")
    k(f"v_lshlrev_b32 {V(t0)}, 4, {V(t0)}")
    k(f"v_add_u32 {V(t0)}, L_table-L_pc+2048, {V(t0)}")
    for q in range(3):
        if q < 2:
            k(f"global_load_dwordx4 {V(TBL+4*q,4)}, {V(t0)}, {S(sPC,2)} offset:{2048*(q-1)}")
        else:
            k(f"global_load_dword {V(TBL+8)}, {V(t0)}, {S(sPC,2)} offset:2048")

def dt_setup():
    DT = KW + 46 + 12
    k.wait(lg=0)
    k(f"s_lshl_b32 {S(sT0)}, {S(sCH)}, 4")
    k(f"s_lshr_b32 {S(sLDT)}, {S(sLDT)}, {S(sT0)}")
    k(f"s_lshl_b32 {S(sLDT)}, {S(sLDT)}, 16")
    k(f"s_lshr_b32 {S(sDSK)}, {S(sDSK)}, {S(sT0)}")
    k(f"s_lshl_b32 {S(sDSK)}, {S(sDSK)}, 16")
    k(f"v_mov_b32 {V(DT)}, {f2u(1.4426950408889634)}")
    k(f"v_mul_f32 {V(DT)}, {S(sLDT)}, {V(DT)}")
    k(f"v_exp_f32 {V(DT)}, {V(DT)}")
    k(f"s_cmp_eq_u32 {S(sNH)}, 0")
    k(f"s_cselect_b32 {S(sDSK)}, {S(sDSK)}, 0")
    k(f"v_cvt_pk_bf16_f32 {V(DT)}, {V(DT)}, {V(DT)}")
    k(f"v_mov_b32 {V(vDSK)}, 0")
    k(f"v_lshlrev_b32 {V(DT)}, 16, {V(DT)}")
    k(f"v_writelane_b32 {V(vDSK)}, {S(sDSK)}, 0")

def warm_loads():
    if opt("warm", 1):
        k(f"s_sub_u32 {S(sT0)}, {S(sWG)}, 32")
        k(f"s_lshl2_add_u32 {S(sT0)}, {S(sT0)}, {S(sW)}")
        k(f"s_mul_i32 {S(sT0)}, {S(sT0)}, 1792")
        k(f"v_min_u32 {V(vDUM+1)}, 13, {V(vL)}")
        k(f"v_lshl_add_u32 {V(vDUM+1)}, {V(vDUM+1)}, 7, {S(sT0)}")
        for q in range(opt("warm", 1)):
            k(f"global_load_dword {V(vDUM)}, {V(vDUM+1)}, {S(48+2*q,2)}")
            k.vm[-1] = (set(), None)

def main_start():
    k.c("=== main workgroups")
    k.vm = list(FIRST)
    k(f"s_lshl_b32 {S(sT5)}, {S(sCP)}, 2")
    k(f"s_load_dword {S(sLDT)}, s[42:43], {S(sT5)}")
    k(f"s_load_dword {S(sDSK)}, s[44:45], {S(sT5)}")
    k.lg = []
    if opt("lean", 1):
        p0x_addr(1)
        common()
        roles()
    srd_base(SRD_WS, 56)
    srd_base(SRD_DBG, 54)
    srd(SRD_W2, 50, 1792 * 896)
    if opt("warmat", 2) == 0:
        warm_loads()
    if opt("tblearly", 0):
        table_loads()
    w2_lane_src(vW2S, 896, KW + 100, KW + 101)
    k(f"s_mul_i32 {S(sW2B)}, {S(sW)}, {448*896}")
    k(f"s_lshl_b32 {S(sT2)}, {S(sDS)}, 7")
    k(f"s_add_u32 {S(sW2B)}, {S(sW2B)}, {S(sT2)}")
    FREG[0] = 4
    fine("ld")
    ac = addr_conv()
    for i in range(NINIT):
        w2_dma()
        run(ac, len(ac) // (NINIT - i))
    run(ac)
    if TE:
        touch(0)
        dt_setup()
    stamp(24)
    fine("addr")
    if opt("warmat", 2) == 1:
        warm_loads()
    p0x_body()
    if opt("warmat", 2) == 2:
        warm_loads()
    fine("p0x")
    stamp(1)
    if opt("atom0", 16) < 0:
        p0x_atomics()
        stamp(25)
    if TE:
        k("s_branch L_body")
        k.raw(".p2align 12")
        k.label("L_pg0")
        k("s_branch L_ret0")
        k("s_nop 0")
        k.label("L_body")
    else:
        touch(0)

DEF0 = opt("def0", 1)
LATE0 = W1R + 100 if DEF0 else WK + 12
def conv_load_ops(layer, h, D):
    o = [f"s_mov_b32 {S(sT0)}, {hex(STATS[layer] + 8192*h)}",
         f"s_add_u32 {S(sT3)}, {S(sXQi)}, {hex(layer*XQ_SZ + 8192*h)}"]
    for j in range(2):
        o.append(f"buffer_load_dwordx4 {V(D+4*j,4)}, {V(vCX)}, {S(SRD_WS,4)}, {S(sT0)} offen offset:{128*j} sc1")
        o.append(f"buffer_load_dwordx2 {V(D+8+2*j,2)}, {V(vCX)}, {S(SRD_WS,4)}, {S(sT3)} offen offset:{128*j} sc1")
    return o

CW = []
def kgen():
    k.c("=== K generation")
    B0 = KW + 46
    U = B0
    DT = B0 + 12
    W1_, W8_, W256 = B0 + 14, B0 + 18, B0 + 22
    T = B0 + 26
    P = [B0 + 30 + 4 * i for i in range(5)]
    CV = B0 + 50
    ACC = WK + 64
    FX, FY = (112, 144), (176, 208)
    for i in range(6):
        k(f"v_lshlrev_b32 {V(U+2*i)}, 16, {V(PRM+i)}")
        k(f"v_and_b32 {V(U+2*i+1)}, {S(sHIM)}, {V(PRM+i)}")
    if not TE:
        dt_setup()
    fine("prm")
    for i in range(4):
        pk("mul", V(U + 2 * i, 2), V(U + 2 * i, 2), V(DT, 2), bc=(1,))
    k(f"s_mov_b32 {S(sC0)}, {f2u(1.4426950408889634)}")
    pk("mul", V(U, 2), V(U, 2), S(sC0, 2), bc=(1,))
    k(f"s_mov_b32 {S(sC0)}, {f2u(0.15915494309189535)}")
    pk("mul", V(U + 2, 2), V(U + 2, 2), S(sC0, 2), bc=(1,))
    cmul(P[0], U + 8, U + 4, T)
    for (Wd, sc) in ((W1_, 1.0), (W256, 256.0), (W8_, 8.0)):
        ea, an = U + 4, U + 6
        if sc == 1.0:
            sa, sb = U, U + 2
        else:
            k(f"s_mov_b32 {S(sC0)}, {f2u(sc)}")
            pk("mul", V(ea, 2), V(U, 2), S(sC0, 2), bc=(1,))
            pk("mul", V(an, 2), V(U + 2, 2), S(sC0, 2), bc=(1,))
            sa, sb = ea, an
        for h in range(2):
            k(f"v_fract_f32 {V(an+h)}, {V(sb+h)}")
        for h in range(2):
            k(f"v_exp_f32 {V(ea+h)}, {V(sa+h)}")
        for h in range(2):
            k(f"v_cos_f32 {V(Wd+h)}, {V(an+h)}")
        for h in range(2):
            k(f"v_sin_f32 {V(Wd+2+h)}, {V(an+h)}")
        pk("mul", V(Wd, 2), V(Wd, 2), V(ea, 2))
        pk("mul", V(Wd + 2, 2), V(Wd + 2, 2), V(ea, 2))
    if not opt("goearly", 2):
        poll_load(vGO, vGO + 3, 0, 0, SRD_DBG)
    if opt("atom0", 16) == 0:
        p0x_atomics()
        stamp(25)
    fine("setup")
    cvi = [0]
    ent = [0]
    vPL = vPA
    NKD = opt("nkd", 0)
    FL0, PL0 = opt("flag0", 38), opt("poll0", 53)
    cl = conv_load_ops(0, 0, WK) + ([] if DEF0 else conv_load_ops(0, 1, LATE0))
    PCE = opt("pce", 0)
    PCT = opt("pct", 1)
    cl2 = []
    if PCT:
        cl, cl2 = [], cl
    def put(src, row, negim, extra=None):
        c = CV + 2 * (cvi[0] & 1)
        cvi[0] += 1
        n = "-" if negim else ""
        k(f"v_cvt_pk_bf16_f32 {V(c)}, {V(src)}, {V(src+1)}")
        k(f"v_cvt_pk_bf16_f32 {V(c+1)}, {n}{V(src+2)}, {n}{V(src+3)}")
        k(f"ds_write_b64 {V(vKW)}, {V(c,2)} offset:{row*ROW_ST}")
        if extra:
            k(extra)
        ent[0] += 1
        if ent[0] == opt("atom0", 16):
            p0x_atomics()
            stamp(25)
        if ent[0] == FL0:
            poll_check(vGO, vGO + 2, 0, 128, SRD_DBG)
            k("s_barrier")
            flag_all(0)
            stamp(2)
        if not opt("tblearly", 0) and ent[0] == opt("tblat", 22):
            table_loads()
        if opt("kdb", 0) and ent[0] == opt("kdb", 0):
            for _ in range(4):
                w2_dma()
        if ND[0] < NINIT + min(NKD, NKD * (ent[0] - opt("kd0", 0)) // (opt("kdspan", 42) - opt("kd0", 0))):
            w2_dma()
        if ent[0] in (opt("atom0", 16) - 1, opt("atom0", 16), FL0 - 1, FL0, 52):
            fine(f"e{ent[0]}")
        if ent[0] == PL0:
            poll_load(vPL, vFP, S(sREP))
        if ent[0] == PCE:
            poll_check(vPL, vFP, S(sREP))
            k("s_barrier")
            run(cl, 6)
    def frags(b):
        for st in range(8):
            k(f"ds_read_b128 {A(b+4*st,4)}, {V(vKR)} offset:{64*st}")
    cur = 0
    for a in range(8):
        put(P[cur], a, True)
        if a % 2 == 0:
            dst = {0: 3, 4: 4}.get(a, 2)
            cmul(P[dst], P[cur], W256, T)
            put(P[dst], 8 + a // 2, True)
        if a < 7:
            cmul(P[1 - cur], P[cur], W1_, T)
            cur = 1 - cur
    cmul(P[0], P[3], W256, T); put(P[0], 12, True)
    cmul(P[1], P[4], W256, T); put(P[1], 13, True)
    cmul(P[3], P[0], W256, T); put(P[3], 14, True)
    cmul(P[4], P[1], W256, T); put(P[4], 15, True)
    frags(FX[0])
    src, dst = 3, 0
    for row in range(5):
        cmul(P[dst], P[src], W256, T)
        put(P[dst], row, True)
        src, dst = dst, (1 - dst if dst in (0, 1) else 0)
    frags(FX[1])
    k(f"v_mov_b32 {V(CV)}, {S(sONES)}")
    k(f"v_mov_b32 {V(CV+1)}, 0")
    k(f"ds_write_b64 {V(vKW)}, {V(CV,2)}")
    cvi[0] = 1
    put(W8_, 1, False)
    cmul(P[0], W8_, W8_, T)
    cur = 0
    def mfma(n):
        yt, x, st = n // 16, (n // 8) & 1, n % 8
        d = V(ACC + 8 * yt + 4 * x, 4)
        return f"v_mfma_f32_16x16x32_bf16 {d}, {A(FX[x]+4*st,4)}, {A(FY[yt]+4*st,4)}, {d if st else 0}"
    M0 = opt("km", 0)
    for j in range(2, 32):
        put(P[cur], j % 16, False, mfma(j - 32 + M0) if j >= 32 - M0 else None)
        if j % 16 == 15:
            frags(FY[j // 16])
        if j == 15:
            stamp(3)
        if j < 31:
            cmul(P[1 - cur], P[cur], W8_, T)
            cur = 1 - cur
    assert ND[0] == NINIT + NKD and opt("pchk", 5) < 13, ND
    def tables(yt, x):
        a = ACC + 8 * yt + 4 * x
        return [f"ds_write2_b32 {V(TA+x)}, {V(a+i)}, {V(a+i+1)} offset0:{66*i+32*yt} offset1:{66*(i+1)+32*yt}" for i in (0, 2)]
    mads = []
    for n in range(17):
        sel = " op_sel:[1,0,0,0]" if n & 1 else ""
        mads.append(f"v_mad_u32_u16 {V(GA+n)}, {V(TBL+n//2)}, 8, {S(sSCH)}{sel}")
    PCK = opt("pchk", 5)
    tb = [(8, [f"v_add_f32 {V(ACC)}, {V(ACC)}, {V(vDSK)}"] + tables(0, 0)), (16, tables(0, 1)), (24, tables(1, 0))]
    for n in range(M0, 32):
        k(mfma(n))
        if n + 53 == PL0:
            poll_load(vPL, vFP, S(sREP))
        if n % opt("kms", 3) == 2 and ND[0] < NINIT + NKD + opt("kmd", 10):
            w2_dma()
        else:
            run(mads, 1)
        if n - M0 == PCK:
            if not PCE and not PCT:
                poll_check(vPL, vFP, S(sREP))
            k.wait(lg=0)
            k("s_barrier")
            fine("pbar")
            stamp(4)
        if n - M0 >= PCK:
            if (n - M0 - PCK) % opt("cls", 3) == 0 and cl:
                run(cl, 3 if cl[0].startswith("s_") else 1)
            elif (not cl or opt("cls", 3) > 2) and tb and n >= tb[0][0] + 4:
                run(tb.pop(0)[1])
    if AL:
        mads += [f"v_lshlrev_b32 {V(vFW)}, {AL-4}, {V(vFW)}", f"v_lshlrev_b32 {V(vFP)}, {AL-4}, {V(vFP)}", f"s_lshl_b32 {S(sREP)}, {S(sREP)}, {AL-4}"]
    run(mads)
    for _, o in tb:
        run(o)
    run(cl)
    if PCT:
        precmp(vPL)
    else:
        poll_load(vGO, vGO + 1, 0, 192, SRD_DBG)
    run(tables(1, 1))
    if PCT:
        poll_check(vPL, vFP, S(sREP))
    k.wait(lg=0)
    k("s_barrier")
    fine("tbar")
    stamp(6)
    GV = B0
    for e in range(17):
        if e % 4 == 0 and cl2:
            run(cl2, 3 if e == 0 else 1)
        k(f"ds_read_b64 {V(GV+2*e,2)}, {V(GA+e)}")
    if PCT:
        poll_load(vGO, vGO + 1, 0, 192, SRD_DBG)
    if opt("ll0", 8) < 0:
        run(conv_load_ops(0, 1, LATE0))
    for _ in range(opt("kgd", 0)):
        w2_dma()
    if opt("cpk", 0):
        CW.extend(cprep(WK, WK + 32, 0, True))
        k.wait(lg=0)
    else:
        k.wait(lg=8)
    for e in range(17):
        if e == 9 and k.lg:
            k.wait(lg=0)
        k(f"v_add_f32 {V(GV+2*e)}, {V(GV+2*e)}, {V(GV+2*e+1)}")
    fine("gath")
    if not opt("kp0", 0):
        k("s_barrier")
    O = B0 + 34
    for c in range(2):
        for kk in range(8):
            e = 2 * kk + c
            k(f"v_cvt_pk_bf16_f32 {V(O+8*c+kk)}, {V(GV+2*e)}, {V(GV+2*e+2)}")
    for c in range(2):
        for h in range(2):
            k(f"ds_write_b128 {V(vKC)}, {V(O+8*c+4*h,4)} offset:{c*(SCR_ST+64)+16*h}")
    stamp(5)

def wave0(fn):
    skip = newlab("w0")
    k(f"s_cmp_lg_u32 {S(sW)}, 0")
    saved = list(k.vm)
    k.skip_begin("s_cbranch_scc1", skip)
    fn()
    k.skip_end(skip)
    k.vm = saved

EARLY = opt("early", 0)
def apoll_load(arr):
    k(f"s_add_u32 {S(sPA)}, {S(sREP)}, {hex(FA(arr))}")
    poll_load(vPA, vFP, S(sPA))

def apoll_check():
    poll_check(vPA, vFP, S(sPA))

def aflag(arr):
    flag_all(FA(arr))

def bar():
    k.wait(lg=0)
    k("s_barrier")

CACC, CKR, CXU, CXR = WK, WK + 32, WK + 96, WK + 104
def cprep(D, T, h, defer=False):
    UU, O, RAW, EPS = T, T + 4, T + 8, CXR
    k(f"s_mov_b32 {S(sC0)}, {f2u(1.0/448)}")
    k(f"s_mov_b32 {S(sC1)}, {f2u(1e-5)}")
    k(f"v_mov_b32 {V(EPS)}, {S(sC1)}")
    for j in range(2):
        M, Q, X = D + 4 * j, D + 4 * j + 2, D + 8 + 2 * j
        pk("mul", V(M, 2), V(M, 2), S(sC0, 2), bc=(1,))
        pk("fma", V(Q, 2), V(Q, 2), S(sC0, 2), V(EPS, 2), bc=(1, 2))
        pk("fma", V(Q, 2), V(M, 2), V(M, 2), V(Q, 2), neg=(0,))
        for b in range(2):
            k(f"v_max_f32 {V(Q+b)}, {S(sC1)}, {V(Q+b)}")
        for b in range(2):
            k(f"v_rsq_f32 {V(Q+b)}, {V(Q+b)}")
        for b in range(2):
            k(f"v_lshlrev_b32 {V(UU+b)}, 16, {V(X+b)}")
            k(f"v_and_b32 {V(UU+2+b)}, {S(sHIM)}, {V(X+b)}")
        pk("mul", V(M, 2), V(M, 2), V(Q, 2))
        for c in range(2):
            pk("fma", V(UU + 2 * c, 2), V(UU + 2 * c, 2), V(Q, 2), V(M, 2), neg=(2,))
            k(f"v_perm_b32 {V(RAW+2*c+j)}, {V(X+1)}, {V(X)}, {S(sPERM0+c)}")
        for c in range(2):
            k(f"v_cvt_pk_bf16_f32 {V(O+2*c+j)}, {V(UU+2*c)}, {V(UU+2*c+1)}")
    w = [f"ds_write_b64 {V(vUW)}, {V(O+2*c,2)} offset:{c*U_ST + 2048*h}" for c in range(2)]
    w += [f"ds_write_b64 {V(vXW)}, {V(RAW+2*c,2)} offset:{c*2*SCR_ST + 1024*h}" for c in range(2)]
    if defer:
        return w
    run(w)

def k_ops(I, s, reg):
    o = (128 if I % 2 == 0 else 0) + 16 * (3 - s)
    r = (V if reg[0] == "v" else A)
    return [f"ds_read2_b32 {r(reg[1]+2*h,2)}, {V(vKF+I//2)} offset0:{o+2*h} offset1:{o+2*h+1}" for h in range(2)]

def k_preload():
    return [t for s in range(4) for I in range(4) for t in k_ops(I, s, ("v", CKR + 16 * s + 4 * I))]

def conv(layer):
    k.c("=== conv")
    ACC, XU, XR = CACC, CXU, CXR
    mf = []
    for s in range(4):
        mf += [(0, s, Jp, I) for Jp in range(3, -1, -1) for I in range(4 - Jp)]
    for s in range(3, -1, -1):
        mf += [(1, s, Jp, I) for I in range(7, 0, -1) for Jp in range(4) if 4 <= Jp + I <= 7]
    for s in range(4):
        mf += [(2, s, Jp, I) for Jp in range(7, 3, -1) for I in range(8 - Jp)]
    assert len(mf) == 144
    ukey = lambda p, s, Jp: ("u", 0 if (p == 1 and s == 3) else p, s, Jp)
    kkey = lambda s, I: ("k", s, I)
    first, last = {}, {}
    for n, (p, s, Jp, I) in enumerate(mf):
        for key in (ukey(p, s, Jp), kkey(s, I)):
            first.setdefault(key, n)
            last[key] = n
    reg = {kkey(s, I): ("v", CKR + 16 * s + 4 * I) for s in range(4) for I in range(4)}
    KP0 = opt("kp0", 0)
    items = sorted((key for key in first if not (key in reg and (layer or key[1] < KP0))), key=lambda x: first[x])
    XB, XS = opt("xb", 40), opt("xs", 41)
    CPL, CPB = opt("cpl", 104), opt("cpb", 104)
    assert DEF0
    slots = [("a", AX + 4 * i) for i in range(8)] + [("v", WK + 108), ("v", ACC + 12)][:opt("xslot", 2)]
    slot_free = ([-1] * 9 + [XB + 4])[:len(slots)]
    RG = lambda r: (V if r[0] == "v" else A)(r[1], 4)
    queue = []
    issued = {}
    def issue(n, budget):
        c = 0
        while True:
            if not queue:
                if not items:
                    return c
                key = items[0]
                if not (first[key] <= n + 2 or (c < budget and first[key] <= n + 20)):
                    return c
                if key[0] == "u" and key[1] == 2 and n < CPB:
                    return c
                if key not in reg:
                    fr = [i for i in range(len(slots)) if slot_free[i] < n]
                    if not fr:
                        assert first[key] > n, (n, key)
                        return c
                    slot_free[fr[0]] = last[key]
                    reg[key] = slots[fr[0]]
                items.pop(0)
                if key[0] == "u":
                    queue.append((key, f"ds_read_b128 {RG(reg[key])}, {V(vUF)} offset:{512*key[3] + 64*(3-key[2])}"))
                else:
                    queue.extend((key, t) for t in k_ops(key[2], key[1], reg[key]))
            elif not (first[queue[0][0]] <= n + 2 or c < budget):
                return c
            key, t = queue.pop(0)
            k(t, tag=key)
            issued[key] = n
            c += 1
    def xblock(ph, packed, addfirst=False):
        l1, lj = newlab("x1"), newlab("xj")
        k(f"s_cmp_eq_u32 {S(sNH)}, 1")
        h0 = list(k.hist)
        k(f"s_cbranch_scc1 {l1}")
        for hf in range(2):
            if hf:
                k.label(l1)
                k.hist = h0
                k.lg = k.lg[:-2]
            a = ACC + 16 * ph
            def adds():
                for i in range(4 if packed else 8):
                    if packed:
                        pk("add", V(XU + 2 * i, 2), V(XU + 2 * i, 2), V(a + 8 * hf + 2 * i, 2))
                    else:
                        k(f"v_add_f32 {V(XU+i)}, {V(XU+i)}, {V(a+8*hf+i)}")
            if addfirst:
                adds()
            for jl in range(2):
                k(f"ds_write_b128 {V(vEXW)}, {V(a+8*(1-hf)+4*jl,4)} offset:{2048+1024*jl}", tag="ex")
            if not addfirst:
                adds()
            if not hf:
                k(f"s_branch {lj}")
        k.label(lj)
    def wait_lg(tag):
        idx = [i for i, p in enumerate(k.lg) if p[2] == tag]
        if idx:
            k.wait(lg=len(k.lg) - 1 - idx[-1])
    def res_ops(ph):
        o = [f"ds_read_b64_tr_b16 {V(XR+2*jl,2)}, {V(vXR)} offset:{1024*ph + 512*jl}" for jl in range(2)]
        o += [None] * 6
        for i in range(4):
            o += [f"v_lshlrev_b32 {V(XU+2*i)}, 16, {V(XR+i)}", f"v_and_b32 {V(XU+2*i+1)}, {S(sHIM)}, {V(XR+i)}"]
        return o
    def recv_ops():
        return [f"ds_read_b128 {V(ACC+4*jl,4)}, {V(vEXR)} offset:{2048+1024*jl}" for jl in range(2)]
    def out_ops(ph, packed):
        if packed:
            o = [f"v_pk_add_f32 {V(XU+2*i,2)}, {V(XU+2*i,2)}, {V(ACC+2*i,2)}" for i in range(4)]
        else:
            o = [f"v_add_f32 {V(XU+i)}, {V(XU+i)}, {V(ACC+i)}" for i in range(8)]
        o += [f"v_cvt_pk_bf16_f32 {V(ACC+8+i)}, {V(XU+2*i)}, {V(XU+2*i+1)}" for i in range(4)]
        o.append(f"s_mov_b32 {S(sT1)}, {hex(X1T + layer*XQ_SZ + 57344*ph)}")
        o.append((f"buffer_store_dwordx4 {V(ACC+8,4)}, {V(vCO)}, {S(SRD_WS,4)}, {S(sT1)} offen sc1", ("cst", ph)))
        return o
    if layer == 0:
        if not opt("pct", 1):
            poll_check(vGO, vGO + 1, 0, 192, SRD_DBG)
        if opt("pw1", 38) < 0:
            poll_load(vWF, vWF + 1, 0)
        if CW:
            run(CW)
        elif KP0:
            bar()
            run(k_preload()[:8 * KP0])
            cprep(WK, WK + 12, 0)
        else:
            cprep(WK, WK + 32, 0)
        if opt("pct", 1):
            poll_check(vGO, vGO + 1, 0, 192, SRD_DBG)
        stamp(7)
        if not DEF0:
            cprep(WK + 12, WK + 44, 1)
    bar()
    if layer and EARLY and opt("fl", 4) < 0:
        aflag(F_CIN1[1])
    fine("cbar")
    FREG[0] = 3
    fine("start")
    stamp(9)
    bg = []
    if layer == 0:
        n1, n2 = opt("w1conv", 18), opt("w2conv", 0)
        bg = [w2_dma] * (28 - ND[0])
        def c1():
            if not opt("abl", 0) & 8:
                poll_check(vWF, vWF + 1, 0, 32 if SPL else 0)
            w1_load()
        def p1b():
            poll_load(vWF, vWF + 1, 0)
            w1_load()
        def c1b():
            assert NW1[0] == 14
            poll_check(vWF, vWF + 1, 0)
            w1_load()
        def p2():
            poll_load(vWF, vWF + 2, 0)
            w1_load()
        def c2():
            if not opt("abl", 0) & 16:
                poll_check(vWF, vWF + 2, 0)
            if n2:
                w2_load()
        w = [c1] + [w1_load] * (n1 - 1)
        if SPL:
            assert n1 > 14 and not n2 and opt("pw1", 38) >= 0
            w[opt("p1b", 6)], w[14] = p1b, c1b
            if opt("w2a", 0):
                w[15] = p2
        pos = max(1, n1 - n2 - 7)
        if n2:
            w[pos] = p2
        t = w[:n1 - n2]
        for i in range(n2):
            t += [c2 if i == 0 else w2_load] + w[n1 - n2 + i: n1 - n2 + i + 1]
        if opt("bgord", 0) == 0:
            bg += t
        elif opt("bgord", 0) == 1:
            bg = t + bg
        else:
            m = []
            while bg or t:
                m += t[:1] + bg[:1]
                t, bg = t[1:], bg[1:]
            bg = m
    nbg = len(bg)
    BG0 = opt("bg0", 4)
    step = max(1, (opt("bg1", 138) - BG0) / max(1, nbg))
    side = []
    TR = w2_tr_ops(0, 14)
    lastbg = -9
    seen = set()
    CL, FE, PE = opt("cl", XS), opt("fe", 100), opt("pe", 128)
    for n, (p, s, Jp, I) in enumerate(mf):
        if n == CPL:
            assert not side and (layer or NW1[0] <= 25)
            stamp(10)
            side += [(o, "lw") for o in cprep(LIN if layer else LATE0, ACC, 1, True)]
            if CPB == CPL:
                run(side)
        if n == CPB:
            assert not side
            if FE >= CPB:
                k.wait_tag_vm(("cst", 0))
            wait_lg("lw")
            k("s_barrier")
            if FE >= CPB:
                aflag(F_X1[layer][0])
            stamp(12)
        cnt = issue(n, (12 if layer == 0 and not KP0 else 5) if n == 0 else 5 if n == CPB else 0 if XB < n <= XS and opt("xq", 0) else 1)
        uk, kk = ukey(p, s, Jp), kkey(s, I)
        tags = [q[2] for q in k.lg]
        if uk in tags or kk in tags:
            cand = [i for i, q in enumerate(tags) if q in (uk, kk) or (q in first and first[q] <= n + 3 and issued[q] <= n - 7)]
            k.wait(lg=len(tags) - 1 - max(cand))
        J = Jp + I
        d = V(ACC + 4 * J, 4)
        k(f"v_mfma_f32_16x16x32_bf16 {d}, {RG(reg[uk])}, {RG(reg[kk])}, {d if J in seen else 0}")
        seen.add(J)
        if n == opt("ll0", 8) and layer == 0 and DEF0:
            side += conv_load_ops(0, 1, LATE0)
        if n == 18:
            side += res_ops(0)
        if n == 122:
            side[0:0] = res_ops(1)
        if layer == 0 and n == opt("pw1", 38):
            poll_load(vWF, vWF + 1, 0, 32 if SPL else 0)
        if layer and EARLY and n == opt("fl", 4):
            k.wait_tag_vm(("st", 1))
            k("s_barrier")
            aflag(F_CIN1[1])
        if layer and n == opt("pcl", 0):
            apoll_load(F_CIN1[1])
        if n == XB:
            assert not side
            xblock(0, bool(opt("xpk", 1)), bool(opt("xaf", 0)))
        if layer and n == CL - 2:
            precmp(vPA)
        if layer and n == CL and CL != XS:
            apoll_check()
            k("s_barrier")
            side += conv_load_ops(1, 1, LIN)
        if n == XS:
            if layer and CL == XS:
                apoll_check()
            wait_lg("ex")
            k("s_barrier")
            run(recv_ops())
            if layer and CL == XS:
                side += conv_load_ops(1, 1, LIN)
        if n == XS + opt("xo", 4):
            run(side)
            run(out_ops(0, bool(opt("xpk", 1))))
        if n == FE and FE < CPB:
            k.wait_tag_vm(("cst", 0))
            k("s_barrier")
            aflag(F_X1[layer][0])
        if n == PE:
            apoll_load(F_X1[layer][0])
        if n in (0, 19, 39, 47, 55, 63, 71, 87, 103, 104, 123, 143):
            fine(f"m{n}")
        if side:
            run(side, 2 if cnt == 0 else 1)
        elif bg and n >= BG0 + step * (nbg - len(bg)) and (cnt == 0 or n >= BG0 + 2 + step * (nbg - len(bg))):
            run(bg, 1)
        elif layer == 0 and n >= opt("tr0", 999) and TR:
            if len(TR) == 56:
                assert ND[0] == 28
                k.wait_tag_vm(("w2", 27))
            run(TR, opt("trr", 2) if cnt == 0 else opt("trr", 2) - 1)
    assert not items and not queue and not any(x and "v_" in x[:2] for x in side)
    run(side)
    run(bg)
    stamp(13)
    PX = opt("px", 1) if PE > 143 else -1
    if PX == 0:
        apoll_load(F_X1[layer][0])
    xblock(1, True)
    bar()
    run(recv_ops())
    if PX == 1:
        apoll_load(F_X1[layer][0])
    o = out_ops(1, True)
    run(o, len(o) - 1)
    if PX == 2:
        apoll_load(F_X1[layer][0])
    run(o)
    fine("store")
    stamp(11)
    if layer == 0:
        n = min(opt("w1a", 4), 28 - NW1[0])
        k.wait_tag_vm(("w2", 27))
        tr = TR
        for i in range(n):
            w1_load()
            run(tr, len(tr) // (n + opt("w2a", 0) - i))
        for i in range(opt("w2a", 0)):
            if i == 0:
                poll_check(vWF, vWF + 2, 0)
            w2_load()
            run(tr, len(tr) // (opt("w2a", 0) - i))
        run(tr)
    apoll_check()
    bar()
    fine("pollE")
    stamp(14)

def layer_turn():
    k.c("=== second layer: early half of the inputs")
    FREG[0] = 5
    fine("T")
    kp = k_preload()
    run(kp, opt("kpre", 32))
    fine("kpre")
    apoll_check()
    k("s_barrier")
    fine("chk")
    stamp(20)
    run(conv_load_ops(1, 0, WK))
    k.wait_tag_vm(("st", 1))
    k("s_barrier")
    aflag(F_CIN1[1])
    fine("flag")
    run(kp)
    touch(2)
    fine("touch")
    stamp(21)
    if opt("pcl.1", 0) < 0:
        k.wait(vm=0)
        apoll_load(F_CIN1[1])
    w = cprep(WK, WK + 12, 0, True)
    fine("prep")
    run(w)
    if FREG[0] == opt("fine", 0):
        k.wait(lg=0)
        fine("wr")
    LAY[0] = 1

G2RES = WK + 100
G2R = WK + 108

GB = 4 if GL else 1024
def gflag_ops(half, local):
    return ["s_mov_b64 exec, 1",
            f"buffer_store_dword {V(vONE)}, {V(vFL)}, {S(SRD_WS,4)}, {S(sFP if local else sFG)} offen offset:{GB*half}" + ("" if local else " sc1"),
            "s_mov_b64 exec, -1"]

def gflag(layer, half):
    run(gflag_ops(half, FAST))

def gcheck(half, pre=()):
    if FAST:
        poll_check(vPL2, vF2P, S(sFP), GB * half, pre=gflag_ops(half, False), alt=(vHL, S(sFG)))
    else:
        poll_check(vPL2, vF2P, S(sFG), GB * half, pre=pre)

def ffn(layer):
    k.c("=== GEMM1")
    FREG[0] = 1
    fine("start")
    ACC = WK
    EP = WK + 64
    vXS = WK + 80
    vB0, vB1 = WK + 81, WK + 82
    if layer:
        k(f"s_add_u32 {S(sXT)}, {S(sXT)}, {hex(XQ_SZ)}")
    k(f"v_add_u32 {V(vXS)}, {S(sXT)}, {V(vL16)}")
    k(f"s_lshl_b32 {S(sT0)}, {S(sW)}, 10")
    k(f"s_mov_b32 m0, {S(sT0)}")
    nx = [0]
    def dma():
        d = nx[0]
        nx[0] += 1
        k(f"buffer_load_dwordx4 {V(vXS)}, {S(SRD_WS,4)}, m0 offen sc1 lds", tag=("x", d))
        if d == 13:
            k(f"v_subrev_u32 {V(vXS)}, 32, {V(vXS)}")
        if d < 27:
            k(f"s_add_u32 m0, m0, {4096 + (32 if d == 13 else 0)}")
    NUP = opt("nup", 9)
    af = addr_ffn(layer)
    FXL = opt("fxl", 6)
    for st in range(NUP):
        dma()
        if st >= 1:
            run(af, opt("afr", 11))
        if st == FXL:
            k.wait_tag_vm(("cst", 1))
            k("s_barrier")
            aflag(F_X1[layer][1])
    af += [f"v_add_u32 {V(vB0)}, {XHALF}, {V(vXA0)}", f"v_add_u32 {V(vB1)}, {XHALF}, {V(vXA1)}"]
    W2CHK = [layer == 0 and NW2[0] == 0]
    if W2CHK[0]:
        k(f"v_mov_b32 {V(WK+97)}, {S(sLDT2)}")
        poll_load(WK + 96, WK + 97, 0)
    if layer == 0:
        touch(1)
    SKA = opt("ska", 10)
    mf = [(0, q, ks) for ks in range(28 - SKA) for q in range(2)]
    mf += [(0, q, ks) for q in range(2) for ks in range(28 - SKA, 28)]
    SK = opt("skb", 18)
    mf += [(1, q, ks) for ks in range(28 - SK) for q in range(2)]
    mf += [(1, q, ks) for q in range(2) for ks in range(28 - SK, 28)]
    NR = 8
    LEAD = opt("g1lead", 7)
    bars = [[2, 5, 9, 14, 16, 19, 23, 28], [1, 3, 6, 9, 14, 17, 21, 28], [2, 5, 9, 14, 18, 23, 28], [2, 6, 14, 20, 28]][opt("bars", 0)]
    ready = [0]
    def rd(n):
        half, q, ks = mf[n]
        st = 14 * half + ks // 2
        if st >= ready[0]:
            nb = [b for b in bars if b > st][0]
            assert nx[0] >= nb, (n, nb, nx[0])
            k.wait_tag_vm(("x", nb - 1))
            k("s_barrier")
            if ready[0] == 0 and FXL >= NUP:
                aflag(F_X1[layer][1])
            ready[0] = nb
        va = ((vXA0, vXA1), (vB0, vB1))[half][q]
        for u in range(2):
            k(f"ds_read_b64_tr_b16 {A(AX+4*(n%NR)+2*u,2)}, {V(va)} offset:{ks*2048+u*512}", tag=("f", n))
        rdat[n] = cur[0]
    rdat, cur, lastw = {}, [-9], [-9]
    def epi(tile):
        ops = []
        e = EP + 8 * (tile & 1)
        for a in range(2):
            for i in range(4):
                ops.append(f"v_cvt_pk_bf16_f32 {V(e+4*a+i)}, {V(ACC+16*tile+8*a+2*i)}, {V(ACC+16*tile+8*a+2*i+1)}")
            for i in range(4):
                ops.append(f"v_pk_max_i16 {V(e+4*a+i)}, {V(e+4*a+i)}, 0")
            if a == 0:
                ops.append(f"s_add_u32 {S(sT1)}, {S(sHS)}, {tile*112*1024}")
            ops.append((f"buffer_store_dwordx4 {V(e+4*a,4)}, {V(vL16)}, {S(SRD_WS,4)}, {S(sT1)} offen offset:{1024*a} sc1", ("h", tile)))
        return ops
    F = WK
    ONE4, DS_, DQ = WK + 84, WK + 88, WK + 92
    srd_ = [f"ds_read_b64_tr_b16 {V(F+4*ks+2*u,2)}, {V(vST)} offset:{ks*4096+u*512}" for ks in range(14) for u in range(2)]
    ring = [("a", AX + 4 * i) for i in range(8)] + [("v", WK + 64 + 4 * i) for i in range(5)]
    NR2 = opt("g2ring", 11)
    ring = ring[:NR2]
    rn = lambda i: (V if ring[i % NR2][0] == "v" else A)(ring[i % NR2][1], 4)
    nl = [0]
    def ld():
        i = nl[0]
        nl[0] += 1
        half, s = divmod(i, 28)
        if s % 4 == 0:
            k(f"s_add_u32 {S(sT4)}, {S(sHL)}, {half*2*112*1024 + s*1024}")
        k(f"buffer_load_dwordx4 {rn(i)}, {V(vL16)}, {S(SRD_WS,4)}, {S(sT4)} offen offset:{1024*(s%4)} sc1" + (" nt" if opt("hnt", 0) else ""))
        if layer == 0 and NW2[0] < 28 and i >= opt("w2l0", 0) and (i - opt("w2l0", 0)) % opt("w2ls", 1) == 0:
            w2_load()
    CHKA = opt("chkA", 999)
    HOLD = opt("hold", 0)
    held = []
    sentB = False
    pend = af
    nrd = 0
    for n in range(opt("lead0", LEAD)):
        rd(nrd); nrd += 1
    stamp(27)
    cur[0] = 0
    PXL, CXL = opt("pxl", 10), opt("cxl", 28)
    LB = opt("leadb", 4)
    BUD, CVM, CST, CRD = opt("bud", 28), opt("cvm", 12), opt("cst", 24), opt("crd", 4)
    MINL = opt("minl", 5)
    for n, (half, q, ks) in enumerate(mf):
        tile = 2 * half + q
        d = V(ACC + 16 * tile, 16)
        assert NW1[0] > ks, "W1 fragment used before its load"
        k(f"v_mfma_f32_32x32x16_bf16 {d}, {V(W1R+4*ks,4)}, {A(AX+4*(n%NR),4)}, {d if ks else 0}")
        if n == 56 - SKA + opt("ed", 2):
            pend += epi(0)
        if n == 56 + opt("ed", 2):
            pend += epi(1)
        if n == 112 - SK + opt("ed", 2):
            e2 = epi(2)
            if HOLD:
                held = [o for o in e2 if isinstance(o, tuple) or o.startswith("s_")]
                e2 = [o for o in e2 if o not in held]
            pend += e2
        b = BUD
        tags = [p[2] for p in k.lg]
        needw = ("f", n + 1) in tags
        if needw:
            b -= 4
        def newbar(m):
            return 14 * mf[m][0] + mf[m][2] // 2 >= ready[0]
        def may(m):
            if m < len(mf) and opt("mrg", 1) and ready[0] == 9 and newbar(m) and n < CXL <= m - 4:
                return False
            return m < len(mf) and m <= n + (LB if m == 56 else LEAD)
        if n == PXL:
            apoll_load(F_X1[layer][1]); b -= CVM + 4
        if n == CXL - 1:
            assert PRECMP[0] is None
            precmp(vPA); b -= 8
        if n == CXL:
            apoll_check()
            if nx[0] == 14 and ready[0] < 14:
                k.wait_tag_vm(("x", 13))
                ready[0] = 14
            k("s_barrier")
            stamp(28); b -= 20
        if n == opt("pollA", 109):
            poll_load(vPL2, vF2P, S(sFP)); b -= CVM
        if n == opt("flagA", 91):
            k.wait_tag_vm(("h", 1))
            gflag(layer, 0); b -= CVM + 12
        if n == CHKA:
            assert opt("flagA", 91) < opt("pollA", 109) < n
            gcheck(0); b -= 12
        if n >= max(CHKA, 104) and nl[0] <= n - 104 and nrd == len(mf) and (n - CHKA) % opt("hstep", 2) == 0:
            ld(); b -= CVM
        while may(nrd) and nrd <= n + MINL - 1:
            b -= 2 * CRD + (12 if newbar(nrd) else 0)
            rd(nrd); nrd += 1
        full = b >= BUD - 4
        if pend and isinstance(pend[0], tuple):
            if full or b >= CST:
                run(pend, 1); b -= CST
        elif full or b >= CVM + 4:
            if nx[0] < 14 and opt("astep", 3) * (nx[0] - NUP) <= n:
                dma(); b -= CVM + 4
            elif n >= CXL and nx[0] < 28 and opt("bstep", 2) * (nx[0] - 14 - opt("bburst", 1)) <= n - CXL:
                dma(); b -= CVM + 4
            elif layer == 0 and n >= lastw[0] + opt("w1step", 2) and NW1[0] < 28:
                w1_load(); b -= CVM; lastw[0] = n
            elif layer == 0 and NW1[0] == 28 and NW2[0] < opt("w2g1", 28) and n >= lastw[0] + opt("w2step", 2) and (n < CXL - opt("w2gap", 1) or nx[0] >= opt("w2x", 28)) and n < opt("w2end", 999):
                if W2CHK[0]:
                    assert PRECMP[0] is None
                    poll_check(WK + 96, WK + 97, 0)
                    W2CHK[0] = False
                w2_load(); b -= CVM; lastw[0] = n
        while True:
            if may(nrd) and b >= 2 * CRD and (nrd <= n + MINL + 1 or not pend or isinstance(pend[0], tuple)):
                b -= 2 * CRD + (12 if newbar(nrd) else 0)
                rd(nrd); nrd += 1
            elif pend and not isinstance(pend[0], tuple) and b >= 4:
                run(pend, 1); b -= 4
            elif nrd == len(mf) and len(srd_) > 12 and b >= CRD and n > 72:
                run(srd_, 1); b -= CRD
            else:
                break
        if needw:
            tags = [p[2] for p in k.lg]
            tgt = ("f", n + 2) if ("f", n + 2) in tags and rdat[n + 2] <= n - opt("wage", 3) else ("f", n + 1)
            idx = [i for i, t_ in enumerate(tags) if t_ == tgt]
            if idx:
                k.wait(lg=len(tags) - 1 - idx[-1])
        cur[0] = n + 1
        assert nrd > n + 1 or nrd == len(mf)
        if n % 8 == 0 or n == 111:
            fine(f"m{n}")
        if opt("g1st", 0) and n in (55, 83):
            stamp({55: 29, 83: 31}[n])
    assert not pend and nx[0] == 28 and NW1[0] == 28 and not W2CHK[0], (pend, nx, NW1)
    FREG[0] = 2
    fine("g1end")
    run(srd_, len(srd_) - 4)
    for i in range(4):
        k(f"v_mov_b32 {V(ONE4+i)}, {S(sONES)}")
    e3 = epi(3)
    if CHKA <= 111:
        held += [o for o in e3 if isinstance(o, tuple) or o.startswith("s_")]
        e3 = [o for o in e3 if o not in held]
        n_pre = opt("hpre", 7) - nl[0]
        for i in range(n_pre):
            ld()
            run(e3, len(e3) // (n_pre - i))
    run(e3)
    run(held)
    if FAST:
        run(gflag_ops(0, False))
    fine("epi3")
    stamp(15)
    run(srd_)
    for h in range(2):
        for u in range(2):
            k(f"ds_read_b64_tr_b16 {V(G2RES+4*h+2*u,2)}, {V(vRES)} offset:{h*XHALF+u*512}")
    if CHKA > 111:
        gcheck(0, ["s_waitcnt vmcnt(0)"] + gflag_ops(1, False))
    fine("pollA")
    stamp(17)
    st = []
    for ks in range(14):
        st.append(f"v_mfma_f32_16x16x32_bf16 {V(DQ,4)}, {V(F+4*ks,4)}, {V(F+4*ks,4)}, {V(DQ,4) if ks else 0}")
        st.append(f"v_mfma_f32_16x16x32_bf16 {V(DS_,4)}, {V(ONE4,4)}, {V(F+4*ks,4)}, {V(DS_,4) if ks else 0}")
    vS, vQ, vT = DS_, ONE4, ONE4 + 1
    post = ["s_mov_b32 vcc_lo, 0x00100001", "s_mov_b32 vcc_hi, 0x10000100",
            f"v_cndmask_b32 {V(vQ)}, 0, {V(DQ)}, vcc"]
    for i in range(1, 4):
        post += ["s_lshl_b64 vcc, vcc, 1", f"v_cndmask_b32 {V(vQ)}, {V(vQ)}, {V(DQ+i)}, vcc"]
    post += [f"v_mov_b32 {V(vT)}, {V(vQ)}", f"v_mul_f32 {V(vS)}, {f2u(1.0/448)}, {V(vS)}", None,
             f"v_permlane32_swap_b32 {V(vQ)}, {V(vT)}", f"v_add_f32 {V(vQ)}, {V(vQ)}, {V(vT)}",
             f"v_mov_b32 {V(vT)}, {V(vQ)}", None, None,
             f"v_permlane16_swap_b32 {V(vQ)}, {V(vT)}", f"v_add_f32 {V(vQ)}, {V(vQ)}, {V(vT)}",
             f"v_mul_f32 {V(vQ)}, {f2u(1.0/448)}, {V(vQ)}",
             f"v_fma_f32 {V(vQ)}, -{V(vS)}, {V(vS)}, {V(vQ)}",
             f"v_max_f32 {V(vQ)}, 0, {V(vQ)}",
             f"v_add_f32 {V(vQ)}, {f2u(1e-5)}, {V(vQ)}",
             f"v_rsq_f32 {V(vQ)}, {V(vQ)}", None,
             f"v_mov_b32 {V(G2R)}, {V(vQ)}",
             f"v_mov_b32 {V(G2R+2)}, {V(vQ)}", None, None,
             f"v_mov_b32_dpp {V(G2R)}, {V(vQ)} row_ror:8 row_mask:0xf bank_mask:0xc",
             f"v_mov_b32_dpp {V(G2R+2)}, {V(vQ)} row_ror:8 row_mask:0xf bank_mask:0x3"]

    k.c("=== GEMM2")
    NR = NR2
    def red_write(half):
        return [f"ds_write_b128 {V(vRW)}, {V(ACC+32*half+4*G,4)} offset:{half*RED_H+G*redg(layer)}" for G in range(8)]
    def red_read(half):
        return [f"ds_read_b128 {V(ACC+32*half+8*w+4*g,4)}, {V(vRR)} offset:{half*RED_H+w*RED_W+512*g}" for w in range(4) for g in range(2)]
    def unpack(half, u):
        o = []
        for i in range(4):
            o.append(f"v_lshlrev_b32 {V(u+2*i)}, 16, {V(G2RES+4*half+i)}")
            o.append(f"v_and_b32 {V(u+2*i+1)}, {S(sHIM)}, {V(G2RES+4*half+i)}")
        return o
    UR = WK + 84
    def fin(half, pre):
        a = ACC + 32 * half
        u = UR
        ops = []
        def P(d, x, y):
            if pre:
                ops.append(f"v_pk_add_f32 {V(d,2)}, {V(x,2)}, {V(y,2)}")
            else:
                ops.extend(f"v_add_f32 {V(d+h)}, {V(x+h)}, {V(y+h)}" for h in range(2))
        for i in range(4):
            P(a + 2 * i, a + 2 * i, a + 8 + 2 * i)
        for i in range(4):
            P(a + 16 + 2 * i, a + 16 + 2 * i, a + 24 + 2 * i)
        for i in range(4):
            P(a + 2 * i, a + 2 * i, a + 16 + 2 * i)
        for i in range(4):
            if pre:
                ops.append(f"v_pk_fma_f32 {V(a+2*i,2)}, {V(a+2*i,2)}, {V(G2R+2*half,2)}, {V(u+2*i,2)} op_sel_hi:[1,0,1]")
            else:
                ops.extend(f"v_fma_f32 {V(a+2*i+h)}, {V(a+2*i+h)}, {V(G2R+2*half)}, {V(u+2*i+h)}" for h in range(2))
        for i in range(4):
            ops.append(f"v_cvt_pk_bf16_f32 {V(a+24+i)}, {V(a+2*i)}, {V(a+2*i+1)}")
        if layer == 0:
            ops += quad_shuffle([(a + 28, a + 24)])
            ops.append(f"s_mov_b32 {S(sT1)}, {hex(XQ + XQ_SZ + 8192*half)}")
            if half and opt("pt", 1) == 2:
                ops.append(lambda: apoll_load(F_CIN1[0]))
            ops.append((f"buffer_store_dwordx4 {V(a+28,4)}, {V(vO)}, {S(SRD_WS,4)}, {S(sT1)} offen sc1", ("st", half)))
            so = stats_ops(a + 24, 4, a, a + 1, a + 2)
            if not pre:
                so = so[10:]
                for i in range(4):
                    ops.append(f"v_lshlrev_b32 {V(a+16+2*i)}, 16, {V(a+24+i)}")
                    ops.append(f"v_and_b32 {V(a+16+2*i+1)}, {S(sHIM)}, {V(a+24+i)}")
                ops.append(f"v_add_f32 {V(a)}, {V(a+16)}, {V(a+17)}")
                ops.append(f"v_mul_f32 {V(a+1)}, {V(a+16)}, {V(a+16)}")
                for i in range(1, 8):
                    if i > 1:
                        ops.append(f"v_add_f32 {V(a)}, {V(a)}, {V(a+16+i)}")
                    ops.append(f"v_fmac_f32 {V(a+1)}, {V(a+16+i)}, {V(a+16+i)}")
            ops += so
            def at():
                k(f"s_mov_b32 {S(sT1)}, {hex(STATS[1] + 8192*half)}")
                k("s_mov_b32 exec_lo, 0xff")
                k("s_mov_b32 exec_hi, 0xff")
                k(f"buffer_atomic_add_f32 {V(a)}, {V(vAT)}, {S(SRD_WS,4)}, {S(sT1)} offen sc1", tag=("st", half))
                k("s_mov_b64 exec, -1")
            ops.append(at)
        else:
            ops.append(f"s_mov_b32 {S(sT1)}, {1024*896*half}")
            ops.append(f"buffer_store_dwordx4 {V(a+24,4)}, {V(vO)}, {S(SRD_OUT,4)}, {S(sT1)} offen" + ("", " sc1", " nt", " sc0 sc1")[opt(f"osc{half}", 2)])
        return ops
    NUP2 = opt("nup2", NR)
    for i in range(nl[0], NUP2):
        ld()
        run(st, (len(st) + NUP2 - i - 1) // (NUP2 - i))
        if i == opt("flagB", 7):
            k.wait_tag_vm(("h", 3))
            gflag(layer, 1)
            sentB = True
    assert not st
    fine("up2")
    stamp(16)
    PB = opt("pollB", 7)
    TL = opt("tl", 4)
    order = [(i, dt) for i in range(56 - TL) for dt in range(2)] + [(i, dt) for dt in range(2) for i in range(56 - TL, 56)]
    bar()
    GAP = "gap"
    pend = [GAP] * 2 + [GAP if o is None else o for o in post]
    if layer and ROWST:
        pend += [f"ds_bpermute_b32 {V(r)}, {V(vAT)}, {V(r)}" for r in list(range(G2RES, G2RES + 8)) + [G2R, G2R + 2]] + [GAP] * 3
    pend += unpack(0, UR)
    okB = False
    flagE = layer == 1
    BUD2 = opt("bud2", 24)
    for n, (i, dt) in enumerate(order):
        half, s = divmod(i, 28)
        d = V(ACC + 32 * half + 16 * dt, 16)
        assert NW2[0] + 28 > s * 2 + dt, "W2 fragment used before its load"
        k(f"v_mfma_f32_32x32x16_bf16 {d}, {A((s*2+dt)*4,4)}, {rn(i)}, {d if s else 0}")
        b = (BUD2 if i < 28 else opt("bud3", BUD2)) - (4 if dt else 0)
        if dt == 0 and i < 56 - TL:
            if i + NUP2 == opt("flagB", 7):
                k.wait_tag_vm(("h", 3))
                gflag(layer, 1)
                sentB = True
                b = 0
            if FAST and i and i == opt("qb", 29):
                assert sentB and i <= opt("red0", 29) + 2
                run(gflag_ops(1, False))
                b = 0
            if i == PB:
                poll_load(vPL2, vF2P, S(sFP), GB)
                assert sentB
                b -= 14
            if nl[0] == 28 and not okB and i > PB and (i >= opt("chkB", 99) or not any(f"v{vPL2}" in p[0] for p in k.vm[1:])):
                assert not pend
                precmp(vPL2)
                okB = None
        if dt == 1 and okB is None:
            gcheck(1)
            if FAST and not opt("qb", 29):
                pend += [GAP, lambda: run(gflag_ops(1, False))]
            okB = True
            b -= 4
        if dt == 1 and i < 56 - TL:
            if i in (13, 27, 41):
                stamp({13: 8, 27: 23, 41: 26}[i])
            if i == opt("red0", 29):
                for o in red_write(0):
                    pend += [o] + [GAP] * opt("rwg", 1)
                pend += [GAP] * opt("rw2", 1) + [bar] + red_read(0) + [GAP] * opt("rr2", 2) + fin(0, False) + unpack(1, UR)
        assert i < 56 - TL or nl[0] == 56
        if nl[0] < 56 and nl[0] - NR < i + dt and (nl[0] < 28 or okB) and (dt or opt("catch", 1)):
            ld()
            b -= 14
        while pend and not (layer and nl[0] < 56 and "buffer_store" in str(pend[0])):
            o = pend[0]
            if o is GAP:
                pend.pop(0)
                break
            cost = 8 if str(o).startswith("ds_read") else 12 if str(o).startswith("ds_bperm") else 4
            if b < cost and not str(o).startswith("ds_write"):
                break
            run(pend, 1)
            b -= cost if isinstance(o, str) else 16
        if n == opt("flagE", 104) and layer == 0:
            assert not any("atomic" in str(o) or callable(o) for o in pend)
            k.wait_tag_vm(("st", 0))
            k("s_barrier")
            aflag(F_CIN1[0])
            flagE = True
        if EARLY and layer == 0 and n == opt("pollE", 108):
            assert flagE
            apoll_load(F_CIN1[0])
        if n % 10 == 1:
            fine(f"m{n}")
        if n == 112 - TL - 1:
            assert not pend
            pend += ["s_nop 3", GAP, "s_nop 3", GAP]
            for o in red_write(1)[:4]:
                pend += [o, GAP]
    run([o for o in pend if o is not GAP])
    assert nl[0] == 56 and okB
    stamp(18)
    run(red_write(1)[4:])
    if not flagE:
        k.wait_tag_vm(("st", 0))
    if layer == 0 and opt("pt", 1) == 0:
        apoll_load(F_CIN1[0])
    bar()
    if not flagE:
        aflag(F_CIN1[0])
    fine("bar")
    run(red_read(1))
    if layer == 0 and opt("pt", 1) == 1:
        apoll_load(F_CIN1[0])
    run(fin(1, True))
    fine("out")
    stamp(19)

def finish():
    if ENC >= 0:
        k.wait(vm=0)
        stamp(22)
        k(f"s_cmp_lg_u32 {S(sWG)}, 100")
        k("s_cbranch_scc1 L_end")
        k("s_sub_u32 s47, s47, s46" if ENC else "s_sub_u32 s47, s46, s46")
        k("s_mul_i32 s47, s47, 100")
        k("s_min_u32 s47, s47, 1000000")
        k(f"s_memrealtime {S(sTM,2)}")
        k.wait(lg=0)
        k(f"s_mov_b32 s46, {S(sTM)}")
        k.label("L_spin")
        k(f"s_memrealtime {S(sTM,2)}")
        k.wait(lg=0)
        k(f"s_sub_u32 {S(sT0)}, {S(sTM)}, s46")
        k(f"s_cmp_lt_u32 {S(sT0)}, s47")
        k("s_cbranch_scc1 L_spin")
    if DIAG:
        if not opt("noend", 0):
            k.wait(vm=0)
        stamp(22)
        for n, (name, r) in enumerate(FINE):
            k(f"v_writelane_b32 {V(vSTAMP)}, s{r}, {20 + n}")
        k(f"v_writelane_b32 {V(vSTAMP)}, s101, 61")
        k.raw("; SITES " + " ".join(SITES))
        if FINE:
            k.raw("; FINE " + " ".join(n for n, _ in FINE))
        k(f"s_lshl_b32 {S(sT0)}, {S(sWG)}, 10")
        k(f"s_add_u32 {S(sT0)}, {S(sT0)}, {hex(STAMP)}")
        k(f"s_lshl_b32 {S(sT1)}, {S(sW)}, 8")
        k(f"v_lshl_add_u32 {V(WK)}, {V(vL)}, 2, {S(sT1)}")
        k(f"buffer_store_dword {V(vSTAMP)}, {V(WK)}, {S(SRD_WS,4)}, {S(sT0)} offen")
    k.label("L_end")
    k("s_endpgm")

prologue()
main_start()
kgen()
conv(0)
ffn(0)
layer_turn()
conv(1)
ffn(1)
finish()
k.raw("; END OF MAIN - bounded retry loops of the hand-off polls follow")
cut = [i for i, l in enumerate(SLOW) if l.startswith("L_slow")]
NS = opt("ns", 4)
first = len(cut) - 10
for n, i in enumerate(cut):
    if n >= first and (n - first) % 3 == 0 and (n - first) // 3 < 4:
        k.raw(f"L_st{(n - first) // 3}:")
        k.raw(f"    s_branch L_ret{1 + (n - first) // 6}")
    for l in SLOW[i:(cut + [len(SLOW)])[n + 1]]:
        k.raw(l)
SLOW.clear()
LAY[0] = 0
helper()
body = list(k.lines) + SLOW
body += [".p2align 4", ".type L_table,@object", "L_table:"]
body += [".long " + ",".join(hex(w) for w in r) for r in table_words()]
body += ["L_table_end:"]

DOC = """;
; One persistent launch, one workgroup per CU (generated by the author's own script).
;   rows of x -> channel-major copy + row sums (atomics)        [hand-off to every workgroup]
;   K[l] = Re sum_n C dB exp(dt A bf16(l)): the 641 distinct exponents as a 21 x 32 outer sum, summed over
;          the modes with MFMA, expanded to two shifted Toeplitz copies in LDS (Dskip folded into lag 0)
;   2 x { LayerNorm -> causal Toeplitz MFMA conv + residual     [hand-off to every workgroup]
;         GEMM1 (mean folded into centred W1) -> ReLU           [hand-off inside a 14-workgroup row group]
;         GEMM2 * rstd + residual, row sums for the next norm } [hand-off to every workgroup]
;   W1 minus its column means is rounded with error feedback (columns keep summing to zero), so the row
;   mean cancels for any input; 1/std is applied after GEMM2 (ReLU commutes with a positive scale).
; Hand-offs: sc1 stores -> vmcnt -> (barrier) -> sc1 flag; consumers poll with sc1 loads (bounded retry
; loops after the main code).  All flag words are cleared inside the launch (d_debug carries the 'cleared'
; words).  Row-group flags have a plain-store twin that is seen sooner on the same die; a consumer that
; does not see the twin falls back to the device-wide word, so placement only affects speed.
"""
ref = open("cdna_kernels/%s.s.ref" % NAME).read().splitlines()
hdr = [l for l in ref if l.startswith(";") and "@launch" not in l]
head = f""".amdgcn_target "amdgcn-amd-amdhsa--gfx950"
.text
.globl {NAME}_kernel
.p2align 8
.type {NAME}_kernel,@function
{NAME}_kernel:
"""
if opt("align", 1):
    body = align(body, head, stubs=stub_targets())
out = "\n".join(hdr) + f"\n; @launch grid=(256,1,1) block=(256,1,1) lds={LDS_BYTES}\n"
out += DOC + head + "\n".join(body) + "\n"
out += f""".section .rodata,"a"
.p2align 6
.amdhsa_kernel {NAME}_kernel
  .amdhsa_next_free_vgpr 512
  .amdhsa_next_free_sgpr 102
  .amdhsa_accum_offset 256
  .amdhsa_group_segment_fixed_size 0
  .amdhsa_kernarg_size 120
  .amdhsa_user_sgpr_count 2
  .amdhsa_user_sgpr_kernarg_segment_ptr 1
  .amdhsa_system_sgpr_workgroup_id_x 1
.end_amdhsa_kernel
"""
dst = [a for a in sys.argv[1:] if not a.startswith("--")]
dst = dst[0] if dst else "cdna_kernels/%s.s" % NAME
open(dst, "w").write(out)
print("instructions:", k.nins, "->", dst)
```
